```python
import torch

def _softmax(x, axis=-1):
    return torch.softmax(x, dim=axis)

def _gelu(x):
    return torch.nn.functional.gelu(x, approximate='tanh')

def _silu(x):
    return torch.nn.functional.silu(x)

def _sigmoid(x):
    return torch.sigmoid(x)

def _layernorm(x, axis=-1, eps=1e-05):
    m = x.mean(dim=axis, keepdim=True)
    v = x.var(dim=axis, keepdim=True, unbiased=False)
    return (x - m) / torch.sqrt(v + eps)

def _scatter_add(tgt, idx, src, axis=0):
    return tgt.clone().index_add_(axis, idx, src)

def _segment_sum(src, seg, n):
    out = torch.zeros((n,) + src.shape[1:], dtype=src.dtype)
    return out.index_add_(0, seg, src)

def _pad(x, pw):
    flat = tuple((v for pair in reversed(pw) for v in pair))
    return torch.nn.functional.pad(x, flat)
kernel_name = 'adaLN_cond__compressed_kv_cla__mixer_gmlp__prompt'

def setup_inputs():

    _w = lambda a: (lambda t: t.to(torch.bfloat16) if t.is_floating_point() else t)(torch.as_tensor(a))

    def _A_setup():
        B, H, Sq, Sk, D, M = (1, 32, 2048, 2048, 128, 640)
        Dc = 4 * D
        return {'x': _w((lambda *s: torch.randn(*s, dtype=torch.bfloat16) * 0.05)(B, Sq, M)), 'c_kv': _w((lambda *s: torch.randn(*s, dtype=torch.bfloat16) * 1.6)(B, Sk, Dc)), 'w_q': _w((lambda *s: torch.randn(*s, dtype=torch.bfloat16) * 0.8)(M, H, D) * M ** (-0.5)), 'w_uk': _w((lambda *s: torch.randn(*s, dtype=torch.bfloat16) * 0.8)(Dc, H, D) * Dc ** (-0.5)), 'w_uv': _w((lambda *s: torch.randn(*s, dtype=torch.bfloat16) * 1.6)(Dc, H, D) * Dc ** (-0.5)), 'w_o': _w((lambda *s: torch.randn(*s, dtype=torch.bfloat16) * 1.6)(H, D, M) * (H * D) ** (-0.5))}
    _A_in = _A_setup()

    def _B_setup():
        B, S, D, F = (1, 2048, 640, 1728)
        Fh = F // 2
        return {'x': _w((lambda *s: torch.randn(*s, dtype=torch.bfloat16) * 0.05)(B, S, D)), 'w_in': _w((lambda *s: torch.randn(*s, dtype=torch.bfloat16) * 0.4)(D, 2 * Fh)), 'w_sp': _w(0.01 * (lambda *s: torch.randn(*s, dtype=torch.bfloat16) * 0.4)(S, S)), 'b_sp': _w(1.0 + 0.01 * (lambda *s: torch.randn(*s, dtype=torch.bfloat16) * 0.05)(S)), 'w_out': _w((lambda *s: torch.randn(*s, dtype=torch.bfloat16) * 0.05)(Fh, D))}
    _B_in = _B_setup()
    return {'A_x': _A_in['x'], 'A_c_kv': _A_in['c_kv'], 'A_w_q': _A_in['w_q'], 'A_w_uk': _A_in['w_uk'], 'A_w_uv': _A_in['w_uv'], 'A_w_o': _A_in['w_o'], 'B_x': _B_in['x'], 'B_w_in': _B_in['w_in'], 'B_w_sp': _B_in['w_sp'], 'B_b_sp': _B_in['b_sp'], 'B_w_out': _B_in['w_out'], 'c': _w((lambda *s: torch.randn(*s, dtype=torch.bfloat16) * 0.1)(1, 640) * 8.0), 'w_mod': _w((lambda *s: torch.randn(*s, dtype=torch.bfloat16) * 0.1)(640, 6 * 640) * 640 ** (-0.5) * 8.0)}

def reference(A_x, A_c_kv, A_w_q, A_w_uk, A_w_uv, A_w_o, B_x, B_w_in, B_w_sp, B_b_sp, B_w_out, c, w_mod):

    def _A_ref(x, c_kv, w_q, w_uk, w_uv, w_o):
        B, Sq, M = (x.shape[0], x.shape[1], x.shape[2])
        Sk = c_kv.shape[1]
        H, D = (w_q.shape[1], w_q.shape[2])
        q = torch.einsum('bqm,mhd->bhqd', x, w_q)
        k = torch.einsum('bkc,chd->bhkd', c_kv, w_uk)
        v = torch.einsum('bkc,chd->bhkd', c_kv, w_uv)
        scores = torch.einsum('bhqd,bhkd->bhqk', q, k) * D ** (-0.5)
        off = Sk - Sq
        qi = torch.arange(Sq)[:, None]
        kj = torch.arange(Sk)[None, :]
        cmask = kj <= qi + off
        scores = torch.where(cmask[None, None], scores, -1000000000.0)
        p = _softmax(scores, axis=-1)
        ctx = torch.einsum('bhqk,bhkd->bhqd', p, v)
        return torch.einsum('bhqd,hdm->bqm', ctx, w_o)

    def _B_ref(x, w_in, w_sp, b_sp, w_out):
        B, S, D = x.shape
        F = w_in.shape[-1]
        Fh = F // 2
        z = _gelu(torch.einsum('bsd,df->bsf', x, w_in))
        z1 = z[..., :Fh].clone()
        z2 = _layernorm(z[..., Fh:], axis=-1)
        g = torch.einsum('ts,bsf->btf', w_sp, z2) + b_sp[None, :, None]
        return torch.einsum('bsf,fd->bsd', z1 * g, w_out)
    x = A_x
    mod = (_silu(c) @ w_mod).reshape(c.shape[0], 6, 1, -1)
    sa, ca, ga, sb, cb, gb = (mod[:, 0].clone(), mod[:, 1].clone(), mod[:, 2].clone(), mod[:, 3].clone(), mod[:, 4].clone(), mod[:, 5].clone())
    h = _layernorm(x, axis=-1) * (1 + ca) + sa
    x = x + ga * _A_ref(h, A_c_kv, A_w_q, A_w_uk, A_w_uv, A_w_o)
    h = _layernorm(x, axis=-1) * (1 + cb) + sb
    x = x + gb * _B_ref(h, B_w_in, B_w_sp, B_b_sp, B_w_out)
    return x
```

```python
import re

REG = re.compile(r"^(-?)(abs\()?([vas])(?:(\d+)|\[(\d+):(\d+)\])\)?$")

def regs_of(tok):
    tok = tok.strip()
    if tok.startswith("|") and tok.endswith("|"): tok = tok[1:-1]
    if tok.startswith("-|") and tok.endswith("|"): tok = tok[2:-1]
    if tok in ("vcc", "vcc_lo", "vcc_hi"): return {("s", 106), ("s", 107)}
    if tok in ("exec", "exec_lo", "exec_hi"): return {("s", 126), ("s", 127)}
    if tok == "m0": return {("s", 124)}
    m = REG.match(tok)
    if not m: return set()
    f = m.group(3)
    if m.group(4) is not None: return {(f, int(m.group(4)))}
    return {(f, i) for i in range(int(m.group(5)), int(m.group(6)) + 1)}

TRANS = ("v_exp_f32", "v_log_f32", "v_rcp_f32", "v_rsq_f32", "v_sqrt_f32", "v_sin_f32", "v_cos_f32", "v_rcp_iflag_f32")

class I:
    __slots__ = ("t", "op", "kind", "w", "r", "srcc", "tag", "passes", "dpp", "ab")
    def __init__(self, text, tag=None):
        self.t = text; self.tag = tag
        s = text.split(";")[0].strip()
        self.w = set(); self.r = set(); self.srcc = set(); self.ab = set(); self.passes = 0; self.dpp = False
        if s.endswith(":") or s.startswith(".") or s == "":
            self.op = ""; self.kind = "label"; return
        if s.startswith("@"):
            self.op = s.split()[0]; self.kind = "pseudo"; return
        p = s.split(None, 1); op = p[0]; self.op = op
        rest = p[1] if len(p) > 1 else ""
        ops = [x.strip() for x in rest.split(",")]
        if ops:
            last = ops[-1].split()
            mods = last[1:]; ops[-1] = last[0] if last else ""
        else: mods = []
        R = [regs_of(o) for o in ops]
        def rd(idx):
            for i in idx:
                if i < len(R): self.r |= R[i]
        if op.startswith("v_mfma"):
            self.kind = "mfma"; self.w = R[0]; rd((1, 2, 3)); self.srcc = R[3]; self.ab = R[1] | R[2]
            self.passes = 8 if "32x32" in op else 4
        elif op.startswith("ds_read") or op.startswith("ds_bpermute") or op.startswith("ds_swizzle") or op.startswith("ds_permute") or (op.startswith("ds_") and "_rtn" in op):
            self.kind = "ds"; self.w = R[0]; rd(range(1, len(R)))
        elif op.startswith("ds_"):
            self.kind = "ds"; rd(range(len(R)))
        elif op.startswith("buffer_load") or op.startswith("global_load"):
            self.kind = "vmem"
            if "lds" in mods or "_lds_" in op:
                rd(range(len(R))); self.r |= {("s", 124)}
            else:
                self.w = R[0]; rd(range(1, len(R)))
        elif op.startswith("buffer_atomic") or op.startswith("global_atomic"):
            self.kind = "vmem"; rd(range(len(R)))
            if "sc0" in mods: self.w = R[0]
        elif op.startswith("buffer_") or op.startswith("global_"):
            self.kind = "vmem"; rd(range(len(R)))
        elif op.startswith("s_load") or op.startswith("s_buffer_load") or op in ("s_memtime", "s_memrealtime"):
            self.kind = "smem"; self.w = R[0]; rd(range(1, len(R)))
        elif op == "s_waitcnt": self.kind = "wait"
        elif op == "s_nop": self.kind = "nop"
        elif op in ("s_barrier", "s_endpgm", "s_setprio", "s_sleep") or op.startswith("s_branch") or op.startswith("s_cbranch"):
            self.kind = "ctl"
            if "vcc" in op: self.r |= regs_of("vcc")
            if "exec" in op: self.r |= regs_of("exec")
        elif op.startswith("s_"):
            self.kind = "salu"
            if op.startswith("s_cmp") or op.startswith("s_bitcmp"): rd(range(len(R)))
            else:
                self.w = R[0]; rd(range(1, len(R)))
                if "saveexec" in op: self.w |= regs_of("exec"); self.r |= regs_of("exec")
                if op in ("s_addk_i32", "s_mulk_i32", "s_cmov_b32", "s_cmov_b64", "s_bitset1_b32", "s_bitset0_b32"): self.r |= R[0]
        elif op.startswith("v_"):
            self.kind = "valu"
            self.dpp = any(m.startswith(("row_", "quad_perm", "wave_")) for m in mods) or op.endswith("_dpp")
            if op == "v_nop": pass
            elif op.startswith("v_permlane") and "swap" in op:
                self.w = R[0] | R[1]; rd((0, 1))
            elif op.startswith("v_cmpx"):
                self.w = R[0] | regs_of("exec"); rd(range(1, len(R)))
            elif "_co_" in op or op.startswith("v_div_scale") or op.startswith("v_mad_u64"):
                self.w = R[0] | R[1]; rd(range(2, len(R)))
            else:
                self.w = R[0]; rd(range(1, len(R)))
                if op.startswith(("v_fmac", "v_pk_fmac", "v_writelane", "v_dot2c")) or self.dpp: self.r |= R[0]
                if op.startswith("v_cndmask") and len(ops) == 3: self.r |= regs_of("vcc")
        else:
            raise ValueError("unknown op: " + text)
    def states(self):
        if self.kind in ("label", "pseudo"): return 0
        if self.kind == "nop": return int(self.t.split()[1]) + 1
        return 1
    def is_trans(self): return self.op.replace("_e32", "").replace("_e64", "") in TRANS

def need_states(p, c):
    n = 0
    vw = {x for x in p.w if x[0] != "s"}; sw = {x for x in p.w if x[0] == "s"}
    if p.kind == "valu":
        if c.kind == "mfma" and vw & c.r: n = max(n, 2)
        if c.kind == "mfma" and ("s", 126) in sw: n = max(n, 4)
        if c.kind == "valu":
            if c.dpp and vw & c.r: n = max(n, 2)
            if c.dpp and ("s", 126) in sw: n = max(n, 5)
            if c.op.startswith("v_permlane") and vw & c.r: n = max(n, 2)
            if c.op.startswith(("v_permlane", "v_readlane", "v_readfirstlane", "v_writelane")) and ("s", 126) in sw: n = max(n, 4)
            if c.op.startswith(("v_readlane", "v_readfirstlane")) and vw & c.r: n = max(n, 1)
            if p.is_trans() and vw & c.r: n = max(n, 1)
            if sw & c.r:
                n = max(n, 4 if c.op.startswith(("v_readlane", "v_writelane", "v_div_fmas")) else 2)
            if ("op_sel" in p.t or "sdwa" in p.t or "dst_sel" in p.t) and vw & (c.r | c.w): n = max(n, 1)
        if c.kind == "vmem" and sw & c.r: n = max(n, 5)
        if c.kind in ("salu", "ctl", "smem") and sw & c.r: n = max(n, 1 if c.kind != "ctl" else 1)
    if p.kind == "salu" and ("s", 124) in sw:
        if (c.kind == "vmem" and ("s", 124) in c.r) or "addtid" in c.op or c.op.startswith("s_movrel") or (c.kind == "valu" and ("s", 124) in c.r): n = max(n, 1)
    if p.kind == "mfma":
        k = {4: 0, 8: 1}[p.passes]
        if c.kind == "mfma":
            if p.w & c.ab: n = max(n, (8, 12)[k])
            if p.w & c.srcc:
                if not (p.w == c.srcc and p.passes == c.passes): n = max(n, (6, 10)[k])
            elif p.w & c.w: n = max(n, (6, 10)[k])
        elif c.kind in ("valu", "ds", "vmem"):
            if p.w & (c.r | c.w): n = max(n, (8, 12)[k])
        if c.kind == "valu" and p.srcc & c.w: n = max(n, (3, 7)[k])
        if c.kind in ("ds", "vmem") and p.srcc & c.w: n = max(n, (3, 7)[k])
    if p.kind == "vmem" and ("x4" in p.op or "x3" in p.op) and "store" in p.op:
        data = regs_of(p.t.split(None, 1)[1].split(",")[0 if p.op.startswith("buffer") else 1])
        if data & c.w: n = max(n, 2 if c.kind == "valu" else 1)
    return n

class State:
    def __init__(self, lg=None, vm=None, tail=None):
        self.lg = list(lg or []); self.vm = list(vm or []); self.tail = list(tail or [])
    def copy(self): return State(self.lg, self.vm, self.tail)

def _parse_wait(t):
    vm = re.search(r"vmcnt\((\d+)\)", t); lg = re.search(r"lgkmcnt\((\d+)\)", t)
    return (int(vm.group(1)) if vm else None, int(lg.group(1)) if lg else None)

def resolve(ins, st, stats=None):
    out = []
    def emit(i):
        if i.kind not in ("label", "pseudo"):
            dist = 0; need = 0
            for p in reversed(st.tail):
                n = need_states(p, i)
                if n > dist: need = max(need, n - dist)
                dist += p.states()
                if dist >= 20: break
            if need > 0:
                while need > 0:
                    k = min(need, 16); nop = I(f"s_nop {k-1}"); out.append(nop); st.tail.append(nop); need -= k
                    if stats is not None: stats["nops"] = stats.get("nops", 0) + k
            st.tail.append(i); st.tail = st.tail[-24:]
        out.append(i)
    def do_wait(vm, lg):
        parts = []
        if vm is not None and vm < len(st.vm):
            vm = min(vm, 63); parts.append(f"vmcnt({vm})"); st.vm = st.vm[len(st.vm) - vm:] if vm else []
        if lg is not None and lg < len(st.lg):
            if any(e[2] for e in st.lg): lg = 0
            lg = min(lg, 15); parts.append(f"lgkmcnt({lg})"); st.lg = st.lg[len(st.lg) - lg:] if lg else []
        if parts: emit(I("s_waitcnt " + " ".join(parts)))
    for i in ins:
        if i.kind == "pseudo":
            a = i.t.split()
            if a[0] == "@waitvm":
                idx = [k for k, e in enumerate(st.vm) if e[1] == a[1]]
                if idx: do_wait(len(st.vm) - 1 - max(idx), None)
            elif a[0] == "@waitlg":
                idx = [k for k, e in enumerate(st.lg) if e[1] == a[1]]
                if idx: do_wait(None, len(st.lg) - 1 - max(idx))
            elif a[0] == "@retag":
                st.vm = [(e[0], a[2] if e[1] == a[1] else e[1], e[2]) for e in st.vm]
            elif a[0] == "@need":
                rs = set()
                for x in a[1:]: rs |= regs_of(x)
                vm = [k for k, e in enumerate(st.vm) if e[0] & rs]; lg = [k for k, e in enumerate(st.lg) if e[0] & rs]
                do_wait(len(st.vm) - 1 - max(vm) if vm else None, len(st.lg) - 1 - max(lg) if lg else None)
            else: raise ValueError(i.t)
            out.append(i)
            continue
        if i.kind == "wait":
            vm, lg = _parse_wait(i.t)
            if vm is not None and vm < len(st.vm): st.vm = st.vm[len(st.vm) - vm:] if vm else []
            if lg is not None and lg < len(st.lg):
                if lg == 0 or not any(e[2] for e in st.lg): st.lg = st.lg[len(st.lg) - lg:] if lg else []
            emit(i); continue
        touch = i.r | i.w
        if touch:
            vm = [k for k, e in enumerate(st.vm) if e[0] & touch]
            lg = [k for k, e in enumerate(st.lg) if e[0] & touch]
            if i.kind == "vmem": vm = [k for k in vm if st.vm[k][0] & i.r]
            if i.kind == "ds": lg = [k for k in lg if st.lg[k][0] & i.r or st.lg[k][2]]
            if vm or lg:
                do_wait(len(st.vm) - 1 - max(vm) if vm else None, len(st.lg) - 1 - max(lg) if lg else None)
        emit(i)
        if i.kind == "vmem": st.vm.append((set(i.w), i.tag, False))
        elif i.kind == "ds": st.lg.append((set(i.w), i.tag, False))
        elif i.kind == "smem": st.lg.append((set(i.w), i.tag, True))
    return out

def _sig(st):
    return (tuple((tuple(sorted(e[0])), e[1], e[2]) for e in st.lg), tuple((tuple(sorted(e[0])), e[1]) for e in st.vm),
            tuple(x.t for x in st.tail[-20:]))

def dedupe(states):
    seen = {}
    for s in states: seen.setdefault(_sig(s), s)
    return list(seen.values())

def toI(ins):
    out = []
    for b in ins:
        if isinstance(b, I): out.append(b)
        elif isinstance(b, (list, tuple)): out += toI(b)
        else:
            for l in b.split("\n"):
                if l.strip(): out.append(I(l.strip()))
    return out

def seg(ins, preds):
    r = toI(ins)
    while True:
        n = len(r); exits = []
        for st in preds:
            s = st.copy(); r = resolve(r, s); exits.append(s)
        if len(r) == n: return r, dedupe(exits)

class B:
    def __init__(self):
        self.out = []; self.cur = []; self.sts = [State()]
    def __call__(self, text, tag=None):
        if isinstance(text, I): self.cur.append(text); return
        if isinstance(text, (list, tuple)):
            for t in text: self(t, tag)
            return
        for l in text.split("\n"):
            l = l.strip()
            if l: self.cur.append(I(l, tag))
    def flush(self):
        if self.cur:
            r, self.sts = seg(self.cur, self.sts); self.out += r; self.cur = []
        return self.sts
    def label(self, name, preds=None, align=0):
        self.flush()
        if align: self.out.append(I(f".p2align {align}"))
        self.out.append(I(name + ":"))
        if preds is not None: self.sts = dedupe(preds)
    def chain_loop(self, bodies, align=6):
        self.flush()
        rs = [toI(b) for _, b in bodies]
        ins = list(self.sts)
        st = ins
        for k in range(len(rs)): _, st = seg(rs[k], st)
        ins = dedupe(st + ins)
        while True:
            n0 = [len(r) for r in rs]; st = ins; outs = []
            for k in range(len(rs)):
                rs[k], st = seg(rs[k], st); outs.append(st)
            new = dedupe(ins + st)
            if len(new) == len(ins) and n0 == [len(r) for r in rs]: break
            ins = new
        for k, ((lab, _), r) in enumerate(zip(bodies, rs)):
            if k == 0 and align: self.out.append(I(f".p2align {align}"))
            self.out.append(I(lab + ":")); self.out += r
        self.sts = outs[-1]
        return ins, outs
    def check_scc(self):
        last = None
        for i in self.out:
            if i.op.startswith(("s_cselect", "s_cbranch_scc", "s_addc", "s_cmov")):
                assert last is None or last.op.startswith(("s_cmp", "s_bitcmp", "s_or_b64", "s_andn2", "s_and_b64")), f"SCC consumer {i.t} after {last.t}"
            if i.kind == "salu" and not i.op.startswith(("s_mov", "s_cselect", "s_mul", "s_getpc", "s_getreg", "s_cmov")): last = i
    def text(self):
        self.flush(); self.check_scc(); return "\n".join(("" if i.kind == "label" else "  ") + i.t for i in self.out if i.kind != "pseudo")

def weave(mf, fill):
    out = list(fill.get(-1, []))
    for k, m in enumerate(mf):
        out.append(m); out += fill.get(k, [])
    return out

def kd(name, vgpr, acc, sgpr=102):
    return f""".amdhsa_kernel {name}
  .amdhsa_next_free_vgpr {vgpr}
  .amdhsa_next_free_sgpr {sgpr}
  .amdhsa_accum_offset {acc}
  .amdhsa_group_segment_fixed_size 0
  .amdhsa_kernarg_size 128
  .amdhsa_user_sgpr_count 2
  .amdhsa_user_sgpr_kernarg_segment_ptr 1
  .amdhsa_system_sgpr_workgroup_id_x 1
  .amdhsa_float_denorm_mode_32 3
.end_amdhsa_kernel"""

def V(i, n=1): return f"v{i}" if n == 1 else f"v[{i}:{i+n-1}]"
def A(i, n=1): return f"a{i}" if n == 1 else f"a[{i}:{i+n-1}]"
def S(i, n=1): return f"s{i}" if n == 1 else f"s[{i}:{i+n-1}]"
def MF(d, a, b, c): return f"v_mfma_f32_16x16x32_bf16 {d}, {a}, {b}, {c}"


class Sched:
    ORDER = {"pre": 0, "salu": 1, "ds": 2, "vmem": 2, "valu": 3, "post": 4}
    def __init__(self, mf, cap=2):
        self.mf = list(mf); n = len(mf)
        self.free = [cap] * n; self.g = [[] for _ in range(n)]; self.head = []; self.nsalu = [0] * n
        self.over = []
    def put(self, ins, earliest, tag=None, force=False):
        i = ins if isinstance(ins, I) else I(ins, tag)
        earliest = max(earliest, 0)
        if i.kind == "valu": cost = 2 if i.is_trans() else 1; cls = "valu"
        elif i.kind == "ds": cost = 1; cls = "ds"
        elif i.kind == "vmem": cost = 2; cls = "vmem"
        else: cost = 0; cls = "salu"
        for k in range(earliest, len(self.mf)):
            if force: ok = True
            elif cls == "salu": ok = self.nsalu[k] < 1
            elif cls == "ds": ok = self.free[k] >= 1 and not any(c in ("ds", "vmem") for c, _ in self.g[k])
            else: ok = self.free[k] >= cost
            if ok:
                self.free[k] -= cost
                if cls == "salu": self.nsalu[k] += 1
                self.g[k].append((cls, i)); return k
        self.over.append(i); return len(self.mf)
    def raw(self, ins, gap, where="post"):
        for x in (ins if isinstance(ins, (list, tuple)) else [ins]):
            i = x if isinstance(x, I) else I(x)
            if gap >= len(self.mf): self.over.append(i)
            elif gap < 0: self.head.append(i)
            else: self.g[gap].append((where, i))
    def emit(self):
        out = list(self.head)
        for k, m in enumerate(self.mf):
            out.append(m if isinstance(m, I) else I(m))
            out += [i for _, i in sorted(self.g[k], key=lambda e: self.ORDER[e[0]])]
        return out + self.over
```

```python
import sys, importlib
sys.path.insert(0, "gen")
HEADER = open("adaLN_cond__compressed_kv_cla__mixer_gmlp__prompt.s.ref").read().split("; Override launch")[0]
def assemble(ks, path):
    with open(path, "w") as f:
        f.write(HEADER)
        for k in ks: f.write(k["launch"] + "\n")
        if ks[0].get("stamps"): f.write("; stamps: " + ",".join(ks[0]["stamps"]) + "\n")
        f.write('.amdgcn_target "amdgcn-amd-amdhsa--gfx950"\n.text\n')
        seen = set()
        for k in ks:
            if k["name"] in seen: continue
            seen.add(k["name"])
            f.write(f".globl {k['name']}\n.p2align 8\n.type {k['name']},@function\n{k['text']}\n")
        f.write('code_end:\n.section .rodata,"a"\n')
        seen = set()
        for k in ks:
            if k["name"] in seen: continue
            seen.add(k["name"])
            f.write(".p2align 6\n" + k["kd"] + "\n")
```

```python
from asmlib import *
WS_MOD  = 0x0000000
WS_VEC  = 0x0008000
WS_ST1  = 0x0010000
WS_ST2  = 0x0040000
WS_STAMP= 0x00C0000
WS_H    = 0x0100000
WS_K    = 0x0400000
WS_V    = 0x1400000
WS_CTX  = 0x2400000
WS_WO   = 0x3400000
WS_WIN  = 0x3A00000
WS_WOUT = 0x3D00000
WS_WSP  = 0x4000000
WS_XA   = 0x4800000
WS_X1   = 0x4B00000
WS_Z1   = 0x5100000
WS_Z2   = 0x5900000
WS_U    = 0x5D00000
WS_SIZE = 0x10000000
OOB = 0x40000000
ARG = dict(x=0, ckv=8, wq=16, wuk=24, wuv=32, wo=40, bx=48, win=56, wsp=64, bsp=72, wout=80, c=88, wmod=96, out=104, dbg=112, ws=120)
SIZE = dict(x=2048*640*2, ckv=2048*512*2, wq=640*4096*2, wuk=512*4096*2, wuv=512*4096*2, wo=4096*640*2, win=640*1728*2,
            wsp=2048*2048*2, bsp=2048*2, wout=864*640*2, c=640*2, wmod=640*3840*2, out=2048*640*2, dbg=256, ws=WS_SIZE)
LOG2E = 1.4426950408889634
import struct
def f2u(x): return struct.unpack("<I", struct.pack("<f", x))[0]
def FH(x): return hex(f2u(x))

def load_srds(b, names, base):
    r = {}
    for i, n in enumerate(names):
        r[n] = base + 4 * i
        b(f"s_load_dwordx2 {S(r[n],2)}, s[0:1], {ARG[n]}")
    b("s_waitcnt lgkmcnt(0)")
    for n in names:
        b(f"s_mov_b32 {S(r[n]+2)}, {hex(SIZE[n])}")
        b(f"s_mov_b32 {S(r[n]+3)}, 0x20000")
    return r

class Stamper:
    def __init__(self, on, base_sgpr, slot):
        self.on = on; self.base = base_sgpr; self.n = 0; self.slot = slot; self.names = []
    def stamp(self, b, name):
        if not self.on: return
        b.flush()
        b(f"s_memrealtime s[100:101]")
        b("s_waitcnt lgkmcnt(0)")
        b(f"s_mov_b32 {S(self.base + self.n)}, s100")
        self.n += 1; self.names.append(name)
    def dump(self, b, sws, swg, swave, vt):
        if not self.on: return
        b(f"s_lshl_b32 s100, {S(swg)}, 2"); b(f"s_add_u32 s100, s100, {S(swave)}"); b("s_lshl_b32 s100, s100, 6")
        b(f"s_add_u32 s100, s100, {hex(0x8000000 + self.slot * 0x10000)}")
        b(f"v_mov_b32 {V(vt+1)}, 0")
        for i in range(self.n):
            b(f"v_mov_b32 {V(vt)}, {S(self.base+i)}")
            b(f"buffer_store_dword {V(vt)}, {V(vt+1)}, {S(sws,4)}, s100 offen offset:{4*i}")
            b("s_waitcnt vmcnt(0)")
```

```python
from common import *

QSCALE = LOG2E / (128 ** 0.5)
NEGBIG = -1.0e30
L_LO, L_HI = 2.0 ** -40, 2.0 ** 40
DB_MOD, DB_H, DB_KV = 0, 16, 32
SPIN_MAX = 1000000

def gen(name="ka_kernel", stamps=False, force_fallback=False):
    b = B()
    T = Stamper(stamps, 84, 0)
    b(f"{name}:")
    b("s_cmp_ge_u32 s2, 256")
    b(f"s_cbranch_scc1 {name}_end")
    T.stamp(b, "start")
    R = load_srds(b, ["x", "ckv", "wq", "wuk", "wuv", "ws", "dbg", "wmod", "c"], 8)
    sX, sCKV, sWQ, sWS, sDBG, sWM, sC = (S(R[n], 4) for n in ("x", "ckv", "wq", "ws", "dbg", "wmod", "c"))
    WU = 44; sWU = S(WU, 4)
    sWV, sHD, sJ = 48, 49, 50
    sT, sT2, sT3 = 51, 52, 53
    sCb, sWb, sLw = 54, 55, 56
    sRot = 57
    sBLK, sBLK2, sS, sN = 58, 59, 60, 61
    sKo, sVo, sKb, sVb = 62, 63, 64, 65
    sKs, sVs = 66, 67
    sPass, sSafe = 68, 69
    sHb = 70; sVar = 71
    sMK = 72
    b(f"""
    v_lshrrev_b32 v1, 6, v0
    v_and_b32 v0, 63, v0
    v_readfirstlane_b32 {S(sWV)}, v1
    s_and_b32 {S(sT)}, s2, 7
    s_lshr_b32 {S(sT2)}, s2, 3
    s_and_b32 {S(sHD)}, {S(sT2)}, 3
    s_lshl_b32 {S(sT3)}, {S(sT)}, 2
    s_add_u32 {S(sHD)}, {S(sHD)}, {S(sT3)}
    s_lshr_b32 {S(sJ)}, {S(sT2)}, 2
    s_cmp_ge_u32 {S(sWV)}, 2
    s_cselect_b32 {S(WU)}, {S(R['wuv'])}, {S(R['wuk'])}
    s_cselect_b32 {S(WU+1)}, {S(R['wuv']+1)}, {S(R['wuk']+1)}
    s_mov_b32 {S(WU+2)}, {hex(SIZE['wuk'])}
    s_mov_b32 {S(WU+3)}, 0x20000
    """)
    MB = 128 * 1024
    sCG, sMB = 80, 81
    b(f"""
    s_mul_i32 {S(sCG)}, {S(sT)}, 30
    s_add_u32 {S(sCG)}, {S(sCG)}, {S(sT2)}
    s_lshl_b32 {S(sT3)}, {S(sCG)}, 5
    s_cmp_lt_u32 {S(sT2)}, 30
    s_cselect_b32 {S(sT3)}, {S(sT3)}, {hex(OOB)}
    s_cselect_b32 {S(sCG)}, {S(sCG)}, {hex(OOB >> 6)}
    s_mul_i32 {S(sT)}, {S(sWV)}, {160 * 7680}
    s_add_u32 {S(sT3)}, {S(sT3)}, {S(sT)}
    s_mul_i32 {S(sMB)}, {S(sWV)}, 6144
    s_add_u32 {S(sMB)}, {S(sMB)}, {MB}
    s_mul_i32 {S(sT)}, {S(sWV)}, 320
    v_lshlrev_b32 v16, 2, v0
    buffer_load_dword v17, v16, {sC}, {S(sT)} offen
    buffer_load_dword v18, v16, {sC}, {S(sT)} offen offset:256
    v_lshrrev_b32 v19, 1, v0
    v_mul_u32_u24 v19, 7680, v19
    v_and_b32 v20, 1, v0
    v_lshl_add_u32 v19, v20, 4, v19
    """)
    for i in range(5):
        b(f"s_add_u32 m0, {S(sMB)}, {i*1024}")
        b(f"s_add_u32 {S(sT)}, {S(sT3)}, {i*32*7680}")
        b(f"buffer_load_dwordx4 v19, {sWM}, {S(sT)} offen lds", "m")
    vC0, vC1, vW0, vW1 = 1, 2, 3, 4
    vRC0, vRC1 = 5, 6
    vRW = 7
    vL16 = 15
    b(f"""
    v_lshlrev_b32 {V(vL16)}, 4, v0
    v_lshrrev_b32 v21, 4, v0
    v_and_b32 v22, 7, v0
    v_xor_b32 v22, v22, v21
    v_lshrrev_b32 v23, 3, v0
    v_lshlrev_b32 v23, 10, v23
    v_lshl_add_u32 {V(vC0)}, v22, 4, v23
    v_xor_b32 {V(vC1)}, 64, {V(vC0)}
    v_add_u32 {V(vC1)}, 8192, {V(vC1)}
    v_and_b32 v22, 15, v0
    v_lshlrev_b32 v23, 1, v21
    v_xor_b32 v23, v22, v23
    v_lshlrev_b32 v24, 13, v21
    v_lshl_add_u32 {V(vW0)}, v23, 4, v24
    v_xor_b32 {V(vW1)}, 128, {V(vW0)}
    s_lshl_b32 {S(sCb)}, {S(sJ)}, 18
    s_lshl_b32 {S(sT)}, {S(sWV)}, 16
    s_add_u32 {S(sCb)}, {S(sCb)}, {S(sT)}
    s_and_b32 {S(sT)}, {S(sWV)}, 1
    s_lshl_b32 {S(sWb)}, {S(sT)}, 18
    s_lshl_b32 {S(sT2)}, {S(sHD)}, 8
    s_add_u32 {S(sWb)}, {S(sWb)}, {S(sT2)}
    s_lshl_b32 {S(sLw)}, {S(sWV)}, 13
    s_mov_b32 {S(sRot)}, 0
    """)
    def dmaC(s):
        o = []
        for i in range(8):
            o.append((f"s_add_u32 m0, {S(sLw)}, {65536 + (s & 1) * 32768 + i * 1024}",
                      f"s_add_u32 {S(sT)}, {S(sCb)}, {(i >> 1) * 16384 + s * 128}",
                      I(f"buffer_load_dwordx4 {V(vC1 if i & 1 else vC0)}, {sCKV}, {S(sT)} offen lds", f"C{s}")))
        return o
    def dmaW(s):
        o = []
        for i in range(8):
            o.append((f"s_add_u32 m0, {S(sLw)}, {(s & 1) * 32768 + i * 1024}",
                      f"s_add_u32 {S(sT)}, {S(sWb)}, {(s * 64 + 4 * i) * 8192}",
                      I(f"buffer_load_dwordx4 {V(vW1 if (i >> 1) & 1 else vW0)}, {sWU}, {S(sT)} offen lds", f"W{s}")))
        return o
    sQb = 82
    def dmaQ(s):
        o = []
        for i in range(8):
            o.append((f"s_add_u32 m0, {S(sLw)}, {65536 + (s & 1) * 32768 + i * 1024}",
                      f"s_add_u32 {S(sT)}, {S(sQb)}, {(s * 128 + 4 * i) * 8192}",
                      I(f"buffer_load_dwordx4 {V(vW1 if (i >> 1) & 1 else vW0)}, {sWQ}, {S(sT)} offen lds", f"Q{s}")))
        return o
    for d in dmaC(0) + dmaW(0) + dmaC(1): b(list(d))
    b(f"""
    s_lshl_b32 {S(sQb)}, {S(sWV)}, 18
    s_add_u32 {S(sQb)}, {S(sQb)}, {S(sT2)}
    v_lshrrev_b32 v23, 1, v22
    v_xor_b32 v23, v23, v21
    v_lshlrev_b32 v23, 4, v23
    v_lshl_add_u32 v23, v22, 7, v23
    s_and_b32 {S(sT)}, {S(sWV)}, 1
    s_lshl_b32 {S(sT)}, {S(sT)}, 14
    s_add_u32 {S(sT)}, {S(sT)}, 65536
    v_add_u32 {V(vRC0)}, {S(sT)}, v23
    v_xor_b32 {V(vRC1)}, 64, {V(vRC0)}
    v_lshrrev_b32 v23, 2, v22
    v_and_b32 v24, 1, v21
    v_lshl_add_u32 v24, v24, 2, v23
    v_lshl_add_u32 v23, v21, 3, v23
    v_lshlrev_b32 v23, 8, v23
    v_and_b32 v25, 3, v0
    v_lshl_add_u32 v23, v25, 3, v23
    v_lshl_add_u32 v23, v24, 5, v23
    s_lshr_b32 {S(sT)}, {S(sWV)}, 1
    s_lshl_b32 {S(sT)}, {S(sT)}, 7
    v_xor_b32 {V(vRW)}, {S(sT)}, v23
    v_xor_b32 {V(vRW+1)}, 32, {V(vRW)}
    v_xor_b32 {V(vRW+2)}, 64, {V(vRW)}
    v_xor_b32 {V(vRW+3)}, 96, {V(vRW)}
    """)
    b(f"""
    v_lshlrev_b32 v24, 16, v17
    v_and_b32 v25, 0xffff0000, v17
    v_lshlrev_b32 v26, 16, v18
    v_and_b32 v27, 0xffff0000, v18
    """)
    for k in range(4): b(f"v_mul_f32 {V(28+k)}, {FH(-LOG2E)}, {V(24+k)}")
    for k in range(4): b(f"v_exp_f32 {V(28+k)}, {V(28+k)}")
    for k in range(4): b(f"v_add_f32 {V(28+k)}, 1.0, {V(28+k)}")
    for k in range(4): b(f"v_rcp_f32 {V(28+k)}, {V(28+k)}")
    for k in range(4): b(f"v_mul_f32 {V(24+k)}, {V(24+k)}, {V(28+k)}")
    b(f"""
    v_cvt_pk_bf16_f32 v24, v24, v25
    v_cvt_pk_bf16_f32 v25, v26, v27
    v_add_u32 v26, {S(sMB)}, v16
    ds_write_b32 v26, v24 offset:5120
    ds_write_b32 v26, v25 offset:5376
    v_lshl_add_u32 v27, v21, 4, {S(sMB)}
    v_lshlrev_b32 v28, 3, v22
    v_lshl_add_u32 v28, v21, 8, v28
    v_add_u32 v28, {S(sMB)}, v28
    s_waitcnt lgkmcnt(0)
    """)
    for ks in range(5): b(f"ds_read_b128 {V(32+4*ks,4)}, v27 offset:{5120 + ks*64}")
    b("@waitvm m")
    for ks in range(5):
        for hf in range(2): b(f"ds_read_b64_tr_b16 {V(52+4*ks+2*hf,2)}, v28 offset:{ks*1024 + hf*128}")
    for ks in range(5): b(MF(V(72,4), V(32+4*ks,4), V(52+4*ks,4), V(72,4) if ks else "0"))
    b(f"""
    s_lshl_b32 {S(sT)}, {S(sWV)}, 8
    s_add_u32 {S(sT)}, {S(sT)}, {MB + 24576}
    v_add_u32 v26, {S(sT)}, v16
    ds_write_b32 v26, v72
    v_add_u32 v26, {MB + 24576}, v16
    @waitvm C0
    s_waitcnt lgkmcnt(0)
    s_barrier
    """)
    T.stamp(b, "C0")
    def acc(o, kt): return A(32*o + 4*kt, 4) if o < 3 else V(96 + 32*(o-3) + 4*kt, 4)
    def Cf(buf, kt, ks): return A(96 + 64*buf + 8*kt + 4*ks, 4)
    def rdC(s, kt, ks): return f"ds_read_b128 {Cf(s & 1, kt, ks)}, {V(vRC1 if ks else vRC0)} offset:{(s & 1)*32768 + kt*2048}"
    def Wf(buf, ks): return 224 + 8*buf + 4*ks
    def rdW(s, o): return [f"ds_read_b64_tr_b16 {A(Wf(o & 1, ks) + 2*hf, 2)}, {V(vRW + (o & 3))} offset:{(s & 1)*32768 + (o >> 2)*16384 + ks*8192 + hf*1024}"
                           for ks in range(2) for hf in range(2)]
    for k in range(4): b(f"ds_read_b32 {V(28+k)}, v26 offset:{256*k}")
    for kt in range(8):
        for ks in range(2): b(rdC(0, kt, ks))
    b(f"""
    v_add_f32 v28, v28, v29
    v_add_f32 v30, v30, v31
    v_add_f32 v28, v28, v30
    v_cvt_pk_bf16_f32 v28, v28, v28
    v_lshlrev_b32 v28, 16, v28
    s_sub_u32 {S(sT)}, {S(sCG)}, 40
    s_sub_u32 {S(sT2)}, {S(sCG)}, 160
    s_min_u32 {S(sT)}, {S(sT)}, {S(sT2)}
    s_cmp_lt_u32 {S(sT)}, 40
    s_cselect_b32 {S(sT)}, 1.0, 0
    v_add_f32 v28, {S(sT)}, v28
    v_cvt_pk_bf16_f32 v28, v28, v28
    v_lshlrev_b32 v28, 16, v28
    s_cmp_lt_u32 {S(sCG)}, 40
    s_cselect_b32 {S(sT)}, {FH(QSCALE)}, 1.0
    v_mul_f32 v28, {S(sT)}, v28
    s_lshl_b32 {S(sT)}, {S(sCG)}, 6
    s_cmp_eq_u32 {S(sWV)}, 0
    s_cselect_b32 {S(sT)}, {S(sT)}, {hex(OOB)}
    v_lshlrev_b32 v29, 2, v22
    buffer_store_dword v28, v29, {sWS}, {S(sT)} offen sc1
    """)
    vFlag, vOne = 16, 17
    b(f"""
    v_mov_b32 {V(vFlag)}, {hex(OOB)}
    s_cmp_eq_u32 {S(sWV)}, 0
    s_cselect_b32 {S(sT)}, 0, {hex(OOB)}
    v_writelane_b32 {V(vFlag)}, {S(sT)}, 0
    v_mov_b32 {V(vOne)}, 1
    @waitvm C1
    s_waitcnt lgkmcnt(0)
    s_barrier
    """)
    b(rdW(0, 0))
    T.stamp(b, "kvstart")

    def spin(lab, vreg, soff, target, nw=1):
        b(f"@need {V(vreg)}")
        b(f"v_cmp_gt_u32 vcc, {target}, {V(vreg)}")
        b(f"s_cbranch_vccz {lab}_ok")
        sts = b.flush()
        b(f"s_mov_b32 {S(sT2)}, 0")
        b.label(f"{lab}_spin")
        b(soff)
        b(f"s_add_u32 {S(sT2)}, {S(sT2)}, 1")
        b(f"s_cmp_gt_u32 {S(sT2)}, {SPIN_MAX}")
        b("s_waitcnt vmcnt(0)")
        b(f"s_cbranch_scc1 {lab}_ok")
        b(f"v_cmp_gt_u32 vcc, {target}, {V(vreg)}")
        b(f"s_cbranch_vccnz {lab}_spin")
        s2 = b.flush()
        b.label(f"{lab}_ok", sts + s2)

    vPoll, vZero, vXo, vHo = 18, 19, 20, 21
    XP, XF, MA, MS = 22, 32, 52, 72
    b(f"v_mov_b32 {V(vZero)}, 0")
    poll_mod = f"buffer_load_dword {V(vPoll)}, {V(vZero)}, {sDBG}, 0 offen offset:{4*DB_MOD} sc1"
    def h_setup():
        return toI([f"""
        v_and_b32 v92, 31, v0
        v_lshrrev_b32 v93, 5, v0
        v_mul_u32_u24 {V(vXo)}, 1280, v93
        v_lshl_add_u32 {V(vXo)}, v92, 3, {V(vXo)}
        v_lshrrev_b32 v94, 3, v92
        v_lshlrev_b32 {V(vHo)}, 12, v94
        v_bfe_u32 v94, v92, 1, 2
        v_lshl_add_u32 v94, v94, 4, v93
        v_lshl_add_u32 {V(vHo)}, v94, 4, {V(vHo)}
        v_and_b32 v94, 1, v92
        v_lshl_add_u32 {V(vHo)}, v94, 3, {V(vHo)}
        v_lshlrev_b32 v95, 4, v92
        """])
    def h_loadx():
        o = [f"s_lshl_b32 {S(sT2)}, s2, 2", f"s_add_u32 {S(sT2)}, {S(sT2)}, {S(sWV)}", f"s_mul_i32 {S(sT2)}, {S(sT2)}, 2560"]
        o += [f"buffer_load_dwordx2 {V(XP+2*m,2)}, {V(vXo)}, {sX}, {S(sT2)} offen offset:{256*m}" for m in range(5)]
        return toI(o)
    def h_loadmod():
        o = [f"s_mov_b32 {S(sT2)}, {WS_MOD + 2560}"]
        for m in range(5):
            o.append(f"buffer_load_dwordx4 {V(MS+4*m,4)}, v95, {sWS}, 0 offen offset:{WS_MOD + 512*m} sc1")
            o.append(f"buffer_load_dwordx4 {V(MA+4*m,4)}, v95, {sWS}, {S(sT2)} offen offset:{512*m} sc1")
        return toI(o)
    def red32(r, t):
        o = [f"v_add_f32 {V(r)}, {V(r)}, {V(r)} row_ror:{k}" for k in (1, 2, 4, 8)]
        o += [f"v_mov_b32 {V(t)}, {V(r)}", f"v_permlane16_swap_b32 {V(r)}, {V(t)}", f"v_add_f32 {V(r)}, {V(r)}, {V(t)}"]
        return o
    def h_stats():
        o = []
        for k in range(10):
            o += [f"v_lshlrev_b32 {V(XF+2*k)}, 16, {V(XP+k)}", f"v_and_b32 {V(XF+2*k+1)}, 0xffff0000, {V(XP+k)}"]
        o += [f"v_add_f32 v92, {V(XF)}, {V(XF+1)}", f"v_add_f32 v93, {V(XF+2)}, {V(XF+3)}"]
        for k in range(4, 20): o.append(f"v_add_f32 {V(92 + (k & 1))}, {V(92 + (k & 1))}, {V(XF+k)}")
        o.append("v_add_f32 v92, v92, v93")
        o += red32(92, 93)
        o.append(f"v_mul_f32 v92, {FH(1/640)}, v92")
        for k in range(20): o.append(f"v_sub_f32 {V(XF+k)}, {V(XF+k)}, v92")
        o += [f"v_mul_f32 v92, {V(XF)}, {V(XF)}", f"v_mul_f32 v93, {V(XF+1)}, {V(XF+1)}"]
        for k in range(2, 20): o.append(f"v_fmac_f32 {V(92 + (k & 1))}, {V(XF+k)}, {V(XF+k)}")
        o.append("v_add_f32 v92, v92, v93")
        o += red32(92, 93)
        o += [f"v_mov_b32 v93, {FH(1e-5)}", f"v_fmac_f32 v93, {FH(1/640)}, v92", "v_rsq_f32 v93, v93", f"v_mul_f32 v93, {FH(QSCALE)}, v93"]
        for k in range(20): o.append(f"v_mul_f32 {V(XF+k)}, {V(XF+k)}, v93")
        return toI(o)
    def h_fin():
        o = []
        for k in range(20): o.append(f"v_fma_f32 {V(XF+k)}, {V(XF+k)}, {V(MA+k)}, {V(MS+k)}")
        for k in range(10): o.append(f"v_cvt_pk_bf16_f32 {V(XP+k)}, {V(XF+2*k)}, {V(XF+2*k+1)}")
        o += [f"s_lshr_b32 {S(sT2)}, s2, 4", f"s_lshl_b32 {S(sT2)}, {S(sT2)}, 1", f"s_bfe_u32 {S(sT3)}, s2, 0x10001",
              f"s_add_u32 {S(sT2)}, {S(sT2)}, {S(sT3)}", f"s_mul_i32 {S(sT2)}, {S(sT2)}, {20*4096}",
              f"s_bfe_u32 {S(sT3)}, s2, 0x20002", f"s_lshl_b32 {S(sT3)}, {S(sT3)}, 10", f"s_add_u32 {S(sT2)}, {S(sT2)}, {S(sT3)}",
              f"s_and_b32 {S(sT3)}, s2, 1", f"s_lshl_b32 {S(sT3)}, {S(sT3)}, 7", f"s_add_u32 {S(sT2)}, {S(sT2)}, {S(sT3)}",
              f"s_lshl_b32 {S(sT3)}, {S(sWV)}, 5", f"s_add_u32 {S(sT2)}, {S(sT2)}, {S(sT3)}", f"s_add_u32 {S(sT2)}, {S(sT2)}, {WS_H}"]
        for m in range(5):
            o += [f"s_add_u32 {S(sT3)}, {S(sT2)}, {16384*m}", f"buffer_store_dwordx2 {V(XP+2*m,2)}, {V(vHo)}, {sWS}, {S(sT3)} offen sc1"]
        return toI(o)
    def seq(sc, ins, start):
        g = start; prev = None
        for i in ins:
            e = g
            if prev is not None:
                rank = {"salu": 1, "ds": 2, "vmem": 2, "valu": 3}
                if rank.get(i.kind, 1) < rank.get(prev.kind, 1) or need_states(prev, i) > 0: e = g + 1
            g = sc.put(i, e); prev = i
        return g
    b(f"""
    s_sub_u32 {S(sBLK)}, 15, {S(sJ)}
    s_mov_b32 {S(sBLK2)}, {S(sJ)}
    s_cmp_ge_u32 {S(sWV)}, 2
    s_cselect_b32 {S(sHb)}, {S(sBLK2)}, {S(sBLK)}
    s_lshl_b32 {S(sT2)}, {S(sHb)}, 2
    s_add_u32 {S(sT2)}, {S(sT2)}, {4*DB_H}
    v_mov_b32 v11, {S(sT2)}
    s_lshl_b32 {S(sHb)}, {S(sHb)}, 1
    s_and_b32 {S(sT2)}, {S(sWV)}, 1
    s_add_u32 {S(sHb)}, {S(sHb)}, {S(sT2)}
    s_mul_i32 {S(sHb)}, {S(sHb)}, {20*4096}
    s_add_u32 {S(sHb)}, {S(sHb)}, {WS_H}
    """)
    poll_h = f"buffer_load_dword {V(vPoll)}, v11, {sDBG}, 0 offen sc1"
    def Hf(buf, ks, qt): return A(96 + 64*buf + 16*ks + 4*qt, 4)
    def ldH(s):
        o = []
        for ks in range(4):
            o.append(f"s_add_u32 {S(sT2)}, {S(sHb)}, {(4*s + ks)*4096}")
            for qt in range(4): o.append(f"buffer_load_dwordx4 {Hf(s & 1, ks, qt)}, {V(vL16)}, {sWS}, {S(sT2)} offen offset:{qt*1024} sc1")
        return toI(o)
    b(f"""
    s_lshl_b32 {S(sKb)}, {S(sHD)}, 19
    s_add_u32 {S(sVb)}, {S(sKb)}, {WS_V}
    s_add_u32 {S(sKb)}, {S(sKb)}, {WS_K}
    s_lshl_b32 {S(sT2)}, {S(sJ)}, 1
    s_and_b32 {S(sT3)}, {S(sWV)}, 1
    s_add_u32 {S(sT2)}, {S(sT2)}, {S(sT3)}
    s_lshl_b32 {S(sT2)}, {S(sT2)}, 15
    s_lshr_b32 {S(sT3)}, {S(sWV)}, 1
    s_lshl_b32 {S(sKo)}, {S(sT3)}, 11
    s_add_u32 {S(sKo)}, {S(sKo)}, {S(sT2)}
    s_add_u32 {S(sKo)}, {S(sKo)}, {S(sKb)}
    s_lshl_b32 {S(sVo)}, {S(sT3)}, 13
    s_add_u32 {S(sVo)}, {S(sVo)}, {S(sT2)}
    s_add_u32 {S(sVo)}, {S(sVo)}, {S(sVb)}
    """)
    KG = [0, 1, 1, 0]
    tmpi = [0]
    def pack_store(t0, t1, sbase, off):
        o = []
        def src(t):
            if t[0] == "v":
                r = int(t[2:t.index(":")]); return r
            r = int(t[2:t.index(":")]); d = 24 + 4 * (tmpi[0] % 16); tmpi[0] += 1
            for k in range(4): o.append(f"v_accvgpr_read_b32 {V(d+k)}, {A(r+k)}")
            return d
        r0 = src(t0); r1 = src(t1)
        o += [f"v_cvt_pk_bf16_f32 {V(r0)}, {V(r0)}, {V(r0+1)}", f"v_cvt_pk_bf16_f32 {V(r0+1)}, {V(r0+2)}, {V(r0+3)}",
              f"v_cvt_pk_bf16_f32 {V(r0+2)}, {V(r1)}, {V(r1+1)}", f"v_cvt_pk_bf16_f32 {V(r0+3)}, {V(r1+2)}, {V(r1+3)}",
              f"s_add_u32 {S(sT3)}, {S(sbase)}, {off}",
              f"buffer_store_dwordx4 {V(r0,4)}, {V(vL16)}, {sWS}, {S(sT3)} offen sc1"]
        return toI(o)
    def QWf(buf, ks): return (240 if buf == 0 else 224) + 4*ks
    def rdQW(s, dt): return [f"ds_read_b64_tr_b16 {A(QWf(dt & 1, ks) + 2*hf, 2)}, {V(vRW + dt)} offset:{(s & 1)*32768 + ks*8192 + hf*1024}"
                             for ks in range(4) for hf in range(2)]
    for s in range(8):
        mf = []
        for o in range(8):
            for kt in range(8):
                for ks in range(2):
                    w = A(Wf(o & 1, ks), 4); c = Cf(s & 1, kt, ks)
                    cin = "0" if (s == 0 and ks == 0) else acc(o, kt)
                    mf.append(MF(acc(o, kt), w, c, cin) if o < 4 else MF(acc(o, kt), c, w, cin))
        sc = Sched(mf)
        for o in range(7):
            for k, r in enumerate(rdW(s, o + 1)): sc.put(r, 16*o + k)
        if s < 7:
            sc.raw(["s_waitcnt vmcnt(0) lgkmcnt(0)", "s_barrier"], 111)
            for k, r in enumerate(rdW(s + 1, 0)): sc.put(r, 112 + k)
            for n in range(16): sc.put(rdC(s + 1, n >> 1, n & 1), 5 + 6*n)
        d = []
        if s < 7: d += dmaW(s + 1)
        if s < 6: d += dmaC(s + 2)
        if s == 6: d += dmaQ(0)
        if s == 7: d += dmaQ(1)
        g = 0
        for m0, so, ld in d:
            g = sc.put(m0, g); g = sc.put(so, g + 1); g = sc.put(ld, g + 1) + 1
        g0 = g
        if s == 0:
            sc.put(f"buffer_atomic_add {V(vOne)}, {V(vFlag)}, {sDBG}, 0 offen offset:{4*DB_MOD}", 116)
            seq(sc, h_setup() + h_loadx(), g0)
        if s == 1: seq(sc, h_stats(), 2)
        if s == 2: sc.put(poll_mod, 80)
        if s == 3: seq(sc, h_loadmod(), g0)
        if s == 4:
            assert seq(sc, h_fin(), 2) < 100
            seq(sc, toI([f"s_lshr_b32 {S(sT2)}, s2, 4", f"s_lshl_b32 {S(sT2)}, {S(sT2)}, 2",
                         f"buffer_atomic_add {V(vOne)}, {V(vFlag)}, {sDBG}, {S(sT2)} offen offset:{4*DB_H}"]), 114)
        if s == 6:
            sc.put(poll_h, 80)
        if s == 7:
            assert seq(sc, ldH(0), g0) < 100
            qa = [f"s_lshr_b32 {S(sT2)}, {S(sWV)}, 1", f"s_lshl_b32 {S(sT2)}, {S(sT2)}, 7", f"s_add_u32 {S(sT2)}, {S(sT2)}, 65536",
                  f"v_xor_b32 {V(vRW)}, {S(sT2)}, {V(vRW)}"]
            qa += [f"v_xor_b32 {V(vRW+n)}, {32*n}, {V(vRW)}" for n in range(1, 8)]
            assert seq(sc, toI(qa), 101) < 112
            for k, r in enumerate(rdQW(0, 0)): sc.put(r, 112 + k)
            g = 0
            for a in range(2):
                for kt in range(8):
                    p = kt >> 1
                    g = seq(sc, pack_store(acc(2*a, kt), acc(2*a+1, kt), sKo, KG[p]*16384 + ((2*(p >> 1) + (kt & 1))*4 + a)*1024),
                            max(g, 16*(2*a+1) + 2*kt + 6))
            for o in range(4, 8):
                for p in range(4):
                    g = seq(sc, pack_store(acc(o, 2*p), acc(o, 2*p+1), sVo, KG[p]*16384 + ((o-4)*2 + (p >> 1))*1024),
                            max(g, 16*o + 4*p + 8))
        b(sc.emit())
        if s == 2: spin(name + "_pm", vPoll, poll_mod, 256)
        if s == 6: spin(name + "_ph", vPoll, poll_h, 16)
    T.stamp(b, "kvend")
    def qacc(dt, qt): return 128 + 16*dt + 4*qt
    vKr, vVr, vDm, vQw, vQr = 1, 2, 5, 6, 20
    b(f"""
    s_lshl_b32 {S(sT2)}, {S(sHD)}, 2
    s_add_u32 {S(sT2)}, {S(sT2)}, {4*DB_KV}
    v_mov_b32 v21, {S(sT2)}
    s_lshr_b32 {S(sT2)}, {S(sWV)}, 1
    s_lshl_b32 {S(sT3)}, {S(sT2)}, 14
    v_add_u32 {V(vKr)}, {S(sT3)}, {V(vL16)}
    v_add_u32 {V(vVr)}, 65536, {V(vKr)}
    v_add_u32 {V(vDm)}, {S(sLw)}, {V(vL16)}
    s_and_b32 {S(sT3)}, {S(sWV)}, 1
    s_lshl_b32 {S(sT3)}, {S(sT3)}, 14
    s_add_u32 {S(sT3)}, {S(sT3)}, 65536
    v_add_u32 {V(vQr)}, {S(sT3)}, {V(vL16)}
    s_lshl_b32 {S(sT2)}, {S(sT2)}, 16
    v_add_u32 {V(vQw)}, {S(sT2)}, {V(vQr)}
    """)
    poll_kv = f"buffer_load_dword {V(vPoll)}, v21, {sDBG}, 0 offen sc1"
    def dmaKV(isv, slot, soff, tag):
        base = (65536 + (slot ^ 1)*32768) if isv else slot*32768
        o = []
        for hf in range(2):
            o.append(I(f"s_add_u32 m0, {S(sLw)}, {base + hf*4096}"))
            if hf: o.append(I(f"s_add_u32 {S(soff)}, {S(soff)}, 4096"))
            for i in range(4): o.append(I(f"buffer_load_dwordx4 {V(vDm)}, {sWS}, {S(soff)} offen offset:{i*1024} sc1 lds", tag))
        return o
    def unit_off(dst, base, sig):
        if sig == 0: return [f"s_lshl_b32 {S(dst)}, {S(sBLK)}, 15", f"s_add_u32 {S(dst)}, {S(dst)}, {S(base)}"]
        return [f"s_add_u32 {S(dst)}, {S(base)}, {(sig-1)*32768}", f"s_cmp_ge_u32 {S(sBLK)}, {sig}", f"s_cselect_b32 {S(dst)}, {S(dst)}, {hex(OOB)}"]
    for s in range(5):
        mf = []
        for dt in range(8):
            for qt in range(4):
                for ks in range(4):
                    d = V(qacc(dt, qt), 4)
                    mf.append(MF(d, A(QWf(dt & 1, ks), 4), Hf(s & 1, ks, qt), "0" if (s == 0 and ks == 0) else d))
        sc = Sched(mf)
        for dt in range(7):
            for k, r in enumerate(rdQW(s, dt + 1)): sc.put(r, 16*dt + k)
        sc.raw(["s_waitcnt vmcnt(0) lgkmcnt(0)", "s_barrier"], 111)
        if s < 4:
            for k, r in enumerate(rdQW(s + 1, 0)): sc.put(r, 112 + k)
        g = 0
        if 1 <= s < 4:
            for m0, so, ld in dmaQ(s + 1):
                g = sc.put(m0, g); g = sc.put(so, g + 1); g = sc.put(ld, g + 1) + 1
        if s < 4: g = seq(sc, ldH(s + 1), g)
        if s == 0:
            seq(sc, toI([f"s_lshl_b32 {S(sT2)}, {S(sHD)}, 2",
                         f"buffer_atomic_add {V(vOne)}, {V(vFlag)}, {sDBG}, {S(sT2)} offen offset:{4*DB_KV}"]), 114)
        if s == 3: sc.put(poll_kv, 90)
        if s == 4:
            g = seq(sc, toI(unit_off(sKs, sKb, 0)) + dmaKV(0, 0, sKs, "k") + toI(unit_off(sKs, sKb, 1)) + dmaKV(0, 1, sKs, "k")
                    + toI(unit_off(sVs, sVb, 0)) + dmaKV(1, 0, sVs, "v"), 0)
            g = 0
            for ds in range(4):
                for qt in range(4):
                    r0, r1 = qacc(2*ds, qt), qacc(2*ds+1, qt)
                    g = seq(sc, toI([f"v_cvt_pk_bf16_f32 {V(r0)}, {V(r0)}, {V(r0+1)}", f"v_cvt_pk_bf16_f32 {V(r0+1)}, {V(r0+2)}, {V(r0+3)}",
                                     f"v_cvt_pk_bf16_f32 {V(r0+2)}, {V(r1)}, {V(r1+1)}", f"v_cvt_pk_bf16_f32 {V(r0+3)}, {V(r1+2)}, {V(r1+3)}"]),
                            max(g, 16*(2*ds+1) + 4*qt + 8))
            g = 112
            for ds in range(4):
                for qt in range(4):
                    w = f"ds_write_b128 {V(vQw)}, {V(qacc(2*ds, qt), 4)} offset:{(ds*4+qt)*1024}"
                    if ds < 3: g = sc.put(w, g) + 1
                    else: sc.raw(w, 999)
        b(sc.emit())
        if s == 3: spin(name + "_pk", vPoll, poll_kv, 8)
    T.stamp(b, "qend")
    def O(dt, qt): return 128 + 16*dt + 4*qt
    def P(buf, kp, qt): return 64 + 32*buf + 16*kp + 4*qt
    def Sw(i): return 48 + 4*(i & 3)
    def NM(qt): return 32 + 4*qt
    def Lr(qt): return 16 + 4*qt
    MK, TC = 8, 12
    vL = 3; vQs = 4; vX = 7
    def Qf(ds, qt): return A(16*ds + 4*qt, 4)
    def Kf(kt, ds): return A(64 + 16*kt + 4*ds, 4)
    def Vf(dt, kp): return A(128 + 8*(dt & 3) + 4*kp, 4)
    ONES = A(160, 4)
    b(f"""
    v_mov_b32 {V(vL)}, {V(vL16)}
    v_mov_b32 {V(vQs)}, {V(vQr)}
    v_mov_b32 v12, 0x3f803f80
    v_lshrrev_b32 v13, 4, v0
    v_lshlrev_b32 v13, 2, v13
    v_and_b32 v14, 15, v0
    v_sub_u32 v13, v14, v13
    v_mov_b32 v14, {FH(NEGBIG)}
    """)
    for r in range(4):
        b(f"v_accvgpr_write_b32 {A(160+r)}, v12")
        b(f"v_cmp_gt_i32 vcc, {r}, v13")
        b(f"v_cndmask_b32 {V(MK+r)}, 0, v14, vcc")
    b(f"""
    s_mov_b32 {S(sPass)}, 0
    s_waitcnt lgkmcnt(0)
    s_barrier
    """)
    def rdK(slot, kt, ds): return f"ds_read_b128 {Kf(kt, ds)}, {V(vKr)} offset:{slot*32768 + (kt*4+ds)*1024}"
    def rdV(slot, dt, kp): return f"ds_read_b128 {Vf(dt, kp)}, {V(vVr)} offset:{(slot ^ 1)*32768 + (dt*2+kp)*1024}"
    def softmax_ops(si, pbuf, kt, qt):
        s = Sw(si); p = P(pbuf, kt >> 1, qt) + 2*(kt & 1)
        return ([f"v_exp_f32 {V(s+r)}, {V(s+r)}" for r in range(4)],
                [f"v_cvt_pk_bf16_f32 {V(p)}, {V(s)}, {V(s+1)}", f"v_cvt_pk_bf16_f32 {V(p+1)}, {V(s+2)}, {V(s+3)}"])
    def place_softmax(sc, ops, start, stride):
        ex, cv = ops; g = start; gs = []
        for e in ex:
            g = sc.put(e, g); gs.append(g); g += stride
        sc.put(cv[0], gs[1] + 1); sc.put(cv[1], gs[3] + 1)
    def diag_active(kg): return [(kp, qt) for kp in range(2) for qt in range(4) if (3 - kg if kp else kg) <= qt]
    def next_k_dma(slot):
        return toI([f"s_add_u32 {S(sT2)}, {S(sN)}, 2", f"s_lshl_b32 {S(sKs)}, {S(sT2)}, 15", f"s_add_u32 {S(sKs)}, {S(sKs)}, {S(sKb)}",
                    f"s_cmp_gt_u32 {S(sBLK)}, {S(sT2)}", f"s_cselect_b32 {S(sKs)}, {S(sKs)}, {hex(OOB)}"]) + dmaKV(0, slot, sKs, "k")
    def next_v_dma(slot):
        return toI([f"s_lshl_b32 {S(sVs)}, {S(sN)}, 15", f"s_add_u32 {S(sVs)}, {S(sVs)}, {S(sVb)}"]) + dmaKV(1, slot, sVs, "v")
    def spread(sc, ins, start, stride):
        g = start
        for i in ins:
            if i.kind == "vmem": g = sc.put(i, g) + stride
            else: g = sc.put(i, g) + 1
        return g
    def qk_diag(rg, kg):
        act = diag_active(kg); tiles = []; zero = []
        for kt in range(4):
            kap = 2*(3 - kg if kt >> 1 else kg) + (kt & 1)
            for qt in range(4):
                if (kt >> 1, qt) not in act: continue
                t = rg + 2*qt
                if kap > t: zero.append((kt, qt))
                else: tiles.append((kt, qt, kap == t))
        mf = []
        for i, (kt, qt, dg) in enumerate(tiles):
            for ds in range(4):
                mf.append(MF(V(Sw(i), 4), Kf(kt, ds), Qf(ds, qt), V(Sw(i), 4) if ds else V(TC if dg else NM(qt), 4)))
        sc = Sched(mf, cap=3)
        kts = sorted({t[0] for t in tiles})
        sc.raw([rdK(0, kt, ds) for kt in kts for ds in range(4)], -1)
        for kt, qt in zero:
            p = P(0, kt >> 1, qt) + 2*(kt & 1)
            sc.raw([f"v_mov_b32 {V(p)}, 0", f"v_mov_b32 {V(p+1)}, 0"], -1)
        if kg == 1:
            sc.raw([f"v_mov_b32 {V(O(dt, 0)+r)}, 0" for dt in range(8) for r in range(4)] + [f"v_mov_b32 {V(Lr(0)+r)}, 0" for r in range(4)], -1)
        first = True
        for i, (kt, qt, dg) in enumerate(tiles):
            if dg:
                c = [f"v_add_f32 {V(TC+r)}, {V(NM(qt)+r)}, {V(MK+r)}" for r in range(4)]
                if first: sc.raw(c, -1)
                else: sc.raw(c, 4*i - 3)
                first = False
            place_softmax(sc, softmax_ops(i, 0, kt, qt), 4*i + 7, 1)
        return sc.emit()
    def tail_ops(sc, gbar, n_par, kreads=True):
        sc.raw(["s_waitcnt vmcnt(0) lgkmcnt(0)", "s_barrier"], gbar)
        rd = []
        for k in range(4): rd += [rdK(n_par, 0, k), rdV(n_par ^ 1, k >> 1, k & 1)]
        return rd
    def iteration(par, qk, pv, carry):
        act = [(kp, qt) for kp in range(2) for qt in range(4)] if pv == "full" else diag_active(pv)
        fresh = pv != "full"
        groups = []
        for g in range(16):
            m = []
            if qk:
                kt, qt = g >> 2, g & 3
                for ds in range(4): m.append(MF(V(Sw(g), 4), Kf(kt, ds), Qf(ds, qt), V(Sw(g), 4) if ds else V(NM(qt), 4)))
            dt = g >> 1
            for qt in (2*(g & 1), 2*(g & 1) + 1):
                f = fresh
                for kp in range(2):
                    if (kp, qt) in act:
                        m.append(MF(V(O(dt, qt), 4), Vf(dt, kp), V(P(par, kp, qt), 4), "0" if f else V(O(dt, qt), 4))); f = False
            if g % 4 == 2:
                qt = g >> 2; f = fresh
                for kp in range(2):
                    if (kp, qt) in act:
                        m.append(MF(V(Lr(qt), 4), ONES, V(P(par, kp, qt), 4), "0" if f else V(Lr(qt), 4))); f = False
            groups.append(m)
        if not qk and carry:
            pass
        st = [0]
        for m in groups: st.append(st[-1] + len(m))
        sc = Sched([x for m in groups for x in m], cap=2 if pv == "full" else 3)
        if carry:
            ops = softmax_ops(15, par, 3, 3)
            if qk: place_softmax(sc, ops, 0, 2)
            else: sc.raw(ops[0] + ops[1], -1)
        if qk:
            for g in range(15): place_softmax(sc, softmax_ops(g, par ^ 1, g >> 2, g & 3), st[g+1], 2 if pv == "full" else 1)
            for g in range(12): sc.put(rdK(par ^ 1, (g >> 2) + 1, g & 3), st[g] + 1)
        for g in range(12): sc.put(rdV(par, (g >> 1) + 2, g & 1), st[g] + (3 if qk else 0))
        if qk:
            spread(sc, next_v_dma(par ^ 1), 0, 4)
            rd = tail_ops(sc, st[12] - 1, par)
            for k, r in enumerate(rd): sc.put(r, st[12 + (k >> 1)] + 1 + 2*(k & 1))
            spread(sc, next_k_dma(par ^ 1), st[12], 3)
        return sc.emit()

    b.label(name + "_blk", b.flush() + [State()])
    for ds in range(4):
        for qt in range(4): b(f"ds_read_b128 {Qf(ds, qt)}, {V(vQs)} offset:{(ds*4+qt)*1024}")
    for r in range(16): b(f"v_mov_b32 {V(NM(0)+r)}, 0")
    b(f"s_mov_b32 {S(sSafe)}, 0")
    b.label(name + "_retry", b.flush() + [State()])
    b(f"""
    s_mov_b32 {S(sN)}, -1
    s_cmp_ge_u32 {S(sWV)}, 2
    s_cbranch_scc1 {name}_d2
    s_cmp_eq_u32 {S(sWV)}, 1
    s_cbranch_scc1 {name}_d1
    """)
    pre = b.flush()
    after0 = {}
    def diag_tail(kg):
        rd = []
        for k in range(4): rd += [rdK(1, 0, k), rdV(0, k >> 1, k & 1)]
        b(["s_waitcnt vmcnt(0) lgkmcnt(0)", "s_barrier"] + rd)
        b(next_k_dma(0))
        b(f"s_mov_b32 {S(sN)}, 0")
        b(f"s_cmp_eq_u32 {S(sBLK)}, 0")
        b(f"s_cbranch_scc1 {name}_pvd{kg}")
        st = b.flush()
        b(iteration(0, True, kg, False))
        return st
    b(qk_diag(0, 0)); b(f"s_branch {name}_t0"); s00 = b.flush()
    b.label(name + "_d1", pre); b(qk_diag(1, 0)); s10 = b.flush()
    b.label(name + "_t0", s00 + s10)
    spv0 = diag_tail(0); b(f"s_branch {name}_odd"); it0a = b.flush()
    b.label(name + "_d2", pre)
    b(f"s_cmp_eq_u32 {S(sWV)}, 3"); b(f"s_cbranch_scc1 {name}_d3"); pre2 = b.flush()
    b(qk_diag(0, 1)); b(f"s_branch {name}_t1"); s01 = b.flush()
    b.label(name + "_d3", pre2); b(qk_diag(1, 1)); s11 = b.flush()
    b.label(name + "_t1", s01 + s11)
    spv1 = diag_tail(1); it0b = b.flush()
    b.sts = dedupe(it0a + it0b)
    def head(lab): return [f"s_add_u32 {S(sN)}, {S(sN)}, 1", f"s_cmp_eq_u32 {S(sN)}, {S(sBLK)}", f"s_cbranch_scc1 {lab}"]
    ins, outs = b.chain_loop([(name + "_odd", head(name + "_pv1") + iteration(1, True, "full", True)),
                              (name + "_even", head(name + "_pv0") + iteration(0, True, "full", True) + toI([f"s_branch {name}_odd"]))])
    fin = []
    b.label(name + "_pvd0", spv0); b(iteration(0, False, 0, False)); b(f"s_branch {name}_fin"); fin += b.flush()
    b.label(name + "_pvd1", spv1); b(iteration(0, False, 1, False)); b(f"s_branch {name}_fin"); fin += b.flush()
    b.label(name + "_pv0", outs[0]); b(iteration(0, False, "full", True)); b(f"s_branch {name}_fin"); fin += b.flush()
    b.label(name + "_pv1", ins); b(iteration(1, False, "full", True)); fin += b.flush()
    b.label(name + "_fin", fin)
    b(f"""
    s_waitcnt vmcnt(0) lgkmcnt(0)
    s_barrier
    s_lshl_b32 {S(sT2)}, {S(sWV)}, 14
    s_add_u32 {S(sT2)}, {S(sT2)}, 65536
    v_add_u32 {V(vX)}, {S(sT2)}, {V(vL)}
    v_mov_b32 v17, v20
    v_mov_b32 v18, v24
    v_mov_b32 v19, v28
    s_lshl_b32 {S(sT3)}, {S(sWV)}, 10
    v_add_u32 v12, {S(sT3)}, {V(vL)}
    ds_write_b128 v12, v[16:19] offset:32768
    s_cmp_ge_u32 {S(sWV)}, 2
    s_cbranch_scc1 {name}_x1
    """)
    px = b.flush(); xs = []
    TMP = 64
    for kg in range(2):
        if kg: b.label(name + "_x1", px)
        give = (2, 3) if kg == 0 else (0, 1); keep = (0, 1) if kg == 0 else (2, 3)
        for a, qt in enumerate(give):
            for dt in range(8): b(f"ds_write_b128 {V(vX)}, {V(O(dt, qt), 4)} offset:{(a*8+dt)*1024}")
        b(f"""
        v_xor_b32 {V(vX)}, 0x8000, {V(vX)}
        s_waitcnt lgkmcnt(0)
        s_barrier
        """)
        for w in range(4): b(f"ds_read_b128 {V(16+4*w, 4)}, {V(vL)} offset:{32768 + w*1024}")
        for a in range(2):
            for dt in range(8): b(f"ds_read_b128 {V(TMP + 4*(a*8+dt), 4)}, {V(vX)} offset:{(a*8+dt)*1024}")
        for r in range(8): b(f"v_add_f32 {V(16+r)}, {V(16+r)}, {V(24+r)}")
        b(f"""
        v_min3_f32 v24, v16, v17, v18
        v_min3_f32 v24, v24, v19, v20
        v_min3_f32 v24, v24, v21, v22
        v_min_f32 v24, v24, v23
        v_add_f32 v25, v16, v17
        v_add_f32 v26, v18, v19
        v_add_f32 v27, v20, v21
        v_add_f32 v28, v22, v23
        v_add_f32 v25, v25, v26
        v_add_f32 v27, v27, v28
        v_add_f32 v25, v25, v27
        v_cmp_nle_f32 vcc, {FH(L_LO)}, v24
        v_cmp_nge_f32 {S(sMK,2)}, {S(sMK+2)}, v25
        """.replace(f"v_cmp_nge_f32 {S(sMK,2)}, {S(sMK+2)}, v25", f"s_mov_b32 {S(sMK+2)}, {FH(L_HI)}\nv_cmp_nge_f32 {S(sMK,2)}, {S(sMK+2)}, v25"))
        b(f"""
        s_or_b64 vcc, vcc, {S(sMK,2)}
        s_cselect_b32 {S(sT2)}, 1, {1 if force_fallback else 0}
        s_andn2_b32 {S(sT2)}, {S(sT2)}, {S(sSafe)}
        s_cbranch_scc1 {name}_slow
        s_bitcmp1_b32 {S(sWV)}, 0
        s_cselect_b64 vcc, -1, 0
        v_cndmask_b32 v24, {V(16+keep[0])}, {V(20+keep[0])}, vcc
        v_cndmask_b32 v26, {V(16+keep[1])}, {V(20+keep[1])}, vcc
        v_rcp_f32 v24, v24
        v_rcp_f32 v26, v26
        s_lshl_b32 {S(sT2)}, {S(sBLK)}, 1
        s_add_u32 {S(sT2)}, {S(sT2)}, {kg}
        s_lshl_b32 {S(sT2)}, {S(sT2)}, 19
        s_lshl_b32 {S(sT3)}, {S(sHD)}, 14
        s_add_u32 {S(sT2)}, {S(sT2)}, {S(sT3)}
        s_and_b32 {S(sT3)}, {S(sWV)}, 1
        s_lshl_b32 {S(sT3)}, {S(sT3)}, 10
        s_add_u32 {S(sT2)}, {S(sT2)}, {S(sT3)}
        s_add_u32 {S(sT2)}, {S(sT2)}, {WS_CTX}
        """)
        for a, qt in enumerate(keep):
            for i in range(4):
                for dt in (2*i, 2*i+1):
                    o = O(dt, qt); t = TMP + 4*(a*8+dt)
                    for h in (0, 2): b(f"v_pk_add_f32 {V(t+h,2)}, {V(t+h,2)}, {V(o+h,2)}")
                    for h in (0, 2): b(f"v_pk_mul_f32 {V(t+h,2)}, {V(t+h,2)}, {V(24+2*a,2)} op_sel_hi:[1,0]")
                t = TMP + 4*(a*8+2*i)
                for k in range(4): b(f"v_cvt_pk_bf16_f32 {V(t+k)}, {V(t+2*k)}, {V(t+2*k+1)}")
                b(f"s_add_u32 {S(sT3)}, {S(sT2)}, {i*4096}")
                b(f"buffer_store_dwordx4 {V(t,4)}, {V(vL)}, {sWS}, {S(sT3)} offen offset:{a*2048}")
        if kg == 0: b(f"s_branch {name}_x2")
        xs += b.flush()
    b.label(name + "_x2", xs)
    b(f"""
    s_cmp_eq_u32 {S(sPass)}, 1
    s_cbranch_scc1 {name}_done
    """)
    T.stamp(b, "blk1end")
    b(f"""
    s_mov_b32 {S(sPass)}, 1
    s_mov_b32 {S(sBLK)}, {S(sBLK2)}
    v_add_u32 {V(vQs)}, 65536, {V(vQs)}
    s_barrier
    """)
    def first_dmas():
        b(unit_off(sKs, sKb, 0)); b(dmaKV(0, 0, sKs, "k0")); b(unit_off(sKs, sKb, 1)); b(dmaKV(0, 1, sKs, "k"))
        b(unit_off(sVs, sVb, 0)); b(dmaKV(1, 0, sVs, "v"))
        b("@waitvm k0"); b("s_barrier")
    first_dmas()
    b(f"s_branch {name}_blk")
    b.flush()
    b.label(name + "_slow", [State()])
    b(f"""
    s_waitcnt vmcnt(0) lgkmcnt(0)
    s_mov_b32 {S(sSafe)}, 1
    s_mov_b32 {S(sN)}, 0
    """)
    for qt in range(4): b(f"v_mov_b32 {V(16+qt)}, {FH(NEGBIG)}")
    b(f"""
    v_lshrrev_b32 v21, 4, v0
    v_lshlrev_b32 v21, 2, v21
    v_and_b32 v20, 15, v0
    v_sub_u32 v20, v20, v21
    s_and_b32 {S(sT2)}, {S(sWV)}, 1
    s_lshl_b32 {S(sT2)}, {S(sT2)}, 4
    v_add_u32 v20, {S(sT2)}, v20
    s_lshr_b32 {S(sT2)}, {S(sWV)}, 1
    s_lshl_b32 {S(sMK)}, {S(sT2)}, 5
    s_add_u32 {S(sMK+1)}, {S(sMK)}, 16
    s_sub_u32 {S(sMK+2)}, 96, {S(sMK)}
    s_add_u32 {S(sMK+3)}, {S(sMK+2)}, 16
    v_mov_b32 v22, {FH(NEGBIG)}
    """)
    body = toI(["s_barrier", f"s_lshl_b32 {S(sKs)}, {S(sN)}, 15", f"s_add_u32 {S(sKs)}, {S(sKs)}, {S(sKb)}"]) + dmaKV(0, 0, sKs, "k")
    body += toI(["s_waitcnt vmcnt(0)", "s_barrier",
                 f"s_cmp_eq_u32 {S(sN)}, {S(sBLK)}", f"s_cselect_b32 {S(sT3)}, 0, 4096"])
    for kt in range(4):
        body += toI([rdK(0, kt, ds) for ds in range(4)])
        body += toI([f"v_subrev_u32 v21, {S(sMK+kt)}, v20", f"v_add_u32 v21, {S(sT3)}, v21"])
        for qt in range(4):
            for ds in range(4): body += toI([MF(V(Sw(qt), 4), Kf(kt, ds), Qf(ds, qt), V(Sw(qt), 4) if ds else "0")])
        for qt in range(4):
            for r in range(4):
                body += toI([f"v_cmp_gt_i32 vcc, {r - 32*qt}, v21", f"v_cndmask_b32 v23, {V(Sw(qt)+r)}, v22, vcc", f"v_max_f32 {V(16+qt)}, {V(16+qt)}, v23"])
    body += toI(["s_waitcnt lgkmcnt(0)", f"s_add_u32 {S(sN)}, {S(sN)}, 1", f"s_cmp_le_u32 {S(sN)}, {S(sBLK)}", f"s_cbranch_scc1 {name}_mx"])
    b.chain_loop([(name + "_mx", body)], align=0)
    for qt in range(4):
        b(f"""
        v_mov_b32 v20, {V(16+qt)}
        v_permlane16_swap_b32 {V(16+qt)}, v20
        v_max_f32 {V(16+qt)}, {V(16+qt)}, v20
        v_mov_b32 v20, {V(16+qt)}
        v_permlane32_swap_b32 {V(16+qt)}, v20
        v_max_f32 {V(16+qt)}, {V(16+qt)}, v20
        """)
    b(f"""
    s_lshl_b32 {S(sT3)}, {S(sWV)}, 10
    v_add_u32 v12, {S(sT3)}, {V(vL)}
    ds_write_b128 v12, v[16:19] offset:32768
    v_xor_b32 v12, 0x800, v12
    s_waitcnt lgkmcnt(0)
    s_barrier
    ds_read_b128 v[20:23], v12 offset:32768
    """)
    for qt in range(4):
        b(f"v_max_f32 {V(16+qt)}, {V(16+qt)}, {V(20+qt)}")
        for r in range(4): b(f"v_sub_f32 {V(NM(qt)+r)}, 0, {V(16+qt)}")
    b("s_barrier")
    first_dmas()
    b(f"s_branch {name}_retry")
    b.label(name + "_done", xs)
    T.stamp(b, "end")
    T.dump(b, R["ws"], 2, sWV, 12)
    b.label(name + "_end")
    b("s_endpgm")
    return dict(name=name, text=b.text(), kd=kd(name, 512, 256), launch=f"; @launch kernel={name} grid=(256,1,1) block=(256,1,1) lds=163840", stamps=T.names)
```

```python
from common import *
SPIN_MAX = 1000000
GC1 = 2 * 0.7978845608028654 * LOG2E
GC2 = GC1 * 0.044715

def prologue(b, name, srds, T=None):
    b(f"{name}:")
    b("s_cmp_ge_u32 s2, 256")
    b(f"s_cbranch_scc1 {name}_end")
    if T: T.stamp(b, "start")
    R = load_srds(b, srds, 8)
    b(f"""
    v_lshrrev_b32 v1, 6, v0
    v_and_b32 v0, 63, v0
    v_readfirstlane_b32 s48, v1
    s_and_b32 s51, s2, 7
    s_lshr_b32 s52, s2, 3
    s_and_b32 s50, s52, 7
    s_lshr_b32 s52, s52, 3
    s_lshl_b32 s49, s51, 2
    s_add_u32 s49, s49, s52
    v_lshlrev_b32 v1, 4, v0
    v_lshrrev_b32 v2, 4, v0
    v_and_b32 v3, 15, v0
    """)
    return R
sWV, sRB, sCS, sT, sT2, sT3 = 48, 49, 50, 51, 52, 53
vL16, vG, vR = 1, 2, 3

def finish(b, name, lds, T, R, vg=512):
    if T:
        T.stamp(b, "end"); T.dump(b, R["ws"], 2, sWV, 4)
    b.label(name + "_end"); b("s_endpgm")
    return dict(name=name, text=b.text(), kd=kd(name, vg, min(vg, 256)), launch=f"; @launch kernel={name} grid=(256,1,1) block=(256,1,1) lds={lds}", stamps=T.names if T else [])

def slices(b, per, sBase, sExtra):
    b(f"""
    s_lshr_b32 {S(sT)}, {S(sCS)}, 1
    s_mul_i32 {S(sT)}, {S(sT)}, {2*per}
    s_and_b32 {S(sT2)}, {S(sCS)}, 1
    s_add_u32 {S(sExtra)}, {S(sT)}, {per-1}
    s_add_u32 {S(sExtra)}, {S(sExtra)}, {S(sT2)}
    s_mul_i32 {S(sT2)}, {S(sT2)}, {per+1}
    s_add_u32 {S(sBase)}, {S(sT)}, {S(sT2)}
    """)
    if per == 7:
        b(f"""
        s_cmp_eq_u32 {S(sCS)}, 7
        s_cselect_b32 {S(sBase)}, 48, {S(sBase)}
        """)

def tile_voffs(b, per, sBase, sExtra, vA, vB, vE, unit, lanereg):
    b(f"""
    v_add_u32 {V(vA)}, {unit}, {V(lanereg)}
    v_add_u32 {V(vB)}, {5*unit}, {V(lanereg)}
    s_sub_u32 {S(sT)}, {S(sExtra)}, {S(sBase)}
    s_add_u32 {S(sT)}, {S(sT)}, 1
    s_mul_i32 {S(sT)}, {S(sT)}, {unit}
    """)
    if per == 7:
        b(f"s_cmp_ge_u32 {S(sCS)}, 6"); b(f"s_cselect_b32 {S(sT)}, {hex(OOB)}, {S(sT)}")
    b(f"v_add_u32 {V(vE)}, {S(sT)}, {V(lanereg)}")
    def at(n):
        if n == per - 1: return V(vE), 0
        return (V(vA), n * unit) if n < 4 else (V(vB), (n - 4) * unit)
    return at

def gemm(b, sWS, nks, nW, at, soffW, strideW, soffX, wreg, xreg, depth, acc, kvalid=None, xres=False, extra=None, mod=""):
    def loads(k):
        o = []
        if not xres:
            o.append(f"s_add_u32 {S(sT)}, {S(soffX)}, {k*4096}")
            if kvalid and k == nks - 1: o += [kvalid, f"s_cselect_b32 {S(sT)}, {S(sT)}, {hex(OOB)}"]
            for m in range(4): o.append(f"buffer_load_dwordx4 {xreg(k % depth, m)}, {V(vL16)}, {sWS}, {S(sT)} offen offset:{m*1024}{mod}")
        o.append(f"s_add_u32 {S(sT2)}, {S(soffW)}, {k*strideW}")
        if kvalid and k == nks - 1: o += [kvalid, f"s_cselect_b32 {S(sT2)}, {S(sT2)}, {hex(OOB)}"]
        for n in range(nW):
            v, off = at(n)
            o.append(f"buffer_load_dwordx4 {wreg(k % depth, n)}, {v}, {sWS}, {S(sT2)} offen offset:{off}{mod}")
        return toI(o)
    return loads

def run_gemm(b, nks, nW, loads, wreg, xreg, depth, acc, pre_issued, after=None, xidx=None):
    for k in range(pre_issued, min(depth - 1, nks)): b(loads(k))
    for k in range(nks):
        mf = []
        for n in range(nW):
            for m in range(4):
                mf.append(MF(acc(n, m), wreg(k % depth, n), xreg(xidx(k) if xidx else k % depth, m), acc(n, m) if k else "0"))
        sc = Sched(mf)
        nxt = k + depth - 1
        ins = loads(nxt) if nxt < nks and nxt >= pre_issued else (after(k) if after else [])
        g = 0
        for i in ins: g = sc.put(i, g) + (1 if i.kind != "vmem" else 2)
        b(sc.emit())

def reduce_lds(b, nW, acc, vW, vRd, dst, tmp):
    for n in range(nW):
        for m in range(4): b(f"ds_write_b128 {V(vW)}, {acc(n, m)} offset:{(m*nW + n)*1024}")
    b("s_waitcnt lgkmcnt(0)"); b("s_barrier")
    for n in range(nW):
        t = tmp + 12 * (n % 2)
        b(f"ds_read_b128 {V(dst+4*n,4)}, {V(vRd)} offset:{n*1024}")
        b(f"ds_read_b128 {V(t,4)}, {V(vRd)} offset:{4*nW*1024 + n*1024}")
        b(f"ds_read_b128 {V(t+4,4)}, {V(vRd+1)} offset:{n*1024}")
        b(f"ds_read_b128 {V(t+8,4)}, {V(vRd+1)} offset:{4*nW*1024 + n*1024}")
        if n: red_add(b, dst + 4*(n-1), tmp + 12*((n-1) % 2))
    red_add(b, dst + 4*(nW-1), tmp + 12*((nW-1) % 2))
def red_add(b, d, t):
    for h in (0, 2): b(f"v_pk_add_f32 {V(d+h,2)}, {V(d+h,2)}, {V(t+h,2)}")
    for h in (0, 2): b(f"v_pk_add_f32 {V(t+4+h,2)}, {V(t+4+h,2)}, {V(t+8+h,2)}")
    for h in (0, 2): b(f"v_pk_add_f32 {V(d+h,2)}, {V(d+h,2)}, {V(t+4+h,2)}")
def reduce_addrs(b, nW, vW, vRd):
    b(f"""
    s_mul_i32 {S(sT)}, {S(sWV)}, {4*nW*1024}
    v_add_u32 {V(vW)}, {S(sT)}, {V(vL16)}
    s_mul_i32 {S(sT)}, {S(sWV)}, {nW*1024}
    v_add_u32 {V(vRd)}, {S(sT)}, {V(vL16)}
    v_add_u32 {V(vRd+1)}, {8*nW*1024}, {V(vRd)}
    """)
def xg(b, r, t, op="v_add_f32"):
    for sw in ("v_permlane16_swap_b32", "v_permlane32_swap_b32"):
        b(f"v_mov_b32 {V(t)}, {V(r)}"); b(f"{sw} {V(r)}, {V(t)}"); b(f"{op} {V(r)}, {V(r)}, {V(t)}")
def row_sums(b, src, n, rs, t):
    b(f"v_pk_add_f32 {V(t,2)}, {V(src,2)}, {V(src+2,2)}")
    b(f"v_pk_mul_f32 {V(t+2,2)}, {V(src,2)}, {V(src,2)}")
    for k in range(2, n, 2):
        if k > 2: b(f"v_pk_add_f32 {V(t,2)}, {V(t,2)}, {V(src+k,2)}")
        b(f"v_pk_fma_f32 {V(t+2,2)}, {V(src+k,2)}, {V(src+k,2)}, {V(t+2,2)}")
    b(f"v_add_f32 {V(rs)}, {V(t)}, {V(t+1)}"); b(f"v_add_f32 {V(rs+1)}, {V(t+2)}, {V(t+3)}")
    xg(b, rs, t); xg(b, rs + 1, t + 1)
def fin_stats(b, st, n, t):
    b(f"v_pk_add_f32 {V(st,2)}, {V(st,2)}, {V(st+2,2)}")
    xg(b, st, t); xg(b, st + 1, t + 1)
    b(f"""
    v_mul_f32 {V(st)}, {FH(-1.0/n)}, {V(st)}
    v_mov_b32 {V(st+2)}, {FH(1e-5)}
    v_fmac_f32 {V(st+2)}, {FH(1.0/n)}, {V(st+1)}
    v_fma_f32 {V(st+2)}, -{V(st)}, {V(st)}, {V(st+2)}
    v_max_f32 {V(st+2)}, {FH(1e-5)}, {V(st+2)}
    v_rsq_f32 {V(st+2)}, {V(st+2)}
    """)
def store_act(b, sWS, per, src, base, nks, sBase, sExtra, vT, mod=""):
    for k in range(2 * per): b(f"v_cvt_pk_bf16_f32 {V(src+k)}, {V(src+2*k)}, {V(src+2*k+1)}")
    b(f"""
    s_mul_i32 {S(sT)}, {S(sRB)}, {nks*4096}
    s_lshl_b32 {S(sT2)}, {S(sWV)}, 10
    s_add_u32 {S(sT)}, {S(sT)}, {S(sT2)}
    s_add_u32 {S(sT)}, {S(sT)}, {base}
    s_lshl_b32 {S(sT2)}, {S(sBase)}, 11
    s_add_u32 {S(sT2)}, {S(sT2)}, {S(sT)}
    """)
    for p in range((per - 1) // 2):
        b(f"buffer_store_dwordx4 {V(src+4*p,4)}, {V(vL16)}, {sWS}, {S(sT2)} offen{mod}")
        b(f"s_add_u32 {S(sT2)}, {S(sT2)}, 4096")
    b(f"""
    s_lshr_b32 {S(sT2)}, {S(sExtra)}, 1
    s_lshl_b32 {S(sT2)}, {S(sT2)}, 12
    s_add_u32 {S(sT)}, {S(sT)}, {S(sT2)}
    s_and_b32 {S(sT2)}, {S(sExtra)}, 1
    s_lshl_b32 {S(sT2)}, {S(sT2)}, 3
    s_add_u32 {S(sT)}, {S(sT)}, {S(sT2)}
    """)
    if per == 7:
        b(f"s_cmp_ge_u32 {S(sCS)}, 6"); b(f"s_cselect_b32 {S(sT)}, {hex(OOB)}, {S(sT)}")
    b(f"buffer_store_dwordx2 {V(src+2*(per-1),2)}, {V(vL16)}, {sWS}, {S(sT)} offen{mod}")
def gelu(b, x, n, t, sC1, sC2):
    for k in range(0, n, 2): b(f"v_pk_mul_f32 {V(t+k,2)}, {V(x+k,2)}, {V(x+k,2)}")
    for k in range(0, n, 2): b(f"v_pk_fma_f32 {V(t+k,2)}, {V(t+k,2)}, {V(sC2,2)}, {V(sC1,2)}")
    for k in range(0, n, 2): b(f"v_pk_mul_f32 {V(t+k,2)}, {V(t+k,2)}, {V(x+k,2)}")
    for k in range(n): b(f"v_exp_f32 {V(t+k)}, {V(t+k)}")
    for k in range(0, n, 2): b(f"v_pk_add_f32 {V(t+k,2)}, {V(t+k,2)}, 1.0 op_sel_hi:[1,0]")
    for k in range(n): b(f"v_rcp_f32 {V(t+k)}, {V(t+k)}")
    for k in range(0, n, 2): b(f"v_pk_mul_f32 {V(x+k,2)}, {V(x+k,2)}, {V(t+k,2)}")

def gen_repack(name="kr_kernel", stamps=False, slot=0):
    b = B(); T = Stamper(stamps, 84, slot)
    R = prologue(b, name, ["wo", "win", "wout", "wsp", "ws"], T)
    sWS = S(R["ws"], 4)
    sId, sLb, sKs, sNb, sSrc, sDst = 54, 55, 56, 57, 58, 59
    b(f"""
    s_lshl_b32 {S(sLb)}, {S(sWV)}, 12
    v_lshrrev_b32 v4, 3, v0
    v_bfe_u32 v5, v0, 4, 2
    v_lshlrev_b32 v5, 1, v5
    v_and_b32 v6, 7, v0
    v_xor_b32 v5, v5, v6
    v_lshlrev_b32 v5, 4, v5
    v_lshrrev_b32 v6, 2, v0
    v_bfe_u32 v7, v0, 3, 2
    v_lshlrev_b32 v7, 5, v7
    v_lshl_add_u32 v7, v6, 7, v7
    v_and_b32 v6, 3, v0
    v_lshl_add_u32 v7, v6, 3, v7
    v_add_u32 v8, {S(sLb)}, v7
    v_xor_b32 v9, 32, v8
    v_xor_b32 v10, 64, v8
    v_xor_b32 v11, 96, v8
    v_bfe_u32 v7, v0, 1, 2
    v_lshlrev_b32 v7, 5, v7
    v_lshl_add_u32 v7, {V(vR)}, 7, v7
    v_lshl_add_u32 v7, {V(vG)}, 3, v7
    v_add_u32 v12, {S(sLb)}, v7
    v_xor_b32 v13, 32, v12
    v_xor_b32 v14, 64, v12
    v_xor_b32 v15, 96, v12
    """)
    for nm, pitch, nb, cnt, dst, nt in (("wo", 1280, 10, 1280, WS_WO, 40), ("win", 3456, 27, 540, WS_WIN, 108),
                                        ("wout", 1280, 10, 270, WS_WOUT, 40), ("wsp", 4096, 32, 2048, WS_WSP, 0)):
        b(f"""
        v_mul_u32_u24 v16, {pitch}, v4
        v_add_u32 v16, v16, v5
        s_lshl_b32 {S(sId)}, s2, 2
        s_add_u32 {S(sId)}, {S(sId)}, {S(sWV)}
        s_cmp_ge_u32 {S(sId)}, {cnt}
        s_cbranch_scc1 {name}_{nm}_done
        """)
        skip = b.flush()
        body = [f"s_mul_hi_u32 {S(sKs)}, {S(sId)}, {hex((2**32 + nb - 1)//nb)}", f"s_mul_i32 {S(sNb)}, {S(sKs)}, {nb}", f"s_sub_u32 {S(sNb)}, {S(sId)}, {S(sNb)}",
                f"s_mul_i32 {S(sSrc)}, {S(sKs)}, {32*pitch}", f"s_lshl_b32 {S(sT)}, {S(sNb)}, 7", f"s_add_u32 {S(sSrc)}, {S(sSrc)}, {S(sT)}"]
        for i in range(4):
            body += [f"s_add_u32 m0, {S(sLb)}, {i*1024}", f"s_add_u32 {S(sT)}, {S(sSrc)}, {i*8*pitch}", f"buffer_load_dwordx4 v16, {S(R[nm],4)}, {S(sT)} offen lds"]
        if nt:
            body += [f"s_mul_i32 {S(sDst)}, {S(sKs)}, {nt*1024}", f"s_lshl_b32 {S(sT)}, {S(sNb)}, 12", f"s_add_u32 {S(sDst)}, {S(sDst)}, {S(sT)}",
                     f"s_add_u32 {S(sDst)}, {S(sDst)}, {dst}", "s_waitcnt vmcnt(0)"]
            for n in range(4):
                for hf in range(2): body.append(f"ds_read_b64_tr_b16 {V(20+4*n+2*hf,2)}, {V(8+n)} offset:{hf*2048}")
            for n in range(4): body.append(f"buffer_store_dwordx4 {V(20+4*n,4)}, {V(vL16)}, {sWS}, {S(sDst)} offen offset:{n*1024}")
        else:
            body += [f"s_lshr_b32 {S(sDst)}, {S(sKs)}, 1", f"s_lshl_b32 {S(sDst)}, {S(sDst)}, 18", f"s_lshl_b32 {S(sT)}, {S(sNb)}, 13",
                     f"s_add_u32 {S(sDst)}, {S(sDst)}, {S(sT)}", f"s_and_b32 {S(sT)}, {S(sKs)}, 1", f"s_lshl_b32 {S(sT)}, {S(sT)}, 11",
                     f"s_add_u32 {S(sDst)}, {S(sDst)}, {S(sT)}", f"s_add_u32 {S(sDst)}, {S(sDst)}, {dst}", f"s_add_u32 {S(sT)}, {S(sDst)}, 4096", "s_waitcnt vmcnt(0)"]
            for ks in range(2):
                for mt in range(2):
                    for hf in range(2): body.append(f"ds_read_b64 {V(20+8*ks+4*mt+2*hf,2)}, {V(12+2*ks+hf)} offset:{mt*2048}")
            for ks in range(2):
                for mt in range(2): body.append(f"buffer_store_dwordx4 {V(20+8*ks+4*mt,4)}, {V(vL16)}, {sWS}, {S(sT if ks else sDst)} offen offset:{mt*1024}")
        body += [f"s_add_u32 {S(sId)}, {S(sId)}, 1024", f"s_cmp_lt_u32 {S(sId)}, {cnt}", f"s_cbranch_scc1 {name}_{nm}"]
        b.chain_loop([(f"{name}_{nm}", body)], align=0)
        b.label(f"{name}_{nm}_done", skip + b.flush())
    return finish(b, name, 16384, T, R, 64)

def gen_k3(name="k3_kernel", stamps=False, slot=0):
    b = B(); T = Stamper(stamps, 84, slot)
    R = prologue(b, name, ["x", "ws"], T); sWS = S(R["ws"], 4); sX = S(R["x"], 4)
    sBase, sExtra, sW, sXo = 54, 55, 56, 57
    slices(b, 5, sBase, sExtra)
    at = tile_voffs(b, 5, sBase, sExtra, 4, 5, 6, 1024, vL16)
    b(f"""
    s_mul_i32 {S(sW)}, {S(sWV)}, {32*40*1024}
    s_lshl_b32 {S(sT)}, {S(sBase)}, 10
    s_add_u32 {S(sW)}, {S(sW)}, {S(sT)}
    s_add_u32 {S(sW)}, {S(sW)}, {WS_WO - 1024}
    s_lshl_b32 {S(sXo)}, {S(sRB)}, 19
    s_lshl_b32 {S(sT)}, {S(sWV)}, 17
    s_add_u32 {S(sXo)}, {S(sXo)}, {S(sT)}
    s_add_u32 {S(sXo)}, {S(sXo)}, {WS_CTX}
    """)
    D = 4
    wreg = lambda buf, n: V(112 + 36*buf + 4*n, 4)
    xreg = lambda buf, m: V(112 + 36*buf + 20 + 4*m, 4)
    acc = lambda n, m: A(16*n + 4*m, 4)
    loads = gemm(b, sWS, 32, 5, at, sW, 40*1024, sXo, wreg, xreg, D, acc)
    for k in range(D - 1): b(loads(k))
    b(f"""
    v_lshlrev_b32 v7, 4, {V(vG)}
    v_mov_b32 v8, {hex(OOB)}
    v_cmp_gt_u32 vcc, 2, {V(vR)}
    v_mul_u32_u24 v9, 2560, {V(vR)}
    v_sub_u32 v9, {WS_MOD + 4*2560}, v9
    v_add_u32 v7, v7, v9
    v_cndmask_b32 v7, v8, v7, vcc
    s_mul_i32 {S(sT)}, {S(sWV)}, 640
    s_mul_i32 {S(sT2)}, {S(sWV)}, {5*108*1024}
    s_lshl_b32 {S(sT3)}, s2, 10
    s_add_u32 {S(sT2)}, {S(sT2)}, {S(sT3)}
    s_add_u32 {S(sT2)}, {S(sT2)}, {WS_WIN}
    s_cmp_lt_u32 s2, 108
    s_cselect_b32 {S(sT2)}, {S(sT2)}, {hex(OOB)}
    """)
    for k in range(5):
        for hf in range(2): b(f"buffer_load_dwordx4 {V(16+8*k+4*hf,4)}, v7, {sWS}, {S(sT)} offen offset:{128*k+64*hf}")
        b(f"buffer_load_dwordx4 {V(56+4*k,4)}, {V(vL16)}, {sWS}, {S(sT2)} offen")
        b(f"s_add_u32 {S(sT2)}, {S(sT2)}, {108*1024}")
    for k in range(5):
        for j in range(4): b(f"v_cvt_pk_bf16_f32 {V(16+8*k+j)}, {V(16+8*k+2*j)}, {V(16+8*k+2*j+1)}")
        b(MF(A(80,4), V(16+8*k,4), V(56+4*k,4), A(80,4) if k else "0"))
    XP, GA, AB = 16, 32, 56
    def epi_loads():
        bb = B()
        bb(f"""
        v_lshlrev_b32 v12, 3, {V(vG)}
        v_mul_u32_u24 v13, 1280, {V(vR)}
        v_add_u32 v12, v12, v13
        v_lshlrev_b32 v13, 4, {V(vG)}
        s_lshl_b32 {S(58)}, {S(sRB)}, 2
        s_add_u32 {S(58)}, {S(58)}, {S(sWV)}
        s_mul_i32 {S(58)}, {S(58)}, {16*1280}
        s_lshl_b32 {S(59)}, {S(sExtra)}, 5
        s_add_u32 {S(59)}, {S(59)}, {S(58)}
        s_lshl_b32 {S(60)}, {S(sBase)}, 5
        s_add_u32 {S(58)}, {S(58)}, {S(60)}
        s_lshl_b32 {S(60)}, {S(sBase)}, 6
        s_add_u32 {S(60)}, {S(60)}, {WS_MOD + 2*2560}
        s_lshl_b32 {S(61)}, {S(sExtra)}, 6
        s_add_u32 {S(61)}, {S(61)}, {WS_MOD + 2*2560}
        s_add_u32 {S(62)}, {S(60)}, {2*2560}
        s_add_u32 {S(63)}, {S(61)}, {2*2560}
        """)
        for n in range(5):
            bb(f"buffer_load_dwordx2 {V(XP+2*n,2)}, v12, {sX}, {S(58 if n < 4 else 59)} offen offset:{32*n if n < 4 else 0}")
            bb(f"buffer_load_dwordx4 {V(GA+4*n,4)}, v13, {sWS}, {S(60 if n < 4 else 61)} offen offset:{64*n if n < 4 else 0}")
            bb(f"buffer_load_dwordx4 {V(AB+4*n,4)}, v13, {sWS}, {S(62 if n < 4 else 63)} offen offset:{64*n if n < 4 else 0}")
        return bb.cur
    el = epi_loads()
    run_gemm(b, 32, 5, loads, wreg, xreg, D, acc, D - 1, after=lambda k: {29: el[:17], 30: el[17:25], 31: el[25:]}[k])
    T.stamp(b, "gemm")
    reduce_addrs(b, 5, 8, 9)
    b(f"s_lshl_b32 {S(sT)}, {S(sWV)}, 10"); b(f"s_add_u32 {S(sT)}, {S(sT)}, {80*1024}"); b(f"v_add_u32 v11, {S(sT)}, {V(vL16)}")
    b(f"ds_write_b128 v11, {A(80,4)}")
    Y = 80
    reduce_lds(b, 5, acc, 8, 9, Y, 112)
    b(f"v_add_u32 v11, {80*1024}, {V(vL16)}")
    for w in range(4): b(f"ds_read_b64 {V(140+2*w,2)}, v11 offset:{w*1024}")
    for n in range(5):
        for j in range(2):
            b(f"v_lshlrev_b32 v112, 16, {V(XP+2*n+j)}"); b(f"v_and_b32 v113, 0xffff0000, {V(XP+2*n+j)}")
            b(f"v_pk_fma_f32 {V(Y+4*n+2*j,2)}, {V(Y+4*n+2*j,2)}, {V(GA+4*n+2*j,2)}, v[112:113]")
    b(f"""
    s_lshl_b32 {S(sT)}, s2, 2
    s_add_u32 {S(sT)}, {S(sT)}, {S(sWV)}
    s_mul_i32 {S(sT)}, {S(sT)}, 5120
    s_add_u32 {S(sT)}, {S(sT)}, {WS_X1}
    s_add_u32 {S(sT2)}, {S(sT)}, 4096
    """)
    for n in range(5): b(f"buffer_store_dwordx4 {V(Y+4*n,4)}, {V(vL16)}, {sWS}, {S(sT if n < 4 else sT2)} offen offset:{(n % 4)*1024}")
    row_sums(b, Y, 20, 116, 112)
    b(f"""
    v_lshlrev_b32 v12, 6, {V(vR)}
    v_mov_b32 v13, {hex(OOB)}
    v_cmp_eq_u32 vcc, 0, {V(vG)}
    v_cndmask_b32 v12, v13, v12, vcc
    s_lshl_b32 {S(sT)}, {S(sRB)}, 2
    s_add_u32 {S(sT)}, {S(sT)}, {S(sWV)}
    s_lshl_b32 {S(sT)}, {S(sT)}, 10
    s_lshl_b32 {S(sT2)}, {S(sCS)}, 3
    s_add_u32 {S(sT)}, {S(sT)}, {S(sT2)}
    s_add_u32 {S(sT)}, {S(sT)}, {WS_ST1}
    buffer_store_dwordx2 v[116:117], v12, {sWS}, {S(sT)} offen
    v_pk_add_f32 v[140:141], v[140:141], v[142:143]
    v_pk_add_f32 v[144:145], v[144:145], v[146:147]
    v_pk_add_f32 v[140:141], v[140:141], v[144:145]
    v_lshlrev_b32 v14, 2, {V(vR)}
    v_cndmask_b32 v14, v13, v14, vcc
    s_lshl_b32 {S(sT)}, s2, 6
    s_add_u32 {S(sT)}, {S(sT)}, {WS_VEC}
    s_cmp_lt_u32 s2, 108
    s_cselect_b32 {S(sT)}, {S(sT)}, {hex(OOB)}
    s_add_u32 {S(sT2)}, {S(sT)}, 0x2000
    buffer_store_dword v140, v14, {sWS}, {S(sT)} offen
    buffer_store_dword v141, v14, {sWS}, {S(sT2)} offen
    """)
    for k in range(0, 20, 2): b(f"v_pk_mul_f32 {V(GA+k,2)}, {V(Y+k,2)}, {V(AB+k,2)}")
    store_act(b, sWS, 5, GA, WS_XA, 20, sBase, sExtra, 12)
    return finish(b, name, 84 * 1024, T, R)

def gen_k4(name="k4_kernel", stamps=False, slot=0):
    b = B(); T = Stamper(stamps, 84, slot)
    R = prologue(b, name, ["ws", "dbg"], T); sWS = S(R["ws"], 4); sDBG = S(R["dbg"], 4)
    sBase, sExtra, sW1, sW2, sXo, sRow = 54, 55, 56, 57, 58, 59
    slices(b, 7, sBase, sExtra)
    at = tile_voffs(b, 7, sBase, sExtra, 4, 5, 6, 1024, vL16)
    b(f"""
    s_mul_i32 {S(sW1)}, {S(sWV)}, {5*108*1024}
    s_lshl_b32 {S(sT)}, {S(sBase)}, 10
    s_add_u32 {S(sW1)}, {S(sW1)}, {S(sT)}
    s_add_u32 {S(sW1)}, {S(sW1)}, {WS_WIN - 1024}
    s_add_u32 {S(sW2)}, {S(sW1)}, {54*1024}
    s_mul_i32 {S(sXo)}, {S(sRB)}, {20*4096}
    s_mul_i32 {S(sT)}, {S(sWV)}, {5*4096}
    s_add_u32 {S(sXo)}, {S(sXo)}, {S(sT)}
    s_add_u32 {S(sXo)}, {S(sXo)}, {WS_XA}
    """)
    acc = lambda n, m: A(16*n + 4*m, 4)
    wreg = lambda buf, n: A(112 + 28*buf + 4*n, 4)
    xreg = lambda buf, m: V(176 + 16*buf + 4*m, 4)
    l2 = gemm(b, sWS, 5, 7, at, sW2, 108*1024, sXo, wreg, xreg, 5, acc)
    l1 = gemm(b, sWS, 5, 7, at, sW1, 108*1024, sXo, wreg, xreg, 5, acc, xres=True)
    for k in range(5): b(l2(k))
    ST = 12
    b(f"""
    v_lshlrev_b32 v7, 6, {V(vR)}
    v_lshl_add_u32 v7, {V(vG)}, 4, v7
    s_lshl_b32 {S(sRow)}, {S(sRB)}, 2
    s_add_u32 {S(sRow)}, {S(sRow)}, {S(sWV)}
    s_lshl_b32 {S(sRow)}, {S(sRow)}, 10
    s_add_u32 {S(sT)}, {S(sRow)}, {WS_ST1}
    buffer_load_dwordx4 {V(ST,4)}, v7, {sWS}, {S(sT)} offen
    v_lshlrev_b32 v20, 4, {V(vG)}
    """)
    atv = tile_voffs(b, 7, sBase, sExtra, 21, 22, 23, 64, 20)
    V1, V2, Z, TM, Z2 = 32, 60, 88, 116, 144
    def vecloads(half):
        o = [f"s_lshl_b32 s60, {S(sBase)}, 6", f"s_add_u32 s60, s60, {WS_VEC - 64 + half*54*64}", "s_add_u32 s61, s60, 0x2000"]
        for n in range(7):
            v, off = atv(n)
            o += [f"buffer_load_dwordx4 {V(V1+4*n,4)}, {v}, {sWS}, s60 offen offset:{off}", f"buffer_load_dwordx4 {V(V2+4*n,4)}, {v}, {sWS}, s61 offen offset:{off}"]
        return toI(o)
    reduce_addrs(b, 7, 8, 9)
    b(f"v_mov_b32 v24, {FH(-GC1)}"); b(f"v_mov_b32 v25, {FH(-GC1)}"); b(f"v_mov_b32 v26, {FH(-GC2)}"); b(f"v_mov_b32 v27, {FH(-GC2)}")
    vl = vecloads(1)
    run_gemm(b, 5, 7, l2, wreg, xreg, 5, acc, 5, after=lambda k: (vl if k == 0 else []) + (l1(k - 1) if k >= 1 else []))
    b(l1(4))
    T.stamp(b, "g2")
    fin_stats(b, ST, 640, 16)
    def apply(dst):
        reduce_lds(b, 7, acc, 8, 9, dst, TM)
        for k in range(0, 28, 2): b(f"v_pk_fma_f32 {V(dst+k,2)}, {V(V1+k,2)}, {V(ST,2)}, {V(dst+k,2)} op_sel_hi:[1,0,1]")
        for k in range(0, 28, 2): b(f"v_pk_fma_f32 {V(dst+k,2)}, {V(dst+k,2)}, {V(ST+2,2)}, {V(V2+k,2)} op_sel_hi:[1,0,1]")
    apply(Z2)
    b(vecloads(0))
    gelu(b, Z2, 28, TM, 24, 26)
    row_sums(b, Z2, 28, 16, TM)
    b(f"""
    v_lshlrev_b32 v18, 6, {V(vR)}
    v_mov_b32 v19, {hex(OOB)}
    v_cmp_eq_u32 vcc, 0, {V(vG)}
    v_cndmask_b32 v18, v19, v18, vcc
    s_lshl_b32 {S(sT2)}, {S(sCS)}, 3
    s_add_u32 {S(sT)}, {S(sRow)}, {S(sT2)}
    s_add_u32 {S(sT)}, {S(sT)}, {WS_ST2}
    buffer_store_dwordx2 v[16:17], v18, {sWS}, {S(sT)} offen sc1
    s_lshl_b32 {S(sT)}, {S(sRB)}, 2
    v_mov_b32 v28, {S(sT)}
    s_cmp_eq_u32 {S(sWV)}, 0
    s_cselect_b32 {S(sT)}, {S(sT)}, {hex(OOB)}
    v_writelane_b32 v19, {S(sT)}, 0
    v_mov_b32 v18, 1
    s_waitcnt vmcnt(0)
    s_barrier
    buffer_atomic_add v18, v19, {sDBG}, 0 offen
    """)
    T.stamp(b, "e2")
    run_gemm(b, 5, 7, l1, wreg, xreg, 5, acc, 5)
    poll = f"buffer_load_dword v29, v28, {sDBG}, 0 offen sc1"
    apply(Z)
    b(poll)
    gelu(b, Z, 28, TM, 24, 26)
    b(f"""
    s_lshl_b32 {S(sT)}, s2, 2
    s_add_u32 {S(sT)}, {S(sT)}, {S(sWV)}
    s_mul_i32 {S(sT)}, {S(sT)}, 7168
    s_add_u32 s60, {S(sT)}, {WS_Z1}
    s_add_u32 s61, s60, 4096
    """)
    T.stamp(b, "e1")
    spin(b, name + "_p", 29, poll, 8)
    b(f"s_add_u32 {S(sT)}, {S(sRow)}, {WS_ST2}")
    b(f"buffer_load_dwordx4 {V(ST,4)}, v7, {sWS}, {S(sT)} offen sc1")
    for n in range(7): b(f"buffer_store_dwordx4 {V(Z+4*n,4)}, {V(vL16)}, {sWS}, {'s60' if n < 4 else 's61'} offen offset:{(n % 4)*1024}")
    fin_stats(b, ST, 864, 16)
    b(f"v_mul_f32 {V(ST)}, {V(ST)}, {V(ST+2)}")
    for k in range(0, 28, 2): b(f"v_pk_fma_f32 {V(Z2+k,2)}, {V(Z2+k,2)}, {V(ST+2,2)}, {V(ST,2)} op_sel_hi:[1,0,0]")
    for k in range(14): b(f"v_cvt_pk_bf16_f32 {V(Z2+k)}, {V(Z2+2*k)}, {V(Z2+2*k+1)}")
    TB = 112 * 1024
    b(f"""
    v_lshlrev_b32 v16, 5, {V(vR)}
    v_lshl_add_u32 v16, {V(vG)}, 3, v16
    s_lshl_b32 {S(sT)}, {S(sWV)}, 9
    s_add_u32 {S(sT)}, {S(sT)}, {TB}
    v_add_u32 v16, {S(sT)}, v16
    """)
    for n in range(7): b(f"ds_write_b64 v16, {V(Z2+2*n,2)} offset:{n*2048}")
    b(f"""
    s_and_b32 {S(sT)}, {S(sWV)}, 1
    s_lshr_b32 {S(sT2)}, {S(sWV)}, 1
    s_lshl_b32 {S(sT3)}, {S(sT)}, 10
    s_lshl_b32 s60, {S(sT2)}, 13
    s_add_u32 {S(sT3)}, {S(sT3)}, s60
    s_add_u32 {S(sT3)}, {S(sT3)}, {TB}
    v_lshl_add_u32 v17, v0, 3, {S(sT3)}
    s_lshl_b32 s60, {S(sRB)}, 1
    s_add_u32 s60, s60, {S(sT)}
    s_mul_i32 s60, s60, {54*1024}
    s_add_u32 s60, s60, {WS_Z2}
    s_lshl_b32 s61, {S(sT2)}, 2
    s_add_u32 s61, s61, {S(sBase)}
    s_lshl_b32 s61, s61, 10
    s_add_u32 s61, s61, s60
    s_lshl_b32 s62, {S(sExtra)}, 10
    s_add_u32 s62, s62, s60
    s_cmp_ge_u32 {S(sCS)}, 6
    s_cselect_b32 s62, {hex(OOB)}, s62
    s_add_u32 s63, s61, 2048
    s_add_u32 s64, s61, 3072
    s_cmp_eq_u32 {S(sT2)}, 1
    s_cselect_b32 s63, s62, s63
    s_cselect_b32 s64, {hex(OOB)}, s64
    s_waitcnt lgkmcnt(0)
    s_barrier
    """)
    for n in range(4):
        for hf in range(2): b(f"ds_read_b64_tr_b16 {V(TM+4*n+2*hf,2)}, v17 offset:{n*2048 + hf*512}")
    for n in range(4):
        b(f"buffer_store_dwordx4 {V(TM+4*n,4)}, {V(vL16)}, {sWS}, {('s61','s61','s63','s64')[n]} offen offset:{1024 if n == 1 else 0}")
    return finish(b, name, 128 * 1024, T, R)

def spin(b, lab, vreg, poll, target):
    b(f"@need {V(vreg)}")
    b(f"v_cmp_gt_u32 vcc, {target}, {V(vreg)}")
    b(f"s_cbranch_vccz {lab}_ok")
    sts = b.flush()
    b(f"s_mov_b32 {S(sT3)}, 0")
    b.label(f"{lab}_spin")
    b(poll)
    b(f"s_add_u32 {S(sT3)}, {S(sT3)}, 1")
    b(f"s_cmp_gt_u32 {S(sT3)}, {SPIN_MAX}")
    b("s_waitcnt vmcnt(0)")
    b(f"s_cbranch_scc1 {lab}_ok")
    b(f"v_cmp_gt_u32 vcc, {target}, {V(vreg)}")
    b(f"s_cbranch_vccnz {lab}_spin")
    b.label(f"{lab}_ok", sts + b.flush())

def gen_k5(name="k5_kernel", stamps=False, slot=0):
    b = B(); T = Stamper(stamps, 84, slot)
    R = prologue(b, name, ["ws", "bsp"], T); sWS = S(R["ws"], 4)
    sBase, sExtra, sW, sXo = 54, 55, 56, 57
    slices(b, 7, sBase, sExtra)
    at = tile_voffs(b, 7, sBase, sExtra, 4, 5, 6, 1024, vL16)
    b(f"""
    s_mul_i32 {S(sW)}, {S(sWV)}, {16*54*1024}
    s_lshl_b32 {S(sT)}, {S(sBase)}, 10
    s_add_u32 {S(sW)}, {S(sW)}, {S(sT)}
    s_add_u32 {S(sW)}, {S(sW)}, {WS_Z2 - 1024}
    s_lshl_b32 {S(sXo)}, {S(sRB)}, 18
    s_lshl_b32 {S(sT)}, {S(sWV)}, 16
    s_add_u32 {S(sXo)}, {S(sXo)}, {S(sT)}
    s_add_u32 {S(sXo)}, {S(sXo)}, {WS_WSP}
    """)
    D = 4
    wreg = lambda buf, n: V(80 + 44*buf + 4*n, 4)
    xreg = lambda buf, m: V(80 + 44*buf + 28 + 4*m, 4)
    acc = lambda n, m: A(16*n + 4*m, 4)
    loads = gemm(b, sWS, 16, 7, at, sW, 54*1024, sXo, wreg, xreg, D, acc)
    Z1, G = 16, 44
    el = toI([f"s_lshl_b32 s60, s2, 2", f"s_add_u32 s60, s60, {S(sWV)}", "s_mul_i32 s60, s60, 7168", f"s_add_u32 s60, s60, {WS_Z1}", "s_add_u32 s61, s60, 4096",
              f"s_lshl_b32 s62, {S(sRB)}, 2", f"s_add_u32 s62, s62, {S(sWV)}", "s_lshl_b32 s62, s62, 5", f"v_lshlrev_b32 v7, 1, {V(vR)}"])
    el2 = toI([f"buffer_load_dwordx4 {V(Z1+4*n,4)}, {V(vL16)}, {sWS}, {'s60' if n < 4 else 's61'} offen offset:{(n % 4)*1024}" for n in range(7)]
              + [f"buffer_load_ushort v12, v7, {S(R['bsp'],4)}, s62 offen"])
    run_gemm(b, 16, 7, loads, wreg, xreg, D, acc, 0, after=lambda k: {13: el, 14: el2, 15: []}[k])
    T.stamp(b, "gemm")
    reduce_addrs(b, 7, 8, 9)
    reduce_lds(b, 7, acc, 8, 9, G, 80)
    b("v_lshlrev_b32 v12, 16, v12")
    for k in range(0, 28, 2): b(f"v_pk_add_f32 {V(G+k,2)}, {V(G+k,2)}, v[12:13] op_sel_hi:[1,0]")
    for k in range(0, 28, 2): b(f"v_pk_mul_f32 {V(G+k,2)}, {V(G+k,2)}, {V(Z1+k,2)}")
    store_act(b, sWS, 7, G, WS_U, 27, sBase, sExtra, 12)
    return finish(b, name, 112 * 1024, T, R)

def gen_k6(name="k6_kernel", stamps=False, slot=0):
    b = B(); T = Stamper(stamps, 84, slot)
    R = prologue(b, name, ["ws", "out"], T); sWS = S(R["ws"], 4)
    sBase, sExtra, sW, sXo = 54, 55, 56, 57
    slices(b, 5, sBase, sExtra)
    at = tile_voffs(b, 5, sBase, sExtra, 4, 5, 6, 1024, vL16)
    b(f"""
    s_mul_i32 {S(sW)}, {S(sWV)}, {7*40*1024}
    s_lshl_b32 {S(sT)}, {S(sBase)}, 10
    s_add_u32 {S(sW)}, {S(sW)}, {S(sT)}
    s_add_u32 {S(sW)}, {S(sW)}, {WS_WOUT - 1024}
    s_mul_i32 {S(sXo)}, {S(sRB)}, {27*4096}
    s_mul_i32 {S(sT)}, {S(sWV)}, {7*4096}
    s_add_u32 {S(sXo)}, {S(sXo)}, {S(sT)}
    s_add_u32 {S(sXo)}, {S(sXo)}, {WS_U}
    """)
    D = 4
    wreg = lambda buf, n: V(112 + 36*buf + 4*n, 4)
    xreg = lambda buf, m: V(112 + 36*buf + 20 + 4*m, 4)
    acc = lambda n, m: A(16*n + 4*m, 4)
    loads = gemm(b, sWS, 7, 5, at, sW, 40*1024, sXo, wreg, xreg, D, acc, kvalid=f"s_cmp_lt_u32 {S(sWV)}, 3")
    X1, GB, Y = 16, 36, 56
    el = toI([f"s_lshl_b32 s60, s2, 2", f"s_add_u32 s60, s60, {S(sWV)}", "s_mul_i32 s60, s60, 5120", f"s_add_u32 s60, s60, {WS_X1}", "s_add_u32 s61, s60, 4096",
              f"s_lshl_b32 s62, {S(sBase)}, 6", f"s_add_u32 s62, s62, {WS_MOD + 5*2560}", f"s_lshl_b32 s63, {S(sExtra)}, 6", f"s_add_u32 s63, s63, {WS_MOD + 5*2560}",
              f"v_lshlrev_b32 v7, 4, {V(vG)}"])
    el2 = toI([f"buffer_load_dwordx4 {V(X1+4*n,4)}, {V(vL16)}, {sWS}, {'s60' if n < 4 else 's61'} offen offset:{(n % 4)*1024}" for n in range(5)]
              + [f"buffer_load_dwordx4 {V(GB+4*n,4)}, v7, {sWS}, {'s62' if n < 4 else 's63'} offen offset:{(n % 4)*64}" for n in range(5)])
    run_gemm(b, 7, 5, loads, wreg, xreg, D, acc, 0, after=lambda k: {4: el, 5: el2, 6: []}[k])
    T.stamp(b, "gemm")
    reduce_addrs(b, 5, 8, 9)
    reduce_lds(b, 5, acc, 8, 9, Y, 112)
    for k in range(0, 20, 2): b(f"v_pk_fma_f32 {V(Y+k,2)}, {V(Y+k,2)}, {V(GB+k,2)}, {V(X1+k,2)}")
    for k in range(10): b(f"v_cvt_pk_bf16_f32 {V(Y+k)}, {V(Y+2*k)}, {V(Y+2*k+1)}")
    b(f"""
    v_lshlrev_b32 v12, 3, {V(vG)}
    v_mul_u32_u24 v13, 1280, {V(vR)}
    v_add_u32 v12, v12, v13
    s_lshl_b32 s58, {S(sRB)}, 2
    s_add_u32 s58, s58, {S(sWV)}
    s_mul_i32 s58, s58, {16*1280}
    s_lshl_b32 s59, {S(sExtra)}, 5
    s_add_u32 s59, s59, s58
    s_lshl_b32 s60, {S(sBase)}, 5
    s_add_u32 s58, s58, s60
    """)
    for n in range(5): b(f"buffer_store_dwordx2 {V(Y+2*n,2)}, v12, {S(R['out'],4)}, {'s58' if n < 4 else 's59'} offen offset:{32*n if n < 4 else 0}")
    return finish(b, name, 80 * 1024, T, R)
```

```python
import sys; sys.path.insert(0,'gen')
import ka, kt, build
st = len(sys.argv) > 2 and sys.argv[2] == "stamps"
ks = [ka.gen(stamps=st)] + [f(stamps=st, slot=i+1) for i, f in enumerate((kt.gen_repack, kt.gen_k3, kt.gen_k4, kt.gen_k5, kt.gen_k6))]
build.assemble(ks, sys.argv[1])
if st: print(";".join(",".join(k["stamps"]) for k in ks))
```

```python
import re

REG = re.compile(r"^(-?)(abs\()?([vas])(?:(\d+)|\[(\d+):(\d+)\])\)?$")

def regs_of(tok):
    tok = tok.strip()
    if tok.startswith("|") and tok.endswith("|"): tok = tok[1:-1]
    if tok.startswith("-|") and tok.endswith("|"): tok = tok[2:-1]
    if tok in ("vcc", "vcc_lo", "vcc_hi"): return {("s", 106), ("s", 107)}
    if tok in ("exec", "exec_lo", "exec_hi"): return {("s", 126), ("s", 127)}
    if tok == "m0": return {("s", 124)}
    m = REG.match(tok)
    if not m: return set()
    f = m.group(3)
    if m.group(4) is not None: return {(f, int(m.group(4)))}
    return {(f, i) for i in range(int(m.group(5)), int(m.group(6)) + 1)}

TRANS = ("v_exp_f32", "v_log_f32", "v_rcp_f32", "v_rsq_f32", "v_sqrt_f32", "v_sin_f32", "v_cos_f32", "v_rcp_iflag_f32")

class I:
    __slots__ = ("t", "op", "kind", "w", "r", "srcc", "tag", "passes", "dpp", "ab")
    def __init__(self, text, tag=None):
        self.t = text; self.tag = tag
        s = text.split(";")[0].strip()
        self.w = set(); self.r = set(); self.srcc = set(); self.ab = set(); self.passes = 0; self.dpp = False
        if s.endswith(":") or s.startswith(".") or s == "":
            self.op = ""; self.kind = "label"; return
        if s.startswith("@"):
            self.op = s.split()[0]; self.kind = "pseudo"; return
        p = s.split(None, 1); op = p[0]; self.op = op
        rest = p[1] if len(p) > 1 else ""
        ops = [x.strip() for x in rest.split(",")]
        if ops:
            last = ops[-1].split()
            mods = last[1:]; ops[-1] = last[0] if last else ""
        else: mods = []
        R = [regs_of(o) for o in ops]
        def rd(idx):
            for i in idx:
                if i < len(R): self.r |= R[i]
        if op.startswith("v_mfma"):
            self.kind = "mfma"; self.w = R[0]; rd((1, 2, 3)); self.srcc = R[3]; self.ab = R[1] | R[2]
            self.passes = 8 if "32x32" in op else 4
        elif op.startswith("ds_read") or op.startswith("ds_bpermute") or op.startswith("ds_swizzle") or op.startswith("ds_permute") or (op.startswith("ds_") and "_rtn" in op):
            self.kind = "ds"; self.w = R[0]; rd(range(1, len(R)))
        elif op.startswith("ds_"):
            self.kind = "ds"; rd(range(len(R)))
        elif op.startswith("buffer_load") or op.startswith("global_load"):
            self.kind = "vmem"
            if "lds" in mods or "_lds_" in op:
                rd(range(len(R))); self.r |= {("s", 124)}
            else:
                self.w = R[0]; rd(range(1, len(R)))
        elif op.startswith("buffer_atomic") or op.startswith("global_atomic"):
            self.kind = "vmem"; rd(range(len(R)))
            if "sc0" in mods: self.w = R[0]
        elif op.startswith("buffer_") or op.startswith("global_"):
            self.kind = "vmem"; rd(range(len(R)))
        elif op.startswith("s_load") or op.startswith("s_buffer_load") or op in ("s_memtime", "s_memrealtime"):
            self.kind = "smem"; self.w = R[0]; rd(range(1, len(R)))
        elif op == "s_waitcnt": self.kind = "wait"
        elif op == "s_nop": self.kind = "nop"
        elif op in ("s_barrier", "s_endpgm", "s_setprio", "s_sleep") or op.startswith("s_branch") or op.startswith("s_cbranch"):
            self.kind = "ctl"
            if "vcc" in op: self.r |= regs_of("vcc")
            if "exec" in op: self.r |= regs_of("exec")
        elif op.startswith("s_"):
            self.kind = "salu"
            if op.startswith("s_cmp") or op.startswith("s_bitcmp"): rd(range(len(R)))
            else:
                self.w = R[0]; rd(range(1, len(R)))
                if "saveexec" in op: self.w |= regs_of("exec"); self.r |= regs_of("exec")
                if op in ("s_addk_i32", "s_mulk_i32", "s_cmov_b32", "s_cmov_b64", "s_bitset1_b32", "s_bitset0_b32"): self.r |= R[0]
        elif op.startswith("v_"):
            self.kind = "valu"
            self.dpp = any(m.startswith(("row_", "quad_perm", "wave_")) for m in mods) or op.endswith("_dpp")
            if op == "v_nop": pass
            elif op.startswith("v_permlane") and "swap" in op:
                self.w = R[0] | R[1]; rd((0, 1))
            elif op.startswith("v_cmpx"):
                self.w = R[0] | regs_of("exec"); rd(range(1, len(R)))
            elif "_co_" in op or op.startswith("v_div_scale") or op.startswith("v_mad_u64"):
                self.w = R[0] | R[1]; rd(range(2, len(R)))
            else:
                self.w = R[0]; rd(range(1, len(R)))
                if op.startswith(("v_fmac", "v_pk_fmac", "v_writelane", "v_dot2c")) or self.dpp: self.r |= R[0]
                if op.startswith("v_cndmask") and len(ops) == 3: self.r |= regs_of("vcc")
        else:
            raise ValueError("unknown op: " + text)
    def states(self):
        if self.kind in ("label", "pseudo"): return 0
        if self.kind == "nop": return int(self.t.split()[1]) + 1
        return 1
    def is_trans(self): return self.op.replace("_e32", "").replace("_e64", "") in TRANS

def need_states(p, c):
    n = 0
    vw = {x for x in p.w if x[0] != "s"}; sw = {x for x in p.w if x[0] == "s"}
    if p.kind == "valu":
        if c.kind == "mfma" and vw & c.r: n = max(n, 2)
        if c.kind == "mfma" and ("s", 126) in sw: n = max(n, 4)
        if c.kind == "valu":
            if c.dpp and vw & c.r: n = max(n, 2)
            if c.dpp and ("s", 126) in sw: n = max(n, 5)
            if c.op.startswith("v_permlane") and vw & c.r: n = max(n, 2)
            if c.op.startswith(("v_permlane", "v_readlane", "v_readfirstlane", "v_writelane")) and ("s", 126) in sw: n = max(n, 4)
            if c.op.startswith(("v_readlane", "v_readfirstlane")) and vw & c.r: n = max(n, 1)
            if p.is_trans() and vw & c.r: n = max(n, 1)
            if sw & c.r:
                n = max(n, 4 if c.op.startswith(("v_readlane", "v_writelane", "v_div_fmas")) else 2)
            if ("op_sel" in p.t or "sdwa" in p.t or "dst_sel" in p.t) and vw & (c.r | c.w): n = max(n, 1)
        if c.kind == "vmem" and sw & c.r: n = max(n, 5)
        if c.kind in ("salu", "ctl", "smem") and sw & c.r: n = max(n, 1 if c.kind != "ctl" else 1)
    if p.kind == "salu" and ("s", 124) in sw:
        if (c.kind == "vmem" and ("s", 124) in c.r) or "addtid" in c.op or c.op.startswith("s_movrel") or (c.kind == "valu" and ("s", 124) in c.r): n = max(n, 1)
    if p.kind == "mfma":
        k = {4: 0, 8: 1}[p.passes]
        if c.kind == "mfma":
            if p.w & c.ab: n = max(n, (8, 12)[k])
            if p.w & c.srcc:
                if not (p.w == c.srcc and p.passes == c.passes): n = max(n, (6, 10)[k])
            elif p.w & c.w: n = max(n, (6, 10)[k])
        elif c.kind in ("valu", "ds", "vmem"):
            if p.w & (c.r | c.w): n = max(n, (8, 12)[k])
        if c.kind == "valu" and p.srcc & c.w: n = max(n, (3, 7)[k])
        if c.kind in ("ds", "vmem") and p.srcc & c.w: n = max(n, (3, 7)[k])
    if p.kind == "vmem" and ("x4" in p.op or "x3" in p.op) and "store" in p.op:
        data = regs_of(p.t.split(None, 1)[1].split(",")[0 if p.op.startswith("buffer") else 1])
        if data & c.w: n = max(n, 2 if c.kind == "valu" else 1)
    return n

class State:
    def __init__(self, lg=None, vm=None, tail=None):
        self.lg = list(lg or []); self.vm = list(vm or []); self.tail = list(tail or [])
    def copy(self): return State(self.lg, self.vm, self.tail)

def _parse_wait(t):
    vm = re.search(r"vmcnt\((\d+)\)", t); lg = re.search(r"lgkmcnt\((\d+)\)", t)
    return (int(vm.group(1)) if vm else None, int(lg.group(1)) if lg else None)

def resolve(ins, st, stats=None):
    out = []
    def emit(i):
        if i.kind not in ("label", "pseudo"):
            dist = 0; need = 0
            for p in reversed(st.tail):
                n = need_states(p, i)
                if n > dist: need = max(need, n - dist)
                dist += p.states()
                if dist >= 20: break
            if need > 0:
                while need > 0:
                    k = min(need, 16); nop = I(f"s_nop {k-1}"); out.append(nop); st.tail.append(nop); need -= k
                    if stats is not None: stats["nops"] = stats.get("nops", 0) + k
            st.tail.append(i); st.tail = st.tail[-24:]
        out.append(i)
    def do_wait(vm, lg):
        parts = []
        if vm is not None and vm < len(st.vm):
            vm = min(vm, 62); parts.append(f"vmcnt({vm})"); st.vm = st.vm[len(st.vm) - vm:] if vm else []
        if lg is not None and lg < len(st.lg):
            if any(e[2] for e in st.lg): lg = 0
            lg = min(lg, 14); parts.append(f"lgkmcnt({lg})"); st.lg = st.lg[len(st.lg) - lg:] if lg else []
        if parts: emit(I("s_waitcnt " + " ".join(parts)))
    for i in ins:
        if i.kind == "pseudo":
            a = i.t.split()
            if a[0] == "@waitvm":
                idx = [k for k, e in enumerate(st.vm) if e[1] == a[1]]
                if idx: do_wait(len(st.vm) - 1 - max(idx), None)
            elif a[0] == "@waitlg":
                idx = [k for k, e in enumerate(st.lg) if e[1] == a[1]]
                if idx: do_wait(None, len(st.lg) - 1 - max(idx))
            elif a[0] == "@retag":
                st.vm = [(e[0], a[2] if e[1] == a[1] else e[1], e[2]) for e in st.vm]
            elif a[0] == "@need":
                rs = set()
                for x in a[1:]: rs |= regs_of(x)
                vm = [k for k, e in enumerate(st.vm) if e[0] & rs]; lg = [k for k, e in enumerate(st.lg) if e[0] & rs]
                do_wait(len(st.vm) - 1 - max(vm) if vm else None, len(st.lg) - 1 - max(lg) if lg else None)
            else: raise ValueError(i.t)
            out.append(i)
            continue
        if i.kind == "wait":
            vm, lg = _parse_wait(i.t)
            if vm is not None and vm < len(st.vm): st.vm = st.vm[len(st.vm) - vm:] if vm else []
            if lg is not None and lg < len(st.lg):
                if lg == 0 or not any(e[2] for e in st.lg): st.lg = st.lg[len(st.lg) - lg:] if lg else []
            emit(i); continue
        touch = i.r | i.w
        if touch:
            vm = [k for k, e in enumerate(st.vm) if e[0] & touch]
            lg = [k for k, e in enumerate(st.lg) if e[0] & touch]
            if i.kind == "vmem": vm = [k for k in vm if st.vm[k][0] & i.r]
            if i.kind == "ds": lg = [k for k in lg if st.lg[k][0] & i.r or st.lg[k][2]]
            if vm or lg:
                do_wait(len(st.vm) - 1 - max(vm) if vm else None, len(st.lg) - 1 - max(lg) if lg else None)
        emit(i)
        if i.kind == "vmem": st.vm.append((set(i.w), i.tag, False))
        elif i.kind == "ds": st.lg.append((set(i.w), i.tag, False))
        elif i.kind == "smem": st.lg.append((set(i.w), i.tag, True))
    return out

def _sig(st):
    return (tuple((tuple(sorted(e[0])), e[1], e[2]) for e in st.lg), tuple((tuple(sorted(e[0])), e[1]) for e in st.vm),
            tuple(x.t for x in st.tail[-20:]))

def dedupe(states):
    seen = {}
    for s in states: seen.setdefault(_sig(s), s)
    return list(seen.values())

def toI(ins):
    out = []
    for b in ins:
        if isinstance(b, I): out.append(b)
        elif isinstance(b, (list, tuple)): out += toI(b)
        else:
            for l in b.split("\n"):
                if l.strip(): out.append(I(l.strip()))
    return out

def seg(ins, preds):
    r = toI(ins)
    while True:
        n = len(r); exits = []
        for st in preds:
            s = st.copy(); r = resolve(r, s); exits.append(s)
        if len(r) == n: return r, dedupe(exits)

class B:
    def __init__(self):
        self.out = []; self.cur = []; self.sts = [State()]
    def __call__(self, text, tag=None):
        if isinstance(text, I): self.cur.append(text); return
        if isinstance(text, (list, tuple)):
            for t in text: self(t, tag)
            return
        for l in text.split("\n"):
            l = l.strip()
            if l: self.cur.append(I(l, tag))
    def flush(self):
        if self.cur:
            r, self.sts = seg(self.cur, self.sts); self.out += r; self.cur = []
        return self.sts
    def label(self, name, preds=None, align=0):
        self.flush()
        if align: self.out.append(I(f".p2align {align}"))
        self.out.append(I(name + ":"))
        if preds is not None: self.sts = dedupe(preds)
    def chain_loop(self, bodies, align=6, extra={}):
        self.flush()
        rs = [toI(b) for _, b in bodies]
        ins = list(self.sts)
        st = ins
        for k in range(len(rs)): _, st = seg(rs[k], st)
        ins = dedupe(st + ins)
        while True:
            n0 = [len(r) for r in rs]; st = ins; outs = []
            for k in range(len(rs)):
                rs[k], st = seg(rs[k], dedupe(st + extra.get(k, []))); outs.append(st)
            new = dedupe(ins + st)
            if len(new) == len(ins) and n0 == [len(r) for r in rs]: break
            ins = new
        for k, ((lab, _), r) in enumerate(zip(bodies, rs)):
            if k == 0 and align: self.out.append(I(f".p2align {align}"))
            self.out.append(I(lab + ":")); self.out += r
        self.sts = outs[-1]
        return ins, outs
    def check_scc(self):
        last = None
        for i in self.out:
            if i.op.startswith(("s_cselect", "s_cbranch_scc", "s_addc", "s_cmov")):
                assert last is None or last.op.startswith(("s_cmp", "s_bitcmp", "s_or_b64", "s_andn2", "s_and_b64")), f"SCC consumer {i.t} after {last.t}"
            if i.kind == "salu" and not i.op.startswith(("s_mov", "s_cselect", "s_mul", "s_getpc", "s_getreg", "s_cmov")): last = i
    def text(self):
        self.flush(); self.check_scc(); return "\n".join(("" if i.kind == "label" else "  ") + i.t for i in self.out if i.kind != "pseudo")

def weave(mf, fill):
    out = list(fill.get(-1, []))
    for k, m in enumerate(mf):
        out.append(m); out += fill.get(k, [])
    return out

def kd(name, vgpr, acc, sgpr=102):
    return f""".amdhsa_kernel {name}
  .amdhsa_next_free_vgpr {vgpr}
  .amdhsa_next_free_sgpr {sgpr}
  .amdhsa_accum_offset {acc}
  .amdhsa_group_segment_fixed_size 0
  .amdhsa_kernarg_size 128
  .amdhsa_user_sgpr_count 2
  .amdhsa_user_sgpr_kernarg_segment_ptr 1
  .amdhsa_system_sgpr_workgroup_id_x 1
  .amdhsa_float_denorm_mode_32 3
.end_amdhsa_kernel"""

def V(i, n=1): return f"v{i}" if n == 1 else f"v[{i}:{i+n-1}]"
def A(i, n=1): return f"a{i}" if n == 1 else f"a[{i}:{i+n-1}]"
def S(i, n=1): return f"s{i}" if n == 1 else f"s[{i}:{i+n-1}]"
def MF(d, a, b, c): return f"v_mfma_f32_16x16x32_bf16 {d}, {a}, {b}, {c}"


class Sched:
    ORDER = {"pre": 0, "salu": 1, "ds": 2, "vmem": 2, "valu": 3, "post": 4, "post2": 5}
    def __init__(self, mf, cap=2):
        self.mf = list(mf); n = len(mf)
        self.free = [cap] * n; self.g = [[] for _ in range(n)]; self.head = []; self.nsalu = [0] * n
        self.over = []
        self.seqs = []
    def put(self, ins, earliest, tag=None, force=False):
        i = ins if isinstance(ins, I) else I(ins, tag)
        earliest = max(earliest, 0)
        if i.kind == "valu": cost = 2 if i.is_trans() else 1; cls = "valu"
        elif i.kind == "ds": cost = 1; cls = "ds"
        elif i.kind == "vmem": cost = 2; cls = "vmem"
        else: cost = 0; cls = "salu"
        for k in range(earliest, len(self.mf)):
            if force: ok = True
            elif cls == "salu": ok = self.nsalu[k] < 1
            elif cls == "ds": ok = self.free[k] >= 1 and not any(c in ("ds", "vmem") for c, _ in self.g[k])
            else: ok = self.free[k] >= cost
            if ok:
                self.free[k] -= cost
                if cls == "salu": self.nsalu[k] += 1
                self.g[k].append((cls, i)); return k
        self.over.append(i); return len(self.mf)
    def putw(self, ins, lo, hi, tag=None):
        i = ins if isinstance(ins, I) else I(ins, tag)
        lo = max(lo, 0); hi = min(max(hi, lo), len(self.mf) - 1)
        if lo >= len(self.mf): self.over.append(i); return len(self.mf)
        def load(items):
            c = 0; mem = 0; tr = 0
            for x in items:
                if x.kind == "valu": c += 2 if x.is_trans() else 1; tr += x.is_trans()
                elif x.kind == "ds": c += 1; mem += 1
                elif x.kind == "vmem": c += 2; mem += 1
                elif x.kind == "salu": c += 0.3
            if mem > 1: c += mem - 1
            return max(c, 2.3)
        best = None
        for k in range(lo, hi + 1):
            cur = [x for _, x in self.g[k]]
            d = load(cur + [i]) - load(cur)
            if best is None or d < best[0] - 1e-9: best = (d, k)
        return self.put(i, best[1], force=True)
    def raw(self, ins, gap, where="post"):
        for x in (ins if isinstance(ins, (list, tuple)) else [ins]):
            i = x if isinstance(x, I) else I(x)
            if gap >= len(self.mf): self.over.append(i)
            elif gap < 0: self.head.append(i)
            else: self.g[gap].append((where, i))
    def emit(self):
        out = list(self.head)
        for k, m in enumerate(self.mf):
            out.append(m if isinstance(m, I) else I(m))
            out += [i for _, i in sorted(self.g[k], key=lambda e: self.ORDER[e[0]])]
        out = out + self.over
        pos = {id(i): k for k, i in enumerate(out)}
        for sq in self.seqs:
            for k, i in enumerate(sq):
                if k: assert pos[id(sq[k-1])] < pos[id(i)], f"order broken at {i.t}"
                for r in i.r:
                    ps = [p for p in sq[:k] if r in p.w]
                    if ps:
                        for x in out[pos[id(ps[-1])] + 1 : pos[id(i)]]:
                            assert r not in x.w, f"{r} clobbered by '{x.t}' between '{ps[-1].t}' and '{i.t}'"
        return out
    def seq(self, ins, start, vstride=0):
        ins = toI(ins); self.seqs.append(ins)
        g = start; prev = None
        rank = {"salu": 1, "ds": 2, "vmem": 2, "valu": 3}
        for i in ins:
            e = g
            if prev is not None:
                if rank.get(i.kind, 1) < rank.get(prev.kind, 1) or need_states(prev, i) > 0: e = g + 1
                if prev.kind == "vmem": e = max(e, g + vstride)
                if prev.op.startswith(("s_cmp", "s_bitcmp")):
                    self.put(i, g, force=True); prev = i; continue
            g = self.put(i, e); prev = i
        return g
```

```python
from asmlib import *
WS_MOD  = 0x0000000
WS_MODB = 0x0004000
WS_VEC  = 0x0008000
WS_FLG  = 0x0070000
WS_ST1  = 0x0010000
WS_ST2  = 0x0040000
WS_FL2  = 0x0090000
WS_MP   = 0x00C0000
WS_STAMP= 0x00C0000
WS_H    = 0x0100000
WS_K    = 0x0400000
WS_V    = 0x1400000
WS_CTX  = 0x2400000
WS_WO   = 0x3400000
WS_WIN  = 0x3A00000
WS_WOUT = 0x3D00000
WS_WSP  = 0x4000000
WS_XA   = 0x4800000
WS_X1   = 0x4B00000
WS_Z1   = 0x5100000
WS_Z2   = 0x5900000
WS_U    = 0x5D00000
WS_PART = 0x6200000
WS_SIZE = 0x10000000
OOB = 0x40000000
ARG = dict(x=0, ckv=8, wq=16, wuk=24, wuv=32, wo=40, bx=48, win=56, wsp=64, bsp=72, wout=80, c=88, wmod=96, out=104, dbg=112, ws=120)
SIZE = dict(x=2048*640*2, ckv=2048*512*2, wq=640*4096*2, wuk=512*4096*2, wuv=512*4096*2, wo=4096*640*2, win=640*1728*2,
            wsp=2048*2048*2, bsp=2048*2, wout=864*640*2, c=640*2, wmod=640*3840*2, out=2048*640*2, dbg=256, ws=WS_SIZE)
LOG2E = 1.4426950408889634
import struct
def f2u(x): return struct.unpack("<I", struct.pack("<f", x))[0]
def FH(x): return hex(f2u(x))

def load_srds(b, names, base):
    r = {}
    for i, n in enumerate(names):
        r[n] = base + 4 * i
        b(f"s_load_dwordx2 {S(r[n],2)}, s[0:1], {ARG[n]}")
    b("s_waitcnt lgkmcnt(0)")
    for n in names:
        b(f"s_mov_b32 {S(r[n]+2)}, {hex(SIZE[n])}")
        b(f"s_mov_b32 {S(r[n]+3)}, 0x20000")
    return r

class Stamper:
    def __init__(self, on, base_sgpr, slot):
        self.on = on; self.base = base_sgpr; self.n = 0; self.slot = slot; self.names = []
    def stamp(self, b, name, cond=None):
        if not self.on: return
        b.flush()
        b("s_memtime s[100:101]" if self.on == "cyc" else "s_memrealtime s[100:101]")
        b("s_waitcnt lgkmcnt(0)")
        if cond: b(cond); b(f"s_cselect_b32 {S(self.base + self.n)}, s100, {S(self.base + self.n)}")
        else: b(f"s_mov_b32 {S(self.base + self.n)}, s100")
        self.n += 1; self.names.append(name)
    def dump(self, b, sws, swg, swave, vt):
        if not self.on: return
        b(f"s_lshl_b32 s100, {S(swg)}, 2"); b(f"s_add_u32 s100, s100, {S(swave)}"); b("s_lshl_b32 s100, s100, 6")
        b(f"s_add_u32 s100, s100, {hex(0x8000000 + self.slot * 0x10000)}")
        b(f"v_mov_b32 {V(vt+1)}, 0")
        for i in range(self.n):
            b(f"v_mov_b32 {V(vt)}, {S(self.base+i)}")
            b(f"buffer_store_dword {V(vt)}, {V(vt+1)}, {S(sws,4)}, s100 offen offset:{4*i}")
            b("s_waitcnt vmcnt(0)")
```

```python
from common import *

QSCALE = LOG2E / (128 ** 0.5)
NEGBIG = -1.0e30
L_LO, L_HI = 2.0 ** -40, 2.0 ** 40
DB_MOD = 0
FL_H, FL_KV, FL_CX, FL_P, FL_R = 0, 16, 64, 320, 448
CODE_BYTES = 50000
SPIN_MAX = 1000000

def gen(name="ka_kernel", stamps=False, force_fallback=False, fine=False, PF=True, END=72, QEND=104, QST=(8, 5, 5, 5, 5), drop=(), QMIX=False, DWS=3, KVM=' sc1', M2=False, VST=4, OA=44, OD=5, OW=28, NTS='jm', PST='', total_code=None, tail=None, aslist=False):
    b = B()
    T = Stamper(stamps, 84, 0)
    SC = ' sc1' if tail else ''
    nt = lambda c: ' nt' if c in NTS else ''
    b(f"{name}:")
    b("s_cmp_ge_u32 s2, 256")
    b(f"s_cbranch_scc1 {name}_end")
    T.stamp(b, "start")
    R = load_srds(b, ["x", "ckv", "wq", "wuk", "wuv", "ws", "dbg", "wmod", "c"], 8)
    sX, sCKV, sWQ, sWS, sDBG, sWM, sC = (S(R[n], 4) for n in ("x", "ckv", "wq", "ws", "dbg", "wmod", "c"))
    WU = 44; sWU = S(WU, 4)
    sWV, sHD, sJ = 48, 49, 50
    sT, sT2, sT3 = 51, 52, 53
    sCb, sWb, sLw = 54, 55, 56
    sRot = 57
    sBLK, sBLK2, sS, sN = 58, 59, 60, 61
    sKo, sVo, sKb, sVb = 62, 63, 64, 65
    sKs, sVs = 66, 67
    sPass, sSafe = 68, 69
    sHb = 70; sVar = 71
    sMK = 72
    b(f"""
    v_lshrrev_b32 v1, 6, v0
    v_and_b32 v0, 63, v0
    v_readfirstlane_b32 {S(sWV)}, v1
    s_and_b32 {S(sT)}, s2, 7
    s_lshr_b32 {S(sT2)}, s2, 3
    s_and_b32 {S(sHD)}, {S(sT2)}, 3
    s_lshl_b32 {S(sT3)}, {S(sT)}, 2
    s_add_u32 {S(sHD)}, {S(sHD)}, {S(sT3)}
    s_lshr_b32 {S(sJ)}, {S(sT2)}, 2
    s_cmp_ge_u32 {S(sWV)}, 2
    s_cselect_b32 {S(WU)}, {S(R['wuv'])}, {S(R['wuk'])}
    s_cselect_b32 {S(WU+1)}, {S(R['wuv']+1)}, {S(R['wuk']+1)}
    s_mov_b32 {S(WU+2)}, {hex(SIZE['wuk'])}
    s_mov_b32 {S(WU+3)}, 0x20000
    """)
    MB = 128 * 1024
    sCG, sMB, sQb, sCG2 = 80, 81, 82, 83
    sU = 71
    vC0, vC1, vW0, vW1 = 1, 2, 3, 4
    vRC0, vRC1 = 5, 6
    vRW = 7
    vL16 = 15
    vPW, vPQ, vMo, vDum = 12, 13, 14, 23
    b(f"""
    s_sub_u32 {S(sBLK)}, 15, {S(sJ)}
    s_mov_b32 {S(sBLK2)}, {S(sJ)}
    v_lshrrev_b32 v21, 4, v0
    v_and_b32 v22, 15, v0
    s_and_b32 {S(sT)}, {S(sWV)}, 1
    s_lshl_b32 {S(sWb)}, {S(sT)}, 18
    s_lshl_b32 {S(sT2)}, {S(sHD)}, 8
    s_add_u32 {S(sWb)}, {S(sWb)}, {S(sT2)}
    s_lshl_b32 {S(sQb)}, {S(sWV)}, 18
    s_add_u32 {S(sQb)}, {S(sQb)}, {S(sT2)}
    s_cmp_ge_u32 {S(sWV)}, 2
    s_cselect_b32 {S(sCb)}, {S(sBLK2)}, {S(sBLK)}
    s_lshl_b32 {S(sCb)}, {S(sCb)}, 17
    s_lshl_b32 {S(sT3)}, {S(sT)}, 16
    s_add_u32 {S(sCb)}, {S(sCb)}, {S(sT3)}
    s_lshl_b32 {S(sLw)}, {S(sWV)}, 13
    """)
    sPW = 57
    if PF:
        b(f"""
        v_lshrrev_b32 v24, 1, v0
        v_lshlrev_b32 v24, 13, v24
        v_and_b32 v25, 1, v0
        v_lshl_add_u32 v24, v25, 7, v24
        v_mov_b32 v25, {hex(OOB)}
        v_cmp_gt_u32 vcc, 16, v0
        v_cndmask_b32 {V(vPW)}, v25, v24, vcc
        v_lshlrev_b32 v26, 7, v0
        v_cndmask_b32 v26, v25, v26, vcc
        v_cmp_gt_u32 vcc, 20, v0
        v_cndmask_b32 {V(vPQ)}, v25, v24, vcc
        s_lshl_b32 {S(sPW)}, {S(sT)}, 19
        s_lshl_b32 {S(sT3)}, {S(sJ)}, 16
        s_add_u32 {S(sPW)}, {S(sPW)}, {S(sT3)}
        s_add_u32 {S(sPW)}, {S(sPW)}, {S(sT2)}
        s_lshl_b32 {S(sT3)}, s2, 2
        s_add_u32 {S(sT3)}, {S(sT3)}, {S(sWV)}
        s_lshl_b32 {S(sT3)}, {S(sT3)}, 11
        v_add_u32 v27, {S(sT3)}, v26
        """)
    def pfW(t): return toI([f"s_add_u32 {S(sT2)}, {S(sPW)}, {t*2*64*8192}", f"buffer_load_dword {V(vDum)}, {V(vPW)}, {sWU}, {S(sT2)} offen{nt('w')}"]) if PF else []
    def pfQ(t):
        return toI([f"s_lshl_b32 {S(sT2)}, {S(sJ)}, 2", f"s_add_u32 {S(sT2)}, {S(sT2)}, {S(sWV)}", f"s_mul_i32 {S(sT2)}, {S(sT2)}, {10*8192}",
                    f"s_lshl_b32 {S(sT3)}, {S(sHD)}, 8", f"s_add_u32 {S(sT2)}, {S(sT2)}, {S(sT3)}", f"s_add_u32 {S(sT2)}, {S(sT2)}, {t*320*8192}",
                    f"buffer_load_dword {V(vDum)}, {V(vPQ)}, {sWQ}, {S(sT2)} offen{nt('q')}"]) if PF else []
    b(f"""
    v_and_b32 v24, 7, v0
    v_xor_b32 v24, v24, v21
    v_lshrrev_b32 v25, 3, v0
    v_lshlrev_b32 v25, 10, v25
    v_lshl_add_u32 {V(vC0)}, v24, 4, v25
    v_xor_b32 {V(vC1)}, 64, {V(vC0)}
    v_add_u32 {V(vC1)}, 8192, {V(vC1)}
    v_lshlrev_b32 v24, 1, v21
    v_xor_b32 v24, v22, v24
    v_lshlrev_b32 v25, 13, v21
    v_lshl_add_u32 {V(vW0)}, v24, 4, v25
    v_xor_b32 {V(vW1)}, 128, {V(vW0)}
    """)
    def dmaC(s):
        o = []
        for i in range(8):
            o.append((f"s_add_u32 m0, {S(sLw)}, {65536 + (s & 1) * 32768 + i * 1024}",
                      f"s_add_u32 {S(sT)}, {S(sCb)}, {(i >> 1) * 16384 + s * 128}",
                      I(f"buffer_load_dwordx4 {V(vC1 if i & 1 else vC0)}, {sCKV}, {S(sT)} offen lds", f"C{s}")))
        return o
    def dmaW(s):
        o = []
        for i in range(8):
            o.append((f"s_add_u32 m0, {S(sLw)}, {(s & 1) * 32768 + i * 1024}",
                      f"s_add_u32 {S(sT)}, {S(sWb)}, {(s * 64 + 4 * i) * 8192}",
                      I(f"buffer_load_dwordx4 {V(vW1 if (i >> 1) & 1 else vW0)}, {sWU}, {S(sT)} offen{nt('W')} lds", f"W{s}")))
        return o
    def dmaQ(s):
        o = []
        for i in range(8):
            o.append((f"s_add_u32 m0, {S(sLw)}, {65536 + (s & 1) * 32768 + i * 1024}",
                      f"s_add_u32 {S(sT)}, {S(sQb)}, {(s * 128 + 4 * i) * 8192}",
                      I(f"buffer_load_dwordx4 {V(vW1 if (i >> 1) & 1 else vW0)}, {sWQ}, {S(sT)} offen{nt('Q')} lds", f"Q{s}")))
        return o
    for d in dmaC(0) + dmaW(0): b(list(d))
    if PF:
        b(f"buffer_load_dword {V(vDum)}, v27, {sCKV}, 0 offen")
        b(f"buffer_load_dword {V(vDum)}, {V(vPW)}, {sWU}, {S(sPW)} offen{nt('w')}")
    b(f"""
    s_and_b32 {S(sT)}, s2, 7
    s_lshr_b32 {S(sT2)}, s2, 3
    s_mul_i32 {S(sCG)}, {S(sT)}, 10
    s_add_u32 {S(sCG)}, {S(sCG)}, {S(sT2)}
    s_mul_i32 {S(sCG2)}, {S(sT)}, 20
    s_add_u32 {S(sCG2)}, {S(sCG2)}, {S(sT2)}
    s_add_u32 {S(sCG2)}, {S(sCG2)}, 70
    s_cmp_lt_u32 {S(sT2)}, 10
    s_cselect_b32 {S(sCG)}, {S(sCG)}, {hex(OOB >> 5)}
    s_sub_u32 {S(sT2)}, {S(sT2)}, 10
    s_cmp_lt_u32 {S(sT2)}, 20
    s_cselect_b32 {S(sCG2)}, {S(sCG2)}, {hex(OOB >> 5)}
    s_mul_i32 {S(sMB)}, {S(sWV)}, 6144
    s_add_u32 {S(sMB)}, {S(sMB)}, {MB}
    s_mul_i32 {S(sT)}, {S(sWV)}, 320
    v_lshlrev_b32 v16, 2, v0
    buffer_load_dword v17, v16, {sC}, {S(sT)} offen
    buffer_load_dword v18, v16, {sC}, {S(sT)} offen offset:256
    v_lshrrev_b32 v24, 1, v0
    v_mul_u32_u24 v24, 7680, v24
    v_and_b32 v25, 1, v0
    v_lshl_add_u32 {V(vMo)}, v25, 4, v24
    """)
    def m_dma(cg):
        o = [f"s_mul_i32 {S(sT3)}, {S(sWV)}, {160 * 7680}", f"s_lshl_b32 {S(sT2)}, {S(cg)}, 5", f"s_add_u32 {S(sT3)}, {S(sT3)}, {S(sT2)}"]
        for i in range(5):
            o += [f"s_add_u32 m0, {S(sMB)}, {i*1024}", f"s_add_u32 {S(sT2)}, {S(sT3)}, {i*32*7680}",
                  I(f"buffer_load_dwordx4 {V(vMo)}, {sWM}, {S(sT2)} offen{nt('m')} lds", "m")]
        return toI(o)
    if PF:
        b(f"""
        s_getpc_b64 s[4:5]
        {name}_pc1:
        s_lshr_b32 {S(sT)}, s2, 3
        s_lshl_b32 {S(sT)}, {S(sT)}, 2
        s_add_u32 {S(sT)}, {S(sT)}, {S(sWV)}
        s_lshl_b32 {S(sT)}, {S(sT)}, 10
        v_and_b32 v24, 7, v0
        v_lshl_add_u32 v24, v24, 7, {S(sT)}
        v_min_u32 v24, code_end - {name}_pc1 - 4, v24
        global_load_dword {V(vDum)}, v24, s[4:5]
        """)
    b(f"""
    v_lshlrev_b32 {V(vL16)}, 4, v0
    v_lshrrev_b32 v24, 1, v22
    v_xor_b32 v24, v24, v21
    v_lshlrev_b32 v24, 4, v24
    v_lshl_add_u32 v24, v22, 7, v24
    s_and_b32 {S(sT)}, {S(sWV)}, 1
    s_lshl_b32 {S(sT)}, {S(sT)}, 14
    s_add_u32 {S(sT)}, {S(sT)}, 65536
    v_add_u32 {V(vRC0)}, {S(sT)}, v24
    v_xor_b32 {V(vRC1)}, 64, {V(vRC0)}
    v_lshrrev_b32 v26, 2, v22
    v_and_b32 v24, 1, v21
    v_lshl_add_u32 v24, v24, 2, v26
    v_lshl_add_u32 v26, v21, 3, v26
    v_lshlrev_b32 v26, 8, v26
    v_and_b32 v25, 3, v0
    v_lshl_add_u32 v26, v25, 3, v26
    v_lshl_add_u32 v26, v24, 5, v26
    s_lshr_b32 {S(sT)}, {S(sWV)}, 1
    s_lshl_b32 {S(sT)}, {S(sT)}, 7
    v_xor_b32 {V(vRW)}, {S(sT)}, v26
    v_xor_b32 {V(vRW+1)}, 32, {V(vRW)}
    v_xor_b32 {V(vRW+2)}, 64, {V(vRW)}
    v_xor_b32 {V(vRW+3)}, 96, {V(vRW)}
    s_cmp_ge_u32 {S(sWV)}, 2
    s_cselect_b32 {S(sHb)}, {S(sBLK2)}, {S(sBLK)}
    s_lshl_b32 {S(sT2)}, {S(sHb)}, 7
    s_add_u32 {S(sT2)}, {S(sT2)}, {WS_FLG + FL_H*128}
    v_mov_b32 v11, {S(sT2)}
    s_lshl_b32 {S(sHb)}, {S(sHb)}, 1
    s_and_b32 {S(sT2)}, {S(sWV)}, 1
    s_add_u32 {S(sHb)}, {S(sHb)}, {S(sT2)}
    s_mul_i32 {S(sHb)}, {S(sHb)}, {20*4096}
    s_add_u32 {S(sHb)}, {S(sHb)}, {WS_H}
    s_lshl_b32 {S(sKb)}, {S(sHD)}, 19
    s_add_u32 {S(sVb)}, {S(sKb)}, {WS_V}
    s_add_u32 {S(sKb)}, {S(sKb)}, {WS_K}
    s_bitcmp1_b32 {S(sWV)}, 0
    s_cselect_b32 {S(sT2)}, {S(sBLK2)}, {S(sBLK)}
    s_lshl_b32 {S(sT2)}, {S(sT2)}, 15
    s_lshr_b32 {S(sT3)}, {S(sWV)}, 1
    s_lshl_b32 {S(sKo)}, {S(sT3)}, 11
    s_add_u32 {S(sKo)}, {S(sKo)}, {S(sT2)}
    s_add_u32 {S(sKo)}, {S(sKo)}, {S(sKb)}
    s_lshl_b32 {S(sVo)}, {S(sT3)}, 13
    s_add_u32 {S(sVo)}, {S(sVo)}, {S(sT2)}
    s_add_u32 {S(sVo)}, {S(sVo)}, {S(sVb)}
    @waitvm W0
    s_barrier
    """)
    if not fine: T.stamp(b, "C0")
    def m_silu():
        o = ["v_lshlrev_b32 v24, 16, v17", "v_and_b32 v25, 0xffff0000, v17", "v_lshlrev_b32 v26, 16, v18", "v_and_b32 v27, 0xffff0000, v18"]
        o += [f"v_mul_f32 {V(28+k)}, {FH(-LOG2E)}, {V(24+k)}" for k in range(4)]
        o += [f"v_exp_f32 {V(28+k)}, {V(28+k)}" for k in range(4)]
        o += [f"v_add_f32 {V(28+k)}, 1.0, {V(28+k)}" for k in range(4)]
        o += [f"v_rcp_f32 {V(28+k)}, {V(28+k)}" for k in range(4)]
        o += [f"v_mul_f32 {V(24+k)}, {V(24+k)}, {V(28+k)}" for k in range(4)]
        o += ["v_cvt_pk_bf16_f32 v24, v24, v25", "v_cvt_pk_bf16_f32 v25, v26, v27", f"v_lshl_add_u32 v26, v0, 2, {S(sMB)}",
              "ds_write_b32 v26, v24 offset:5120", "ds_write_b32 v26, v25 offset:5376"]
        return toI(o)
    def m_reads():
        o = ["v_lshrrev_b32 v27, 4, v0", "v_and_b32 v28, 15, v0", "v_lshlrev_b32 v28, 3, v28", "v_lshl_add_u32 v28, v27, 8, v28",
             f"v_add_u32 v28, {S(sMB)}, v28", f"v_lshl_add_u32 v27, v27, 4, {S(sMB)}"]
        for ks in range(5):
            o.append(f"ds_read_b128 {V(32+4*ks,4)}, v27 offset:{5120 + ks*64}")
            for hf in range(2): o.append(f"ds_read_b64_tr_b16 {V(52+4*ks+2*hf,2)}, v28 offset:{ks*1024 + hf*128}")
        return toI(o)
    def m_mfma(): return [MF(V(72,4), V(32+4*ks,4), V(52+4*ks,4), V(72,4) if ks else "0") for ks in range(5)]
    def m_part():
        return toI([f"s_lshl_b32 {S(sT3)}, {S(sWV)}, 8", f"s_add_u32 {S(sT3)}, {S(sT3)}, {MB + 24576}", f"v_lshl_add_u32 v26, v0, 2, {S(sT3)}",
                    "ds_write_b32 v26, v72", "v_lshlrev_b32 v26, 2, v0", f"v_add_u32 v26, {MB + 24576}, v26"])
    def m_fin(cg, mod):
        o = [f"ds_read_b32 {V(28+k)}, v26 offset:{256*k}" for k in range(4)]
        o += [f"""
        s_sub_u32 {S(sT3)}, {S(cg)}, 40
        s_sub_u32 {S(sT2)}, {S(cg)}, 160
        s_min_u32 {S(sT3)}, {S(sT3)}, {S(sT2)}
        s_cmp_lt_u32 {S(sT3)}, 40
        s_cselect_b32 {S(sT3)}, 1.0, 0
        v_add_f32 v28, v28, v29
        v_add_f32 v30, v30, v31
        v_add_f32 v28, v28, v30
        v_cvt_pk_bf16_f32 v28, v28, v28
        v_lshlrev_b32 v28, 16, v28
        v_add_f32 v28, {S(sT3)}, v28
        v_cvt_pk_bf16_f32 v28, v28, v28
        v_lshlrev_b32 v28, 16, v28
        s_cmp_lt_u32 {S(cg)}, 40
        s_cselect_b32 {S(sT3)}, {FH(QSCALE)}, 1.0
        v_mul_f32 v28, {S(sT3)}, v28
        s_lshl_b32 {S(sT3)}, {S(cg)}, 6
        s_cmp_eq_u32 {S(sWV)}, 0
        s_cselect_b32 {S(sT3)}, {S(sT3)}, {hex(OOB)}
        v_and_b32 v29, 15, v0
        v_lshlrev_b32 v29, 2, v29
        """]
        return toI(o) + [I(f"buffer_store_dword v28, v29, {sWS}, {S(sT3)} offen{mod}", "ms")]
    def acc(o, kt): return A(32*o + 4*kt, 4) if o < 3 else V(96 + 32*(o-3) + 4*kt, 4)
    def Cf(buf, kt, ks): return A(96 + 64*buf + 8*kt + 4*ks, 4)
    def rdC(s, kt, ks): return f"ds_read_b128 {Cf(s & 1, kt, ks)}, {V(vRC1 if ks else vRC0)} offset:{(s & 1)*32768 + kt*2048}"
    def Wf(buf, ks): return 224 + 8*buf + 4*ks
    def rdW(s, o): return [f"ds_read_b64_tr_b16 {A(Wf(o & 1, ks) + 2*hf, 2)}, {V(vRW + (o & 3))} offset:{(s & 1)*32768 + (o >> 2)*16384 + ks*8192 + hf*1024}"
                           for ks in range(2) for hf in range(2)]
    b(rdW(0, 0))
    for kt in range(8):
        for ks in range(2): b(rdC(0, kt, ks))
    vFlag, vOne, vPoll, vZero, vXo, vHo, vFlagW = 19, 20, 18, 17, 21, 22, 16
    b(f"""
    v_mov_b32 {V(vFlag)}, {hex(OOB)}
    s_cmp_eq_u32 {S(sWV)}, 0
    s_cselect_b32 {S(sT)}, 0, {hex(OOB)}
    v_mov_b32 {V(vFlagW)}, {hex(OOB)}
    v_writelane_b32 {V(vFlag)}, {S(sT)}, 0
    v_writelane_b32 {V(vFlagW)}, 0, 0
    v_mov_b32 {V(vOne)}, 1
    """)
    T.stamp(b, "kvstart")

    def spin(lab, vreg, soff, target, nw=1):
        b(f"@need {V(vreg)}")
        b(f"v_cmp_gt_u32 vcc, {target}, {V(vreg)}")
        b(f"s_cbranch_vccz {lab}_ok")
        sts = b.flush()
        b(f"s_mov_b32 {S(sT2)}, 0")
        b.label(f"{lab}_spin")
        b("s_sleep 8")
        b(soff)
        b(f"s_add_u32 {S(sT2)}, {S(sT2)}, 1")
        b(f"s_cmp_gt_u32 {S(sT2)}, {SPIN_MAX}")
        b("s_waitcnt vmcnt(0)")
        b(f"s_cbranch_scc1 {lab}_ok")
        b(f"v_cmp_gt_u32 vcc, {target}, {V(vreg)}")
        b(f"s_cbranch_vccnz {lab}_spin")
        s2 = b.flush()
        b.label(f"{lab}_ok", sts + s2)
    def emit_split(sc, hooks):
        cur = []
        for i in sc.emit():
            if i.kind == "pseudo" and i.op == "@mark":
                b(cur); cur = []; hooks[i.t.split()[1]]()
            else: cur.append(i)
        b(cur)

    XP, XF, MA, MS = 76, 32, 52, 72
    HP = 52
    poll_mod = f"buffer_load_dword {V(vPoll)}, {V(vZero)}, {sDBG}, 0 offen offset:{4*DB_MOD} sc1"
    def h_setup():
        return toI([f"""
        v_and_b32 v92, 31, v0
        v_lshrrev_b32 v93, 5, v0
        v_mul_u32_u24 {V(vXo)}, 1280, v93
        v_lshl_add_u32 {V(vXo)}, v92, 3, {V(vXo)}
        v_lshrrev_b32 v94, 3, v92
        v_lshlrev_b32 {V(vHo)}, 12, v94
        v_bfe_u32 v94, v92, 1, 2
        v_lshl_add_u32 v94, v94, 4, v93
        v_lshl_add_u32 {V(vHo)}, v94, 4, {V(vHo)}
        v_and_b32 v94, 1, v92
        v_lshl_add_u32 {V(vHo)}, v94, 3, {V(vHo)}
        v_lshlrev_b32 v95, 4, v92
        """])
    def h_loadx():
        o = [f"s_lshl_b32 {S(sT2)}, s2, 2", f"s_add_u32 {S(sT2)}, {S(sT2)}, {S(sWV)}", f"s_mul_i32 {S(sT2)}, {S(sT2)}, 2560"]
        o += [f"buffer_load_dwordx2 {V(XP+2*m,2)}, {V(vXo)}, {sX}, {S(sT2)} offen offset:{256*m}" for m in range(5)]
        return toI(o)
    def h_loadmod():
        o = [f"s_mov_b32 {S(sT2)}, {WS_MOD + 2560}"]
        for m in range(5):
            o.append(f"buffer_load_dwordx4 {V(MS+4*m,4)}, v95, {sWS}, 0 offen offset:{WS_MOD + 512*m} sc1")
            o.append(f"buffer_load_dwordx4 {V(MA+4*m,4)}, v95, {sWS}, {S(sT2)} offen offset:{512*m} sc1")
        return toI(o)
    def red32(r, t):
        o = [f"v_add_f32 {V(r)}, {V(r)}, {V(r)} row_ror:{k}" for k in (1, 2, 4, 8)]
        o += [f"v_mov_b32 {V(t)}, {V(r)}", f"v_permlane16_swap_b32 {V(r)}, {V(t)}", f"v_add_f32 {V(r)}, {V(r)}, {V(t)}"]
        return o
    def h_stats():
        o = []
        for k in range(10):
            o += [f"v_lshlrev_b32 {V(XF+2*k)}, 16, {V(XP+k)}", f"v_and_b32 {V(XF+2*k+1)}, 0xffff0000, {V(XP+k)}"]
        o += [f"v_add_f32 v92, {V(XF)}, {V(XF+1)}", f"v_add_f32 v93, {V(XF+2)}, {V(XF+3)}"]
        for k in range(4, 20): o.append(f"v_add_f32 {V(92 + (k & 1))}, {V(92 + (k & 1))}, {V(XF+k)}")
        o.append("v_add_f32 v92, v92, v93")
        o += red32(92, 93)
        o.append(f"v_mul_f32 v92, {FH(1/640)}, v92")
        for k in range(20): o.append(f"v_sub_f32 {V(XF+k)}, {V(XF+k)}, v92")
        o += [f"v_mul_f32 v92, {V(XF)}, {V(XF)}", f"v_mul_f32 v93, {V(XF+1)}, {V(XF+1)}"]
        for k in range(2, 20): o.append(f"v_fmac_f32 {V(92 + (k & 1))}, {V(XF+k)}, {V(XF+k)}")
        o.append("v_add_f32 v92, v92, v93")
        o += red32(92, 93)
        o += [f"v_mov_b32 v93, {FH(1e-5)}", f"v_fmac_f32 v93, {FH(1/640)}, v92", "v_rsq_f32 v93, v93", f"v_mul_f32 v93, {FH(QSCALE)}, v93"]
        for k in range(20): o.append(f"v_mul_f32 {V(XF+k)}, {V(XF+k)}, v93")
        return toI(o)
    sHs = 61
    def h_addr():
        return toI([f"s_lshr_b32 {S(sHs)}, s2, 4", f"s_lshl_b32 {S(sHs)}, {S(sHs)}, 1", f"s_bfe_u32 {S(sT3)}, s2, 0x10001",
              f"s_add_u32 {S(sHs)}, {S(sHs)}, {S(sT3)}", f"s_mul_i32 {S(sHs)}, {S(sHs)}, {20*4096}",
              f"s_bfe_u32 {S(sT3)}, s2, 0x20002", f"s_lshl_b32 {S(sT3)}, {S(sT3)}, 10", f"s_add_u32 {S(sHs)}, {S(sHs)}, {S(sT3)}",
              f"s_and_b32 {S(sT3)}, s2, 1", f"s_lshl_b32 {S(sT3)}, {S(sT3)}, 7", f"s_add_u32 {S(sHs)}, {S(sHs)}, {S(sT3)}",
              f"s_lshl_b32 {S(sT3)}, {S(sWV)}, 5", f"s_add_u32 {S(sHs)}, {S(sHs)}, {S(sT3)}", f"s_add_u32 {S(sHs)}, {S(sHs)}, {WS_H}"])
    def h_fin():
        o = []
        for k in range(20): o.append(f"v_fma_f32 {V(XF+k)}, {V(XF+k)}, {V(MA+k)}, {V(MS+k)}")
        for k in range(10): o.append(f"v_cvt_pk_bf16_f32 {V(HP+k)}, {V(XF+2*k)}, {V(XF+2*k+1)}")
        return toI(o)
    def h_store():
        o = []
        for m in range(5):
            o += [f"s_add_u32 {S(sT3)}, {S(sHs)}, {16384*m}", f"buffer_store_dwordx2 {V(HP+2*m,2)}, {V(vHo)}, {sWS}, {S(sT3)} offen sc1"]
        o = toI(o); o[-1].tag = "hs"
        return o
    def seq(sc, ins, start): return sc.seq(ins, start)
    poll_h = f"buffer_load_dword {V(vPoll)}, v11, {sWS}, 0 offen sc1"
    def Hf(buf, ks, qt): return A(96 + 64*buf + 16*ks + 4*qt, 4)
    def ldH(s):
        o = []
        for ks in range(4):
            o.append(f"s_add_u32 {S(sT2)}, {S(sHb)}, {(4*s + ks)*4096}")
            for qt in range(4): o.append(f"buffer_load_dwordx4 {Hf(s & 1, ks, qt)}, {V(vL16)}, {sWS}, {S(sT2)} offen offset:{qt*1024} sc1")
        return toI(o)
    KG = [0, 1, 1, 0]
    tmpi = [0]
    def rno(t): return int(t[2:t.index(":")])
    def pack(t0, t1, dst=None):
        o = []
        def src(t, d=None):
            if t[0] == "v": return rno(t)
            if d is None: d = 24 + 4 * (tmpi[0] % 8); tmpi[0] += 1
            for k in range(4): o.append(f"v_accvgpr_read_b32 {V(d+k)}, {A(rno(t)+k)}")
            return d
        r0 = src(t0, dst); r1 = src(t1)
        cv = lambda d, s: f"v_cvt_pk_bf16_f32 {V(d)}, {V(s)}, {V(s+1)}"
        if t0[0] == "a" and t1[0] == "v":
            o += [cv(r1+3, r1+2), cv(r1+2, r1), cv(r1, r0), cv(r1+1, r0+2)]; return toI(o), r1
        o += [cv(r0, r0), cv(r0+1, r0+2), cv(r0+2, r1), cv(r0+3, r1+2)]; return toI(o), r0
    def kvstore(r, sbase, off):
        return toI([f"s_add_u32 {S(sT3)}, {S(sbase)}, {off}"]) + [I(f"buffer_store_dwordx4 {V(r,4)}, {V(vL16)}, {sWS}, {S(sT3)} offen{KVM}", "kv")]
    def QWf(buf, ks): return (240 if buf == 0 else 224) + 4*ks
    def rdQW(s, dt): return [f"ds_read_b64_tr_b16 {A(QWf(dt & 1, ks) + 2*hf, 2)}, {V(vRW + dt)} offset:{(s & 1)*32768 + ks*8192 + hf*1024}"
                             for ks in range(4) for hf in range(2)]
    stores = []; kwr = []; vwr = []; vpack = []
    vKw, vVw = 21, 22
    def flag(off_ins, srd, imm, vf=vFlag): return toI(off_ins + [f"buffer_atomic_add {V(vOne)}, {V(vf)}, {srd}, {S(sT2)} offen offset:{imm}"])
    def paced(sc, groups, g0, g1):
        g = g0
        for k, gr in enumerate(groups):
            g = seq(sc, list(gr), max(g, g0 + (k * (g1 - g0)) // len(groups))) + 1
        return g
    def vgroups(ins):
        out = [[]]
        for i in ins:
            out[-1].append(i)
            if i.kind == "vmem": out.append([])
        assert not out[-1]; return out[:-1]
    def merge(a, c):
        out = []; k = 0
        for n, x in enumerate(a):
            out.append(x)
            while k < len(c) and (k + 1) * len(a) <= (n + 1) * len(c): out.append(c[k]); k += 1
        return out + c[k:]
    def kv_dma(s):
        d = []
        if s < 7: d += dmaW(s + 1)
        if s < 6: d += dmaC(s + 2)
        if s == 6: d += dmaQ(0)
        if s == 7: d += dmaQ(1)
        return d
    NT = 3
    for s in range(8):
        mf = []
        for o in range(8):
            for kt in range(8):
                for ks in range(2):
                    w = A(Wf(o & 1, ks), 4); c = Cf(s & 1, kt, ks)
                    cin = "0" if (s == 0 and ks == 0) else acc(o, kt)
                    mf.append(MF(acc(o, kt), w, c, cin) if o < 4 else MF(acc(o, kt), c, w, cin))
        sc = Sched(mf)
        for o in range(7):
            for k, r in enumerate(rdW(s, o + 1)): sc.put(r, 16*o + k)
            sc.raw(f"@need {A(Wf((o+1) & 1, 0), 8)}", 16*o + 15, "pre")
        d = kv_dma(s)
        BA = 55
        sc.raw(([f"@waitvm {d[-1][2].tag}"] if s < 7 else []) + ["s_waitcnt lgkmcnt(0)", "s_barrier"], 111)
        if s < 7:
            for k, r in enumerate(rdW(s + 1, 0)): sc.put(r, 112 + k)
            sc.raw(f"@need {A(Wf(0, 0), 8)}", 127, "pre")
            for n in range(16): sc.put(rdC(s + 1, n >> 1, n & 1), (5 + 6*n) if s else (BA + 1 + 3*n))
        hooks = {}
        if s == 0:
            sc.raw(["@waitvm C1", "s_waitcnt lgkmcnt(0)", "s_barrier"], BA)
            assert paced(sc, dmaC(1) + d[:8], 0, BA - 2) <= BA + 1
            g0 = paced(sc, d[8:], BA + 1, 84)
            g0 = paced(sc, vgroups(m_dma(sCG)), g0, 110)
            assert g0 < 112
        elif s < 7: g0 = paced(sc, d[NT:], 0, END)
        if s < 7 and s != 3: paced(sc, kv_dma(s + 1)[:NT], 114, 127)
        if s == 0:
            seq(sc, m_silu() + h_setup(), 8)
        if s == 1:
            sc.raw("@waitvm m", 39)
            g = seq(sc, m_reads(), 40)
            sc.raw(m_mfma(), g + 6)
            assert seq(sc, m_part(), g + 11) < 108
            g = seq(sc, pfW(1) + h_loadx(), g0)
            assert seq(sc, toI([f"v_mov_b32 {V(vZero)}, 0", "v_and_b32 v90, 15, v0", "v_lshlrev_b32 v90, 7, v90", f"s_lshl_b32 {S(sT2)}, {S(sCG)}, 11",
                         f"s_cmp_lt_u32 {S(sCG)}, 80", f"s_cselect_b32 {S(sT2)}, {S(sT2)}, {hex(OOB)}",
                         f"s_cmp_eq_u32 {S(sWV)}, 0", f"s_cselect_b32 {S(sT2)}, {S(sT2)}, {hex(OOB)}",
                         f"s_add_u32 {S(sT2)}, {S(sT2)}, {WS_FLG}", f"buffer_store_dword {V(vZero)}, v90, {sWS}, {S(sT2)} offen sc1"]), g + 1) < 111
            seq(sc, m_fin(sCG, " sc1"), 112)
        if s == 2:
            sc.raw("@waitvm ms", 29)
            g = seq(sc, flag([f"s_cmp_lt_u32 {S(sCG)}, 80", f"s_cselect_b32 {S(sT2)}, 0, {hex(OOB)}"], sDBG, 4*DB_MOD), 30)
            g = seq(sc, pfW(2), g0)
            seq(sc, h_addr(), g + 1)
            seq(sc, h_stats(), 20)
        if s == 3:
            g = seq(sc, pfW(3), g0)
            sc.put(poll_mod, max(g + 1, 84))
            sc.raw("@mark pm", 111); hooks["pm"] = lambda: spin(name + "_pm", vPoll, poll_mod, 80)
            g = seq(sc, h_loadmod(), 112)
            paced(sc, kv_dma(s + 1)[:NT], g + 1, g + 2)
        if s == 4:
            g = seq(sc, h_fin(), 40)
            g = seq(sc, h_store(), max(g, g0) + 1)
            assert seq(sc, pfQ(0), g + 1) < 111
        if s == 5:
            sc.raw("@waitvm hs", 19)
            seq(sc, flag([f"s_lshr_b32 {S(sT2)}, s2, 4", f"s_lshl_b32 {S(sT2)}, {S(sT2)}, 7", f"s_add_u32 {S(sT2)}, {S(sT2)}, {WS_FLG + FL_H*128}"], sWS, 0, vFlagW), 20)
            g = seq(sc, pfQ(1), g0)
            if M2: assert paced(sc, vgroups(m_dma(sCG2)), g + 1, 110) < 113
        if s == 6:
            sc.put(poll_h, 84)
            sc.raw("@mark ph", 111); hooks["ph"] = lambda: spin(name + "_ph", vPoll, poll_h, 64)
            if M2:
                sc.raw("@waitvm m", 49)
                g = seq(sc, m_reads(), 50)
                sc.raw(m_mfma(), g + 6)
                assert seq(sc, m_part(), g + 11) < 108
                seq(sc, m_fin(sCG2, ""), 112)
        if s == 7:
            assert paced(sc, d[NT:] + vgroups(ldH(0)), 0, 96) < 101
            qa = [f"s_lshr_b32 {S(sT2)}, {S(sWV)}, 1", f"s_lshl_b32 {S(sT2)}, {S(sT2)}, 7", f"s_add_u32 {S(sT2)}, {S(sT2)}, 65536",
                  f"v_xor_b32 {V(vRW)}, {S(sT2)}, {V(vRW)}"]
            qa += [f"v_xor_b32 {V(vRW+n)}, {32*n}, {V(vRW)}" for n in range(1, 8)]
            assert seq(sc, toI(qa), 101) < 112
            for k, r in enumerate(rdQW(0, 0)): sc.put(r, 112 + k)
            seq(sc, [f"s_and_b32 {S(sT3)}, {S(sWV)}, 1", f"s_lshl_b32 {S(sT3)}, {S(sT3)}, 15", f"v_add_u32 {V(vKw)}, {S(sT3)}, {V(vL16)}",
                     f"s_lshr_b32 {S(sT3)}, {S(sWV)}, 1", f"s_lshl_b32 {S(sT3)}, {S(sT3)}, 11", f"v_add_u32 {V(vKw)}, {S(sT3)}, {V(vKw)}",
                     f"s_lshl_b32 {S(sT3)}, {S(sT3)}, 2", f"s_add_u32 {S(sT3)}, {S(sT3)}, 98304", f"s_bitcmp1_b32 {S(sWV)}, 0", f"s_cselect_b32 {S(sT3)}, 0x100000, {S(sT3)}",
                     f"v_add_u32 {V(vVw)}, {S(sT3)}, {V(vL16)}"], 2)
            g = 0
            for kt in range(8):
                g = seq(sc, [f"v_accvgpr_read_b32 {V(64+4*kt+k)}, {A(4*kt+k)}" for k in range(4)]
                        + [f"v_cvt_pk_bf16_f32 {V(64+4*kt+k)}, {V(64+4*kt+2*k)}, {V(65+4*kt+2*k)}" for k in range(2)], max(g, 2*kt + 6))
            for a in range(2):
                for kt in range(8):
                    p = kt >> 1
                    ins, r = pack(acc(2*a, kt), acc(2*a+1, kt), 64 + 4*kt if a == 0 else None)
                    if a == 0: ins = ins[4:8] + ins[10:]
                    off = KG[p]*16384 + ((2*(p >> 1) + (kt & 1))*4 + a)*1024
                    st = kvstore(r, sKo, off); kwr.append(f"ds_write_b128 {V(vKw)}, {V(r,4)} offset:{off}")
                    if a == 0 and kt % 2 == 1: ins += st
                    else: stores.append(st)
                    g = seq(sc, ins, max(g, 16*(2*a+1) + 2*kt + 6))
            if sc.over: print('stage7 overflow', len(sc.over))
            for o in range(4, 8):
                for p in range(4):
                    ins, r = pack(acc(o, 2*p), acc(o, 2*p+1))
                    off = KG[p]*16384 + ((o-4)*2 + (p >> 1))*1024
                    stores.append(kvstore(r, sVo, off)); vwr.append(f"ds_write_b128 {V(vVw)}, {V(r,4)} offset:{off}")
                    vpack.append(ins)
        emit_split(sc, hooks)
        if fine is True and s < 7: T.stamp(b, f"kv{s}")
    T.stamp(b, "kvend")
    def qacc(dt, qt):
        i = dt*4 + qt
        return 32 + 4*i if i < 8 else (128 + 8*(i - 8) + 4 if i < 24 else 64 + 4*(i - 24))
    vKr, vVr, vDm, vQw, vQr = 1, 2, 5, 6, 24
    qsetup = toI([f"""
    s_lshl_b32 {S(sT2)}, {S(sHD)}, 7
    s_add_u32 {S(sT2)}, {S(sT2)}, {WS_FLG + FL_KV*128}
    v_mov_b32 v25, {S(sT2)}
    s_lshr_b32 {S(sT2)}, {S(sWV)}, 1
    s_lshl_b32 {S(sT)}, {S(sT2)}, 14
    v_add_u32 {V(vKr)}, {S(sT)}, {V(vL16)}
    v_add_u32 {V(vVr)}, 65536, {V(vKr)}
    v_add_u32 {V(vDm)}, {S(sLw)}, {V(vL16)}
    s_and_b32 {S(sT)}, {S(sWV)}, 1
    s_lshl_b32 {S(sT)}, {S(sT)}, 14
    s_add_u32 {S(sT)}, {S(sT)}, 65536
    v_add_u32 {V(vQr)}, {S(sT)}, {V(vL16)}
    s_lshl_b32 {S(sT2)}, {S(sT2)}, 16
    v_add_u32 {V(vQw)}, {S(sT2)}, {V(vQr)}
    """])
    def dmaKV(isv, slot, soff, tag, sl=sLw):
        base = (65536 + (slot ^ 1)*32768) if isv else slot*32768
        o = []
        for hf in range(2):
            o.append(I(f"s_add_u32 m0, {S(sl)}, {base + hf*4096}"))
            if hf: o.append(I(f"s_add_u32 {S(soff)}, {S(soff)}, 4096"))
            for i in range(4): o.append(I(f"buffer_load_dwordx4 {V(vDm)}, {sWS}, {S(soff)} offen offset:{i*1024} sc1 lds", tag))
        return o
    sR0, sKu, sUa, sUb = 57, 60, 70, 62
    sA0, sA1, sAl = 63, 78, 77
    def unit_diag(dst, base): return [f"s_lshl_b32 {S(dst)}, {S(sBLK)}, 15", f"s_add_u32 {S(dst)}, {S(dst)}, {S(base)}"]
    def unit_r0(dst, base): return [f"s_lshl_b32 {S(dst)}, {S(sR0)}, 15", f"s_add_u32 {S(dst)}, {S(dst)}, {S(base)}"]
    def seq_init(): return [f"s_mov_b32 {S(sUb)}, {S(sR0)}", f"s_cmp_eq_u32 {S(sR0)}, 0", f"s_cselect_b32 {S(sKu)}, 1, 0"]
    for s in range(5):
        mf = []
        for dt in range(8):
            for qt in range(4):
                for ks in range(4):
                    d = V(qacc(dt, qt), 4)
                    mf.append(MF(d, A(QWf(dt & 1, ks), 4), Hf(s & 1, ks, qt), "0" if (s == 0 and ks == 0) else d))
        sc = Sched(mf)
        for dt in range(7):
            for k, r in enumerate(rdQW(s, dt + 1)): sc.put(r, 16*dt + k)
            sc.raw(f"@need {A(QWf((dt+1) & 1, 0), 16)}", 16*dt + 15, "pre")
        sc.raw([f"@waitvm Q{s+1}", "s_waitcnt lgkmcnt(0)", "s_barrier"], 111)
        if s < 4:
            for k, r in enumerate(rdQW(s + 1, 0)): sc.put(r, 112 + k)
            sc.raw(f"@need {A(QWf(0, 0), 16)} {A(96 + 64*((s+1) & 1), 64)}", 127, "pre")
        NST = QST
        mine = stores[sum(NST[:s]) : sum(NST[:s+1])]
        ld = (dmaQ(s + 1) if 1 <= s < 4 else []) + (vgroups(ldH(s + 1)) if s < 4 else [])
        if s == 0:
            g = 8
            for w in kwr[:8]: g = sc.put(w, g) + DWS
            assert g < 95
        if s < 4:
            if QMIX: assert paced(sc, merge(ld, mine), 0, QEND) < 128
            else:
                e = QEND if s else 2 * QEND // 3
                g = paced(sc, ld, 0, e)
                assert paced(sc, mine, g, 126) < 129
        if s == 0:
            g = 0
            for k, ins in enumerate(vpack):
                g = seq(sc, ins, g); assert g < 32 + 4*k - 2, (k, g)
        if s == 1:
            g = 8
            for w in kwr[8:]: g = sc.put(w, g) + DWS
        if s == 4:
            g = paced(sc, mine, 0, 6 * len(mine)) if mine else 0
            g = seq(sc, qsetup + toI([f"s_mov_b32 {S(sR0)}, {S(sJ)}"]), 0)
            gf = max(g + 1, 6 * len(mine) + 40)
            sc.raw("@waitvm kv", gf)
            seq(sc, flag([f"s_lshl_b32 {S(sT2)}, {S(sHD)}, 7", f"s_add_u32 {S(sT2)}, {S(sT2)}, {WS_FLG + FL_KV*128}"], sWS, 0, vFlagW), gf + 1)
            g = 8
            for w in vwr: g = sc.put(w, g) + DWS
            assert g < 111
            g = 0
            for ds in range(4):
                for qt in range(4):
                    r0, r1 = qacc(2*ds, qt), qacc(2*ds+1, qt)
                    g = seq(sc, toI([f"v_cvt_pk_bf16_f32 {V(r0)}, {V(r0)}, {V(r0+1)}", f"v_cvt_pk_bf16_f32 {V(r0+1)}, {V(r0+2)}, {V(r0+3)}",
                                     f"v_cvt_pk_bf16_f32 {V(r0+2)}, {V(r1)}, {V(r1+1)}", f"v_cvt_pk_bf16_f32 {V(r0+3)}, {V(r1+2)}, {V(r1+3)}"]),
                            max(g, 16*(2*ds+1) + 4*qt + 8))
            g = 112
            for ds in range(4):
                for qt in range(4):
                    w = f"ds_write_b128 {V(vQw)}, {V(qacc(2*ds, qt), 4)} offset:{(ds*4+qt)*1024}"
                    if ds < 3: g = sc.put(w, g) + 1
                    else: sc.raw(w, 999)
        out = sc.emit()
        if "qtr" in drop: out = [i for i in out if "_tr_" not in i.op]
        if "qvm" in drop: out = [i for i in out if not (i.kind == "vmem" and "load" in i.op)]
        if "qst" in drop: out = [i for i in out if not (i.kind == "vmem" and "store" in i.op)]
        if "qdw" in drop: out = [i for i in out if not i.op.startswith("ds_write")]
        b(out)
        if fine is True and s < 4: T.stamp(b, f"q{s}")
    T.stamp(b, "qend")
    def O(dt, qt): return 128 + 16*dt + 4*qt
    def P(buf, kp, qt): return 64 + 32*buf + 16*kp + 4*qt
    def Sw(i): return 48 + 4*(i & 3)
    def NM(qt): return 32 + 4*qt
    def Lr(qt): return 164 + 4*qt
    MK, TC = 8, 12
    vL, vXp, vPa, vPk = 3, 4, 6, 7
    vX, vLx, vQa, vQb = 17, 18, 21, 22
    def Qf(ds, qt): return A(16*ds + 4*qt, 4)
    def Kf(kt, ds): return A(64 + 16*kt + 4*ds, 4)
    def Vf(dt, kp): return A(128 + 8*(dt & 3) + 4*kp, 4)
    ONES = A(160, 4)
    sTop = 76; NCX = 10 if PF else 8
    sLk = 80
    att = fine in ("att0", "att1"); cnd = f"s_cmp_eq_u32 {S(sPass)}, {str(fine)[-1]}"
    def ST(nm):
        if not att: return
        if nm in T.names:
            n = T.n; T.n = T.names.index(nm); T.stamp(b, nm, cnd); T.names.pop(); T.n = n
        else: T.stamp(b, nm, cnd)
    def rdK(slot, kt, ds): return f"ds_read_b128 {Kf(kt, ds)}, {V(vKr)} offset:{slot*32768 + (kt*4+ds)*1024}"
    def rdK0(kt, ds): return rdK(0, kt, ds)
    def rdV(slot, dt, kp): return f"ds_read_b128 {Vf(dt, kp)}, {V(vVr)} offset:{(slot ^ 1)*32768 + (dt*2+kp)*1024}"
    def rdQ(base, ds, qt): return f"ds_read_b128 {A(base + 16*ds + 4*qt, 4)}, {V(vQb if qt >> 1 else vQa)} offset:{ds*4096 + (qt & 1)*1024}"
    poll_kv = f"buffer_load_dword {V(vPk)}, {V(vPa)}, {sWS}, 0 offen sc1"
    b([rdK0(0, ds) for ds in range(4)])
    b(f"s_load_dwordx2 {S(WU,2)}, s[0:1], {ARG['wo']}")
    RT, RO, RS = R["wuk"], R["wuv"], R["ckv"]
    for r_, n_ in ((RT, "win"), (RO, "wout"), (RS, "wsp")):
        b(f"s_load_dwordx2 {S(r_,2)}, s[0:1], {ARG[n_]}"); b(f"s_mov_b32 {S(r_+2)}, {hex(SIZE[n_])}")
    b(f"""
    s_mov_b32 {S(WU+2)}, {hex(SIZE['wo'])}
    v_mov_b32 {V(vL)}, {V(vL16)}
    s_lshr_b32 {S(sT2)}, {S(sWV)}, 1
    s_lshl_b32 {S(sT2)}, {S(sT2)}, 11
    v_add_u32 {V(vQa)}, {S(sT2)}, {V(vQr)}
    v_xor_b32 {V(vQb)}, 0x800, {V(vQa)}
    s_lshl_b32 {S(sA0)}, {S(sBLK2)}, 15
    s_add_u32 {S(sA0)}, {S(sA0)}, {S(sKb)}
    s_mov_b32 {S(sA1)}, {S(sKb)}
    s_mov_b32 {S(sAl)}, {S(sLw)}
    v_mov_b32 v12, 0x3f803f80
    v_lshrrev_b32 v13, 4, v0
    v_lshlrev_b32 v13, 2, v13
    v_and_b32 v14, 15, v0
    v_sub_u32 v13, v14, v13
    v_mov_b32 v14, {FH(NEGBIG)}
    s_mov_b32 {S(sPass)}, 0
    s_mov_b32 {S(sTop)}, 131072
    v_mov_b32 {V(vPa)}, v25
    """)
    for r in range(4):
        b(f"v_accvgpr_write_b32 {A(160+r)}, v12")
        b(f"v_cmp_gt_i32 vcc, {r}, v13")
        b(f"v_cndmask_b32 {V(MK+r)}, 0, v14, vcc")
    b("s_waitcnt lgkmcnt(0)"); b("s_barrier")
    for qt in range(4):
        for ds in range(4): b(rdQ(0, ds, qt))
    b(f"v_add_u32 {V(vQa)}, 65536, {V(vQa)}"); b(f"v_add_u32 {V(vQb)}, 65536, {V(vQb)}")
    def softmax_ops(si, pbuf, kt, qt):
        s = Sw(si); p = P(pbuf, kt >> 1, qt) + 2*(kt & 1)
        return ([f"v_exp_f32 {V(s+r)}, {V(s+r)}" for r in range(4)],
                [f"v_cvt_pk_bf16_f32 {V(p)}, {V(s)}, {V(s+1)}", f"v_cvt_pk_bf16_f32 {V(p+1)}, {V(s+2)}, {V(s+3)}"])
    def place_softmax(sc, ops, start, stride):
        ex, cv = ops; g = start; gs = []
        for e in ex:
            g = sc.put(e, g); gs.append(g); g += stride
        return [(cv[0], gs[1] + 1), (cv[1], gs[3] + 1)]
    def diag_active(kg): return [(kp, q) for kp in range(2) for q in range(4) if (3 - kg if kp else kg) <= (q ^ (2*kg))]
    def next_k_dma(slot, ahead=2):
        return toI([f"s_mov_b32 {S(sUa)}, {S(sUb)}", f"s_mov_b32 {S(sUb)}, {S(sKu)}",
                    f"s_lshl_b32 {S(sKs)}, {S(sKu)}, 15", f"s_add_u32 {S(sKs)}, {S(sKs)}, {S(sKb)}", f"s_add_u32 {S(sKu)}, {S(sKu)}, 1",
                    f"s_cmp_eq_u32 {S(sKu)}, {S(sR0)}", f"s_addc_u32 {S(sKu)}, {S(sKu)}, 0", f"s_add_u32 {S(sT2)}, {S(sN)}, {ahead}",
                    f"s_cmp_gt_u32 {S(sBLK)}, {S(sT2)}", f"s_cselect_b32 {S(sKs)}, {S(sKs)}, {S(sA1 if slot else sA0)}",
                    f"s_cmp_gt_u32 {S(sBLK)}, {S(sT2)}", f"s_cselect_b32 {S(sLk)}, {S(sLw)}, {S(sAl)}"]) + dmaKV(0, slot, sKs, "k", sLk)
    def next_v_dma(slot):
        return toI([f"s_lshl_b32 {S(sVs)}, {S(sUa)}, 15", f"s_add_u32 {S(sVs)}, {S(sVs)}, {S(sVb)}"]) + dmaKV(1, slot, sVs, "v")
    def next_reads(n_par):
        rd = []
        for k in range(4): rd += [rdK(n_par, 0, k), rdV(n_par ^ 1, k >> 1, k & 1)]
        return rd
    def qk_diag(rg, kg):
        act = diag_active(kg); tiles = []; zero = []
        for kt in range(4):
            kap = 2*(3 - kg if kt >> 1 else kg) + (kt & 1)
            for q in range(4):
                if (kt >> 1, q) not in act: continue
                t = rg + 2*(q ^ (2*kg))
                if kap > t: zero.append((kt, q))
                else: tiles.append((kt, q, kap == t))
        mf = []
        for i, (kt, q, dg) in enumerate(tiles):
            for ds in range(4):
                mf.append(MF(V(Sw(i), 4), Kf(kt, ds), Qf(ds, q), V(Sw(i), 4) if ds else V(TC if dg else NM(q), 4)))
        n = len(mf)
        sc = Sched(mf)
        g = 0
        for kt in sorted({t[0] for t in tiles} - {0}):
            for ds in range(4): g = sc.put(rdK0(kt, ds), g, force=True) + 1
        gb = max(g + 5, 4 * max(i for i, t in enumerate(tiles) if t[0] == 0) + 4, n - 10)
        init = []
        for kt, q in zero:
            p = P(0, kt >> 1, q) + 2*(kt & 1); init += [f"v_mov_b32 {V(p)}, 0", f"v_mov_b32 {V(p+1)}, 0"]
        if kg == 1:
            init += [f"v_mov_b32 {V(O(dt, 2)+r)}, 0" for dt in range(8) for r in range(4)] + [f"v_accvgpr_write_b32 {A(Lr(2)+r)}, 0" for r in range(4)]
        first = True
        for i, (kt, q, dg) in enumerate(tiles):
            if dg:
                c = [f"v_add_f32 {V(TC+r)}, {V(NM(q)+r)}, {V(MK+r)}" for r in range(4)]
                sc.raw(c, -1 if first else 4*i - 3)
                first = False
        sc.raw(init, -1)
        for i, (kt, q, dg) in enumerate(tiles):
            ex, cv = softmax_ops(i, 0, kt, q)
            for r in range(4): sc.raw(ex[r], 4*i + 7 + r)
            sc.raw(cv[0], 4*i + 10, "post"); sc.raw(cv[1], 4*i + 11, "post2")
        for i, (kt, q, dg) in enumerate(tiles):
            sc.raw(f"@need {A(64 + 16*kt, 16)} " + " ".join(Qf(ds, q) for ds in range(4)), 4*i - 1, "pre")
        sc.raw(poll_kv, 0, "pre")
        sc.raw(["@waitvm v", "s_waitcnt lgkmcnt(0)", "s_barrier"], gb, "post2")
        for k, r in enumerate(next_reads(1)): sc.raw(r, gb + 1 + k, "pre")
        assert gb + 8 < n
        return sc.emit()
    def iteration(par, qk, pv, carry, exit_lab=None, side=None):
        act = [(kp, q) for kp in range(2) for q in range(4)] if pv == "full" else diag_active(pv)
        fresh = pv != "full"
        def chain(dst, a, q):
            m = []; f = fresh
            for kp in range(2):
                if (kp, q) in act: m.append(MF(dst, a(kp), V(P(par, kp, q), 4), "0" if f else dst)); f = False
            return m
        groups = []
        for g in range(16):
            m = []
            if qk:
                kt, q = g >> 2, g & 3
                for ds in range(4): m.append(MF(V(Sw(g), 4), Kf(kt, ds), Qf(ds, q), V(Sw(g), 4) if ds else V(NM(q), 4)))
            dt = g >> 1
            if qk and fresh:
                order = sorted(range(4), key=lambda q: -sum((kp, q) in act for kp in range(2)))
                qs = (order[0], order[3]) if g & 1 else (order[1], order[2])
            else: qs = (2*(g & 1), 2*(g & 1) + 1)
            for q in qs: m += chain(V(O(dt, q), 4), lambda kp: Vf(dt, kp), q)
            if qk and g % 4 == 2: m += chain(A(Lr(g >> 2), 4), lambda kp: ONES, g >> 2)
            if not qk and g in (2, 4, 6, 8): m += chain(A(Lr(g // 2 - 1), 4), lambda kp: ONES, g // 2 - 1)
            groups.append(m)
        st = [0]
        for m in groups: st.append(st[-1] + len(m))
        n = st[16]
        sc = Sched([x for m in groups for x in m])
        if qk and not fresh:
            cvs = place_softmax(sc, softmax_ops(15, par, 3, 3), 0, 2)
            for g in range(15): cvs += place_softmax(sc, softmax_ops(g, par ^ 1, g >> 2, g & 3), st[g+1], 2)
            for c, e in cvs: sc.put(c, e)
            for sp in range(4):
                rd = next_reads(par) if sp == 3 else [x for k in range(4) for x in (rdK(par ^ 1, sp + 1, k), rdV(par, 2*sp + 2 + (k >> 1), k & 1))]
                rd = rd[0::2] + rd[1::2]
                pos = [st[4*sp + gg] + o for gg in range(4) for o in ((1, 3, 7) if sp == 2 else (3, 7))]
                for r, p in zip(rd, pos): assert sc.put(r, p) == p
                if sp != 2: sc.raw("s_waitcnt lgkmcnt(1)", st[4*sp + 4] - 1, "pre")
                sc.raw(f"@need {A(128 + 8*((2*sp + 1) & 3), 8)}", st[4*sp + 2] + 2, "pre")
            gv = sc.seq(next_v_dma(par ^ 1), 0, VST)
            sc.raw(["@waitvm v", "s_waitcnt lgkmcnt(0)", "s_barrier"], st[12] - 1)
            kd = next_k_dma(par ^ 1)
            g = sc.seq(kd[:12], st[11] - 4) ; assert g < st[12]
            g = sc.seq(kd[12:], st[12], 2); assert g < n - 2, g
            if side: side(sc, st, gv)
        elif qk:
            cvs = []
            for g in range(15):
                ex, cv = softmax_ops(g, par ^ 1, g >> 2, g & 3)
                lo, ln = st[g+1] + 1, st[g+2] - st[g+1]
                ps = [lo + (r * ln) // 4 for r in range(4)]
                for e, p in zip(ex, ps): sc.put(e, p, force=True)
                cvs += [(cv[0], ps[1] + 1, ps[1] + 5), (cv[1], ps[3] + 1, ps[3] + 4)]
            dm = vgroups(next_k_dma(0, 1) + next_v_dma(1)); g = 0
            for k, gr in enumerate(dm):
                lo = max(g, (k * (st[9] - 4)) // 16)
                for x in gr[:-1]: sc.raw(x, lo, "pre")
                g = sc.putw(gr[-1], lo + 1, lo + 4) + 1
            sc.raw(["@waitvm v", "s_waitcnt lgkmcnt(0)", "s_barrier"], st[12] - 1)
            g = st[12]
            for k, gr in enumerate(vgroups(next_k_dma(1))):
                lo = max(g, st[12] + (k * (n - 4 - st[12])) // 8)
                for x in gr[:-1]: sc.raw(x, lo, "pre")
                g = sc.putw(gr[-1], lo + 1, lo + 2) + 1
            assert g < n
            for sp in range(4):
                rd = next_reads(par) if sp == 3 else [x for k in range(4) for x in (rdK(par ^ 1, sp + 1, k), rdV(par, 2*sp + 2 + (k >> 1), k & 1))]
                lo, hi = st[4*sp], st[4*sp + 3] + 1
                for k, r in enumerate(rd): sc.putw(r, lo + (k * (hi - lo)) // 8, lo + ((k + 1) * (hi - lo)) // 8)
                if sp != 2: sc.raw("s_waitcnt lgkmcnt(0)", st[4*sp + 4] - 1, "pre")
            for c, lo, hi in cvs: sc.putw(c, lo, min(hi, n - 1))
        else:
            if carry:
                ex, cv = softmax_ops(15, par, 3, 3)
                sc.raw(ex[:2], -1); sc.raw(ex[2], 0); sc.raw(ex[3], 1); sc.raw(cv[0], 2); sc.raw(cv[1], 3)
            for g in range(12): sc.put(rdV(par, (g >> 1) + 2, g & 1), st[g], force=True)
            busy, idle = 65536 + (par ^ 1)*32768, 65536 + par*32768
            sc.raw([f"s_and_b32 {S(sT2)}, {S(sWV)}, 1", f"s_lshl_b32 {S(sT2)}, {S(sT2)}, 14", f"s_cmp_ge_u32 {S(sWV)}, 2",
                    f"s_cselect_b32 {S(sT3)}, {idle}, {S(sTop)}", f"s_cselect_b32 {S(sT)}, {S(sTop)}, {idle}",
                    f"s_add_u32 {S(sT3)}, {S(sT3)}, {S(sT2)}", f"s_add_u32 {S(sT)}, {S(sT)}, {S(sT2)}", f"s_lshl_b32 {S(sT2)}, {S(sWV)}, 10"], 1, "pre")
            sc.raw([f"v_add_u32 {V(vX)}, {S(sT3)}, {V(vL)}"], 2); sc.raw([f"v_add_u32 {V(vXp)}, {S(sT)}, {V(vL)}"], 3)
            sc.raw([f"v_add_u32 {V(vLx)}, {busy}, {V(vL)}", f"v_add_u32 v19, {S(sT2)}, {V(vLx)}"], 5)
            gb = st[12] + 2
            sc.raw([f"@need {A(128, 32)}", "s_barrier"], gb, "pre")
            g = 0
            for dt in range(8):
                for q in range(2):
                    lastm = max(k for k, x in enumerate(sc.mf) if x.split()[1] == V(O(dt, q), 4) + ",")
                    g = sc.put(f"ds_write_b128 {V(vX)}, {V(O(dt, q), 4)} offset:{(q*8+dt)*1024}", max(g, lastm + 6, 6)) + 3
            lastl = max(k for k, x in enumerate(sc.mf) if x.split()[1].startswith("a["))
            gl = sc.seq([f"v_accvgpr_read_b32 {V(TC+q)}, {A(Lr(q))}" for q in range(4)], lastl + 6)
            sc.put(f"ds_write_b128 v19, {V(TC,4)}", max(gl + 1, gb + 1))
            if side: side(sc, st, 0)
        if qk:
            sc.raw(f"s_add_u32 {S(sN)}, {S(sN)}, 1", n - 2, "pre")
            if exit_lab: sc.raw(f"s_cmp_eq_u32 {S(sN)}, {S(sBLK)}", n - 1, "pre"); sc.raw(f"s_cbranch_scc1 {exit_lab}", 999)
        out = sc.emit()
        if drop and qk and pv == "full":
            out = [i for i in out if not (("dma" in drop and i.kind == "vmem") or ("bar" in drop and i.op == "s_barrier") or ("ds" in drop and i.kind == "ds")
                                          or ("exp" in drop and i.op == "v_exp_f32") or ("cvt" in drop and i.op.startswith("v_cvt")) or ("vmw" in drop and i.kind == "wait"))]
        return out
    reent = State(vm=[(set(), "v", False)] + [(set(), "cx", False)] * NCX)
    b.label(name + "_blk", b.flush() + [reent])
    for r in range(16): b(f"v_mov_b32 {V(NM(0)+r)}, 0")
    b(f"s_mov_b32 {S(sSafe)}, 0")
    ST("qrd")
    b.label(name + "_retry", b.flush() + [reent])
    b(f"""
    s_mov_b32 {S(sN)}, 0
    s_mov_b32 {S(sUb)}, {S(sR0)}
    s_cmp_eq_u32 {S(sR0)}, 0
    s_cselect_b32 {S(sKu)}, 1, 0
    s_cmp_ge_u32 {S(sWV)}, 2
    s_cbranch_scc1 {name}_d2
    s_cmp_eq_u32 {S(sWV)}, 1
    s_cbranch_scc1 {name}_d1
    """)
    pre = b.flush()
    def diag_tail(kg):
        ST("diag")
        b(f"s_cmp_eq_u32 {S(sBLK)}, 0")
        b(f"s_cbranch_scc1 {name}_pvd{kg}")
        st = b.flush()
        b(f"s_cmp_eq_u32 {S(sPass)}, 1"); b(f"s_cbranch_scc1 {name}_pk{kg}_ok"); sk = b.flush()
        spin(f"{name}_pk{kg}", vPk, poll_kv, 32)
        b.sts = dedupe(b.sts + sk)
        ST("dtail")
        b(iteration(0, True, kg, False, name + "_pv1"))
        return st
    b(qk_diag(0, 0)); b(f"s_branch {name}_t0"); s00 = b.flush()
    b.label(name + "_d1", pre); b(qk_diag(1, 0)); s10 = b.flush()
    b.label(name + "_t0", s00 + s10)
    spv0 = diag_tail(0); b(f"s_branch {name}_it1"); it0a = b.flush()
    b.label(name + "_d2", pre)
    b(f"s_cmp_eq_u32 {S(sWV)}, 3"); b(f"s_cbranch_scc1 {name}_d3"); pre2 = b.flush()
    b(qk_diag(0, 1)); b(f"s_branch {name}_t1"); s01 = b.flush()
    b.label(name + "_d3", pre2); b(qk_diag(1, 1)); s11 = b.flush()
    b.label(name + "_t1", s01 + s11)
    spv1 = diag_tail(1); it0b = b.flush()
    b.label(name + "_it1", it0a + it0b)
    ST("it0")
    b(f"s_or_b32 {S(sT2)}, {S(sPass)}, {S(sSafe)}"); b(f"s_cmp_lg_u32 {S(sT2)}, 0"); b(f"s_cbranch_scc1 {name}_odd")
    skip = b.flush()
    def side_stash(sc, st, gv):
        for k in range(16): sc.put(rdQ(192, k >> 2, k & 3), st[k % 12] + 5 + 16 * 0)
    sWO = sWU; sWo, sHc = 54, 55
    vWo = 23
    sCx, sOb = 81, 82
    def side_osetup(sc, st, gv):
        o = []
        for i in range(5):
            o.append(f"""
            v_add_u32 v28, {64*i}, v0
            v_mul_u32_u24 v29, 3277, v28
            v_lshrrev_b32 v29, 16, v29
            v_mul_u32_u24 v30, 20, v29
            v_sub_u32 v28, v28, v30
            v_bfe_u32 v30, v29, 2, 1
            v_lshlrev_b32 v30, 1, v30
            v_xor_b32 v28, v28, v30
            v_mul_u32_u24 v29, 1280, v29
            v_lshl_add_u32 {V(vWo+i)}, v28, 4, v29
            """)
        sc.seq(o, 0)
        sc.seq([f"""
        s_and_b32 {S(sT3)}, {S(sHD)}, 3
        s_mul_i32 {S(sWo)}, {S(sT3)}, 320
        s_mul_i32 {S(sT3)}, {S(sWV)}, {32*1280}
        s_add_u32 {S(sWo)}, {S(sWo)}, {S(sT3)}
        s_lshr_b32 {S(sT3)}, {S(sHD)}, 2
        s_mul_i32 {S(sT3)}, {S(sT3)}, {512*1280}
        s_add_u32 {S(sWo)}, {S(sWo)}, {S(sT3)}
        s_mul_i32 s71, {S(sWV)}, 10240
        s_lshr_b32 {S(sCx)}, {S(sHD)}, 2
        s_lshl_b32 {S(sCx)}, {S(sCx)}, 3
        s_add_u32 {S(sCx)}, {S(sCx)}, {S(sJ)}
        s_lshl_b32 {S(sCx)}, {S(sCx)}, 2
        s_add_u32 {S(sOb)}, {S(sCx)}, {S(sWV)}
        s_lshl_b32 {S(sCx)}, {S(sOb)}, 2
        s_and_b32 {S(sT3)}, {S(sHD)}, 3
        s_add_u32 {S(sCx)}, {S(sCx)}, {S(sT3)}
        s_lshl_b32 {S(sCx)}, {S(sCx)}, 14
        s_add_u32 {S(sCx)}, {S(sCx)}, {WS_CTX}
        """], 50)
    sJs, sJd, sJp, sJb, sJi = 16, 17, 18, 19, 8
    vJr, vJc, vJo, vJa = 17, 18, 19, 12
    JR = [A(180, 4), A(184, 4), A(188, 4), V(28, 4)]
    def half(r, hf): return (A if r[0] == "a" else V)(rno(r) + 2*hf, 2)
    def j_setup():
        return toI([f"""
        v_lshrrev_b32 {V(vJr)}, 3, v0
        v_bfe_u32 {V(vJc)}, v0, 4, 2
        v_lshlrev_b32 {V(vJc)}, 1, {V(vJc)}
        v_and_b32 v4, 7, v0
        v_xor_b32 {V(vJc)}, {V(vJc)}, v4
        v_lshlrev_b32 {V(vJc)}, 4, {V(vJc)}
        s_lshl_b32 {S(sJi)}, s2, 2
        s_add_u32 {S(sJi)}, {S(sJi)}, {S(sWV)}
        s_add_u32 {S(sJb)}, {S(sLw)}, 131072
        """])
    def j_dma(srd, buf):
        o = [f"v_mad_u32_u24 {V(vJo)}, {V(vJr)}, {S(sJp)}, {V(vJc)}", f"s_lshl_b32 {S(sJp)}, {S(sJp)}, 3"]
        for i in range(4):
            if i: o.append(f"s_add_u32 {S(sJs)}, {S(sJs)}, {S(sJp)}")
            o += [f"s_add_u32 m0, {S(sJb)}, {buf*4096 + i*1024}", I(f"buffer_load_dwordx4 {V(vJo)}, {S(srd,4)}, {S(sJs)} offen{nt('j')} lds", "j")]
        return toI(o)
    def t_addr():
        return toI([f"""
        s_sub_u32 {S(sT3)}, {S(sJi)}, 540
        s_cmp_lt_u32 {S(sJi)}, 540
        s_cselect_b32 {S(sT3)}, {S(sJi)}, {S(sT3)}
        s_cmp_lt_u32 {S(sJi)}, 540
        s_cselect_b32 {S(RT)}, {S(RT)}, {S(RO)}
        s_cmp_lt_u32 {S(sJi)}, 540
        s_cselect_b32 {S(RT+1)}, {S(RT+1)}, {S(RO+1)}
        s_cmp_lt_u32 {S(sJi)}, 540
        s_cselect_b32 {S(RT+2)}, {S(RT+2)}, {S(RO+2)}
        s_mov_b32 s9, {hex((2**32 + 9)//10)}
        s_cmp_lt_u32 {S(sJi)}, 540
        s_cselect_b32 s9, {hex((2**32 + 26)//27)}, s9
        s_cmp_lt_u32 {S(sJi)}, 540
        s_cselect_b32 s10, 27, 10
        s_mov_b32 {S(sJd)}, {WS_WOUT}
        s_cmp_lt_u32 {S(sJi)}, 540
        s_cselect_b32 {S(sJd)}, {WS_WIN}, {S(sJd)}
        s_lshl_b32 {S(sJp)}, s10, 7
        s_mul_hi_u32 s9, {S(sT3)}, s9
        s_mul_i32 s10, s9, s10
        s_sub_u32 s10, {S(sT3)}, s10
        s_lshl_b32 {S(sT3)}, {S(sT3)}, 12
        s_add_u32 {S(sJd)}, {S(sJd)}, {S(sT3)}
        s_mul_i32 {S(sJs)}, s9, {S(sJp)}
        s_lshl_b32 {S(sJs)}, {S(sJs)}, 5
        s_lshl_b32 s10, s10, 7
        s_add_u32 {S(sJs)}, {S(sJs)}, s10
        s_cmp_lt_u32 {S(sJi)}, 810
        s_cselect_b32 {S(sJd)}, {S(sJd)}, {hex(OOB)}
        """])
    def t_out():
        o = [f"""
        v_lshrrev_b32 v4, 2, v0
        v_bfe_u32 {V(vJa)}, v0, 3, 2
        v_lshlrev_b32 {V(vJa)}, 5, {V(vJa)}
        v_lshl_add_u32 {V(vJa)}, v4, 7, {V(vJa)}
        v_and_b32 v4, 3, v0
        v_lshl_add_u32 {V(vJa)}, v4, 3, {V(vJa)}
        v_add_u32 {V(vJa)}, {S(sJb)}, {V(vJa)}
        v_xor_b32 {V(vJa+1)}, 32, {V(vJa)}
        v_xor_b32 {V(vJa+2)}, 64, {V(vJa)}
        v_xor_b32 {V(vJa+3)}, 96, {V(vJa)}
        """]
        rd = [f"ds_read_b64_tr_b16 {half(JR[n], hf)}, {V(vJa+n)} offset:{hf*2048}" for n in range(4) for hf in range(2)]
        st = [f"buffer_store_dwordx4 {JR[n]}, {V(vL)}, {sWS}, {S(sJd)} offen offset:{n*1024}{SC}" for n in range(4)]
        return toI(o), toI(rd), toI(st)
    def s_addr(k):
        return toI([f"""
        s_lshr_b32 s9, {S(sJi)}, 5
        s_add_u32 s9, s9, {32*k}
        s_and_b32 s10, {S(sJi)}, 31
        s_lshl_b32 {S(sJs)}, s9, 17
        s_lshl_b32 s10, s10, 7
        s_add_u32 {S(sJs)}, {S(sJs)}, s10
        s_mov_b32 {S(sJp)}, 4096
        """])
    def s_out(k, buf):
        o = [f"""
        s_lshr_b32 {S(sJd)}, {S(sJi)}, 6
        s_add_u32 {S(sJd)}, {S(sJd)}, {16*k}
        s_lshl_b32 {S(sJd)}, {S(sJd)}, 18
        s_and_b32 s11, {S(sJi)}, 31
        s_lshl_b32 s11, s11, 13
        s_add_u32 {S(sJd)}, {S(sJd)}, s11
        s_bfe_u32 s11, {S(sJi)}, 0x10005
        s_lshl_b32 s11, s11, 11
        s_add_u32 {S(sJd)}, {S(sJd)}, s11
        s_add_u32 {S(sJd)}, {S(sJd)}, {WS_WSP}
        s_add_u32 s11, {S(sJd)}, 4096
        """]
        if k == 0: o.append(f"""
        v_bfe_u32 {V(vJa)}, v0, 1, 2
        v_lshlrev_b32 {V(vJa)}, 5, {V(vJa)}
        v_and_b32 v4, 15, v0
        v_lshl_add_u32 {V(vJa)}, v4, 7, {V(vJa)}
        v_lshrrev_b32 v4, 4, v0
        v_lshl_add_u32 {V(vJa)}, v4, 3, {V(vJa)}
        v_add_u32 {V(vJa)}, {S(sJb)}, {V(vJa)}
        v_xor_b32 {V(vJa+1)}, 32, {V(vJa)}
        v_xor_b32 {V(vJa+2)}, 64, {V(vJa)}
        v_xor_b32 {V(vJa+3)}, 96, {V(vJa)}
        """)
        rd = [f"ds_read_b64 {half(JR[2*ks+mt], hf)}, {V(vJa+2*ks+hf)} offset:{buf*4096 + mt*2048}" for ks in range(2) for mt in range(2) for hf in range(2)]
        st = [f"buffer_store_dwordx4 {JR[2*ks+mt]}, {V(vL)}, {sWS}, {'s11' if ks else S(sJd)} offen offset:{mt*1024}{SC}" for ks in range(2) for mt in range(2)]
        return toI(o), toI(rd), toI(st)
    def wseq(sc, ins, lo, step=1):
        ins = toI(ins); sc.seqs.append(ins); g = lo; prev = None
        for i in ins:
            if i.kind in ("salu", "pseudo"):
                if prev is not None and prev.op.startswith("s_cmp"): sc.put(i, g, force=True)
                else: g = sc.put(i, g + (prev is not None and prev.kind != "salu"))
            else: g = sc.putw(i, g + 1, g + 3) + (step if i.kind == "vmem" else 0)
            prev = i
        return g
    def job_out(sc, st, gv, parts, nxt):
        o, rd, sto = parts
        g = wseq(sc, o, 0)
        g = wseq(sc, ["@waitvm j"] + rd, max(g, gv - 14))
        g = wseq(sc, nxt, max(g, gv), 3); assert g < st[12] + 2, (g, st[12])
        g = wseq(sc, sto, g, 3)
    def pf_mod():
        return toI([f"""
        v_mul_u32_u24 v4, 52, v0
        v_lshrrev_b32 v4, 8, v4
        v_mul_u32_u24 v21, 5, v4
        v_sub_u32 v21, v0, v21
        v_mul_u32_u24 v4, 7680, v4
        v_lshl_add_u32 v4, v21, 7, v4
        v_mov_b32 v21, {hex(OOB)}
        v_cmp_gt_u32 vcc, 25, v0
        v_cndmask_b32 v4, v21, v4, vcc
        s_lshr_b32 s9, s2, 3
        s_lshl_b32 s9, s9, 2
        s_add_u32 s9, s9, {S(sWV)}
        s_mul_i32 s9, s9, {5*7680}
        s_and_b32 s10, s2, 7
        s_mul_i32 s10, s10, 640
        s_add_u32 s9, s9, s10
        s_add_u32 s9, s9, 2560
        buffer_load_dword v22, v4, {sWM}, s9 offen{nt('m')}
        """])
    def m2_dma():
        o = [f"""
        v_lshrrev_b32 v4, 1, v0
        v_mul_u32_u24 v4, 7680, v4
        v_and_b32 v21, 1, v0
        v_lshl_add_u32 v4, v21, 4, v4
        v_lshlrev_b32 v21, 2, v0
        s_mul_i32 s9, {S(sWV)}, 320
        buffer_load_dword v17, v21, {sC}, s9 offen
        buffer_load_dword v18, v21, {sC}, s9 offen offset:256
        s_mul_i32 s9, {S(sWV)}, {160*7680}
        s_lshl_b32 s10, {S(sCG2)}, 5
        s_add_u32 s9, s9, s10
        """]
        for i in range(5):
            if i: o.append(f"s_add_u32 s9, s9, {32*7680}")
            o += [f"s_add_u32 m0, {S(sJb)}, {i*1024}", I(f"buffer_load_dwordx4 v4, {sWM}, s9 offen lds", "j")]
        return toI(o)
    def side_m2(sc, st, gv):
        o = ["v_lshlrev_b32 v12, 16, v17", "v_and_b32 v13, 0xffff0000, v17", "v_lshlrev_b32 v14, 16, v18", "v_and_b32 v15, 0xffff0000, v18"]
        o += [f"v_mul_f32 {V(28+k)}, {FH(-LOG2E)}, {V(12+k)}" for k in range(4)]
        o += [f"v_exp_f32 {V(28+k)}, {V(28+k)}" for k in range(4)]
        o += [f"v_add_f32 {V(28+k)}, 1.0, {V(28+k)}" for k in range(4)]
        o += [f"v_rcp_f32 {V(28+k)}, {V(28+k)}" for k in range(4)]
        o += [f"v_mul_f32 {V(12+k)}, {V(12+k)}, {V(28+k)}" for k in range(4)]
        o += ["v_cvt_pk_bf16_f32 v12, v12, v13", "v_cvt_pk_bf16_f32 v13, v14, v15", f"v_lshl_add_u32 v14, v0, 2, {S(sJb)}",
              "ds_write_b32 v14, v12 offset:5120", "ds_write_b32 v14, v13 offset:5376",
              "v_lshrrev_b32 v17, 4, v0", "v_and_b32 v18, 15, v0", "v_lshlrev_b32 v18, 3, v18", "v_lshl_add_u32 v18, v17, 8, v18",
              f"v_add_u32 v18, {S(sJb)}, v18", f"v_lshl_add_u32 v17, v17, 4, {S(sJb)}"]
        o = toI(o); sc.seqs.append(o)
        for k, i in enumerate(o): sc.raw(i, 2 + k, "post")
        g = 2 + len(o)
        sc.raw("@waitvm j", g)
        bufs = [(A(180, 4), A(184, 4)), (A(188, 4), V(28, 4))]
        for ks in range(5):
            a_, b_ = bufs[ks & 1]
            sc.raw(f"ds_read_b128 {a_}, v17 offset:{5120 + ks*64}", g + 1 + 8*ks, "post")
            for hf in range(2): sc.raw(f"ds_read_b64_tr_b16 {half(b_, hf)}, v18 offset:{ks*1024 + hf*128}", g + 2 + hf + 8*ks, "post")
            sc.raw(MF(V(12, 4), a_, b_, V(12, 4) if ks else "0"), g + 14 + 8*ks, "post")
        g = g + 14 + 32 + 5
        sc.raw([f"v_lshl_add_u32 v19, v0, 2, {S(sJb)}", "ds_write_b32 v19, v12 offset:6144", "v_lshlrev_b32 v19, 2, v0", f"v_add_u32 v19, {131072 + 6144}, v19"], g, "post")
        assert g < st[12] - 4, g
        fin = [f"ds_read_b32 {V(28+k)}, v19 offset:{8192*k}" for k in range(4)]
        for k, i in enumerate(fin): sc.raw(i, st[12] + k, "post")
        f2 = toI([f"""
        s_sub_u32 s9, {S(sCG2)}, 160
        v_add_f32 v28, v28, v29
        v_add_f32 v30, v30, v31
        v_add_f32 v28, v28, v30
        v_cvt_pk_bf16_f32 v28, v28, v28
        v_lshlrev_b32 v28, 16, v28
        v_add_f32 v28, s9, v28
        v_cvt_pk_bf16_f32 v28, v28, v28
        v_lshlrev_b32 v28, 16, v28
        v_and_b32 v29, 15, v0
        v_lshlrev_b32 v29, 2, v29
        buffer_store_dword v28, v29, {sWS}, s10 offen{SC}
        """])
        sc.raw([f2[0], "s_cmp_lt_u32 s9, 40", "s_cselect_b32 s9, 1.0, 0", f"s_lshl_b32 s10, {S(sCG2)}, 6", f"s_cmp_eq_u32 {S(sWV)}, 0", f"s_cselect_b32 s10, s10, {hex(OOB)}"], st[12] + 6, "post")
        for k, i in enumerate(f2[1:]): sc.raw(i, st[12] + 12 + k, "post")
    def side1(sc, st, gv): side_stash(sc, st, gv); wseq(sc, j_setup() + t_addr(), 40)
    def side2(sc, st, gv): side_osetup(sc, st, gv); wseq(sc, j_dma(RT, 0), gv, 3)
    def side3(sc, st, gv): job_out(sc, st, gv, t_out(), s_addr(0) + j_dma(RS, 1))
    def side4(sc, st, gv): job_out(sc, st, gv, s_out(0, 1), s_addr(1) + j_dma(RS, 0)); wseq(sc, pf_mod(), st[12] - 10)
    def side5(sc, st, gv):
        m = m2_dma(); assert wseq(sc, m[:11], 0, 3) < gv
        job_out(sc, st, gv, s_out(1, 0), ["s_waitcnt lgkmcnt(0)"] + m[11:])
    sides = [side1, side2, side3, side4, side5, side_m2]
    for k, sd in enumerate(sides): b(iteration((k + 1) & 1, True, "full", True, None, sd))
    if fine == "att0": ST("it2")
    b.sts = dedupe(b.flush() + skip)
    ins, outs = b.chain_loop([(name + "_odd", iteration(1, True, "full", True, name + "_pv0")),
                              (name + "_even", iteration(0, True, "full", True, name + "_pv1") + toI([f"s_branch {name}_odd"]))])
    TMP, CF = 64, 32
    CB = [0, 40960, 81920, 122880]
    def dmaO(c):
        o = [f"s_add_u32 {S(sHc)}, {S(sHD)}, {c}", f"s_and_b32 {S(sHc)}, {S(sHc)}, 3", f"s_mul_i32 {S(sHc)}, {S(sHc)}, {128*1280}", f"s_add_u32 {S(sHc)}, {S(sHc)}, {S(sWo)}"]
        for k in range(10):
            if k == 5: o.append(f"s_add_u32 {S(sHc)}, {S(sHc)}, {16*1280}")
            o += [f"s_add_u32 m0, s71, {CB[c] + k*1024}", I(f"buffer_load_dwordx4 {V(vWo + k % 5)}, {sWO}, {S(sHc)} offen{nt('O')} lds", f"o{c}")]
        return toI(o)
    def Xf(c, ks, m):
        if c == 0: return A(192 + 8*ks + 4*m, 4) if m < 2 else V(CF + 8*ks + 4*(m-2), 4)
        return A(64*(c-1) + 16*ks + 4*m, 4)
    sCc = 58
    def ldX(c, passes):
        o = [f"s_add_u32 {S(sCc)}, {S(sHD)}, {c}", f"s_and_b32 {S(sCc)}, {S(sCc)}, 3", f"s_lshl_b32 {S(sT2)}, {S(sOb)}, 2", f"s_add_u32 {S(sCc)}, {S(sCc)}, {S(sT2)}",
             f"s_lshl_b32 {S(sCc)}, {S(sCc)}, 14", f"s_add_u32 {S(sCc)}, {S(sCc)}, {WS_CTX}"]
        for p in passes:
            for ks in range(4):
                if ks % 2 == 0: o.append(f"s_add_u32 {S(sT2)}, {S(sCc)}, {p*8192 + ks*2048}")
                for a in range(2): o.append(f"buffer_load_dwordx4 {Xf(c, ks, 2*p + a)}, {V(vL)}, {sWS}, {S(sT2)} offen offset:{(ks & 1)*2048 + a*1024} sc1")
        return toI(o)
    def own_long():
        o = ["@waitvm cx"]
        for ks in range(4):
            if ks % 2 == 0: o.append(f"s_add_u32 {S(sKs)}, {S(sCx)}, {ks*2048}")
            for a in range(2): o.append(f"buffer_load_dwordx4 {Xf(0, ks, a)}, {V(vL)}, {sWS}, {S(sKs)} offen offset:{(ks & 1)*2048 + a*1024} sc1")
        return toI(o)
    def side_o0(sc, st, gv): paced(sc, vgroups(dmaO(0) + own_long()), 2, len(sc.mf) + 8)
    fin0 = []; fin1 = []
    for par, preds in ((0, outs[0]), (1, outs[1] + it0a + it0b)):
        b.label(f"{name}_pv{par}", preds); ST("loop")
        b(f"s_cmp_eq_u32 {S(sPass)}, 1"); b(f"s_cbranch_scc1 {name}_pw{par}"); pw = b.flush()
        b(iteration(par, False, "full", True)); b(f"s_branch {name}_fin0"); fin0 += b.flush()
        b.label(f"{name}_pw{par}", pw); b(iteration(par, False, "full", True, None, side_o0)); b(f"s_branch {name}_fin1"); fin1 += b.flush()
    b.label(name + "_pvd0", spv0); b(iteration(0, False, 0, False, None, side_o0)); b(f"s_branch {name}_fin1"); fin1 += b.flush()
    b.label(name + "_pvd1", spv1); b(iteration(0, False, 1, False, None, side_o0)); b(f"s_branch {name}_fin1"); fin1 += b.flush()
    def merge_reads():
        b("s_waitcnt lgkmcnt(0)"); b("s_barrier")
        for w in range(4): b(f"ds_read_b128 {V(48+4*w, 4)}, {V(vLx)} offset:{w*1024}")
        for i in range(4):
            for a in range(2):
                for dt in (2*i, 2*i+1): b(f"ds_read_b128 {V(TMP + 4*(a*8+dt), 4)}, {V(vXp)} offset:{(a*8+dt)*1024}")
    def check():
        for r in range(8): b(f"v_add_f32 {V(48+r)}, {V(48+r)}, {V(56+(r ^ 2))}")
        b(f"""
        v_min3_f32 v56, v48, v49, v50
        v_min3_f32 v56, v56, v51, v52
        v_min3_f32 v56, v56, v53, v54
        v_min_f32 v56, v56, v55
        v_pk_add_f32 v[58:59], v[48:49], v[50:51]
        v_pk_add_f32 v[60:61], v[52:53], v[54:55]
        v_pk_add_f32 v[58:59], v[58:59], v[60:61]
        s_mov_b32 {S(sMK+2)}, {FH(L_HI)}
        v_add_f32 v57, v58, v59
        v_cmp_nle_f32 vcc, {FH(L_LO)}, v56
        v_cmp_nge_f32 {S(sMK,2)}, {S(sMK+2)}, v57
        s_or_b64 vcc, vcc, {S(sMK,2)}
        s_cselect_b32 {S(sT2)}, 1, {1 if force_fallback else 0}
        s_andn2_b32 {S(sT2)}, {S(sT2)}, {S(sSafe)}
        {"s_nop 0" if drop else f"s_cbranch_scc1 {name}_slow"}
        s_bitcmp1_b32 {S(sWV)}, 0
        s_cselect_b64 vcc, -1, 0
        s_bitcmp1_b32 {S(sWV)}, 1
        s_cselect_b64 {S(sMK,2)}, -1, 0
        """)
        for r in range(4): b(f"v_cndmask_b32 {V(48+r)}, {V(48+r)}, {V(52+r)}, vcc")
        b(f"""
        v_cndmask_b32 v12, v50, v48, {S(sMK,2)}
        v_cndmask_b32 v14, v51, v49, {S(sMK,2)}
        v_rcp_f32 v12, v12
        v_rcp_f32 v14, v14
        """)
    def normalise(off):
        for i in range(4):
            for a in range(2):
                for dt in (2*i, 2*i+1):
                    o = O(dt, 2 + a); t = TMP + 4*(a*8+dt)
                    for h in (0, 2): b(f"v_pk_add_f32 {V(t+h,2)}, {V(t+h,2)}, {V(o+h,2)}")
                    for h in (0, 2): b(f"v_pk_mul_f32 {V(t+h,2)}, {V(t+h,2)}, {V(12+2*a,2)} op_sel_hi:[1,0]")
                t = TMP + 4*(a*8+2*i); d = CF + 8*i + 4*a
                for k in range(4): b(f"v_cvt_pk_bf16_f32 {V(d+k)}, {V(t+2*k)}, {V(t+2*k+1)}")
                if (i, a) in ((0, 0), (2, 0)): b(f"s_add_u32 {S(sT3)}, {S(sCx)}, {off + i*2048}")
                b(f"buffer_store_dwordx4 {V(d,4)}, {V(vL)}, {sWS}, {S(sT3)} offen offset:{(i & 1)*2048 + a*1024} sc1", "cx")
    b.label(name + "_fin0", fin0)
    ST("pv")
    merge_reads(); ST("xr"); check()
    b(f"""
    s_mov_b32 {S(sPass)}, 1
    s_mov_b32 {S(sBLK)}, {S(sBLK2)}
    s_mov_b32 {S(sR0)}, 0
    s_mov_b32 {S(sA0)}, {hex(OOB)}
    s_mov_b32 {S(sA1)}, {hex(OOB)}
    s_mov_b32 {S(sAl)}, 163840
    @waitvm k
    s_waitcnt lgkmcnt(0)
    s_barrier
    """)
    b([rdK0(0, ds) for ds in range(4)])
    if tail:
        b(f"""
        s_and_b32 {S(sT2)}, s2, 31
        s_lshl_b32 {S(sT2)}, {S(sT2)}, 7
        s_add_u32 {S(sT2)}, {S(sT2)}, {WS_FLG + FL_R*128}
        buffer_atomic_add {V(vOne)}, {V(vFlagW)}, {sWS}, {S(sT2)} offen
        """)
    for k, gr in enumerate(vgroups(toI(unit_diag(sVs, sVb)) + dmaKV(1, 0, sVs, "v"))):
        b(gr)
        for r in range(8*k, 8*k + 8): b(f"v_accvgpr_mov_b32 {A(r)}, {A(192+r)}")
    normalise(0)
    if PF:
        b(f"""
        v_mul_u32_u24 v28, 205, v0
        v_lshrrev_b32 v28, 11, v28
        v_mul_u32_u24 v29, 1280 - 10*128, v28
        v_lshl_add_u32 v28, v0, 7, v29
        v_mov_b32 v29, {hex(OOB)}
        v_cmp_gt_u32 vcc, 40, v0
        v_cndmask_b32 v28, v29, v28, vcc
        s_lshr_b32 {S(sT2)}, s2, 3
        s_lshl_b32 {S(sT2)}, {S(sT2)}, 2
        s_add_u32 {S(sT2)}, {S(sT2)}, {S(sWV)}
        s_lshr_b32 {S(sT3)}, {S(sHD)}, 2
        s_lshl_b32 {S(sT3)}, {S(sT3)}, 7
        s_add_u32 {S(sT3)}, {S(sT3)}, {S(sT2)}
        s_mul_i32 {S(sT3)}, {S(sT3)}, 5120
        """)
        b(f"buffer_load_dword v30, v28, {sWO}, {S(sT3)} offen{nt('o')}", "cx")
        b(f"""
        s_getpc_b64 s[4:5]
        {name}_pc2:
        s_lshl_b32 {S(sT2)}, {S(sT2)}, 9
        v_and_b32 v28, 3, v0
        v_lshl_add_u32 v28, v28, 7, {S(sT2)}
        v_min_u32 v28, code_end - {name}_pc2 - 4, v28
        """)
        b("global_load_dword v30, v28, s[4:5]", "cx")
    if fine is not True: T.stamp(b, "blk1end")
    b("s_waitcnt lgkmcnt(0)"); b(f"s_branch {name}_blk")
    for x in b.flush(): assert [e[1] for e in x.vm][-NCX-1:] == ["v"] + ["cx"] * NCX
    b.label(name + "_slow", [State()])
    b(f"""
    s_waitcnt vmcnt(0) lgkmcnt(0)
    s_mov_b32 {S(sSafe)}, 1
    s_mov_b32 {S(sN)}, 0
    """)
    for q in range(4): b(f"v_mov_b32 {V(64+q)}, {FH(NEGBIG)}")
    b(f"""
    v_lshrrev_b32 v69, 4, v0
    v_lshlrev_b32 v69, 2, v69
    v_and_b32 v68, 15, v0
    v_sub_u32 v68, v68, v69
    s_and_b32 {S(sT2)}, {S(sWV)}, 1
    s_lshl_b32 {S(sT2)}, {S(sT2)}, 4
    v_add_u32 v68, {S(sT2)}, v68
    s_lshr_b32 {S(sT2)}, {S(sWV)}, 1
    s_lshl_b32 {S(sMK)}, {S(sT2)}, 5
    s_add_u32 {S(sMK+1)}, {S(sMK)}, 16
    s_sub_u32 {S(sMK+2)}, 96, {S(sMK)}
    s_add_u32 {S(sMK+3)}, {S(sMK+2)}, 16
    s_lshl_b32 s4, {S(sT2)}, 6
    s_xor_b32 s5, s4, 32
    s_xor_b32 s6, s4, 64
    s_xor_b32 s7, s4, 96
    v_mov_b32 v70, {FH(NEGBIG)}
    """)
    body = toI(["s_barrier", f"s_lshl_b32 {S(sKs)}, {S(sN)}, 15", f"s_add_u32 {S(sKs)}, {S(sKs)}, {S(sKb)}"]) + dmaKV(0, 0, sKs, "k")
    body += toI(["s_waitcnt vmcnt(0)", "s_barrier",
                 f"s_cmp_eq_u32 {S(sN)}, {S(sBLK)}", f"s_cselect_b32 {S(sT3)}, 0, 4096"])
    for kt in range(4):
        body += toI([rdK(0, kt, ds) for ds in range(4)])
        body += toI([f"v_subrev_u32 v69, {S(sMK+kt)}, v68", f"v_add_u32 v69, {S(sT3)}, v69"])
        for q in range(4):
            for ds in range(4): body += toI([MF(V(Sw(q), 4), Kf(kt, ds), Qf(ds, q), V(Sw(q), 4) if ds else "0")])
        for q in range(4):
            body += toI([f"v_add_u32 v72, {S(4+q)}, v69"])
            for r in range(4):
                body += toI([f"v_cmp_gt_i32 vcc, {r}, v72", f"v_cndmask_b32 v71, {V(Sw(q)+r)}, v70, vcc", f"v_max_f32 {V(64+q)}, {V(64+q)}, v71"])
    body += toI(["s_waitcnt lgkmcnt(0)", f"s_add_u32 {S(sN)}, {S(sN)}, 1", f"s_cmp_le_u32 {S(sN)}, {S(sBLK)}", f"s_cbranch_scc1 {name}_mx"])
    b.chain_loop([(name + "_mx", body)], align=0)
    for q in range(4):
        b(f"""
        v_mov_b32 v68, {V(64+q)}
        v_permlane16_swap_b32 {V(64+q)}, v68
        v_max_f32 {V(64+q)}, {V(64+q)}, v68
        v_mov_b32 v68, {V(64+q)}
        v_permlane32_swap_b32 {V(64+q)}, v68
        v_max_f32 {V(64+q)}, {V(64+q)}, v68
        """)
    b(f"""
    s_lshl_b32 {S(sT3)}, {S(sWV)}, 10
    v_add_u32 v19, {S(sT3)}, {V(vLx)}
    ds_write_b128 v19, v[64:67]
    v_xor_b32 v19, 0x800, v19
    s_waitcnt lgkmcnt(0)
    s_barrier
    ds_read_b128 v[68:71], v19
    """)
    for q in range(4):
        b(f"v_max_f32 {V(64+q)}, {V(64+q)}, {V(68+(q ^ 2))}")
        for r in range(4): b(f"v_sub_f32 {V(NM(q)+r)}, 0, {V(64+q)}")
    b("s_barrier")
    b(unit_r0(sKs, sKb)); b(dmaKV(0, 1, sKs, "k")); b(unit_diag(sVs, sVb)); b(dmaKV(1, 0, sVs, "v"))
    b([rdK0(0, ds) for ds in range(4)])
    b("s_waitcnt vmcnt(0) lgkmcnt(0)"); b(f"s_branch {name}_retry")
    b.label(name + "_fin1", fin1)
    ST("pv")
    merge_reads(); ST("xr"); check()
    normalise(8192)
    T.stamp(b, "attend")
    vOa = 8
    b(f"""
    v_lshrrev_b32 v28, 2, v0
    v_mul_u32_u24 v28, 320, v28
    v_and_b32 v29, 3, v0
    v_lshl_add_u32 v28, v29, 3, v28
    v_bfe_u32 v29, v0, 4, 1
    v_lshlrev_b32 v29, 5, v29
    v_add_u32 {V(vOa)}, v28, v29
    v_sub_u32 v28, v28, v29
    v_add_u32 {V(vOa+1)}, 32, v28
    s_add_u32 {S(sT2)}, {S(sOb)}, {FL_CX}
    s_lshl_b32 {S(sT2)}, {S(sT2)}, 7
    s_add_u32 {S(sT2)}, {S(sT2)}, {WS_FLG}
    v_mov_b32 {V(vPa)}, {S(sT2)}
    @waitvm o0
    s_barrier
    """)
    def oacc(n, m): return 96 + 16*n + 4*m
    def OWf(buf, ks): return 64 + 16*buf + 4*ks
    outers = [(c, n) for c in range(4) for n in range(10)]
    def rdO(k):
        c, n = outers[k]
        return [f"ds_read_b64_tr_b16 {V(OWf(k & 1, ks) + 2*hf, 2)}, {V(vOa + 2*c + (n & 1))} offset:{(32*ks + 16*hf)*320 + (n & ~1)*32}"
                for ks in range(4) for hf in range(2)]
    b(rdO(0))
    mf = []
    for k, (c, n) in enumerate(outers):
        for m in range(4):
            for ks in range(4):
                d = V(oacc(n, m), 4)
                mf.append(MF(d, V(OWf(k & 1, ks), 4), Xf(c, ks, m), "0" if (c == 0 and ks == 0) else d))
    sc = Sched(mf)
    for k in range(39):
        for r, x in enumerate(rdO(k + 1)): assert sc.put(x, 16*k + r) == 16*k + r
        sc.raw("s_waitcnt lgkmcnt(0)", 16*k + 15, "pre")
    seq(sc, [f"v_add_u32 {V(vOa + 2*c + e)}, {CB[c]}, {V(vOa + e)}" for c in (1, 2, 3) for e in (0, 1)], 8)
    sc.raw("@waitvm cx", OA)
    g = seq(sc, [f"s_add_u32 {S(sT2)}, {S(sOb)}, {FL_CX}", f"s_lshl_b32 {S(sT2)}, {S(sT2)}, 7", f"s_add_u32 {S(sT2)}, {S(sT2)}, {WS_FLG}"], OA - 8)
    g = sc.put(f"buffer_atomic_add {V(vOne)}, {V(vFlagW)}, {sWS}, {S(sT2)} offen", OA + 1, force=True)
    def pace2(groups, g0, step):
        g = g0
        for gr in groups:
            for x in gr[:-1]: sc.raw(x, g - 1, "post")
            g = sc.putw(gr[-1], g, g + 1) + step
        return g
    g = pace2(vgroups(dmaO(1)), g + 2, 4)
    gp = sc.put(poll_kv, g, force=True)
    d2 = vgroups(dmaO(2))
    g = pace2(d2[:OD], gp + 3, 4)
    OC = max(g, gp + OW)
    sc.raw("@mark pc", OC)
    g = pace2(vgroups(ldX(1, (0, 1))), OC + 2, 1 if OC > 120 else 2); assert g < 161, g
    sc.raw(["@waitvm o1", "s_barrier"], 143, "post2")
    g = pace2(d2[OD:] + vgroups(ldX(2, (0, 1))), 164, 4); assert g < 310, g
    sc.raw(["@waitvm o2", "s_barrier"], 303, "post2")
    g = pace2(vgroups(dmaO(3) + ldX(3, (0, 1))), g, 4); assert g < 450, g
    sc.raw(["@waitvm o3", "s_barrier"], 463, "post2")
    sP0, sP1 = 60, 61
    seq(sc, [f"s_lshr_b32 {S(sT3)}, {S(sHD)}, 2", f"s_mul_i32 {S(sP0)}, {S(sT3)}, {32*20*4096}", f"s_add_u32 {S(sP0)}, {S(sP0)}, {WS_PART + 20*4096}",
             f"s_lshr_b32 {S(sT3)}, {S(sWV)}, 1", f"s_mul_i32 {S(sT3)}, {S(sT3)}, {20*4096}", f"s_sub_u32 {S(sP0)}, {S(sP0)}, {S(sT3)}",
             f"s_and_b32 {S(sT3)}, {S(sWV)}, 1", f"s_lshl_b32 {S(sT3)}, {S(sT3)}, 10", f"s_add_u32 {S(sP0)}, {S(sP0)}, {S(sT3)}",
             f"s_and_b32 {S(sT3)}, {S(sHD)}, 3", f"s_mul_i32 {S(sT3)}, {S(sT3)}, {5*4096}", f"s_add_u32 {S(sP0)}, {S(sP0)}, {S(sT3)}",
             f"s_mul_i32 {S(sT3)}, {S(sJ)}, {40*4096}", f"s_add_u32 {S(sP1)}, {S(sP0)}, {S(sT3)}",
             f"s_sub_u32 {S(sP0)}, {S(sP0)}, {S(sT3)}", f"s_add_u32 {S(sP0)}, {S(sP0)}, {15*40*4096}"], 455)
    g = 0
    for p in range(5):
        for m in range(4):
            r0, r1 = oacc(2*p, m), oacc(2*p + 1, m)
            cv = lambda d, x: f"v_cvt_pk_bf16_f32 {V(d)}, {V(x)}, {V(x+1)}"
            seq(sc, [cv(r0, r0), cv(r0+1, r0+2)], 480 + 32*p + 4*m + 9)
            g = seq(sc, [cv(r0+2, r1), cv(r0+3, r1+2), f"s_add_u32 {S(sT3)}, {S(sP1 if m >> 1 else sP0)}, {p*4096}",
                         I(f"buffer_store_dwordx4 {V(r0,4)}, {V(vL)}, {sWS}, {S(sT3)} offen offset:{(m & 1)*2048}{PST}", "pt")], max(g + (6 if p < 4 else 0), 480 + 32*p + 16 + 4*m + 9))
    hk = {"pc": lambda: spin(name + "_pc", vPk, poll_kv, 4)}
    if tail:
        seq(sc, [f"v_and_b32 {V(vPa)}, 31, v0", f"v_lshlrev_b32 {V(vPa)}, 7, {V(vPa)}", f"v_add_u32 {V(vPa)}, {WS_FLG + FL_R*128}, {V(vPa)}", poll_kv], 452)
        sc.raw("@mark pr", 495, "post2"); hk["pr"] = lambda: spin(name + "_pr", vPk, poll_kv, 32)
    if fine == "op":
        for gg in (OA + 1, OC - 1, OC + 1, 159, 175, 319, 335, 479, 495):
            sc.raw(f"@mark g{gg}", gg, "post2"); hk[f"g{gg}"] = lambda gg=gg: T.stamp(b, f"g{gg}")
    emit_split(sc, hk)
    T.stamp(b, "end")
    if tail:
        b(f"""
        s_lshl_b32 s79, {S(sJ)}, 2
        s_and_b32 {S(sT2)}, {S(sHD)}, 3
        s_add_u32 s79, s79, {S(sT2)}
        s_lshl_b32 s79, s79, 2
        s_add_u32 s79, s79, {S(sWV)}
        s_lshl_b32 s79, s79, 7
        s_add_u32 s79, s79, {WS_FLG + FL_P*128}
        """)
        tail(b, T, name, R, WS_FLG + FL_P*128)
    T.dump(b, R["ws"], 2, sWV, 12)
    b.label(name + "_end")
    b("s_endpgm")
    b.flush()
    lastw = {}
    for i in b.out:
        if i.tag == "kv" or (i.op == "ds_write_b128" and i.t.split()[1] in (f"v{vKw},", f"v{vVw},", f"v{vQw},")):
            data = regs_of(i.t.split(None, 1)[1].split(",")[0 if i.tag == "kv" else 1].split()[0])
            assert all(lastw[r].op == "v_cvt_pk_bf16_f32" for r in data), i.t
        for r in i.w: lastw[r] = i
    return dict(name=name, text=b.text(), kd=kd(name, 512, 256), launch=f"; @launch {'' if name.startswith('adaLN') and not aslist else f'kernel={name} '}grid=(256,1,1) block=(256,1,1) lds=163840", stamps=T.names)
```

```python
from common import *
from kt import (sWV, sRB, sCS, sT, sT2, sT3, vL16, vG, vR, slices, tile_voffs, xg, row_sums, fin_stats,
                store_act, gelu, GC1, GC2, SPIN_MAX, finish)
FA, FB, FC, FD, FV = 0, 128, 256, 384, 512

def vgroups(ins):
    out = [[]]
    for i in ins:
        out[-1].append(i)
        if i.kind == "vmem": out.append([])
    assert not out[-1]; return out[:-1]

def gen(name="kf_kernel", stamps=False, slot=1, **kw):
    b = B(); T = Stamper(stamps, 84, slot)
    b(f"{name}:")
    b("s_cmp_ge_u32 s2, 256")
    b(f"s_cbranch_scc1 {name}_end")
    T.stamp(b, "start")
    R = load_srds(b, ["ws", "x", "bsp", "out"], 8)
    b(f"""
    v_lshrrev_b32 v1, 6, v0
    v_and_b32 v0, 63, v0
    v_readfirstlane_b32 {S(sWV)}, v1
    """)
    body(b, T, name, R, None, **kw)
    return finish(b, name, 160 * 1024, T, R)

def fused(**kw):
    def f(b, T, name, RA, flp):
        R = load_srds(b, ["x", "bsp", "out"], 8); R["ws"] = RA["ws"]
        body(b, T, name + "_t", R, flp, **kw)
        T.stamp(b, "tend")
    return f

def body(b, T, name, R, flp, NSA=6, few=False):
    SC = " sc1" if flp else ""
    if few:
        class TT:
            def stamp(self, b, nm):
                if nm in few: T0.stamp(b, nm)
        T0 = T; T = TT()
    sWS = S(R["ws"], 4); sX = S(R["x"], 4)
    b(f"""
    s_and_b32 {S(sT)}, s2, 7
    s_lshr_b32 {S(sT2)}, s2, 3
    s_and_b32 {S(sCS)}, {S(sT)}, 1
    s_lshl_b32 {S(sCS)}, {S(sCS)}, 2
    s_and_b32 {S(sT3)}, {S(sT2)}, 3
    s_add_u32 {S(sCS)}, {S(sCS)}, {S(sT3)}
    s_lshr_b32 {S(sRB)}, {S(sT)}, 1
    s_lshl_b32 {S(sRB)}, {S(sRB)}, 3
    s_lshr_b32 {S(sT3)}, {S(sT2)}, 2
    s_add_u32 {S(sRB)}, {S(sRB)}, {S(sT3)}
    v_lshlrev_b32 {V(vL16)}, 4, v0
    v_lshrrev_b32 {V(vG)}, 4, v0
    v_and_b32 {V(vR)}, 15, v0
    """)
    sB5, sE5, sB7, sE7 = 54, 55, 56, 57
    sW, sXo, sW1, sW2, sRow, sLb, sSp = 58, 59, 60, 61, 62, 76, 77
    slices(b, 5, sB5, sE5)
    b(f"""
    s_mul_i32 {S(sXo)}, {S(sRB)}, {20*4096}
    s_lshl_b32 {S(sT)}, {S(sWV)}, 10
    s_add_u32 {S(sXo)}, {S(sXo)}, {S(sT)}
    s_add_u32 {S(sW)}, {S(sXo)}, {WS_PART}
    s_lshl_b32 {S(sT)}, {S(sB5)}, 11
    v_add_u32 v8, {S(sT)}, {V(vL16)}
    v_add_u32 v9, 4096, v8
    s_lshr_b32 {S(sT)}, {S(sE5)}, 1
    s_lshl_b32 {S(sT)}, {S(sT)}, 12
    v_add_u32 v10, {S(sT)}, {V(vL16)}
    """)
    PF = lambda x, f: A(12*x + 4*f, 4)
    def ldP(x): return toI([f"s_add_u32 {S(sT)}, {S(sW)}, {x*32*20*4096}"] + [f"buffer_load_dwordx4 {PF(x, f)}, {V(8+f)}, {sWS}, {S(sT)} offen{SC}" for f in range(3)])
    if not flp: b(ldP(0)); b(ldP(1))
    slices(b, 7, sB7, sE7)
    at5 = tile_voffs(b, 5, sB5, sE5, 4, 5, 6, 1024, vL16)
    at7 = tile_voffs(b, 7, sB7, sE7, 4, 5, 7, 1024, vL16)
    vFW, vOne, vPa, vPoll = 11, 12, 13, 14
    b(f"""
    s_mul_i32 {S(sW1)}, {S(sWV)}, {108*1024}
    s_lshl_b32 {S(sT)}, {S(sB7)}, 10
    s_add_u32 {S(sW1)}, {S(sW1)}, {S(sT)}
    s_add_u32 {S(sW1)}, {S(sW1)}, {WS_WIN - 1024}
    s_add_u32 {S(sW2)}, {S(sW1)}, {54*1024}
    s_mul_i32 {S(sLb)}, {S(sWV)}, 7168
    s_lshl_b32 {S(sRow)}, {S(sRB)}, 2
    s_add_u32 {S(sRow)}, {S(sRow)}, {S(sWV)}
    v_mov_b32 {V(vFW)}, {hex(OOB)}
    v_writelane_b32 {V(vFW)}, 0, 0
    v_mov_b32 {V(vOne)}, 1
    """)
    def dmaW(nW, at, soff, goff, sl, loff, tag, valid=None):
        o = [f"s_add_u32 {S(sT2)}, {S(soff)}, {goff}"]
        if valid: o += [valid, f"s_cselect_b32 {S(sT2)}, {S(sT2)}, {hex(OOB)}"]
        for n in range(nW):
            v, ofs = at(n)
            if ofs == 0: o.append(f"s_add_u32 m0, {S(sl)}, {loff + n*1024}")
            o.append(I(f"buffer_load_dwordx4 {v}, {sWS}, {S(sT2)} offen offset:{ofs}{SC} lds", tag))
        return toI(o)
    dW2 = lambda r: dmaW(7, at7, sW2, 4*r*108*1024, sLb, 4*r*7168, "w2")
    dW1 = lambda r: dmaW(7, at7, sW1, 4*r*108*1024, sLb, 4*r*7168, "w1")
    def arrive(tag, line_ins):
        b(line_ins); b(f"s_lshl_b32 {S(sT)}, {S(sT)}, 7"); b(f"s_add_u32 {S(sT)}, {S(sT)}, {WS_FL2}")
        b(f"@waitvm {tag}")
        b(f"buffer_atomic_add {V(vOne)}, {V(vFW)}, {sWS}, {S(sT)} offen")
    poll = f"buffer_load_dword {V(vPoll)}, {V(vPa)}, {sWS}, 0 offen sc1"
    def poll_addr(line_ins, four):
        o = line_ins + [f"s_lshl_b32 {S(sT)}, {S(sT)}, 7", f"s_add_u32 {S(sT)}, {S(sT)}, {WS_FL2}"]
        if four: o += [f"v_and_b32 {V(vPa)}, 3, v0", f"v_lshl_add_u32 {V(vPa)}, {V(vPa)}, 7, {S(sT)}"]
        else: o += [f"v_mov_b32 {V(vPa)}, {S(sT)}"]
        return toI(o)
    def spin(lab, target):
        b(f"@need {V(vPoll)}")
        b(f"v_cmp_gt_u32 vcc, {target}, {V(vPoll)}")
        b(f"s_cbranch_vccz {lab}_ok")
        sts = b.flush()
        b(f"s_mov_b32 {S(sT3)}, 0")
        b.label(f"{lab}_spin")
        b(poll)
        b(f"s_add_u32 {S(sT3)}, {S(sT3)}, 1")
        b(f"s_cmp_gt_u32 {S(sT3)}, {SPIN_MAX}")
        b("s_waitcnt vmcnt(0)")
        b(f"s_cbranch_scc1 {lab}_ok")
        b(f"v_cmp_gt_u32 vcc, {target}, {V(vPoll)}")
        b(f"s_cbranch_vccnz {lab}_spin")
        b.label(f"{lab}_ok", sts + b.flush())
    def capture(f):
        n = len(b.cur); f(); o = b.cur[n:]; del b.cur[n:]; return o
    def tagged(f, tag):
        o = capture(f)
        for i in o:
            if i.kind == "vmem": i.tag = tag
        b(o)
    def weave_v(valu, groups, every):
        groups = list(groups)
        for k, i in enumerate(valu):
            b(i)
            if k % every == every - 1 and groups: b(groups.pop(0))
        for g in groups: b(g)
    if flp:
        b(f"""
        @waitvm pt
        buffer_atomic_add {V(vOne)}, {V(vFW)}, {sWS}, s79 offen
        s_lshr_b32 {S(sT)}, {S(sRB)}, 1
        s_sub_u32 {S(sT2)}, 15, {S(sT)}
        s_min_u32 {S(sT)}, {S(sT)}, {S(sT2)}
        s_lshl_b32 {S(sT)}, {S(sT)}, 2
        s_lshr_b32 {S(sT2)}, {S(sCS)}, 1
        s_add_u32 {S(sT)}, {S(sT)}, {S(sT2)}
        s_lshl_b32 {S(sT)}, {S(sT)}, 1
        s_and_b32 {S(sT2)}, {S(sRB)}, 1
        s_xor_b32 {S(sT2)}, {S(sT2)}, 1
        s_add_u32 {S(sT)}, {S(sT)}, {S(sT2)}
        s_lshl_b32 {S(sT)}, {S(sT)}, 1
        s_and_b32 {S(sT2)}, {S(sWV)}, 1
        s_add_u32 {S(sT)}, {S(sT)}, {S(sT2)}
        s_lshl_b32 {S(sT)}, {S(sT)}, 7
        s_add_u32 {S(sT)}, {S(sT)}, {flp}
        v_mov_b32 {V(vPa)}, {S(sT)}
        s_barrier
        """)
        T.stamp(b, "arrP")
    b(f"""
    v_lshlrev_b32 v38, 4, {V(vG)}
    v_mov_b32 v39, {hex(OOB)}
    v_cmp_gt_u32 vcc, 2, {V(vR)}
    v_mul_u32_u24 v40, 2560, {V(vR)}
    v_sub_u32 v40, {WS_MOD + 4*2560}, v40
    v_add_u32 v40, v38, v40
    v_cndmask_b32 v40, v39, v40, vcc
    s_cmp_ge_u32 s2, 108
    s_cbranch_scc1 {name}_noside
    """)
    ns = b.flush()
    b(f"""
    s_mul_i32 s64, {S(sWV)}, 640
    s_mul_i32 s65, {S(sWV)}, {5*108*1024}
    s_lshl_b32 s66, s2, 10
    s_add_u32 s65, s65, s66
    s_add_u32 s65, s65, {WS_WIN}
    """)
    for k in range(5):
        for hf in range(2): b(f"buffer_load_dwordx4 {V(176+8*k+4*hf,4)}, v40, {sWS}, s64 offen offset:{128*k+64*hf}{SC}")
        b(f"buffer_load_dwordx4 {V(216+4*k,4)}, {V(vL16)}, {sWS}, s65 offen{SC}"); b(f"s_add_u32 s65, s65, {108*1024}")
    b.label(name + "_noside", ns + b.flush())
    XP, GA, AB, X1 = 96, 56, 76, 16
    b(f"""
    v_lshlrev_b32 v41, 3, {V(vG)}
    v_mul_u32_u24 v15, 1280, {V(vR)}
    v_add_u32 v15, v41, v15
    s_mul_i32 s68, {S(sRow)}, {16*1280}
    s_lshl_b32 s69, {S(sE5)}, 5
    s_add_u32 s69, s69, s68
    s_lshl_b32 s70, {S(sB5)}, 5
    s_add_u32 s68, s68, s70
    s_lshl_b32 s70, {S(sB5)}, 6
    s_add_u32 s70, s70, {WS_MOD + 2*2560}
    s_lshl_b32 s71, {S(sE5)}, 6
    s_add_u32 s71, s71, {WS_MOD + 2*2560}
    s_add_u32 s72, s70, {2*2560}
    s_add_u32 s73, s71, {2*2560}
    """)
    def el2(n): return toI([f"buffer_load_dwordx2 {V(XP+2*n,2)}, v15, {sX}, {'s68' if n < 4 else 's69'} offen offset:{32*n if n < 4 else 0}",
                            f"buffer_load_dwordx4 {V(GA+4*n,4)}, v38, {sWS}, {'s70' if n < 4 else 's71'} offen offset:{64*n if n < 4 else 0}{SC}",
                            f"buffer_load_dwordx4 {V(AB+4*n,4)}, v38, {sWS}, {'s72' if n < 4 else 's73'} offen offset:{64*n if n < 4 else 0}{SC}"])
    if flp:
        b(dW2(0)); b(poll); b(el2(0)); b(el2(1))
        spin(name + "_pp", 8)
        T.stamp(b, "gotP")
        for x in range(4): b(ldP(x))
    else:
        b(ldP(2)); b(dW2(0)); b(ldP(3)); b(el2(0)); b(el2(1))
    b(f"""
    v_lshlrev_b32 v106, 2, {V(vG)}
    v_sub_u32 v106, {V(vR)}, v106
    v_mov_b32 v107, 0x3f80
    v_mov_b32 v119, 0x3f800000
    v_cmp_eq_u32 vcc, 0, v106
    v_cndmask_b32 v108, 0, v107, vcc
    v_cmp_eq_u32 vcc, 1, v106
    v_cndmask_b32 v108, v108, v119, vcc
    v_cmp_eq_u32 vcc, 2, v106
    v_cndmask_b32 v109, 0, v107, vcc
    v_cmp_eq_u32 vcc, 3, v106
    v_cndmask_b32 v109, v109, v119, vcc
    v_mov_b32 v110, 0
    v_mov_b32 v111, 0
    v_mov_b32 v112, 0
    v_mov_b32 v113, 0
    v_mov_b32 v114, v108
    v_mov_b32 v115, v109
    s_bitcmp1_b32 {S(sE5)}, 0
    s_cselect_b64 vcc, -1, 0
    """)
    for k in range(4): b(f"v_cndmask_b32 {V(116+k)}, {V(108+k)}, {V(112+k)}, vcc")
    SJ = 156 * 1024
    for k in range(5):
        for j in range(4): b(f"v_cvt_pk_bf16_f32 {V(176+8*k+j)}, {V(176+8*k+2*j)}, {V(176+8*k+2*j+1)}")
    for k in range(5): b(MF(V(236,4), V(176+8*k,4), V(216+4*k,4), V(236,4) if k else "0"))
    b(ldP(4)); b(dW2(1))
    b(f"s_lshl_b32 s64, {S(sWV)}, 10"); b(f"s_add_u32 s64, s64, {SJ}"); b(f"v_add_u32 v40, s64, {V(vL16)}")
    b("ds_write_b128 v40, v[236:239]")
    b(f"v_add_u32 v40, {SJ}, {V(vL16)}")
    b("s_waitcnt lgkmcnt(0)"); b("s_barrier")
    for w in range(4): b(f"ds_read_b64 {V(176+2*w,2)}, v40 offset:{w*1024}")
    b(ldP(5)); b(el2(2)); b(el2(3))
    b(f"""
    v_pk_add_f32 v[176:177], v[176:177], v[178:179]
    v_pk_add_f32 v[180:181], v[180:181], v[182:183]
    v_pk_add_f32 v[176:177], v[176:177], v[180:181]
    v_lshlrev_b32 v40, 2, {V(vR)}
    v_cmp_eq_u32 vcc, 0, {V(vG)}
    v_cndmask_b32 v40, v39, v40, vcc
    s_lshl_b32 s64, s2, 6
    s_add_u32 s64, s64, {WS_VEC}
    s_cmp_lt_u32 s2, 108
    s_cselect_b32 s64, s64, {hex(OOB)}
    s_cmp_eq_u32 {S(sWV)}, 0
    s_cselect_b32 s64, s64, {hex(OOB)}
    s_add_u32 s65, s64, 0x2000
    """)
    b(f"buffer_store_dword v176, v40, {sWS}, s64 offen sc1", "vec"); b(f"buffer_store_dword v177, v40, {sWS}, s65 offen sc1", "vec")
    b(ldP(6)); b(dW2(2)); b(ldP(7)); b(el2(4))
    def sumP(x):
        for n in range(5):
            d = V(X1 + 4*n, 4)
            b(MF(d, V(116 if n == 4 else 108 + 4*(n & 1), 4), PF(x, n >> 1), d if x else "0"))
    for x in range(6): sumP(x)
    b(f"""
    s_cmp_lt_u32 s64, {hex(OOB)}
    s_cselect_b32 s64, {WS_FL2 + FV*128}, {hex(OOB)}
    @waitvm vec
    buffer_atomic_add {V(vOne)}, {V(vFW)}, {sWS}, s64 offen
    """)
    b(dW2(3))
    sumP(6); sumP(7)
    T.stamp(b, "red")
    for n in range(5):
        for j in range(2):
            b(f"v_lshlrev_b32 v112, 16, {V(XP+2*n+j)}"); b(f"v_and_b32 v113, 0xffff0000, {V(XP+2*n+j)}")
            b(f"v_pk_fma_f32 {V(X1+4*n+2*j,2)}, {V(X1+4*n+2*j,2)}, {V(GA+4*n+2*j,2)}, v[112:113]")
    for k in range(0, 20, 2): b(f"v_pk_mul_f32 {V(GA+k,2)}, {V(X1+k,2)}, {V(AB+k,2)}")
    tagged(lambda: store_act(b, sWS, 5, GA, WS_XA, 20, sB5, sE5, 12, " sc1"), "A")
    row_sums(b, X1, 20, 116, 112)
    vSt, vSl = 36, 37
    b(f"""
    v_lshlrev_b32 {V(vSl)}, 6, {V(vR)}
    v_cmp_eq_u32 vcc, 0, {V(vG)}
    v_cndmask_b32 {V(vSt)}, v39, {V(vSl)}, vcc
    v_lshl_add_u32 {V(vSl)}, {V(vG)}, 4, {V(vSl)}
    s_lshl_b32 s63, {S(sRow)}, 10
    s_lshl_b32 {S(sT2)}, {S(sCS)}, 3
    s_add_u32 s64, s63, {S(sT2)}
    s_add_u32 {S(sT)}, s64, {WS_ST1}
    """)
    b(f"buffer_store_dwordx2 v[116:117], {V(vSt)}, {sWS}, {S(sT)} offen sc1", "A")
    b(dW2(4))
    vXm = 170
    for m in range(4):
        b(f"s_add_u32 {S(sT)}, {S(sWV)}, {m}"); b(f"s_and_b32 {S(sT)}, {S(sT)}, 3"); b(f"s_lshl_b32 {S(sT)}, {S(sT)}, 10")
        b(f"v_add_u32 {V(vXm+m)}, {S(sT)}, {V(vL16)}")
    b(f"""
    s_lshl_b32 {S(sSp)}, {S(sRB)}, 18
    s_lshl_b32 {S(sT)}, {S(sWV)}, 16
    s_add_u32 {S(sSp)}, {S(sSp)}, {S(sT)}
    s_add_u32 {S(sSp)}, {S(sSp)}, {WS_WSP}
    """)
    arrive("A", [f"s_add_u32 {S(sT)}, {S(sRow)}, {FA}"])
    T.stamp(b, "arrA")
    def xs(k, m):
        k = k % 14
        return A((80 + 16*k if k < 11 else 32 + 16*(k - 11)) + 4*m, 4)
    def lS(k): return toI([f"s_add_u32 {S(sT)}, {S(sSp)}, {k*4096}"] + [f"buffer_load_dwordx4 {xs(k, m)}, {V(vXm+m)}, {sWS}, {S(sT)} offen{SC}" for m in range(4)])
    for k in range(2): b(lS(k))
    b(poll_addr([f"s_add_u32 {S(sT)}, {S(sRow)}, {FA}"], False)); b(poll)
    b(lS(2))
    atv = tile_voffs(b, 7, sB7, sE7, 39, 40, 41, 64, 38)
    V1, V2, TM, Z2, Z1, ST, ZA = 48, 76, 104, 132, 48, 160, 224
    b(f"""
    s_add_u32 {S(sXo)}, {S(sXo)}, {WS_XA}
    v_mov_b32 v44, {FH(-GC1)}
    v_mov_b32 v45, {FH(-GC1)}
    v_mov_b32 v46, {FH(-GC2)}
    v_mov_b32 v47, {FH(-GC2)}
    v_add_u32 v8, 65536, {V(vL16)}
    v_add_u32 v9, 131072, {V(vL16)}
    @waitvm w2
    s_barrier
    """)
    NR = 12
    def wring(i): return V(176 + 4*(i % NR), 4)
    def rdl(i, addr): return f"ds_read_b128 {wring(i)}, {V((vL16, 8, 9)[addr >> 16])} offset:{addr & 0xffff}"
    def msplit(order, accf, xf, addr, lead=10):
        seen = set(); mf = []
        for i, (ks, n) in enumerate(order):
            mf.append(MF(accf(n), wring(i), xf(ks), accf(n) if n in seen else "0")); seen.add(n)
        sc = Sched(mf)
        for i in range(lead, len(order)): sc.put(rdl(i, addr(*order[i])), i - lead, force=True)
        for i in range(1, len(order) - 1, 2): sc.raw(f"@need {wring(i+1)} {wring(min(i+2, len(order)-1))}", i, "pre")
        return sc, [rdl(i, addr(*order[i])) for i in range(lead)]
    ordz = [(4*r + k, n) for r in range(5) for n in range(7) for k in range(4)]
    xz = lambda ks: A(4*ks, 4)
    adz = lambda ks, n: (ks*7 + n)*1024
    sc2, pre2 = msplit(ordz, lambda n: V(Z2 + 4*n, 4), xz, adz)
    b(pre2)
    spin(name + "_pa", 8)
    T.stamp(b, "gotA")
    def lXa(ks): return toI([f"s_add_u32 {S(sT)}, {S(sXo)}, {ks*4096}", f"buffer_load_dwordx4 {xz(ks)}, {V(vL16)}, {sWS}, {S(sT)} offen sc1"])
    for ks in range(8): b(lXa(ks))
    def place(sc, groups, g0, step):
        g = g0
        for gr in groups:
            for x in gr[:-1]: sc.raw(x, g - 1, "post")
            sc.put(gr[-1], g, force=True); g += step
        return g
    def vecloads(half):
        o = [f"s_lshl_b32 s65, {S(sB7)}, 6", f"s_add_u32 s65, s65, {WS_VEC - 64 + half*54*64}", "s_add_u32 s66, s65, 0x2000"]
        for n in range(7):
            v, off = atv(n)
            o += [f"buffer_load_dwordx4 {V(V1+4*n,4)}, {v}, {sWS}, s65 offen offset:{off} sc1", f"buffer_load_dwordx4 {V(V2+4*n,4)}, {v}, {sWS}, s66 offen offset:{off} sc1"]
        return toI(o)
    g = place(sc2, [poll_addr([f"s_mov_b32 {S(sT)}, {FV}"], False) + toI([poll])] + [lXa(ks) for ks in range(8, 20)]
              + [toI([f"s_add_u32 {S(sT)}, s63, {WS_ST1}", f"buffer_load_dwordx4 {V(ST,4)}, {V(vSl)}, {sWS}, {S(sT)} offen sc1"])], 1, 4)
    sc2.raw("@mark pv", g - 2, "post2")
    g = place(sc2, vgroups(vecloads(1)), g, 4)
    sc2.raw("s_barrier", g, "post2")
    assert g >= 84
    w1 = [x for r in range(5) for x in vgroups(dW1(r))]
    nw = (139 - g - 2) // 4
    place(sc2, w1[:nw], g + 2, 4)
    cur = []
    for i in sc2.emit():
        if i.kind == "pseudo" and i.op == "@mark": b(cur); cur = []; spin(name + "_pv", 108)
        else: cur.append(i)
    b(cur)
    b("s_barrier")
    T.stamp(b, "g2")
    def apply(src, dst):
        for k in range(0, 28, 2): b(f"v_pk_fma_f32 {V(src+k,2)}, {V(V1+k,2)}, {V(ST,2)}, {V(src+k,2)} op_sel_hi:[1,0,1]")
        for k in range(0, 28, 2): b(f"v_pk_fma_f32 {V(dst+k,2)}, {V(src+k,2)}, {V(ST+2,2)}, {V(V2+k,2)} op_sel_hi:[1,0,1]")
    ep = capture(lambda: (fin_stats(b, ST, 640, 164), apply(Z2, Z2), gelu(b, Z2, 28, TM, 44, 46), row_sums(b, Z2, 28, 164, TM)))
    nv = len(ep) // 12
    weave_v(ep, w1[nw:nw + nv], 12)
    b(f"s_add_u32 {S(sT)}, s64, {WS_ST2}")
    b(f"buffer_store_dwordx2 v[164:165], {V(vSt)}, {sWS}, {S(sT)} offen sc1", "B")
    T.stamp(b, "e2")
    rest = w1[nw + nv:]
    for gr in rest[:6]: b(gr)
    arrive("B", [f"s_add_u32 {S(sT)}, {S(sRow)}, {FB}"])
    for gr in rest[6:]: b(gr)
    b(poll_addr([f"s_add_u32 {S(sT)}, {S(sRow)}, {FB}"], False))
    sc1, pre1 = msplit(ordz, lambda n: V(ZA + 4*n, 4), xz, adz)
    b("@waitvm w1"); b("s_barrier"); b(pre1)
    g = place(sc1, vgroups(vecloads(0))[:6] + [toI([poll])] + vgroups(vecloads(0))[6:], 1, 4)
    sc1.raw("@mark pb", g - 2, "post2")
    ST2 = 164
    g = place(sc1, [toI([f"s_add_u32 {S(sT)}, s63, {WS_ST2}", f"buffer_load_dwordx4 {V(ST2,4)}, {V(vSl)}, {sWS}, {S(sT)} offen sc1"])]
              + [x for k in range(3, NSA) for x in vgroups(lS(k))], g, 5)
    cur = []
    for i in sc1.emit():
        if i.kind == "pseudo" and i.op == "@mark": b(cur); cur = []; spin(name + "_pb", 8)
        else: cur.append(i)
    b(cur)
    T.stamp(b, "g1")
    fin_stats(b, ST2, 864, 168)
    b(f"v_mul_f32 {V(ST2)}, {V(ST2)}, {V(ST2+2)}")
    for k in range(0, 28, 2): b(f"v_pk_fma_f32 {V(Z2+k,2)}, {V(Z2+k,2)}, {V(ST2+2,2)}, {V(ST2,2)} op_sel_hi:[1,0,0]")
    for k in range(14): b(f"v_cvt_pk_bf16_f32 {V(Z2+k)}, {V(Z2+2*k)}, {V(Z2+2*k+1)}")
    TB = 140 * 1024
    b(f"""
    v_lshlrev_b32 v168, 5, {V(vR)}
    v_lshl_add_u32 v168, {V(vG)}, 3, v168
    s_lshl_b32 {S(sT)}, {S(sWV)}, 9
    s_add_u32 {S(sT)}, {S(sT)}, {TB}
    v_add_u32 v168, {S(sT)}, v168
    """)
    for n in range(7): b(f"ds_write_b64 v168, {V(Z2+2*n,2)} offset:{n*2048}")
    b(f"""
    s_and_b32 {S(sT)}, {S(sWV)}, 1
    s_lshr_b32 {S(sT2)}, {S(sWV)}, 1
    s_lshl_b32 {S(sT3)}, {S(sT)}, 10
    s_lshl_b32 s65, {S(sT2)}, 13
    s_add_u32 {S(sT3)}, {S(sT3)}, s65
    s_add_u32 {S(sT3)}, {S(sT3)}, {TB}
    v_lshl_add_u32 v169, v0, 3, {S(sT3)}
    s_lshl_b32 s65, {S(sRB)}, 1
    s_add_u32 s65, s65, {S(sT)}
    s_mul_i32 s65, s65, {54*1024}
    s_add_u32 s65, s65, {WS_Z2}
    s_lshl_b32 s66, {S(sT2)}, 2
    s_add_u32 s66, s66, {S(sB7)}
    s_lshl_b32 s66, s66, 10
    s_add_u32 s66, s66, s65
    s_lshl_b32 s67, {S(sE7)}, 10
    s_add_u32 s67, s67, s65
    s_cmp_ge_u32 {S(sCS)}, 6
    s_cselect_b32 s67, {hex(OOB)}, s67
    s_add_u32 s74, s66, 2048
    s_add_u32 s75, s66, 3072
    s_cmp_eq_u32 {S(sT2)}, 1
    s_cselect_b32 s74, s67, s74
    s_cselect_b32 s75, {hex(OOB)}, s75
    s_waitcnt lgkmcnt(0)
    s_barrier
    """)
    for n in range(4):
        for hf in range(2): b(f"ds_read_b64_tr_b16 {V(176+4*n+2*hf,2)}, v169 offset:{n*2048 + hf*512}")
    for n in range(4):
        b(f"buffer_store_dwordx4 {V(176+4*n,4)}, {V(vL16)}, {sWS}, {('s66','s66','s74','s75')[n]} offen offset:{1024 if n == 1 else 0} sc1", "C")
    T.stamp(b, "stC")
    ep = capture(lambda: (apply(ZA, Z1), gelu(b, Z1, 28, TM, 44, 46)))
    b(ep[:100])
    arrive("C", [f"s_lshl_b32 {S(sT)}, {S(sCS)}, 2", f"s_lshr_b32 {S(sT2)}, {S(sRB)}, 3", f"s_add_u32 {S(sT)}, {S(sT)}, {S(sT2)}",
                 f"s_lshl_b32 {S(sT)}, {S(sT)}, 2", f"s_add_u32 {S(sT)}, {S(sT)}, {S(sWV)}", f"s_add_u32 {S(sT)}, {S(sT)}, {FC}"])
    weave_v(ep[100:], [x for k in range(NSA, NSA + 3) for x in vgroups(lS(k))], 6)
    b(f"s_lshl_b32 {S(sT)}, {S(sRow)}, 5"); b(f"v_lshlrev_b32 v42, 1, {V(vR)}")
    b(f"buffer_load_ushort v42, v42, {S(R['bsp'],4)}, {S(sT)} offen")
    b(poll_addr([f"s_lshl_b32 {S(sT)}, {S(sCS)}, 2", f"s_add_u32 {S(sT)}, {S(sT)}, {S(sWV)}", f"s_lshl_b32 {S(sT)}, {S(sT)}, 2", f"s_add_u32 {S(sT)}, {S(sT)}, {FC}"], True))
    b(poll)
    b(lS(NSA + 3))
    b(f"""
    s_mul_i32 {S(sW)}, {S(sWV)}, {16*54*1024}
    s_lshl_b32 {S(sT)}, {S(sB7)}, 10
    s_add_u32 {S(sW)}, {S(sW)}, {S(sT)}
    s_add_u32 {S(sW)}, {S(sW)}, {WS_Z2 - 1024}
    s_mul_i32 {S(sW1)}, {S(sWV)}, {40*1024}
    s_lshl_b32 {S(sT)}, {S(sB5)}, 10
    s_add_u32 {S(sW1)}, {S(sW1)}, {S(sT)}
    s_add_u32 {S(sW1)}, {S(sW1)}, {WS_WOUT - 1024}
    s_mul_i32 {S(sLb)}, {S(sWV)}, 5120
    """)
    T.stamp(b, "e1")
    spin(name + "_pc", 8)
    T.stamp(b, "gotC")
    wg = lambda k, n: V(76 + 28*(k % 3) + 4*n, 4)
    def lZ(k):
        o = [f"s_add_u32 {S(sT2)}, {S(sW)}, {k*54*1024}"]
        for n in range(7):
            v, ofs = at7(n); o.append(f"buffer_load_dwordx4 {wg(k, n)}, {v}, {sWS}, {S(sT2)} offen offset:{ofs} sc1")
        return toI(o)
    G = 176
    def gacc(n, m):
        i = m*7 + n
        return V(G + 4*i, 4) if i < 20 else A(4*(i - 20), 4)
    OB = lambda r: 86016 + r*20480 if r < 3 else (r - 3)*20480
    dWo = lambda r: dmaW(5, at5, sW1, 4*r*40*1024, sLb, OB(r), "wo", valid=f"s_cmp_lt_u32 {S(sWV)}, 3" if r == 6 else None)
    b(lZ(0)); b(lZ(1))
    radr = []
    for m in range(1, 4):
        radr += [f"s_add_u32 s65, {S(sWV)}, {m}", "s_and_b32 s65, s65, 3", "s_mul_i32 s65, s65, 21504", f"s_add_u32 s65, s65, {(m-1)*7168}",
                 f"v_add_u32 {V(160+m)}, s65, {V(vL16)}"]
    radr += [f"s_mul_i32 s65, {S(sWV)}, 21504", f"v_add_u32 v160, s65, {V(vL16)}"]
    todo = list(range(NSA + 4, 16))
    for k in range(16):
        mo = [(n, m) for n in range(7) for m in range(4)] if k < 15 else [(n, m) for m in (1, 2, 3, 0) for n in range(7)]
        sc = Sched([MF(gacc(n, m), wg(k, n), xs(k, m), gacc(n, m) if k else "0") for n, m in mo])
        f = lZ(k + 2) if k + 2 < 16 else (dWo(0) + dWo(1) if k == 14 else [])
        if todo and k >= 2 and (todo[0] - k <= 5): f = f + lS(todo.pop(0))
        sc.seq(f, 0, 2)
        if k == 1: sc.seq(radr, 0); sc.raw("s_barrier", 27)
        if k == 15:
            g = 0
            for i, (n, m) in enumerate(mo[:21]): g = sc.put(f"ds_write_b128 {V(160+m)}, {gacc(n, m)} offset:{n*1024}", max(g, i + 7)) + 3
        b(sc.emit())
    assert not todo
    T.stamp(b, "g4")
    b(dWo(2))
    b("s_waitcnt lgkmcnt(0)"); b("s_barrier")
    b("v_lshlrev_b32 v42, 16, v42")
    for n in range(7):
        for m in range(3): b(f"ds_read_b128 {V(76 + 12*n + 4*m, 4)}, v160 offset:{m*7168 + n*1024}")
    for n in range(7):
        t = 76 + 12*n; d = G + 4*n
        for h in (0, 2): b(f"v_pk_add_f32 {V(d+h,2)}, {V(d+h,2)}, v[42:43] op_sel_hi:[1,0]")
        for h in (0, 2): b(f"v_pk_add_f32 {V(t+h,2)}, {V(t+h,2)}, {V(t+4+h,2)}")
        for h in (0, 2): b(f"v_pk_add_f32 {V(d+h,2)}, {V(d+h,2)}, {V(t+8+h,2)}")
        for h in (0, 2): b(f"v_pk_add_f32 {V(d+h,2)}, {V(d+h,2)}, {V(t+h,2)}")
        for h in (0, 2): b(f"v_pk_mul_f32 {V(d+h,2)}, {V(d+h,2)}, {V(Z1+4*n+h,2)}")
    tagged(lambda: store_act(b, sWS, 7, G, WS_U, 27, sB7, sE7, 12, " sc1"), "D")
    b("s_barrier")
    b(dWo(3))
    arrive("D", [f"s_add_u32 {S(sT)}, {S(sRow)}, {FD}"])
    T.stamp(b, "arrD")
    b(dWo(4)); b(dWo(5))
    b(poll_addr([f"s_add_u32 {S(sT)}, {S(sRow)}, {FD}"], False)); b(poll)
    b(dWo(6))
    GB, Y = 48, 76
    b(f"""
    s_add_u32 s70, s70, {3*2560}
    s_add_u32 s71, s71, {3*2560}
    s_mul_i32 {S(sXo)}, {S(sRB)}, {27*4096}
    s_lshl_b32 {S(sT)}, {S(sWV)}, 10
    s_add_u32 {S(sXo)}, {S(sXo)}, {S(sT)}
    s_add_u32 {S(sXo)}, {S(sXo)}, {WS_U}
    """)
    spin(name + "_pd", 8)
    T.stamp(b, "gotD")
    for ks in range(9): b(lXa(ks))
    ordo = [(3*r + k, n) for r in range(9) for n in range(5) for k in range(3)]
    sc5, pre5 = msplit(ordo, lambda n: V(Y + 4*n, 4), xz, lambda ks, n: OB(ks >> 2) + (ks & 3)*5120 + n*1024)
    b("@waitvm wo"); b("s_barrier"); b(pre5)
    place(sc5, [lXa(ks) for ks in range(9, 27)]
          + [toI([f"buffer_load_dwordx4 {V(GB+4*n,4)}, v38, {sWS}, {'s70' if n < 4 else 's71'} offen offset:{64*n if n < 4 else 0}{SC}"]) for n in range(5)], 1, 4)
    b(sc5.emit())
    T.stamp(b, "g5")
    for k in range(0, 20, 2): b(f"v_pk_fma_f32 {V(Y+k,2)}, {V(Y+k,2)}, {V(GB+k,2)}, {V(X1+k,2)}")
    for k in range(10): b(f"v_cvt_pk_bf16_f32 {V(Y+k)}, {V(Y+2*k)}, {V(Y+2*k+1)}")
    for n in range(5): b(f"buffer_store_dwordx2 {V(Y+2*n,2)}, v15, {S(R['out'],4)}, {'s68' if n < 4 else 's69'} offen offset:{32*n if n < 4 else 0}")
```

```python
from common import *
SPIN_MAX = 1000000
GC1 = 2 * 0.7978845608028654 * LOG2E
GC2 = GC1 * 0.044715

def prologue(b, name, srds, T=None):
    b(f"{name}:")
    b("s_cmp_ge_u32 s2, 256")
    b(f"s_cbranch_scc1 {name}_end")
    if T: T.stamp(b, "start")
    R = load_srds(b, srds, 8)
    b(f"""
    v_lshrrev_b32 v1, 6, v0
    v_and_b32 v0, 63, v0
    v_readfirstlane_b32 s48, v1
    s_and_b32 s51, s2, 7
    s_lshr_b32 s52, s2, 3
    s_and_b32 s50, s52, 7
    s_lshr_b32 s52, s52, 3
    s_lshl_b32 s49, s51, 2
    s_add_u32 s49, s49, s52
    v_lshlrev_b32 v1, 4, v0
    v_lshrrev_b32 v2, 4, v0
    v_and_b32 v3, 15, v0
    """)
    return R
sWV, sRB, sCS, sT, sT2, sT3 = 48, 42, 43, 51, 52, 53
vL16, vG, vR = 3, 2, 1

def finish(b, name, lds, T, R, vg=512):
    if T:
        T.stamp(b, "end"); T.dump(b, R["ws"], 2, sWV, 4)
    b.label(name + "_end"); b("s_endpgm")
    return dict(name=name, text=b.text(), kd=kd(name, vg, min(vg, 256)), launch=f"; @launch kernel={name} grid=(256,1,1) block=(256,1,1) lds={lds}", stamps=T.names if T else [])

def slices(b, per, sBase, sExtra):
    b(f"""
    s_lshr_b32 {S(sT)}, {S(sCS)}, 1
    s_mul_i32 {S(sT)}, {S(sT)}, {2*per}
    s_and_b32 {S(sT2)}, {S(sCS)}, 1
    s_add_u32 {S(sExtra)}, {S(sT)}, {per-1}
    s_add_u32 {S(sExtra)}, {S(sExtra)}, {S(sT2)}
    s_mul_i32 {S(sT2)}, {S(sT2)}, {per+1}
    s_add_u32 {S(sBase)}, {S(sT)}, {S(sT2)}
    """)
    if per == 7:
        b(f"""
        s_cmp_eq_u32 {S(sCS)}, 7
        s_cselect_b32 {S(sBase)}, 48, {S(sBase)}
        """)

def tile_voffs(b, per, sBase, sExtra, vA, vB, vE, unit, lanereg):
    b(f"""
    v_add_u32 {V(vA)}, {unit}, {V(lanereg)}
    v_add_u32 {V(vB)}, {5*unit}, {V(lanereg)}
    s_sub_u32 {S(sT)}, {S(sExtra)}, {S(sBase)}
    s_add_u32 {S(sT)}, {S(sT)}, 1
    s_mul_i32 {S(sT)}, {S(sT)}, {unit}
    """)
    if per == 7:
        b(f"s_cmp_ge_u32 {S(sCS)}, 6"); b(f"s_cselect_b32 {S(sT)}, {hex(OOB)}, {S(sT)}")
    b(f"v_add_u32 {V(vE)}, {S(sT)}, {V(lanereg)}")
    def at(n):
        if n == per - 1: return V(vE), 0
        return (V(vA), n * unit) if n < 4 else (V(vB), (n - 4) * unit)
    return at

def gemm(b, sWS, nks, nW, at, soffW, strideW, soffX, wreg, xreg, depth, acc, kvalid=None, xres=False, extra=None, mod=""):
    def loads(k):
        o = []
        if not xres:
            o.append(f"s_add_u32 {S(sT)}, {S(soffX)}, {k*4096}")
            if kvalid and k == nks - 1: o += [kvalid, f"s_cselect_b32 {S(sT)}, {S(sT)}, {hex(OOB)}"]
            for m in range(4): o.append(f"buffer_load_dwordx4 {xreg(k % depth, m)}, {V(vL16)}, {sWS}, {S(sT)} offen offset:{m*1024}{mod}")
        o.append(f"s_add_u32 {S(sT2)}, {S(soffW)}, {k*strideW}")
        if kvalid and k == nks - 1: o += [kvalid, f"s_cselect_b32 {S(sT2)}, {S(sT2)}, {hex(OOB)}"]
        for n in range(nW):
            v, off = at(n)
            o.append(f"buffer_load_dwordx4 {wreg(k % depth, n)}, {v}, {sWS}, {S(sT2)} offen offset:{off}{mod}")
        return toI(o)
    return loads

def run_gemm(b, nks, nW, loads, wreg, xreg, depth, acc, pre_issued, after=None, xidx=None):
    for k in range(pre_issued, min(depth - 1, nks)): b(loads(k))
    for k in range(nks):
        mf = []
        for n in range(nW):
            for m in range(4):
                mf.append(MF(acc(n, m), wreg(k % depth, n), xreg(xidx(k) if xidx else k % depth, m), acc(n, m) if k else "0"))
        sc = Sched(mf)
        nxt = k + depth - 1
        ins = loads(nxt) if nxt < nks and nxt >= pre_issued else (after(k) if after else [])
        g = 0
        for i in ins: g = sc.put(i, g) + (1 if i.kind != "vmem" else 2)
        b(sc.emit())

def reduce_lds(b, nW, acc, vW, vRd, dst, tmp):
    for n in range(nW):
        for m in range(4): b(f"ds_write_b128 {V(vW)}, {acc(n, m)} offset:{(m*nW + n)*1024}")
    b("s_waitcnt lgkmcnt(0)"); b("s_barrier")
    for n in range(nW):
        t = tmp + 12 * (n % 2)
        b(f"ds_read_b128 {V(dst+4*n,4)}, {V(vRd)} offset:{n*1024}")
        b(f"ds_read_b128 {V(t,4)}, {V(vRd)} offset:{4*nW*1024 + n*1024}")
        b(f"ds_read_b128 {V(t+4,4)}, {V(vRd+1)} offset:{n*1024}")
        b(f"ds_read_b128 {V(t+8,4)}, {V(vRd+1)} offset:{4*nW*1024 + n*1024}")
        if n: red_add(b, dst + 4*(n-1), tmp + 12*((n-1) % 2))
    red_add(b, dst + 4*(nW-1), tmp + 12*((nW-1) % 2))
def red_add(b, d, t):
    for h in (0, 2): b(f"v_pk_add_f32 {V(d+h,2)}, {V(d+h,2)}, {V(t+h,2)}")
    for h in (0, 2): b(f"v_pk_add_f32 {V(t+4+h,2)}, {V(t+4+h,2)}, {V(t+8+h,2)}")
    for h in (0, 2): b(f"v_pk_add_f32 {V(d+h,2)}, {V(d+h,2)}, {V(t+4+h,2)}")
def reduce_addrs(b, nW, vW, vRd):
    b(f"""
    s_mul_i32 {S(sT)}, {S(sWV)}, {4*nW*1024}
    v_add_u32 {V(vW)}, {S(sT)}, {V(vL16)}
    s_mul_i32 {S(sT)}, {S(sWV)}, {nW*1024}
    v_add_u32 {V(vRd)}, {S(sT)}, {V(vL16)}
    v_add_u32 {V(vRd+1)}, {8*nW*1024}, {V(vRd)}
    """)
def xg(b, r, t, op="v_add_f32"):
    for sw in ("v_permlane16_swap_b32", "v_permlane32_swap_b32"):
        b(f"v_mov_b32 {V(t)}, {V(r)}"); b(f"{sw} {V(r)}, {V(t)}"); b(f"{op} {V(r)}, {V(r)}, {V(t)}")
def row_sums(b, src, n, rs, t):
    b(f"v_pk_add_f32 {V(t,2)}, {V(src,2)}, {V(src+2,2)}")
    b(f"v_pk_mul_f32 {V(t+2,2)}, {V(src,2)}, {V(src,2)}")
    for k in range(2, n, 2):
        if k > 2: b(f"v_pk_add_f32 {V(t,2)}, {V(t,2)}, {V(src+k,2)}")
        b(f"v_pk_fma_f32 {V(t+2,2)}, {V(src+k,2)}, {V(src+k,2)}, {V(t+2,2)}")
    b(f"v_add_f32 {V(rs)}, {V(t)}, {V(t+1)}"); b(f"v_add_f32 {V(rs+1)}, {V(t+2)}, {V(t+3)}")
    xg(b, rs, t); xg(b, rs + 1, t + 1)
def fin_stats(b, st, n, t):
    b(f"v_pk_add_f32 {V(st,2)}, {V(st,2)}, {V(st+2,2)}")
    xg(b, st, t); xg(b, st + 1, t + 1)
    b(f"""
    v_mul_f32 {V(st)}, {FH(-1.0/n)}, {V(st)}
    v_mov_b32 {V(st+2)}, {FH(1e-5)}
    v_fmac_f32 {V(st+2)}, {FH(1.0/n)}, {V(st+1)}
    v_fma_f32 {V(st+2)}, -{V(st)}, {V(st)}, {V(st+2)}
    v_max_f32 {V(st+2)}, {FH(1e-5)}, {V(st+2)}
    v_rsq_f32 {V(st+2)}, {V(st+2)}
    """)
def store_act(b, sWS, per, src, base, nks, sBase, sExtra, vT, mod=""):
    for k in range(2 * per): b(f"v_cvt_pk_bf16_f32 {V(src+k)}, {V(src+2*k)}, {V(src+2*k+1)}")
    b(f"""
    s_mul_i32 {S(sT)}, {S(sRB)}, {nks*4096}
    s_lshl_b32 {S(sT2)}, {S(sWV)}, 10
    s_add_u32 {S(sT)}, {S(sT)}, {S(sT2)}
    s_add_u32 {S(sT)}, {S(sT)}, {base}
    s_lshl_b32 {S(sT2)}, {S(sBase)}, 11
    s_add_u32 {S(sT2)}, {S(sT2)}, {S(sT)}
    """)
    for p in range((per - 1) // 2):
        b(f"buffer_store_dwordx4 {V(src+4*p,4)}, {V(vL16)}, {sWS}, {S(sT2)} offen{mod}")
        b(f"s_add_u32 {S(sT2)}, {S(sT2)}, 4096")
    b(f"""
    s_lshr_b32 {S(sT2)}, {S(sExtra)}, 1
    s_lshl_b32 {S(sT2)}, {S(sT2)}, 12
    s_add_u32 {S(sT)}, {S(sT)}, {S(sT2)}
    s_and_b32 {S(sT2)}, {S(sExtra)}, 1
    s_lshl_b32 {S(sT2)}, {S(sT2)}, 3
    s_add_u32 {S(sT)}, {S(sT)}, {S(sT2)}
    """)
    if per == 7:
        b(f"s_cmp_ge_u32 {S(sCS)}, 6"); b(f"s_cselect_b32 {S(sT)}, {hex(OOB)}, {S(sT)}")
    b(f"buffer_store_dwordx2 {V(src+2*(per-1),2)}, {V(vL16)}, {sWS}, {S(sT)} offen{mod}")
def gelu(b, x, n, t, sC1, sC2):
    for k in range(0, n, 2): b(f"v_pk_mul_f32 {V(t+k,2)}, {V(x+k,2)}, {V(x+k,2)}")
    for k in range(0, n, 2): b(f"v_pk_fma_f32 {V(t+k,2)}, {V(t+k,2)}, {V(sC2,2)}, {V(sC1,2)}")
    for k in range(0, n, 2): b(f"v_pk_mul_f32 {V(t+k,2)}, {V(t+k,2)}, {V(x+k,2)}")
    for k in range(n): b(f"v_exp_f32 {V(t+k)}, {V(t+k)}")
    for k in range(0, n, 2): b(f"v_pk_add_f32 {V(t+k,2)}, {V(t+k,2)}, 1.0 op_sel_hi:[1,0]")
    for k in range(n): b(f"v_rcp_f32 {V(t+k)}, {V(t+k)}")
    for k in range(0, n, 2): b(f"v_pk_mul_f32 {V(x+k,2)}, {V(x+k,2)}, {V(t+k,2)}")

def gen_repack(name="kr_kernel", stamps=False, slot=0):
    b = B(); T = Stamper(stamps, 84, slot)
    R = prologue(b, name, ["wo", "win", "wout", "wsp", "ws"], T)
    sWS = S(R["ws"], 4)
    sId, sLb, sKs, sNb, sSrc, sDst = 54, 55, 56, 57, 58, 59
    b(f"""
    s_lshl_b32 {S(sLb)}, {S(sWV)}, 12
    v_lshrrev_b32 v4, 3, v0
    v_bfe_u32 v5, v0, 4, 2
    v_lshlrev_b32 v5, 1, v5
    v_and_b32 v6, 7, v0
    v_xor_b32 v5, v5, v6
    v_lshlrev_b32 v5, 4, v5
    v_lshrrev_b32 v6, 2, v0
    v_bfe_u32 v7, v0, 3, 2
    v_lshlrev_b32 v7, 5, v7
    v_lshl_add_u32 v7, v6, 7, v7
    v_and_b32 v6, 3, v0
    v_lshl_add_u32 v7, v6, 3, v7
    v_add_u32 v8, {S(sLb)}, v7
    v_xor_b32 v9, 32, v8
    v_xor_b32 v10, 64, v8
    v_xor_b32 v11, 96, v8
    v_bfe_u32 v7, v0, 1, 2
    v_lshlrev_b32 v7, 5, v7
    v_lshl_add_u32 v7, {V(vR)}, 7, v7
    v_lshl_add_u32 v7, {V(vG)}, 3, v7
    v_add_u32 v12, {S(sLb)}, v7
    v_xor_b32 v13, 32, v12
    v_xor_b32 v14, 64, v12
    v_xor_b32 v15, 96, v12
    """)
    b(f"""
    v_lshlrev_b32 v17, 7, v0
    v_mov_b32 v18, 0
    s_lshl_b32 {S(sT)}, s2, 13
    s_add_u32 {S(sT)}, {S(sT)}, {WS_FL2}
    s_cmp_lt_u32 s2, 9
    s_cselect_b32 {S(sT)}, {S(sT)}, {hex(OOB)}
    buffer_store_dword v18, v17, {sWS}, {S(sT)} offen
    """)
    for nm, pitch, nb, cnt, dst, nt in (("wo", 1280, 10, 1280, WS_WO, 40), ("win", 3456, 27, 540, WS_WIN, 108),
                                        ("wout", 1280, 10, 270, WS_WOUT, 40), ("wsp", 4096, 32, 2048, WS_WSP, 0)):
        b(f"""
        v_mul_u32_u24 v16, {pitch}, v4
        v_add_u32 v16, v16, v5
        s_lshl_b32 {S(sId)}, s2, 2
        s_add_u32 {S(sId)}, {S(sId)}, {S(sWV)}
        s_cmp_ge_u32 {S(sId)}, {cnt}
        s_cbranch_scc1 {name}_{nm}_done
        """)
        skip = b.flush()
        body = [f"s_mul_hi_u32 {S(sKs)}, {S(sId)}, {hex((2**32 + nb - 1)//nb)}", f"s_mul_i32 {S(sNb)}, {S(sKs)}, {nb}", f"s_sub_u32 {S(sNb)}, {S(sId)}, {S(sNb)}",
                f"s_mul_i32 {S(sSrc)}, {S(sKs)}, {32*pitch}", f"s_lshl_b32 {S(sT)}, {S(sNb)}, 7", f"s_add_u32 {S(sSrc)}, {S(sSrc)}, {S(sT)}"]
        for i in range(4):
            body += [f"s_add_u32 m0, {S(sLb)}, {i*1024}", f"s_add_u32 {S(sT)}, {S(sSrc)}, {i*8*pitch}", f"buffer_load_dwordx4 v16, {S(R[nm],4)}, {S(sT)} offen lds"]
        if nt:
            body += [f"s_mul_i32 {S(sDst)}, {S(sKs)}, {nt*1024}", f"s_lshl_b32 {S(sT)}, {S(sNb)}, 12", f"s_add_u32 {S(sDst)}, {S(sDst)}, {S(sT)}",
                     f"s_add_u32 {S(sDst)}, {S(sDst)}, {dst}", "s_waitcnt vmcnt(0)"]
            for n in range(4):
                for hf in range(2): body.append(f"ds_read_b64_tr_b16 {V(20+4*n+2*hf,2)}, {V(8+n)} offset:{hf*2048}")
            for n in range(4): body.append(f"buffer_store_dwordx4 {V(20+4*n,4)}, {V(vL16)}, {sWS}, {S(sDst)} offen offset:{n*1024}")
        else:
            body += [f"s_lshr_b32 {S(sDst)}, {S(sKs)}, 1", f"s_lshl_b32 {S(sDst)}, {S(sDst)}, 18", f"s_lshl_b32 {S(sT)}, {S(sNb)}, 13",
                     f"s_add_u32 {S(sDst)}, {S(sDst)}, {S(sT)}", f"s_and_b32 {S(sT)}, {S(sKs)}, 1", f"s_lshl_b32 {S(sT)}, {S(sT)}, 11",
                     f"s_add_u32 {S(sDst)}, {S(sDst)}, {S(sT)}", f"s_add_u32 {S(sDst)}, {S(sDst)}, {dst}", f"s_add_u32 {S(sT)}, {S(sDst)}, 4096", "s_waitcnt vmcnt(0)"]
            for ks in range(2):
                for mt in range(2):
                    for hf in range(2): body.append(f"ds_read_b64 {V(20+8*ks+4*mt+2*hf,2)}, {V(12+2*ks+hf)} offset:{mt*2048}")
            for ks in range(2):
                for mt in range(2): body.append(f"buffer_store_dwordx4 {V(20+8*ks+4*mt,4)}, {V(vL16)}, {sWS}, {S(sT if ks else sDst)} offen offset:{mt*1024}")
        body += [f"s_add_u32 {S(sId)}, {S(sId)}, 1024", f"s_cmp_lt_u32 {S(sId)}, {cnt}", f"s_cbranch_scc1 {name}_{nm}"]
        b.chain_loop([(f"{name}_{nm}", body)], align=0)
        b.label(f"{name}_{nm}_done", skip + b.flush())
    return finish(b, name, 16384, T, R, 64)

def gen_k3(name="k3_kernel", stamps=False, slot=0):
    b = B(); T = Stamper(stamps, 84, slot)
    R = prologue(b, name, ["x", "ws"], T); sWS = S(R["ws"], 4); sX = S(R["x"], 4)
    sBase, sExtra, sW, sXo = 54, 55, 56, 57
    slices(b, 5, sBase, sExtra)
    at = tile_voffs(b, 5, sBase, sExtra, 4, 5, 6, 1024, vL16)
    b(f"""
    s_mul_i32 {S(sW)}, {S(sWV)}, {32*40*1024}
    s_lshl_b32 {S(sT)}, {S(sBase)}, 10
    s_add_u32 {S(sW)}, {S(sW)}, {S(sT)}
    s_add_u32 {S(sW)}, {S(sW)}, {WS_WO - 1024}
    s_lshl_b32 {S(sXo)}, {S(sRB)}, 19
    s_lshl_b32 {S(sT)}, {S(sWV)}, 17
    s_add_u32 {S(sXo)}, {S(sXo)}, {S(sT)}
    s_add_u32 {S(sXo)}, {S(sXo)}, {WS_CTX}
    """)
    D = 4
    wreg = lambda buf, n: V(112 + 36*buf + 4*n, 4)
    xreg = lambda buf, m: V(112 + 36*buf + 20 + 4*m, 4)
    acc = lambda n, m: A(16*n + 4*m, 4)
    loads = gemm(b, sWS, 32, 5, at, sW, 40*1024, sXo, wreg, xreg, D, acc)
    for k in range(D - 1): b(loads(k))
    b(f"""
    v_lshlrev_b32 v7, 4, {V(vG)}
    v_mov_b32 v8, {hex(OOB)}
    v_cmp_gt_u32 vcc, 2, {V(vR)}
    v_mul_u32_u24 v9, 2560, {V(vR)}
    v_sub_u32 v9, {WS_MOD + 4*2560}, v9
    v_add_u32 v7, v7, v9
    v_cndmask_b32 v7, v8, v7, vcc
    s_mul_i32 {S(sT)}, {S(sWV)}, 640
    s_mul_i32 {S(sT2)}, {S(sWV)}, {5*108*1024}
    s_lshl_b32 {S(sT3)}, s2, 10
    s_add_u32 {S(sT2)}, {S(sT2)}, {S(sT3)}
    s_add_u32 {S(sT2)}, {S(sT2)}, {WS_WIN}
    s_cmp_lt_u32 s2, 108
    s_cselect_b32 {S(sT2)}, {S(sT2)}, {hex(OOB)}
    """)
    for k in range(5):
        for hf in range(2): b(f"buffer_load_dwordx4 {V(16+8*k+4*hf,4)}, v7, {sWS}, {S(sT)} offen offset:{128*k+64*hf}")
        b(f"buffer_load_dwordx4 {V(56+4*k,4)}, {V(vL16)}, {sWS}, {S(sT2)} offen")
        b(f"s_add_u32 {S(sT2)}, {S(sT2)}, {108*1024}")
    for k in range(5):
        for j in range(4): b(f"v_cvt_pk_bf16_f32 {V(16+8*k+j)}, {V(16+8*k+2*j)}, {V(16+8*k+2*j+1)}")
        b(MF(A(80,4), V(16+8*k,4), V(56+4*k,4), A(80,4) if k else "0"))
    XP, GA, AB = 16, 32, 56
    def epi_loads():
        bb = B()
        bb(f"""
        v_lshlrev_b32 v12, 3, {V(vG)}
        v_mul_u32_u24 v13, 1280, {V(vR)}
        v_add_u32 v12, v12, v13
        v_lshlrev_b32 v13, 4, {V(vG)}
        s_lshl_b32 {S(58)}, {S(sRB)}, 2
        s_add_u32 {S(58)}, {S(58)}, {S(sWV)}
        s_mul_i32 {S(58)}, {S(58)}, {16*1280}
        s_lshl_b32 {S(59)}, {S(sExtra)}, 5
        s_add_u32 {S(59)}, {S(59)}, {S(58)}
        s_lshl_b32 {S(60)}, {S(sBase)}, 5
        s_add_u32 {S(58)}, {S(58)}, {S(60)}
        s_lshl_b32 {S(60)}, {S(sBase)}, 6
        s_add_u32 {S(60)}, {S(60)}, {WS_MOD + 2*2560}
        s_lshl_b32 {S(61)}, {S(sExtra)}, 6
        s_add_u32 {S(61)}, {S(61)}, {WS_MOD + 2*2560}
        s_add_u32 {S(62)}, {S(60)}, {2*2560}
        s_add_u32 {S(63)}, {S(61)}, {2*2560}
        """)
        for n in range(5):
            bb(f"buffer_load_dwordx2 {V(XP+2*n,2)}, v12, {sX}, {S(58 if n < 4 else 59)} offen offset:{32*n if n < 4 else 0}")
            bb(f"buffer_load_dwordx4 {V(GA+4*n,4)}, v13, {sWS}, {S(60 if n < 4 else 61)} offen offset:{64*n if n < 4 else 0}")
            bb(f"buffer_load_dwordx4 {V(AB+4*n,4)}, v13, {sWS}, {S(62 if n < 4 else 63)} offen offset:{64*n if n < 4 else 0}")
        return bb.cur
    el = epi_loads()
    run_gemm(b, 32, 5, loads, wreg, xreg, D, acc, D - 1, after=lambda k: {29: el[:17], 30: el[17:25], 31: el[25:]}[k])
    T.stamp(b, "gemm")
    reduce_addrs(b, 5, 8, 9)
    b(f"s_lshl_b32 {S(sT)}, {S(sWV)}, 10"); b(f"s_add_u32 {S(sT)}, {S(sT)}, {80*1024}"); b(f"v_add_u32 v11, {S(sT)}, {V(vL16)}")
    b(f"ds_write_b128 v11, {A(80,4)}")
    Y = 80
    reduce_lds(b, 5, acc, 8, 9, Y, 112)
    b(f"v_add_u32 v11, {80*1024}, {V(vL16)}")
    for w in range(4): b(f"ds_read_b64 {V(140+2*w,2)}, v11 offset:{w*1024}")
    for n in range(5):
        for j in range(2):
            b(f"v_lshlrev_b32 v112, 16, {V(XP+2*n+j)}"); b(f"v_and_b32 v113, 0xffff0000, {V(XP+2*n+j)}")
            b(f"v_pk_fma_f32 {V(Y+4*n+2*j,2)}, {V(Y+4*n+2*j,2)}, {V(GA+4*n+2*j,2)}, v[112:113]")
    b(f"""
    s_lshl_b32 {S(sT)}, s2, 2
    s_add_u32 {S(sT)}, {S(sT)}, {S(sWV)}
    s_mul_i32 {S(sT)}, {S(sT)}, 5120
    s_add_u32 {S(sT)}, {S(sT)}, {WS_X1}
    s_add_u32 {S(sT2)}, {S(sT)}, 4096
    """)
    for n in range(5): b(f"buffer_store_dwordx4 {V(Y+4*n,4)}, {V(vL16)}, {sWS}, {S(sT if n < 4 else sT2)} offen offset:{(n % 4)*1024}")
    row_sums(b, Y, 20, 116, 112)
    b(f"""
    v_lshlrev_b32 v12, 6, {V(vR)}
    v_mov_b32 v13, {hex(OOB)}
    v_cmp_eq_u32 vcc, 0, {V(vG)}
    v_cndmask_b32 v12, v13, v12, vcc
    s_lshl_b32 {S(sT)}, {S(sRB)}, 2
    s_add_u32 {S(sT)}, {S(sT)}, {S(sWV)}
    s_lshl_b32 {S(sT)}, {S(sT)}, 10
    s_lshl_b32 {S(sT2)}, {S(sCS)}, 3
    s_add_u32 {S(sT)}, {S(sT)}, {S(sT2)}
    s_add_u32 {S(sT)}, {S(sT)}, {WS_ST1}
    buffer_store_dwordx2 v[116:117], v12, {sWS}, {S(sT)} offen
    v_pk_add_f32 v[140:141], v[140:141], v[142:143]
    v_pk_add_f32 v[144:145], v[144:145], v[146:147]
    v_pk_add_f32 v[140:141], v[140:141], v[144:145]
    v_lshlrev_b32 v14, 2, {V(vR)}
    v_cndmask_b32 v14, v13, v14, vcc
    s_lshl_b32 {S(sT)}, s2, 6
    s_add_u32 {S(sT)}, {S(sT)}, {WS_VEC}
    s_cmp_lt_u32 s2, 108
    s_cselect_b32 {S(sT)}, {S(sT)}, {hex(OOB)}
    s_add_u32 {S(sT2)}, {S(sT)}, 0x2000
    buffer_store_dword v140, v14, {sWS}, {S(sT)} offen
    buffer_store_dword v141, v14, {sWS}, {S(sT2)} offen
    """)
    for k in range(0, 20, 2): b(f"v_pk_mul_f32 {V(GA+k,2)}, {V(Y+k,2)}, {V(AB+k,2)}")
    store_act(b, sWS, 5, GA, WS_XA, 20, sBase, sExtra, 12)
    return finish(b, name, 84 * 1024, T, R)

def gen_k4(name="k4_kernel", stamps=False, slot=0):
    b = B(); T = Stamper(stamps, 84, slot)
    R = prologue(b, name, ["ws", "dbg"], T); sWS = S(R["ws"], 4); sDBG = S(R["dbg"], 4)
    sBase, sExtra, sW1, sW2, sXo, sRow = 54, 55, 56, 57, 58, 59
    slices(b, 7, sBase, sExtra)
    at = tile_voffs(b, 7, sBase, sExtra, 4, 5, 6, 1024, vL16)
    b(f"""
    s_mul_i32 {S(sW1)}, {S(sWV)}, {5*108*1024}
    s_lshl_b32 {S(sT)}, {S(sBase)}, 10
    s_add_u32 {S(sW1)}, {S(sW1)}, {S(sT)}
    s_add_u32 {S(sW1)}, {S(sW1)}, {WS_WIN - 1024}
    s_add_u32 {S(sW2)}, {S(sW1)}, {54*1024}
    s_mul_i32 {S(sXo)}, {S(sRB)}, {20*4096}
    s_mul_i32 {S(sT)}, {S(sWV)}, {5*4096}
    s_add_u32 {S(sXo)}, {S(sXo)}, {S(sT)}
    s_add_u32 {S(sXo)}, {S(sXo)}, {WS_XA}
    """)
    acc = lambda n, m: A(16*n + 4*m, 4)
    wreg = lambda buf, n: A(112 + 28*buf + 4*n, 4)
    xreg = lambda buf, m: V(176 + 16*buf + 4*m, 4)
    l2 = gemm(b, sWS, 5, 7, at, sW2, 108*1024, sXo, wreg, xreg, 5, acc)
    l1 = gemm(b, sWS, 5, 7, at, sW1, 108*1024, sXo, wreg, xreg, 5, acc, xres=True)
    for k in range(5): b(l2(k))
    ST = 12
    b(f"""
    v_lshlrev_b32 v7, 6, {V(vR)}
    v_lshl_add_u32 v7, {V(vG)}, 4, v7
    s_lshl_b32 {S(sRow)}, {S(sRB)}, 2
    s_add_u32 {S(sRow)}, {S(sRow)}, {S(sWV)}
    s_lshl_b32 {S(sRow)}, {S(sRow)}, 10
    s_add_u32 {S(sT)}, {S(sRow)}, {WS_ST1}
    buffer_load_dwordx4 {V(ST,4)}, v7, {sWS}, {S(sT)} offen
    v_lshlrev_b32 v20, 4, {V(vG)}
    """)
    atv = tile_voffs(b, 7, sBase, sExtra, 21, 22, 23, 64, 20)
    V1, V2, Z, TM, Z2 = 32, 60, 88, 116, 144
    def vecloads(half):
        o = [f"s_lshl_b32 s60, {S(sBase)}, 6", f"s_add_u32 s60, s60, {WS_VEC - 64 + half*54*64}", "s_add_u32 s61, s60, 0x2000"]
        for n in range(7):
            v, off = atv(n)
            o += [f"buffer_load_dwordx4 {V(V1+4*n,4)}, {v}, {sWS}, s60 offen offset:{off}", f"buffer_load_dwordx4 {V(V2+4*n,4)}, {v}, {sWS}, s61 offen offset:{off}"]
        return toI(o)
    reduce_addrs(b, 7, 8, 9)
    b(f"v_mov_b32 v24, {FH(-GC1)}"); b(f"v_mov_b32 v25, {FH(-GC1)}"); b(f"v_mov_b32 v26, {FH(-GC2)}"); b(f"v_mov_b32 v27, {FH(-GC2)}")
    vl = vecloads(1)
    run_gemm(b, 5, 7, l2, wreg, xreg, 5, acc, 5, after=lambda k: (vl if k == 0 else []) + (l1(k - 1) if k >= 1 else []))
    b(l1(4))
    T.stamp(b, "g2")
    fin_stats(b, ST, 640, 16)
    def apply(dst):
        reduce_lds(b, 7, acc, 8, 9, dst, TM)
        for k in range(0, 28, 2): b(f"v_pk_fma_f32 {V(dst+k,2)}, {V(V1+k,2)}, {V(ST,2)}, {V(dst+k,2)} op_sel_hi:[1,0,1]")
        for k in range(0, 28, 2): b(f"v_pk_fma_f32 {V(dst+k,2)}, {V(dst+k,2)}, {V(ST+2,2)}, {V(V2+k,2)} op_sel_hi:[1,0,1]")
    apply(Z2)
    b(vecloads(0))
    gelu(b, Z2, 28, TM, 24, 26)
    row_sums(b, Z2, 28, 16, TM)
    b(f"""
    v_lshlrev_b32 v18, 6, {V(vR)}
    v_mov_b32 v19, {hex(OOB)}
    v_cmp_eq_u32 vcc, 0, {V(vG)}
    v_cndmask_b32 v18, v19, v18, vcc
    s_lshl_b32 {S(sT2)}, {S(sCS)}, 3
    s_add_u32 {S(sT)}, {S(sRow)}, {S(sT2)}
    s_add_u32 {S(sT)}, {S(sT)}, {WS_ST2}
    buffer_store_dwordx2 v[16:17], v18, {sWS}, {S(sT)} offen sc1
    s_lshl_b32 {S(sT)}, {S(sRB)}, 2
    v_mov_b32 v28, {S(sT)}
    s_cmp_eq_u32 {S(sWV)}, 0
    s_cselect_b32 {S(sT)}, {S(sT)}, {hex(OOB)}
    v_writelane_b32 v19, {S(sT)}, 0
    v_mov_b32 v18, 1
    s_waitcnt vmcnt(0)
    s_barrier
    buffer_atomic_add v18, v19, {sDBG}, 0 offen
    """)
    T.stamp(b, "e2")
    run_gemm(b, 5, 7, l1, wreg, xreg, 5, acc, 5)
    poll = f"buffer_load_dword v29, v28, {sDBG}, 0 offen sc1"
    apply(Z)
    b(poll)
    gelu(b, Z, 28, TM, 24, 26)
    b(f"""
    s_lshl_b32 {S(sT)}, s2, 2
    s_add_u32 {S(sT)}, {S(sT)}, {S(sWV)}
    s_mul_i32 {S(sT)}, {S(sT)}, 7168
    s_add_u32 s60, {S(sT)}, {WS_Z1}
    s_add_u32 s61, s60, 4096
    """)
    T.stamp(b, "e1")
    spin(b, name + "_p", 29, poll, 8)
    b(f"s_add_u32 {S(sT)}, {S(sRow)}, {WS_ST2}")
    b(f"buffer_load_dwordx4 {V(ST,4)}, v7, {sWS}, {S(sT)} offen sc1")
    for n in range(7): b(f"buffer_store_dwordx4 {V(Z+4*n,4)}, {V(vL16)}, {sWS}, {'s60' if n < 4 else 's61'} offen offset:{(n % 4)*1024}")
    fin_stats(b, ST, 864, 16)
    b(f"v_mul_f32 {V(ST)}, {V(ST)}, {V(ST+2)}")
    for k in range(0, 28, 2): b(f"v_pk_fma_f32 {V(Z2+k,2)}, {V(Z2+k,2)}, {V(ST+2,2)}, {V(ST,2)} op_sel_hi:[1,0,0]")
    for k in range(14): b(f"v_cvt_pk_bf16_f32 {V(Z2+k)}, {V(Z2+2*k)}, {V(Z2+2*k+1)}")
    TB = 112 * 1024
    b(f"""
    v_lshlrev_b32 v16, 5, {V(vR)}
    v_lshl_add_u32 v16, {V(vG)}, 3, v16
    s_lshl_b32 {S(sT)}, {S(sWV)}, 9
    s_add_u32 {S(sT)}, {S(sT)}, {TB}
    v_add_u32 v16, {S(sT)}, v16
    """)
    for n in range(7): b(f"ds_write_b64 v16, {V(Z2+2*n,2)} offset:{n*2048}")
    b(f"""
    s_and_b32 {S(sT)}, {S(sWV)}, 1
    s_lshr_b32 {S(sT2)}, {S(sWV)}, 1
    s_lshl_b32 {S(sT3)}, {S(sT)}, 10
    s_lshl_b32 s60, {S(sT2)}, 13
    s_add_u32 {S(sT3)}, {S(sT3)}, s60
    s_add_u32 {S(sT3)}, {S(sT3)}, {TB}
    v_lshl_add_u32 v17, v0, 3, {S(sT3)}
    s_lshl_b32 s60, {S(sRB)}, 1
    s_add_u32 s60, s60, {S(sT)}
    s_mul_i32 s60, s60, {54*1024}
    s_add_u32 s60, s60, {WS_Z2}
    s_lshl_b32 s61, {S(sT2)}, 2
    s_add_u32 s61, s61, {S(sBase)}
    s_lshl_b32 s61, s61, 10
    s_add_u32 s61, s61, s60
    s_lshl_b32 s62, {S(sExtra)}, 10
    s_add_u32 s62, s62, s60
    s_cmp_ge_u32 {S(sCS)}, 6
    s_cselect_b32 s62, {hex(OOB)}, s62
    s_add_u32 s63, s61, 2048
    s_add_u32 s64, s61, 3072
    s_cmp_eq_u32 {S(sT2)}, 1
    s_cselect_b32 s63, s62, s63
    s_cselect_b32 s64, {hex(OOB)}, s64
    s_waitcnt lgkmcnt(0)
    s_barrier
    """)
    for n in range(4):
        for hf in range(2): b(f"ds_read_b64_tr_b16 {V(TM+4*n+2*hf,2)}, v17 offset:{n*2048 + hf*512}")
    for n in range(4):
        b(f"buffer_store_dwordx4 {V(TM+4*n,4)}, {V(vL16)}, {sWS}, {('s61','s61','s63','s64')[n]} offen offset:{1024 if n == 1 else 0}")
    return finish(b, name, 128 * 1024, T, R)

def spin(b, lab, vreg, poll, target):
    b(f"@need {V(vreg)}")
    b(f"v_cmp_gt_u32 vcc, {target}, {V(vreg)}")
    b(f"s_cbranch_vccz {lab}_ok")
    sts = b.flush()
    b(f"s_mov_b32 {S(sT3)}, 0")
    b.label(f"{lab}_spin")
    b(poll)
    b(f"s_add_u32 {S(sT3)}, {S(sT3)}, 1")
    b(f"s_cmp_gt_u32 {S(sT3)}, {SPIN_MAX}")
    b("s_waitcnt vmcnt(0)")
    b(f"s_cbranch_scc1 {lab}_ok")
    b(f"v_cmp_gt_u32 vcc, {target}, {V(vreg)}")
    b(f"s_cbranch_vccnz {lab}_spin")
    b.label(f"{lab}_ok", sts + b.flush())

def gen_k5(name="k5_kernel", stamps=False, slot=0):
    b = B(); T = Stamper(stamps, 84, slot)
    R = prologue(b, name, ["ws", "bsp"], T); sWS = S(R["ws"], 4)
    sBase, sExtra, sW, sXo = 54, 55, 56, 57
    slices(b, 7, sBase, sExtra)
    at = tile_voffs(b, 7, sBase, sExtra, 4, 5, 6, 1024, vL16)
    b(f"""
    s_mul_i32 {S(sW)}, {S(sWV)}, {16*54*1024}
    s_lshl_b32 {S(sT)}, {S(sBase)}, 10
    s_add_u32 {S(sW)}, {S(sW)}, {S(sT)}
    s_add_u32 {S(sW)}, {S(sW)}, {WS_Z2 - 1024}
    s_lshl_b32 {S(sXo)}, {S(sRB)}, 18
    s_lshl_b32 {S(sT)}, {S(sWV)}, 16
    s_add_u32 {S(sXo)}, {S(sXo)}, {S(sT)}
    s_add_u32 {S(sXo)}, {S(sXo)}, {WS_WSP}
    """)
    D = 4
    wreg = lambda buf, n: V(80 + 44*buf + 4*n, 4)
    xreg = lambda buf, m: V(80 + 44*buf + 28 + 4*m, 4)
    acc = lambda n, m: A(16*n + 4*m, 4)
    loads = gemm(b, sWS, 16, 7, at, sW, 54*1024, sXo, wreg, xreg, D, acc)
    Z1, G = 16, 44
    el = toI([f"s_lshl_b32 s60, s2, 2", f"s_add_u32 s60, s60, {S(sWV)}", "s_mul_i32 s60, s60, 7168", f"s_add_u32 s60, s60, {WS_Z1}", "s_add_u32 s61, s60, 4096",
              f"s_lshl_b32 s62, {S(sRB)}, 2", f"s_add_u32 s62, s62, {S(sWV)}", "s_lshl_b32 s62, s62, 5", f"v_lshlrev_b32 v7, 1, {V(vR)}"])
    el2 = toI([f"buffer_load_dwordx4 {V(Z1+4*n,4)}, {V(vL16)}, {sWS}, {'s60' if n < 4 else 's61'} offen offset:{(n % 4)*1024}" for n in range(7)]
              + [f"buffer_load_ushort v12, v7, {S(R['bsp'],4)}, s62 offen"])
    run_gemm(b, 16, 7, loads, wreg, xreg, D, acc, 0, after=lambda k: {13: el, 14: el2, 15: []}[k])
    T.stamp(b, "gemm")
    reduce_addrs(b, 7, 8, 9)
    reduce_lds(b, 7, acc, 8, 9, G, 80)
    b("v_lshlrev_b32 v12, 16, v12")
    for k in range(0, 28, 2): b(f"v_pk_add_f32 {V(G+k,2)}, {V(G+k,2)}, v[12:13] op_sel_hi:[1,0]")
    for k in range(0, 28, 2): b(f"v_pk_mul_f32 {V(G+k,2)}, {V(G+k,2)}, {V(Z1+k,2)}")
    store_act(b, sWS, 7, G, WS_U, 27, sBase, sExtra, 12)
    return finish(b, name, 112 * 1024, T, R)

def gen_k6(name="k6_kernel", stamps=False, slot=0):
    b = B(); T = Stamper(stamps, 84, slot)
    R = prologue(b, name, ["ws", "out"], T); sWS = S(R["ws"], 4)
    sBase, sExtra, sW, sXo = 54, 55, 56, 57
    slices(b, 5, sBase, sExtra)
    at = tile_voffs(b, 5, sBase, sExtra, 4, 5, 6, 1024, vL16)
    b(f"""
    s_mul_i32 {S(sW)}, {S(sWV)}, {7*40*1024}
    s_lshl_b32 {S(sT)}, {S(sBase)}, 10
    s_add_u32 {S(sW)}, {S(sW)}, {S(sT)}
    s_add_u32 {S(sW)}, {S(sW)}, {WS_WOUT - 1024}
    s_mul_i32 {S(sXo)}, {S(sRB)}, {27*4096}
    s_mul_i32 {S(sT)}, {S(sWV)}, {7*4096}
    s_add_u32 {S(sXo)}, {S(sXo)}, {S(sT)}
    s_add_u32 {S(sXo)}, {S(sXo)}, {WS_U}
    """)
    D = 4
    wreg = lambda buf, n: V(112 + 36*buf + 4*n, 4)
    xreg = lambda buf, m: V(112 + 36*buf + 20 + 4*m, 4)
    acc = lambda n, m: A(16*n + 4*m, 4)
    loads = gemm(b, sWS, 7, 5, at, sW, 40*1024, sXo, wreg, xreg, D, acc, kvalid=f"s_cmp_lt_u32 {S(sWV)}, 3")
    X1, GB, Y = 16, 36, 56
    el = toI([f"s_lshl_b32 s60, s2, 2", f"s_add_u32 s60, s60, {S(sWV)}", "s_mul_i32 s60, s60, 5120", f"s_add_u32 s60, s60, {WS_X1}", "s_add_u32 s61, s60, 4096",
              f"s_lshl_b32 s62, {S(sBase)}, 6", f"s_add_u32 s62, s62, {WS_MOD + 5*2560}", f"s_lshl_b32 s63, {S(sExtra)}, 6", f"s_add_u32 s63, s63, {WS_MOD + 5*2560}",
              f"v_lshlrev_b32 v7, 4, {V(vG)}"])
    el2 = toI([f"buffer_load_dwordx4 {V(X1+4*n,4)}, {V(vL16)}, {sWS}, {'s60' if n < 4 else 's61'} offen offset:{(n % 4)*1024}" for n in range(5)]
              + [f"buffer_load_dwordx4 {V(GB+4*n,4)}, v7, {sWS}, {'s62' if n < 4 else 's63'} offen offset:{(n % 4)*64}" for n in range(5)])
    run_gemm(b, 7, 5, loads, wreg, xreg, D, acc, 0, after=lambda k: {4: el, 5: el2, 6: []}[k])
    T.stamp(b, "gemm")
    reduce_addrs(b, 5, 8, 9)
    reduce_lds(b, 5, acc, 8, 9, Y, 112)
    for k in range(0, 20, 2): b(f"v_pk_fma_f32 {V(Y+k,2)}, {V(Y+k,2)}, {V(GB+k,2)}, {V(X1+k,2)}")
    for k in range(10): b(f"v_cvt_pk_bf16_f32 {V(Y+k)}, {V(Y+2*k)}, {V(Y+2*k+1)}")
    b(f"""
    v_lshlrev_b32 v12, 3, {V(vG)}
    v_mul_u32_u24 v13, 1280, {V(vR)}
    v_add_u32 v12, v12, v13
    s_lshl_b32 s58, {S(sRB)}, 2
    s_add_u32 s58, s58, {S(sWV)}
    s_mul_i32 s58, s58, {16*1280}
    s_lshl_b32 s59, {S(sExtra)}, 5
    s_add_u32 s59, s59, s58
    s_lshl_b32 s60, {S(sBase)}, 5
    s_add_u32 s58, s58, s60
    """)
    for n in range(5): b(f"buffer_store_dwordx2 {V(Y+2*n,2)}, v12, {S(R['out'],4)}, {'s58' if n < 4 else 's59'} offen offset:{32*n if n < 4 else 0}")
    return finish(b, name, 80 * 1024, T, R)
```

```python
import sys; sys.path.insert(0,'gen')
import ka, kf2, build
NAME = "adaLN_cond__compressed_kv_cla__mixer_gmlp__prompt_kernel"
def mk(path, st=False, ka_kw={}, kf_kw={}):
    kw = dict(QEND=84, NTS='', PST=' sc1'); kw.update(ka_kw)
    kf = dict(kf_kw)
    if st and "few" not in kf: kf["few"] = ("arrP", "gotP", "red", "gotA", "gotC", "g4", "gotD")
    k = ka.gen(name=NAME, stamps=st, tail=kf2.fused(**kf), **kw)
    k["text"] = k["text"].replace(NAME + "_", "L_")
    build.assemble([k], path)
    return ",".join(k["stamps"])
if __name__ == "__main__":
    print(mk("v5s.s", True)); mk("v5.s", False); mk("v5l.s", False, dict(aslist=True))
```

```python
from common import *

QSCALE = LOG2E / (128 ** 0.5)
NEGBIG = -1.0e30
L_LO, L_HI = 2.0 ** -40, 2.0 ** 40
DB_MOD, DB_MO2 = 0, 32
FL_H, FL_KV, FL_CX, FL_P, FL_R, FL_K0 = 0, 16, 64, 320, 448, 480
CODE_BYTES = 50000
SPIN_MAX = 1000000

def gen(name="ka_kernel", stamps=False, force_fallback=False, fine=False, PF=True, END=72, QEND=104, QST=(7, 3, 3, 3), BA=46, MW=24, QF=24, QB=5, PFP=8, NC1=6, MS0=True, PMG=54, CPF=True, JST=10, drop=(), QMIX=False, DWS=3, KVM=' sc1', M2=False, VST=4, OA=44, OD=5, OW=28, NTS='jm', PST='', total_code=None, tail=None, aslist=False, afew=None, drop2=()):
    b = B()
    T = Stamper(stamps, 84, 0)
    if afew is not None:
        _st = T.stamp
        T.stamp = lambda b_, nm, cond=None: _st(b_, nm, cond) if (nm in afew or nm not in ("C0", "kvstart", "kvend", "qend", "blk1end", "attend", "end")) else None
    SC = ' sc1' if tail else ''
    nt = lambda c: ' nt' if c in NTS else ''
    b(f"{name}:")
    b("s_cmp_ge_u32 s2, 256")
    b(f"s_cbranch_scc1 {name}_end")
    T.stamp(b, "start")
    names_ = ["x", "ckv", "wq", "wuk", "wuv", "ws", "dbg", "wmod", "c"]
    R = {n: 8 + 4*i for i, n in enumerate(names_)}
    for n in ("ckv", "wuk", "wuv", "x", "wq", "ws", "dbg", "wmod", "c"): b(f"s_load_dwordx2 {S(R[n],2)}, s[0:1], {ARG[n]}")
    def build_rest():
        for n in names_:
            if n == "ckv": continue
            b(f"s_mov_b32 {S(R[n]+2)}, {hex(SIZE[n])}"); b(f"s_mov_b32 {S(R[n]+3)}, 0x20000")
    sX, sCKV, sWQ, sWS, sDBG, sWM, sC = (S(R[n], 4) for n in ("x", "ckv", "wq", "ws", "dbg", "wmod", "c"))
    WU = 44; sWU = S(WU, 4)
    sWV, sHD, sJ = 48, 49, 50
    sT, sT2, sT3 = 51, 52, 53
    sCb, sWb, sLw = 54, 55, 56
    sRot = 57
    sBLK, sBLK2, sS, sN = 58, 59, 60, 61
    sKo, sVo, sKb, sVb = 62, 63, 64, 65
    sKs, sVs = 66, 67
    sPass, sSafe = 68, 69
    sHb = 70; sVar = 71
    sMK = 72
    b(f"""
    v_lshrrev_b32 v1, 6, v0
    v_and_b32 v0, 63, v0
    v_readfirstlane_b32 {S(sWV)}, v1
    s_and_b32 {S(sT)}, s2, 7
    s_lshr_b32 {S(sT2)}, s2, 3
    s_and_b32 {S(sHD)}, {S(sT2)}, 3
    s_lshl_b32 {S(sT3)}, {S(sT)}, 2
    s_add_u32 {S(sHD)}, {S(sHD)}, {S(sT3)}
    s_lshr_b32 {S(sJ)}, {S(sT2)}, 2
    v_lshrrev_b32 v21, 4, v0
    v_and_b32 v22, 15, v0
    v_and_b32 v24, 7, v0
    v_xor_b32 v24, v24, v21
    v_lshrrev_b32 v25, 3, v0
    v_lshlrev_b32 v25, 10, v25
    v_lshl_add_u32 v1, v24, 4, v25
    v_xor_b32 v2, 64, v1
    v_add_u32 v2, 8192, v2
    v_lshlrev_b32 v24, 1, v21
    v_xor_b32 v24, v22, v24
    v_lshlrev_b32 v25, 13, v21
    v_lshl_add_u32 v3, v24, 4, v25
    v_xor_b32 v4, 128, v3
    s_mov_b32 {S(R['ckv']+2)}, {hex(SIZE['ckv'])}
    s_mov_b32 {S(R['ckv']+3)}, 0x20000
    s_waitcnt lgkmcnt(0)
    s_cmp_ge_u32 {S(sWV)}, 2
    s_cselect_b32 {S(WU)}, {S(R['wuv'])}, {S(R['wuk'])}
    s_cselect_b32 {S(WU+1)}, {S(R['wuv']+1)}, {S(R['wuk']+1)}
    s_mov_b32 {S(WU+2)}, {hex(SIZE['wuk'])}
    s_mov_b32 {S(WU+3)}, 0x20000
    """)
    MB = 128 * 1024
    sCG, sMB, sQb, sKq = 80, 81, 82, 83
    vC0, vC1, vW0, vW1 = 1, 2, 3, 4
    vRC0, vRC1 = 5, 6
    vRW = 7
    vL16 = 15
    vPW, vPQ, vMo, vDum = 12, 13, 14, 23
    b(f"""
    s_sub_u32 {S(sBLK)}, 15, {S(sJ)}
    s_mov_b32 {S(sBLK2)}, {S(sJ)}
    s_and_b32 {S(sT)}, {S(sWV)}, 1
    s_lshl_b32 {S(sWb)}, {S(sT)}, 18
    s_lshl_b32 {S(sT2)}, {S(sHD)}, 8
    s_add_u32 {S(sWb)}, {S(sWb)}, {S(sT2)}
    s_cmp_ge_u32 {S(sWV)}, 2
    s_cselect_b32 {S(sCb)}, {S(sBLK2)}, {S(sBLK)}
    s_lshl_b32 {S(sCb)}, {S(sCb)}, 17
    s_lshl_b32 {S(sT3)}, {S(sT)}, 16
    s_add_u32 {S(sCb)}, {S(sCb)}, {S(sT3)}
    s_lshl_b32 {S(sLw)}, {S(sWV)}, 13
    """)
    def dmaC(s):
        o = []
        for i in range(8):
            o.append((f"s_add_u32 m0, {S(sLw)}, {65536 + (s & 1) * 32768 + i * 1024}",
                      f"s_add_u32 {S(sT)}, {S(sCb)}, {(i >> 1) * 16384 + s * 128}",
                      I(f"buffer_load_dwordx4 {V(vC1 if i & 1 else vC0)}, {sCKV}, {S(sT)} offen lds", f"C{s}")))
        return o
    def dmaW(s):
        o = []
        for i in range(8):
            o.append((f"s_add_u32 m0, {S(sLw)}, {(s & 1) * 32768 + i * 1024}",
                      f"s_add_u32 {S(sT)}, {S(sWb)}, {(s * 64 + 4 * i) * 8192}",
                      I(f"buffer_load_dwordx4 {V(vW1 if (i >> 1) & 1 else vW0)}, {sWU}, {S(sT)} offen{nt('W')} lds", f"W{s}")))
        return o
    def dmaQ(s):
        o = []
        for i in range(8):
            o.append((f"s_add_u32 m0, {S(sLw)}, {65536 + (s & 1) * 32768 + i * 1024}",
                      f"s_add_u32 {S(sT)}, {S(sQb)}, {(s * 128 + 4 * i) * 8192}",
                      I(f"buffer_load_dwordx4 {V(vW1 if (i >> 1) & 1 else vW0)}, {sWQ}, {S(sT)} offen{nt('Q')} lds", f"Q{s}")))
        return o
    sPW = 57
    def pf_setup():
        b(f"""
        s_and_b32 s6, {S(sWV)}, 1
        v_lshrrev_b32 v24, 1, v0
        v_lshlrev_b32 v24, 13, v24
        v_and_b32 v25, 1, v0
        v_lshl_add_u32 v24, v25, 7, v24
        v_mov_b32 v25, {hex(OOB)}
        v_cmp_gt_u32 vcc, 16, v0
        v_cndmask_b32 {V(vPW)}, v25, v24, vcc
        v_lshlrev_b32 v26, 7, v0
        v_cndmask_b32 v26, v25, v26, vcc
        v_cmp_gt_u32 vcc, 20, v0
        v_cndmask_b32 {V(vPQ)}, v25, v24, vcc
        s_lshl_b32 {S(sPW)}, s6, 19
        s_lshl_b32 {S(sT3)}, {S(sJ)}, 16
        s_add_u32 {S(sPW)}, {S(sPW)}, {S(sT3)}
        s_add_u32 {S(sPW)}, {S(sPW)}, {S(sT2)}
        s_lshl_b32 {S(sT3)}, s2, 2
        s_add_u32 {S(sT3)}, {S(sT3)}, {S(sWV)}
        s_lshl_b32 {S(sT3)}, {S(sT3)}, 11
        v_add_u32 v90, {S(sT3)}, v26
        s_add_u32 s6, {S(sPW)}, {64*8192}
        buffer_load_dword {V(vDum)}, v90, {sCKV}, 0 offen
        buffer_load_dword {V(vDum)}, {V(vPW)}, {sWU}, s6 offen{nt('w')}
        """)
    first = dmaC(0) + dmaW(0) + dmaC(1)[:NC1]
    for k, d in enumerate(first + [None]):
        if k == min(PFP, len(first)): pf_setup()
        if k == 8: build_rest()
        if d: b(list(d))
    b(f"""
    s_lshl_b32 {S(sQb)}, {S(sWV)}, 18
    s_add_u32 {S(sQb)}, {S(sQb)}, {S(sT2)}
    s_getpc_b64 s[4:5]
    {name}_pc1:
    s_lshr_b32 {S(sT)}, s2, 3
    s_lshl_b32 {S(sT)}, {S(sT)}, 2
    s_add_u32 {S(sT)}, {S(sT)}, {S(sWV)}
    s_lshl_b32 {S(sT)}, {S(sT)}, 10
    v_and_b32 v91, 7, v0
    v_lshl_add_u32 v91, v91, 7, {S(sT)}
    v_min_u32 v91, code_end - {name}_pc1 - 4, v91
    """)
    def pfW(t): return toI([f"s_add_u32 {S(sT2)}, {S(sPW)}, {(2*t + 1)*64*8192}", f"buffer_load_dword {V(vDum)}, {V(vPW)}, {sWU}, {S(sT2)} offen{nt('w')}"])
    def pfQ(t):
        return toI([f"s_lshl_b32 {S(sT2)}, {S(sJ)}, 2", f"s_add_u32 {S(sT2)}, {S(sT2)}, {S(sWV)}", f"s_mul_i32 {S(sT2)}, {S(sT2)}, {10*8192}",
                    f"s_lshl_b32 s7, {S(sHD)}, 8", f"s_add_u32 {S(sT2)}, {S(sT2)}, s7", f"s_add_u32 {S(sT2)}, {S(sT2)}, {t*320*8192}",
                    f"buffer_load_dword {V(vDum)}, {V(vPQ)}, {sWQ}, {S(sT2)} offen{nt('q')}"])
    pf0 = [toI([f"buffer_load_dword {V(vDum)}, v90, {sCKV}, 0 offen"]), pfW(0), toI([f"global_load_dword {V(vDum)}, v91, s[4:5]"])]
    b(f"""
    s_lshr_b32 {S(sCG)}, s2, 2
    s_and_b32 {S(sKq)}, s2, 3
    s_lshl_b32 {S(sMB)}, {S(sWV)}, 10
    s_add_u32 {S(sMB)}, {S(sMB)}, {MB + 20480}
    v_lshrrev_b32 v24, 3, v0
    v_mul_u32_u24 v24, 7680, v24
    v_and_b32 v25, 7, v0
    v_lshl_add_u32 {V(vMo)}, v25, 4, v24
    v_lshlrev_b32 v89, 2, v0
    """)
    def m_c(): return toI([f"s_mul_i32 {S(sT2)}, {S(sKq)}, 320", f"buffer_load_dword v17, v89, {sC}, {S(sT2)} offen", f"buffer_load_dword v18, v89, {sC}, {S(sT2)} offen offset:256"])
    def m_dma():
        o = [f"s_lshl_b32 {S(sT3)}, {S(sKq)}, 2", f"s_add_u32 {S(sT3)}, {S(sT3)}, {S(sWV)}", f"s_mul_i32 {S(sT3)}, {S(sT3)}, {40 * 7680}",
             f"s_lshl_b32 {S(sT2)}, {S(sCG)}, 7", f"s_add_u32 {S(sT3)}, {S(sT3)}, {S(sT2)}", f"s_cmp_lt_u32 {S(sCG)}, 60", f"s_cselect_b32 {S(sT3)}, {S(sT3)}, {hex(OOB)}",
             f"s_mul_i32 s7, {S(sWV)}, 5120"]
        for i in range(5):
            o += [f"s_add_u32 m0, s7, {MB + i*1024}", f"s_add_u32 {S(sT2)}, {S(sT3)}, {i*8*7680}",
                  I(f"buffer_load_dwordx4 {V(vMo)}, {sWM}, {S(sT2)} offen{nt('m')} lds", "m")]
        return toI(o)
    sK1, sV1 = 72, 74
    b(f"""
    v_lshlrev_b32 {V(vL16)}, 4, v0
    v_lshrrev_b32 v24, 1, v22
    v_xor_b32 v24, v24, v21
    v_lshlrev_b32 v24, 4, v24
    v_lshl_add_u32 v24, v22, 7, v24
    s_and_b32 {S(sT)}, {S(sWV)}, 1
    s_lshl_b32 {S(sT)}, {S(sT)}, 13
    s_add_u32 {S(sT)}, {S(sT)}, 65536
    v_add_u32 {V(vRC0)}, {S(sT)}, v24
    v_xor_b32 {V(vRC1)}, 64, {V(vRC0)}
    v_lshrrev_b32 v26, 2, v22
    v_and_b32 v24, 1, v21
    v_lshl_add_u32 v24, v24, 2, v26
    v_lshl_add_u32 v26, v21, 3, v26
    v_lshlrev_b32 v26, 8, v26
    v_and_b32 v25, 3, v0
    v_lshl_add_u32 v26, v25, 3, v26
    v_lshl_add_u32 v26, v24, 5, v26
    s_lshr_b32 {S(sT)}, {S(sWV)}, 1
    s_lshl_b32 {S(sT)}, {S(sT)}, 7
    v_xor_b32 {V(vRW)}, {S(sT)}, v26
    v_xor_b32 {V(vRW+1)}, 32, {V(vRW)}
    v_xor_b32 {V(vRW+2)}, 64, {V(vRW)}
    v_xor_b32 {V(vRW+3)}, 96, {V(vRW)}
    s_cmp_ge_u32 {S(sWV)}, 2
    s_cselect_b32 {S(sHb)}, {S(sBLK2)}, {S(sBLK)}
    s_lshl_b32 {S(sT2)}, {S(sHb)}, 7
    s_add_u32 {S(sT2)}, {S(sT2)}, {WS_FLG + FL_H*128}
    v_mov_b32 v11, {S(sT2)}
    s_lshl_b32 {S(sHb)}, {S(sHb)}, 1
    s_and_b32 {S(sT2)}, {S(sWV)}, 1
    s_add_u32 {S(sHb)}, {S(sHb)}, {S(sT2)}
    s_mul_i32 {S(sHb)}, {S(sHb)}, {20*4096}
    s_add_u32 {S(sHb)}, {S(sHb)}, {WS_H}
    s_lshl_b32 {S(sKb)}, {S(sHD)}, 19
    s_add_u32 {S(sVb)}, {S(sKb)}, {WS_V}
    s_add_u32 {S(sKb)}, {S(sKb)}, {WS_K}
    s_lshr_b32 {S(sT3)}, {S(sWV)}, 1
    s_mul_i32 {S(sK1)}, {S(sT2)}, {16384 + 8192}
    s_lshl_b32 {S(sT)}, {S(sT3)}, 11
    s_add_u32 {S(sK1)}, {S(sK1)}, {S(sT)}
    s_xor_b32 {S(sK1+1)}, {S(sK1)}, 16384
    s_mul_i32 {S(sV1)}, {S(sT2)}, {16384 + 1024}
    s_lshl_b32 {S(sT)}, {S(sT3)}, 13
    s_add_u32 {S(sV1)}, {S(sV1)}, {S(sT)}
    s_xor_b32 {S(sV1+1)}, {S(sV1)}, 16384
    """)
    vFlag, vOne, vPoll, vZero, vXo, vHo, vFlagW = 19, 20, 18, 17, 21, 22, 16
    b(f"""
    v_mov_b32 {V(vFlag)}, {hex(OOB)}
    s_cmp_eq_u32 {S(sWV)}, 0
    s_cselect_b32 {S(sT)}, 0, {hex(OOB)}
    v_mov_b32 {V(vFlagW)}, {hex(OOB)}
    v_writelane_b32 {V(vFlag)}, {S(sT)}, 0
    v_writelane_b32 {V(vFlagW)}, 0, 0
    v_mov_b32 {V(vOne)}, 1
    @waitvm W0
    s_barrier
    """)
    if not fine: T.stamp(b, "C0")
    def m_silu():
        o = ["v_lshlrev_b32 v24, 16, v17", "v_and_b32 v25, 0xffff0000, v17", "v_lshlrev_b32 v26, 16, v18", "v_and_b32 v27, 0xffff0000, v18"]
        o += [f"v_mul_f32 {V(28+k)}, {FH(-LOG2E)}, {V(24+k)}" for k in range(4)]
        o += [f"v_exp_f32 {V(28+k)}, {V(28+k)}" for k in range(4)]
        o += [f"v_add_f32 {V(28+k)}, 1.0, {V(28+k)}" for k in range(4)]
        o += [f"v_rcp_f32 {V(28+k)}, {V(28+k)}" for k in range(4)]
        o += [f"v_mul_f32 {V(24+k)}, {V(24+k)}, {V(28+k)}" for k in range(4)]
        o += ["v_cvt_pk_bf16_f32 v24, v24, v25", "v_cvt_pk_bf16_f32 v25, v26, v27", f"v_lshl_add_u32 v26, v0, 2, {S(sMB)}",
              "ds_write_b32 v26, v24", "ds_write_b32 v26, v25 offset:256",
              "v_lshrrev_b32 v27, 4, v0", "v_bfe_u32 v28, v0, 2, 2", "v_lshl_add_u32 v28, v27, 3, v28", "v_lshlrev_b32 v28, 7, v28",
              "v_and_b32 v29, 3, v0", "v_lshl_add_u32 v28, v29, 3, v28", f"s_lshl_b32 s6, {S(sWV)}, 5", f"s_add_u32 s6, s6, {MB}",
              "v_add_u32 v28, s6, v28", f"v_lshl_add_u32 v27, v27, 4, {S(sMB)}"]
        o += [f"ds_read_b128 {V(32+4*ks,4)}, v27 offset:{ks*64}" for ks in range(5)]
        return toI(o)
    def m_reads(): return toI([f"ds_read_b64_tr_b16 {V(52+4*ks+2*hf,2)}, v28 offset:{ks*4096 + hf*512}" for ks in range(5) for hf in range(2)])
    def m_mfma(): return [MF(V(72,4), V(32+4*ks,4), V(52+4*ks,4), V(72,4) if ks else "0") for ks in range(5)]
    def m_store():
        return toI([f"s_lshl_b32 {S(sT3)}, {S(sCG)}, 2", f"s_add_u32 {S(sT3)}, {S(sT3)}, {S(sWV)}", f"s_lshl_b32 {S(sT3)}, {S(sT3)}, 6",
                    f"s_add_u32 {S(sT3)}, {S(sT3)}, {S(sKq)}", f"s_lshl_b32 {S(sT3)}, {S(sT3)}, 2", f"s_add_u32 {S(sT3)}, {S(sT3)}, {WS_MP}",
                    "v_and_b32 v29, 15, v0", "v_lshlrev_b32 v29, 4, v29"]) + [I(f"buffer_store_dword v72, v29, {sWS}, {S(sT3)} offen sc1", "ms")]
    def rnd(r): return [f"v_cvt_pk_bf16_f32 {V(r)}, {V(r)}, {V(r)}", f"v_lshlrev_b32 {V(r)}, 16, {V(r)}"]
    def sum4(r): return [f"v_add_f32 {V(r)}, {V(r)}, {V(r+1)}", f"v_add_f32 {V(r+2)}, {V(r+2)}, {V(r+3)}", f"v_add_f32 {V(r)}, {V(r)}, {V(r+2)}"] + rnd(r)
    def acc(o, kt): return A(32*o + 4*kt, 4) if o < 3 else V(96 + 32*(o-3) + 4*kt, 4)
    def Cf(buf, kt, ks): return A(96 + 64*buf + 8*kt + 4*ks, 4)
    def rdC(s, kt, ks): return f"ds_read_b128 {Cf(s & 1, kt, ks)}, {V(vRC1 if ks else vRC0)} offset:{(s & 1)*32768 + (kt >> 2)*16384 + (kt & 3)*2048}"
    def Wf(buf, ks): return 224 + 8*buf + 4*ks
    def rdW(s, o): return [f"ds_read_b64_tr_b16 {A(Wf(o & 1, ks) + 2*hf, 2)}, {V(vRW + (o & 3))} offset:{(s & 1)*32768 + (o >> 2)*16384 + ks*8192 + hf*1024}"
                           for ks in range(2) for hf in range(2)]
    b(rdW(0, 0))
    for kt in range(5):
        for ks in range(2): b(rdC(0, kt, ks))
    T.stamp(b, "kvstart")

    def spin(lab, vreg, soff, target, sc_=None):
        b(f"@need {V(vreg)}")
        b(f"v_cmp_gt_u32 vcc, {target}, {V(vreg)}")
        b(f"s_cbranch_vccz {lab}_ok")
        sts = b.flush()
        b(f"s_mov_b32 s3, 0")
        b.label(f"{lab}_spin")
        b("s_sleep 4")
        b(soff)
        b(f"s_add_u32 s3, s3, 1")
        b(f"s_cmp_gt_u32 s3, {SPIN_MAX}")
        b("s_waitcnt vmcnt(0)")
        b(f"s_cbranch_scc1 {lab}_ok")
        b(f"v_cmp_gt_u32 vcc, {target}, {V(vreg)}")
        b(f"s_cbranch_vccnz {lab}_spin")
        s2 = b.flush()
        b.label(f"{lab}_ok", sts + s2)
    def emit_split(sc, hooks):
        cur = []
        for i in sc.emit():
            if i.kind == "pseudo" and i.op == "@mark":
                b(cur); cur = []; hooks[i.t.split()[1]]()
            else: cur.append(i)
        b(cur)

    XP, XF, MA, MS = 76, 32, 52, 72
    HP = 52
    poll_mod = f"buffer_load_dword {V(vPoll)}, {V(vZero)}, {sDBG}, 0 offen offset:{4*DB_MOD} sc1"
    poll_mo2 = f"buffer_load_dword {V(vPoll)}, {V(vZero)}, {sDBG}, 0 offen offset:{4*DB_MO2} sc1"
    def h_setup():
        return toI([f"""
        v_and_b32 v92, 31, v0
        v_lshrrev_b32 v93, 5, v0
        v_mul_u32_u24 {V(vXo)}, 1280, v93
        v_lshl_add_u32 {V(vXo)}, v92, 3, {V(vXo)}
        v_lshrrev_b32 v94, 1, v92
        v_lshlrev_b32 {V(vHo)}, 7, v94
        v_lshl_add_u32 {V(vHo)}, v93, 4, {V(vHo)}
        v_and_b32 v94, 1, v92
        v_lshl_add_u32 {V(vHo)}, v94, 3, {V(vHo)}
        s_lshl_b32 s6, {S(sWV)}, 5
        s_add_u32 s6, s6, {MB + 8192}
        v_add_u32 {V(vHo)}, s6, {V(vHo)}
        v_lshlrev_b32 v95, 4, v92
        v_add_u32 v95, {MB}, v95
        """])
    def h_loadx():
        o = [f"s_lshl_b32 {S(sT2)}, s2, 2", f"s_add_u32 {S(sT2)}, {S(sT2)}, {S(sWV)}", f"s_mul_i32 {S(sT2)}, {S(sT2)}, 2560"]
        o += [f"buffer_load_dwordx2 {V(XP+2*m,2)}, {V(vXo)}, {sX}, {S(sT2)} offen offset:{256*m}" for m in range(5)]
        return toI(o)
    def mp_load():
        o = [f"s_lshl_b32 {S(sT3)}, {S(sWV)}, 10"]
        for i in range(5): o += [f"s_add_u32 {S(sT2)}, {S(sT3)}, {WS_MP + 4096*i}", f"buffer_load_dwordx4 {V(52+4*i,4)}, {V(vL16)}, {sWS}, {S(sT2)} offen sc1"]
        return toI(o)
    def mp_sum():
        o = [f"s_cmp_ge_u32 {S(sWV)}, 2", "s_cselect_b32 s6, 1.0, 0", f"s_cmp_ge_u32 {S(sWV)}, 2", f"s_cselect_b32 s7, 1.0, {FH(QSCALE)}",
             f"s_lshl_b32 {S(sT3)}, {S(sWV)}, 8", f"s_add_u32 {S(sT3)}, {S(sT3)}, {MB}", f"v_lshl_add_u32 v94, v0, 2, {S(sT3)}"]
        for i in range(5):
            r = 52 + 4*i; o += sum4(r)
            if i < 2: o.append(f"v_mul_f32 {V(r)}, {FH(QSCALE)}, {V(r)}")
            elif i == 2: o += [f"v_add_f32 {V(r)}, s6, {V(r)}"] + rnd(r) + [f"v_mul_f32 {V(r)}, s7, {V(r)}"]
            else: o += [f"v_add_f32 {V(r)}, 1.0, {V(r)}"] + rnd(r)
            o.append(f"ds_write_b32 v94, {V(r)} offset:{1024*i}")
        return toI(o)
    def mod_read(): return toI([f"ds_read_b128 {V(r+4*m,4)}, v95 offset:{off + 512*m}" for m in range(5) for r, off in ((MA, 2560), (MS, 0))])
    def red32(r, t):
        o = [f"v_add_f32 {V(r)}, {V(r)}, {V(r)} row_ror:{k}" for k in (1, 2, 4, 8)]
        o += [f"v_mov_b32 {V(t)}, {V(r)}", f"v_permlane16_swap_b32 {V(r)}, {V(t)}", f"v_add_f32 {V(r)}, {V(r)}, {V(t)}"]
        return o
    def h_stats():
        o = []
        for k in range(10):
            o += [f"v_lshlrev_b32 {V(XF+2*k)}, 16, {V(XP+k)}", f"v_and_b32 {V(XF+2*k+1)}, 0xffff0000, {V(XP+k)}"]
        o += [f"v_add_f32 v92, {V(XF)}, {V(XF+1)}", f"v_add_f32 v93, {V(XF+2)}, {V(XF+3)}"]
        for k in range(4, 20): o.append(f"v_add_f32 {V(92 + (k & 1))}, {V(92 + (k & 1))}, {V(XF+k)}")
        o.append("v_add_f32 v92, v92, v93")
        o += red32(92, 93)
        o.append(f"v_mul_f32 v92, {FH(1/640)}, v92")
        for k in range(20): o.append(f"v_sub_f32 {V(XF+k)}, {V(XF+k)}, v92")
        o2 = [f"v_mul_f32 v92, {V(XF)}, {V(XF)}", f"v_mul_f32 v93, {V(XF+1)}, {V(XF+1)}"]
        for k in range(2, 20): o2.append(f"v_fmac_f32 {V(92 + (k & 1))}, {V(XF+k)}, {V(XF+k)}")
        o2.append("v_add_f32 v92, v92, v93")
        o2 += red32(92, 93)
        o2 += [f"v_mov_b32 v93, {FH(1e-5)}", f"v_fmac_f32 v93, {FH(1/640)}, v92", "v_rsq_f32 v93, v93", f"v_mul_f32 v93, {FH(QSCALE)}, v93"]
        for k in range(20): o2.append(f"v_mul_f32 {V(XF+k)}, {V(XF+k)}, v93")
        return toI(o), toI(o2)
    sHs = 61
    def h_addr():
        return toI([f"s_lshr_b32 {S(sHs)}, s2, 4", f"s_lshl_b32 {S(sHs)}, {S(sHs)}, 1", f"s_bfe_u32 {S(sT3)}, s2, 0x10001",
              f"s_add_u32 {S(sHs)}, {S(sHs)}, {S(sT3)}", f"s_mul_i32 {S(sHs)}, {S(sHs)}, {20*4096}",
              f"s_bfe_u32 {S(sT3)}, s2, 0x20002", f"s_lshl_b32 {S(sT3)}, {S(sT3)}, 10", f"s_add_u32 {S(sHs)}, {S(sHs)}, {S(sT3)}",
              f"s_and_b32 {S(sT3)}, s2, 1", f"s_lshl_b32 {S(sT3)}, {S(sT3)}, 7", f"s_add_u32 {S(sHs)}, {S(sHs)}, {S(sT3)}",
              f"s_add_u32 {S(sHs)}, {S(sHs)}, {S(sLw)}", f"s_add_u32 {S(sHs)}, {S(sHs)}, {WS_H}"])
    def h_fin():
        o = []
        for m in range(5):
            for k in range(4*m, 4*m + 4): o.append(f"v_fma_f32 {V(XF+k)}, {V(XF+k)}, {V(MA+k)}, {V(MS+k)}")
            for k in (2*m, 2*m + 1): o.append(f"v_cvt_pk_bf16_f32 {V(24+(k & 3))}, {V(XF+2*k)}, {V(XF+2*k+1)}")
            o.append(f"ds_write_b64 {V(vHo)}, {V(24 + 2*(m & 1), 2)} offset:{2048*m}")
        return toI(o)
    def h_back():
        return toI([f"s_lshl_b32 s6, {S(sWV)}, 10", f"s_add_u32 s6, s6, {MB + 8192}", f"v_add_u32 v92, s6, {V(vL16)}",
                    "v_lshrrev_b32 v93, 5, v0", "v_lshlrev_b32 v93, 12, v93", "v_bfe_u32 v94, v0, 3, 2", "v_lshl_add_u32 v93, v94, 8, v93",
                    "v_and_b32 v94, 7, v0", "v_lshl_add_u32 v93, v94, 4, v93"]), toI([f"ds_read_b128 {V(32+4*k,4)}, v92 offset:{4096*k}" for k in range(3)])
    def h_store():
        o = []
        for k in range(3):
            o.append(f"s_add_u32 {S(sT3)}, {S(sHs)}, {32768*k}")
            if k == 2: o += [f"s_cmp_lt_u32 {S(sWV)}, 2", f"s_cselect_b32 {S(sT3)}, {S(sT3)}, {hex(OOB)}"]
            o.append(I(f"buffer_store_dwordx4 {V(32+4*k,4)}, v93, {sWS}, {S(sT3)} offen sc1", "hs"))
        return toI(o)
    def f_load():
        return toI([f"s_lshl_b32 {S(sT2)}, s2, 8", f"s_add_u32 {S(sT2)}, {S(sT2)}, {WS_MP + 1280*16}", "v_and_b32 v28, 15, v0", "v_lshlrev_b32 v29, 4, v28",
                    f"buffer_load_dwordx4 v[24:27], v29, {sWS}, {S(sT2)} offen sc1"])
    def f_fin():
        return toI(["s_sub_u32 s6, s2, 80", "s_cmp_lt_u32 s6, 40", "s_cselect_b32 s6, 1.0, 0", "s_lshl_b32 s7, s2, 6", f"s_add_u32 s7, s7, {WS_MOD + 1280*4}",
                    "s_cmp_lt_u32 s2, 160", f"s_cselect_b32 s7, s7, {hex(OOB)}", f"s_cmp_eq_u32 {S(sWV)}, 0", f"s_cselect_b32 s7, s7, {hex(OOB)}"]
                   + sum4(24) + ["v_add_f32 v24, s6, v24"] + rnd(24) + ["v_lshlrev_b32 v28, 2, v28", f"buffer_store_dword v24, v28, {sWS}, s7 offen sc1"])
    def seq(sc, ins, start): return sc.seq(ins, start)
    poll_h = f"buffer_load_dword {V(vPoll)}, v11, {sWS}, 0 offen sc1"
    def Hf(buf, ks, qt): return A(96 + 64*buf + 16*ks + 4*qt, 4)
    def ldH(s):
        o = []
        for ks in range(4):
            o.append(f"s_add_u32 {S(sT2)}, {S(sHb)}, {(4*s + ks)*4096}")
            for qt in range(4): o.append(f"buffer_load_dwordx4 {Hf(s & 1, ks, qt)}, {V(vL16)}, {sWS}, {S(sT2)} offen offset:{qt*1024} sc1")
        return toI(o)
    tmpi = [0]
    def rno(t): return int(t[2:t.index(":")])
    def pack(t0, t1, dst=None):
        o = []
        def src(t, d=None):
            if t[0] == "v": return rno(t)
            if d is None: d = 24 + 4 * (tmpi[0] % 8); tmpi[0] += 1
            for k in range(4): o.append(f"v_accvgpr_read_b32 {V(d+k)}, {A(rno(t)+k)}")
            return d
        r0 = src(t0, dst); r1 = src(t1)
        cv = lambda d, s: f"v_cvt_pk_bf16_f32 {V(d)}, {V(s)}, {V(s+1)}"
        if t0[0] == "a" and t1[0] == "v":
            o += [cv(r1+3, r1+2), cv(r1+2, r1), cv(r1, r0), cv(r1+1, r0+2)]; return toI(o), r1
        o += [cv(r0, r0), cv(r0+1, r0+2), cv(r0+2, r1), cv(r0+3, r1+2)]; return toI(o), r0
    sG = 36
    def kvstore(reg, isv, u, pl, off):
        return toI([f"s_add_u32 {S(sT3)}, {S(sG + 4*isv + 2*u + pl)}, {off}"]) + [I(f"buffer_store_dwordx4 {reg}, {V(vL16)}, {sWS}, {S(sT3)} offen{KVM}", f"kv{u}")]
    def QWf(buf, ks): return (240 if buf == 0 else 224) + 4*ks
    def rdQW(s, dt): return [f"ds_read_b64_tr_b16 {A(QWf(dt & 1, ks) + 2*hf, 2)}, {V(vRW + dt)} offset:{(s & 1)*32768 + ks*8192 + hf*1024}"
                             for ks in range(4) for hf in range(2)]
    st1 = []; st0 = []; kwr = []; vwr = []; vpack = []; park = []; vw1 = []
    vKw, vVw = (21, 22), (17, 19)
    def flag(off_ins, srd, imm, vf=vFlag): return toI(off_ins + [f"buffer_atomic_add {V(vOne)}, {V(vf)}, {srd}, {S(sT2)} offen offset:{imm}"])
    def paced(sc, groups, g0, g1):
        g = g0
        for k, gr in enumerate(groups):
            g = seq(sc, list(gr), max(g, g0 + (k * (g1 - g0)) // len(groups))) + 1
        return g
    def vgroups(ins):
        out = [[]]
        for i in ins:
            out[-1].append(i)
            if i.kind == "vmem": out.append([])
        assert not out[-1]; return out[:-1]
    def kv_dma(s):
        d = []
        if s < 7: d += dmaW(s + 1)
        if s < 6: d += dmaC(s + 2)
        if s == 6: d += dmaQ(0)
        if s == 7: d += dmaQ(1)
        return d
    NT = 3
    for s in range(8):
        mf = []
        for o in range(8):
            for kt in range(8):
                for ks in range(2):
                    w = A(Wf(o & 1, ks), 4); c = Cf(s & 1, kt, ks)
                    cin = "0" if (s == 0 and ks == 0) else acc(o, kt)
                    mf.append(MF(acc(o, kt), w, c, cin) if o < 4 else MF(acc(o, kt), c, w, cin))
        sc = Sched(mf)
        if s == 0:
            for n in range(10, 16): sc.put(rdC(0, n >> 1, n & 1), n - 10)
        for o in range(7):
            for k, r in enumerate(rdW(s, o + 1)): sc.put(r, 16*o + k)
            sc.raw(f"@need {A(Wf((o+1) & 1, 0), 8)}", 16*o + 15, "pre")
        d = kv_dma(s)
        sc.raw(([f"@waitvm {d[-1][2].tag}"] if s < 7 else []) + ["s_waitcnt lgkmcnt(0)", "s_barrier"], 111)
        if s < 7:
            for k, r in enumerate(rdW(s + 1, 0)): sc.put(r, 112 + k)
            sc.raw(f"@need {A(Wf(0, 0), 8)}", 127, "pre")
            for n in range(16): sc.put(rdC(s + 1, n >> 1, n & 1), (5 + 6*n) if s else (BA + 1 + ((106 - BA)*n) // 16))
        hooks = {}
        if s == 0:
            sc.raw(["@waitvm C1", "s_waitcnt lgkmcnt(0)", "s_barrier"], BA)
            sc.raw([x for gr in dmaC(1)[NC1:] for x in gr], -1)
            g = paced(sc, d[:8], 10, BA - 2); assert g <= BA + 2, g
            g0 = paced(sc, d[8:], BA + 1, BA + 36)
            g0 = paced(sc, pf0[2:] + vgroups(m_c()) + (vgroups(m_dma()) if MS0 else []), g0, 126 if MS0 else 110); assert g0 < 129, g0
            seq(sc, h_setup(), 20)
        elif s < 7: g0 = paced(sc, d[(0 if s == 1 and MS0 else NT):], 0, END + (10 if s == 1 and MS0 else 0))
        if s < 7 and not (s == 0 and MS0): paced(sc, kv_dma(s + 1)[:NT], 116, 127)
        def m_part(g):
            g = seq(sc, m_reads(), g)
            sc.raw(m_mfma(), g + 6)
            return seq(sc, toI([f"v_mov_b32 {V(vZero)}, 0", "v_and_b32 v90, 15, v0", "v_lshlrev_b32 v90, 7, v90", f"s_lshl_b32 s6, s2, 11",
                             f"s_cmp_lt_u32 s2, 80", f"s_cselect_b32 s6, s6, {hex(OOB)}",
                             f"s_cmp_eq_u32 {S(sWV)}, 0", f"s_cselect_b32 s6, s6, {hex(OOB)}",
                             f"s_add_u32 s6, s6, {WS_FLG}", f"buffer_store_dword {V(vZero)}, v90, {sWS}, s6 offen sc1"]) + m_store(), g + 2)
        def m_arrive(gm):
            sc.raw(["@waitvm ms", "s_barrier"], gm)
            return seq(sc, flag([f"s_cmp_lt_u32 s2, 80", f"s_cselect_b32 {S(sT2)}, {4*DB_MOD}, {4*DB_MO2}", f"s_cmp_lt_u32 s2, 240", f"s_cselect_b32 {S(sT2)}, {S(sT2)}, {hex(OOB)}"], sDBG, 0), gm + 1)
        if s == 1:
            g = seq(sc, m_silu(), 4)
            if MS0:
                sc.raw(["@waitvm m", "s_barrier"], g + 1)
                assert m_part(g + 2) < 128
                paced(sc, [pfW(1)] + vgroups(h_loadx()), g0, 110)
            else: assert paced(sc, [pfW(1)] + vgroups(m_dma()), g0, 112) < 117
        if s == 2:
            if MS0:
                g = m_arrive(MW)
                assert seq(sc, pfW(2), max(g, g0) + 1) < 111
                seq(sc, h_stats()[0], 30)
            else:
                sc.raw(["@waitvm m", "s_barrier"], 30)
                assert m_part(31) < 80
                assert paced(sc, [pfW(2)] + vgroups(h_loadx()), max(g0, 80), 110) < 114
                m_arrive(113)
        if s == 3:
            gp = sc.put(poll_mod, PMG); assert gp < PMG + 8
            sc.raw("@mark pm", gp + 30, "post2"); hooks["pm"] = lambda: spin(name + "_pm", vPoll, poll_mod, 80)
            assert paced(sc, vgroups(mp_load()) + [pfW(3)], gp + 31, min(gp + 56, 126)) < 129
            assert seq(sc, h_addr(), 0) < gp + 30
            seq(sc, ([] if MS0 else h_stats()[0]) + h_stats()[1], 0 if MS0 else 20)
        if s == 4:
            g = seq(sc, mp_sum(), 4)
            sc.raw(["s_waitcnt lgkmcnt(0)", "s_barrier"], g + 4)
            gr = g + 5; mr = mod_read(); hf_ = h_fin(); pos = []
            for m in range(5): gr = seq(sc, mr[2*m : 2*m + 2], gr) + 1; pos.append(gr)
            for m in range(5): g = seq(sc, hf_[7*m : 7*m + 7], max(g + 1, pos[m] + 5))
            assert g < 108, g
            hb = h_back(); assert seq(sc, hb[0], 60) < 111
            seq(sc, hb[1], 116)
            assert seq(sc, pfQ(0), g0) < 111
        if s == 5:
            g = paced(sc, vgroups(h_store()), 2, 30)
            sc.raw("@waitvm hs", g0 + 3)
            g = seq(sc, flag([f"s_lshr_b32 {S(sT2)}, s2, 4", f"s_lshl_b32 {S(sT2)}, {S(sT2)}, 7", f"s_add_u32 {S(sT2)}, {S(sT2)}, {WS_FLG + FL_H*128}"], sWS, 0, vFlagW), g0 + 4)
            g = sc.put(poll_mo2, g + 4); assert g < 104
            assert seq(sc, pfQ(1), g + 1) < 111
            sc.raw("@mark p2", 111); hooks["p2"] = lambda: spin(name + "_p2", vPoll, poll_mo2, 160)
        if s == 6:
            seq(sc, f_load(), 2)
            g = seq(sc, f_fin(), 50)
            assert sc.put(poll_h, max(g + 1, 92)) < 110
            sc.raw("@mark ph", 126, "post2"); hooks["ph"] = lambda: spin(name + "_ph", vPoll, poll_h, 64)
            ga = []
            for isv, (base, rel) in enumerate(((sKb, sK1), (sVb, sV1))):
                for u, blk in enumerate((sBLK, sBLK2)):
                    ga += [f"s_lshl_b32 {S(sT3)}, {S(blk)}, 15", f"s_add_u32 {S(sT3)}, {S(sT3)}, {S(base)}"]
                    ga += [f"s_add_u32 {S(sG + 4*isv + 2*u + pl)}, {S(sT3)}, {S(rel + pl)}" for pl in range(2)]
            ga += [f"v_add_u32 {V(vKw[pl])}, {S(sK1+pl)}, {V(vL16)}" for pl in range(2)]
            ga += [f"v_add_u32 {V(vVw[pl])}, {S(sV1+pl)}, {V(vL16)}" for pl in range(2)] + [f"v_add_u32 {V(vVw[pl])}, 65536, {V(vVw[pl])}" for pl in range(2)]
            seq(sc, ga, 76)
        if s == 7:
            assert paced(sc, vgroups(ldH(0)) + d[NT:], 0, 98) < 112
            qa = [f"s_lshr_b32 s6, {S(sWV)}, 1", f"s_lshl_b32 s6, s6, 7", f"s_add_u32 s6, s6, 65536", f"v_xor_b32 {V(vRW)}, s6, {V(vRW)}"]
            qa += [f"v_xor_b32 {V(vRW+n)}, {32*n}, {V(vRW)}" for n in range(1, 8)]
            assert seq(sc, toI(qa), 101) < 112
            for k, r in enumerate(rdQW(0, 0)): sc.put(r, 112 + k)
            g = 0
            for kt in range(8):
                g = seq(sc, [f"v_accvgpr_read_b32 {V(64+4*kt+k)}, {A(4*kt+k)}" for k in range(4)]
                        + [f"v_cvt_pk_bf16_f32 {V(64+4*kt+k)}, {V(64+4*kt+2*k)}, {V(65+4*kt+2*k)}" for k in range(2)], max(g, 2*kt + 6))
            for a in range(2):
                for kt in range(8):
                    u, pl = kt >> 2, (kt >> 1) & 1
                    ins, r = pack(acc(2*a, kt), acc(2*a+1, kt), 64 + 4*kt if a == 0 else None)
                    if a == 0: ins = ins[4:8] + ins[10:]
                    off = ((kt & 1)*4 + a)*1024
                    kwr.append(f"ds_write_b128 {V(vKw[pl])}, {V(r,4)} offset:{u*32768 + off}")
                    if a == 0 and u == 0:
                        park += [f"v_accvgpr_write_b32 {A(4*kt+k)}, {V(r+k)}" for k in range(4)]
                        st0.append(kvstore(A(4*kt, 4), 0, u, pl, off))
                    else: (st1 if u else st0).append(kvstore(V(r, 4), 0, u, pl, off))
                    g = seq(sc, ins, max(g, 16*(2*a+1) + 2*kt + 6))
            for o in range(4, 8):
                for p in range(4):
                    u, pl = p >> 1, p & 1
                    ins, r = pack(acc(o, 2*p), acc(o, 2*p+1))
                    off = (o-4)*2048
                    (st1 if u else st0).append(kvstore(V(r, 4), 1, u, pl, off))
                    if u == 0: vwr.append(f"ds_write_b128 {V(vVw[pl])}, {V(r,4)} offset:{32768 + off}")
                    else: vw1.append((r, f"ds_write_b128 {V(vVw[pl])}, {V(r,4)} offset:{off}"))
                    vpack.append(ins)
        emit_split(sc, hooks)
        if fine is True and s < 7: T.stamp(b, f"kv{s}")
    T.stamp(b, "kvend")
    def qacc(dt, qt):
        i = dt*4 + qt
        return 32 + 4*i if i < 8 else (128 + 8*(i - 8) + 4 if i < 24 else 64 + 4*(i - 24))
    vKr, vVr, vDm, vQw, vQr = 1, 2, 5, 6, 24
    qsetup = toI([f"""
    s_lshl_b32 s6, {S(sHD)}, 7
    s_add_u32 s6, s6, {WS_FLG + FL_KV*128}
    v_mov_b32 v25, s6
    s_lshr_b32 s6, {S(sWV)}, 1
    s_lshl_b32 s7, s6, 14
    v_add_u32 {V(vKr)}, s7, {V(vL16)}
    v_add_u32 {V(vVr)}, 65536, {V(vKr)}
    v_add_u32 {V(vDm)}, {S(sLw)}, {V(vL16)}
    s_and_b32 s7, {S(sWV)}, 1
    s_lshl_b32 s7, s7, 14
    s_add_u32 s7, s7, 65536
    v_add_u32 {V(vQr)}, s7, {V(vL16)}
    s_lshl_b32 s6, s6, 16
    v_add_u32 {V(vQw)}, s6, {V(vQr)}
    """])
    def dmaKV(isv, slot, soff, tag, sl=sLw):
        base = (65536 + (slot ^ 1)*32768) if isv else slot*32768
        o = []
        for hf in range(2):
            o.append(I(f"s_add_u32 m0, {S(sl)}, {base + hf*4096}"))
            if hf: o.append(I(f"s_add_u32 {S(soff)}, {S(soff)}, 4096"))
            for i in range(4): o.append(I(f"buffer_load_dwordx4 {V(vDm)}, {sWS}, {S(soff)} offen offset:{i*1024} sc1 lds", tag))
        return o
    sR0, sKu, sUa, sUb = 57, 60, 70, 62
    sA0, sA1, sAl = 63, 78, 77
    def unit_diag(dst, base): return [f"s_lshl_b32 {S(dst)}, {S(sBLK)}, 15", f"s_add_u32 {S(dst)}, {S(dst)}, {S(base)}"]
    def unit_r0(dst, base): return [f"s_lshl_b32 {S(dst)}, {S(sR0)}, 15", f"s_add_u32 {S(dst)}, {S(dst)}, {S(base)}"]
    assert sum(QST) == 16
    def pf_code(tag, vt, vd):
        return toI([f"s_getpc_b64 s[4:5]", f"{name}_pc{tag}:", f"s_lshr_b32 s6, s2, 3", f"s_lshl_b32 s6, s6, 2", f"s_add_u32 s6, s6, {S(sWV)}", f"s_lshl_b32 s6, s6, 9",
                    f"v_and_b32 {V(vt)}, 3, v0", f"v_lshl_add_u32 {V(vt)}, {V(vt)}, 7, s6", f"v_min_u32 {V(vt)}, code_end - {name}_pc{tag} - 4, {V(vt)}",
                    f"global_load_dword {V(vd)}, {V(vt)}, s[4:5]"])
    for s in range(5):
        mf = []
        for dt in range(8):
            for qt in range(4):
                for ks in range(4):
                    d = V(qacc(dt, qt), 4)
                    mf.append(MF(d, A(QWf(dt & 1, ks), 4), Hf(s & 1, ks, qt), "0" if (s == 0 and ks == 0) else d))
        sc = Sched(mf)
        for dt in range(7):
            for k, r in enumerate(rdQW(s, dt + 1)): sc.put(r, 16*dt + k)
            sc.raw(f"@need {A(QWf((dt+1) & 1, 0), 16)}", 16*dt + 15, "pre")
        sc.raw([f"@waitvm Q{s+1}", "s_waitcnt lgkmcnt(0)", "s_barrier"], 111)
        if s < 4:
            for k, r in enumerate(rdQW(s + 1, 0)): sc.put(r, 112 + k)
            sc.raw(f"@need {A(QWf(0, 0), 16)} {A(96 + 64*((s+1) & 1), 64)}", 127, "pre")
        ld = (dmaQ(s + 1) if 1 <= s < 4 else []) + (vgroups(ldH(s + 1)) if s < 4 else [])
        if s < 2:
            g = 8
            for w in kwr[8*s : 8*s + 8]: g = sc.put(w, g) + DWS
            assert g < 95
        if s < 4:
            mine = st1[sum(QST[:s]) : sum(QST[:s+1])]
            if s == 0:
                g = paced(sc, mine[:4], 0, 24); g = paced(sc, ld, g, QEND); mine = mine[4:]
            else: g = paced(sc, ld, 0, QEND)
            if mine: assert paced(sc, mine, g, 126) < 129
        if s == 0:
            g = 0
            for k, ins in enumerate(vpack):
                g = seq(sc, ins, g); assert g < 32 + 4*k - 2, (k, g)
            assert seq(sc, park, g) < 94
        if s == 3: seq(sc, qsetup + toI([f"s_mov_b32 {S(sR0)}, {S(sJ)}"]), 40)
        if s == 3 and CPF: sc.raw(pf_code("q", 27, vDum), 126)
        if s == 4:
            sc.raw("@waitvm kv1", QF)
            g = seq(sc, flag([f"s_lshl_b32 {S(sT2)}, {S(sHD)}, 7", f"s_add_u32 {S(sT2)}, {S(sT2)}, {WS_FLG + FL_KV*128}"], sWS, 0, vFlagW), QF + 1)
            g = paced(sc, st0[:QB], g + 1, 110)
            g = 8
            for w in vwr: g = sc.put(w, g) + DWS
            assert g < 111
            g = 0
            for ds in range(4):
                for qt in range(4):
                    r0, r1 = qacc(2*ds, qt), qacc(2*ds+1, qt)
                    g = seq(sc, toI([f"v_cvt_pk_bf16_f32 {V(r0)}, {V(r0)}, {V(r0+1)}", f"v_cvt_pk_bf16_f32 {V(r0+1)}, {V(r0+2)}, {V(r0+3)}",
                                     f"v_cvt_pk_bf16_f32 {V(r0+2)}, {V(r1)}, {V(r1+1)}", f"v_cvt_pk_bf16_f32 {V(r0+3)}, {V(r1+2)}, {V(r1+3)}"]),
                            max(g, 16*(2*ds+1) + 4*qt + 8))
            sc.raw(f"buffer_load_dword v26, v25, {sWS}, 0 offen sc1", 112)
            rest = st0[QB:10]
            for k in range(16):
                ds, qt = k >> 2, k & 3
                w = f"ds_write_b128 {V(vQw)}, {V(qacc(2*ds, qt), 4)} offset:{(ds*4+qt)*1024}"
                if k < 5: sc.raw(w, 113 + 3*k)
                else:
                    sc.raw(w, 999)
                    if rest: sc.raw(rest.pop(0), 999)
            assert not rest
        out = sc.emit()
        if "qtr" in drop: out = [i for i in out if "_tr_" not in i.op]
        if "qvm" in drop: out = [i for i in out if not (i.kind == "vmem" and "load" in i.op)]
        if "qst" in drop: out = [i for i in out if not (i.kind == "vmem" and "store" in i.op)]
        if "qdw" in drop: out = [i for i in out if not i.op.startswith("ds_write")]
        b(out)
        if fine is True and s < 4: T.stamp(b, f"q{s}")
    T.stamp(b, "qend")
    def O(dt, qt): return 128 + 16*dt + 4*qt
    def P(buf, kp, qt): return 64 + 32*buf + 16*kp + 4*qt
    def Sw(i): return 48 + 4*(i & 3)
    def NM(qt): return 32 + 4*qt
    def Lr(qt): return 164 + 4*qt
    MK, TC = 8, 12
    vL, vXp, vPa, vPk = 3, 4, 6, 7
    vX, vLx, vQa, vQb = 17, 18, 21, 22
    def Qf(ds, qt): return A(16*ds + 4*qt, 4)
    def Kf(kt, ds): return A(64 + 16*kt + 4*ds, 4)
    def Vf(dt, kp): return A(128 + 8*(dt & 3) + 4*kp, 4)
    ONES = A(160, 4)
    sTop = 76; NCX = 10 if PF else 8
    sLk = 80
    att = fine in ("att0", "att1"); cnd = f"s_cmp_eq_u32 {S(sPass)}, {str(fine)[-1]}"
    def ST(nm):
        if not att: return
        if nm in T.names:
            n = T.n; T.n = T.names.index(nm); T.stamp(b, nm, cnd); T.names.pop(); T.n = n
        else: T.stamp(b, nm, cnd)
    def rdK(slot, kt, ds): return f"ds_read_b128 {Kf(kt, ds)}, {V(vKr)} offset:{slot*32768 + (kt*4+ds)*1024}"
    def rdK0(kt, ds): return rdK(0, kt, ds)
    def rdV(slot, dt, kp): return f"ds_read_b128 {Vf(dt, kp)}, {V(vVr)} offset:{(slot ^ 1)*32768 + (dt*2+kp)*1024}"
    def rdQ(base, ds, qt): return f"ds_read_b128 {A(base + 16*ds + 4*qt, 4)}, {V(vQb if qt >> 1 else vQa)} offset:{ds*4096 + (qt & 1)*1024}"
    poll_kv = f"buffer_load_dword {V(vPk)}, {V(vPa)}, {sWS}, 0 offen sc1"
    b([rdK0(0, ds) for ds in range(4)])
    b(f"s_load_dwordx2 {S(WU,2)}, s[0:1], {ARG['wo']}")
    RT, RO, RS = R["wuk"], R["wuv"], R["ckv"]
    for r_, n_ in ((RT, "win"), (RO, "wout"), (RS, "wsp")):
        b(f"s_load_dwordx2 {S(r_,2)}, s[0:1], {ARG[n_]}"); b(f"s_mov_b32 {S(r_+2)}, {hex(SIZE[n_])}")
    b(f"""
    s_mov_b32 {S(WU+2)}, {hex(SIZE['wo'])}
    v_mov_b32 {V(vL)}, {V(vL16)}
    s_lshr_b32 {S(sT2)}, {S(sWV)}, 1
    s_lshl_b32 {S(sT2)}, {S(sT2)}, 11
    v_add_u32 {V(vQa)}, {S(sT2)}, {V(vQr)}
    v_xor_b32 {V(vQb)}, 0x800, {V(vQa)}
    s_lshl_b32 {S(sA0)}, {S(sBLK2)}, 15
    s_add_u32 {S(sA0)}, {S(sA0)}, {S(sKb)}
    s_mov_b32 {S(sA1)}, {S(sKb)}
    s_mov_b32 {S(sAl)}, {S(sLw)}
    v_mov_b32 v12, 0x3f803f80
    s_mov_b32 {S(sPass)}, 0
    s_mov_b32 {S(sTop)}, 131072
    v_mov_b32 {V(vPa)}, v25
    """)
    for r in range(4): b(f"v_accvgpr_write_b32 {A(160+r)}, v12")
    def masks(first):
        b(f"""
        v_lshrrev_b32 v28, 4, v0
        v_lshlrev_b32 v28, 2, v28
        v_and_b32 v29, 15, v0
        v_sub_u32 v28, v29, v28
        s_and_b32 {S(sT2)}, {S(sWV)}, 1
        s_lshl_b32 {S(sT2)}, {S(sT2)}, 4
        v_add_u32 v28, {S(sT2)}, v28
        v_mov_b32 v29, {FH(NEGBIG)}
        """)
        for r in range(4):
            if first: b(f"v_cmp_gt_i32 vcc, {r}, v28")
            b(f"v_cmp_gt_i32 {S(sMK,2)}, {16 + r}, v28")
            if first: b(f"v_cndmask_b32 {V(MK+r)}, 0, v29, vcc")
            b(f"v_cndmask_b32 {V(TC+r)}, 0, v29, {S(sMK,2)}")
    masks(True)
    b("s_waitcnt lgkmcnt(0)"); b("s_barrier")
    for qt in range(4):
        for ds in range(4): b(rdQ(0, ds, qt))
    b(f"v_add_u32 {V(vQa)}, 65536, {V(vQa)}"); b(f"v_add_u32 {V(vQb)}, 65536, {V(vQb)}")
    def softmax_ops(si, pbuf, kt, qt):
        s = Sw(si); p = P(pbuf, kt >> 1, qt) + 2*(kt & 1)
        return ([f"v_exp_f32 {V(s+r)}, {V(s+r)}" for r in range(4)],
                [f"v_cvt_pk_bf16_f32 {V(p)}, {V(s)}, {V(s+1)}", f"v_cvt_pk_bf16_f32 {V(p+1)}, {V(s+2)}, {V(s+3)}"])
    def place_softmax(sc, ops, start, stride):
        ex, cv = ops; g = start; gs = []
        for e in ex:
            g = sc.put(e, g); gs.append(g); g += stride
        return [(cv[0], gs[1] + 1), (cv[1], gs[3] + 1)]
    def diag_active(kg): return [(kp, q) for kp in range(2) for q in range(4) if (3 - kg if kp else kg) <= (q ^ (2*kg))]
    def next_k_dma(slot, ahead=2):
        return toI([f"s_mov_b32 {S(sUa)}, {S(sUb)}", f"s_mov_b32 {S(sUb)}, {S(sKu)}",
                    f"s_lshl_b32 {S(sKs)}, {S(sKu)}, 15", f"s_add_u32 {S(sKs)}, {S(sKs)}, {S(sKb)}", f"s_add_u32 {S(sKu)}, {S(sKu)}, 1",
                    f"s_cmp_eq_u32 {S(sKu)}, {S(sR0)}", f"s_addc_u32 {S(sKu)}, {S(sKu)}, 0", f"s_add_u32 {S(sT2)}, {S(sN)}, {ahead}",
                    f"s_cmp_gt_u32 {S(sBLK)}, {S(sT2)}", f"s_cselect_b32 {S(sKs)}, {S(sKs)}, {S(sA1 if slot else sA0)}",
                    f"s_cmp_gt_u32 {S(sBLK)}, {S(sT2)}", f"s_cselect_b32 {S(sLk)}, {S(sLw)}, {S(sAl)}"]) + dmaKV(0, slot, sKs, "k", sLk)
    def next_v_dma(slot):
        return toI([f"s_lshl_b32 {S(sVs)}, {S(sUa)}, 15", f"s_add_u32 {S(sVs)}, {S(sVs)}, {S(sVb)}"]) + dmaKV(1, slot, sVs, "v")
    def next_reads(n_par):
        rd = []
        for k in range(4): rd += [rdK(n_par, 0, k), rdV(n_par ^ 1, k >> 1, k & 1)]
        return rd
    def qk_diag(kg):
        act = diag_active(kg); tiles = []; zero = []
        for kt in range(4):
            p = 3 - kg if kt >> 1 else kg
            for q in range(4):
                if (kt >> 1, q) in act: tiles.append((kt, q, p == (q ^ (2*kg))))
        mf = []
        for i, (kt, q, dg) in enumerate(tiles):
            for ds in range(4):
                mf.append(MF(V(Sw(i), 4), Kf(kt, ds), Qf(ds, q), V(Sw(i), 4) if ds else V(Sw(i) if dg else NM(q), 4)))
        n = len(mf)
        sc = Sched(mf)
        g = 0
        for kt in sorted({t[0] for t in tiles} - {0}):
            for ds in range(4): g = sc.put(rdK0(kt, ds), g, force=True) + 1
        gb = max(g + 5, 4 * max(i for i, t in enumerate(tiles) if t[0] == 0) + 4, n - 10)
        init = []
        for kt, q in zero:
            p = P(0, kt >> 1, q) + 2*(kt & 1); init += [f"v_mov_b32 {V(p)}, 0", f"v_mov_b32 {V(p+1)}, 0"]
        if kg == 1: init += [f"v_accvgpr_write_b32 {A(Lr(2)+r)}, 0" for r in range(4)]
        for i, (kt, q, dg) in enumerate(tiles):
            if dg:
                for r in range(4): sc.raw(f"v_add_f32 {V(Sw(i)+r)}, {V(NM(q)+r)}, {V((TC if kt & 1 else MK)+r)}", -1 if i < 4 else 4*i - 4 + r // 2, "post2")
        sc.raw(init, -1)
        for i, (kt, q, dg) in enumerate(tiles):
            ex, cv = softmax_ops(i, 0, kt, q)
            for r in range(4): sc.raw(ex[r], 4*i + 7 + r)
            sc.raw(cv[0], 4*i + 10, "post"); sc.raw(cv[1], 4*i + 11, "post2")
        for i, (kt, q, dg) in enumerate(tiles):
            sc.raw(f"@need {A(64 + 16*kt, 16)} " + " ".join(Qf(ds, q) for ds in range(4)), 4*i - 1, "pre")
        sc.raw(["@waitvm v", "s_waitcnt lgkmcnt(0)", "s_barrier"], gb, "post2")
        for k, r in enumerate(next_reads(1)): sc.raw(r, gb + 1 + k, "pre")
        assert gb + 8 < n
        return sc.emit()
    def iteration(par, qk, pv, carry, exit_lab=None, side=None, first=False):
        act = [(kp, q) for kp in range(2) for q in range(4)] if pv == "full" else diag_active(pv)
        fresh = pv != "full"
        def chain(dst, a, q):
            m = []; f = fresh
            for kp in range(2):
                if (kp, q) in act: m.append(MF(dst, a(kp), V(P(par, kp, q), 4), "0" if f else dst)); f = False
            return m
        groups = []
        for g in range(16):
            m = []
            if qk:
                kt, q = g >> 2, g & 3
                for ds in range(4): m.append(MF(V(Sw(g), 4), Kf(kt, ds), Qf(ds, q), V(Sw(g), 4) if ds else V(NM(q), 4)))
            dt = g >> 1
            if qk and fresh:
                order = sorted(range(4), key=lambda q: -sum((kp, q) in act for kp in range(2)))
                qs = (order[0], order[3]) if g & 1 else (order[1], order[2])
            else: qs = (2*(g & 1), 2*(g & 1) + 1)
            for q in qs: m += chain(V(O(dt, q), 4), lambda kp: Vf(dt, kp), q)
            if qk and g % 4 == 2: m += chain(A(Lr(g >> 2), 4), lambda kp: ONES, g >> 2)
            if not qk and g in (2, 4, 6, 8): m += chain(A(Lr(g // 2 - 1), 4), lambda kp: ONES, g // 2 - 1)
            groups.append(m)
        st = [0]
        for m in groups: st.append(st[-1] + len(m))
        n = st[16]
        sc = Sched([x for m in groups for x in m])
        if qk and not fresh:
            cvs = place_softmax(sc, softmax_ops(15, par, 3, 3), 0, 2)
            for g in range(15): cvs += place_softmax(sc, softmax_ops(g, par ^ 1, g >> 2, g & 3), st[g+1], 2)
            for c, e in cvs: sc.put(c, e)
            for sp in range(4):
                rd = next_reads(par) if sp == 3 else [x for k in range(4) for x in (rdK(par ^ 1, sp + 1, k), rdV(par, 2*sp + 2 + (k >> 1), k & 1))]
                rd = rd[0::2] + rd[1::2]
                pos = [st[4*sp + gg] + o for gg in range(4) for o in ((1, 3, 7) if sp == 2 else (3, 7))]
                for r, p in zip(rd, pos): assert sc.put(r, p) == p
                if sp != 2: sc.raw("s_waitcnt lgkmcnt(1)", st[4*sp + 4] - 1, "pre")
                sc.raw(f"@need {A(128 + 8*((2*sp + 1) & 3), 8)}", st[4*sp + 2] + 2, "pre")
            gv = sc.seq(next_v_dma(par ^ 1), 0, VST)
            sc.raw(["@waitvm v", "s_waitcnt lgkmcnt(0)", "s_barrier"], st[12] - 1)
            kd = next_k_dma(par ^ 1)
            g = sc.seq(kd[:12], st[11] - 4) ; assert g < st[12]
            g = sc.seq(kd[12:], st[12], 2); assert g < n - 2, g
            if side: side(sc, st, gv)
        elif qk:
            cvs = []
            for g in range(15):
                ex, cv = softmax_ops(g, par ^ 1, g >> 2, g & 3)
                lo, ln = st[g+1] + 1, st[g+2] - st[g+1]
                ps = [lo + (r * ln) // 4 for r in range(4)]
                for e, p in zip(ex, ps): sc.put(e, p, force=True)
                cvs += [(cv[0], ps[1] + 1, ps[1] + 5), (cv[1], ps[3] + 1, ps[3] + 4)]
            dm = vgroups(next_k_dma(0, 1) + ([] if first else next_v_dma(1))); g = 0
            free_at = {}
            if first:
                firstw = lambda r: min([k for k, x in enumerate(sc.mf) if x.split()[1] == V(r, 4) + ","] + [st[11]])
                for k, (r, w) in enumerate(vw1):
                    hi = firstw(r) - 1
                    lo = max(0, min(hi - 4, 8*k))
                    free_at[r] = sc.putw(w, lo, min(hi, lo + 4))
                for k, gr in enumerate(st0[10:]):
                    gr = toI([x.t.replace(f", {V(vL16)},", f", {V(vL)},") for x in gr]); gr[-1].tag = "kv0"
                    r = rno(gr[-1].t.split()[1]); hi = min(firstw(r) - 1, st[4*(k//2) + 4] - 1)
                    lo = hi - (4 if k & 1 else 16)
                    free_at[r] = gg = sc.putw(gr[-1], lo, lo + 3)
                    sc.raw(gr[0], gg - 1, "post")
            for k, gr in enumerate(dm):
                lo = max(g, (k * (st[9] - 4)) // 16)
                for x in gr[:-1]: sc.raw(x, lo, "pre")
                g = sc.putw(gr[-1], lo + 1, lo + 4) + 1
            if pv == 1:
                for dt in range(8):
                    for r in range(4): sc.putw(f"v_mov_b32 {V(O(dt, 2)+r)}, 0", free_at.get(O(dt, 2), 0) + 2, n - 3)
            sc.raw(["@waitvm k" if first else "@waitvm v", "s_waitcnt lgkmcnt(0)", "s_barrier"], st[12] - 1)
            g = st[12]
            for k, gr in enumerate(vgroups(next_k_dma(1))):
                lo = max(g, st[12] + (k * (n - 4 - st[12])) // 8)
                for x in gr[:-1]: sc.raw(x, lo, "pre")
                g = sc.putw(gr[-1], lo + 1, lo + 2) + 1
            assert g < n
            for sp in range(4):
                rd = next_reads(par) if sp == 3 else [x for k in range(4) for x in (rdK(par ^ 1, sp + 1, k), rdV(par, 2*sp + 2 + (k >> 1), k & 1))]
                lo, hi = st[4*sp], st[4*sp + 3] + 1
                for k, r in enumerate(rd): sc.putw(r, lo + (k * (hi - lo)) // 8, lo + ((k + 1) * (hi - lo)) // 8)
                if sp != 2: sc.raw("s_waitcnt lgkmcnt(0)", st[4*sp + 4] - 1, "pre")
            for c, lo, hi in cvs: sc.putw(c, lo, min(hi, n - 1))
        else:
            if pv == 1:
                for k in range(32): sc.raw(f"v_mov_b32 {V(O(k >> 2, 2) + (k & 3))}, 0", k)
            if carry:
                ex, cv = softmax_ops(15, par, 3, 3)
                sc.raw(ex[:2], -1); sc.raw(ex[2], 0); sc.raw(ex[3], 1); sc.raw(cv[0], 2); sc.raw(cv[1], 3)
            for g in range(12): sc.put(rdV(par, (g >> 1) + 2, g & 1), st[g], force=True)
            busy, idle = 65536 + (par ^ 1)*32768, 65536 + par*32768
            sc.raw([f"s_and_b32 {S(sT2)}, {S(sWV)}, 1", f"s_lshl_b32 {S(sT2)}, {S(sT2)}, 14", f"s_cmp_ge_u32 {S(sWV)}, 2",
                    f"s_cselect_b32 {S(sT3)}, {idle}, {S(sTop)}", f"s_cselect_b32 {S(sT)}, {S(sTop)}, {idle}",
                    f"s_add_u32 {S(sT3)}, {S(sT3)}, {S(sT2)}", f"s_add_u32 {S(sT)}, {S(sT)}, {S(sT2)}", f"s_lshl_b32 {S(sT2)}, {S(sWV)}, 10"], 1, "pre")
            sc.raw([f"v_add_u32 {V(vX)}, {S(sT3)}, {V(vL)}"], 2); sc.raw([f"v_add_u32 {V(vXp)}, {S(sT)}, {V(vL)}"], 3)
            sc.raw([f"v_add_u32 {V(vLx)}, {busy}, {V(vL)}", f"v_add_u32 v19, {S(sT2)}, {V(vLx)}"], 5)
            gb = st[12] + 2
            sc.raw([f"@need {A(128, 32)}", "s_barrier"], gb, "pre")
            g = 0
            for dt in range(8):
                for q in range(2):
                    lastm = max(k for k, x in enumerate(sc.mf) if x.split()[1] == V(O(dt, q), 4) + ",")
                    g = sc.put(f"ds_write_b128 {V(vX)}, {V(O(dt, q), 4)} offset:{(q*8+dt)*1024}", max(g, lastm + 6, 6)) + 3
            lastl = max(k for k, x in enumerate(sc.mf) if x.split()[1].startswith("a["))
            gl = sc.seq([f"v_accvgpr_read_b32 {V(TC+q)}, {A(Lr(q))}" for q in range(4)], lastl + 6)
            sc.put(f"ds_write_b128 v19, {V(TC,4)}", max(gl + 1, gb + 1))
            if side: side(sc, st, 0)
        if qk:
            sc.raw(f"s_add_u32 {S(sN)}, {S(sN)}, 1", n - 2, "pre")
            if exit_lab: sc.raw(f"s_cmp_eq_u32 {S(sN)}, {S(sBLK)}", n - 1, "pre"); sc.raw(f"s_cbranch_scc1 {exit_lab}", 999)
        out = sc.emit()
        if drop and qk and pv == "full":
            out = [i for i in out if not (("dma" in drop and i.kind == "vmem") or ("bar" in drop and i.op == "s_barrier") or ("ds" in drop and i.kind == "ds")
                                          or ("exp" in drop and i.op == "v_exp_f32") or ("cvt" in drop and i.op.startswith("v_cvt")) or ("vmw" in drop and i.kind == "wait"))]
        return out
    reent = State(vm=[(set(), "v", False)] + [(set(), "cx", False)] * NCX)
    b.label(name + "_blk", b.flush() + [reent])
    for r in range(16): b(f"v_mov_b32 {V(NM(0)+r)}, 0")
    b(f"s_mov_b32 {S(sSafe)}, 0")
    ST("qrd")
    b.label(name + "_retry", b.flush() + [reent])
    b(f"""
    s_mov_b32 {S(sN)}, 0
    s_mov_b32 {S(sUb)}, {S(sR0)}
    s_cmp_eq_u32 {S(sR0)}, 0
    s_cselect_b32 {S(sKu)}, 1, 0
    s_cmp_ge_u32 {S(sWV)}, 2
    s_cbranch_scc1 {name}_d2
    """)
    pre = b.flush()
    gen0 = {}
    def diag_tail(kg):
        ST("diag")
        b(f"s_or_b32 {S(sT2)}, {S(sPass)}, {S(sSafe)}"); b(f"s_cmp_lg_u32 {S(sT2)}, 0"); b(f"s_cbranch_scc1 {name}_g{kg}")
        gen0[kg] = b.flush()
        spin(f"{name}_pk{kg}", 26, poll_kv.replace(f"dword {V(vPk)},", "dword v26,"), 32)
        ST("dtail")
        b(iteration(0, True, kg, False, None, None, True))
    b(qk_diag(0)); diag_tail(0); b(f"s_branch {name}_it1"); f0a = b.flush()
    b.label(name + "_d2", pre)
    b(qk_diag(1)); diag_tail(1); f0b = b.flush()
    gtext = {}; spv = {}; skip = []
    for kg in range(2):
        h1, spv[kg] = seg([f"s_cmp_eq_u32 {S(sBLK)}, 0", f"s_cbranch_scc1 {name}_pvd{kg}"], gen0[kg])
        h2, ex_ = seg(iteration(0, True, kg, False, name + "_pv1") + toI([f"s_branch {name}_odd"]), spv[kg])
        gtext[kg] = h1 + h2; skip += ex_
    spv0, spv1 = spv[0], spv[1]; it0a, it0b = skip, []
    b.label(name + "_it1", f0a + f0b)
    ST("it0")
    def side_stash(sc, st, gv):
        for k in range(16): sc.put(rdQ(192, k >> 2, k & 3), st[k % 12] + 5 + 16 * 0)
    sWO = sWU; sWo, sHc = 54, 55
    vWo = 23
    sCx, sOb = 81, 82
    def side_osetup(sc, st, gv):
        o = []
        for i in range(5):
            o.append(f"""
            v_add_u32 v28, {64*i}, v0
            v_mul_u32_u24 v29, 3277, v28
            v_lshrrev_b32 v29, 16, v29
            v_mul_u32_u24 v30, 20, v29
            v_sub_u32 v28, v28, v30
            v_bfe_u32 v30, v29, 2, 1
            v_lshlrev_b32 v30, 1, v30
            v_xor_b32 v28, v28, v30
            v_mul_u32_u24 v29, 1280, v29
            v_lshl_add_u32 {V(vWo+i)}, v28, 4, v29
            """)
        sc.seq(o, 0)
        sc.seq([f"""
        s_and_b32 {S(sT3)}, {S(sHD)}, 3
        s_mul_i32 {S(sWo)}, {S(sT3)}, 320
        s_mul_i32 {S(sT3)}, {S(sWV)}, {32*1280}
        s_add_u32 {S(sWo)}, {S(sWo)}, {S(sT3)}
        s_lshr_b32 {S(sT3)}, {S(sHD)}, 2
        s_mul_i32 {S(sT3)}, {S(sT3)}, {512*1280}
        s_add_u32 {S(sWo)}, {S(sWo)}, {S(sT3)}
        s_mul_i32 s71, {S(sWV)}, 10240
        s_lshr_b32 {S(sCx)}, {S(sHD)}, 2
        s_lshl_b32 {S(sCx)}, {S(sCx)}, 3
        s_add_u32 {S(sCx)}, {S(sCx)}, {S(sJ)}
        s_lshl_b32 {S(sCx)}, {S(sCx)}, 2
        s_add_u32 {S(sOb)}, {S(sCx)}, {S(sWV)}
        s_lshl_b32 {S(sCx)}, {S(sOb)}, 2
        s_and_b32 {S(sT3)}, {S(sHD)}, 3
        s_add_u32 {S(sCx)}, {S(sCx)}, {S(sT3)}
        s_lshl_b32 {S(sCx)}, {S(sCx)}, 14
        s_add_u32 {S(sCx)}, {S(sCx)}, {WS_CTX}
        """], 50)
    sJs, sJd, sJp, sJb, sJi = 16, 17, 18, 19, 8
    vJr, vJc, vJo, vJa = 17, 18, 19, 12
    JR = [A(180, 4), A(184, 4), A(188, 4), V(28, 4)]
    def half(r, hf): return (A if r[0] == "a" else V)(rno(r) + 2*hf, 2)
    def j_setup():
        return toI([f"""
        v_lshrrev_b32 {V(vJr)}, 3, v0
        v_bfe_u32 {V(vJc)}, v0, 4, 2
        v_lshlrev_b32 {V(vJc)}, 1, {V(vJc)}
        v_and_b32 v4, 7, v0
        v_xor_b32 {V(vJc)}, {V(vJc)}, v4
        v_lshlrev_b32 {V(vJc)}, 4, {V(vJc)}
        s_lshl_b32 {S(sJi)}, s2, 2
        s_add_u32 {S(sJi)}, {S(sJi)}, {S(sWV)}
        s_add_u32 {S(sJb)}, {S(sLw)}, 131072
        """])
    def j_dma(srd, buf):
        o = [f"v_mad_u32_u24 {V(vJo)}, {V(vJr)}, {S(sJp)}, {V(vJc)}", f"s_lshl_b32 {S(sJp)}, {S(sJp)}, 3"]
        for i in range(4):
            if i: o.append(f"s_add_u32 {S(sJs)}, {S(sJs)}, {S(sJp)}")
            o += [f"s_add_u32 m0, {S(sJb)}, {buf*4096 + i*1024}", I(f"buffer_load_dwordx4 {V(vJo)}, {S(srd,4)}, {S(sJs)} offen{nt('j')} lds", "j")]
        return toI(o)
    def t_addr():
        return toI([f"""
        s_sub_u32 {S(sT3)}, {S(sJi)}, 540
        s_cmp_lt_u32 {S(sJi)}, 540
        s_cselect_b32 {S(sT3)}, {S(sJi)}, {S(sT3)}
        s_cmp_lt_u32 {S(sJi)}, 540
        s_cselect_b32 {S(RT)}, {S(RT)}, {S(RO)}
        s_cmp_lt_u32 {S(sJi)}, 540
        s_cselect_b32 {S(RT+1)}, {S(RT+1)}, {S(RO+1)}
        s_cmp_lt_u32 {S(sJi)}, 540
        s_cselect_b32 {S(RT+2)}, {S(RT+2)}, {S(RO+2)}
        s_mov_b32 s9, {hex((2**32 + 9)//10)}
        s_cmp_lt_u32 {S(sJi)}, 540
        s_cselect_b32 s9, {hex((2**32 + 26)//27)}, s9
        s_cmp_lt_u32 {S(sJi)}, 540
        s_cselect_b32 s10, 27, 10
        s_mov_b32 {S(sJd)}, {WS_WOUT}
        s_cmp_lt_u32 {S(sJi)}, 540
        s_cselect_b32 {S(sJd)}, {WS_WIN}, {S(sJd)}
        s_lshl_b32 {S(sJp)}, s10, 7
        s_mul_hi_u32 s9, {S(sT3)}, s9
        s_mul_i32 s10, s9, s10
        s_sub_u32 s10, {S(sT3)}, s10
        s_lshl_b32 {S(sT3)}, {S(sT3)}, 12
        s_add_u32 {S(sJd)}, {S(sJd)}, {S(sT3)}
        s_mul_i32 {S(sJs)}, s9, {S(sJp)}
        s_lshl_b32 {S(sJs)}, {S(sJs)}, 5
        s_lshl_b32 s10, s10, 7
        s_add_u32 {S(sJs)}, {S(sJs)}, s10
        s_cmp_lt_u32 {S(sJi)}, 810
        s_cselect_b32 {S(sJd)}, {S(sJd)}, {hex(OOB)}
        """])
    def t_out():
        o = [f"""
        v_lshrrev_b32 v4, 2, v0
        v_bfe_u32 {V(vJa)}, v0, 3, 2
        v_lshlrev_b32 {V(vJa)}, 5, {V(vJa)}
        v_lshl_add_u32 {V(vJa)}, v4, 7, {V(vJa)}
        v_and_b32 v4, 3, v0
        v_lshl_add_u32 {V(vJa)}, v4, 3, {V(vJa)}
        v_add_u32 {V(vJa)}, {S(sJb)}, {V(vJa)}
        v_xor_b32 {V(vJa+1)}, 32, {V(vJa)}
        v_xor_b32 {V(vJa+2)}, 64, {V(vJa)}
        v_xor_b32 {V(vJa+3)}, 96, {V(vJa)}
        """]
        rd = [f"ds_read_b64_tr_b16 {half(JR[n], hf)}, {V(vJa+n)} offset:{hf*2048}" for n in range(4) for hf in range(2)]
        st = [f"buffer_store_dwordx4 {JR[n]}, {V(vL)}, {sWS}, {S(sJd)} offen offset:{n*1024}{SC}" for n in range(4)]
        return toI(o), toI(rd), toI(st)
    def s_addr(k):
        return toI([f"""
        s_lshr_b32 s9, {S(sJi)}, 5
        s_add_u32 s9, s9, {32*k}
        s_and_b32 s10, {S(sJi)}, 31
        s_lshl_b32 {S(sJs)}, s9, 17
        s_lshl_b32 s10, s10, 7
        s_add_u32 {S(sJs)}, {S(sJs)}, s10
        s_mov_b32 {S(sJp)}, 4096
        """])
    def s_out(k, buf):
        o = [f"""
        s_lshr_b32 {S(sJd)}, {S(sJi)}, 6
        s_add_u32 {S(sJd)}, {S(sJd)}, {16*k}
        s_lshl_b32 {S(sJd)}, {S(sJd)}, 18
        s_and_b32 s11, {S(sJi)}, 31
        s_lshl_b32 s11, s11, 13
        s_add_u32 {S(sJd)}, {S(sJd)}, s11
        s_bfe_u32 s11, {S(sJi)}, 0x10005
        s_lshl_b32 s11, s11, 11
        s_add_u32 {S(sJd)}, {S(sJd)}, s11
        s_add_u32 {S(sJd)}, {S(sJd)}, {WS_WSP}
        s_add_u32 s11, {S(sJd)}, 4096
        """]
        if k == 0: o.append(f"""
        v_bfe_u32 {V(vJa)}, v0, 1, 2
        v_lshlrev_b32 {V(vJa)}, 5, {V(vJa)}
        v_and_b32 v4, 15, v0
        v_lshl_add_u32 {V(vJa)}, v4, 7, {V(vJa)}
        v_lshrrev_b32 v4, 4, v0
        v_lshl_add_u32 {V(vJa)}, v4, 3, {V(vJa)}
        v_add_u32 {V(vJa)}, {S(sJb)}, {V(vJa)}
        v_xor_b32 {V(vJa+1)}, 32, {V(vJa)}
        v_xor_b32 {V(vJa+2)}, 64, {V(vJa)}
        v_xor_b32 {V(vJa+3)}, 96, {V(vJa)}
        """)
        rd = [f"ds_read_b64 {half(JR[2*ks+mt], hf)}, {V(vJa+2*ks+hf)} offset:{buf*4096 + mt*2048}" for ks in range(2) for mt in range(2) for hf in range(2)]
        st = [f"buffer_store_dwordx4 {JR[2*ks+mt]}, {V(vL)}, {sWS}, {'s11' if ks else S(sJd)} offen offset:{mt*1024}{SC}" for ks in range(2) for mt in range(2)]
        return toI(o), toI(rd), toI(st)
    def wseq(sc, ins, lo, step=1):
        ins = toI(ins); sc.seqs.append(ins); g = lo; prev = None
        for i in ins:
            if i.kind in ("salu", "pseudo"):
                if prev is not None and prev.op.startswith("s_cmp"): sc.put(i, g, force=True)
                else: g = sc.put(i, g + (prev is not None and prev.kind != "salu"))
            else: g = sc.putw(i, g + 1, g + 3) + (step if i.kind == "vmem" else 0)
            prev = i
        return g
    def job_out(sc, st, gv, parts, nxt):
        o, rd, sto = parts
        g = wseq(sc, o, 0)
        g = wseq(sc, ["@waitvm j"] + rd, max(g, gv - 14))
        g = wseq(sc, nxt, max(g, gv), 3); assert g < st[12] + 2, (g, st[12])
        for x in sto: x.tag = 'js'
        g = wseq(sc, sto, g, JST)
    def side1(sc, st, gv):
        side_stash(sc, st, gv); wseq(sc, j_setup() + t_addr(), 40)
    def st_init():
        return toI([f"""
        v_and_b32 v21, 15, v0
        v_lshlrev_b32 v21, 3, v21
        v_bfe_u32 v22, v0, 4, 1
        v_mul_u32_u24 v22, {WS_ST2 - WS_ST1}, v22
        v_add_u32 v21, v21, v22
        v_mov_b32 v14, -1.0
        v_mov_b32 v15, -1.0
        s_lshl_b32 s9, {S(sJi)}, 7
        s_add_u32 s9, s9, {WS_ST1}
        buffer_store_dwordx2 v[14:15], v21, {sWS}, s9 offen sc1
        """])
    def side2(sc, st, gv):
        wseq(sc, ["@waitvm kv0", f"s_lshl_b32 s9, {S(sHD)}, 7", f"s_add_u32 s9, s9, {WS_FLG + FL_K0*128}", f"buffer_atomic_add {V(vOne)}, {V(vFlagW)}, {sWS}, s9 offen"], 8)
        side_osetup(sc, st, gv); g = wseq(sc, j_dma(RT, 0), gv, 3)
        wseq(sc, st_init(), g)
    def side3(sc, st, gv): job_out(sc, st, gv, t_out(), [])
    def side4(sc, st, gv): wseq(sc, s_addr(0) + j_dma(RS, 0), gv - 8, 3)
    def side5(sc, st, gv): job_out(sc, st, gv, s_out(0, 0), [f"v_add_u32 {V(vPa)}, {(FL_K0 - FL_KV)*128}, {V(vPa)}", poll_kv])
    def side6(sc, st, gv):
        g = wseq(sc, s_addr(1) + j_dma(RS, 0), gv - 8, 3)
        if CPF: sc.raw(pf_code("s", 21, 22), g + 4)
    def side7(sc, st, gv): job_out(sc, st, gv, s_out(1, 0), [])
    sides = [side1, side2, side3, side4, side5, side6, side7]
    if fine == "side": T.stamp(b, "it0")
    for k, sd in enumerate(sides):
        it_ = iteration((k + 1) & 1, True, "full", True, name + "_pv0" if k == 6 else None, sd)
        if "sld" in drop2: it_ = [i for i in it_ if not (i.kind == "vmem" and "load" in i.op and i.tag not in ("k", "v"))]
        if "sst" in drop2: it_ = [i for i in it_ if not (i.kind == "vmem" and "store" in i.op)]
        b(it_)
        if k == 4: spin(name + "_p0", vPk, poll_kv, 32)
        if k == 6: ex7 = b.flush()
        if fine == "side": T.stamp(b, f"it{k+1}")
    if fine == "att0": ST("it2")
    ins, outs = b.chain_loop([(name + "_even", iteration(0, True, "full", True, name + "_pv1")),
                              (name + "_odd", iteration(1, True, "full", True, name + "_pv0") + toI([f"s_branch {name}_even"]))], extra={1: skip})
    outs = outs[::-1]
    for kg in range(2): b.label(f"{name}_g{kg}"); b.out += gtext[kg]
    TMP, CF = 64, 32
    CB = [0, 40960, 81920, 122880]
    def dmaO(c):
        o = [f"s_add_u32 {S(sHc)}, {S(sHD)}, {c}", f"s_and_b32 {S(sHc)}, {S(sHc)}, 3", f"s_mul_i32 {S(sHc)}, {S(sHc)}, {128*1280}", f"s_add_u32 {S(sHc)}, {S(sHc)}, {S(sWo)}"]
        for k in range(10):
            if k == 5: o.append(f"s_add_u32 {S(sHc)}, {S(sHc)}, {16*1280}")
            o += [f"s_add_u32 m0, s71, {CB[c] + k*1024}", I(f"buffer_load_dwordx4 {V(vWo + k % 5)}, {sWO}, {S(sHc)} offen{nt('O')} lds", f"o{c}")]
        return toI(o)
    def Xf(c, ks, m):
        if c == 0: return A(192 + 8*ks + 4*m, 4) if m < 2 else V(CF + 8*ks + 4*(m-2), 4)
        return A(64*(c-1) + 16*ks + 4*m, 4)
    sCc = 58
    def ldX(c, passes):
        o = [f"s_add_u32 {S(sCc)}, {S(sHD)}, {c}", f"s_and_b32 {S(sCc)}, {S(sCc)}, 3", f"s_lshl_b32 {S(sT2)}, {S(sOb)}, 2", f"s_add_u32 {S(sCc)}, {S(sCc)}, {S(sT2)}",
             f"s_lshl_b32 {S(sCc)}, {S(sCc)}, 14", f"s_add_u32 {S(sCc)}, {S(sCc)}, {WS_CTX}"]
        for p in passes:
            for ks in range(4):
                if ks % 2 == 0: o.append(f"s_add_u32 {S(sT2)}, {S(sCc)}, {p*8192 + ks*2048}")
                for a in range(2): o.append(f"buffer_load_dwordx4 {Xf(c, ks, 2*p + a)}, {V(vL)}, {sWS}, {S(sT2)} offen offset:{(ks & 1)*2048 + a*1024} sc1")
        return toI(o)
    def own_long():
        o = ["@waitvm cx"]
        for ks in range(4):
            if ks % 2 == 0: o.append(f"s_add_u32 {S(sKs)}, {S(sCx)}, {ks*2048}")
            for a in range(2): o.append(f"buffer_load_dwordx4 {Xf(0, ks, a)}, {V(vL)}, {sWS}, {S(sKs)} offen offset:{(ks & 1)*2048 + a*1024} sc1")
        return toI(o)
    def side_o0(sc, st, gv): paced(sc, vgroups(dmaO(0) + own_long()), 2, len(sc.mf) + 8)
    fin0 = []; fin1 = []
    for par, preds in ((0, outs[0] + ex7), (1, outs[1] + it0a + it0b)):
        b.label(f"{name}_pv{par}", preds); ST("loop")
        b(f"s_cmp_eq_u32 {S(sPass)}, 1"); b(f"s_cbranch_scc1 {name}_pw{par}"); pw = b.flush()
        b(iteration(par, False, "full", True)); b(f"s_branch {name}_fin0"); fin0 += b.flush()
        b.label(f"{name}_pw{par}", pw); b(iteration(par, False, "full", True, None, side_o0)); b(f"s_branch {name}_fin1"); fin1 += b.flush()
    b.label(name + "_pvd0", spv0); b(iteration(0, False, 0, False, None, side_o0)); b(f"s_branch {name}_fin1"); fin1 += b.flush()
    b.label(name + "_pvd1", spv1); b(iteration(0, False, 1, False, None, side_o0)); b(f"s_branch {name}_fin1"); fin1 += b.flush()
    def merge_reads():
        b("s_waitcnt lgkmcnt(0)"); b("s_barrier")
        for w in range(4): b(f"ds_read_b128 {V(48+4*w, 4)}, {V(vLx)} offset:{w*1024}")
        for i in range(4):
            for a in range(2):
                for dt in (2*i, 2*i+1): b(f"ds_read_b128 {V(TMP + 4*(a*8+dt), 4)}, {V(vXp)} offset:{(a*8+dt)*1024}")
    def check():
        for r in range(8): b(f"v_add_f32 {V(48+r)}, {V(48+r)}, {V(56+(r ^ 2))}")
        b(f"""
        v_min3_f32 v56, v48, v49, v50
        v_min3_f32 v56, v56, v51, v52
        v_min3_f32 v56, v56, v53, v54
        v_min_f32 v56, v56, v55
        v_pk_add_f32 v[58:59], v[48:49], v[50:51]
        v_pk_add_f32 v[60:61], v[52:53], v[54:55]
        v_pk_add_f32 v[58:59], v[58:59], v[60:61]
        s_mov_b32 {S(sMK+2)}, {FH(L_HI)}
        v_add_f32 v57, v58, v59
        v_cmp_nle_f32 vcc, {FH(L_LO)}, v56
        v_cmp_nge_f32 {S(sMK,2)}, {S(sMK+2)}, v57
        s_or_b64 vcc, vcc, {S(sMK,2)}
        s_cselect_b32 {S(sT2)}, 1, {1 if force_fallback else 0}
        s_andn2_b32 {S(sT2)}, {S(sT2)}, {S(sSafe)}
        {"s_nop 0" if drop else f"s_cbranch_scc1 {name}_slow"}
        s_bitcmp1_b32 {S(sWV)}, 0
        s_cselect_b64 vcc, -1, 0
        s_bitcmp1_b32 {S(sWV)}, 1
        s_cselect_b64 {S(sMK,2)}, -1, 0
        """)
        for r in range(4): b(f"v_cndmask_b32 {V(48+r)}, {V(48+r)}, {V(52+r)}, vcc")
        b(f"""
        v_cndmask_b32 v12, v50, v48, {S(sMK,2)}
        v_cndmask_b32 v14, v51, v49, {S(sMK,2)}
        v_rcp_f32 v12, v12
        v_rcp_f32 v14, v14
        """)
    def normalise(off):
        for i in range(4):
            for a in range(2):
                for dt in (2*i, 2*i+1):
                    o = O(dt, 2 + a); t = TMP + 4*(a*8+dt)
                    for h in (0, 2): b(f"v_pk_add_f32 {V(t+h,2)}, {V(t+h,2)}, {V(o+h,2)}")
                    for h in (0, 2): b(f"v_pk_mul_f32 {V(t+h,2)}, {V(t+h,2)}, {V(12+2*a,2)} op_sel_hi:[1,0]")
                t = TMP + 4*(a*8+2*i); d = CF + 8*i + 4*a
                for k in range(4): b(f"v_cvt_pk_bf16_f32 {V(d+k)}, {V(t+2*k)}, {V(t+2*k+1)}")
                if (i, a) in ((0, 0), (2, 0)): b(f"s_add_u32 {S(sT3)}, {S(sCx)}, {off + i*2048}")
                b(f"buffer_store_dwordx4 {V(d,4)}, {V(vL)}, {sWS}, {S(sT3)} offen offset:{(i & 1)*2048 + a*1024} sc1", "cx")
    b.label(name + "_fin0", fin0)
    ST("pv")
    merge_reads(); ST("xr"); check()
    b(f"""
    s_mov_b32 {S(sPass)}, 1
    s_mov_b32 {S(sBLK)}, {S(sBLK2)}
    s_mov_b32 {S(sR0)}, 0
    s_mov_b32 {S(sA0)}, {hex(OOB)}
    s_mov_b32 {S(sA1)}, {hex(OOB)}
    s_mov_b32 {S(sAl)}, 163840
    @waitvm k
    @waitvm js
    s_waitcnt lgkmcnt(0)
    s_barrier
    """)
    b([rdK0(0, ds) for ds in range(4)])
    if tail:
        b(f"""
        s_and_b32 {S(sT2)}, s2, 31
        s_lshl_b32 {S(sT2)}, {S(sT2)}, 7
        s_add_u32 {S(sT2)}, {S(sT2)}, {WS_FLG + FL_R*128}
        buffer_atomic_add {V(vOne)}, {V(vFlagW)}, {sWS}, {S(sT2)} offen
        """)
    for k, gr in enumerate(vgroups(toI(unit_diag(sVs, sVb)) + dmaKV(1, 0, sVs, "v"))):
        b(gr)
        for r in range(8*k, 8*k + 8): b(f"v_accvgpr_mov_b32 {A(r)}, {A(192+r)}")
    normalise(0)
    if PF:
        b(f"""
        v_mul_u32_u24 v28, 205, v0
        v_lshrrev_b32 v28, 11, v28
        v_mul_u32_u24 v29, 1280 - 10*128, v28
        v_lshl_add_u32 v28, v0, 7, v29
        v_mov_b32 v29, {hex(OOB)}
        v_cmp_gt_u32 vcc, 40, v0
        v_cndmask_b32 v28, v29, v28, vcc
        s_lshr_b32 {S(sT2)}, s2, 3
        s_lshl_b32 {S(sT2)}, {S(sT2)}, 2
        s_add_u32 {S(sT2)}, {S(sT2)}, {S(sWV)}
        s_lshr_b32 {S(sT3)}, {S(sHD)}, 2
        s_lshl_b32 {S(sT3)}, {S(sT3)}, 7
        s_add_u32 {S(sT3)}, {S(sT3)}, {S(sT2)}
        s_mul_i32 {S(sT3)}, {S(sT3)}, 5120
        """)
        b(f"buffer_load_dword v30, v28, {sWO}, {S(sT3)} offen{nt('o')}", "cx")
        b(f"""
        s_getpc_b64 s[4:5]
        {name}_pc2:
        s_lshl_b32 {S(sT2)}, {S(sT2)}, 9
        v_and_b32 v28, 3, v0
        v_lshl_add_u32 v28, v28, 7, {S(sT2)}
        v_min_u32 v28, code_end - {name}_pc2 - 4, v28
        """)
        b("global_load_dword v30, v28, s[4:5]", "cx")
    masks(False)
    if fine is not True: T.stamp(b, "blk1end")
    b("s_waitcnt lgkmcnt(0)"); b(f"s_branch {name}_blk")
    for x in b.flush(): assert [e[1] for e in x.vm][-NCX-1:] == ["v"] + ["cx"] * NCX
    b.label(name + "_slow", [State()])
    b(f"""
    s_waitcnt vmcnt(0) lgkmcnt(0)
    s_mov_b32 {S(sSafe)}, 1
    s_mov_b32 {S(sN)}, 0
    """)
    for q in range(4): b(f"v_mov_b32 {V(64+q)}, {FH(NEGBIG)}")
    b(f"""
    v_lshrrev_b32 v69, 4, v0
    v_lshlrev_b32 v69, 2, v69
    v_and_b32 v68, 15, v0
    v_sub_u32 v68, v68, v69
    s_and_b32 {S(sT2)}, {S(sWV)}, 1
    s_lshl_b32 {S(sT2)}, {S(sT2)}, 4
    v_add_u32 v68, {S(sT2)}, v68
    s_lshr_b32 {S(sT2)}, {S(sWV)}, 1
    s_lshl_b32 {S(sMK)}, {S(sT2)}, 5
    s_add_u32 {S(sMK+1)}, {S(sMK)}, 16
    s_sub_u32 {S(sMK+2)}, 96, {S(sMK)}
    s_add_u32 {S(sMK+3)}, {S(sMK+2)}, 16
    s_lshl_b32 s4, {S(sT2)}, 6
    s_xor_b32 s5, s4, 32
    s_xor_b32 s6, s4, 64
    s_xor_b32 s7, s4, 96
    v_mov_b32 v70, {FH(NEGBIG)}
    """)
    body = toI(["s_barrier", f"s_lshl_b32 {S(sKs)}, {S(sN)}, 15", f"s_add_u32 {S(sKs)}, {S(sKs)}, {S(sKb)}"]) + dmaKV(0, 0, sKs, "k")
    body += toI(["s_waitcnt vmcnt(0)", "s_barrier",
                 f"s_cmp_eq_u32 {S(sN)}, {S(sBLK)}", f"s_cselect_b32 {S(sT3)}, 0, 4096"])
    for kt in range(4):
        body += toI([rdK(0, kt, ds) for ds in range(4)])
        body += toI([f"v_subrev_u32 v69, {S(sMK+kt)}, v68", f"v_add_u32 v69, {S(sT3)}, v69"])
        for q in range(4):
            for ds in range(4): body += toI([MF(V(Sw(q), 4), Kf(kt, ds), Qf(ds, q), V(Sw(q), 4) if ds else "0")])
        for q in range(4):
            body += toI([f"v_add_u32 v72, {S(4+q)}, v69"])
            for r in range(4):
                body += toI([f"v_cmp_gt_i32 vcc, {r}, v72", f"v_cndmask_b32 v71, {V(Sw(q)+r)}, v70, vcc", f"v_max_f32 {V(64+q)}, {V(64+q)}, v71"])
    body += toI(["s_waitcnt lgkmcnt(0)", f"s_add_u32 {S(sN)}, {S(sN)}, 1", f"s_cmp_le_u32 {S(sN)}, {S(sBLK)}", f"s_cbranch_scc1 {name}_mx"])
    b.chain_loop([(name + "_mx", body)], align=0)
    for q in range(4):
        b(f"""
        v_mov_b32 v68, {V(64+q)}
        v_permlane16_swap_b32 {V(64+q)}, v68
        v_max_f32 {V(64+q)}, {V(64+q)}, v68
        v_mov_b32 v68, {V(64+q)}
        v_permlane32_swap_b32 {V(64+q)}, v68
        v_max_f32 {V(64+q)}, {V(64+q)}, v68
        """)
    b(f"""
    s_lshl_b32 {S(sT3)}, {S(sWV)}, 10
    v_add_u32 v19, {S(sT3)}, {V(vLx)}
    ds_write_b128 v19, v[64:67]
    v_xor_b32 v19, 0x800, v19
    s_waitcnt lgkmcnt(0)
    s_barrier
    ds_read_b128 v[68:71], v19
    """)
    for q in range(4):
        b(f"v_max_f32 {V(64+q)}, {V(64+q)}, {V(68+(q ^ 2))}")
        for r in range(4): b(f"v_sub_f32 {V(NM(q)+r)}, 0, {V(64+q)}")
    b("s_barrier")
    b(unit_r0(sKs, sKb)); b(dmaKV(0, 1, sKs, "k")); b(unit_diag(sVs, sVb)); b(dmaKV(1, 0, sVs, "v"))
    b([rdK0(0, ds) for ds in range(4)])
    masks(False)
    b("s_waitcnt vmcnt(0) lgkmcnt(0)"); b(f"s_branch {name}_retry")
    b.label(name + "_fin1", fin1)
    ST("pv")
    merge_reads(); ST("xr"); check()
    normalise(8192)
    T.stamp(b, "attend")
    vOa = 8
    b(f"""
    v_lshrrev_b32 v28, 2, v0
    v_mul_u32_u24 v28, 320, v28
    v_and_b32 v29, 3, v0
    v_lshl_add_u32 v28, v29, 3, v28
    v_bfe_u32 v29, v0, 4, 1
    v_lshlrev_b32 v29, 5, v29
    v_add_u32 {V(vOa)}, v28, v29
    v_sub_u32 v28, v28, v29
    v_add_u32 {V(vOa+1)}, 32, v28
    s_add_u32 {S(sT2)}, {S(sOb)}, {FL_CX}
    s_lshl_b32 {S(sT2)}, {S(sT2)}, 7
    s_add_u32 {S(sT2)}, {S(sT2)}, {WS_FLG}
    v_mov_b32 {V(vPa)}, {S(sT2)}
    @waitvm o0
    s_barrier
    """)
    def oacc(n, m): return 96 + 16*n + 4*m
    def OWf(buf, ks): return 64 + 16*buf + 4*ks
    outers = [(c, n) for c in range(4) for n in range(10)]
    def rdO(k):
        c, n = outers[k]
        return [f"ds_read_b64_tr_b16 {V(OWf(k & 1, ks) + 2*hf, 2)}, {V(vOa + 2*c + (n & 1))} offset:{(32*ks + 16*hf)*320 + (n & ~1)*32}"
                for ks in range(4) for hf in range(2)]
    b(rdO(0))
    mf = []
    for k, (c, n) in enumerate(outers):
        for m in range(4):
            for ks in range(4):
                d = V(oacc(n, m), 4)
                mf.append(MF(d, V(OWf(k & 1, ks), 4), Xf(c, ks, m), "0" if (c == 0 and ks == 0) else d))
    sc = Sched(mf)
    for k in range(39):
        for r, x in enumerate(rdO(k + 1)): assert sc.put(x, 16*k + r) == 16*k + r
        sc.raw("s_waitcnt lgkmcnt(0)", 16*k + 15, "pre")
    seq(sc, [f"v_add_u32 {V(vOa + 2*c + e)}, {CB[c]}, {V(vOa + e)}" for c in (1, 2, 3) for e in (0, 1)], 8)
    sc.raw("@waitvm cx", OA)
    g = seq(sc, [f"s_add_u32 {S(sT2)}, {S(sOb)}, {FL_CX}", f"s_lshl_b32 {S(sT2)}, {S(sT2)}, 7", f"s_add_u32 {S(sT2)}, {S(sT2)}, {WS_FLG}"], OA - 8)
    g = sc.put(f"buffer_atomic_add {V(vOne)}, {V(vFlagW)}, {sWS}, {S(sT2)} offen", OA + 1, force=True)
    def pace2(groups, g0, step):
        g = g0
        for gr in groups:
            for x in gr[:-1]: sc.raw(x, g - 1, "post")
            g = sc.putw(gr[-1], g, g + 1) + step
        return g
    g = pace2(vgroups(dmaO(1)), g + 2, 4)
    gp = sc.put(poll_kv, g, force=True)
    d2 = vgroups(dmaO(2))
    g = pace2(d2[:OD], gp + 3, 4)
    OC = max(g, gp + OW)
    sc.raw("@mark pc", OC)
    g = pace2(vgroups(ldX(1, (0, 1))), OC + 2, 1 if OC > 120 else 2); assert g < 161, g
    sc.raw(["@waitvm o1", "s_barrier"], 143, "post2")
    g = pace2(d2[OD:] + vgroups(ldX(2, (0, 1))), 164, 4); assert g < 310, g
    sc.raw(["@waitvm o2", "s_barrier"], 303, "post2")
    g = pace2(vgroups(dmaO(3) + ldX(3, (0, 1))), g, 4); assert g < 450, g
    sc.raw(["@waitvm o3", "s_barrier"], 463, "post2")
    sP0, sP1 = 60, 61
    seq(sc, [f"s_lshr_b32 {S(sT3)}, {S(sHD)}, 2", f"s_mul_i32 {S(sP0)}, {S(sT3)}, {32*20*4096}", f"s_add_u32 {S(sP0)}, {S(sP0)}, {WS_PART + 20*4096}",
             f"s_lshr_b32 {S(sT3)}, {S(sWV)}, 1", f"s_mul_i32 {S(sT3)}, {S(sT3)}, {20*4096}", f"s_sub_u32 {S(sP0)}, {S(sP0)}, {S(sT3)}",
             f"s_and_b32 {S(sT3)}, {S(sWV)}, 1", f"s_lshl_b32 {S(sT3)}, {S(sT3)}, 10", f"s_add_u32 {S(sP0)}, {S(sP0)}, {S(sT3)}",
             f"s_and_b32 {S(sT3)}, {S(sHD)}, 3", f"s_mul_i32 {S(sT3)}, {S(sT3)}, {5*4096}", f"s_add_u32 {S(sP0)}, {S(sP0)}, {S(sT3)}",
             f"s_mul_i32 {S(sT3)}, {S(sJ)}, {40*4096}", f"s_add_u32 {S(sP1)}, {S(sP0)}, {S(sT3)}",
             f"s_sub_u32 {S(sP0)}, {S(sP0)}, {S(sT3)}", f"s_add_u32 {S(sP0)}, {S(sP0)}, {15*40*4096}"], 455)
    g = 0
    for p in range(5):
        for m in range(4):
            r0, r1 = oacc(2*p, m), oacc(2*p + 1, m)
            cv = lambda d, x: f"v_cvt_pk_bf16_f32 {V(d)}, {V(x)}, {V(x+1)}"
            seq(sc, [cv(r0, r0), cv(r0+1, r0+2)], 480 + 32*p + 4*m + 9)
            g = seq(sc, [cv(r0+2, r1), cv(r0+3, r1+2), f"s_add_u32 {S(sT3)}, {S(sP1 if m >> 1 else sP0)}, {p*4096}",
                         I(f"buffer_store_dwordx4 {V(r0,4)}, {V(vL)}, {sWS}, {S(sT3)} offen offset:{(m & 1)*2048}{PST}", "pt")], max(g + (6 if p < 4 else 0), 480 + 32*p + 16 + 4*m + 9))
    hk = {"pc": lambda: spin(name + "_pc", vPk, poll_kv, 4)}
    if tail:
        seq(sc, [f"v_and_b32 {V(vPa)}, 31, v0", f"v_lshlrev_b32 {V(vPa)}, 7, {V(vPa)}", f"v_add_u32 {V(vPa)}, {WS_FLG + FL_R*128}, {V(vPa)}", poll_kv], 452)
        sc.raw("@mark pr", 495, "post2"); hk["pr"] = lambda: spin(name + "_pr", vPk, poll_kv, 32)
    if fine == "op":
        for gg in (OA + 1, OC - 1, OC + 1, 159, 175, 319, 335, 479, 495):
            sc.raw(f"@mark g{gg}", gg, "post2"); hk[f"g{gg}"] = lambda gg=gg: T.stamp(b, f"g{gg}")
    emit_split(sc, hk)
    T.stamp(b, "end")
    if tail:
        b(f"""
        s_lshl_b32 s79, {S(sJ)}, 2
        s_and_b32 {S(sT2)}, {S(sHD)}, 3
        s_add_u32 s79, s79, {S(sT2)}
        s_lshl_b32 s79, s79, 2
        s_add_u32 s79, s79, {S(sWV)}
        s_lshl_b32 s79, s79, 7
        s_add_u32 s79, s79, {WS_FLG + FL_P*128}
        """)
        tail(b, T, name, R, WS_FLG + FL_P*128)
    T.dump(b, R["ws"], 2, sWV, 12)
    b.label(name + "_end")
    b("s_endpgm")
    b.flush()
    lastw = {}
    for i in b.out:
        if i.kind == "label" and i.t.endswith("_blk:"): break
        if i.tag in ("kv0", "kv1") or i.op == "ds_write_b128":
            data = regs_of(i.t.split(None, 1)[1].split(",")[0 if i.kind == "vmem" else 1].split()[0])
            assert all(lastw[r].op in ("v_cvt_pk_bf16_f32", "v_accvgpr_write_b32") for r in data), i.t
        if i.op == "v_accvgpr_write_b32" and not i.t.endswith("v12"): assert all(lastw[r].op == "v_cvt_pk_bf16_f32" for r in i.r), i.t
        for r in i.w: lastw[r] = i
    return dict(name=name, text=b.text(), kd=kd(name, 512, 256), launch=f"; @launch {'' if name.startswith('adaLN') and not aslist else f'kernel={name} '}grid=(256,1,1) block=(256,1,1) lds=163840", stamps=T.names)
```

```python
from common import *
from kt import (sWV, sRB, sCS, sT, sT2, sT3, vL16, vG, vR, slices, tile_voffs, xg, row_sums, fin_stats,
                store_act, gelu, GC1, GC2, SPIN_MAX)
from kf2 import vgroups
FA, FC, FD, FV = 0, 256, 384, 512

def fused(**kw):
    def f(b, T, name, RA, flp):
        R = load_srds(b, ["x", "bsp", "out"], 8); R["ws"] = RA["ws"]
        body(b, T, name + "_t", R, flp, **kw)
        T.stamp(b, "tend")
    return f

def body(b, T0, name, R, flp, few=None, SP=(2, 4, 2, 4, 1), AC=40, EV=9, PFIRST=True, PNT=''):
    class TT:
        def stamp(self, b, nm):
            if few is None or nm in few: T0.stamp(b, nm)
    T = TT()
    sWS = S(R["ws"], 4); sX = S(R["x"], 4)
    b(f"""
    s_and_b32 {S(sT)}, s2, 7
    s_lshr_b32 {S(sT2)}, s2, 3
    s_and_b32 {S(sCS)}, {S(sT)}, 1
    s_lshl_b32 {S(sCS)}, {S(sCS)}, 2
    s_and_b32 {S(sT3)}, {S(sT2)}, 3
    s_add_u32 {S(sCS)}, {S(sCS)}, {S(sT3)}
    s_lshr_b32 {S(sRB)}, {S(sT)}, 1
    s_lshl_b32 {S(sRB)}, {S(sRB)}, 3
    s_lshr_b32 {S(sT3)}, {S(sT2)}, 2
    s_add_u32 {S(sRB)}, {S(sRB)}, {S(sT3)}
    v_lshlrev_b32 {V(vL16)}, 4, v0
    v_lshrrev_b32 {V(vG)}, 4, v0
    v_and_b32 {V(vR)}, 15, v0
    """)
    sB5, sE5, sB7, sE7 = 54, 55, 56, 57
    sW, sXo, sW1, sW2, sRow, sLb, sSp = 58, 59, 60, 61, 62, 76, 77
    SM, SV, TB = 156 * 1024, 157 * 1024, 140 * 1024
    vFW, vOne, vPa, vPoll, vSm, vOob = 11, 12, 13, 14, 38, 39
    vSt, vSl, vVec, vXm = 36, 37, 41, 170
    slices(b, 5, sB5, sE5)
    slices(b, 7, sB7, sE7)
    at5 = tile_voffs(b, 5, sB5, sE5, 4, 5, 6, 1024, vL16)
    at7 = tile_voffs(b, 7, sB7, sE7, 4, 5, 7, 1024, vL16)
    b(f"""
    s_mul_i32 {S(sXo)}, {S(sRB)}, {20*4096}
    s_lshl_b32 {S(sT)}, {S(sWV)}, 10
    s_add_u32 {S(sXo)}, {S(sXo)}, {S(sT)}
    s_add_u32 {S(sW)}, {S(sXo)}, {WS_PART}
    s_add_u32 {S(sXo)}, {S(sXo)}, {WS_XA}
    s_lshl_b32 {S(sT)}, {S(sB5)}, 11
    v_add_u32 v8, {S(sT)}, {V(vL16)}
    v_add_u32 v9, 4096, v8
    s_lshr_b32 {S(sT)}, {S(sE5)}, 1
    s_lshl_b32 {S(sT)}, {S(sT)}, 12
    v_add_u32 v10, {S(sT)}, {V(vL16)}
    s_mul_i32 {S(sW1)}, {S(sWV)}, {108*1024}
    s_lshl_b32 {S(sT)}, {S(sB7)}, 10
    s_add_u32 {S(sW1)}, {S(sW1)}, {S(sT)}
    s_add_u32 {S(sW1)}, {S(sW1)}, {WS_WIN - 1024}
    s_add_u32 {S(sW2)}, {S(sW1)}, {54*1024}
    s_mul_i32 {S(sLb)}, {S(sWV)}, 7168
    s_lshl_b32 {S(sRow)}, {S(sRB)}, 2
    s_add_u32 {S(sRow)}, {S(sRow)}, {S(sWV)}
    v_mov_b32 {V(vOob)}, {hex(OOB)}
    v_mov_b32 {V(vFW)}, {hex(OOB)}
    v_writelane_b32 {V(vFW)}, 0, 0
    v_mov_b32 {V(vOne)}, 1
    s_lshr_b32 {S(sT)}, {S(sRB)}, 1
    s_sub_u32 {S(sT2)}, 15, {S(sT)}
    s_min_u32 {S(sT)}, {S(sT)}, {S(sT2)}
    s_lshl_b32 {S(sT)}, {S(sT)}, 2
    s_lshr_b32 {S(sT2)}, {S(sCS)}, 1
    s_add_u32 {S(sT)}, {S(sT)}, {S(sT2)}
    s_lshl_b32 {S(sT)}, {S(sT)}, 1
    s_and_b32 {S(sT2)}, {S(sRB)}, 1
    s_xor_b32 {S(sT2)}, {S(sT2)}, 1
    s_add_u32 {S(sT)}, {S(sT)}, {S(sT2)}
    s_lshl_b32 {S(sT)}, {S(sT)}, 1
    s_and_b32 {S(sT2)}, {S(sWV)}, 1
    s_add_u32 {S(sT)}, {S(sT)}, {S(sT2)}
    s_lshl_b32 {S(sT)}, {S(sT)}, 7
    s_add_u32 {S(sT)}, {S(sT)}, {flp}
    v_mov_b32 {V(vPa)}, {S(sT)}
    v_lshlrev_b32 v44, 3, {V(vG)}
    v_mul_u32_u24 v15, 1280, {V(vR)}
    v_add_u32 v15, v44, v15
    s_mul_i32 s68, {S(sRow)}, {16*1280}
    s_lshl_b32 s69, {S(sE5)}, 5
    s_add_u32 s69, s69, s68
    s_lshl_b32 s70, {S(sB5)}, 5
    s_add_u32 s68, s68, s70
    v_lshlrev_b32 {V(vSl)}, 6, {V(vR)}
    v_cmp_eq_u32 vcc, 0, {V(vG)}
    v_cndmask_b32 {V(vSt)}, {V(vOob)}, {V(vSl)}, vcc
    v_lshl_add_u32 {V(vSl)}, {V(vG)}, 4, {V(vSl)}
    s_lshl_b32 s63, {S(sRow)}, 10
    s_lshl_b32 {S(sT2)}, {S(sCS)}, 3
    s_add_u32 s64, s63, {S(sT2)}
    s_lshl_b32 {S(sSp)}, {S(sRB)}, 18
    s_lshl_b32 {S(sT)}, {S(sWV)}, 16
    s_add_u32 {S(sSp)}, {S(sSp)}, {S(sT)}
    s_add_u32 {S(sSp)}, {S(sSp)}, {WS_WSP}
    v_lshlrev_b32 {V(vSm)}, 4, {V(vG)}
    v_cmp_gt_u32 vcc, 2, {V(vR)}
    v_mul_u32_u24 v40, 2560, {V(vR)}
    v_sub_u32 v40, {WS_MOD + 4*2560}, v40
    v_add_u32 v40, {V(vSm)}, v40
    v_cndmask_b32 v40, {V(vOob)}, v40, vcc
    v_add_u32 {V(vSm)}, {SM}, {V(vSm)}
    """)
    def small_voff(dst, per, sB, sE, mul, strides):
        b(f"""
        v_mul_u32_u24 v44, {mul}, v0
        v_lshrrev_b32 v44, 10, v44
        v_mul_u32_u24 v45, {4*per}, v44
        v_sub_u32 v45, v0, v45
        v_lshlrev_b32 v46, 4, v45
        s_lshl_b32 {S(sT)}, {S(sB)}, 6
        s_sub_u32 {S(sT2)}, {S(sE)}, {per-1}
        s_lshl_b32 {S(sT2)}, {S(sT2)}, 6
        """)
        if per == 7: b(f"s_cmp_ge_u32 {S(sCS)}, 6"); b(f"s_cselect_b32 {S(sT2)}, {hex(OOB)}, {S(sT2)}")
        b(f"""
        v_mov_b32 v47, {S(sT)}
        v_mov_b32 {V(dst)}, {S(sT2)}
        v_cmp_gt_u32 vcc, {4*(per-1)}, v45
        v_cndmask_b32 v47, {V(dst)}, v47, vcc
        v_add_u32 v46, v46, v47
        v_mov_b32 {V(dst)}, {V(vOob)}
        """)
        for k, st in enumerate(strides):
            b(f"v_add_u32 v47, {st}, v46"); b(f"v_cmp_eq_u32 vcc, {k}, v44"); b(f"v_cndmask_b32 {V(dst)}, {V(dst)}, v47, vcc")
    small_voff(42, 5, sB5, sE5, 52, [WS_MOD + 2*2560, WS_MOD + 4*2560, WS_MOD + 5*2560])
    small_voff(vVec, 7, sB7, sE7, 37, [WS_VEC, WS_VEC + 0x2000])
    SEL = 44
    b(f"""
    v_lshlrev_b32 v56, 2, {V(vG)}
    v_sub_u32 v56, {V(vR)}, v56
    v_mov_b32 v57, 0x3f80
    v_mov_b32 v58, 0x3f800000
    v_cmp_eq_u32 vcc, 0, v56
    v_cndmask_b32 v44, 0, v57, vcc
    v_cmp_eq_u32 vcc, 1, v56
    v_cndmask_b32 v44, v44, v58, vcc
    v_cmp_eq_u32 vcc, 2, v56
    v_cndmask_b32 v45, 0, v57, vcc
    v_cmp_eq_u32 vcc, 3, v56
    v_cndmask_b32 v45, v45, v58, vcc
    v_mov_b32 v46, 0
    v_mov_b32 v47, 0
    v_mov_b32 v48, 0
    v_mov_b32 v49, 0
    v_mov_b32 v50, v44
    v_mov_b32 v51, v45
    s_bitcmp1_b32 {S(sE5)}, 0
    s_cselect_b64 vcc, -1, 0
    """)
    for k in range(4): b(f"v_cndmask_b32 {V(52+k)}, {V(44+k)}, {V(48+k)}, vcc")
    PF = lambda x, f: A(12*x + 4*f, 4)
    def ldP(x): return toI([f"s_add_u32 {S(sT)}, {S(sW)}, {x*32*20*4096}"] + [f"buffer_load_dwordx4 {PF(x, f)}, {V(8+f)}, {sWS}, {S(sT)} offen sc1{PNT}" for f in range(3)])
    def dmaW(nW, at, soff, goff, sl, loff, tag, valid=None):
        o = [f"s_add_u32 {S(sT2)}, {S(soff)}, {goff}"]
        if valid: o += [valid, f"s_cselect_b32 {S(sT2)}, {S(sT2)}, {hex(OOB)}"]
        for n in range(nW):
            v, ofs = at(n)
            if ofs == 0: o.append(f"s_add_u32 m0, {S(sl)}, {loff + n*1024}")
            o.append(I(f"buffer_load_dwordx4 {v}, {sWS}, {S(sT2)} offen offset:{ofs} sc1 lds", tag))
        return toI(o)
    dW2 = lambda r: dmaW(7, at7, sW2, 4*r*108*1024, sLb, 4*r*7168, "w2")
    dW1 = lambda r: dmaW(7, at7, sW1, 4*r*108*1024, sLb, 4*r*7168, "w1")
    def arrive_ins(tag, line_ins):
        return toI(line_ins + [f"s_lshl_b32 {S(sT)}, {S(sT)}, 7", f"s_add_u32 {S(sT)}, {S(sT)}, {WS_FL2}", f"@waitvm {tag}",
                               f"buffer_atomic_add {V(vOne)}, {V(vFW)}, {sWS}, {S(sT)} offen"])
    poll = f"buffer_load_dword {V(vPoll)}, {V(vPa)}, {sWS}, 0 offen sc1"
    def poll_addr(line_ins, four):
        o = line_ins + [f"s_lshl_b32 {S(sT)}, {S(sT)}, 7", f"s_add_u32 {S(sT)}, {S(sT)}, {WS_FL2}"]
        if four: o += [f"v_and_b32 {V(vPa)}, 3, v0", f"v_lshl_add_u32 {V(vPa)}, {V(vPa)}, 7, {S(sT)}"]
        else: o += [f"v_mov_b32 {V(vPa)}, {S(sT)}"]
        return toI(o)
    def spin(lab, test, again):
        b(test)
        b(f"s_cbranch_vccz {lab}_ok")
        sts = b.flush()
        b(f"s_mov_b32 {S(sT3)}, 0")
        b.label(f"{lab}_spin")
        b(again)
        b(f"s_add_u32 {S(sT3)}, {S(sT3)}, 1")
        b(f"s_cmp_gt_u32 {S(sT3)}, {SPIN_MAX}")
        b("s_waitcnt vmcnt(0)")
        b(f"s_cbranch_scc1 {lab}_ok")
        b(test)
        b(f"s_cbranch_vccnz {lab}_spin")
        b.label(f"{lab}_ok", sts + b.flush())
    def spin_cnt(lab, target): spin(lab, f"v_cmp_gt_u32 vcc, {target}, {V(vPoll)}", poll)
    def spin_st(lab, st, ld):
        spin(lab, [f"v_cmp_gt_f32 vcc, 0, {V(st+1)}", f"v_cmp_gt_f32 s[72:73], 0, {V(st+3)}", "s_or_b64 vcc, vcc, s[72:73]"], ld)
    def capture(f):
        n = len(b.cur); f(); o = b.cur[n:]; del b.cur[n:]; return o
    def tagged(f, tag):
        o = capture(f)
        for i in o:
            if i.kind == "vmem": i.tag = tag
        b(o)
    def weave_v(valu, groups, every):
        groups = list(groups)
        for k, i in enumerate(valu):
            b(i)
            if k % every == every - 1 and groups: b(groups.pop(0))
        for g in groups: b(g)
    def emit_marks(sc, hooks):
        cur = []
        for i in sc.emit():
            if i.kind == "pseudo" and i.op == "@mark": b(cur); cur = []; hooks[i.t.split()[1]]()
            else: cur.append(i)
        b(cur)
    def xs(k, m):
        k = k % 14
        return A((240 - 16*k if k < 11 else 32 + 16*(k - 11)) + 4*m, 4)
    def lS(k): return toI([f"s_add_u32 {S(sT)}, {S(sSp)}, {k*4096}"] + [f"buffer_load_dwordx4 {xs(k, m)}, {V(vXm+m)}, {sWS}, {S(sT)} offen sc1" for m in range(4)])
    spn = [0]
    def more_sp(n):
        o = []
        for _ in range(n): o += lS(spn[0]); spn[0] += 1
        return o
    b(f"""
    @waitvm pt
    buffer_atomic_add {V(vOne)}, {V(vFW)}, {sWS}, s79 offen
    s_barrier
    """)
    T.stamp(b, "arrP")
    for m in range(4):
        b(f"s_add_u32 {S(sT)}, {S(sWV)}, {m}"); b(f"s_and_b32 {S(sT)}, {S(sT)}, 3"); b(f"s_lshl_b32 {S(sT)}, {S(sT)}, 10")
        b(f"v_add_u32 {V(vXm+m)}, {S(sT)}, {V(vL16)}")
    XP, GA, AB, X1 = 96, 56, 76, 16
    b("s_cmp_ge_u32 s2, 108"); b(f"s_cbranch_scc1 {name}_noside")
    ns = b.flush()
    b(f"""
    s_mul_i32 s74, {S(sWV)}, 640
    s_mul_i32 s65, {S(sWV)}, {5*108*1024}
    s_lshl_b32 s66, s2, 10
    s_add_u32 s65, s65, s66
    s_add_u32 s65, s65, {WS_WIN}
    """)
    for k in range(5):
        for hf in range(2): b(f"buffer_load_dwordx4 {V(176+8*k+4*hf,4)}, v40, {sWS}, s74 offen offset:{128*k+64*hf} sc1")
        b(f"buffer_load_dwordx4 {V(216+4*k,4)}, {V(vL16)}, {sWS}, s65 offen sc1"); b(f"s_add_u32 s65, s65, {108*1024}")
    b.label(name + "_noside", ns + b.flush())
    b(f"s_mov_b32 m0, {SM}"); b(f"buffer_load_dwordx4 v42, {sWS}, 0 offen sc1 lds", "sm")
    b(poll)
    for n in range(5): b(f"buffer_load_dwordx2 {V(XP+2*n,2)}, v15, {sX}, {'s68' if n < 4 else 's69'} offen offset:{32*n if n < 4 else 0}")
    b(f"v_cmp_gt_u32 vcc, 8, {V(vPoll)}"); b(f"s_cbranch_vccz {name}_pq"); fast = b.flush()
    b(dW2(0)); b(dW2(1)); b(poll); b(dW2(2))
    spin_cnt(name + "_pp", 8)
    for x in range(8): b(ldP(x))
    b("s_mov_b32 s78, 0")
    b(f"s_branch {name}_pj"); slow = b.flush()
    b.label(name + "_pq", fast)
    if PFIRST:
        for x in range(8): b(ldP(x))
        b(dW2(0))
    else: b(ldP(0)); b(ldP(1)); b(ldP(2)); b(dW2(0)); b(ldP(3)); b(ldP(4)); b(dW2(1)); b(ldP(5)); b(ldP(6)); b(dW2(2)); b(ldP(7))
    b("s_mov_b32 s78, 1")
    b.label(name + "_pj", slow + b.flush())
    T.stamp(b, "gotP")
    for k in range(5):
        for j in range(4): b(f"v_cvt_pk_bf16_f32 {V(176+8*k+j)}, {V(176+8*k+2*j)}, {V(176+8*k+2*j+1)}")
    for k in range(5): b(MF(V(236,4), V(176+8*k,4), V(216+4*k,4), V(236,4) if k else "0"))
    b("@waitvm sm")
    for n in range(5):
        b(f"ds_read_b128 {V(GA+4*n,4)}, {V(vSm)} offset:{n*64}"); b(f"ds_read_b128 {V(AB+4*n,4)}, {V(vSm)} offset:{320 + n*64}")
    b(f"s_lshl_b32 s74, {S(sWV)}, 10"); b(f"s_add_u32 s74, s74, {TB}"); b(f"v_add_u32 v40, s74, {V(vL16)}")
    b("ds_write_b128 v40, v[236:239]")
    b(f"v_add_u32 v40, {TB}, {V(vL16)}")
    b("s_waitcnt lgkmcnt(0)"); b("s_barrier")
    for w in range(4): b(f"ds_read_b64 {V(176+2*w,2)}, v40 offset:{w*1024}")
    b(f"""
    v_pk_add_f32 v[176:177], v[176:177], v[178:179]
    v_pk_add_f32 v[180:181], v[180:181], v[182:183]
    v_pk_add_f32 v[176:177], v[176:177], v[180:181]
    v_lshlrev_b32 v40, 2, {V(vR)}
    v_cmp_eq_u32 vcc, 0, {V(vG)}
    v_cndmask_b32 v40, {V(vOob)}, v40, vcc
    s_lshl_b32 s74, s2, 6
    s_add_u32 s74, s74, {WS_VEC}
    s_cmp_lt_u32 s2, 108
    s_cselect_b32 s74, s74, {hex(OOB)}
    s_cmp_eq_u32 {S(sWV)}, 0
    s_cselect_b32 s74, s74, {hex(OOB)}
    s_add_u32 s65, s74, 0x2000
    """)
    b(f"buffer_store_dword v176, v40, {sWS}, s74 offen sc1", "vec"); b(f"buffer_store_dword v177, v40, {sWS}, s65 offen sc1", "vec")
    for n in range(5):
        for j in range(2):
            b(f"v_lshlrev_b32 {V(112+4*n+2*j)}, 16, {V(XP+2*n+j)}"); b(f"v_and_b32 {V(113+4*n+2*j)}, 0xffff0000, {V(XP+2*n+j)}")
    for x in range(8):
        for n in range(5):
            d = V(X1 + 4*n, 4)
            b(MF(d, V(SEL + (8 if n == 4 else 4*(n & 1)), 4), PF(x, n >> 1), d if x else "0"))
    T.stamp(b, "red")
    for k in range(0, 20, 2): b(f"v_pk_fma_f32 {V(X1+k,2)}, {V(X1+k,2)}, {V(GA+k,2)}, {V(112+k,2)}")
    for k in range(0, 20, 2): b(f"v_pk_mul_f32 {V(GA+k,2)}, {V(X1+k,2)}, {V(AB+k,2)}")
    tagged(lambda: store_act(b, sWS, 5, GA, WS_XA, 20, sB5, sE5, 12, " sc1"), "A")
    b(f"""
    s_cmp_lt_u32 s74, {hex(OOB)}
    s_cselect_b32 s74, {WS_FL2 + FV*128}, {hex(OOB)}
    @waitvm vec
    buffer_atomic_add {V(vOne)}, {V(vFW)}, {sWS}, s74 offen
    """)
    row_sums(b, X1, 20, 116, 112)
    b(f"s_add_u32 {S(sT)}, s64, {WS_ST1}")
    b(f"buffer_store_dwordx2 v[116:117], {V(vSt)}, {sWS}, {S(sT)} offen sc1")
    d3 = vgroups(dW2(3))
    for gr in d3[:4]: b(gr)
    b(arrive_ins("A", [f"s_add_u32 {S(sT)}, {S(sRow)}, {FA}"]))
    T.stamp(b, "arrA")
    for gr in d3[4:]: b(gr)
    b(dW2(4))
    b(poll_addr([f"s_add_u32 {S(sT)}, {S(sRow)}, {FA}"], False)); b(poll)
    if PFIRST:
        b("s_cmp_eq_u32 s78, 0"); b(f"s_cbranch_scc1 {name}_w2d"); sk = b.flush()
        b(dW2(1)); b(dW2(2))
        b.label(name + "_w2d", sk + b.flush())
    b(more_sp(SP[0]))
    V1, V2, TM, Z2, Z1, ST, ST2 = 76, 104, 104, 132, 48, 160, 164
    b(f"""
    v_mov_b32 v44, {FH(-GC1)}
    v_mov_b32 v45, {FH(-GC1)}
    v_mov_b32 v46, {FH(-GC2)}
    v_mov_b32 v47, {FH(-GC2)}
    v_add_u32 v8, 65536, {V(vL16)}
    v_add_u32 v9, 131072, {V(vL16)}
    @waitvm w2
    s_barrier
    """)
    NR = 12
    def wring(i): return V(176 + 4*(i % NR), 4)
    def rdl(i, addr): return f"ds_read_b128 {wring(i)}, {V((vL16, 8, 9)[addr >> 16])} offset:{addr & 0xffff}"
    def msplit(order, accf, xf, addr, lead=10):
        seen = set(); mf = []
        for i, (ks, n) in enumerate(order):
            mf.append(MF(accf(n), wring(i), xf(ks), accf(n) if n in seen else "0")); seen.add(n)
        sc = Sched(mf)
        for i in range(lead, len(order)): sc.put(rdl(i, addr(*order[i])), i - lead, force=True)
        for i in range(1, len(order) - 1, 2): sc.raw(f"@need {wring(i+1)} {wring(min(i+2, len(order)-1))}", i, "pre")
        return sc, [rdl(i, addr(*order[i])) for i in range(lead)]
    ordz = [(4*r + k, n) for r in range(5) for n in range(7) for k in range(4)]
    xz = lambda ks: A((32 + 4*ks) % 80, 4)
    adz = lambda ks, n: (ks*7 + n)*1024
    sc2, pre2 = msplit(ordz, lambda n: V(Z2 + 4*n, 4), xz, adz)
    b(pre2)
    spin_cnt(name + "_pa", 8)
    T.stamp(b, "gotA")
    def lX(reg, ks): return toI([f"s_add_u32 {S(sT)}, {S(sXo)}, {ks*4096}", f"buffer_load_dwordx4 {reg}, {V(vL16)}, {sWS}, {S(sT)} offen sc1"])
    for ks in range(8): b(lX(xz(ks), ks))
    def place(sc, groups, g0, step):
        g = g0
        for gr in groups:
            for x in gr[:-1]: sc.raw(x, g - 1, "post")
            sc.put(gr[-1], g, force=True); g += step
        return g
    ldst1 = f"buffer_load_dwordx4 {V(ST,4)}, {V(vSl)}, {sWS}, s66 offen sc1"
    ldst2 = f"buffer_load_dwordx4 {V(ST2,4)}, {V(vSl)}, {sWS}, s66 offen sc1"
    g = place(sc2, [lX(xz(ks), ks) for ks in range(8, 14)] + [poll_addr([f"s_mov_b32 {S(sT)}, {FV}"], False) + toI([poll])]
              + [lX(xz(ks), ks) for ks in range(14, 20)] + [toI([f"s_add_u32 s66, s63, {WS_ST1}", ldst1])], 1, 4)
    sc2.raw("@mark pv", g - 2, "post2")
    g = place(sc2, [toI([f"s_mov_b32 m0, {SV + 1024*h}", f"s_mov_b32 s65, {h*54*64}", I(f"buffer_load_dwordx4 {V(vVec)}, {sWS}, s65 offen sc1 lds", "sv")]) for h in (1, 0)], g, 4)
    g = max(g, 58)
    sc2.raw("s_barrier", g - 1, "pre")
    w1 = [x for r in range(5) for x in vgroups(dW1(r))]
    g = place(sc2, w1[:14], g + 1, 5); assert g < 146
    sc2.raw("@waitvm sv", 121, "post")
    for n in range(7):
        sc2.raw(f"ds_read_b128 {V(V1+4*n,4)}, {V(vSm)} offset:{1024 + 1024 + n*64}", 122 + 2*n, "post")
        sc2.raw(f"ds_read_b128 {V(V2+4*n,4)}, {V(vSm)} offset:{1024 + 1024 + 448 + n*64}", 123 + 2*n, "post")
    emit_marks(sc2, {"pv": lambda: spin_cnt(name + "_pv", 108)})
    b("s_barrier")
    T.stamp(b, "g2")
    spin_st(name + "_p1", ST, ldst1)
    def apply2():
        for k in range(0, 28, 2): b(f"v_pk_fma_f32 {V(Z2+k,2)}, {V(V1+k,2)}, {V(ST,2)}, {V(Z2+k,2)} op_sel_hi:[1,0,1]")
        for k in range(0, 28, 2): b(f"v_pk_fma_f32 {V(Z2+k,2)}, {V(Z2+k,2)}, {V(ST+2,2)}, {V(V2+k,2)} op_sel_hi:[1,0,1]")
    ep = capture(lambda: (fin_stats(b, ST, 640, 164), apply2(), gelu(b, Z2, 28, TM, 44, 46), row_sums(b, Z2, 28, 164, TM)))
    nv = min(21, len(ep) // EV // 7 * 7)
    weave_v(ep, w1[14:14 + nv], EV)
    b(f"s_add_u32 {S(sT)}, s64, {WS_ST2}")
    b(f"buffer_store_dwordx2 v[164:165], {V(vSt)}, {sWS}, {S(sT)} offen sc1")
    T.stamp(b, "e2")
    for gr in w1[14 + nv:]: b(gr)
    b(more_sp(SP[1] // 2))
    b(f"s_add_u32 s66, s63, {WS_ST2}"); b(ldst2)
    b(more_sp(SP[1] - SP[1] // 2))
    b(f"""
    v_lshlrev_b32 v168, 5, {V(vR)}
    v_lshl_add_u32 v168, {V(vG)}, 3, v168
    s_lshl_b32 {S(sT)}, {S(sWV)}, 9
    s_add_u32 {S(sT)}, {S(sT)}, {TB}
    v_add_u32 v174, {S(sT)}, v168
    s_and_b32 {S(sT)}, {S(sWV)}, 1
    s_lshr_b32 {S(sT2)}, {S(sWV)}, 1
    s_lshl_b32 {S(sT3)}, {S(sT)}, 10
    s_lshl_b32 s65, {S(sT2)}, 13
    s_add_u32 {S(sT3)}, {S(sT3)}, s65
    s_add_u32 {S(sT3)}, {S(sT3)}, {TB}
    v_lshl_add_u32 v175, v0, 3, {S(sT3)}
    s_lshl_b32 s65, {S(sRB)}, 1
    s_add_u32 s65, s65, {S(sT)}
    s_mul_i32 s65, s65, {54*1024}
    s_add_u32 s65, s65, {WS_Z2}
    s_lshl_b32 s70, {S(sT2)}, 2
    s_add_u32 s70, s70, {S(sB7)}
    s_lshl_b32 s70, s70, 10
    s_add_u32 s70, s70, s65
    s_lshl_b32 s67, {S(sE7)}, 10
    s_add_u32 s67, s67, s65
    s_cmp_ge_u32 {S(sCS)}, 6
    s_cselect_b32 s67, {hex(OOB)}, s67
    s_add_u32 s74, s70, 2048
    s_add_u32 s75, s70, 3072
    s_cmp_eq_u32 {S(sT2)}, 1
    s_cselect_b32 s74, s67, s74
    s_cselect_b32 s75, {hex(OOB)}, s75
    """)
    spin_st(name + "_p2", ST2, ldst2)
    T.stamp(b, "gotB")
    def norm():
        fin_stats(b, ST2, 864, 168)
        b(f"v_mul_f32 {V(ST2)}, {V(ST2)}, {V(ST2+2)}")
        for n in range(7):
            for k in (4*n, 4*n + 2): b(f"v_pk_fma_f32 {V(Z2+k,2)}, {V(Z2+k,2)}, {V(ST2+2,2)}, {V(ST2,2)} op_sel_hi:[1,0,0]")
            for k in (2*n, 2*n + 1): b(f"v_cvt_pk_bf16_f32 {V(76+k)}, {V(Z2+2*k)}, {V(Z2+2*k+1)}")
            b(f"ds_write_b64 v174, {V(76+2*n,2)} offset:{n*2048}")
    weave_v(capture(norm), vgroups(more_sp(SP[2])) if SP[2] else [], 6)
    assert spn[0] <= 11
    b("@waitvm w1"); b("s_waitcnt lgkmcnt(0)"); b("s_barrier")
    for n in range(4):
        for hf in range(2): b(f"ds_read_b64_tr_b16 {V(104+4*n+2*hf,2)}, v175 offset:{n*2048 + hf*512}")
    sc1, pre1 = msplit(ordz, lambda n: V(Z1 + 4*n, 4), xz, adz)
    b(pre1[:6])
    for n in range(4):
        b(f"buffer_store_dwordx4 {V(104+4*n,4)}, {V(vL16)}, {sWS}, {('s70','s70','s74','s75')[n]} offen offset:{1024 if n == 1 else 0} sc1", "C")
    b(pre1[6:])
    T.stamp(b, "stC")
    arr = arrive_ins("C", [f"s_lshl_b32 {S(sT)}, {S(sCS)}, 2", f"s_lshr_b32 {S(sT2)}, {S(sRB)}, 3", f"s_add_u32 {S(sT)}, {S(sT)}, {S(sT2)}",
                 f"s_lshl_b32 {S(sT)}, {S(sT)}, 2", f"s_add_u32 {S(sT)}, {S(sT)}, {S(sWV)}", f"s_add_u32 {S(sT)}, {S(sT)}, {FC}"])
    pc = poll_addr([f"s_lshl_b32 {S(sT)}, {S(sCS)}, 2", f"s_add_u32 {S(sT)}, {S(sT)}, {S(sWV)}", f"s_lshl_b32 {S(sT)}, {S(sT)}, 2", f"s_add_u32 {S(sT)}, {S(sT)}, {FC}"], True) + toI([poll])
    g = place(sc1, [arr], AC, 4)
    for _ in range(SP[3]):
        assert spn[0] < 11 or g > 28 * (spn[0] - 10)
        g = place(sc1, vgroups(more_sp(1)), g, 4)
    g = place(sc1, [pc], g, 4)
    assert spn[0] + SP[4] <= 14 and g > 84
    g = place(sc1, (vgroups(more_sp(SP[4])) if SP[4] else []) + [toI([f"s_lshl_b32 {S(sT)}, {S(sRow)}, 5", f"v_lshlrev_b32 v42, 1, {V(vR)}", f"buffer_load_ushort v42, v42, {S(R['bsp'],4)}, {S(sT)} offen"])], g, 5)
    sc1.raw(toI([f"""
    s_mul_i32 {S(sW)}, {S(sWV)}, {16*54*1024}
    s_lshl_b32 s65, {S(sB7)}, 10
    s_add_u32 {S(sW)}, {S(sW)}, s65
    s_add_u32 {S(sW)}, {S(sW)}, {WS_Z2 - 1024}
    s_mul_i32 {S(sW1)}, {S(sWV)}, {40*1024}
    s_lshl_b32 s65, {S(sB5)}, 10
    s_add_u32 {S(sW1)}, {S(sW1)}, s65
    s_add_u32 {S(sW1)}, {S(sW1)}, {WS_WOUT - 1024}
    s_mul_i32 {S(sLb)}, {S(sWV)}, 5120
    s_mov_b32 s70, {FH(-GC2)}
    """]), 10, "post")
    b(sc1.emit())
    T.stamp(b, "g1")
    spin_cnt(name + "_pc", 8)
    T.stamp(b, "gotC")
    wg = lambda k, n: V(76 + 28*(k % 3) + 4*n, 4)
    def lZ(k):
        o = [f"s_add_u32 {S(sT2)}, {S(sW)}, {k*54*1024}"]
        for n in range(7):
            v, ofs = at7(n); o.append(f"buffer_load_dwordx4 {wg(k, n)}, {v}, {sWS}, {S(sT2)} offen offset:{ofs} sc1")
        return toI(o)
    G = 176
    def gacc(n, m):
        i = m*7 + n
        return V(G + 4*i, 4) if i < 20 else A(4*(i - 20), 4)
    OB = lambda r: 86016 + r*20480 if r < 3 else (r - 3)*20480
    dWo = lambda r: dmaW(5, at5, sW1, 4*r*40*1024, sLb, OB(r), "wo", valid=f"s_cmp_lt_u32 {S(sWV)}, 3" if r == 6 else None)
    b(lZ(0)); b(lZ(1))
    def z1rd(n): return [f"ds_read_b128 v[164:167], {V(vSm)} offset:{1024 + n*64}", f"ds_read_b128 v[8:11], {V(vSm)} offset:{1024 + 448 + n*64}"]
    def z1ep(n):
        z = Z1 + 4*n; tt = (168, 169, 174, 175); o = []
        o += [f"v_fmac_f32 {V(z+r)}, {V(164+r)}, {V(ST)}" for r in range(4)]
        o += [f"v_fma_f32 {V(z+r)}, {V(z+r)}, {V(ST+2)}, {V(8+r)}" for r in range(4)]
        o2 = [f"v_mul_f32 {V(tt[r])}, {V(z+r)}, {V(z+r)}" for r in range(4)]
        o2 += [f"v_fma_f32 {V(tt[r])}, {V(tt[r])}, s70, v44" for r in range(4)]
        o2 += [f"v_mul_f32 {V(tt[r])}, {V(tt[r])}, {V(z+r)}" for r in range(4)]
        o2 += [f"v_exp_f32 {V(tt[r])}, {V(tt[r])}" for r in range(4)]
        o2 += [f"v_add_f32 {V(tt[r])}, 1.0, {V(tt[r])}" for r in range(4)]
        o2 += [f"v_rcp_f32 {V(tt[r])}, {V(tt[r])}" for r in range(4)]
        o2 += [f"v_mul_f32 {V(z+r)}, {V(z+r)}, {V(tt[r])}" for r in range(4)]
        return o, o2
    b(z1rd(0))
    radr = []
    for m in range(1, 4):
        radr += [f"s_add_u32 s65, {S(sWV)}, {m}", "s_and_b32 s65, s65, 3", "s_mul_i32 s65, s65, 21504", f"s_add_u32 s65, s65, {(m-1)*7168}",
                 f"v_add_u32 {V(160+m)}, s65, {V(vL16)}"]
    radr += [f"s_mul_i32 s65, {S(sWV)}, 21504", f"v_add_u32 v160, s65, {V(vL16)}",
             f"v_add_u32 v8, 65536, {V(vL16)}", f"v_add_u32 v9, 131072, {V(vL16)}", f"v_mov_b32 {V(vFW)}, {hex(OOB)}", f"v_writelane_b32 {V(vFW)}, 0, 0"]
    for k in range(16):
        mo = [(n, m) for n in range(7) for m in range(4)] if k < 15 else [(n, m) for m in (1, 2, 3, 0) for n in range(7)]
        sc = Sched([MF(gacc(n, m), wg(k, n), xs(k, m), gacc(n, m) if k else "0") for n, m in mo])
        f = lZ(k + 2) if k + 2 < 16 else (dWo(0) + dWo(1) if k == 14 else [])
        if spn[0] < 16 and k >= 2 and spn[0] - k <= 5: f = f + more_sp(1)
        sc.seq(f, 0, 2)
        if k < 14:
            o, o2 = z1ep(k >> 1)
            if k % 2 == 0: sc.seq(o + (z1rd(k//2 + 1) if k < 12 else []) + o2[:12], 0)
            else: sc.seq(o2[12:], 0)
        if k == 1: sc.raw("s_barrier", 27)
        if k == 14: sc.seq(radr, 0)
        if k == 15:
            g = 0
            for i, (n, m) in enumerate(mo[:21]): g = sc.put(f"ds_write_b128 {V(160+m)}, {gacc(n, m)} offset:{n*1024}", max(g, i + 7)) + 3
        b(sc.emit())
    assert spn[0] == 16
    T.stamp(b, "g4")
    b("s_waitcnt lgkmcnt(0)"); b("s_barrier")
    b("v_lshlrev_b32 v42, 16, v42")
    for n in range(7):
        for m in range(3): b(f"ds_read_b128 {V(76 + 12*n + 4*m, 4)}, v160 offset:{m*7168 + n*1024}")
    for n in range(7):
        t = 76 + 12*n; d = G + 4*n
        for h in (0, 2): b(f"v_pk_add_f32 {V(d+h,2)}, {V(d+h,2)}, v[42:43] op_sel_hi:[1,0]")
        for h in (0, 2): b(f"v_pk_add_f32 {V(t+h,2)}, {V(t+h,2)}, {V(t+4+h,2)}")
        for h in (0, 2): b(f"v_pk_add_f32 {V(d+h,2)}, {V(d+h,2)}, {V(t+8+h,2)}")
        for h in (0, 2): b(f"v_pk_add_f32 {V(d+h,2)}, {V(d+h,2)}, {V(t+h,2)}")
        for h in (0, 2): b(f"v_pk_mul_f32 {V(d+h,2)}, {V(d+h,2)}, {V(Z1+4*n+h,2)}")
    tagged(lambda: store_act(b, sWS, 7, G, WS_U, 27, sB7, sE7, 12, " sc1"), "D")
    b(dWo(2))
    b("s_barrier")
    b(arrive_ins("D", [f"s_add_u32 {S(sT)}, {S(sRow)}, {FD}"]))
    T.stamp(b, "arrD")
    b(dWo(3)); b(dWo(4))
    b(poll_addr([f"s_add_u32 {S(sT)}, {S(sRow)}, {FD}"], False)); b(poll)
    b(dWo(5)); b(dWo(6))
    GB, Y = 48, 76
    for n in range(5): b(f"ds_read_b128 {V(GB+4*n,4)}, {V(vSm)} offset:{640 + n*64}")
    b(f"""
    s_mul_i32 {S(sXo)}, {S(sRB)}, {27*4096}
    s_lshl_b32 {S(sT)}, {S(sWV)}, 10
    s_add_u32 {S(sXo)}, {S(sXo)}, {S(sT)}
    s_add_u32 {S(sXo)}, {S(sXo)}, {WS_U}
    """)
    spin_cnt(name + "_pd", 8)
    T.stamp(b, "gotD")
    xu = lambda ks: A(4*ks, 4)
    for ks in range(9): b(lX(xu(ks), ks))
    ordo = [(3*r + k, n) for r in range(9) for n in range(5) for k in range(3)]
    sc5, pre5 = msplit(ordo, lambda n: V(Y + 4*n, 4), xu, lambda ks, n: OB(ks >> 2) + (ks & 3)*5120 + n*1024)
    b("@waitvm wo"); b("s_barrier"); b(pre5)
    place(sc5, [lX(xu(ks), ks) for ks in range(9, 27)], 1, 4)
    b(sc5.emit())
    T.stamp(b, "g5")
    for k in range(0, 20, 2): b(f"v_pk_fma_f32 {V(Y+k,2)}, {V(Y+k,2)}, {V(GB+k,2)}, {V(X1+k,2)}")
    for k in range(10): b(f"v_cvt_pk_bf16_f32 {V(Y+k)}, {V(Y+2*k)}, {V(Y+2*k+1)}")
    for n in range(5): b(f"buffer_store_dwordx2 {V(Y+2*n,2)}, v15, {S(R['out'],4)}, {'s68' if n < 4 else 's69'} offen offset:{32*n if n < 4 else 0}")
```

```python
import sys; sys.path.insert(0,'gen')
import ka, kf3, build
NAME = "adaLN_cond__compressed_kv_cla__mixer_gmlp__prompt_kernel"
def mk(path, st=False, ka_kw={}, kf_kw={}, view="all"):
    kw = dict(QEND=84, NTS='', PST=' sc1'); kw.update(ka_kw)
    kf = dict(kf_kw)
    if st and view == "all": kf["few"] = ("arrP", "gotP", "red", "gotA", "gotC", "g4", "gotD")
    if st and view == "tail": kw["afew"] = (); kf["few"] = ("arrP", "gotP", "red", "arrA", "gotA", "g2", "e2", "gotB", "stC", "g1", "gotC", "g4", "arrD", "gotD")
    if st and view == "a": kf["few"] = ()
    if st and view == "min": kf["few"] = ("arrP",); kw.setdefault("afew", ("qend", "attend"))
    k = ka.gen(name=NAME, stamps=st, tail=kf3.fused(**kf), **kw)
    k["text"] = k["text"].replace(NAME + "_", "L_")
    build.assemble([k], path)
    return ",".join(k["stamps"])
if __name__ == "__main__":
    print(mk("v6s.s", True)); print(mk("v6t.s", True, view="tail")); mk("v6.s", False)
```

```python
from common import *

QSCALE = LOG2E / (128 ** 0.5)
NEGBIG = -1.0e30
L_LO, L_HI = 2.0 ** -40, 2.0 ** 40
DB_MOD, DB_MO2 = 0, 32
FL_H, FL_KV, FL_CX, FL_P, FL_R, FL_K0 = 0, 16, 64, 320, 448, 480
CODE_BYTES = 50000
SPIN_MAX = 1000000

def gen(name="ka_kernel", stamps=False, force_fallback=False, fine=False, PF=True, END=72, QEND=104, QST=(7, 3, 3, 3), BA=46, MW=24, QF=24, QB=5, PFP=8, NC1=6, MS0=True, PMG=54, CPF=True, JST=10, drop=(), QMIX=False, DWS=3, KVM=' sc1', M2=False, VST=4, OA=64, OD=6, OW=28, OE=4, OX=8, OSP=True, OH=4, OS=3, OT=8, OB1=True, OPF=False, OQ=44, OZ=596, OG=162, NTS='jm', PST='', total_code=None, tail=None, aslist=False, afew=None, drop2=(), probe=None):
    b = B()
    T = Stamper(stamps, 84, 0)
    if afew is not None:
        _st = T.stamp
        T.stamp = lambda b_, nm, cond=None: _st(b_, nm, cond) if (nm in afew or nm not in ("C0", "kvstart", "kvend", "qend", "blk1end", "attend", "end")) else None
    SC = ' sc1' if tail else ''
    nt = lambda c: ' nt' if c in NTS else ''
    b(f"{name}:")
    b("s_cmp_ge_u32 s2, 256")
    b(f"s_cbranch_scc1 {name}_end")
    T.stamp(b, "start")
    names_ = ["x", "ckv", "wq", "wuk", "wuv", "ws", "dbg", "wmod", "c"]
    R = {n: 8 + 4*i for i, n in enumerate(names_)}
    for n in ("ckv", "wuk", "wuv", "x", "wq", "ws", "dbg", "wmod", "c"): b(f"s_load_dwordx2 {S(R[n],2)}, s[0:1], {ARG[n]}")
    def build_rest():
        for n in names_:
            if n == "ckv": continue
            b(f"s_mov_b32 {S(R[n]+2)}, {hex(SIZE[n])}"); b(f"s_mov_b32 {S(R[n]+3)}, 0x20000")
    sX, sCKV, sWQ, sWS, sDBG, sWM, sC = (S(R[n], 4) for n in ("x", "ckv", "wq", "ws", "dbg", "wmod", "c"))
    WU = 44; sWU = S(WU, 4)
    sWV, sHD, sJ = 48, 49, 50
    sT, sT2, sT3 = 51, 52, 53
    sCb, sWb, sLw = 54, 55, 56
    sRot = 57
    sBLK, sBLK2, sS, sN = 58, 59, 60, 61
    sKo, sVo, sKb, sVb = 62, 63, 64, 65
    sKs, sVs = 66, 67
    sPass, sSafe = 68, 69
    sHb = 70; sVar = 71
    sMK = 72
    b(f"""
    v_lshrrev_b32 v1, 6, v0
    v_and_b32 v0, 63, v0
    v_readfirstlane_b32 {S(sWV)}, v1
    s_and_b32 {S(sT)}, s2, 7
    s_lshr_b32 {S(sT2)}, s2, 3
    s_and_b32 {S(sHD)}, {S(sT2)}, 3
    s_lshl_b32 {S(sT3)}, {S(sT)}, 2
    s_add_u32 {S(sHD)}, {S(sHD)}, {S(sT3)}
    s_lshr_b32 {S(sJ)}, {S(sT2)}, 2
    v_lshrrev_b32 v21, 4, v0
    v_and_b32 v22, 15, v0
    v_and_b32 v24, 7, v0
    v_xor_b32 v24, v24, v21
    v_lshrrev_b32 v25, 3, v0
    v_lshlrev_b32 v25, 10, v25
    v_lshl_add_u32 v1, v24, 4, v25
    v_xor_b32 v2, 64, v1
    v_add_u32 v2, 8192, v2
    v_lshlrev_b32 v24, 1, v21
    v_xor_b32 v24, v22, v24
    v_lshlrev_b32 v25, 13, v21
    v_lshl_add_u32 v3, v24, 4, v25
    v_xor_b32 v4, 128, v3
    s_mov_b32 {S(R['ckv']+2)}, {hex(SIZE['ckv'])}
    s_mov_b32 {S(R['ckv']+3)}, 0x20000
    s_waitcnt lgkmcnt(0)
    s_cmp_ge_u32 {S(sWV)}, 2
    s_cselect_b32 {S(WU)}, {S(R['wuv'])}, {S(R['wuk'])}
    s_cselect_b32 {S(WU+1)}, {S(R['wuv']+1)}, {S(R['wuk']+1)}
    s_mov_b32 {S(WU+2)}, {hex(SIZE['wuk'])}
    s_mov_b32 {S(WU+3)}, 0x20000
    """)
    MB = 128 * 1024
    sCG, sMB, sQb, sKq = 80, 81, 82, 83
    vC0, vC1, vW0, vW1 = 1, 2, 3, 4
    vRC0, vRC1 = 5, 6
    vRW = 7
    vL16 = 15
    vPW, vPQ, vMo, vDum = 12, 13, 14, 23
    b(f"""
    s_sub_u32 {S(sBLK)}, 15, {S(sJ)}
    s_mov_b32 {S(sBLK2)}, {S(sJ)}
    s_and_b32 {S(sT)}, {S(sWV)}, 1
    s_lshl_b32 {S(sWb)}, {S(sT)}, 18
    s_lshl_b32 {S(sT2)}, {S(sHD)}, 8
    s_add_u32 {S(sWb)}, {S(sWb)}, {S(sT2)}
    s_cmp_ge_u32 {S(sWV)}, 2
    s_cselect_b32 {S(sCb)}, {S(sBLK2)}, {S(sBLK)}
    s_lshl_b32 {S(sCb)}, {S(sCb)}, 17
    s_lshl_b32 {S(sT3)}, {S(sT)}, 16
    s_add_u32 {S(sCb)}, {S(sCb)}, {S(sT3)}
    s_lshl_b32 {S(sLw)}, {S(sWV)}, 13
    """)
    def dmaC(s):
        o = []
        for i in range(8):
            o.append((f"s_add_u32 m0, {S(sLw)}, {65536 + (s & 1) * 32768 + i * 1024}",
                      f"s_add_u32 {S(sT)}, {S(sCb)}, {(i >> 1) * 16384 + s * 128}",
                      I(f"buffer_load_dwordx4 {V(vC1 if i & 1 else vC0)}, {sCKV}, {S(sT)} offen lds", f"C{s}")))
        return o
    def dmaW(s):
        o = []
        for i in range(8):
            o.append((f"s_add_u32 m0, {S(sLw)}, {(s & 1) * 32768 + i * 1024}",
                      f"s_add_u32 {S(sT)}, {S(sWb)}, {(s * 64 + 4 * i) * 8192}",
                      I(f"buffer_load_dwordx4 {V(vW1 if (i >> 1) & 1 else vW0)}, {sWU}, {S(sT)} offen{nt('W')} lds", f"W{s}")))
        return o
    def dmaQ(s):
        o = []
        for i in range(8):
            o.append((f"s_add_u32 m0, {S(sLw)}, {65536 + (s & 1) * 32768 + i * 1024}",
                      f"s_add_u32 {S(sT)}, {S(sQb)}, {(s * 128 + 4 * i) * 8192}",
                      I(f"buffer_load_dwordx4 {V(vW1 if (i >> 1) & 1 else vW0)}, {sWQ}, {S(sT)} offen{nt('Q')} lds", f"Q{s}")))
        return o
    sPW = 57
    def pf_setup():
        b(f"""
        s_and_b32 s6, {S(sWV)}, 1
        v_lshrrev_b32 v24, 1, v0
        v_lshlrev_b32 v24, 13, v24
        v_and_b32 v25, 1, v0
        v_lshl_add_u32 v24, v25, 7, v24
        v_mov_b32 v25, {hex(OOB)}
        v_cmp_gt_u32 vcc, 16, v0
        v_cndmask_b32 {V(vPW)}, v25, v24, vcc
        v_lshlrev_b32 v26, 7, v0
        v_cndmask_b32 v26, v25, v26, vcc
        v_cmp_gt_u32 vcc, 20, v0
        v_cndmask_b32 {V(vPQ)}, v25, v24, vcc
        s_lshl_b32 {S(sPW)}, s6, 19
        s_lshl_b32 {S(sT3)}, {S(sJ)}, 16
        s_add_u32 {S(sPW)}, {S(sPW)}, {S(sT3)}
        s_add_u32 {S(sPW)}, {S(sPW)}, {S(sT2)}
        s_lshl_b32 {S(sT3)}, s2, 2
        s_add_u32 {S(sT3)}, {S(sT3)}, {S(sWV)}
        s_lshl_b32 {S(sT3)}, {S(sT3)}, 11
        v_add_u32 v90, {S(sT3)}, v26
        s_add_u32 s6, {S(sPW)}, {64*8192}
        buffer_load_dword {V(vDum)}, v90, {sCKV}, 0 offen
        buffer_load_dword {V(vDum)}, {V(vPW)}, {sWU}, s6 offen{nt('w')}
        """)
    first = dmaC(0) + dmaW(0) + dmaC(1)[:NC1]
    for k, d in enumerate(first + [None]):
        if k == min(PFP, len(first)): pf_setup()
        if k == 8: build_rest()
        if d: b(list(d))
    b(f"""
    s_lshl_b32 {S(sQb)}, {S(sWV)}, 18
    s_add_u32 {S(sQb)}, {S(sQb)}, {S(sT2)}
    s_getpc_b64 s[4:5]
    {name}_pc1:
    s_lshr_b32 {S(sT)}, s2, 3
    s_lshl_b32 {S(sT)}, {S(sT)}, 2
    s_add_u32 {S(sT)}, {S(sT)}, {S(sWV)}
    s_lshl_b32 {S(sT)}, {S(sT)}, 10
    v_and_b32 v91, 7, v0
    v_lshl_add_u32 v91, v91, 7, {S(sT)}
    v_min_u32 v91, code_end - {name}_pc1 - 4, v91
    """)
    def pfW(t): return toI([f"s_add_u32 {S(sT2)}, {S(sPW)}, {(2*t + 1)*64*8192}", f"buffer_load_dword {V(vDum)}, {V(vPW)}, {sWU}, {S(sT2)} offen{nt('w')}"])
    def pfQ(t):
        return toI([f"s_lshl_b32 {S(sT2)}, {S(sJ)}, 2", f"s_add_u32 {S(sT2)}, {S(sT2)}, {S(sWV)}", f"s_mul_i32 {S(sT2)}, {S(sT2)}, {10*8192}",
                    f"s_lshl_b32 s7, {S(sHD)}, 8", f"s_add_u32 {S(sT2)}, {S(sT2)}, s7", f"s_add_u32 {S(sT2)}, {S(sT2)}, {t*320*8192}",
                    f"buffer_load_dword {V(vDum)}, {V(vPQ)}, {sWQ}, {S(sT2)} offen{nt('q')}"])
    pf0 = [toI([f"buffer_load_dword {V(vDum)}, v90, {sCKV}, 0 offen"]), pfW(0), toI([f"global_load_dword {V(vDum)}, v91, s[4:5]"])]
    b(f"""
    s_lshr_b32 {S(sCG)}, s2, 2
    s_and_b32 {S(sKq)}, s2, 3
    s_lshl_b32 {S(sMB)}, {S(sWV)}, 10
    s_add_u32 {S(sMB)}, {S(sMB)}, {MB + 20480}
    v_lshrrev_b32 v24, 3, v0
    v_mul_u32_u24 v24, 7680, v24
    v_and_b32 v25, 7, v0
    v_lshl_add_u32 {V(vMo)}, v25, 4, v24
    v_lshlrev_b32 v89, 2, v0
    """)
    def m_c(): return toI([f"s_mul_i32 {S(sT2)}, {S(sKq)}, 320", f"buffer_load_dword v17, v89, {sC}, {S(sT2)} offen", f"buffer_load_dword v18, v89, {sC}, {S(sT2)} offen offset:256"])
    def m_dma():
        o = [f"s_lshl_b32 {S(sT3)}, {S(sKq)}, 2", f"s_add_u32 {S(sT3)}, {S(sT3)}, {S(sWV)}", f"s_mul_i32 {S(sT3)}, {S(sT3)}, {40 * 7680}",
             f"s_lshl_b32 {S(sT2)}, {S(sCG)}, 7", f"s_add_u32 {S(sT3)}, {S(sT3)}, {S(sT2)}", f"s_cmp_lt_u32 {S(sCG)}, 60", f"s_cselect_b32 {S(sT3)}, {S(sT3)}, {hex(OOB)}",
             f"s_mul_i32 s7, {S(sWV)}, 5120"]
        for i in range(5):
            o += [f"s_add_u32 m0, s7, {MB + i*1024}", f"s_add_u32 {S(sT2)}, {S(sT3)}, {i*8*7680}",
                  I(f"buffer_load_dwordx4 {V(vMo)}, {sWM}, {S(sT2)} offen{nt('m')} lds", "m")]
        return toI(o)
    sK1, sV1 = 72, 74
    b(f"""
    v_lshlrev_b32 {V(vL16)}, 4, v0
    v_lshrrev_b32 v24, 1, v22
    v_xor_b32 v24, v24, v21
    v_lshlrev_b32 v24, 4, v24
    v_lshl_add_u32 v24, v22, 7, v24
    s_and_b32 {S(sT)}, {S(sWV)}, 1
    s_lshl_b32 {S(sT)}, {S(sT)}, 13
    s_add_u32 {S(sT)}, {S(sT)}, 65536
    v_add_u32 {V(vRC0)}, {S(sT)}, v24
    v_xor_b32 {V(vRC1)}, 64, {V(vRC0)}
    v_lshrrev_b32 v26, 2, v22
    v_and_b32 v24, 1, v21
    v_lshl_add_u32 v24, v24, 2, v26
    v_lshl_add_u32 v26, v21, 3, v26
    v_lshlrev_b32 v26, 8, v26
    v_and_b32 v25, 3, v0
    v_lshl_add_u32 v26, v25, 3, v26
    v_lshl_add_u32 v26, v24, 5, v26
    s_lshr_b32 {S(sT)}, {S(sWV)}, 1
    s_lshl_b32 {S(sT)}, {S(sT)}, 7
    v_xor_b32 {V(vRW)}, {S(sT)}, v26
    v_xor_b32 {V(vRW+1)}, 32, {V(vRW)}
    v_xor_b32 {V(vRW+2)}, 64, {V(vRW)}
    v_xor_b32 {V(vRW+3)}, 96, {V(vRW)}
    s_cmp_ge_u32 {S(sWV)}, 2
    s_cselect_b32 {S(sHb)}, {S(sBLK2)}, {S(sBLK)}
    s_lshl_b32 {S(sT2)}, {S(sHb)}, 7
    s_add_u32 {S(sT2)}, {S(sT2)}, {WS_FLG + FL_H*128}
    v_mov_b32 v11, {S(sT2)}
    s_lshl_b32 {S(sHb)}, {S(sHb)}, 1
    s_and_b32 {S(sT2)}, {S(sWV)}, 1
    s_add_u32 {S(sHb)}, {S(sHb)}, {S(sT2)}
    s_mul_i32 {S(sHb)}, {S(sHb)}, {20*4096}
    s_add_u32 {S(sHb)}, {S(sHb)}, {WS_H}
    s_lshl_b32 {S(sKb)}, {S(sHD)}, 19
    s_add_u32 {S(sVb)}, {S(sKb)}, {WS_V}
    s_add_u32 {S(sKb)}, {S(sKb)}, {WS_K}
    s_lshr_b32 {S(sT3)}, {S(sWV)}, 1
    s_mul_i32 {S(sK1)}, {S(sT2)}, {16384 + 8192}
    s_lshl_b32 {S(sT)}, {S(sT3)}, 11
    s_add_u32 {S(sK1)}, {S(sK1)}, {S(sT)}
    s_xor_b32 {S(sK1+1)}, {S(sK1)}, 16384
    s_mul_i32 {S(sV1)}, {S(sT2)}, {16384 + 1024}
    s_lshl_b32 {S(sT)}, {S(sT3)}, 13
    s_add_u32 {S(sV1)}, {S(sV1)}, {S(sT)}
    s_xor_b32 {S(sV1+1)}, {S(sV1)}, 16384
    """)
    vFlag, vOne, vPoll, vZero, vXo, vHo, vFlagW = 19, 20, 18, 17, 21, 22, 16
    b(f"""
    v_mov_b32 {V(vFlag)}, {hex(OOB)}
    s_cmp_eq_u32 {S(sWV)}, 0
    s_cselect_b32 {S(sT)}, 0, {hex(OOB)}
    v_mov_b32 {V(vFlagW)}, {hex(OOB)}
    v_writelane_b32 {V(vFlag)}, {S(sT)}, 0
    v_writelane_b32 {V(vFlagW)}, 0, 0
    v_mov_b32 {V(vOne)}, 1
    @waitvm W0
    s_barrier
    """)
    if not fine: T.stamp(b, "C0")
    def m_silu():
        o = ["v_lshlrev_b32 v24, 16, v17", "v_and_b32 v25, 0xffff0000, v17", "v_lshlrev_b32 v26, 16, v18", "v_and_b32 v27, 0xffff0000, v18"]
        o += [f"v_mul_f32 {V(28+k)}, {FH(-LOG2E)}, {V(24+k)}" for k in range(4)]
        o += [f"v_exp_f32 {V(28+k)}, {V(28+k)}" for k in range(4)]
        o += [f"v_add_f32 {V(28+k)}, 1.0, {V(28+k)}" for k in range(4)]
        o += [f"v_rcp_f32 {V(28+k)}, {V(28+k)}" for k in range(4)]
        o += [f"v_mul_f32 {V(24+k)}, {V(24+k)}, {V(28+k)}" for k in range(4)]
        o += ["v_cvt_pk_bf16_f32 v24, v24, v25", "v_cvt_pk_bf16_f32 v25, v26, v27", f"v_lshl_add_u32 v26, v0, 2, {S(sMB)}",
              "ds_write_b32 v26, v24", "ds_write_b32 v26, v25 offset:256",
              "v_lshrrev_b32 v27, 4, v0", "v_bfe_u32 v28, v0, 2, 2", "v_lshl_add_u32 v28, v27, 3, v28", "v_lshlrev_b32 v28, 7, v28",
              "v_and_b32 v29, 3, v0", "v_lshl_add_u32 v28, v29, 3, v28", f"s_lshl_b32 s6, {S(sWV)}, 5", f"s_add_u32 s6, s6, {MB}",
              "v_add_u32 v28, s6, v28", f"v_lshl_add_u32 v27, v27, 4, {S(sMB)}"]
        o += [f"ds_read_b128 {V(32+4*ks,4)}, v27 offset:{ks*64}" for ks in range(5)]
        return toI(o)
    def m_reads(): return toI([f"ds_read_b64_tr_b16 {V(52+4*ks+2*hf,2)}, v28 offset:{ks*4096 + hf*512}" for ks in range(5) for hf in range(2)])
    def m_mfma(): return [MF(V(72,4), V(32+4*ks,4), V(52+4*ks,4), V(72,4) if ks else "0") for ks in range(5)]
    def m_store():
        return toI([f"s_lshl_b32 {S(sT3)}, {S(sCG)}, 2", f"s_add_u32 {S(sT3)}, {S(sT3)}, {S(sWV)}", f"s_lshl_b32 {S(sT3)}, {S(sT3)}, 6",
                    f"s_add_u32 {S(sT3)}, {S(sT3)}, {S(sKq)}", f"s_lshl_b32 {S(sT3)}, {S(sT3)}, 2", f"s_add_u32 {S(sT3)}, {S(sT3)}, {WS_MP}",
                    "v_and_b32 v29, 15, v0", "v_lshlrev_b32 v29, 4, v29"]) + [I(f"buffer_store_dword v72, v29, {sWS}, {S(sT3)} offen sc1", "ms")]
    def rnd(r): return [f"v_cvt_pk_bf16_f32 {V(r)}, {V(r)}, {V(r)}", f"v_lshlrev_b32 {V(r)}, 16, {V(r)}"]
    def sum4(r): return [f"v_add_f32 {V(r)}, {V(r)}, {V(r+1)}", f"v_add_f32 {V(r+2)}, {V(r+2)}, {V(r+3)}", f"v_add_f32 {V(r)}, {V(r)}, {V(r+2)}"] + rnd(r)
    def acc(o, kt): return A(32*o + 4*kt, 4) if o < 3 else V(96 + 32*(o-3) + 4*kt, 4)
    def Cf(buf, kt, ks): return A(96 + 64*buf + 8*kt + 4*ks, 4)
    def rdC(s, kt, ks): return f"ds_read_b128 {Cf(s & 1, kt, ks)}, {V(vRC1 if ks else vRC0)} offset:{(s & 1)*32768 + (kt >> 2)*16384 + (kt & 3)*2048}"
    def Wf(buf, ks): return 224 + 8*buf + 4*ks
    def rdW(s, o): return [f"ds_read_b64_tr_b16 {A(Wf(o & 1, ks) + 2*hf, 2)}, {V(vRW + (o & 3))} offset:{(s & 1)*32768 + (o >> 2)*16384 + ks*8192 + hf*1024}"
                           for ks in range(2) for hf in range(2)]
    b(rdW(0, 0))
    for kt in range(5):
        for ks in range(2): b(rdC(0, kt, ks))
    T.stamp(b, "kvstart")

    def spin(lab, vreg, soff, target, sc_=None):
        b(f"@need {V(vreg)}")
        b(f"v_cmp_gt_u32 vcc, {target}, {V(vreg)}")
        b(f"s_cbranch_vccz {lab}_ok")
        sts = b.flush()
        b(f"s_mov_b32 s3, 0")
        b.label(f"{lab}_spin")
        b("s_sleep 4")
        b(soff)
        b(f"s_add_u32 s3, s3, 1")
        b(f"s_cmp_gt_u32 s3, {SPIN_MAX}")
        b("s_waitcnt vmcnt(0)")
        b(f"s_cbranch_scc1 {lab}_ok")
        b(f"v_cmp_gt_u32 vcc, {target}, {V(vreg)}")
        b(f"s_cbranch_vccnz {lab}_spin")
        s2 = b.flush()
        b.label(f"{lab}_ok", sts + s2)
    def emit_split(sc, hooks):
        cur = []
        for i in sc.emit():
            if i.kind == "pseudo" and i.op == "@mark":
                b(cur); cur = []; hooks[i.t.split()[1]]()
            else: cur.append(i)
        b(cur)

    XP, XF, MA, MS = 76, 32, 52, 72
    HP = 52
    poll_mod = f"buffer_load_dword {V(vPoll)}, {V(vZero)}, {sDBG}, 0 offen offset:{4*DB_MOD} sc1"
    poll_mo2 = f"buffer_load_dword {V(vPoll)}, {V(vZero)}, {sDBG}, 0 offen offset:{4*DB_MO2} sc1"
    def h_setup():
        return toI([f"""
        v_and_b32 v92, 31, v0
        v_lshrrev_b32 v93, 5, v0
        v_mul_u32_u24 {V(vXo)}, 1280, v93
        v_lshl_add_u32 {V(vXo)}, v92, 3, {V(vXo)}
        v_lshrrev_b32 v94, 1, v92
        v_lshlrev_b32 {V(vHo)}, 7, v94
        v_lshl_add_u32 {V(vHo)}, v93, 4, {V(vHo)}
        v_and_b32 v94, 1, v92
        v_lshl_add_u32 {V(vHo)}, v94, 3, {V(vHo)}
        s_lshl_b32 s6, {S(sWV)}, 5
        s_add_u32 s6, s6, {MB + 8192}
        v_add_u32 {V(vHo)}, s6, {V(vHo)}
        v_lshlrev_b32 v95, 4, v92
        v_add_u32 v95, {MB}, v95
        """])
    def h_loadx():
        o = [f"s_lshl_b32 {S(sT2)}, s2, 2", f"s_add_u32 {S(sT2)}, {S(sT2)}, {S(sWV)}", f"s_mul_i32 {S(sT2)}, {S(sT2)}, 2560"]
        o += [f"buffer_load_dwordx2 {V(XP+2*m,2)}, {V(vXo)}, {sX}, {S(sT2)} offen offset:{256*m}" for m in range(5)]
        return toI(o)
    def mp_load():
        o = [f"s_lshl_b32 {S(sT3)}, {S(sWV)}, 10"]
        for i in range(5): o += [f"s_add_u32 {S(sT2)}, {S(sT3)}, {WS_MP + 4096*i}", f"buffer_load_dwordx4 {V(52+4*i,4)}, {V(vL16)}, {sWS}, {S(sT2)} offen sc1"]
        return toI(o)
    def mp_sum():
        o = [f"s_cmp_ge_u32 {S(sWV)}, 2", "s_cselect_b32 s6, 1.0, 0", f"s_cmp_ge_u32 {S(sWV)}, 2", f"s_cselect_b32 s7, 1.0, {FH(QSCALE)}",
             f"s_lshl_b32 {S(sT3)}, {S(sWV)}, 8", f"s_add_u32 {S(sT3)}, {S(sT3)}, {MB}", f"v_lshl_add_u32 v94, v0, 2, {S(sT3)}"]
        for i in range(5):
            r = 52 + 4*i; o += sum4(r)
            if i < 2: o.append(f"v_mul_f32 {V(r)}, {FH(QSCALE)}, {V(r)}")
            elif i == 2: o += [f"v_add_f32 {V(r)}, s6, {V(r)}"] + rnd(r) + [f"v_mul_f32 {V(r)}, s7, {V(r)}"]
            else: o += [f"v_add_f32 {V(r)}, 1.0, {V(r)}"] + rnd(r)
            o.append(f"ds_write_b32 v94, {V(r)} offset:{1024*i}")
        return toI(o)
    def mod_read(): return toI([f"ds_read_b128 {V(r+4*m,4)}, v95 offset:{off + 512*m}" for m in range(5) for r, off in ((MA, 2560), (MS, 0))])
    def red32(r, t):
        o = [f"v_add_f32 {V(r)}, {V(r)}, {V(r)} row_ror:{k}" for k in (1, 2, 4, 8)]
        o += [f"v_mov_b32 {V(t)}, {V(r)}", f"v_permlane16_swap_b32 {V(r)}, {V(t)}", f"v_add_f32 {V(r)}, {V(r)}, {V(t)}"]
        return o
    def h_stats():
        o = []
        for k in range(10):
            o += [f"v_lshlrev_b32 {V(XF+2*k)}, 16, {V(XP+k)}", f"v_and_b32 {V(XF+2*k+1)}, 0xffff0000, {V(XP+k)}"]
        o += [f"v_add_f32 v92, {V(XF)}, {V(XF+1)}", f"v_add_f32 v93, {V(XF+2)}, {V(XF+3)}"]
        for k in range(4, 20): o.append(f"v_add_f32 {V(92 + (k & 1))}, {V(92 + (k & 1))}, {V(XF+k)}")
        o.append("v_add_f32 v92, v92, v93")
        o += red32(92, 93)
        o.append(f"v_mul_f32 v92, {FH(1/640)}, v92")
        for k in range(20): o.append(f"v_sub_f32 {V(XF+k)}, {V(XF+k)}, v92")
        o2 = [f"v_mul_f32 v92, {V(XF)}, {V(XF)}", f"v_mul_f32 v93, {V(XF+1)}, {V(XF+1)}"]
        for k in range(2, 20): o2.append(f"v_fmac_f32 {V(92 + (k & 1))}, {V(XF+k)}, {V(XF+k)}")
        o2.append("v_add_f32 v92, v92, v93")
        o2 += red32(92, 93)
        o2 += [f"v_mov_b32 v93, {FH(1e-5)}", f"v_fmac_f32 v93, {FH(1/640)}, v92", "v_rsq_f32 v93, v93", f"v_mul_f32 v93, {FH(QSCALE)}, v93"]
        for k in range(20): o2.append(f"v_mul_f32 {V(XF+k)}, {V(XF+k)}, v93")
        return toI(o), toI(o2)
    sHs = 61
    def h_addr():
        return toI([f"s_lshr_b32 {S(sHs)}, s2, 4", f"s_lshl_b32 {S(sHs)}, {S(sHs)}, 1", f"s_bfe_u32 {S(sT3)}, s2, 0x10001",
              f"s_add_u32 {S(sHs)}, {S(sHs)}, {S(sT3)}", f"s_mul_i32 {S(sHs)}, {S(sHs)}, {20*4096}",
              f"s_bfe_u32 {S(sT3)}, s2, 0x20002", f"s_lshl_b32 {S(sT3)}, {S(sT3)}, 10", f"s_add_u32 {S(sHs)}, {S(sHs)}, {S(sT3)}",
              f"s_and_b32 {S(sT3)}, s2, 1", f"s_lshl_b32 {S(sT3)}, {S(sT3)}, 7", f"s_add_u32 {S(sHs)}, {S(sHs)}, {S(sT3)}",
              f"s_add_u32 {S(sHs)}, {S(sHs)}, {S(sLw)}", f"s_add_u32 {S(sHs)}, {S(sHs)}, {WS_H}"])
    def h_fin():
        o = []
        for m in range(5):
            for k in range(4*m, 4*m + 4): o.append(f"v_fma_f32 {V(XF+k)}, {V(XF+k)}, {V(MA+k)}, {V(MS+k)}")
            for k in (2*m, 2*m + 1): o.append(f"v_cvt_pk_bf16_f32 {V(24+(k & 3))}, {V(XF+2*k)}, {V(XF+2*k+1)}")
            o.append(f"ds_write_b64 {V(vHo)}, {V(24 + 2*(m & 1), 2)} offset:{2048*m}")
        return toI(o)
    def h_back():
        return toI([f"s_lshl_b32 s6, {S(sWV)}, 10", f"s_add_u32 s6, s6, {MB + 8192}", f"v_add_u32 v92, s6, {V(vL16)}",
                    "v_lshrrev_b32 v93, 5, v0", "v_lshlrev_b32 v93, 12, v93", "v_bfe_u32 v94, v0, 3, 2", "v_lshl_add_u32 v93, v94, 8, v93",
                    "v_and_b32 v94, 7, v0", "v_lshl_add_u32 v93, v94, 4, v93"]), toI([f"ds_read_b128 {V(32+4*k,4)}, v92 offset:{4096*k}" for k in range(3)])
    def h_store():
        o = []
        for k in range(3):
            o.append(f"s_add_u32 {S(sT3)}, {S(sHs)}, {32768*k}")
            if k == 2: o += [f"s_cmp_lt_u32 {S(sWV)}, 2", f"s_cselect_b32 {S(sT3)}, {S(sT3)}, {hex(OOB)}"]
            o.append(I(f"buffer_store_dwordx4 {V(32+4*k,4)}, v93, {sWS}, {S(sT3)} offen sc1", "hs"))
        return toI(o)
    def f_load():
        return toI([f"s_lshl_b32 {S(sT2)}, s2, 8", f"s_add_u32 {S(sT2)}, {S(sT2)}, {WS_MP + 1280*16}", "v_and_b32 v28, 15, v0", "v_lshlrev_b32 v29, 4, v28",
                    f"buffer_load_dwordx4 v[24:27], v29, {sWS}, {S(sT2)} offen sc1"])
    def f_fin():
        return toI(["s_sub_u32 s6, s2, 80", "s_cmp_lt_u32 s6, 40", "s_cselect_b32 s6, 1.0, 0", "s_lshl_b32 s7, s2, 6", f"s_add_u32 s7, s7, {WS_MOD + 1280*4}",
                    "s_cmp_lt_u32 s2, 160", f"s_cselect_b32 s7, s7, {hex(OOB)}", f"s_cmp_eq_u32 {S(sWV)}, 0", f"s_cselect_b32 s7, s7, {hex(OOB)}"]
                   + sum4(24) + ["v_add_f32 v24, s6, v24"] + rnd(24) + ["v_lshlrev_b32 v29, 2, v28", f"buffer_store_dword v24, v29, {sWS}, s7 offen sc1",
                      "s_sub_u32 s6, s2, 40", "s_cmp_lt_u32 s6, 40", "s_cselect_b32 s7, 64, 0", "s_cmp_lt_u32 s6, 40", "s_cselect_b32 s5, 0, 40",
                      "s_sub_u32 s5, s6, s5", "s_lshr_b32 s4, s5, 1", "s_lshl_b32 s4, s4, 7", "s_add_u32 s7, s7, s4", "s_and_b32 s5, s5, 1", "s_lshl_b32 s5, s5, 3",
                      "s_add_u32 s7, s7, s5", f"s_add_u32 s7, s7, {WS_MODB}", "s_cmp_lt_u32 s6, 80", f"s_cselect_b32 s7, s7, {hex(OOB)}",
                      f"s_cmp_eq_u32 {S(sWV)}, 0", f"s_cselect_b32 s7, s7, {hex(OOB)}",
                      "v_lshrrev_b32 v29, 2, v28", "v_lshlrev_b32 v29, 4, v29", "v_and_b32 v28, 3, v28", "v_lshl_add_u32 v29, v28, 1, v29",
                      f"buffer_store_short_d16_hi v24, v29, {sWS}, s7 offen sc1"])
    def seq(sc, ins, start): return sc.seq(ins, start)
    poll_h = f"buffer_load_dword {V(vPoll)}, v11, {sWS}, 0 offen sc1"
    def Hf(buf, ks, qt): return A(96 + 64*buf + 16*ks + 4*qt, 4)
    def ldH(s):
        o = []
        for ks in range(4):
            o.append(f"s_add_u32 {S(sT2)}, {S(sHb)}, {(4*s + ks)*4096}")
            for qt in range(4): o.append(f"buffer_load_dwordx4 {Hf(s & 1, ks, qt)}, {V(vL16)}, {sWS}, {S(sT2)} offen offset:{qt*1024} sc1")
        return toI(o)
    tmpi = [0]
    def rno(t): return int(t[2:t.index(":")])
    def pack(t0, t1, dst=None):
        o = []
        def src(t, d=None):
            if t[0] == "v": return rno(t)
            if d is None: d = 24 + 4 * (tmpi[0] % 8); tmpi[0] += 1
            for k in range(4): o.append(f"v_accvgpr_read_b32 {V(d+k)}, {A(rno(t)+k)}")
            return d
        r0 = src(t0, dst); r1 = src(t1)
        cv = lambda d, s: f"v_cvt_pk_bf16_f32 {V(d)}, {V(s)}, {V(s+1)}"
        if t0[0] == "a" and t1[0] == "v":
            o += [cv(r1+3, r1+2), cv(r1+2, r1), cv(r1, r0), cv(r1+1, r0+2)]; return toI(o), r1
        o += [cv(r0, r0), cv(r0+1, r0+2), cv(r0+2, r1), cv(r0+3, r1+2)]; return toI(o), r0
    sG = 36
    def kvstore(reg, isv, u, pl, off):
        return toI([f"s_add_u32 {S(sT3)}, {S(sG + 4*isv + 2*u + pl)}, {off}"]) + [I(f"buffer_store_dwordx4 {reg}, {V(vL16)}, {sWS}, {S(sT3)} offen{KVM}", f"kv{u}")]
    def QWf(buf, ks): return (240 if buf == 0 else 224) + 4*ks
    def rdQW(s, dt): return [f"ds_read_b64_tr_b16 {A(QWf(dt & 1, ks) + 2*hf, 2)}, {V(vRW + dt)} offset:{(s & 1)*32768 + ks*8192 + hf*1024}"
                             for ks in range(4) for hf in range(2)]
    st1 = []; st0 = []; kwr = []; vwr = []; vpack = []; park = []; vw1 = []
    vKw, vVw = (21, 22), (17, 19)
    def flag(off_ins, srd, imm, vf=vFlag): return toI(off_ins + [f"buffer_atomic_add {V(vOne)}, {V(vf)}, {srd}, {S(sT2)} offen offset:{imm}"])
    def paced(sc, groups, g0, g1):
        g = g0
        for k, gr in enumerate(groups):
            g = seq(sc, list(gr), max(g, g0 + (k * (g1 - g0)) // len(groups))) + 1
        return g
    def vgroups(ins):
        out = [[]]
        for i in ins:
            out[-1].append(i)
            if i.kind == "vmem": out.append([])
        assert not out[-1]; return out[:-1]
    def kv_dma(s):
        d = []
        if s < 7: d += dmaW(s + 1)
        if s < 6: d += dmaC(s + 2)
        if s == 6: d += dmaQ(0)
        if s == 7: d += dmaQ(1)
        return d
    NT = 3
    for s in range(8):
        mf = []
        for o in range(8):
            for kt in range(8):
                for ks in range(2):
                    w = A(Wf(o & 1, ks), 4); c = Cf(s & 1, kt, ks)
                    cin = "0" if (s == 0 and ks == 0) else acc(o, kt)
                    mf.append(MF(acc(o, kt), w, c, cin) if o < 4 else MF(acc(o, kt), c, w, cin))
        sc = Sched(mf)
        if s == 0:
            for n in range(10, 16): sc.put(rdC(0, n >> 1, n & 1), n - 10)
        for o in range(7):
            for k, r in enumerate(rdW(s, o + 1)): sc.put(r, 16*o + k)
            sc.raw(f"@need {A(Wf((o+1) & 1, 0), 8)}", 16*o + 15, "pre")
        d = kv_dma(s)
        sc.raw(([f"@waitvm {d[-1][2].tag}"] if s < 7 else []) + ["s_waitcnt lgkmcnt(0)", "s_barrier"], 111)
        if s < 7:
            for k, r in enumerate(rdW(s + 1, 0)): sc.put(r, 112 + k)
            sc.raw(f"@need {A(Wf(0, 0), 8)}", 127, "pre")
            for n in range(16): sc.put(rdC(s + 1, n >> 1, n & 1), (5 + 6*n) if s else (BA + 1 + ((106 - BA)*n) // 16))
        hooks = {}
        if s == 0:
            sc.raw(["@waitvm C1", "s_waitcnt lgkmcnt(0)", "s_barrier"], BA)
            sc.raw([x for gr in dmaC(1)[NC1:] for x in gr], -1)
            g = paced(sc, d[:8], 10, BA - 2); assert g <= BA + 2, g
            g0 = paced(sc, d[8:], BA + 1, BA + 36)
            g0 = paced(sc, pf0[2:] + vgroups(m_c()) + (vgroups(m_dma()) if MS0 else []), g0, 126 if MS0 else 110); assert g0 < 129, g0
            seq(sc, h_setup(), 20)
        elif s < 7: g0 = paced(sc, d[(0 if s == 1 and MS0 else NT):], 0, END + (10 if s == 1 and MS0 else 0))
        if s < 7 and not (s == 0 and MS0): paced(sc, kv_dma(s + 1)[:NT], 116, 127)
        def m_part(g):
            g = seq(sc, m_reads(), g)
            sc.raw(m_mfma(), g + 6)
            return seq(sc, toI([f"v_mov_b32 {V(vZero)}, 0", "v_and_b32 v90, 31, v0", "v_lshlrev_b32 v90, 6, v90", f"s_lshl_b32 s6, s2, 11",
                             f"s_cmp_lt_u32 s2, 80", f"s_cselect_b32 s6, s6, {hex(OOB)}",
                             f"s_cmp_eq_u32 {S(sWV)}, 0", f"s_cselect_b32 s6, s6, {hex(OOB)}",
                             f"s_add_u32 s6, s6, {WS_FLG}", f"buffer_store_dword {V(vZero)}, v90, {sWS}, s6 offen sc1"]) + m_store(), g + 2)
        def m_arrive(gm):
            sc.raw(["@waitvm ms", "s_barrier"], gm)
            return seq(sc, flag([f"s_cmp_lt_u32 s2, 80", f"s_cselect_b32 {S(sT2)}, {4*DB_MOD}, {4*DB_MO2}", f"s_cmp_lt_u32 s2, 240", f"s_cselect_b32 {S(sT2)}, {S(sT2)}, {hex(OOB)}"], sDBG, 0), gm + 1)
        if s == 1:
            g = seq(sc, m_silu(), 4)
            if MS0:
                sc.raw(["@waitvm m", "s_barrier"], g + 1)
                assert m_part(g + 2) < 128
                paced(sc, [pfW(1)] + vgroups(h_loadx()), g0, 110)
            else: assert paced(sc, [pfW(1)] + vgroups(m_dma()), g0, 112) < 117
        if s == 2:
            if MS0:
                g = m_arrive(MW)
                assert seq(sc, pfW(2), max(g, g0) + 1) < 111
                seq(sc, h_stats()[0], 30)
            else:
                sc.raw(["@waitvm m", "s_barrier"], 30)
                assert m_part(31) < 80
                assert paced(sc, [pfW(2)] + vgroups(h_loadx()), max(g0, 80), 110) < 114
                m_arrive(113)
        if s == 3:
            gp = sc.put(poll_mod, PMG); assert gp < PMG + 8
            sc.raw("@mark pm", gp + 30, "post2"); hooks["pm"] = lambda: spin(name + "_pm", vPoll, poll_mod, 80)
            assert paced(sc, vgroups(mp_load()) + [pfW(3)], gp + 31, min(gp + 56, 126)) < 129
            assert seq(sc, h_addr(), 0) < gp + 30
            seq(sc, ([] if MS0 else h_stats()[0]) + h_stats()[1], 0 if MS0 else 20)
        if s == 4:
            g = seq(sc, mp_sum(), 4)
            sc.raw(["s_waitcnt lgkmcnt(0)", "s_barrier"], g + 4)
            gr = g + 5; mr = mod_read(); hf_ = h_fin(); pos = []
            for m in range(5): gr = seq(sc, mr[2*m : 2*m + 2], gr) + 1; pos.append(gr)
            for m in range(5): g = seq(sc, hf_[7*m : 7*m + 7], max(g + 1, pos[m] + 5))
            assert g < 108, g
            hb = h_back(); assert seq(sc, hb[0], 60) < 111
            seq(sc, hb[1], 116)
            assert seq(sc, pfQ(0), g0) < 111
        if s == 5:
            g = paced(sc, vgroups(h_store()), 2, 30)
            sc.raw("@waitvm hs", g0 + 3)
            g = seq(sc, flag([f"s_lshr_b32 {S(sT2)}, s2, 4", f"s_lshl_b32 {S(sT2)}, {S(sT2)}, 7", f"s_add_u32 {S(sT2)}, {S(sT2)}, {WS_FLG + FL_H*128}"], sWS, 0, vFlagW), g0 + 4)
            g = sc.put(poll_mo2, g + 4); assert g < 104
            assert seq(sc, pfQ(1), g + 1) < 111
            sc.raw("@mark p2", 111); hooks["p2"] = lambda: spin(name + "_p2", vPoll, poll_mo2, 160)
        if s == 6:
            seq(sc, f_load(), 2)
            assert sc.put(poll_h, 92) < 110
            g = seq(sc, f_fin(), 40)
            sc.raw("@mark ph", 126, "post2"); hooks["ph"] = lambda: spin(name + "_ph", vPoll, poll_h, 64)
            ga = []
            for isv, (base, rel) in enumerate(((sKb, sK1), (sVb, sV1))):
                for u, blk in enumerate((sBLK, sBLK2)):
                    ga += [f"s_lshl_b32 {S(sT3)}, {S(blk)}, 15", f"s_add_u32 {S(sT3)}, {S(sT3)}, {S(base)}"]
                    ga += [f"s_add_u32 {S(sG + 4*isv + 2*u + pl)}, {S(sT3)}, {S(rel + pl)}" for pl in range(2)]
            ga += [f"v_add_u32 {V(vKw[pl])}, {S(sK1+pl)}, {V(vL16)}" for pl in range(2)]
            ga += [f"v_add_u32 {V(vVw[pl])}, {S(sV1+pl)}, {V(vL16)}" for pl in range(2)] + [f"v_add_u32 {V(vVw[pl])}, 65536, {V(vVw[pl])}" for pl in range(2)]
            seq(sc, ga, 76)
        if s == 7:
            assert paced(sc, vgroups(ldH(0)) + d[NT:], 0, 98) < 112
            qa = [f"s_lshr_b32 s6, {S(sWV)}, 1", f"s_lshl_b32 s6, s6, 7", f"s_add_u32 s6, s6, 65536", f"v_xor_b32 {V(vRW)}, s6, {V(vRW)}"]
            qa += [f"v_xor_b32 {V(vRW+n)}, {32*n}, {V(vRW)}" for n in range(1, 8)]
            assert seq(sc, toI(qa), 101) < 112
            for k, r in enumerate(rdQW(0, 0)): sc.put(r, 112 + k)
            g = 0
            for kt in range(8):
                g = seq(sc, [f"v_accvgpr_read_b32 {V(64+4*kt+k)}, {A(4*kt+k)}" for k in range(4)]
                        + [f"v_cvt_pk_bf16_f32 {V(64+4*kt+k)}, {V(64+4*kt+2*k)}, {V(65+4*kt+2*k)}" for k in range(2)], max(g, 2*kt + 6))
            for a in range(2):
                for kt in range(8):
                    u, pl = kt >> 2, (kt >> 1) & 1
                    ins, r = pack(acc(2*a, kt), acc(2*a+1, kt), 64 + 4*kt if a == 0 else None)
                    if a == 0: ins = ins[4:8] + ins[10:]
                    off = ((kt & 1)*4 + a)*1024
                    kwr.append(f"ds_write_b128 {V(vKw[pl])}, {V(r,4)} offset:{u*32768 + off}")
                    if a == 0 and u == 0:
                        park += [f"v_accvgpr_write_b32 {A(4*kt+k)}, {V(r+k)}" for k in range(4)]
                        st0.append(kvstore(A(4*kt, 4), 0, u, pl, off))
                    else: (st1 if u else st0).append(kvstore(V(r, 4), 0, u, pl, off))
                    g = seq(sc, ins, max(g, 16*(2*a+1) + 2*kt + 6))
            for o in range(4, 8):
                for p in range(4):
                    u, pl = p >> 1, p & 1
                    ins, r = pack(acc(o, 2*p), acc(o, 2*p+1))
                    off = (o-4)*2048
                    (st1 if u else st0).append(kvstore(V(r, 4), 1, u, pl, off))
                    if u == 0: vwr.append(f"ds_write_b128 {V(vVw[pl])}, {V(r,4)} offset:{32768 + off}")
                    else: vw1.append((r, f"ds_write_b128 {V(vVw[pl])}, {V(r,4)} offset:{off}"))
                    vpack.append(ins)
        emit_split(sc, hooks)
        if fine is True and s < 7: T.stamp(b, f"kv{s}")
    T.stamp(b, "kvend")
    def qacc(dt, qt):
        i = dt*4 + qt
        return 32 + 4*i if i < 8 else (128 + 8*(i - 8) + 4 if i < 24 else 64 + 4*(i - 24))
    vKr, vVr, vDm, vQw, vQr = 1, 2, 5, 6, 24
    qsetup = toI([f"""
    s_lshl_b32 s6, {S(sHD)}, 7
    s_add_u32 s6, s6, {WS_FLG + FL_KV*128}
    v_mov_b32 v25, s6
    s_lshr_b32 s6, {S(sWV)}, 1
    s_lshl_b32 s7, s6, 14
    v_add_u32 {V(vKr)}, s7, {V(vL16)}
    v_add_u32 {V(vVr)}, 65536, {V(vKr)}
    v_add_u32 {V(vDm)}, {S(sLw)}, {V(vL16)}
    s_and_b32 s7, {S(sWV)}, 1
    s_lshl_b32 s7, s7, 14
    s_add_u32 s7, s7, 65536
    v_add_u32 {V(vQr)}, s7, {V(vL16)}
    s_lshl_b32 s6, s6, 16
    v_add_u32 {V(vQw)}, s6, {V(vQr)}
    """])
    def dmaKV(isv, slot, soff, tag, sl=sLw):
        base = (65536 + (slot ^ 1)*32768) if isv else slot*32768
        o = []
        for hf in range(2):
            o.append(I(f"s_add_u32 m0, {S(sl)}, {base + hf*4096}"))
            if hf: o.append(I(f"s_add_u32 {S(soff)}, {S(soff)}, 4096"))
            for i in range(4): o.append(I(f"buffer_load_dwordx4 {V(vDm)}, {sWS}, {S(soff)} offen offset:{i*1024} sc1 lds", tag))
        return o
    sR0, sKu, sUa, sUb = 57, 60, 70, 62
    sA0, sA1, sAl = 63, 78, 77
    def unit_diag(dst, base): return [f"s_lshl_b32 {S(dst)}, {S(sBLK)}, 15", f"s_add_u32 {S(dst)}, {S(dst)}, {S(base)}"]
    def unit_r0(dst, base): return [f"s_lshl_b32 {S(dst)}, {S(sR0)}, 15", f"s_add_u32 {S(dst)}, {S(dst)}, {S(base)}"]
    assert sum(QST) == 16
    def pf_code(tag, vt, vd):
        return toI([f"s_getpc_b64 s[4:5]", f"{name}_pc{tag}:", f"s_lshr_b32 s6, s2, 3", f"s_lshl_b32 s6, s6, 2", f"s_add_u32 s6, s6, {S(sWV)}", f"s_lshl_b32 s6, s6, 9",
                    f"v_and_b32 {V(vt)}, 3, v0", f"v_lshl_add_u32 {V(vt)}, {V(vt)}, 7, s6", f"v_min_u32 {V(vt)}, code_end - {name}_pc{tag} - 4, {V(vt)}",
                    f"global_load_dword {V(vd)}, {V(vt)}, s[4:5]"])
    for s in range(5):
        mf = []
        for dt in range(8):
            for qt in range(4):
                for ks in range(4):
                    d = V(qacc(dt, qt), 4)
                    mf.append(MF(d, A(QWf(dt & 1, ks), 4), Hf(s & 1, ks, qt), "0" if (s == 0 and ks == 0) else d))
        sc = Sched(mf)
        for dt in range(7):
            for k, r in enumerate(rdQW(s, dt + 1)): sc.put(r, 16*dt + k)
            sc.raw(f"@need {A(QWf((dt+1) & 1, 0), 16)}", 16*dt + 15, "pre")
        sc.raw([f"@waitvm Q{s+1}", "s_waitcnt lgkmcnt(0)", "s_barrier"], 111)
        if s < 4:
            for k, r in enumerate(rdQW(s + 1, 0)): sc.put(r, 112 + k)
            sc.raw(f"@need {A(QWf(0, 0), 16)} {A(96 + 64*((s+1) & 1), 64)}", 127, "pre")
        ld = (dmaQ(s + 1) if 1 <= s < 4 else []) + (vgroups(ldH(s + 1)) if s < 4 else [])
        if s < 2:
            g = 8
            for w in kwr[8*s : 8*s + 8]: g = sc.put(w, g) + DWS
            assert g < 95
        if s < 4:
            mine = st1[sum(QST[:s]) : sum(QST[:s+1])]
            if s == 0:
                g = paced(sc, mine[:4], 0, 24); g = paced(sc, ld, g, QEND); mine = mine[4:]
            else: g = paced(sc, ld, 0, QEND)
            if mine: assert paced(sc, mine, g, 126) < 129
        if s == 0:
            g = 0
            for k, ins in enumerate(vpack):
                g = seq(sc, ins, g); assert g < 32 + 4*k - 2, (k, g)
            assert seq(sc, park, g) < 94
        if s == 3: seq(sc, qsetup + toI([f"s_mov_b32 {S(sR0)}, {S(sJ)}"]), 40)
        if s == 3 and CPF: sc.raw(pf_code("q", 27, vDum), 126)
        if s == 4:
            sc.raw("@waitvm kv1", QF)
            g = seq(sc, flag([f"s_lshl_b32 {S(sT2)}, {S(sHD)}, 7", f"s_add_u32 {S(sT2)}, {S(sT2)}, {WS_FLG + FL_KV*128}"], sWS, 0, vFlagW), QF + 1)
            g = paced(sc, st0[:QB], g + 1, 110)
            g = 8
            for w in vwr: g = sc.put(w, g) + DWS
            assert g < 111
            g = 0
            for ds in range(4):
                for qt in range(4):
                    r0, r1 = qacc(2*ds, qt), qacc(2*ds+1, qt)
                    g = seq(sc, toI([f"v_cvt_pk_bf16_f32 {V(r0)}, {V(r0)}, {V(r0+1)}", f"v_cvt_pk_bf16_f32 {V(r0+1)}, {V(r0+2)}, {V(r0+3)}",
                                     f"v_cvt_pk_bf16_f32 {V(r0+2)}, {V(r1)}, {V(r1+1)}", f"v_cvt_pk_bf16_f32 {V(r0+3)}, {V(r1+2)}, {V(r1+3)}"]),
                            max(g, 16*(2*ds+1) + 4*qt + 8))
            rest = st0[QB:10]
            for k in range(16):
                ds, qt = k >> 2, k & 3
                w = f"ds_write_b128 {V(vQw)}, {V(qacc(2*ds, qt), 4)} offset:{(ds*4+qt)*1024}"
                if k < 5: sc.raw(w, 113 + 3*k)
                else:
                    sc.raw(w, 999)
                    if rest: sc.raw(rest.pop(0), 999)
            assert not rest
        out = sc.emit()
        if "qtr" in drop: out = [i for i in out if "_tr_" not in i.op]
        if "qvm" in drop: out = [i for i in out if not (i.kind == "vmem" and "load" in i.op)]
        if "qst" in drop: out = [i for i in out if not (i.kind == "vmem" and "store" in i.op)]
        if "qdw" in drop: out = [i for i in out if not i.op.startswith("ds_write")]
        b(out)
        if fine is True and s < 4: T.stamp(b, f"q{s}")
    T.stamp(b, "qend")
    def O(dt, qt): return 128 + 16*dt + 4*qt
    def P(buf, kp, qt): return 64 + 32*buf + 16*kp + 4*qt
    def Sw(i): return 48 + 4*(i & 3)
    def NM(qt): return 32 + 4*qt
    def Lr(qt): return 164 + 4*qt
    MK, TC = 8, 12
    vL, vXp, vPa, vPk = 3, 4, 6, 7
    vX, vLx, vQa, vQb = 17, 18, 21, 22
    def Qf(ds, qt): return A(16*ds + 4*qt, 4)
    def Kf(kt, ds): return A(64 + 16*kt + 4*ds, 4)
    def Vf(dt, kp): return A(128 + 8*(dt & 3) + 4*kp, 4)
    ONES = A(160, 4)
    sTop = 76; NCX = 8; sXa = 36
    sLk = 80
    att = fine in ("att0", "att1"); cnd = f"s_cmp_eq_u32 {S(sPass)}, {str(fine)[-1]}"
    def ST(nm):
        if not att: return
        if nm in T.names:
            n = T.n; T.n = T.names.index(nm); T.stamp(b, nm, cnd); T.names.pop(); T.n = n
        else: T.stamp(b, nm, cnd)
    def rdK(slot, kt, ds): return f"ds_read_b128 {Kf(kt, ds)}, {V(vKr)} offset:{slot*32768 + (kt*4+ds)*1024}"
    def rdK0(kt, ds): return rdK(0, kt, ds)
    def rdV(slot, dt, kp): return f"ds_read_b128 {Vf(dt, kp)}, {V(vVr)} offset:{(slot ^ 1)*32768 + (dt*2+kp)*1024}"
    def rdQ(base, ds, qt): return f"ds_read_b128 {A(base + 16*ds + 4*qt, 4)}, {V(vQb if qt >> 1 else vQa)} offset:{ds*4096 + (qt & 1)*1024}"
    poll_kv = f"buffer_load_dword {V(vPk)}, {V(vPa)}, {sWS}, 0 offen sc1"
    b([rdK0(0, ds) for ds in range(4)])
    b(f"s_load_dwordx2 {S(WU,2)}, s[0:1], {ARG['wo']}")
    RT, RO, RS = R["wuk"], R["wuv"], R["ckv"]
    for r_, n_ in ((RT, "win"), (RO, "wout"), (RS, "wsp"), (R["dbg"], "x")):
        b(f"s_load_dwordx2 {S(r_,2)}, s[0:1], {ARG[n_]}"); b(f"s_mov_b32 {S(r_+2)}, {hex(SIZE[n_])}")
    b(f"""
    s_mov_b32 {S(WU+2)}, {hex(SIZE['wo'])}
    v_mov_b32 {V(vL)}, {V(vL16)}
    s_lshr_b32 {S(sT2)}, {S(sWV)}, 1
    s_lshl_b32 {S(sT2)}, {S(sT2)}, 11
    v_add_u32 {V(vQa)}, {S(sT2)}, {V(vQr)}
    v_xor_b32 {V(vQb)}, 0x800, {V(vQa)}
    s_lshl_b32 {S(sA0)}, {S(sBLK2)}, 15
    s_add_u32 {S(sA0)}, {S(sA0)}, {S(sKb)}
    s_mov_b32 {S(sA1)}, {S(sKb)}
    s_mov_b32 {S(sAl)}, {S(sLw)}
    v_mov_b32 v12, 0x3f803f80
    s_mov_b32 {S(sPass)}, 0
    s_mov_b32 {S(sTop)}, 131072
    v_mov_b32 {V(vPa)}, v25
    """)
    for r in range(4): b(f"v_accvgpr_write_b32 {A(160+r)}, v12")
    def masks(first, t0=28):
        o = [f"""
        v_lshrrev_b32 {V(t0)}, 4, v0
        v_lshlrev_b32 {V(t0)}, 2, {V(t0)}
        v_and_b32 {V(t0+1)}, 15, v0
        v_sub_u32 {V(t0)}, {V(t0+1)}, {V(t0)}
        s_and_b32 s7, {S(sWV)}, 1
        s_lshl_b32 s7, s7, 4
        v_add_u32 {V(t0)}, s7, {V(t0)}
        v_mov_b32 {V(t0+1)}, {FH(NEGBIG)}
        """]
        for base, dst in ([(0, MK)] if first else []) + [(16, TC)]:
            for r in (0, 2):
                o += [f"v_cmp_gt_i32 vcc, {base + r}, {V(t0)}", f"v_cmp_gt_i32 {S(sMK,2)}, {base + r + 1}, {V(t0)}", "v_nop",
                      f"v_cndmask_b32 {V(dst+r)}, 0, {V(t0+1)}, vcc", f"v_cndmask_b32 {V(dst+r+1)}, 0, {V(t0+1)}, {S(sMK,2)}"]
        return toI(o)
    b(masks(True))
    b(poll_kv.replace(f'dword {V(vPk)},', 'dword v26,'))
    for r in range(16): b(f'v_mov_b32 {V(NM(0)+r)}, 0')
    b("s_waitcnt lgkmcnt(0)"); b("s_barrier")
    for qt in range(4):
        for ds in range(4): b(rdQ(0, ds, qt))
    b(f"v_add_u32 {V(vQa)}, 65536, {V(vQa)}"); b(f"v_add_u32 {V(vQb)}, 65536, {V(vQb)}")
    def softmax_ops(si, pbuf, kt, qt):
        s = Sw(si); p = P(pbuf, kt >> 1, qt) + 2*(kt & 1)
        return ([f"v_exp_f32 {V(s+r)}, {V(s+r)}" for r in range(4)],
                [f"v_cvt_pk_bf16_f32 {V(p)}, {V(s)}, {V(s+1)}", f"v_cvt_pk_bf16_f32 {V(p+1)}, {V(s+2)}, {V(s+3)}"])
    def place_softmax(sc, ops, start, stride):
        ex, cv = ops; g = start; gs = []
        for e in ex:
            g = sc.put(e, g); gs.append(g); g += stride
        return [(cv[0], gs[1] + 1), (cv[1], gs[3] + 1)]
    def diag_active(kg): return [(kp, q) for kp in range(2) for q in range(4) if (3 - kg if kp else kg) <= (q ^ (2*kg))]
    def next_k_dma(slot, ahead=2):
        return toI([f"s_mov_b32 {S(sUa)}, {S(sUb)}", f"s_mov_b32 {S(sUb)}, {S(sKu)}",
                    f"s_lshl_b32 {S(sKs)}, {S(sKu)}, 15", f"s_add_u32 {S(sKs)}, {S(sKs)}, {S(sKb)}", f"s_add_u32 {S(sKu)}, {S(sKu)}, 1",
                    f"s_cmp_eq_u32 {S(sKu)}, {S(sR0)}", f"s_addc_u32 {S(sKu)}, {S(sKu)}, 0", f"s_add_u32 {S(sT2)}, {S(sN)}, {ahead}",
                    f"s_cmp_gt_u32 {S(sBLK)}, {S(sT2)}", f"s_cselect_b32 {S(sKs)}, {S(sKs)}, {S(sA1 if slot else sA0)}",
                    f"s_cmp_gt_u32 {S(sBLK)}, {S(sT2)}", f"s_cselect_b32 {S(sLk)}, {S(sLw)}, {S(sAl)}"]) + dmaKV(0, slot, sKs, "k", sLk)
    def next_v_dma(slot):
        return toI([f"s_lshl_b32 {S(sVs)}, {S(sUa)}, 15", f"s_add_u32 {S(sVs)}, {S(sVs)}, {S(sVb)}"]) + dmaKV(1, slot, sVs, "v")
    def next_reads(n_par):
        rd = []
        for k in range(4): rd += [rdK(n_par, 0, k), rdV(n_par ^ 1, k >> 1, k & 1)]
        return rd
    def qk_diag(kg):
        act = diag_active(kg); tiles = []; zero = []
        for kt in range(4):
            p = 3 - kg if kt >> 1 else kg
            for q in range(4):
                if (kt >> 1, q) in act: tiles.append((kt, q, p == (q ^ (2*kg))))
        mf = []
        for i, (kt, q, dg) in enumerate(tiles):
            for ds in range(4):
                mf.append(MF(V(Sw(i), 4), Kf(kt, ds), Qf(ds, q), V(Sw(i), 4) if ds else V(Sw(i) if dg else NM(q), 4)))
        n = len(mf)
        sc = Sched(mf)
        g = 0
        for kt in sorted({t[0] for t in tiles} - {0}):
            for ds in range(4): g = sc.put(rdK0(kt, ds), g, force=True) + 1
        gb = max(g + 5, 4 * max(i for i, t in enumerate(tiles) if t[0] == 0) + 4, n - 10)
        init = []
        for kt, q in zero:
            p = P(0, kt >> 1, q) + 2*(kt & 1); init += [f"v_mov_b32 {V(p)}, 0", f"v_mov_b32 {V(p+1)}, 0"]
        if kg == 1: init += [f"v_accvgpr_write_b32 {A(Lr(2)+r)}, 0" for r in range(4)]
        for i, (kt, q, dg) in enumerate(tiles):
            if dg:
                for r in range(4): sc.raw(f"v_add_f32 {V(Sw(i)+r)}, {V(NM(q)+r)}, {V((TC if kt & 1 else MK)+r)}", -1 if i < 4 else 4*i - 4 + r // 2, "post2")
        sc.raw(init, -1)
        for i, (kt, q, dg) in enumerate(tiles):
            ex, cv = softmax_ops(i, 0, kt, q)
            for r in range(4): sc.raw(ex[r], 4*i + 7 + r)
            sc.raw(cv[0], 4*i + 10, "post"); sc.raw(cv[1], 4*i + 11, "post2")
        for i, (kt, q, dg) in enumerate(tiles):
            sc.raw(f"@need {A(64 + 16*kt, 16)} " + " ".join(Qf(ds, q) for ds in range(4)), 4*i - 1, "pre")
        sc.raw(["@waitvm v", "s_waitcnt lgkmcnt(0)", "s_barrier"], gb, "post2")
        for k, r in enumerate(next_reads(1)): sc.raw(r, gb + 1 + k, "pre")
        assert gb + 8 < n
        sc.seq(next_k_dma(0, 1)[:12], 14)
        return sc.emit()
    def iteration(par, qk, pv, carry, exit_lab=None, side=None, first=False):
        act = [(kp, q) for kp in range(2) for q in range(4)] if pv == "full" else diag_active(pv)
        fresh = pv != "full"
        def chain(dst, a, q):
            m = []; f = fresh
            for kp in range(2):
                if (kp, q) in act: m.append(MF(dst, a(kp), V(P(par, kp, q), 4), "0" if f else dst)); f = False
            return m
        groups = []
        for g in range(16):
            m = []
            if qk:
                kt, q = g >> 2, g & 3
                for ds in range(4): m.append(MF(V(Sw(g), 4), Kf(kt, ds), Qf(ds, q), V(Sw(g), 4) if ds else V(NM(q), 4)))
            dt = g >> 1
            if qk and fresh:
                order = sorted(range(4), key=lambda q: -sum((kp, q) in act for kp in range(2)))
                qs = (order[0], order[3]) if g & 1 else (order[1], order[2])
            else: qs = (2*(g & 1), 2*(g & 1) + 1)
            for q in qs: m += chain(V(O(dt, q), 4), lambda kp: Vf(dt, kp), q)
            if qk and g % 4 == 2: m += chain(A(Lr(g >> 2), 4), lambda kp: ONES, g >> 2)
            if not qk and g in (2, 4, 6, 8): m += chain(A(Lr(g // 2 - 1), 4), lambda kp: ONES, g // 2 - 1)
            groups.append(m)
        st = [0]
        for m in groups: st.append(st[-1] + len(m))
        n = st[16]
        sc = Sched([x for m in groups for x in m])
        if qk and not fresh:
            cvs = place_softmax(sc, softmax_ops(15, par, 3, 3), 0, 2)
            for g in range(15): cvs += place_softmax(sc, softmax_ops(g, par ^ 1, g >> 2, g & 3), st[g+1], 2)
            for c, e in cvs: sc.put(c, e)
            for sp in range(4):
                rd = next_reads(par) if sp == 3 else [x for k in range(4) for x in (rdK(par ^ 1, sp + 1, k), rdV(par, 2*sp + 2 + (k >> 1), k & 1))]
                rd = rd[0::2] + rd[1::2]
                pos = [st[4*sp + gg] + o for gg in range(4) for o in ((1, 3, 7) if sp == 2 else (3, 7))]
                for r, p in zip(rd, pos): assert sc.put(r, p) == p
                if sp != 2: sc.raw("s_waitcnt lgkmcnt(1)", st[4*sp + 4] - 1, "pre")
                sc.raw(f"@need {A(128 + 8*((2*sp + 1) & 3), 8)}", st[4*sp + 2] + 2, "pre")
            gv = sc.seq(next_v_dma(par ^ 1), 0, VST)
            sc.raw(["@waitvm v", "s_waitcnt lgkmcnt(0)", "s_barrier"], st[12] - 1)
            kd = next_k_dma(par ^ 1)
            g = sc.seq(kd[:12], st[11] - 4) ; assert g < st[12]
            g = sc.seq(kd[12:], st[12], 2); assert g < n - 2, g
            if side: side(sc, st, gv)
        elif qk:
            cvs = []
            for g in range(15):
                ex, cv = softmax_ops(g, par ^ 1, g >> 2, g & 3)
                lo, ln = st[g+1] + 1, st[g+2] - st[g+1]
                ps = [lo + (r * ln) // 4 for r in range(4)]
                for e, p in zip(ex, ps): sc.put(e, p, force=True)
                cvs += [(cv[0], ps[1] + 1, ps[1] + 5), (cv[1], ps[3] + 1, ps[3] + 4)]
            dm = vgroups(next_k_dma(0, 1) + ([] if first else next_v_dma(1))); g = 0
            free_at = {}
            if first:
                firstw = lambda r: min([k for k, x in enumerate(sc.mf) if x.split()[1] == V(r, 4) + ","] + [st[11]])
                for k, (r, w) in enumerate(vw1):
                    hi = firstw(r) - 1
                    lo = max(0, min(hi - 4, 8*k))
                    free_at[r] = sc.putw(w, lo, min(hi, lo + 4))
                for k, gr in enumerate(st0[10:]):
                    gr = toI([x.t.replace(f", {V(vL16)},", f", {V(vL)},") for x in gr]); gr[-1].tag = "kv0"
                    r = rno(gr[-1].t.split()[1]); hi = min(firstw(r) - 1, st[4*(k//2) + 4] - 1)
                    lo = hi - (4 if k & 1 else 16)
                    free_at[r] = gg = sc.putw(gr[-1], lo, lo + 3)
                    sc.raw(gr[0], gg - 1, "post")
            dm[0] = dm[0][12:]
            for k, gr in enumerate(dm):
                lo = max(g, (k * (st[9] - 4)) // 16)
                if len(gr) > 1: lo = sc.seq(gr[:-1], lo)
                g = sc.putw(gr[-1], lo + 1, lo + 4) + 1
            if pv == 1:
                for dt in range(8):
                    for r in range(4): sc.putw(f"v_mov_b32 {V(O(dt, 2)+r)}, 0", free_at.get(O(dt, 2), 0) + 2, n - 3)
            sc.raw(["@waitvm k" if first else "@waitvm v", "s_waitcnt lgkmcnt(0)", "s_barrier"], st[12] - 1)
            kd = next_k_dma(1)
            assert g < st[10] and sc.seq(kd[:12], st[10]) < st[12]
            g = st[12]
            for k, gr in enumerate(vgroups(kd[12:])):
                lo = max(g, st[12] + (k * (n - 4 - st[12])) // 8)
                for x in gr[:-1]: sc.raw(x, lo, "pre")
                g = sc.putw(gr[-1], lo + 1, lo + 2) + 1
            assert g < n
            for sp in range(4):
                rd = next_reads(par) if sp == 3 else [x for k in range(4) for x in (rdK(par ^ 1, sp + 1, k), rdV(par, 2*sp + 2 + (k >> 1), k & 1))]
                lo, hi = st[4*sp], st[4*sp + 3] + 1
                for k, r in enumerate(rd): sc.putw(r, lo + (k * (hi - lo)) // 8, lo + ((k + 1) * (hi - lo)) // 8)
                if sp != 2: sc.raw("s_waitcnt lgkmcnt(0)", st[4*sp + 4] - 1, "pre")
            for c, lo, hi in cvs: sc.putw(c, lo, min(hi, n - 1))
        else:
            if pv == 1:
                for k in range(32): sc.raw(f"v_mov_b32 {V(O(k >> 2, 2) + (k & 3))}, 0", k)
            if carry:
                ex, cv = softmax_ops(15, par, 3, 3)
                sc.raw(ex[:2], -1); sc.raw(ex[2], 0); sc.raw(ex[3], 1); sc.raw(cv[0], 2); sc.raw(cv[1], 3)
            for g in range(12): sc.put(rdV(par, (g >> 1) + 2, g & 1), st[g], force=True)
            busy, idle = 65536 + (par ^ 1)*32768, 65536 + par*32768
            sc.raw([f"v_add_u32 {V(vX)}, {S(sXa + par)}, {V(vL)}"], 2); sc.raw([f"v_add_u32 {V(vXp)}, {S(sXa + 2 + par)}, {V(vL)}"], 3)
            sc.raw([f"s_lshl_b32 {S(sT2)}, {S(sWV)}, 10"], 4, "pre")
            sc.raw([f"v_add_u32 {V(vLx)}, {busy}, {V(vL)}", f"v_add_u32 v19, {S(sT2)}, {V(vLx)}"], 5)
            gb = st[12] + 2
            sc.raw([f"@need {A(128, 32)}", "s_barrier"], gb, "pre")
            g = 0
            for dt in range(8):
                for q in range(2):
                    lastm = max(k for k, x in enumerate(sc.mf) if x.split()[1] == V(O(dt, q), 4) + ",")
                    g = sc.put(f"ds_write_b128 {V(vX)}, {V(O(dt, q), 4)} offset:{(q*8+dt)*1024}", max(g, lastm + 6, 6)) + 3
            lastl = max(k for k, x in enumerate(sc.mf) if x.split()[1].startswith("a["))
            gl = sc.seq([f"v_accvgpr_read_b32 {V(28+q)}, {A(Lr(q))}" for q in range(4)], lastl + 6)
            sc.put(f"ds_write_b128 v19, v[28:31]", max(gl + 1, gb + 1))
            if side: side(sc, st, 0)
        if qk:
            sc.raw(f"s_add_u32 {S(sN)}, {S(sN)}, 1", n - 2, "pre")
            if exit_lab: sc.raw(f"s_cmp_eq_u32 {S(sN)}, {S(sBLK)}", n - 1, "pre"); sc.raw(f"s_cbranch_scc1 {exit_lab}", 999)
        out = sc.emit()
        if drop and qk and pv == "full":
            out = [i for i in out if not (("dma" in drop and i.kind == "vmem") or ("bar" in drop and i.op == "s_barrier") or ("ds" in drop and i.kind == "ds")
                                          or ("exp" in drop and i.op == "v_exp_f32") or ("cvt" in drop and i.op.startswith("v_cvt")) or ("vmw" in drop and i.kind == "wait"))]
        return out
    reent = State(vm=[(set(), "v", False)] + [(set(), "cx", False)] * NCX)
    b.label(name + "_blk", b.flush() + [reent])
    b(f"s_mov_b32 {S(sSafe)}, 0")
    ST("qrd")
    b.label(name + "_retry", b.flush() + [reent])
    b(f"""
    s_mov_b32 {S(sN)}, 0
    s_mov_b32 {S(sUb)}, {S(sR0)}
    s_cmp_eq_u32 {S(sR0)}, 0
    s_cselect_b32 {S(sKu)}, 1, 0
    s_cmp_ge_u32 {S(sWV)}, 2
    s_cbranch_scc1 {name}_d2
    """)
    pre = b.flush()
    gen0 = {}
    def diag_tail(kg):
        ST("diag")
        b(f"s_or_b32 {S(sT2)}, {S(sPass)}, {S(sSafe)}"); b(f"s_cmp_lg_u32 {S(sT2)}, 0"); b(f"s_cbranch_scc1 {name}_g{kg}")
        gen0[kg] = b.flush()
        spin(f"{name}_pk{kg}", 26, poll_kv.replace(f"dword {V(vPk)},", "dword v26,"), 32)
        ST("dtail")
        b(iteration(0, True, kg, False, None, None, True))
    b(qk_diag(0)); diag_tail(0); b(f"s_branch {name}_it1"); f0a = b.flush()
    b.label(name + "_d2", pre)
    b(qk_diag(1)); diag_tail(1); f0b = b.flush()
    gtext = {}; spv = {}; skip = []
    for kg in range(2):
        h1, spv[kg] = seg(pf_code(f"g{kg}", 21, 22) + [f"s_cmp_eq_u32 {S(sBLK)}, 0", f"s_cbranch_scc1 {name}_pvd{kg}"], gen0[kg])
        h2, ex_ = seg(iteration(0, True, kg, False, name + "_pv1") + toI([f"s_branch {name}_odd"]), spv[kg])
        gtext[kg] = h1 + h2; skip += ex_
    spv0, spv1 = spv[0], spv[1]; it0a, it0b = skip, []
    b.label(name + "_it1", f0a + f0b)
    ST("it0")
    def side_stash(sc, st, gv):
        for k in range(16): sc.put(rdQ(192, k >> 2, k & 3), st[k % 12] + 5 + 16 * 0)
    sWO = sWU; sWo, sHc = 54, 55
    vWo = 23
    sCx, sOb = 81, 82
    def side_osetup(sc, st, gv):
        o = []
        for i in range(5):
            o.append(f"""
            v_add_u32 v28, {64*i}, v0
            v_mul_u32_u24 v29, 3277, v28
            v_lshrrev_b32 v29, 16, v29
            v_mul_u32_u24 v30, 20, v29
            v_sub_u32 v28, v28, v30
            v_bfe_u32 v30, v29, 2, 1
            v_lshlrev_b32 v30, 1, v30
            v_xor_b32 v28, v28, v30
            v_mul_u32_u24 v29, 1280, v29
            v_lshl_add_u32 {V(vWo+i)}, v28, 4, v29
            """)
        sc.seq(o, 0)
        sc.seq([f"""
        s_and_b32 {S(sT3)}, {S(sHD)}, 3
        s_mul_i32 {S(sWo)}, {S(sT3)}, 320
        s_mul_i32 {S(sT3)}, {S(sWV)}, {32*1280}
        s_add_u32 {S(sWo)}, {S(sWo)}, {S(sT3)}
        s_lshr_b32 {S(sT3)}, {S(sHD)}, 2
        s_mul_i32 {S(sT3)}, {S(sT3)}, {512*1280}
        s_add_u32 {S(sWo)}, {S(sWo)}, {S(sT3)}
        s_and_b32 {S(sT3)}, {S(sWV)}, 1
        s_lshl_b32 {S(sT3)}, {S(sT3)}, 14
        s_add_u32 s40, {S(sT3)}, 131072
        s_add_u32 s41, {S(sT3)}, 65536
        s_add_u32 s42, {S(sT3)}, 98304
        s_cmp_ge_u32 {S(sWV)}, 2
        s_cselect_b32 {S(sXa)}, s41, s40
        s_cmp_ge_u32 {S(sWV)}, 2
        s_cselect_b32 {S(sXa+1)}, s42, s40
        s_cmp_ge_u32 {S(sWV)}, 2
        s_cselect_b32 {S(sXa+2)}, s40, s41
        s_cmp_ge_u32 {S(sWV)}, 2
        s_cselect_b32 {S(sXa+3)}, s40, s42
        s_mul_i32 s71, {S(sWV)}, 10240
        s_lshr_b32 {S(sCx)}, {S(sHD)}, 2
        s_lshl_b32 {S(sCx)}, {S(sCx)}, 3
        s_add_u32 {S(sCx)}, {S(sCx)}, {S(sJ)}
        s_lshl_b32 {S(sCx)}, {S(sCx)}, 2
        s_add_u32 {S(sOb)}, {S(sCx)}, {S(sWV)}
        s_lshl_b32 {S(sCx)}, {S(sOb)}, 2
        s_and_b32 {S(sT3)}, {S(sHD)}, 3
        s_add_u32 {S(sCx)}, {S(sCx)}, {S(sT3)}
        s_lshl_b32 {S(sCx)}, {S(sCx)}, 14
        s_add_u32 {S(sCx)}, {S(sCx)}, {WS_CTX}
        """], 50)
    sJs, sJd, sJp, sJb, sJi = 16, 17, 18, 19, 8
    vJr, vJc, vJo, vJa = 17, 18, 19, 12
    JR = [A(180, 4), A(184, 4), A(188, 4), V(28, 4)]
    def half(r, hf): return (A if r[0] == "a" else V)(rno(r) + 2*hf, 2)
    def j_setup():
        return toI([f"""
        v_lshrrev_b32 {V(vJr)}, 3, v0
        v_bfe_u32 {V(vJc)}, v0, 4, 2
        v_lshlrev_b32 {V(vJc)}, 1, {V(vJc)}
        v_and_b32 v4, 7, v0
        v_xor_b32 {V(vJc)}, {V(vJc)}, v4
        v_lshlrev_b32 {V(vJc)}, 4, {V(vJc)}
        s_lshl_b32 {S(sJi)}, s2, 2
        s_add_u32 {S(sJi)}, {S(sJi)}, {S(sWV)}
        s_add_u32 {S(sJb)}, {S(sLw)}, 131072
        """])
    def j_dma(srd, buf):
        o = [f"v_mad_u32_u24 {V(vJo)}, {V(vJr)}, {S(sJp)}, {V(vJc)}", f"s_lshl_b32 {S(sJp)}, {S(sJp)}, 3"]
        for i in range(4):
            if i: o.append(f"s_add_u32 {S(sJs)}, {S(sJs)}, {S(sJp)}")
            o += [f"s_add_u32 m0, {S(sJb)}, {buf*4096 + i*1024}", I(f"buffer_load_dwordx4 {V(vJo)}, {S(srd,4)}, {S(sJs)} offen{nt('j')} lds", "j")]
        return toI(o)
    def t_addr():
        return toI([f"""
        s_sub_u32 {S(sT3)}, {S(sJi)}, 540
        s_cmp_lt_u32 {S(sJi)}, 540
        s_cselect_b32 {S(sT3)}, {S(sJi)}, {S(sT3)}
        s_cmp_lt_u32 {S(sJi)}, 540
        s_cselect_b32 {S(RT)}, {S(RT)}, {S(RO)}
        s_cmp_lt_u32 {S(sJi)}, 540
        s_cselect_b32 {S(RT+1)}, {S(RT+1)}, {S(RO+1)}
        s_cmp_lt_u32 {S(sJi)}, 540
        s_cselect_b32 {S(RT+2)}, {S(RT+2)}, {S(RO+2)}
        s_mov_b32 s9, {hex((2**32 + 9)//10)}
        s_cmp_lt_u32 {S(sJi)}, 540
        s_cselect_b32 s9, {hex((2**32 + 26)//27)}, s9
        s_cmp_lt_u32 {S(sJi)}, 540
        s_cselect_b32 s10, 27, 10
        s_mov_b32 {S(sJd)}, {WS_WOUT}
        s_cmp_lt_u32 {S(sJi)}, 540
        s_cselect_b32 {S(sJd)}, {WS_WIN}, {S(sJd)}
        s_lshl_b32 {S(sJp)}, s10, 7
        s_mul_hi_u32 s9, {S(sT3)}, s9
        s_mul_i32 s10, s9, s10
        s_sub_u32 s10, {S(sT3)}, s10
        s_lshl_b32 {S(sT3)}, {S(sT3)}, 12
        s_add_u32 {S(sJd)}, {S(sJd)}, {S(sT3)}
        s_mul_i32 {S(sJs)}, s9, {S(sJp)}
        s_lshl_b32 {S(sJs)}, {S(sJs)}, 5
        s_lshl_b32 s10, s10, 7
        s_add_u32 {S(sJs)}, {S(sJs)}, s10
        s_cmp_lt_u32 {S(sJi)}, 810
        s_cselect_b32 {S(sJd)}, {S(sJd)}, {hex(OOB)}
        """])
    def t_out():
        o = [f"""
        v_lshrrev_b32 v4, 2, v0
        v_bfe_u32 {V(vJa)}, v0, 3, 2
        v_lshlrev_b32 {V(vJa)}, 5, {V(vJa)}
        v_lshl_add_u32 {V(vJa)}, v4, 7, {V(vJa)}
        v_and_b32 v4, 3, v0
        v_lshl_add_u32 {V(vJa)}, v4, 3, {V(vJa)}
        v_add_u32 {V(vJa)}, {S(sJb)}, {V(vJa)}
        v_xor_b32 {V(vJa+1)}, 32, {V(vJa)}
        v_xor_b32 {V(vJa+2)}, 64, {V(vJa)}
        v_xor_b32 {V(vJa+3)}, 96, {V(vJa)}
        """]
        rd = [f"ds_read_b64_tr_b16 {half(JR[n], hf)}, {V(vJa+n)} offset:{hf*2048}" for n in range(4) for hf in range(2)]
        st = [f"buffer_store_dwordx4 {JR[n]}, {V(vL)}, {sWS}, {S(sJd)} offen offset:{n*1024}{SC}" for n in range(4)]
        return toI(o), toI(rd), toI(st)
    def s_addr(k):
        return toI([f"""
        s_lshr_b32 s9, {S(sJi)}, 5
        s_add_u32 s9, s9, {32*k}
        s_and_b32 s10, {S(sJi)}, 31
        s_lshl_b32 {S(sJs)}, s9, 17
        s_lshl_b32 s10, s10, 7
        s_add_u32 {S(sJs)}, {S(sJs)}, s10
        s_mov_b32 {S(sJp)}, 4096
        """])
    def s_out(k, buf):
        o = [f"""
        s_lshr_b32 {S(sJd)}, {S(sJi)}, 6
        s_add_u32 {S(sJd)}, {S(sJd)}, {16*k}
        s_lshl_b32 {S(sJd)}, {S(sJd)}, 18
        s_and_b32 s11, {S(sJi)}, 31
        s_lshl_b32 s11, s11, 13
        s_add_u32 {S(sJd)}, {S(sJd)}, s11
        s_bfe_u32 s11, {S(sJi)}, 0x10005
        s_lshl_b32 s11, s11, 11
        s_add_u32 {S(sJd)}, {S(sJd)}, s11
        s_add_u32 {S(sJd)}, {S(sJd)}, {WS_WSP}
        s_add_u32 s11, {S(sJd)}, 4096
        """]
        if k == 0: o.append(f"""
        v_bfe_u32 {V(vJa)}, v0, 1, 2
        v_lshlrev_b32 {V(vJa)}, 5, {V(vJa)}
        v_and_b32 v4, 15, v0
        v_lshl_add_u32 {V(vJa)}, v4, 7, {V(vJa)}
        v_lshrrev_b32 v4, 4, v0
        v_lshl_add_u32 {V(vJa)}, v4, 3, {V(vJa)}
        v_add_u32 {V(vJa)}, {S(sJb)}, {V(vJa)}
        v_xor_b32 {V(vJa+1)}, 32, {V(vJa)}
        v_xor_b32 {V(vJa+2)}, 64, {V(vJa)}
        v_xor_b32 {V(vJa+3)}, 96, {V(vJa)}
        """)
        rd = [f"ds_read_b64 {half(JR[2*ks+mt], hf)}, {V(vJa+2*ks+hf)} offset:{buf*4096 + mt*2048}" for ks in range(2) for mt in range(2) for hf in range(2)]
        st = [f"buffer_store_dwordx4 {JR[2*ks+mt]}, {V(vL)}, {sWS}, {'s11' if ks else S(sJd)} offen offset:{mt*1024}{SC}" for ks in range(2) for mt in range(2)]
        return toI(o), toI(rd), toI(st)
    def wseq(sc, ins, lo, step=1):
        ins = toI(ins); sc.seqs.append(ins); g = lo; prev = None
        for i in ins:
            if i.kind in ("salu", "pseudo"):
                if prev is not None and prev.op.startswith("s_cmp"): sc.put(i, g, force=True)
                else: g = sc.put(i, g + (prev is not None and prev.kind != "salu"))
            else: g = sc.putw(i, g + 1, g + 3) + (step if i.kind == "vmem" else 0)
            prev = i
        return g
    def job_out(sc, st, gv, parts, nxt):
        o, rd, sto = parts
        g = wseq(sc, o, 0)
        g = wseq(sc, ["@waitvm j"] + rd, max(g, gv - 14))
        g = wseq(sc, nxt, max(g, gv), 3); assert g < st[12] + 2, (g, st[12])
        for x in sto: x.tag = 'js'
        g = wseq(sc, sto, g, JST)
    def side1(sc, st, gv):
        side_stash(sc, st, gv); wseq(sc, j_setup() + t_addr(), 40)
    def st_init():
        return toI([f"""
        v_and_b32 v21, 15, v0
        v_lshlrev_b32 v21, 3, v21
        v_bfe_u32 v22, v0, 4, 1
        v_mul_u32_u24 v22, {WS_ST2 - WS_ST1}, v22
        v_add_u32 v21, v21, v22
        v_mov_b32 v14, -1.0
        v_mov_b32 v15, -1.0
        s_lshl_b32 s9, {S(sJi)}, 7
        s_add_u32 s9, s9, {WS_ST1}
        buffer_store_dwordx2 v[14:15], v21, {sWS}, s9 offen sc1
        """])
    def side2(sc, st, gv):
        wseq(sc, ["@waitvm kv0", f"s_lshl_b32 s9, {S(sHD)}, 7", f"s_add_u32 s9, s9, {WS_FLG + FL_K0*128}", f"buffer_atomic_add {V(vOne)}, {V(vFlagW)}, {sWS}, s9 offen"], 8)
        side_osetup(sc, st, gv); g = wseq(sc, j_dma(RT, 0), gv, 3)
        wseq(sc, st_init(), g)
    def side3(sc, st, gv): job_out(sc, st, gv, t_out(), [])
    poll_t = f"buffer_load_dword v22, v21, {sWS}, 0 offen offset:64 sc1"
    def side4(sc, st, gv):
        g = wseq(sc, ["s_and_b32 s11, s2, 31", "s_lshl_b32 s11, s11, 7", f"s_add_u32 s11, s11, {WS_FLG + FL_R*128}", "@waitvm js",
                      f"buffer_atomic_add {V(vOne)}, {V(vFlagW)}, {sWS}, s11 offen offset:64"], gv - 2, 3)
        wseq(sc, s_addr(0) + j_dma(RS, 0), g - 6, 3)
    def side5(sc, st, gv): job_out(sc, st, gv, s_out(0, 0), [f"v_add_u32 {V(vPa)}, {(FL_K0 - FL_KV)*128}, {V(vPa)}", poll_kv])
    def side6(sc, st, gv):
        g = wseq(sc, ["v_and_b32 v21, 31, v0", "v_lshlrev_b32 v21, 7, v21", f"v_add_u32 v21, {WS_FLG + FL_R*128}, v21", poll_t], gv - 6, 3)
        g = wseq(sc, s_addr(1) + j_dma(RS, 0), g - 6, 3)
        if CPF: sc.raw(pf_code("s", 4, 28), g + 4)
    def side7(sc, st, gv): job_out(sc, st, gv, s_out(1, 0), [])
    sides = [side1, side2, side3, side4, side5, side6, side7]
    if fine == "side": T.stamp(b, "it0")
    for k, sd in enumerate(sides):
        it_ = iteration((k + 1) & 1, True, "full", True, name + "_pv0" if k == 6 else None, sd)
        if "sld" in drop2: it_ = [i for i in it_ if not (i.kind == "vmem" and "load" in i.op and i.tag not in ("k", "v"))]
        if "sst" in drop2: it_ = [i for i in it_ if not (i.kind == "vmem" and "store" in i.op)]
        b(it_)
        if k == 4: spin(name + "_p0", vPk, poll_kv, 32)
        if k == 5: spin(name + "_pt", 22, poll_t, 32)
        if k == 6: ex7 = b.flush()
        if fine == "side": T.stamp(b, f"it{k+1}")
    if fine == "att0": ST("it2")
    ins, outs = b.chain_loop([(name + "_even", iteration(0, True, "full", True, name + "_pv1")),
                              (name + "_odd", iteration(1, True, "full", True, name + "_pv0") + toI([f"s_branch {name}_even"]))], extra={1: skip})
    outs = outs[::-1]
    for kg in range(2): b.label(f"{name}_g{kg}"); b.out += gtext[kg]
    TMP, CF = 64, 32
    CB = [0, 40960, 81920, 122880]
    def dmaO(c):
        o = [f"s_add_u32 {S(sHc)}, {S(sHD)}, {c}", f"s_and_b32 {S(sHc)}, {S(sHc)}, 3", f"s_mul_i32 {S(sHc)}, {S(sHc)}, {128*1280}", f"s_add_u32 {S(sHc)}, {S(sHc)}, {S(sWo)}"]
        for k in range(10):
            if k == 5: o.append(f"s_add_u32 {S(sHc)}, {S(sHc)}, {16*1280}")
            o += [f"s_add_u32 m0, s71, {CB[c] + k*1024}", I(f"buffer_load_dwordx4 {V(vWo + k % 5)}, {sWO}, {S(sHc)} offen{nt('O')} lds", f"o{c}")]
        return toI(o)
    def Xf(c, ks, m):
        if c == 0: return A(192 + 8*ks + 4*m, 4) if m < 2 else V(CF + 8*ks + 4*(m-2), 4)
        return A(64*(c-1) + 16*ks + 4*m, 4)
    sCc = 58
    def ldX(c, passes):
        o = [f"s_add_u32 {S(sCc)}, {S(sHD)}, {c}", f"s_and_b32 {S(sCc)}, {S(sCc)}, 3", f"s_lshl_b32 {S(sT2)}, {S(sOb)}, 2", f"s_add_u32 {S(sCc)}, {S(sCc)}, {S(sT2)}",
             f"s_lshl_b32 {S(sCc)}, {S(sCc)}, 14", f"s_add_u32 {S(sCc)}, {S(sCc)}, {WS_CTX}"]
        for p in passes:
            for ks in range(4):
                if ks % 2 == 0: o.append(f"s_add_u32 {S(sT2)}, {S(sCc)}, {p*8192 + ks*2048}")
                for a in range(2): o.append(f"buffer_load_dwordx4 {Xf(c, ks, 2*p + a)}, {V(vL)}, {sWS}, {S(sT2)} offen offset:{(ks & 1)*2048 + a*1024} sc1")
        return toI(o)
    def own_long(tag):
        return toI(["v_lshlrev_b32 v21, 7, v0", f"buffer_load_dword a108, v21, {sWS}, {S(sCx)} offen sc1"])
    sFx = 79
    def side_o0(sc, st, gv):
        arr = toI([f"s_add_u32 {S(sFx)}, {S(sOb)}, {FL_CX}", f"s_lshl_b32 {S(sFx)}, {S(sFx)}, 7", f"s_add_u32 {S(sFx)}, {S(sFx)}, {WS_FLG}",
                   f"s_cmp_eq_u32 {S(sSafe)}, 0", f"s_cselect_b32 {S(sKs)}, {S(sFx)}, {hex(OOB)}", f"v_mov_b32 {V(vPa)}, {S(sFx)}", "@waitvm cx",
                   f"buffer_atomic_add {V(vOne)}, {V(vFlagW)}, {sWS}, {S(sKs)} offen offset:64",
                   f"s_and_b32 {S(sKs)}, s2, 31", f"s_lshl_b32 {S(sKs)}, {S(sKs)}, 7", f"s_add_u32 {S(sKs)}, {S(sKs)}, {WS_FLG + FL_R*128}",
                   f"s_cmp_eq_u32 {S(sSafe)}, 0", f"s_cselect_b32 {S(sKs)}, {S(sKs)}, {hex(OOB)}",
                   f"buffer_atomic_add {V(vOne)}, {V(vFlagW)}, {sWS}, {S(sKs)} offen"])
        paced(sc, vgroups(arr + dmaO(0) + own_long(0)), 0, len(sc.mf) - 4)
    def side_vec(sc, st, gv):
        o = [f"""
        v_and_b32 v21, 15, v0
        v_lshrrev_b32 v22, 4, v0
        v_lshlrev_b32 v22, 4, v22
        v_lshl_add_u32 v22, v21, 6, v22
        v_cmp_gt_u32 vcc, 2, v21
        v_mov_b32 v21, {hex(OOB)}
        v_cndmask_b32 v22, v21, v22, vcc
        s_mul_i32 s9, {S(sWV)}, 640
        s_add_u32 s9, s9, {WS_MODB}
        s_mul_i32 s10, {S(sWV)}, {5*108*1024}
        s_lshl_b32 s11, s2, 10
        s_add_u32 s10, s10, s11
        s_add_u32 s10, s10, {WS_WIN}
        s_cmp_lt_u32 s2, 108
        s_cselect_b32 s10, s10, {hex(OOB)}
        """]
        for k in range(5):
            if k: o.append(f"s_add_u32 s10, s10, {108*1024}")
            o += [f"buffer_load_dwordx4 {A(64+8*k,4)}, {V(vL)}, {sWS}, s10 offen sc1", f"buffer_load_dwordx4 {A(68+8*k,4)}, v22, {sWS}, s9 offen offset:{128*k} sc1"]
        o = toI(o)
        sc.seq(o[7:15], 0); g = sc.seq(o[:7], 4)
        g = paced(sc, vgroups(o[15:]), max(g + 1, 9), 46)
        g = sc.seq(masks(False, 48), 12)
        pw = toI([f"""
        v_lshlrev_b32 v50, 7, v0
        v_cmp_gt_u32 vcc, 40, v0
        v_cndmask_b32 v50, v21, v50, vcc
        s_lshr_b32 s11, s2, 3
        s_lshl_b32 s11, s11, 2
        s_add_u32 s11, s11, {S(sWV)}
        s_lshr_b32 s8, {S(sHD)}, 2
        s_lshl_b32 s8, s8, 7
        s_add_u32 s11, s11, s8
        s_mul_i32 s11, s11, 5120
        buffer_load_dword v51, v50, {sWO}, s11 offen{nt('o')}
        v_lshlrev_b32 v22, 2, v0
        v_cmp_gt_u32 vcc, 16, v0
        v_cndmask_b32 v22, v21, v22, vcc
        s_lshl_b32 s9, s2, 6
        s_add_u32 s9, s9, {WS_VEC}
        s_cmp_lt_u32 s2, 108
        s_cselect_b32 s9, s9, {hex(OOB)}
        s_cmp_eq_u32 {S(sWV)}, 0
        s_cselect_b32 s9, s9, {hex(OOB)}
        s_add_u32 s10, s9, 0x2000
        """])
        pw[10] = I(pw[10].t.replace("v51,", "a108,"))
        sc.seq(pw, max(g + 1, 47))
        sc.raw([MF(A(104,4), A(68+8*k,4), A(64+8*k,4), A(104,4) if k else "0") for k in range(5)], len(sc.mf) - 1, "pre")
        sc.raw(f"ds_write_b128 v19, {A(104,4)} offset:4096", 999)
    fin0 = []; fin1 = []
    for par, preds in ((0, outs[0] + ex7), (1, outs[1] + it0a + it0b)):
        b.label(f"{name}_pv{par}", preds); ST("loop")
        b(f"s_cmp_eq_u32 {S(sPass)}, 1"); b(f"s_cbranch_scc1 {name}_pw{par}"); pw = b.flush()
        b(iteration(par, False, "full", True, None, side_vec)); b(f"s_branch {name}_fin0"); fin0 += b.flush()
        b.label(f"{name}_pw{par}", pw); b(iteration(par, False, "full", True, None, side_o0)); b(f"s_branch {name}_fin1"); fin1 += b.flush()
    b.label(name + "_pvd0", spv0); b(iteration(0, False, 0, False, None, side_o0)); b(f"s_branch {name}_fin1"); fin1 += b.flush()
    b.label(name + "_pvd1", spv1); b(iteration(0, False, 1, False, None, side_o0)); b(f"s_branch {name}_fin1"); fin1 += b.flush()
    def merge_reads():
        b("s_waitcnt lgkmcnt(0)"); b("s_barrier")
        for w in range(4): b(f"ds_read_b128 {V(48+4*w, 4)}, {V(vLx)} offset:{w*1024}")
        for i in range(4):
            for a in range(2):
                for dt in (2*i, 2*i+1): b(f"ds_read_b128 {V(TMP + 4*(a*8+dt), 4)}, {V(vXp)} offset:{(a*8+dt)*1024}")
    def check():
        for r in range(8): b(f"v_add_f32 {V(48+r)}, {V(48+r)}, {V(56+(r ^ 2))}")
        b(f"""
        v_min3_f32 v56, v48, v49, v50
        v_min3_f32 v56, v56, v51, v52
        v_min3_f32 v56, v56, v53, v54
        v_min_f32 v56, v56, v55
        v_pk_add_f32 v[58:59], v[48:49], v[50:51]
        v_pk_add_f32 v[60:61], v[52:53], v[54:55]
        v_pk_add_f32 v[58:59], v[58:59], v[60:61]
        s_mov_b32 {S(sMK+2)}, {FH(L_HI)}
        v_add_f32 v57, v58, v59
        v_cmp_nle_f32 vcc, {FH(L_LO)}, v56
        v_cmp_nge_f32 {S(sMK,2)}, {S(sMK+2)}, v57
        s_or_b64 vcc, vcc, {S(sMK,2)}
        s_cselect_b32 {S(sT2)}, 1, {1 if force_fallback else 0}
        s_andn2_b32 {S(sT2)}, {S(sT2)}, {S(sSafe)}
        {"s_nop 0" if drop else f"s_cbranch_scc1 {name}_slow"}
        s_bitcmp1_b32 {S(sWV)}, 0
        s_cselect_b64 vcc, -1, 0
        s_bitcmp1_b32 {S(sWV)}, 1
        s_cselect_b64 {S(sMK,2)}, -1, 0
        """)
        for r in range(4): b(f"v_cndmask_b32 {V(48+r)}, {V(48+r)}, {V(52+r)}, vcc")
        b(f"""
        v_cndmask_b32 v28, v50, v48, {S(sMK,2)}
        v_cndmask_b32 v30, v51, v49, {S(sMK,2)}
        v_rcp_f32 v28, v28
        v_rcp_f32 v30, v30
        """)
    def normalise(off):
        for i in range(4):
            for a in range(2):
                for dt in (2*i, 2*i+1):
                    o = O(dt, 2 + a); t = TMP + 4*(a*8+dt)
                    for h in (0, 2): b(f"v_pk_add_f32 {V(t+h,2)}, {V(t+h,2)}, {V(o+h,2)}")
                    for h in (0, 2): b(f"v_pk_mul_f32 {V(t+h,2)}, {V(t+h,2)}, {V(28+2*a,2)} op_sel_hi:[1,0]")
                t = TMP + 4*(a*8+2*i); d = CF + 8*i + 4*a if off else t
                for k in range(4): b(f"v_cvt_pk_bf16_f32 {V(d+k)}, {V(t+2*k)}, {V(t+2*k+1)}")
                if (i, a) in ((0, 0), (2, 0)): b(f"s_add_u32 {S(sT3)}, {S(sCx)}, {off + i*2048}")
                b(f"buffer_store_dwordx4 {V(d,4)}, {V(vL)}, {sWS}, {S(sT3)} offen offset:{(i & 1)*2048 + a*1024} sc1", "cx")
                if not off:
                    for k in range(4): b(f"v_accvgpr_write_b32 {A(rno(Xf(0, i, a)) + k)}, {V(d+k)}")
    b.label(name + "_fin0", fin0)
    ST("pv")
    merge_reads(); ST("xr"); check()
    for w in range(4): b(f"ds_read_b64 {V(56+2*w,2)}, {V(vLx)} offset:{4096 + w*1024}")
    b(f"""
    s_mov_b32 {S(sPass)}, 1
    s_mov_b32 {S(sBLK)}, {S(sBLK2)}
    s_mov_b32 {S(sR0)}, 0
    s_mov_b32 {S(sA0)}, {hex(OOB)}
    s_mov_b32 {S(sA1)}, {hex(OOB)}
    s_mov_b32 {S(sAl)}, 163840
    @waitvm k
    s_waitcnt lgkmcnt(0)
    s_barrier
    """)
    b([rdK0(0, ds) for ds in range(4)])
    b(f"""
    v_pk_add_f32 v[56:57], v[56:57], v[58:59]
    v_pk_add_f32 v[60:61], v[60:61], v[62:63]
    v_pk_add_f32 v[56:57], v[56:57], v[60:61]
    buffer_store_dword v56, v22, {sWS}, s9 offen sc1
    buffer_store_dword v57, v22, {sWS}, s10 offen sc1
    """)
    for k, gr in enumerate(vgroups(toI(unit_diag(sVs, sVb)) + dmaKV(1, 0, sVs, "v"))):
        b(gr)
        for r in range(8*k, 8*k + 8): b(f"v_accvgpr_mov_b32 {A(r)}, {A(192+r)}")
    normalise(0)
    b(f"s_cmp_eq_u32 {S(sSafe)}, 0"); b(f"s_cbranch_scc1 {name}_nz"); nz = b.flush()
    for r in range(16): b(f"v_mov_b32 {V(NM(0)+r)}, 0")
    b.label(name + "_nz", nz + b.flush())
    if fine is not True: T.stamp(b, "blk1end")
    b("s_waitcnt lgkmcnt(0)"); b(f"s_branch {name}_blk")
    for x in b.flush(): assert [e[1] for e in x.vm][-NCX-1:] == ["v"] + ["cx"] * NCX
    b.label(name + "_slow", [State()])
    b(f"""
    s_waitcnt vmcnt(0) lgkmcnt(0)
    s_mov_b32 {S(sSafe)}, 1
    s_mov_b32 {S(sN)}, 0
    """)
    for q in range(4): b(f"v_mov_b32 {V(64+q)}, {FH(NEGBIG)}")
    b(f"""
    v_lshrrev_b32 v69, 4, v0
    v_lshlrev_b32 v69, 2, v69
    v_and_b32 v68, 15, v0
    v_sub_u32 v68, v68, v69
    s_and_b32 {S(sT2)}, {S(sWV)}, 1
    s_lshl_b32 {S(sT2)}, {S(sT2)}, 4
    v_add_u32 v68, {S(sT2)}, v68
    s_lshr_b32 {S(sT2)}, {S(sWV)}, 1
    s_lshl_b32 {S(sMK)}, {S(sT2)}, 5
    s_add_u32 {S(sMK+1)}, {S(sMK)}, 16
    s_sub_u32 {S(sMK+2)}, 96, {S(sMK)}
    s_add_u32 {S(sMK+3)}, {S(sMK+2)}, 16
    s_lshl_b32 s4, {S(sT2)}, 6
    s_xor_b32 s5, s4, 32
    s_xor_b32 s6, s4, 64
    s_xor_b32 s7, s4, 96
    v_mov_b32 v70, {FH(NEGBIG)}
    """)
    body = toI(["s_barrier", f"s_lshl_b32 {S(sKs)}, {S(sN)}, 15", f"s_add_u32 {S(sKs)}, {S(sKs)}, {S(sKb)}"]) + dmaKV(0, 0, sKs, "k")
    body += toI(["s_waitcnt vmcnt(0)", "s_barrier",
                 f"s_cmp_eq_u32 {S(sN)}, {S(sBLK)}", f"s_cselect_b32 {S(sT3)}, 0, 4096"])
    for kt in range(4):
        body += toI([rdK(0, kt, ds) for ds in range(4)])
        body += toI([f"v_subrev_u32 v69, {S(sMK+kt)}, v68", f"v_add_u32 v69, {S(sT3)}, v69"])
        for q in range(4):
            for ds in range(4): body += toI([MF(V(Sw(q), 4), Kf(kt, ds), Qf(ds, q), V(Sw(q), 4) if ds else "0")])
        for q in range(4):
            body += toI([f"v_add_u32 v72, {S(4+q)}, v69"])
            for r in range(4):
                body += toI([f"v_cmp_gt_i32 vcc, {r}, v72", f"v_cndmask_b32 v71, {V(Sw(q)+r)}, v70, vcc", f"v_max_f32 {V(64+q)}, {V(64+q)}, v71"])
    body += toI(["s_waitcnt lgkmcnt(0)", f"s_add_u32 {S(sN)}, {S(sN)}, 1", f"s_cmp_le_u32 {S(sN)}, {S(sBLK)}", f"s_cbranch_scc1 {name}_mx"])
    b.chain_loop([(name + "_mx", body)], align=0)
    for q in range(4):
        b(f"""
        v_mov_b32 v68, {V(64+q)}
        v_permlane16_swap_b32 {V(64+q)}, v68
        v_max_f32 {V(64+q)}, {V(64+q)}, v68
        v_mov_b32 v68, {V(64+q)}
        v_permlane32_swap_b32 {V(64+q)}, v68
        v_max_f32 {V(64+q)}, {V(64+q)}, v68
        """)
    b(f"""
    s_lshl_b32 {S(sT3)}, {S(sWV)}, 10
    v_add_u32 v19, {S(sT3)}, {V(vLx)}
    ds_write_b128 v19, v[64:67]
    v_xor_b32 v19, 0x800, v19
    s_waitcnt lgkmcnt(0)
    s_barrier
    ds_read_b128 v[68:71], v19
    """)
    for q in range(4):
        b(f"v_max_f32 {V(64+q)}, {V(64+q)}, {V(68+(q ^ 2))}")
        for r in range(4): b(f"v_sub_f32 {V(NM(q)+r)}, 0, {V(64+q)}")
    b("s_barrier")
    b(unit_r0(sKs, sKb)); b(dmaKV(0, 1, sKs, "k")); b(unit_diag(sVs, sVb)); b(dmaKV(1, 0, sVs, "v"))
    b([rdK0(0, ds) for ds in range(4)])
    b("s_waitcnt vmcnt(0) lgkmcnt(0)"); b(f"s_branch {name}_retry")
    b.label(name + "_fin1", fin1)
    ST("pv")
    poll_l = poll_kv.replace(" offen", " offen offset:64")
    b(poll_l)
    merge_reads(); ST("xr"); check()
    normalise(8192)
    T.stamp(b, "attend")
    vOa = 8
    b(f"""
    v_lshrrev_b32 v28, 2, v0
    v_mul_u32_u24 v28, 320, v28
    v_and_b32 v29, 3, v0
    v_lshl_add_u32 v28, v29, 3, v28
    v_bfe_u32 v29, v0, 4, 1
    v_lshlrev_b32 v29, 5, v29
    v_add_u32 {V(vOa)}, v28, v29
    v_sub_u32 v28, v28, v29
    v_add_u32 {V(vOa+1)}, 32, v28
    @waitvm o0
    s_barrier
    """)
    def oacc(n, m): return 96 + 16*n + 4*m
    def OWf(k, off, n): return V(64 + 16*(k & 3) + off, n) if (k & 3) < 2 else A(192 + 16*(k & 3) + off, n)
    ALL = (0, 1, 2, 3)
    outers = [(0, n, ALL) for n in range(10)]
    outers += ([(1, n, (0, 1)) for n in range(10)] + [(1, n, (2, 3)) for n in range(10)]) if OSP else [(1, n, ALL) for n in range(10)]
    outers += [(2, n, ALL) for n in range(OH)] + [(3, n, ALL) for n in range(OH)] + [(c, n, ALL) for n in range(OH, 10) for c in (2, 3)]
    if OB1:
        outers = [(0, n, ALL) for n in range(10)] + [(c, n, (0, 1)) for c in (1, 2, 3) for n in range(10)]
        outers += [(1, n, (2, 3)) for n in range(10)] + [(c, n, (2, 3)) for n in range(10) for c in (2, 3)]
    def rdO(k):
        c, n, _ = outers[k]
        return [f"ds_read_b64_tr_b16 {OWf(k, 4*ks + 2*hf, 2)}, {V(vOa + 2*c + (n & 1))} offset:{(32*ks + 16*hf)*320 + (n & ~1)*32}"
                for ks in range(4) for hf in range(2)]
    b(rdO(0))
    spin(name + "_pl", vPk, poll_l, 4)
    mf = []; og = []
    for k, (c, n, ms) in enumerate(outers):
        og.append(len(mf))
        for m in ms:
            for ks in range(4):
                d = V(oacc(n, m), 4)
                mf.append(MF(d, OWf(k, 4*ks, 4), Xf(c, ks, m), "0" if (c == 0 and ks == 0) else d))
    og.append(len(mf))
    sc = Sched(mf)
    rstart = {}
    for k in range(1, len(outers)):
        rstart[k] = og[k] - 16
        for r, x in enumerate(rdO(k)): sc.put(x, rstart[k] + r, force=True)
        sc.raw(f"@need {OWf(k, 0, 16)}", og[k] - 1, "pre")
    seq(sc, [f"v_add_u32 {V(vOa + 2*c + e)}, {CB[c]}, {V(vOa + e)}" for c in (1, 2, 3) for e in (0, 1)], 8)
    firstc = {c: min(k for k, o in enumerate(outers) if o[0] == c) for c in (1, 2, 3)}
    for c in (1, 2, 3): sc.raw([f"@waitvm o{c}", "s_barrier"], rstart[firstc[c]] - 1, "post2")
    def pace2(groups, g0, step):
        g = g0
        for gr in groups:
            for x in gr[:-1]: sc.raw(x, g - 1, "post")
            g = sc.putw(gr[-1], g, g + 1) + step
        return g
    if OPF:
        pf = toI([f"""
        s_lshr_b32 s6, s2, 3
        s_lshl_b32 s6, s6, 2
        s_add_u32 s6, s6, {S(sWV)}
        s_lshl_b32 s6, s6, 6
        v_add_u32 v28, s6, v0
        v_mul_u32_u24 v29, 1171, v28
        v_lshrrev_b32 v29, 18, v29
        v_mul_u32_u24 v30, 224, v29
        v_sub_u32 v28, v28, v30
        v_mul_u32_u24 v30, {108*8}, v29
        v_add_u32 v28, v28, v30
        v_subrev_u32 v30, {20*108*8 + 54*8}, v28
        v_cmp_gt_u32 vcc, 20, v29
        v_cndmask_b32 v28, v30, v28, vcc
        v_add_u32 v28, {54*8}, v28
        v_lshlrev_b32 v28, 7, v28
        s_and_b32 s6, s2, 1
        s_mul_i32 s6, s6, {28*1024}
        s_add_u32 s6, s6, {WS_WIN}
        s_bfe_u32 s7, s2, 0x20001
        s_lshl_b32 s7, s7, 3
        s_lshr_b32 s4, s2, 5
        s_add_u32 s7, s7, s4
        s_lshl_b32 s7, s7, 2
        s_add_u32 s7, s7, {S(sWV)}
        s_mul_i32 s7, s7, {16*1280}
        s_and_b32 s4, s2, 1
        s_lshl_b32 s4, s4, 2
        s_bfe_u32 s5, s2, 0x20003
        s_add_u32 s4, s4, s5
        s_mul_i32 s4, s4, 160
        s_add_u32 s7, s7, s4
        v_bfe_u32 v29, v0, 1, 4
        v_mul_u32_u24 v29, 1280, v29
        v_and_b32 v30, 1, v0
        v_lshl_add_u32 v29, v30, 7, v29
        """])
        seq(sc, pf, 20)
        opf = [toI([f"buffer_load_dword v31, v28, {sWS}, s6 offen sc1"]), toI([f"buffer_load_dword v31, v29, {S(R['dbg'],4)}, s7 offen"])]
    d1 = vgroups(dmaO(1))
    g = pace2(d1[:OE], OA - 4*OE, 4)
    g = pace2([toI(["@waitvm cx", f"buffer_atomic_add {V(vOne)}, {V(vFlagW)}, {sWS}, {S(sFx)} offen"])] + d1[OE:], max(g, OA), 4)
    assert g < og[firstc[1] - 1] - 12, g
    if not OB1:
        x1 = vgroups(ldX(1, (0,)))
        g = pace2(x1[:OX], g, 4)
        gp = sc.put(poll_kv, g, force=True)
        d2 = vgroups(dmaO(2))
        g = pace2(x1[OX:] + d2[:OD], gp + 3, 4)
        OC = max(g, gp + OW)
        sc.raw("@mark pc", OC)
        need2 = 240 if OSP else 160
        g = pace2(vgroups(ldX(1, (1,))), OC + 2, 4 if OC + 40 < need2 else 1); assert g <= need2, g
        g = pace2(d2[OD:], g, 4); assert g < og[firstc[2] - 1] - 8, g
        g = pace2(vgroups(ldX(2, (0, 1))), g, OS); assert g <= og[firstc[2]], g
        g = pace2(vgroups(dmaO(3)), g, OS); assert g < og[firstc[3] - 1] - 4, g
        g = pace2(vgroups(ldX(3, (0, 1))), g, OS); assert g <= og[firstc[3]], (g, og[firstc[3]])
    else:
        g = pace2(vgroups(ldX(1, (0,))), g, 4); assert g <= 160
        g = pace2(vgroups(dmaO(2)), g, 4); assert g < 212
        g = pace2(vgroups(ldX(2, (0,))), g, 4); assert g <= 240, g
        gp = sc.put(poll_kv, g, force=True)
        g = pace2(vgroups(dmaO(3)), g + 3, 4); assert g < 292
        g = pace2(vgroups(ldX(3, (0,))), g, 4); assert g <= 320
        OC = g
        sc.raw("@mark pc", OC)
        g = pace2(vgroups(ldX(1, (1,))), OC + 2, 4); assert g <= 400
        g = pace2(vgroups(ldX(2, (1,))) + vgroups(ldX(3, (1,))), g, OS + 2); assert g <= 476, g
    gl = g
    if OPF: pace2(opf, OG, 4)
    sP0, sP1 = 60, 61
    seq(sc, [f"s_lshr_b32 {S(sT3)}, {S(sHD)}, 2", f"s_mul_i32 {S(sP0)}, {S(sT3)}, {32*20*4096}", f"s_add_u32 {S(sP0)}, {S(sP0)}, {WS_PART + 20*4096}",
             f"s_lshr_b32 {S(sT3)}, {S(sWV)}, 1", f"s_mul_i32 {S(sT3)}, {S(sT3)}, {20*4096}", f"s_sub_u32 {S(sP0)}, {S(sP0)}, {S(sT3)}",
             f"s_and_b32 {S(sT3)}, {S(sWV)}, 1", f"s_lshl_b32 {S(sT3)}, {S(sT3)}, 10", f"s_add_u32 {S(sP0)}, {S(sP0)}, {S(sT3)}",
             f"s_and_b32 {S(sT3)}, {S(sHD)}, 3", f"s_mul_i32 {S(sT3)}, {S(sT3)}, {5*4096}", f"s_add_u32 {S(sP0)}, {S(sP0)}, {S(sT3)}",
             f"s_mul_i32 {S(sT3)}, {S(sJ)}, {40*4096}", f"s_add_u32 {S(sP1)}, {S(sP0)}, {S(sT3)}",
             f"s_sub_u32 {S(sP0)}, {S(sP0)}, {S(sT3)}", f"s_add_u32 {S(sP0)}, {S(sP0)}, {15*40*4096}"], 10)
    def done(n, m):
        k = max(k for k, o in enumerate(outers) if o[1] == n and m in o[2]); return og[k] + 4*outers[k][2].index(m)
    g = 0
    order = sorted([(p, m) for p in range(5) for m in range(4)], key=lambda x: done(2*x[0] + 1, x[1]))
    for p, m in order:
        if True:
            r0, r1 = oacc(2*p, m), oacc(2*p + 1, m)
            cv = lambda d, x: f"v_cvt_pk_bf16_f32 {V(d)}, {V(x)}, {V(x+1)}"
            seq(sc, [cv(r0, r0), cv(r0+1, r0+2)], done(2*p, m) + 9)
            g = wseq(sc, [cv(r0+2, r1), cv(r0+3, r1+2), f"s_add_u32 {S(sT3)}, {S(sP1 if m >> 1 else sP0)}, {p*4096}",
                         I(f"buffer_store_dwordx4 {V(r0,4)}, {V(vL)}, {sWS}, {S(sT3)} offen offset:{(m & 1)*2048}{PST}", f"pt{m >> 1}")],
                    max(g + (OT if done(2*p + 1, m) < 600 else 0), done(2*p + 1, m) + 9))
            if m < 2: g_long = g
    hk = {"pc": lambda: spin(name + "_pc", vPk, poll_kv, 4)}
    seq(sc, [f"s_lshl_b32 s75, {S(sJ)}, 2", f"s_and_b32 s74, {S(sHD)}, 3", "s_add_u32 s75, s75, s74", "s_lshl_b32 s75, s75, 2", f"s_add_u32 s75, s75, {S(sWV)}",
             "s_lshl_b32 s75, s75, 7", f"s_add_u32 s75, s75, {WS_FLG + FL_P*128}", f"s_lshr_b32 s74, {S(sHD)}, 2", "s_lshl_b32 s74, 1, s74", "v_mov_b32 v31, s74"], 40)
    gr = seq(sc, [f"v_and_b32 {V(vPa)}, 31, v0", f"v_lshlrev_b32 {V(vPa)}, 7, {V(vPa)}", f"v_add_u32 {V(vPa)}, {WS_FLG + FL_R*128}, {V(vPa)}"], OC + 4)
    gr = sc.put(poll_kv, gr + 1, force=True)
    sc.raw("@mark pr", gr + 50, "post2"); hk["pr"] = lambda: spin(name + "_pr", vPk, poll_kv, 32)
    pace2([toI(["@waitvm pt0", f"buffer_atomic_add v31, {V(vFlagW)}, {sWS}, s75 offen offset:64"])], g_long + OQ, 1)
    pre_t = tail.pre(WS_FLG + FL_P*128, vPa, vL)
    assert seq(sc, pre_t, max(gl, gr + 52)) < OZ
    sc.put(poll_kv, OZ, force=True)
    if fine == "op":
        for gg in (OA + 1, OC - 1, OC + 1, 159, 175, 239, 255, 319, 335, 479):
            sc.raw(f"@mark g{gg}", gg, "post2"); hk[f"g{gg}"] = lambda gg=gg: T.stamp(b, f"g{gg}")
    emit_split(sc, hk)
    T.stamp(b, "end")
    tail(b, T, name, R, vPa, vPk)
    if probe:
        T.n = 7; T.names[:] = [f"p{k}" for k in range(7)]
        for k in range(7): b(f"s_mov_b32 {S(84 + k)}, {S(86 + 2*k)}")
    T.dump(b, R["ws"], 2, sWV, 12)
    b.label(name + "_end")
    b("s_endpgm")
    b.flush()
    if probe:
        la, lb, step = probe
        ia = next(k for k, i in enumerate(b.out) if i.t == f"{name}_{la}:"); ib = next(k for k, i in enumerate(b.out) if i.t == f"{name}_{lb}:")
        new = []; cnt = 0; n0 = 0
        for k, i in enumerate(b.out):
            if ia < k < ib and i.kind not in ("label", "pseudo"):
                if cnt % step == 0 and n0 < 7 and not i.op.startswith(("s_cselect", "s_cbranch", "s_addc")):
                    new.append(I(f"s_memtime s[{86 + 2*n0}:{87 + 2*n0}]")); n0 += 1
                cnt += 1
            new.append(i)
        b.out = new
    lastw = {}
    for i in b.out:
        if i.kind == "label" and i.t.endswith("_blk:"): break
        if i.tag in ("kv0", "kv1") or i.op == "ds_write_b128":
            data = regs_of(i.t.split(None, 1)[1].split(",")[0 if i.kind == "vmem" else 1].split()[0])
            assert all(lastw[r].op in ("v_cvt_pk_bf16_f32", "v_accvgpr_write_b32") for r in data), i.t
        if i.op == "v_accvgpr_write_b32" and not i.t.endswith("v12"): assert all(lastw[r].op == "v_cvt_pk_bf16_f32" for r in i.r), i.t
        for r in i.w: lastw[r] = i
    return dict(name=name, text=b.text(), kd=kd(name, 512, 256), launch=f"; @launch {'' if name.startswith('adaLN') and not aslist else f'kernel={name} '}grid=(256,1,1) block=(256,1,1) lds=163840", stamps=T.names)
```

```python
from common import *
from kt import (sWV, sRB, sCS, sT, sT2, sT3, vL16, vG, vR, slices, tile_voffs, xg, row_sums, fin_stats,
                store_act, gelu, GC1, GC2, SPIN_MAX)
from kf2 import vgroups
FA, FD, FC = 0, 128, 256

def fused(**kw):
    def f(b, T, name, RA, vPa0, vPk0):
        body(b, T, name + "_t", RA, vPa0, vPk0, **kw)
        T.stamp(b, "tend")
    f.pre = pre
    return f

def pre(flp, vPa0, vL):
    return toI([f"""
    s_and_b32 {S(sCS)}, s2, 1
    s_lshl_b32 {S(sCS)}, {S(sCS)}, 2
    s_bfe_u32 s6, s2, 0x20003
    s_add_u32 {S(sCS)}, {S(sCS)}, s6
    s_bfe_u32 {S(sRB)}, s2, 0x20001
    s_lshl_b32 {S(sRB)}, {S(sRB)}, 2
    s_bfe_u32 s6, s2, 0x20005
    s_add_u32 {S(sRB)}, {S(sRB)}, s6
    s_lshr_b32 s6, s2, 7
    s_lshl_b32 s6, s6, 4
    s_add_u32 {S(sRB)}, {S(sRB)}, s6
    s_lshr_b32 s6, {S(sCS)}, 1
    s_mul_i32 s6, s6, 10
    s_and_b32 s7, {S(sCS)}, 1
    s_add_u32 s55, s6, 4
    s_add_u32 s55, s55, s7
    s_mul_i32 s7, s7, 6
    s_add_u32 s54, s6, s7
    s_mul_i32 s59, {S(sRB)}, {20*4096}
    s_lshl_b32 s6, {S(sWV)}, 10
    s_add_u32 s59, s59, s6
    s_add_u32 s58, s59, {WS_PART}
    s_add_u32 s59, s59, {WS_XA}
    s_lshl_b32 s6, s54, 11
    v_add_u32 v28, s6, {V(vL)}
    v_add_u32 v29, 4096, v28
    s_lshr_b32 s6, s55, 1
    s_lshl_b32 s6, s6, 12
    v_add_u32 v30, s6, {V(vL)}
    s_lshr_b32 s6, {S(sRB)}, 1
    s_sub_u32 s7, 15, s6
    s_min_u32 s6, s6, s7
    s_lshl_b32 s6, s6, 2
    s_lshr_b32 s7, {S(sCS)}, 1
    s_add_u32 s6, s6, s7
    s_lshl_b32 s6, s6, 1
    s_and_b32 s7, {S(sRB)}, 1
    s_xor_b32 s7, s7, 1
    s_add_u32 s6, s6, s7
    s_lshl_b32 s6, s6, 1
    s_and_b32 s7, {S(sWV)}, 1
    s_add_u32 s6, s6, s7
    s_lshl_b32 s6, s6, 1
    s_lshr_b32 s7, {S(sRB)}, 4
    s_add_u32 s6, s6, s7
    s_lshl_b32 s6, s6, 6
    s_add_u32 s6, s6, {flp}
    v_mov_b32 {V(vPa0)}, s6
    """])

def body(b, T0, name, RA, vPa0, vPk0, few=None, SP=(3, 4, 2, 4), PT=2, AC=40, EV=9, PNT='', WI=(), NE=2, dbg=(), ZS=2):
    class TT:
        def stamp(self, b, nm):
            if few is None or nm in few: T0.stamp(b, nm)
    T = TT()
    R = {"x": RA["dbg"], "ws": RA["ws"], "bsp": 8, "out": 12}
    sWS = S(R["ws"], 4); sX = S(R["x"], 4)
    sRd, sDone, sNew, sWr, sLr = 65, 66, 67, 70, 71
    PF = lambda x, f: A(12*x + 4*f, 4)
    def ldP(x): return toI([f"s_add_u32 {S(sT)}, s58, {x*32*20*4096}"] + [f"buffer_load_dwordx4 {PF(x, f)}, {V(28+f)}, {sWS}, {S(sT)} offen sc1{PNT}" for f in range(3)])
    b(f"""
    s_load_dwordx2 s[8:9], s[0:1], {ARG['bsp']}
    s_load_dwordx2 s[12:13], s[0:1], {ARG['out']}
    v_readfirstlane_b32 {S(sNew)}, {V(vPk0)}
    v_mov_b32 v13, {V(vPa0)}
    v_mov_b32 v14, {V(vPk0)}
    s_mov_b32 {S(sDone)}, 0
    s_and_b32 {S(sNew)}, {S(sNew)}, {(1 << NE) - 1}
    s_cmp_lg_u32 {S(sNew)}, {(1 << NE) - 1}
    s_cbranch_scc1 {name}_ne
    """)
    ne = b.flush()
    for x in range(NE): b(ldP(x))
    b(f"s_mov_b32 {S(sDone)}, {(1 << NE) - 1}")
    early = b.flush()
    b.label(name + "_ne", [State()])
    b(f"""
    s_mov_b32 s10, {hex(SIZE['bsp'])}
    s_mov_b32 s11, 0x20000
    s_mov_b32 s14, {hex(SIZE['out'])}
    s_mov_b32 s15, 0x20000
    v_lshlrev_b32 {V(vL16)}, 4, v0
    v_lshrrev_b32 {V(vG)}, 4, v0
    v_and_b32 {V(vR)}, 15, v0
    s_waitcnt lgkmcnt(0)
    """)
    sB5, sE5, sB7, sE7 = 54, 55, 56, 57
    sW, sXo, sW1, sW2, sRow, sLb, sSp = 58, 59, 60, 61, 62, 76, 77
    SM, SV, TB = 156 * 1024, 157 * 1024, 140 * 1024
    vFW, vOne, vPa, vPoll, vSm, vOob = 11, 12, 13, 14, 38, 39
    vSt, vSl, vVec, vXm = 36, 37, 41, 170
    slices(b, 7, sB7, sE7)
    at5 = tile_voffs(b, 5, sB5, sE5, 4, 5, 6, 1024, vL16)
    at7 = tile_voffs(b, 7, sB7, sE7, 4, 5, 7, 1024, vL16)
    b(f"""
    s_mul_i32 {S(sW1)}, {S(sWV)}, {108*1024}
    s_lshl_b32 {S(sT)}, {S(sB7)}, 10
    s_add_u32 {S(sW1)}, {S(sW1)}, {S(sT)}
    s_add_u32 {S(sW1)}, {S(sW1)}, {WS_WIN - 1024}
    s_add_u32 {S(sW2)}, {S(sW1)}, {54*1024}
    s_mul_i32 {S(sLb)}, {S(sWV)}, 7168
    s_lshl_b32 {S(sRow)}, {S(sRB)}, 2
    s_add_u32 {S(sRow)}, {S(sRow)}, {S(sWV)}
    v_mov_b32 {V(vOob)}, {hex(OOB)}
    v_mov_b32 {V(vFW)}, {hex(OOB)}
    v_writelane_b32 {V(vFW)}, 0, 0
    v_mov_b32 {V(vOne)}, 1
    v_lshlrev_b32 v44, 3, {V(vG)}
    v_mul_u32_u24 v15, 1280, {V(vR)}
    v_add_u32 v15, v44, v15
    s_mul_i32 s68, {S(sRow)}, {16*1280}
    s_lshl_b32 s69, {S(sE5)}, 5
    s_add_u32 s69, s69, s68
    s_lshl_b32 s70, {S(sB5)}, 5
    s_add_u32 s68, s68, s70
    v_lshlrev_b32 {V(vSl)}, 6, {V(vR)}
    v_cmp_eq_u32 vcc, 0, {V(vG)}
    v_cndmask_b32 {V(vSt)}, {V(vOob)}, {V(vSl)}, vcc
    v_lshl_add_u32 {V(vSl)}, {V(vG)}, 4, {V(vSl)}
    s_lshl_b32 s63, {S(sRow)}, 10
    s_lshl_b32 {S(sT2)}, {S(sCS)}, 3
    s_add_u32 s64, s63, {S(sT2)}
    s_lshl_b32 {S(sSp)}, {S(sRB)}, 18
    s_lshl_b32 {S(sT)}, {S(sWV)}, 15
    s_add_u32 {S(sSp)}, {S(sSp)}, {S(sT)}
    s_add_u32 s80, {S(sSp)}, {WS_WSP}
    s_add_u32 {S(sSp)}, s80, {32*4096}
    v_lshlrev_b32 {V(vSm)}, 4, {V(vG)}
    v_add_u32 {V(vSm)}, {SM}, {V(vSm)}
    """)
    def small_voff(dst, per, sB, sE, mul, strides):
        b(f"""
        v_mul_u32_u24 v44, {mul}, v0
        v_lshrrev_b32 v44, 10, v44
        v_mul_u32_u24 v45, {4*per}, v44
        v_sub_u32 v45, v0, v45
        v_lshlrev_b32 v46, 4, v45
        s_lshl_b32 {S(sT)}, {S(sB)}, 6
        s_sub_u32 {S(sT2)}, {S(sE)}, {per-1}
        s_lshl_b32 {S(sT2)}, {S(sT2)}, 6
        """)
        if per == 7: b(f"s_cmp_ge_u32 {S(sCS)}, 6"); b(f"s_cselect_b32 {S(sT2)}, {hex(OOB)}, {S(sT2)}")
        b(f"""
        v_mov_b32 v47, {S(sT)}
        v_mov_b32 {V(dst)}, {S(sT2)}
        v_cmp_gt_u32 vcc, {4*(per-1)}, v45
        v_cndmask_b32 v47, {V(dst)}, v47, vcc
        v_add_u32 v46, v46, v47
        v_mov_b32 {V(dst)}, {V(vOob)}
        """)
        for k, st in enumerate(strides):
            b(f"v_add_u32 v47, {st}, v46"); b(f"v_cmp_eq_u32 vcc, {k}, v44"); b(f"v_cndmask_b32 {V(dst)}, {V(dst)}, v47, vcc")
    small_voff(42, 5, sB5, sE5, 52, [WS_MOD + 2*2560, WS_MOD + 4*2560, WS_MOD + 5*2560])
    small_voff(vVec, 7, sB7, sE7, 37, [WS_VEC, WS_VEC + 0x2000])
    SEL = 44
    b(f"""
    v_lshlrev_b32 v56, 2, {V(vG)}
    v_sub_u32 v56, {V(vR)}, v56
    v_mov_b32 v57, 0x3f80
    v_mov_b32 v58, 0x3f800000
    v_cmp_eq_u32 vcc, 0, v56
    v_cndmask_b32 v44, 0, v57, vcc
    v_cmp_eq_u32 vcc, 1, v56
    v_cndmask_b32 v44, v44, v58, vcc
    v_cmp_eq_u32 vcc, 2, v56
    v_cndmask_b32 v45, 0, v57, vcc
    v_cmp_eq_u32 vcc, 3, v56
    v_cndmask_b32 v45, v45, v58, vcc
    v_mov_b32 v46, 0
    v_mov_b32 v47, 0
    v_mov_b32 v48, 0
    v_mov_b32 v49, 0
    v_mov_b32 v50, v44
    v_mov_b32 v51, v45
    s_bitcmp1_b32 {S(sE5)}, 0
    s_cselect_b64 vcc, -1, 0
    """)
    for k in range(4): b(f"v_cndmask_b32 {V(52+k)}, {V(44+k)}, {V(48+k)}, vcc")
    def dmaW(nW, at, soff, goff, sl, loff, tag, valid=None):
        o = [f"s_add_u32 {S(sT2)}, {S(soff)}, {goff}"]
        if valid: o += [valid, f"s_cselect_b32 {S(sT2)}, {S(sT2)}, {hex(OOB)}"]
        for n in range(nW):
            v, ofs = at(n)
            if ofs == 0: o.append(f"s_add_u32 m0, {S(sl)}, {loff + n*1024}")
            o.append(I(f"buffer_load_dwordx4 {v}, {sWS}, {S(sT2)} offen offset:{ofs} sc1 lds", tag))
        return toI(o)
    dW2 = lambda r: dmaW(7, at7, sW2, 4*r*108*1024, sLb, 4*r*7168, "w2")
    dW1 = lambda r: dmaW(7, at7, sW1, 4*r*108*1024, sLb, 4*r*7168, "w1")
    def arrive_ins(tag, line_ins):
        return toI(line_ins + [f"s_lshl_b32 {S(sT)}, {S(sT)}, 7", f"s_add_u32 {S(sT)}, {S(sT)}, {WS_FL2}", f"@waitvm {tag}",
                               f"buffer_atomic_add {V(vOne)}, {V(vFW)}, {sWS}, {S(sT)} offen"])
    poll = f"buffer_load_dword {V(vPoll)}, {V(vPa)}, {sWS}, 0 offen sc1"
    def poll_addr(line_ins, four):
        o = line_ins + [f"s_lshl_b32 {S(sT)}, {S(sT)}, 7", f"s_add_u32 {S(sT)}, {S(sT)}, {WS_FL2}"]
        if four: o += [f"v_and_b32 {V(vPa)}, 3, v0", f"v_lshl_add_u32 {V(vPa)}, {V(vPa)}, 7, {S(sT)}"]
        else: o += [f"v_mov_b32 {V(vPa)}, {S(sT)}"]
        return toI(o)
    def spin(lab, test, again):
        b(test)
        b(f"s_cbranch_vccz {lab}_ok")
        sts = b.flush()
        b(f"s_mov_b32 {S(sT3)}, 0")
        b.label(f"{lab}_spin")
        b(again)
        b(f"s_add_u32 {S(sT3)}, {S(sT3)}, 1")
        b(f"s_cmp_gt_u32 {S(sT3)}, {SPIN_MAX}")
        b("s_waitcnt vmcnt(0)")
        b(f"s_cbranch_scc1 {lab}_ok")
        b(test)
        b(f"s_cbranch_vccnz {lab}_spin")
        b.label(f"{lab}_ok", sts + b.flush())
    def spin_cnt(lab, target): spin(lab, f"v_cmp_gt_u32 vcc, {target}, {V(vPoll)}", poll)
    def spin_st(lab, st, ld):
        spin(lab, [f"v_cmp_gt_f32 vcc, 0, {V(st+1)}", f"v_cmp_gt_f32 s[72:73], 0, {V(st+3)}", "s_or_b64 vcc, vcc, s[72:73]"], ld)
    def capture(f):
        n = len(b.cur); f(); o = b.cur[n:]; del b.cur[n:]; return o
    def tagged(f, tag):
        o = capture(f)
        for i in o:
            if i.kind == "vmem": i.tag = tag
        b(o)
    def weave_v(valu, groups, every):
        groups = list(groups)
        for k, i in enumerate(valu):
            b(i)
            if k % every == every - 1 and groups: b(groups.pop(0))
        for g in groups: b(g)
    def emit_marks(sc, hooks):
        cur = []
        for i in sc.emit():
            if i.kind == "pseudo" and i.op == "@mark": b(cur); cur = []; hooks[i.t.split()[1]]()
            else: cur.append(i)
        b(cur)
    def xs(k, m):
        k = k % 14
        return A((240 - 16*k if k < 11 else 32 + 16*(k - 11)) + 4*m, 4)
    def lS(k): return toI([f"s_add_u32 {S(sT)}, {S(80 if k >= 8 else sSp)}, {(k & 7)*4096}"] + [f"buffer_load_dwordx4 {xs(k, m)}, {V(vXm+m)}, {sWS}, {S(sT)} offen sc1" for m in range(4)])
    spn = [0]
    def more_sp(n):
        o = []
        for _ in range(n): o += lS(spn[0]); spn[0] += 1
        return o
    XP, GA, AB, X1 = 96, 56, 76, 16
    b(f"""
    s_mov_b32 {S(sRd)}, 0
    s_mov_b32 {S(sWr)}, {S(sW2)}
    s_mov_b32 {S(sLr)}, {S(sLb)}
    s_mov_b32 s3, 0
    s_waitcnt vmcnt({3*NE})
    s_cmp_lg_u32 {S(sDone)}, 0
    s_cbranch_scc1 {name}_ak
    s_waitcnt vmcnt(0)
    """)
    b.label(name + "_ak")
    b(f"""
    buffer_atomic_add v31, {V(vFW)}, {sWS}, s75 offen
    s_barrier
    """)
    T.stamp(b, "arrP")
    b(f"s_mov_b32 m0, {SM}"); b(f"buffer_load_dwordx4 v42, {sWS}, 0 offen sc1 lds")
    for h in range(2):
        b(f"s_mov_b32 m0, {SV + 1024*h}"); b(f"s_mov_b32 {S(sT)}, {h*54*64}"); b(f"buffer_load_dwordx4 {V(vVec)}, {sWS}, {S(sT)} offen sc1 lds")
    for n in range(5): b(f"buffer_load_dwordx2 {V(XP+2*n,2)}, v15, {sX}, {'s68' if n < 4 else 's69'} offen offset:{32*n if n < 4 else 0}")
    for m in range(4):
        b(f"s_add_u32 {S(sT)}, {S(sWV)}, {m}"); b(f"s_and_b32 {S(sT)}, {S(sT)}, 3"); b(f"s_lshl_b32 {S(sT)}, {S(sT)}, 10")
        b(f"v_add_u32 {V(vXm+m)}, {S(sT)}, {V(vL16)}")
    def w2round():
        return dmaW(7, at7, sWr, 0, sLr, 0, "w2") + toI([f"s_add_u32 {S(sWr)}, {S(sWr)}, {4*108*1024}", f"s_add_u32 {S(sLr)}, {S(sLr)}, {4*7168}", f"s_add_u32 {S(sRd)}, {S(sRd)}, 1"])
    b.flush(); b.label(name + "_pl", [State()])
    b(f"""
    v_readfirstlane_b32 {S(sNew)}, {V(vPoll)}
    s_andn2_b32 {S(sNew)}, {S(sNew)}, {S(sDone)}
    s_or_b32 {S(sDone)}, {S(sDone)}, {S(sNew)}
    """)
    for x in range(8):
        b(f"s_bitcmp0_b32 {S(sNew)}, {x}"); b(f"s_cbranch_scc1 {name}_px{x}"); b(ldP(x))
        if x in WI: b(f"s_cmp_ge_u32 {S(sRd)}, 5"); b(f"s_cbranch_scc1 {name}_px{x}"); b(w2round())
        b.flush(); b.label(f"{name}_px{x}", [State()])
    b(f"""
    s_cmp_eq_u32 {S(sDone)}, 0xff
    s_cbranch_scc1 {name}_po
    s_add_u32 s3, s3, 1
    s_cmp_gt_u32 s3, {SPIN_MAX}
    s_cbranch_scc1 {name}_po
    s_cmp_ge_u32 {S(sRd)}, 5
    s_cbranch_scc1 {name}_pn
    """)
    b(w2round()); b.flush(); b.label(name + "_pn", [State()])
    b(poll); b("s_waitcnt vmcnt(0)"); b(f"s_branch {name}_pl")
    b.flush(); b.label(name + "_po", [State()])
    T.stamp(b, "gotP")
    b(f"s_cmp_ge_u32 {S(sRd)}, 5"); b(f"s_cbranch_scc1 {name}_pw")
    b(w2round()); b("s_waitcnt vmcnt(7)"); b(f"s_branch {name}_pz"); s1 = b.flush()
    b.label(name + "_pw", [State()]); b("s_waitcnt vmcnt(0)")
    b.label(name + "_pz", s1 + b.flush())
    for n in range(5):
        b(f"ds_read_b128 {V(GA+4*n,4)}, {V(vSm)} offset:{n*64}"); b(f"ds_read_b128 {V(AB+4*n,4)}, {V(vSm)} offset:{320 + n*64}")
    sc = Sched([MF(V(X1 + 4*n, 4), V(SEL + (8 if n == 4 else 4*(n & 1)), 4), PF(x, n >> 1), V(X1 + 4*n, 4) if x else "0") for n in range(5) for x in range(8)])
    sc.seq([y for n in range(5) for j in range(2) for y in (f"v_lshlrev_b32 {V(112+4*n+2*j)}, 16, {V(XP+2*n+j)}", f"v_and_b32 {V(113+4*n+2*j)}, 0xffff0000, {V(XP+2*n+j)}")], 0)
    for n in range(4):
        sc.seq([f"v_fma_f32 {V(X1+k)}, {V(X1+k)}, {V(GA+k)}, {V(112+k)}" for k in range(4*n, 4*n + 4)]
               + [f"v_mul_f32 {V(GA+k)}, {V(X1+k)}, {V(AB+k)}" for k in range(4*n, 4*n + 4)], 8*n + 12)
    b(sc.emit())
    T.stamp(b, "red")
    for k in (16, 18): b(f"v_pk_fma_f32 {V(X1+k,2)}, {V(X1+k,2)}, {V(GA+k,2)}, {V(112+k,2)}")
    for k in (16, 18): b(f"v_pk_mul_f32 {V(GA+k,2)}, {V(X1+k,2)}, {V(AB+k,2)}")
    tagged(lambda: store_act(b, sWS, 5, GA, WS_XA, 20, sB5, sE5, 12, " sc1"), "A")
    row_sums(b, X1, 20, 116, 112)
    b(f"s_add_u32 {S(sT)}, s64, {WS_ST1}")
    b(f"buffer_store_dwordx2 v[116:117], {V(vSt)}, {sWS}, {S(sT)} offen sc1")
    def w2if(tag):
        b(f"s_cmp_ge_u32 {S(sRd)}, 5"); b(f"s_cbranch_scc1 {name}_{tag}"); sk = b.flush()
        b(w2round()); b.label(f"{name}_{tag}", sk + b.flush())
    b(arrive_ins("A", [f"s_add_u32 {S(sT)}, {S(sRow)}, {FA}"]))
    T.stamp(b, "arrA")
    b(poll_addr([f"s_add_u32 {S(sT)}, {S(sRow)}, {FA}"], False))
    w2if("wa"); w2if("wb")
    b(poll)
    w2if("wc"); w2if("wd")
    b(more_sp(SP[0]))
    V1, V2, TM, Z2, Z1, ST, ST2 = 76, 104, 104, 132, 48, 160, 164
    b(f"""
    v_mov_b32 v44, {FH(-GC1)}
    v_mov_b32 v45, {FH(-GC1)}
    v_mov_b32 v46, {FH(-GC2)}
    v_mov_b32 v47, {FH(-GC2)}
    v_add_u32 v8, 65536, {V(vL16)}
    v_add_u32 v9, 131072, {V(vL16)}
    @waitvm w2
    s_barrier
    """)
    NR = 12
    def wring(i): return V(176 + 4*(i % NR), 4)
    def rdl(i, addr): return f"ds_read_b128 {wring(i)}, {V((vL16, 8, 9)[addr >> 16])} offset:{addr & 0xffff}"
    def msplit(order, accf, xf, addr, lead=10):
        seen = set(); mf = []
        for i, (ks, n) in enumerate(order):
            mf.append(MF(accf(n), wring(i), xf(ks), accf(n) if n in seen else "0")); seen.add(n)
        sc = Sched(mf)
        for i in range(lead, len(order)): sc.put(rdl(i, addr(*order[i])), i - lead, force=True)
        for i in range(1, len(order) - 1, 2): sc.raw(f"@need {wring(i+1)} {wring(min(i+2, len(order)-1))}", i, "pre")
        return sc, [rdl(i, addr(*order[i])) for i in range(lead)]
    ordz = [(4*r + k, n) for r in range(5) for n in range(7) for k in range(4)]
    xz = lambda ks: A((32 + 4*ks) % 80, 4)
    adz = lambda ks, n: (ks*7 + n)*1024
    sc2, pre2 = msplit(ordz, lambda n: V(Z2 + 4*n, 4), xz, adz)
    b(pre2)
    spin_cnt(name + "_pa", 8)
    T.stamp(b, "gotA")
    def lX(reg, ks): return toI([f"s_add_u32 {S(sT)}, {S(sXo)}, {ks*4096}", f"buffer_load_dwordx4 {reg}, {V(vL16)}, {sWS}, {S(sT)} offen sc1"])
    for ks in range(8): b(lX(xz(ks), ks))
    def place(sc, groups, g0, step):
        g = g0
        for gr in groups:
            for x in gr[:-1]: sc.raw(x, g - 1, "post")
            sc.put(gr[-1], g, force=True); g += step
        return g
    ldst1 = f"buffer_load_dwordx4 {V(ST,4)}, {V(vSl)}, {sWS}, s66 offen sc1"
    ldst2 = f"buffer_load_dwordx4 {V(ST2,4)}, {V(vSl)}, {sWS}, s66 offen sc1"
    g = place(sc2, [lX(xz(ks), ks) for ks in range(8, 20)] + [toI([f"s_add_u32 s66, s63, {WS_ST1}", ldst1])], 1, 4)
    g = max(g, 58)
    sc2.raw("s_barrier", g - 1, "pre")
    w1 = [x for r in range(5) for x in vgroups(dW1(r))]
    g = place(sc2, w1[:14], g + 1, 5); assert g < 146
    for n in range(7):
        sc2.raw(f"ds_read_b128 {V(V1+4*n,4)}, {V(vSm)} offset:{1024 + 1024 + n*64}", 122 + 2*n, "post")
        sc2.raw(f"ds_read_b128 {V(V2+4*n,4)}, {V(vSm)} offset:{1024 + 1024 + 448 + n*64}", 123 + 2*n, "post")
    b(sc2.emit())
    b("s_barrier")
    T.stamp(b, "g2")
    spin_st(name + "_p1", ST, ldst1)
    def apply2():
        for k in range(0, 28, 2): b(f"v_pk_fma_f32 {V(Z2+k,2)}, {V(V1+k,2)}, {V(ST,2)}, {V(Z2+k,2)} op_sel_hi:[1,0,1]")
        for k in range(0, 28, 2): b(f"v_pk_fma_f32 {V(Z2+k,2)}, {V(Z2+k,2)}, {V(ST+2,2)}, {V(V2+k,2)} op_sel_hi:[1,0,1]")
    ep = capture(lambda: (fin_stats(b, ST, 640, 164), apply2(), gelu(b, Z2, 28, TM, 44, 46), row_sums(b, Z2, 28, 164, TM)))
    nv = min(21, len(ep) // EV // 7 * 7)
    weave_v(ep, w1[14:14 + nv], EV)
    b(f"s_add_u32 {S(sT)}, s64, {WS_ST2}")
    b(f"buffer_store_dwordx2 v[164:165], {V(vSt)}, {sWS}, {S(sT)} offen sc1")
    T.stamp(b, "e2")
    for gr in w1[14 + nv:]: b(gr)
    b(more_sp(SP[1] // 2))
    b(f"s_add_u32 s66, s63, {WS_ST2}"); b(ldst2)
    b(more_sp(SP[1] - SP[1] // 2))
    b(f"""
    v_lshlrev_b32 v168, 5, {V(vR)}
    v_lshl_add_u32 v168, {V(vG)}, 3, v168
    s_lshl_b32 {S(sT)}, {S(sWV)}, 9
    s_add_u32 {S(sT)}, {S(sT)}, {TB}
    v_add_u32 v174, {S(sT)}, v168
    s_and_b32 {S(sT)}, {S(sWV)}, 1
    s_lshr_b32 {S(sT2)}, {S(sWV)}, 1
    s_lshl_b32 {S(sT3)}, {S(sT)}, 10
    s_lshl_b32 s65, {S(sT2)}, 13
    s_add_u32 {S(sT3)}, {S(sT3)}, s65
    s_add_u32 {S(sT3)}, {S(sT3)}, {TB}
    v_lshl_add_u32 v175, v0, 3, {S(sT3)}
    s_lshl_b32 s65, {S(sRB)}, 1
    s_add_u32 s65, s65, {S(sT)}
    s_mul_i32 s65, s65, {54*1024}
    s_add_u32 s65, s65, {WS_Z2}
    s_lshl_b32 s70, {S(sT2)}, 2
    s_add_u32 s70, s70, {S(sB7)}
    s_lshl_b32 s70, s70, 10
    s_add_u32 s70, s70, s65
    s_lshl_b32 s67, {S(sE7)}, 10
    s_add_u32 s67, s67, s65
    s_cmp_ge_u32 {S(sCS)}, 6
    s_cselect_b32 s67, {hex(OOB)}, s67
    s_add_u32 s74, s70, 2048
    s_add_u32 s75, s70, 3072
    s_cmp_eq_u32 {S(sT2)}, 1
    s_cselect_b32 s74, s67, s74
    s_cselect_b32 s75, {hex(OOB)}, s75
    """)
    spin_st(name + "_p2", ST2, ldst2)
    T.stamp(b, "gotB")
    def norm():
        fin_stats(b, ST2, 864, 168)
        b(f"v_mul_f32 {V(ST2)}, {V(ST2)}, {V(ST2+2)}")
        for n in range(7):
            for k in (4*n, 4*n + 2): b(f"v_pk_fma_f32 {V(Z2+k,2)}, {V(Z2+k,2)}, {V(ST2+2,2)}, {V(ST2,2)} op_sel_hi:[1,0,0]")
            for k in (2*n, 2*n + 1): b(f"v_cvt_pk_bf16_f32 {V(76+k)}, {V(Z2+2*k)}, {V(Z2+2*k+1)}")
            b(f"ds_write_b64 v174, {V(76+2*n,2)} offset:{n*2048}")
    weave_v(capture(norm), vgroups(more_sp(SP[2])) if SP[2] else [], 6)
    assert spn[0] <= 11
    b("@waitvm w1"); b("s_waitcnt lgkmcnt(0)"); b("s_barrier")
    for n in range(4):
        for hf in range(2): b(f"ds_read_b64_tr_b16 {V(104+4*n+2*hf,2)}, v175 offset:{n*2048 + hf*512}")
    sc1, pre1 = msplit(ordz, lambda n: V(Z1 + 4*n, 4), xz, adz)
    b(pre1[:6])
    for n in range(4):
        b(f"buffer_store_dwordx4 {V(104+4*n,4)}, {V(vL16)}, {sWS}, {('s70','s70','s74','s75')[n]} offen offset:{1024 if n == 1 else 0} sc1", "C")
    b(pre1[6:])
    T.stamp(b, "stC")
    arr = arrive_ins("C", [f"s_lshl_b32 {S(sT)}, {S(sCS)}, 3", f"s_lshr_b32 {S(sT2)}, {S(sRB)}, 2", f"s_add_u32 {S(sT)}, {S(sT)}, {S(sT2)}",
                 f"s_lshl_b32 {S(sT)}, {S(sT)}, 2", f"s_add_u32 {S(sT)}, {S(sT)}, {S(sWV)}", f"s_add_u32 {S(sT)}, {S(sT)}, {FC}"])
    pc = poll_addr([f"s_lshl_b32 {S(sT)}, {S(sCS)}, 3", f"s_add_u32 {S(sT)}, {S(sT)}, {S(sWV)}", f"s_lshl_b32 {S(sT)}, {S(sT)}, 2", f"s_add_u32 {S(sT)}, {S(sT)}, {FC + 16}"], True) + toI([poll])
    wg = lambda k, n: V(76 + 28*(k % 3) + 4*n, 4)
    def lZ(k):
        o = [f"s_add_u32 {S(sT2)}, {S(81 if k >= 8 else sW)}, {(k & 7)*54*1024}"]
        for n in range(7):
            v, ofs = at7(n); o.append(f"buffer_load_dwordx4 {wg(k, n)}, {v}, {sWS}, {S(sT2)} offen offset:{ofs} sc1")
        return toI(o)
    g = place(sc1, [arr], AC, 4)
    for t in range(SP[3] + 1):
        if t == PT: g = place(sc1, [pc], g, 4); gp = g
        if t < SP[3]:
            if spn[0] >= 11: g = max(g, 28 * (spn[0] - 10) + 1)
            g = place(sc1, vgroups(more_sp(1)), g, 4)
    assert spn[0] <= 14
    g = place(sc1, [toI([f"s_lshl_b32 {S(sT)}, {S(sRow)}, 5", f"v_lshlrev_b32 v42, 1, {V(vR)}", f"buffer_load_ushort v42, v42, {S(R['bsp'],4)}, {S(sT)} offen"])], g, 4)
    g = min(max(g, gp + 24), 138)
    sc1.raw("@mark pc", g - 2, "post2")
    place(sc1, vgroups(lZ(0) + lZ(1)), g, 3)
    sc1.raw(toI([f"""
    s_mul_i32 {S(sW)}, {S(sWV)}, {8*54*1024}
    s_lshl_b32 s65, {S(sB7)}, 10
    s_add_u32 {S(sW)}, {S(sW)}, s65
    s_add_u32 s81, {S(sW)}, {WS_Z2 - 1024}
    s_add_u32 {S(sW)}, s81, {32*54*1024}
    s_mul_i32 {S(sW1)}, {S(sWV)}, {40*1024}
    s_lshl_b32 s65, {S(sB5)}, 10
    s_add_u32 {S(sW1)}, {S(sW1)}, s65
    s_add_u32 {S(sW1)}, {S(sW1)}, {WS_WOUT - 1024}
    s_mul_i32 {S(sLb)}, {S(sWV)}, 5120
    s_mov_b32 s70, {FH(-GC2)}
    """]), 10, "post")
    emit_marks(sc1, {"pc": lambda: (spin_cnt(name + "_pc", 4), T.stamp(b, "gotC"))})
    T.stamp(b, "g1")
    G = 176
    def gacc(n, m):
        if m == 0: return A(4*n, 4)
        i = (m - 1)*7 + n
        return V(G + 4*i, 4) if i < 20 else A(28, 4)
    OB = lambda r: 49152 + r*20480 if r < 5 else (r - 5)*20480
    dWo = lambda r: dmaW(5, at5, sW1, 4*r*40*1024, sLb, OB(r), "wo", valid=f"s_cmp_lt_u32 {S(sWV)}, 3" if r == 6 else None)
    def z1rd(n): return [f"ds_read_b128 v[164:167], {V(vSm)} offset:{1024 + n*64}", f"ds_read_b128 v[8:11], {V(vSm)} offset:{1024 + 448 + n*64}"]
    def z1ep(n):
        z = Z1 + 4*n; tt = (168, 169, 174, 175); o = []
        o += [f"v_fmac_f32 {V(z+r)}, {V(164+r)}, {V(ST)}" for r in range(4)]
        o += [f"v_fma_f32 {V(z+r)}, {V(z+r)}, {V(ST+2)}, {V(8+r)}" for r in range(4)]
        o2 = [f"v_mul_f32 {V(tt[r])}, {V(z+r)}, {V(z+r)}" for r in range(4)]
        o2 += [f"v_fma_f32 {V(tt[r])}, {V(tt[r])}, s70, v44" for r in range(4)]
        o2 += [f"v_mul_f32 {V(tt[r])}, {V(tt[r])}, {V(z+r)}" for r in range(4)]
        o2 += [f"v_exp_f32 {V(tt[r])}, {V(tt[r])}" for r in range(4)]
        o2 += [f"v_add_f32 {V(tt[r])}, 1.0, {V(tt[r])}" for r in range(4)]
        o2 += [f"v_rcp_f32 {V(tt[r])}, {V(tt[r])}" for r in range(4)]
        o2 += [f"v_mul_f32 {V(z+r)}, {V(z+r)}, {V(tt[r])}" for r in range(4)]
        return o, o2
    b(z1rd(0))
    radr = []
    for m in range(1, 4):
        radr += [f"s_add_u32 s65, {S(sWV)}, {m}", "s_and_b32 s65, s65, 3", "s_mul_i32 s65, s65, 12288", f"s_add_u32 s65, s65, {(m-1)*4096}",
                 f"v_add_u32 {V(160+m)}, s65, {V(vL16)}"]
    radr += [f"s_mul_i32 s65, {S(sWV)}, 12288", f"v_add_u32 v160, s65, {V(vL16)}",
             f"v_add_u32 v8, 65536, {V(vL16)}", f"v_add_u32 v9, 131072, {V(vL16)}", f"v_mov_b32 {V(vFW)}, {hex(OOB)}", f"v_writelane_b32 {V(vFW)}, 0, 0"]
    selm = toI([f"""
    v_lshlrev_b32 v168, 2, {V(vG)}
    v_sub_u32 v168, {V(vR)}, v168
    v_mov_b32 v169, 0x3f80
    v_mov_b32 v174, 0x3f800000
    v_cmp_eq_u32 vcc, 0, v168
    v_cndmask_b32 v164, 0, v169, vcc
    v_cmp_eq_u32 vcc, 1, v168
    v_cndmask_b32 v164, v164, v174, vcc
    v_cmp_eq_u32 vcc, 2, v168
    v_cndmask_b32 v165, 0, v169, vcc
    v_cmp_eq_u32 vcc, 3, v168
    v_cndmask_b32 v165, v165, v174, vcc
    v_mov_b32 v166, 0
    v_mov_b32 v167, 0
    v_mov_b32 v44, 0
    v_mov_b32 v45, 0
    v_mov_b32 v46, v164
    v_mov_b32 v47, v165
    v_lshlrev_b32 v42, 16, v42
    """])
    wo_early = [x for r in range(5) for x in vgroups(dWo(r))]
    rno = lambda t: int(t[2:t.index(":")])
    cv = lambda d, x: f"v_cvt_pk_bf16_f32 {V(d)}, {V(x)}, {V(x+1)}"
    def packw(m, p):
        r0 = rno(gacc(2*p, m)); o = []
        if p < 3: o += [cv(r0, r0), cv(r0+1, r0+2), cv(r0+2, r0+4), cv(r0+3, r0+6)]
        else:
            if m == 3: r0 = 104; o += [f"v_accvgpr_read_b32 {V(r0+k)}, {A(28+k)}" for k in range(4)]
            o += [cv(r0, r0), cv(r0+1, r0+2), f"v_mov_b32 {V(r0+2)}, 0", f"v_mov_b32 {V(r0+3)}, 0"]
        return o + [f"ds_write_b128 {V(160+m)}, {V(r0,4)} offset:{p*1024}"]
    for k in range(16):
        mo = [(n, m) for n in range(7) for m in range(4)] if k < 15 else [(n, m) for m in (3, 1, 2, 0) for n in range(7)]
        sc = Sched([MF(gacc(n, m), wg(k, n), xs(k, m), gacc(n, m) if k else "0") for n, m in mo])
        f = lZ(k + 2) if k + 2 < 16 else [x for gr in wo_early[7*(k-14) : 7*(k-13)] for x in gr]
        if spn[0] < 16 and k >= 2 and spn[0] - k <= 5: f = f + more_sp(1)
        if k == 4: f = toI([f"v_subrev_u32 {V(vPa)}, {16*128}, {V(vPa)}", poll]) + f
        if k == 6: spin_cnt(name + "_pe", 4)
        sc.seq(f, 0, ZS if k < 14 else 4)
        if k < 14:
            o, o2 = z1ep(k >> 1)
            if k % 2 == 0: sc.seq(o + (z1rd(k//2 + 1) if k < 12 else []) + o2[:12], 0)
            else: sc.seq(o2[12:], 0)
        if k == 13: sc.raw("s_barrier", 27, "post2")
        if k == 14: sc.seq(radr, 0); sc.seq(selm, 0)
        if k == 15:
            g = 0; late = []
            for i, m in enumerate((3, 1, 2)):
                for p in range(4):
                    e = max(g, 7*i + min(2*p + 1, 6) + 5)
                    if e < 24: g = sc.seq(packw(m, p), e) + 1
                    else: late.append(toI(packw(m, p)))
        b(sc.emit())
        if k in (0, 3, 7, 11, 13, 14): T.stamp(b, f"k{k}")
    assert spn[0] == 16
    rest = wo_early[14:]
    for gr in late:
        b(gr)
        if rest: b(rest.pop(0))
    T.stamp(b, "g4")
    b("s_waitcnt lgkmcnt(0)"); b("s_barrier")
    XF = lambda m, p: V(108 + 16*m + 4*p, 4)
    for p in range(4):
        for m in range(3): b(f"ds_read_b128 {XF(m, p)}, v160 offset:{m*4096 + p*1024}")
    sc = Sched([MF(A(4*n, 4), V(44 if n & 1 else 164, 4), XF(m, n >> 1), A(4*n, 4)) for n in range(7) for m in range(3)])
    g = place(sc, rest, 1, 3)
    fin = []
    for n in range(7):
        d = G + 4*n
        fin.append([f"v_accvgpr_read_b32 {V(d+r)}, {A(4*n+r)}" for r in range(4)])
    g = 0
    for n in range(7): g = sc.seq(fin[n], max(g, 3*n + 8))
    b(sc.emit())
    b("s_barrier")
    for k in range(0, 28, 2): b(f"v_pk_add_f32 {V(G+k,2)}, {V(G+k,2)}, v[42:43] op_sel_hi:[1,0]")
    for k in range(0, 28, 2): b(f"v_pk_mul_f32 {V(G+k,2)}, {V(G+k,2)}, {V(Z1+k,2)}")
    tagged(lambda: store_act(b, sWS, 7, G, WS_U, 27, sB7, sE7, 12, " sc1"), "D")
    b(dWo(5))
    b(arrive_ins("D", [f"s_add_u32 {S(sT)}, {S(sRow)}, {FD}"]))
    T.stamp(b, "arrD")
    b(dWo(6))
    b(poll_addr([f"s_add_u32 {S(sT)}, {S(sRow)}, {FD}"], False)); b(poll)
    GB, Y = 48, 76
    for n in range(5): b(f"ds_read_b128 {V(GB+4*n,4)}, {V(vSm)} offset:{640 + n*64}")
    b(f"""
    s_mul_i32 {S(sXo)}, {S(sRB)}, {27*4096}
    s_lshl_b32 {S(sT)}, {S(sWV)}, 10
    s_add_u32 {S(sXo)}, {S(sXo)}, {S(sT)}
    s_add_u32 {S(sXo)}, {S(sXo)}, {WS_U}
    """)
    xu = lambda ks: A(4*ks, 4)
    ordo = [(3*r + k, n) for r in range(9) for n in range(5) for k in range(3)]
    sc5, pre5 = msplit(ordo, lambda n: V(Y + 4*n, 4), xu, lambda ks, n: OB(ks >> 2) + (ks & 3)*5120 + n*1024)
    b("@waitvm wo"); b("s_barrier"); b(pre5)
    spin_cnt(name + "_pd", 8)
    T.stamp(b, "gotD")
    for ks in range(9): b(lX(xu(ks), ks))
    place(sc5, [lX(xu(ks), ks) for ks in range(9, 27)], 1, 4)
    b(sc5.emit())
    T.stamp(b, "g5")
    for k in range(0, 20, 2): b(f"v_pk_fma_f32 {V(Y+k,2)}, {V(Y+k,2)}, {V(GB+k,2)}, {V(X1+k,2)}")
    for k in range(10): b(f"v_cvt_pk_bf16_f32 {V(Y+k)}, {V(Y+2*k)}, {V(Y+2*k+1)}")
    for n in range(5): b(f"buffer_store_dwordx2 {V(Y+2*n,2)}, v15, {S(R['out'],4)}, {'s68' if n < 4 else 's69'} offen offset:{32*n if n < 4 else 0}")
```

```python
from common import *

QSCALE = LOG2E / (128 ** 0.5)
NEGBIG = -1.0e30
L_LO, L_HI = 2.0 ** -40, 2.0 ** 40
DB_MOD, DB_MO2 = 0, 32
FL_H, FL_KV, FL_M, FL_K0, FL_R, FL_T = 0, 16, 48, 64, 96, 128
FL_P, FL_CX = 256, 512
CODE_BYTES = 50000
SPIN_MAX = 1000000

def gen(name="ka_kernel", stamps=False, force_fallback=False, fine=False, PF=True, END=72, QEND=104, QST=(6, 4, 3, 3), BA=46, MW=24, QF=24, QB=5, PFP=8, NC1=6, MS0=True, PMG=54, CPF=True, JST=10, EXACT=True, MSG=14, QD=(0, 6, 11, 16), S7=0, PFA=(1, 2), PQ4=False, PHG=28, HA=0, drop=(), QMIX=False, DWS=3, KVM=' sc1', KVL=' sc1', CXS=' sc1', CXL=' sc1', M2=False, VST=4, OA=64, OD=6, OW=28, OE=4, OX=8, OSP=True, OH=4, OS=3, OT=8, OB1=True, OPF=False, OQ=44, OZ=596, OG=162, NTS='jm', PST='', total_code=None, tail=None, aslist=False, afew=None, drop2=(), probe=None):
    b = B()
    T = Stamper(stamps, 84, 0)
    if afew is not None:
        _st = T.stamp
        T.stamp = lambda b_, nm, cond=None: _st(b_, nm, cond) if (nm in afew or nm not in ("C0", "kvstart", "kvend", "qend", "blk1end", "attend", "end")) else None
    SC = ' sc1' if tail else ''
    nt = lambda c: ' nt' if c in NTS else ''
    b(f"{name}:")
    b("s_cmp_ge_u32 s2, 256")
    b(f"s_cbranch_scc1 {name}_end")
    T.stamp(b, "start")
    names_ = ["x", "ckv", "wq", "wuk", "wuv", "ws", "dbg", "wmod", "c"]
    R = {n: 8 + 4*i for i, n in enumerate(names_)}
    for n in ("ckv", "wuk", "wuv", "x", "wq", "ws", "dbg", "wmod", "c"): b(f"s_load_dwordx2 {S(R[n],2)}, s[0:1], {ARG[n]}")
    def build_rest():
        for n in names_:
            if n == "ckv": continue
            b(f"s_mov_b32 {S(R[n]+2)}, {hex(SIZE[n])}"); b(f"s_mov_b32 {S(R[n]+3)}, 0x20000")
    sX, sCKV, sWQ, sWS, sDBG, sWM, sC = (S(R[n], 4) for n in ("x", "ckv", "wq", "ws", "dbg", "wmod", "c"))
    WU = 44; sWU = S(WU, 4)
    sWV, sHD, sJ = 48, 49, 50
    sT, sT2, sT3 = 51, 52, 53
    sCb, sWb, sLw = 54, 55, 56
    sRot = 57
    sBLK, sBLK2, sS, sN = 58, 59, 60, 61
    sKo, sVo, sKb, sVb = 62, 63, 64, 65
    sKs, sVs = 66, 67
    sPass, sSafe = 68, 69
    sHb = 70; sVar = 71
    sMK = 72
    b(f"""
    v_lshrrev_b32 v1, 6, v0
    v_and_b32 v0, 63, v0
    v_readfirstlane_b32 {S(sWV)}, v1
    s_and_b32 {S(sT)}, s2, 7
    s_lshr_b32 {S(sT2)}, s2, 3
    s_and_b32 {S(sHD)}, {S(sT2)}, 3
    s_lshl_b32 {S(sT3)}, {S(sT)}, 2
    s_add_u32 {S(sHD)}, {S(sHD)}, {S(sT3)}
    s_lshr_b32 {S(sJ)}, {S(sT2)}, 2
    v_lshrrev_b32 v21, 4, v0
    v_and_b32 v22, 15, v0
    v_and_b32 v24, 7, v0
    v_xor_b32 v24, v24, v21
    v_lshrrev_b32 v25, 3, v0
    v_lshlrev_b32 v25, 10, v25
    v_lshl_add_u32 v1, v24, 4, v25
    v_xor_b32 v2, 64, v1
    v_add_u32 v2, 8192, v2
    v_lshlrev_b32 v24, 1, v21
    v_xor_b32 v24, v22, v24
    v_lshlrev_b32 v25, 13, v21
    v_lshl_add_u32 v3, v24, 4, v25
    v_xor_b32 v4, 128, v3
    s_mov_b32 {S(R['ckv']+2)}, {hex(SIZE['ckv'])}
    s_mov_b32 {S(R['ckv']+3)}, 0x20000
    s_waitcnt lgkmcnt(0)
    s_cmp_ge_u32 {S(sWV)}, 2
    s_cselect_b32 {S(WU)}, {S(R['wuv'])}, {S(R['wuk'])}
    s_cselect_b32 {S(WU+1)}, {S(R['wuv']+1)}, {S(R['wuk']+1)}
    s_mov_b32 {S(WU+2)}, {hex(SIZE['wuk'])}
    s_mov_b32 {S(WU+3)}, 0x20000
    """)
    MB = 128 * 1024
    sCG, sMB, sQb, sKq = 80, 81, 82, 83
    vC0, vC1, vW0, vW1 = 1, 2, 3, 4
    vRC0, vRC1 = 5, 6
    vRW = 7
    vL16 = 15
    vPW, vPQ, vMo, vDum = 12, 13, 14, 23
    b(f"""
    s_sub_u32 {S(sBLK)}, 15, {S(sJ)}
    s_mov_b32 {S(sBLK2)}, {S(sJ)}
    s_and_b32 {S(sT)}, {S(sWV)}, 1
    s_lshl_b32 {S(sWb)}, {S(sT)}, 18
    s_lshl_b32 {S(sT2)}, {S(sHD)}, 8
    s_add_u32 {S(sWb)}, {S(sWb)}, {S(sT2)}
    s_cmp_ge_u32 {S(sWV)}, 2
    s_cselect_b32 {S(sCb)}, {S(sBLK2)}, {S(sBLK)}
    s_lshl_b32 {S(sCb)}, {S(sCb)}, 17
    s_lshl_b32 {S(sT3)}, {S(sT)}, 16
    s_add_u32 {S(sCb)}, {S(sCb)}, {S(sT3)}
    s_lshl_b32 {S(sLw)}, {S(sWV)}, 13
    """)
    def dmaC(s):
        o = []
        for i in range(8):
            o.append((f"s_add_u32 m0, {S(sLw)}, {65536 + (s & 1) * 32768 + i * 1024}",
                      f"s_add_u32 {S(sT)}, {S(sCb)}, {(i >> 1) * 16384 + s * 128}",
                      I(f"buffer_load_dwordx4 {V(vC1 if i & 1 else vC0)}, {sCKV}, {S(sT)} offen lds", f"C{s}")))
        return o
    def dmaW(s):
        o = []
        for i in range(8):
            o.append((f"s_add_u32 m0, {S(sLw)}, {(s & 1) * 32768 + i * 1024}",
                      f"s_add_u32 {S(sT)}, {S(sWb)}, {(s * 64 + 4 * i) * 8192}",
                      I(f"buffer_load_dwordx4 {V(vW1 if (i >> 1) & 1 else vW0)}, {sWU}, {S(sT)} offen{nt('W')} lds", f"W{s}")))
        return o
    def dmaQ(s):
        o = []
        for i in range(8):
            o.append((f"s_add_u32 m0, {S(sLw)}, {65536 + (s % 3) * 32768 + i * 1024}",
                      f"s_add_u32 {S(sT)}, {S(sQb)}, {(s * 128 + 4 * i) * 8192}",
                      I(f"buffer_load_dwordx4 {V(vW1 if (i >> 1) & 1 else vW0)}, {sWQ}, {S(sT)} offen{nt('Q')} lds", f"Q{s}")))
        return o
    sPW = 57
    def pf_setup():
        b(f"""
        s_and_b32 s6, {S(sWV)}, 1
        v_lshrrev_b32 v24, 1, v0
        v_lshlrev_b32 v24, 13, v24
        v_and_b32 v25, 1, v0
        v_lshl_add_u32 v24, v25, 7, v24
        v_mov_b32 v25, {hex(OOB)}
        v_cmp_gt_u32 vcc, 16, v0
        v_cndmask_b32 {V(vPW)}, v25, v24, vcc
        v_lshlrev_b32 v26, 7, v0
        v_cndmask_b32 v26, v25, v26, vcc
        v_cmp_gt_u32 vcc, 20, v0
        v_cndmask_b32 {V(vPQ)}, v25, v24, vcc
        s_lshl_b32 {S(sPW)}, s6, 19
        s_lshl_b32 {S(sT3)}, {S(sJ)}, 16
        s_add_u32 {S(sPW)}, {S(sPW)}, {S(sT3)}
        s_add_u32 {S(sPW)}, {S(sPW)}, {S(sT2)}
        s_lshl_b32 {S(sT3)}, s2, 2
        s_add_u32 {S(sT3)}, {S(sT3)}, {S(sWV)}
        s_lshl_b32 {S(sT3)}, {S(sT3)}, 11
        v_add_u32 v90, {S(sT3)}, v26
        s_add_u32 s6, {S(sPW)}, {64*8192}
        buffer_load_dword {V(vDum)}, v90, {sCKV}, 0 offen
        buffer_load_dword {V(vDum)}, {V(vPW)}, {sWU}, s6 offen{nt('w')}
        """)
    first = dmaC(0) + dmaW(0) + dmaC(1)[:NC1]
    for k, d in enumerate(first + [None]):
        if k == min(PFP, len(first)): pf_setup()
        if k == 8: build_rest()
        if d: b(list(d))
    b(f"""
    s_lshl_b32 {S(sQb)}, {S(sWV)}, 18
    s_add_u32 {S(sQb)}, {S(sQb)}, {S(sT2)}
    s_getpc_b64 s[4:5]
    {name}_pc1:
    s_lshr_b32 {S(sT)}, s2, 3
    s_lshl_b32 {S(sT)}, {S(sT)}, 2
    s_add_u32 {S(sT)}, {S(sT)}, {S(sWV)}
    s_lshl_b32 {S(sT)}, {S(sT)}, 10
    v_and_b32 v91, 7, v0
    v_lshl_add_u32 v91, v91, 7, {S(sT)}
    v_min_u32 v91, code_end - {name}_pc1 - 4, v91
    """)
    def pfW(t): return toI([f"s_add_u32 {S(sT2)}, {S(sPW)}, {(2*t + 1)*64*8192}", f"buffer_load_dword {V(vDum)}, {V(vPW)}, {sWU}, {S(sT2)} offen{nt('w')}"])
    def pfQ(t):
        return toI([f"s_lshl_b32 {S(sT2)}, {S(sJ)}, 2", f"s_add_u32 {S(sT2)}, {S(sT2)}, {S(sWV)}", f"s_mul_i32 {S(sT2)}, {S(sT2)}, {10*8192}",
                    f"s_lshl_b32 s5, {S(sHD)}, 8", f"s_add_u32 {S(sT2)}, {S(sT2)}, s5", f"s_add_u32 {S(sT2)}, {S(sT2)}, {t*320*8192}",
                    f"buffer_load_dword {V(vDum)}, {V(vPQ)}, {sWQ}, {S(sT2)} offen{nt('q')}"])
    pf0 = [toI([f"buffer_load_dword {V(vDum)}, v90, {sCKV}, 0 offen"]), pfW(0), toI([f"global_load_dword {V(vDum)}, v91, s[4:5]"])]
    b(f"""
    s_lshr_b32 {S(sCG)}, s2, 2
    s_and_b32 {S(sKq)}, s2, 3
    s_lshl_b32 {S(sMB)}, {S(sWV)}, 10
    s_add_u32 {S(sMB)}, {S(sMB)}, {MB + 20480}
    v_lshrrev_b32 v24, 3, v0
    v_mul_u32_u24 v24, 7680, v24
    v_and_b32 v25, 7, v0
    v_lshl_add_u32 {V(vMo)}, v25, 4, v24
    v_lshlrev_b32 v89, 2, v0
    """)
    def m_c(): return toI([f"s_mul_i32 {S(sT2)}, {S(sKq)}, 320", f"buffer_load_dword v17, v89, {sC}, {S(sT2)} offen", f"buffer_load_dword v18, v89, {sC}, {S(sT2)} offen offset:256"])
    def m_dma():
        o = [f"s_lshl_b32 {S(sT3)}, {S(sKq)}, 2", f"s_add_u32 {S(sT3)}, {S(sT3)}, {S(sWV)}", f"s_mul_i32 {S(sT3)}, {S(sT3)}, {40 * 7680}",
             f"s_lshl_b32 {S(sT2)}, {S(sCG)}, 7", f"s_add_u32 {S(sT3)}, {S(sT3)}, {S(sT2)}", f"s_cmp_lt_u32 {S(sCG)}, 60", f"s_cselect_b32 {S(sT3)}, {S(sT3)}, {hex(OOB)}",
             f"s_mul_i32 s7, {S(sWV)}, 5120"]
        for i in range(5):
            o += [f"s_add_u32 m0, s7, {MB + i*1024}", f"s_add_u32 {S(sT2)}, {S(sT3)}, {i*8*7680}",
                  I(f"buffer_load_dwordx4 {V(vMo)}, {sWM}, {S(sT2)} offen{nt('m')} lds", "m")]
        return toI(o)
    sK1, sV1 = 72, 74
    b(f"""
    v_lshlrev_b32 {V(vL16)}, 4, v0
    v_lshrrev_b32 v24, 1, v22
    v_xor_b32 v24, v24, v21
    v_lshlrev_b32 v24, 4, v24
    v_lshl_add_u32 v24, v22, 7, v24
    s_and_b32 {S(sT)}, {S(sWV)}, 1
    s_lshl_b32 {S(sT)}, {S(sT)}, 13
    s_add_u32 {S(sT)}, {S(sT)}, 65536
    v_add_u32 {V(vRC0)}, {S(sT)}, v24
    v_xor_b32 {V(vRC1)}, 64, {V(vRC0)}
    v_lshrrev_b32 v26, 2, v22
    v_and_b32 v24, 1, v21
    v_lshl_add_u32 v24, v24, 2, v26
    v_lshl_add_u32 v26, v21, 3, v26
    v_lshlrev_b32 v26, 8, v26
    v_and_b32 v25, 3, v0
    v_lshl_add_u32 v26, v25, 3, v26
    v_lshl_add_u32 v26, v24, 5, v26
    s_lshr_b32 {S(sT)}, {S(sWV)}, 1
    s_lshl_b32 {S(sT)}, {S(sT)}, 7
    v_xor_b32 {V(vRW)}, {S(sT)}, v26
    v_xor_b32 {V(vRW+1)}, 32, {V(vRW)}
    v_xor_b32 {V(vRW+2)}, 64, {V(vRW)}
    v_xor_b32 {V(vRW+3)}, 96, {V(vRW)}
    s_cmp_ge_u32 {S(sWV)}, 2
    s_cselect_b32 {S(sHb)}, {S(sBLK2)}, {S(sBLK)}
    s_lshl_b32 {S(sT2)}, {S(sHb)}, 7
    s_add_u32 {S(sT2)}, {S(sT2)}, {WS_FLG + FL_H*128}
    v_mov_b32 v11, {S(sT2)}
    s_lshl_b32 {S(sHb)}, {S(sHb)}, 1
    s_and_b32 {S(sT2)}, {S(sWV)}, 1
    s_add_u32 {S(sHb)}, {S(sHb)}, {S(sT2)}
    s_mul_i32 {S(sHb)}, {S(sHb)}, {20*4096}
    s_add_u32 {S(sHb)}, {S(sHb)}, {WS_H}
    s_lshl_b32 {S(sKb)}, {S(sHD)}, 19
    s_add_u32 {S(sVb)}, {S(sKb)}, {WS_V}
    s_add_u32 {S(sKb)}, {S(sKb)}, {WS_K}
    s_lshr_b32 {S(sT3)}, {S(sWV)}, 1
    s_mul_i32 {S(sK1)}, {S(sT2)}, {16384 + 8192}
    s_lshl_b32 {S(sT)}, {S(sT3)}, 11
    s_add_u32 {S(sK1)}, {S(sK1)}, {S(sT)}
    s_xor_b32 {S(sK1+1)}, {S(sK1)}, 16384
    s_mul_i32 {S(sV1)}, {S(sT2)}, {16384 + 1024}
    s_lshl_b32 {S(sT)}, {S(sT3)}, 13
    s_add_u32 {S(sV1)}, {S(sV1)}, {S(sT)}
    s_xor_b32 {S(sV1+1)}, {S(sV1)}, 16384
    """)
    vFlag, vOne, vPoll, vZero, vXo, vHo, vFlagW = 19, 20, 18, 17, 21, 22, 16
    b(f"""
    v_mov_b32 {V(vFlag)}, {hex(OOB)}
    s_cmp_eq_u32 {S(sWV)}, 0
    s_cselect_b32 {S(sT)}, 0, {hex(OOB)}
    v_mov_b32 {V(vFlagW)}, {hex(OOB)}
    v_writelane_b32 {V(vFlag)}, {S(sT)}, 0
    v_writelane_b32 {V(vFlagW)}, 0, 0
    v_mov_b32 {V(vOne)}, 1
    @waitvm W0
    s_barrier
    """)
    if not fine: T.stamp(b, "C0")
    def m_silu():
        o = ["v_lshlrev_b32 v24, 16, v17", "v_and_b32 v25, 0xffff0000, v17", "v_lshlrev_b32 v26, 16, v18", "v_and_b32 v27, 0xffff0000, v18"]
        o += [f"v_mul_f32 {V(28+k)}, {FH(-LOG2E)}, {V(24+k)}" for k in range(4)]
        o += [f"v_exp_f32 {V(28+k)}, {V(28+k)}" for k in range(4)]
        o += [f"v_add_f32 {V(28+k)}, 1.0, {V(28+k)}" for k in range(4)]
        o += [f"v_rcp_f32 {V(28+k)}, {V(28+k)}" for k in range(4)]
        o += [f"v_mul_f32 {V(24+k)}, {V(24+k)}, {V(28+k)}" for k in range(4)]
        o += ["v_cvt_pk_bf16_f32 v24, v24, v25", "v_cvt_pk_bf16_f32 v25, v26, v27", f"v_lshl_add_u32 v26, v0, 2, {S(sMB)}",
              "ds_write_b32 v26, v24", "ds_write_b32 v26, v25 offset:256",
              "v_lshrrev_b32 v27, 4, v0", "v_bfe_u32 v28, v0, 2, 2", "v_lshl_add_u32 v28, v27, 3, v28", "v_lshlrev_b32 v28, 7, v28",
              "v_and_b32 v29, 3, v0", "v_lshl_add_u32 v28, v29, 3, v28", f"s_lshl_b32 s6, {S(sWV)}, 5", f"s_add_u32 s6, s6, {MB}",
              "v_add_u32 v28, s6, v28", f"v_lshl_add_u32 v27, v27, 4, {S(sMB)}"]
        o += [f"ds_read_b128 {V(32+4*ks,4)}, v27 offset:{ks*64}" for ks in range(5)]
        return toI(o)
    def m_reads(): return toI([f"ds_read_b64_tr_b16 {V(52+4*ks+2*hf,2)}, v28 offset:{ks*4096 + hf*512}" for ks in range(5) for hf in range(2)])
    def m_mfma(): return [MF(V(72,4), V(32+4*ks,4), V(52+4*ks,4), V(72,4) if ks else "0") for ks in range(5)]
    def m_store():
        return toI([f"s_lshl_b32 {S(sT3)}, {S(sCG)}, 2", f"s_add_u32 {S(sT3)}, {S(sT3)}, {S(sWV)}", f"s_lshl_b32 {S(sT3)}, {S(sT3)}, 6",
                    f"s_add_u32 {S(sT3)}, {S(sT3)}, {S(sKq)}", f"s_lshl_b32 {S(sT3)}, {S(sT3)}, 2", f"s_add_u32 {S(sT3)}, {S(sT3)}, {WS_MP}",
                    "v_and_b32 v29, 15, v0", "v_lshlrev_b32 v29, 4, v29"]) + [I(f"buffer_store_dword v72, v29, {sWS}, {S(sT3)} offen sc1", "ms")]
    def rnd(r): return [f"v_cvt_pk_bf16_f32 {V(r)}, {V(r)}, {V(r)}", f"v_lshlrev_b32 {V(r)}, 16, {V(r)}"]
    def sum4(r): return [f"v_add_f32 {V(r)}, {V(r)}, {V(r+1)}", f"v_add_f32 {V(r+2)}, {V(r+2)}, {V(r+3)}", f"v_add_f32 {V(r)}, {V(r)}, {V(r+2)}"] + rnd(r)
    def acc(o, kt): return A(32*o + 4*kt, 4) if o < 3 else V(96 + 32*(o-3) + 4*kt, 4)
    def Cf(buf, kt, ks): return A(96 + 64*buf + 8*kt + 4*ks, 4)
    def rdC(s, kt, ks): return f"ds_read_b128 {Cf(s & 1, kt, ks)}, {V(vRC1 if ks else vRC0)} offset:{(s & 1)*32768 + (kt >> 2)*16384 + (kt & 3)*2048}"
    def Wf(buf, ks): return 224 + 8*buf + 4*ks
    def rdW(s, o): return [f"ds_read_b64_tr_b16 {A(Wf(o & 1, ks) + 2*hf, 2)}, {V(vRW + (o & 3))} offset:{(s & 1)*32768 + (o >> 2)*16384 + ks*8192 + hf*1024}"
                           for ks in range(2) for hf in range(2)]
    b(rdW(0, 0))
    for kt in range(5):
        for ks in range(2): b(rdC(0, kt, ks))
    T.stamp(b, "kvstart")

    def spin(lab, vreg, soff, target, sc_=None):
        b(f"@need {V(vreg)}")
        b(f"v_cmp_gt_u32 vcc, {target}, {V(vreg)}")
        b(f"s_cbranch_vccz {lab}_ok")
        sts = b.flush()
        b(f"s_mov_b32 s3, 0")
        b.label(f"{lab}_spin")
        b("s_sleep 4")
        b(soff)
        b(f"s_add_u32 s3, s3, 1")
        b(f"s_cmp_gt_u32 s3, {SPIN_MAX}")
        b("s_waitcnt vmcnt(0)")
        b(f"s_cbranch_scc1 {lab}_ok")
        b(f"v_cmp_gt_u32 vcc, {target}, {V(vreg)}")
        b(f"s_cbranch_vccnz {lab}_spin")
        s2 = b.flush()
        b.label(f"{lab}_ok", sts + s2)
    def emit_split(sc, hooks):
        cur = []
        for i in sc.emit():
            if i.kind == "pseudo" and i.op == "@mark":
                b(cur); cur = []; hooks[i.t.split()[1]]()
            else: cur.append(i)
        b(cur)

    XP, XF, MA, MS = 76, 32, 52, 72
    HP = 52
    poll_mod = f"buffer_load_dword {V(vPoll)}, {V(vZero)}, {sDBG}, 0 offen sc1"
    poll_mo2 = f"buffer_load_dword {V(vPoll)}, {V(vZero)}, {sWS}, 0 offen sc1"
    def h_setup():
        return toI([f"""
        v_and_b32 v92, 31, v0
        v_lshrrev_b32 v93, 5, v0
        v_mul_u32_u24 {V(vXo)}, 1280, v93
        v_lshl_add_u32 {V(vXo)}, v92, 3, {V(vXo)}
        v_lshrrev_b32 v94, 1, v92
        v_mul_u32_u24 {V(vHo)}, 144, v94
        v_lshl_add_u32 {V(vHo)}, v93, 4, {V(vHo)}
        v_and_b32 v94, 1, v92
        v_lshl_add_u32 {V(vHo)}, v94, 3, {V(vHo)}
        s_lshl_b32 s6, {S(sWV)}, 5
        s_add_u32 s6, s6, {MB + 8192}
        v_add_u32 {V(vHo)}, s6, {V(vHo)}
        v_lshlrev_b32 v95, 4, v92
        v_add_u32 v95, {MB}, v95
        """])
    def h_loadx():
        o = [f"s_lshl_b32 {S(sT2)}, s2, 2", f"s_add_u32 {S(sT2)}, {S(sT2)}, {S(sWV)}", f"s_mul_i32 {S(sT2)}, {S(sT2)}, 2560"]
        o += [f"buffer_load_dwordx2 {V(XP+2*m,2)}, {V(vXo)}, {sX}, {S(sT2)} offen offset:{256*m}" for m in range(5)]
        return toI(o)
    def mp_load():
        o = [f"s_lshl_b32 {S(sT3)}, {S(sWV)}, 10"]
        for i in range(5): o += [f"s_add_u32 {S(sT2)}, {S(sT3)}, {WS_MP + 4096*i}", f"buffer_load_dwordx4 {V(52+4*i,4)}, {V(vL16)}, {sWS}, {S(sT2)} offen sc1"]
        return toI(o)
    def mp_sum():
        o = [f"s_cmp_ge_u32 {S(sWV)}, 2", "s_cselect_b32 s6, 1.0, 0", f"s_cmp_ge_u32 {S(sWV)}, 2", f"s_cselect_b32 s7, 1.0, {FH(QSCALE)}",
             f"s_lshl_b32 {S(sT3)}, {S(sWV)}, 8", f"s_add_u32 {S(sT3)}, {S(sT3)}, {MB}", f"v_lshl_add_u32 v94, v0, 2, {S(sT3)}"]
        for i in range(5):
            r = 52 + 4*i; o += sum4(r)
            if i < 2: o.append(f"v_mul_f32 {V(r)}, {FH(QSCALE)}, {V(r)}")
            elif i == 2: o += [f"v_add_f32 {V(r)}, s6, {V(r)}"] + rnd(r) + [f"v_mul_f32 {V(r)}, s7, {V(r)}"]
            else: o += [f"v_add_f32 {V(r)}, 1.0, {V(r)}"] + rnd(r)
            o.append(I(f"ds_write_b32 v94, {V(r)} offset:{1024*i}", "mw"))
        return toI(o)
    def mod_read(): return toI([f"ds_read_b128 {V(r+4*m,4)}, v95 offset:{off + 512*m}" for m in range(5) for r, off in ((MA, 2560), (MS, 0))])
    def red32(r, t):
        o = [f"v_add_f32 {V(r)}, {V(r)}, {V(r)} row_ror:{k}" for k in (1, 2, 4, 8)]
        o += [f"v_mov_b32 {V(t)}, {V(r)}", f"v_permlane16_swap_b32 {V(r)}, {V(t)}", f"v_add_f32 {V(r)}, {V(r)}, {V(t)}"]
        return o
    def h_stats():
        o = []
        for k in range(10):
            o += [f"v_lshlrev_b32 {V(XF+2*k)}, 16, {V(XP+k)}", f"v_and_b32 {V(XF+2*k+1)}, 0xffff0000, {V(XP+k)}"]
        o += [f"v_add_f32 v92, {V(XF)}, {V(XF+1)}", f"v_add_f32 v93, {V(XF+2)}, {V(XF+3)}"]
        for k in range(4, 20): o.append(f"v_add_f32 {V(92 + (k & 1))}, {V(92 + (k & 1))}, {V(XF+k)}")
        o.append("v_add_f32 v92, v92, v93")
        o += red32(92, 93)
        o.append(f"v_mul_f32 v92, {FH(1/640)}, v92")
        for k in range(20): o.append(f"v_sub_f32 {V(XF+k)}, {V(XF+k)}, v92")
        o2 = [f"v_mul_f32 v92, {V(XF)}, {V(XF)}", f"v_mul_f32 v93, {V(XF+1)}, {V(XF+1)}"]
        for k in range(2, 20): o2.append(f"v_fmac_f32 {V(92 + (k & 1))}, {V(XF+k)}, {V(XF+k)}")
        o2.append("v_add_f32 v92, v92, v93")
        o2 += red32(92, 93)
        o2 += [f"v_mov_b32 v93, {FH(1e-5)}", f"v_fmac_f32 v93, {FH(1/640)}, v92", "v_rsq_f32 v93, v93", f"v_mul_f32 v93, {FH(QSCALE)}, v93"]
        for k in range(20): o2.append(f"v_mul_f32 {V(XF+k)}, {V(XF+k)}, v93")
        return toI(o), toI(o2)
    sHs = 61
    def h_addr():
        return toI([f"s_lshr_b32 {S(sHs)}, s2, 4", f"s_lshl_b32 {S(sHs)}, {S(sHs)}, 1", f"s_bfe_u32 {S(sT3)}, s2, 0x10001",
              f"s_add_u32 {S(sHs)}, {S(sHs)}, {S(sT3)}", f"s_mul_i32 {S(sHs)}, {S(sHs)}, {20*4096}",
              f"s_bfe_u32 {S(sT3)}, s2, 0x20002", f"s_lshl_b32 {S(sT3)}, {S(sT3)}, 10", f"s_add_u32 {S(sHs)}, {S(sHs)}, {S(sT3)}",
              f"s_and_b32 {S(sT3)}, s2, 1", f"s_lshl_b32 {S(sT3)}, {S(sT3)}, 7", f"s_add_u32 {S(sHs)}, {S(sHs)}, {S(sT3)}",
              f"s_add_u32 {S(sHs)}, {S(sHs)}, {S(sLw)}", f"s_add_u32 {S(sHs)}, {S(sHs)}, {WS_H}"])
    def h_fin():
        o = []
        for m in range(5):
            for k in range(4*m, 4*m + 4): o.append(f"v_fma_f32 {V(XF+k)}, {V(XF+k)}, {V(MA+k)}, {V(MS+k)}")
            for k in (2*m, 2*m + 1): o.append(f"v_cvt_pk_bf16_f32 {V(24+(k & 3))}, {V(XF+2*k)}, {V(XF+2*k+1)}")
            o.append(f"ds_write_b64 {V(vHo)}, {V(24 + 2*(m & 1), 2)} offset:{2304*m}")
        return toI(o)
    def h_back():
        return toI([f"s_mul_i32 s6, {S(sWV)}, 1152", f"s_add_u32 s6, s6, {MB + 8192}", f"v_add_u32 v92, s6, {V(vL16)}",
                    "v_lshrrev_b32 v93, 3, v0", "v_lshl_add_u32 v92, v93, 4, v92",
                    "v_lshrrev_b32 v93, 5, v0", "v_lshlrev_b32 v93, 12, v93", "v_bfe_u32 v94, v0, 3, 2", "v_lshl_add_u32 v93, v94, 8, v93",
                    "v_and_b32 v94, 7, v0", "v_lshl_add_u32 v93, v94, 4, v93"]), toI([f"ds_read_b128 {V(32+4*k,4)}, v92 offset:{4608*k}" for k in range(3)])
    def h_store():
        o = []
        for k in range(3):
            o.append(f"s_add_u32 {S(sT3)}, {S(sHs)}, {32768*k}")
            if k == 2: o += [f"s_cmp_lt_u32 {S(sWV)}, 2", f"s_cselect_b32 {S(sT3)}, {S(sT3)}, {hex(OOB)}"]
            o.append(I(f"buffer_store_dwordx4 {V(32+4*k,4)}, v93, {sWS}, {S(sT3)} offen sc1", "hs"))
        return toI(o)
    def f_load():
        return toI([f"s_lshl_b32 {S(sT2)}, s2, 8", f"s_add_u32 {S(sT2)}, {S(sT2)}, {WS_MP + 1280*16}", "v_and_b32 v28, 15, v0", "v_lshlrev_b32 v29, 4, v28",
                    f"buffer_load_dwordx4 v[24:27], v29, {sWS}, {S(sT2)} offen sc1"])
    def f_fin():
        return toI(["s_sub_u32 s6, s2, 80", "s_cmp_lt_u32 s6, 40", "s_cselect_b32 s6, 1.0, 0", "s_lshl_b32 s7, s2, 6", f"s_add_u32 s7, s7, {WS_MOD + 1280*4}",
                    "s_cmp_lt_u32 s2, 160", f"s_cselect_b32 s7, s7, {hex(OOB)}", f"s_cmp_eq_u32 {S(sWV)}, 0", f"s_cselect_b32 s7, s7, {hex(OOB)}"]
                   + sum4(24) + ["v_add_f32 v24, s6, v24"] + rnd(24) + ["v_lshlrev_b32 v29, 2, v28", f"buffer_store_dword v24, v29, {sWS}, s7 offen sc1",
                      "s_sub_u32 s6, s2, 40", "s_cmp_lt_u32 s6, 40", "s_cselect_b32 s7, 64, 0", "s_cmp_lt_u32 s6, 40", "s_cselect_b32 s5, 0, 40",
                      "s_sub_u32 s5, s6, s5", "s_lshr_b32 s4, s5, 1", "s_lshl_b32 s4, s4, 7", "s_add_u32 s7, s7, s4", "s_and_b32 s5, s5, 1", "s_lshl_b32 s5, s5, 3",
                      "s_add_u32 s7, s7, s5", f"s_add_u32 s7, s7, {WS_MODB}", "s_cmp_lt_u32 s6, 80", f"s_cselect_b32 s7, s7, {hex(OOB)}",
                      f"s_cmp_eq_u32 {S(sWV)}, 0", f"s_cselect_b32 s7, s7, {hex(OOB)}",
                      "v_lshrrev_b32 v29, 2, v28", "v_lshlrev_b32 v29, 4, v29", "v_and_b32 v28, 3, v28", "v_lshl_add_u32 v29, v28, 1, v29",
                      f"buffer_store_short_d16_hi v24, v29, {sWS}, s7 offen sc1"])
    def seq(sc, ins, start): return sc.seq(ins, start)
    poll_h = f"buffer_load_dword {V(vPoll)}, v11, {sWS}, 0 offen sc1"
    def Hf(buf, ks, qt): return A(96 + 64*buf + 16*ks + 4*qt, 4)
    def ldH(s):
        o = []
        for ks in range(4):
            o.append(f"s_add_u32 {S(sT2)}, {S(sHb)}, {(4*s + ks)*4096}")
            for qt in range(4): o.append(f"buffer_load_dwordx4 {Hf(s & 1, ks, qt)}, {V(vL16)}, {sWS}, {S(sT2)} offen offset:{qt*1024} sc1")
        return toI(o)
    tmpi = [0]
    def rno(t): return int(t[2:t.index(":")])
    def pack(t0, t1, dst=None):
        o = []
        def src(t, d=None):
            if t[0] == "v": return rno(t)
            if d is None: d = 24 + 4 * (tmpi[0] % 8); tmpi[0] += 1
            for k in range(4): o.append(f"v_accvgpr_read_b32 {V(d+k)}, {A(rno(t)+k)}")
            return d
        r0 = src(t0, dst); r1 = src(t1)
        cv = lambda d, s: f"v_cvt_pk_bf16_f32 {V(d)}, {V(s)}, {V(s+1)}"
        if t0[0] == "a" and t1[0] == "v":
            o += [cv(r1+3, r1+2), cv(r1+2, r1), cv(r1, r0), cv(r1+1, r0+2)]; return toI(o), r1
        o += [cv(r0, r0), cv(r0+1, r0+2), cv(r0+2, r1), cv(r0+3, r1+2)]; return toI(o), r0
    sG = 36
    def kvstore(reg, isv, u, pl, off):
        return toI([f"s_add_u32 {S(sT3)}, {S(sG + 4*isv + 2*u + pl)}, {off}"]) + [I(f"buffer_store_dwordx4 {reg}, {V(vL16)}, {sWS}, {S(sT3)} offen{KVM}", f"kv{u}")]
    def QWf(buf, ks): return (240 if buf == 0 else 224) + 4*ks
    def rdQW(s, dt): return [f"ds_read_b64_tr_b16 {A(QWf(dt & 1, ks) + 2*hf, 2)}, {V(vRW + dt)} offset:{(s % 3 == 1)*32768 + ks*8192 + hf*1024}"
                             for ks in range(4) for hf in range(2)]
    st1 = []; st0 = []; kwr = []; vwr = []; vpack = []; park = []; vw1 = []
    vKw, vVw = (21, 22), (17, 19)
    def flag(off_ins, srd, imm, vf=vFlag): return toI(off_ins + [f"buffer_atomic_add {V(vOne)}, {V(vf)}, {srd}, {S(sT2)} offen offset:{imm}"])
    def paced(sc, groups, g0, g1):
        g = g0
        for k, gr in enumerate(groups):
            t = max(g, g0 + (k * (g1 - g0)) // len(groups))
            gr = toI(list(gr))
            if EXACT and gr[-1].kind == "vmem":
                e = seq(sc, gr[:-1], max(g, t - len(gr) + 1)) + 1 if len(gr) > 1 else t
                g = sc.putw(gr[-1], max(e, t), max(e, t) + 1) + 1
                sc.seqs.append(gr)
            else: g = seq(sc, gr, t) + 1
        return g
    def vgroups(ins):
        out = [[]]
        for i in ins:
            out[-1].append(i)
            if i.kind == "vmem": out.append([])
        assert not out[-1]; return out[:-1]
    def kv_dma(s):
        d = []
        if s < 7: d += dmaW(s + 1)
        if s < 6: d += dmaC(s + 2)
        if s == 6: d += dmaQ(0)
        if s == 7: d += dmaQ(1)
        return d
    NT = 3
    for s in range(8):
        mf = []
        for o in range(8):
            for kt in range(8):
                for ks in range(2):
                    w = A(Wf(o & 1, ks), 4); c = Cf(s & 1, kt, ks)
                    cin = "0" if (s == 0 and ks == 0) else acc(o, kt)
                    mf.append(MF(acc(o, kt), w, c, cin) if o < 4 else MF(acc(o, kt), c, w, cin))
        sc = Sched(mf)
        if s == 0:
            for n in range(10, 16): sc.put(rdC(0, n >> 1, n & 1), n - 10)
        for o in range(7):
            for k, r in enumerate(rdW(s, o + 1)): sc.put(r, 16*o + k)
            sc.raw(f"@need {A(Wf((o+1) & 1, 0), 8)}", 16*o + 15, "pre")
        d = kv_dma(s)
        sc.raw(([f"@waitvm {d[-1][2].tag}"] if s < 7 else []) + ["s_waitcnt lgkmcnt(0)", "s_barrier"], 111)
        if s < 7:
            for k, r in enumerate(rdW(s + 1, 0)): sc.put(r, 112 + k)
            sc.raw(f"@need {A(Wf(0, 0), 8)}", 127, "pre")
            for n in range(16): sc.put(rdC(s + 1, n >> 1, n & 1), (5 + 6*n) if s else (BA + 1 + ((106 - BA)*n) // 16))
        hooks = {}
        if s == 0:
            sc.raw(["@waitvm C1", "s_waitcnt lgkmcnt(0)", "s_barrier"], BA)
            sc.raw([x for gr in dmaC(1)[NC1:] for x in gr], -1)
            g = paced(sc, d[:8], 10, BA - 2); assert g <= BA + 2, g
            g0 = paced(sc, d[8:], BA + 1, BA + 36)
            g0 = paced(sc, pf0[2:] + vgroups(m_c()) + (vgroups(m_dma()) if MS0 else []), g0, 126 if MS0 else 110); assert g0 < 129, g0
            seq(sc, h_setup(), 20)
        elif s < 7: g0 = paced(sc, d[(0 if s == 1 and MS0 else NT):], 0, END + (10 if s == 1 and MS0 else 0))
        if s < 7 and not (s == 0 and MS0): paced(sc, kv_dma(s + 1)[:NT], 116, 127)
        def m_part(g):
            g = seq(sc, m_reads(), g)
            sc.raw(m_mfma(), g + 6)
            return seq(sc, toI([f"v_mov_b32 {V(vZero)}, 0", "v_and_b32 v90, 31, v0", "v_lshlrev_b32 v90, 7, v90", f"s_lshl_b32 s6, s2, 12",
                             f"s_cmp_lt_u32 s2, 80", f"s_cselect_b32 s6, s6, {hex(OOB)}",
                             f"s_cmp_eq_u32 {S(sWV)}, 0", f"s_cselect_b32 s6, s6, {hex(OOB)}",
                             f"s_add_u32 s6, s6, {WS_FLG}", f"buffer_store_dword {V(vZero)}, v90, {sWS}, s6 offen sc1"]) + m_store(), g + 2)
        def m_arrive(gm):
            sc.raw(["@waitvm ms", "s_barrier"], gm)
            return seq(sc, flag([f"s_lshl_b32 {S(sT2)}, {S(sKq)}, 6", f"s_cmp_lt_u32 s2, 80", f"s_cselect_b32 {S(sT2)}, {S(sT2)}, {hex(OOB)}"], sDBG, 0), gm + 1)
        if s == 1:
            g = seq(sc, m_silu(), 4)
            if MS0:
                sc.raw(["@waitvm m", "s_barrier"], g + 1)
                paced(sc, [pfW(t) for t in PFA], g0, g0 + 4*len(PFA))
                assert m_part(g + 2) < 128
            else: assert paced(sc, [pfW(1)] + vgroups(m_dma()), g0, 112) < 117
        if s == 2:
            if MS0:
                g = m_arrive(MW)
                assert paced(sc, vgroups(h_loadx()) + [pfW(t) for t in (1, 2, 3) if t not in PFA], max(g, g0) + 1, g0 + 26) < 111
            else:
                sc.raw(["@waitvm m", "s_barrier"], 30)
                assert m_part(31) < 80
                assert paced(sc, [pfW(2)] + vgroups(h_loadx()), max(g0, 80), 110) < 114
                m_arrive(113)
        if s == 3:
            seq(sc, [f"v_and_b32 {V(vZero)}, 3, v0", f"v_lshlrev_b32 {V(vZero)}, 6, {V(vZero)}"], 0)
            gp = sc.put(poll_mod, PMG); assert gp < PMG + 8
            sc.raw("@mark pm", gp + 30, "post2"); hooks["pm"] = lambda: spin(name + "_pm", vPoll, poll_mod, 20)
            fl = flag([f"s_and_b32 {S(sT2)}, {S(sCG)}, 7", f"s_lshl_b32 {S(sT2)}, {S(sT2)}, 7", f"s_add_u32 {S(sT2)}, {S(sT2)}, {WS_FLG + FL_M*128}",
                       f"s_sub_u32 s5, s2, 80", f"s_cmp_lt_u32 s5, 160", f"s_cselect_b32 {S(sT2)}, {S(sT2)}, {hex(OOB)}"], sWS, 0)
            assert paced(sc, vgroups(mp_load()) + [fl], gp + 31, min(gp + 56, 126)) < 129
            assert seq(sc, h_addr(), 0) < gp + 30
            assert seq(sc, h_stats()[0] + h_stats()[1], 4) < 128
        if s == 4:
            paced(sc, [pfQ(0)] + ([pfQ(1)] if PQ4 else []), g0, g0 + 2)
            g = seq(sc, mp_sum(), MSG)
            sc.raw(["@waitlg mw", "s_barrier"], g + 4, "pre")
            gr = g + 5; mr = mod_read(); hf_ = h_fin(); pos = []
            for m in range(5): gr = seq(sc, mr[2*m : 2*m + 2], gr) + 1; pos.append(gr)
            for m in range(5): g = seq(sc, hf_[7*m : 7*m + 7], max(g + 1, pos[m] + 5))
            assert g < 108, g
            hb = h_back(); assert seq(sc, hb[0], 60) < 111
            seq(sc, hb[1], 116)
        if s == 5:
            g = paced(sc, vgroups(h_store()), 2, 30)
            seq(sc, [f"v_and_b32 {V(vZero)}, 7, v0", f"v_lshlrev_b32 {V(vZero)}, 7, {V(vZero)}", f"v_add_u32 {V(vZero)}, {WS_FLG + FL_M*128}, {V(vZero)}"], 30)
            assert sc.put(poll_mo2, 40) < 60
            fl = flag([f"s_lshr_b32 {S(sT2)}, s2, 4", f"s_lshl_b32 {S(sT2)}, {S(sT2)}, 7", f"s_add_u32 {S(sT2)}, {S(sT2)}, {WS_FLG + FL_H*128}", "@waitvm hs"], sWS, 0, vFlagW)
            assert paced(sc, [fl] + ([] if PQ4 else [pfQ(1)]), HA or g0, (HA or g0) + 8) < 100
            sc.raw("@mark p2", 111); hooks["p2"] = lambda: spin(name + "_p2", vPoll, poll_mo2, 20)
        if s == 6:
            assert paced(sc, dmaQ(2), g0, 112) < 117
            seq(sc, f_load(), 2)
            sc.put(poll_h, 126, force=True)
            g = seq(sc, f_fin(), 40)
            ga = []
            for isv, (base, rel) in enumerate(((sKb, sK1), (sVb, sV1))):
                for u, blk in enumerate((sBLK, sBLK2)):
                    ga += [f"s_lshl_b32 {S(sT3)}, {S(blk)}, 15", f"s_add_u32 {S(sT3)}, {S(sT3)}, {S(base)}"]
                    ga += [f"s_add_u32 {S(sG + 4*isv + 2*u + pl)}, {S(sT3)}, {S(rel + pl)}" for pl in range(2)]
            ga += [f"v_add_u32 {V(vKw[pl])}, {S(sK1+pl)}, {V(vL16)}" for pl in range(2)]
            ga += [f"v_add_u32 {V(vVw[pl])}, {S(sV1+pl)}, {V(vL16)}" for pl in range(2)] + [f"v_add_u32 {V(vVw[pl])}, 65536, {V(vVw[pl])}" for pl in range(2)]
            seq(sc, ga, 76)
        if s == 7:
            g = paced(sc, d[NT:], 0, PHG - 2)
            sc.raw("@mark ph", PHG, "post2"); hooks["ph"] = lambda: spin(name + "_ph", vPoll, poll_h, 64)
            assert paced(sc, vgroups(ldH(0)), PHG + 1, 104) < 112
            qa = [f"s_lshr_b32 s6, {S(sWV)}, 1", f"s_lshl_b32 s6, s6, 7", f"s_add_u32 s6, s6, 65536", f"v_xor_b32 {V(vRW)}, s6, {V(vRW)}"]
            qa += [f"v_xor_b32 {V(vRW+n)}, {32*n}, {V(vRW)}" for n in range(1, 8)]
            assert seq(sc, toI(qa), 101) < 112
            for k, r in enumerate(rdQW(0, 0)): sc.put(r, 112 + k)
            g = 0
            for kt in range(8):
                g = seq(sc, [f"v_accvgpr_read_b32 {V(64+4*kt+k)}, {A(4*kt+k)}" for k in range(4)]
                        + [f"v_cvt_pk_bf16_f32 {V(64+4*kt+k)}, {V(64+4*kt+2*k)}, {V(65+4*kt+2*k)}" for k in range(2)], max(g, 2*kt + 6))
            for a in range(2):
                for kt in range(8):
                    u, pl = kt >> 2, (kt >> 1) & 1
                    ins, r = pack(acc(2*a, kt), acc(2*a+1, kt), 64 + 4*kt if a == 0 else None)
                    if a == 0: ins = ins[4:8] + ins[10:]
                    off = ((kt & 1)*4 + a)*1024
                    kwr.append(f"ds_write_b128 {V(vKw[pl])}, {V(r,4)} offset:{u*32768 + off}")
                    if a == 0 and u == 0:
                        park += [f"v_accvgpr_write_b32 {A(4*kt+k)}, {V(r+k)}" for k in range(4)]
                        st0.append(kvstore(A(4*kt, 4), 0, u, pl, off))
                    elif a == 0 and kt - 4 < S7: ins += kvstore(V(r, 4), 0, u, pl, off)
                    else: (st1 if u else st0).append(kvstore(V(r, 4), 0, u, pl, off))
                    g = seq(sc, ins, max(g, 16*(2*a+1) + 2*kt + 6))
            for o in range(4, 8):
                for p in range(4):
                    u, pl = p >> 1, p & 1
                    ins, r = pack(acc(o, 2*p), acc(o, 2*p+1))
                    off = (o-4)*2048
                    (st1 if u else st0).append(kvstore(V(r, 4), 1, u, pl, off))
                    if u == 0: vwr.append(f"ds_write_b128 {V(vVw[pl])}, {V(r,4)} offset:{32768 + off}")
                    else: vw1.append((r, f"ds_write_b128 {V(vVw[pl])}, {V(r,4)} offset:{off}"))
                    vpack.append(ins)
        emit_split(sc, hooks)
        if fine is True and s < 7: T.stamp(b, f"kv{s}")
    T.stamp(b, "kvend")
    def qacc(dt, qt):
        i = dt*4 + qt
        return 32 + 4*i if i < 8 else (128 + 8*(i - 8) + 4 if i < 24 else 64 + 4*(i - 24))
    vKr, vVr, vDm, vQw, vQr = 1, 2, 5, 6, 24
    qsetup = toI([f"""
    s_lshl_b32 s6, {S(sHD)}, 7
    s_add_u32 s6, s6, {WS_FLG + FL_KV*128}
    v_mov_b32 v25, s6
    s_lshr_b32 s6, {S(sWV)}, 1
    s_lshl_b32 s7, s6, 14
    v_add_u32 {V(vKr)}, s7, {V(vL16)}
    v_add_u32 {V(vVr)}, 65536, {V(vKr)}
    v_add_u32 {V(vDm)}, {S(sLw)}, {V(vL16)}
    s_and_b32 s7, {S(sWV)}, 1
    s_lshl_b32 s7, s7, 14
    s_add_u32 s7, s7, 65536
    v_add_u32 {V(vQr)}, s7, {V(vL16)}
    s_lshl_b32 s6, s6, 16
    v_add_u32 {V(vQw)}, s6, {V(vQr)}
    """])
    def dmaKV(isv, slot, soff, tag, sl=sLw):
        base = (65536 + (slot ^ 1)*32768) if isv else slot*32768
        o = []
        for hf in range(2):
            o.append(I(f"s_add_u32 m0, {S(sl)}, {base + hf*4096}"))
            if hf: o.append(I(f"s_add_u32 {S(soff)}, {S(soff)}, 4096"))
            for i in range(4): o.append(I(f"buffer_load_dwordx4 {V(vDm)}, {sWS}, {S(soff)} offen offset:{i*1024}{KVL} lds", tag))
        return o
    sR0, sKu, sUa, sUb = 57, 60, 70, 62
    sA0, sA1, sAl = 63, 78, 77
    def unit_diag(dst, base): return [f"s_lshl_b32 {S(dst)}, {S(sBLK)}, 15", f"s_add_u32 {S(dst)}, {S(dst)}, {S(base)}"]
    def unit_r0(dst, base): return [f"s_lshl_b32 {S(dst)}, {S(sR0)}, 15", f"s_add_u32 {S(dst)}, {S(dst)}, {S(base)}"]
    assert sum(QST) + S7 == 16
    def pf_code(tag, vt, vd):
        return toI([f"s_getpc_b64 s[4:5]", f"{name}_pc{tag}:", f"s_lshr_b32 s6, s2, 3", f"s_lshl_b32 s6, s6, 2", f"s_add_u32 s6, s6, {S(sWV)}", f"s_lshl_b32 s6, s6, 9",
                    f"v_and_b32 {V(vt)}, 3, v0", f"v_lshl_add_u32 {V(vt)}, {V(vt)}, 7, s6", f"v_min_u32 {V(vt)}, code_end - {name}_pc{tag} - 4, {V(vt)}",
                    f"global_load_dword {V(vd)}, {V(vt)}, s[4:5]"])
    for s in range(5):
        mf = []
        for dt in range(8):
            for qt in range(4):
                for ks in range(4):
                    d = V(qacc(dt, qt), 4)
                    mf.append(MF(d, A(QWf(dt & 1, ks), 4), Hf(s & 1, ks, qt), "0" if (s == 0 and ks == 0) else d))
        sc = Sched(mf)
        for dt in range(7):
            for k, r in enumerate(rdQW(s, dt + 1)): sc.put(r, 16*dt + k)
            sc.raw(f"@need {A(QWf((dt+1) & 1, 0), 16)}", 16*dt + 15, "pre")
        sc.raw([f"@waitvm Q{s+1}", "s_waitcnt lgkmcnt(0)", "s_barrier"], 111)
        if s < 4:
            for k, r in enumerate(rdQW(s + 1, 0)): sc.put(r, 112 + k)
            sc.raw(f"@need {A(QWf(0, 0), 16)} {A(96 + 64*((s+1) & 1), 64)}", 127, "pre")
        ld = ((dmaQ(3) + dmaQ(4))[QD[s-1] : QD[s]] if 1 <= s < 4 else []) + (vgroups(ldH(s + 1)) if s < 4 else [])
        if s in (1, 2):
            for dt in range(8): sc.put(f"v_xor_b32 {V(vRW + dt)}, 0x30000, {V(vRW + dt)}", max(16*(dt - 1) + 8, 8))
        if s < 2:
            g = 8
            for w in kwr[8*s : 8*s + 8]: g = sc.put(w, g) + DWS
            assert g < 95
        if s < 4:
            mine = st1[sum(QST[:s]) : sum(QST[:s+1])]
            if s == 0:
                g = paced(sc, mine[:4-S7], 0, 6*(4-S7)); g = paced(sc, ld, g, QEND); mine = mine[4-S7:]
            else: g = paced(sc, ld, 0, QEND)
            if mine: assert paced(sc, mine, g, 126) < 129
        if s == 0:
            g = 0
            for k, ins in enumerate(vpack):
                g = seq(sc, ins, g); assert g < 32 + 4*k - 2, (k, g)
            assert seq(sc, park, g) < 94
        if s == 3: seq(sc, qsetup + toI([f"s_mov_b32 {S(sR0)}, {S(sJ)}"]), 40)
        if s == 3 and CPF: sc.raw(pf_code("q", 27, vDum), 126)
        if s == 4:
            sc.raw("@waitvm kv1", QF)
            g = seq(sc, flag([f"s_lshl_b32 {S(sT2)}, {S(sHD)}, 7", f"s_add_u32 {S(sT2)}, {S(sT2)}, {WS_FLG + FL_KV*128}"], sWS, 0, vFlagW), QF + 1)
            g = paced(sc, st0[:QB], g + 1, 110)
            g = 0; gw = 0
            for ds in range(4):
                for qt in range(4):
                    r0, r1 = qacc(2*ds, qt), qacc(2*ds+1, qt)
                    seq(sc, toI([f"v_cvt_pk_bf16_f32 {V(r0)}, {V(r0)}, {V(r0+1)}", f"v_cvt_pk_bf16_f32 {V(r0+1)}, {V(r0+2)}, {V(r0+3)}"]), 16*(2*ds) + 4*qt + 9)
                    g = seq(sc, toI([f"v_cvt_pk_bf16_f32 {V(r0+2)}, {V(r1)}, {V(r1+1)}", f"v_cvt_pk_bf16_f32 {V(r0+3)}, {V(r1+2)}, {V(r1+3)}"]),
                            max(g, 16*(2*ds+1) + 4*qt + 8))
                    gw = sc.putw(f"ds_write_b128 {V(vQw)}, {V(r0, 4)} offset:{(ds*4+qt)*1024}", max(g + 1, gw), max(g + 1, gw) + 2) + 4
            for k in range(3): sc.raw(vwr[k], 112 + 4*k)
            sc.raw([x for gr in st0[QB:10] for x in gr], 999)
        out = sc.emit()
        if "qtr" in drop: out = [i for i in out if "_tr_" not in i.op]
        if "qvm" in drop: out = [i for i in out if not (i.kind == "vmem" and "load" in i.op)]
        if "qst" in drop: out = [i for i in out if not (i.kind == "vmem" and "store" in i.op)]
        if "qdw" in drop: out = [i for i in out if not i.op.startswith("ds_write")]
        b(out)
        if fine is True and s < 4: T.stamp(b, f"q{s}")
    T.stamp(b, "qend")
    def O(dt, qt): return 128 + 16*dt + 4*qt
    def P(buf, kp, qt): return 64 + 32*buf + 16*kp + 4*qt
    def Sw(i): return 48 + 4*(i & 3)
    def NM(qt): return 32 + 4*qt
    def Lr(qt): return 164 + 4*qt
    MK, TC = 8, 12
    vL, vXp, vPa, vPk = 3, 4, 6, 7
    vX, vLx, vQa, vQb = 17, 18, 21, 22
    def Qf(ds, qt): return A(16*ds + 4*qt, 4)
    def Kf(kt, ds): return A(64 + 16*kt + 4*ds, 4)
    def Vf(dt, kp): return A(128 + 8*(dt & 3) + 4*kp, 4)
    ONES = A(160, 4)
    sTop = 76; NCX = 8; sXa = 36
    sLk = 80
    att = fine in ("att0", "att1"); cnd = f"s_cmp_eq_u32 {S(sPass)}, {str(fine)[-1]}"
    def ST(nm):
        if not att: return
        if nm in T.names:
            n = T.n; T.n = T.names.index(nm); T.stamp(b, nm, cnd); T.names.pop(); T.n = n
        else: T.stamp(b, nm, cnd)
    def rdK(slot, kt, ds): return f"ds_read_b128 {Kf(kt, ds)}, {V(vKr)} offset:{slot*32768 + (kt*4+ds)*1024}"
    def rdK0(kt, ds): return rdK(0, kt, ds)
    def rdV(slot, dt, kp): return f"ds_read_b128 {Vf(dt, kp)}, {V(vVr)} offset:{(slot ^ 1)*32768 + (dt*2+kp)*1024}"
    def rdQ(base, ds, qt): return f"ds_read_b128 {A(base + 16*ds + 4*qt, 4)}, {V(vQb if qt >> 1 else vQa)} offset:{ds*4096 + (qt & 1)*1024}"
    poll_kv = f"buffer_load_dword {V(vPk)}, {V(vPa)}, {sWS}, 0 offen sc1"
    b([rdK0(0, ds) for ds in range(4)])
    b(f"s_load_dwordx2 {S(WU,2)}, s[0:1], {ARG['wo']}")
    RT, RO, RS = R["wuk"], R["wuv"], R["ckv"]
    for r_, n_ in ((RT, "win"), (RO, "wout"), (RS, "wsp"), (R["dbg"], "x")):
        b(f"s_load_dwordx2 {S(r_,2)}, s[0:1], {ARG[n_]}"); b(f"s_mov_b32 {S(r_+2)}, {hex(SIZE[n_])}")
    b(f"""
    s_mov_b32 {S(WU+2)}, {hex(SIZE['wo'])}
    v_mov_b32 {V(vL)}, {V(vL16)}
    s_lshr_b32 {S(sT2)}, {S(sWV)}, 1
    s_lshl_b32 {S(sT2)}, {S(sT2)}, 11
    v_add_u32 {V(vQa)}, {S(sT2)}, {V(vQr)}
    v_xor_b32 {V(vQb)}, 0x800, {V(vQa)}
    s_lshl_b32 {S(sA0)}, {S(sBLK2)}, 15
    s_add_u32 {S(sA0)}, {S(sA0)}, {S(sKb)}
    s_mov_b32 {S(sA1)}, {S(sKb)}
    s_mov_b32 {S(sAl)}, {S(sLw)}
    v_mov_b32 v12, 0x3f803f80
    s_mov_b32 {S(sPass)}, 0
    s_mov_b32 {S(sTop)}, 131072
    v_mov_b32 {V(vPa)}, v25
    """)
    for r in range(4): b(f"v_accvgpr_write_b32 {A(160+r)}, v12")
    def masks(first, t0=28):
        o = [f"""
        v_lshrrev_b32 {V(t0)}, 4, v0
        v_lshlrev_b32 {V(t0)}, 2, {V(t0)}
        v_and_b32 {V(t0+1)}, 15, v0
        v_sub_u32 {V(t0)}, {V(t0+1)}, {V(t0)}
        s_and_b32 s7, {S(sWV)}, 1
        s_lshl_b32 s7, s7, 4
        v_add_u32 {V(t0)}, s7, {V(t0)}
        v_mov_b32 {V(t0+1)}, {FH(NEGBIG)}
        """]
        for base, dst in ([(0, MK)] if first else []) + [(16, TC)]:
            for r in (0, 2):
                o += [f"v_cmp_gt_i32 vcc, {base + r}, {V(t0)}", f"v_cmp_gt_i32 {S(sMK,2)}, {base + r + 1}, {V(t0)}", "v_nop",
                      f"v_cndmask_b32 {V(dst+r)}, 0, {V(t0+1)}, vcc", f"v_cndmask_b32 {V(dst+r+1)}, 0, {V(t0+1)}, {S(sMK,2)}"]
        return toI(o)
    b(masks(True))
    b(poll_kv.replace(f'dword {V(vPk)},', 'dword v26,'))
    for r in range(16): b(f'v_mov_b32 {V(NM(0)+r)}, 0')
    b("s_waitcnt lgkmcnt(0)"); b("s_barrier")
    for qt in range(4):
        for ds in range(4): b(rdQ(0, ds, qt))
    b(vwr[3:])
    b(f"v_add_u32 {V(vQa)}, 65536, {V(vQa)}"); b(f"v_add_u32 {V(vQb)}, 65536, {V(vQb)}")
    def softmax_ops(si, pbuf, kt, qt):
        s = Sw(si); p = P(pbuf, kt >> 1, qt) + 2*(kt & 1)
        return ([f"v_exp_f32 {V(s+r)}, {V(s+r)}" for r in range(4)],
                [f"v_cvt_pk_bf16_f32 {V(p)}, {V(s)}, {V(s+1)}", f"v_cvt_pk_bf16_f32 {V(p+1)}, {V(s+2)}, {V(s+3)}"])
    def place_softmax(sc, ops, start, stride):
        ex, cv = ops; g = start; gs = []
        for e in ex:
            g = sc.put(e, g); gs.append(g); g += stride
        return [(cv[0], gs[1] + 1), (cv[1], gs[3] + 1)]
    def diag_active(kg): return [(kp, q) for kp in range(2) for q in range(4) if (3 - kg if kp else kg) <= (q ^ (2*kg))]
    def next_k_dma(slot, ahead=2):
        return toI([f"s_mov_b32 {S(sUa)}, {S(sUb)}", f"s_mov_b32 {S(sUb)}, {S(sKu)}",
                    f"s_lshl_b32 {S(sKs)}, {S(sKu)}, 15", f"s_add_u32 {S(sKs)}, {S(sKs)}, {S(sKb)}", f"s_add_u32 {S(sKu)}, {S(sKu)}, 1",
                    f"s_cmp_eq_u32 {S(sKu)}, {S(sR0)}", f"s_addc_u32 {S(sKu)}, {S(sKu)}, 0", f"s_add_u32 {S(sT2)}, {S(sN)}, {ahead}",
                    f"s_cmp_gt_u32 {S(sBLK)}, {S(sT2)}", f"s_cselect_b32 {S(sKs)}, {S(sKs)}, {S(sA1 if slot else sA0)}",
                    f"s_cmp_gt_u32 {S(sBLK)}, {S(sT2)}", f"s_cselect_b32 {S(sLk)}, {S(sLw)}, {S(sAl)}"]) + dmaKV(0, slot, sKs, "k", sLk)
    def next_v_dma(slot):
        return toI([f"s_lshl_b32 {S(sVs)}, {S(sUa)}, 15", f"s_add_u32 {S(sVs)}, {S(sVs)}, {S(sVb)}"]) + dmaKV(1, slot, sVs, "v")
    def next_reads(n_par):
        rd = []
        for k in range(4): rd += [rdK(n_par, 0, k), rdV(n_par ^ 1, k >> 1, k & 1)]
        return rd
    def qk_diag(kg):
        act = diag_active(kg); tiles = []; zero = []
        for kt in range(4):
            p = 3 - kg if kt >> 1 else kg
            for q in range(4):
                if (kt >> 1, q) in act: tiles.append((kt, q, p == (q ^ (2*kg))))
        mf = []
        for i, (kt, q, dg) in enumerate(tiles):
            for ds in range(4):
                mf.append(MF(V(Sw(i), 4), Kf(kt, ds), Qf(ds, q), V(Sw(i), 4) if ds else V(Sw(i) if dg else NM(q), 4)))
        n = len(mf)
        sc = Sched(mf)
        g = 0
        for kt in sorted({t[0] for t in tiles} - {0}):
            for ds in range(4): g = sc.put(rdK0(kt, ds), g, force=True) + 1
        gb = max(g + 5, 4 * max(i for i, t in enumerate(tiles) if t[0] == 0) + 4, n - 10)
        init = []
        for kt, q in zero:
            p = P(0, kt >> 1, q) + 2*(kt & 1); init += [f"v_mov_b32 {V(p)}, 0", f"v_mov_b32 {V(p+1)}, 0"]
        if kg == 1: init += [f"v_accvgpr_write_b32 {A(Lr(2)+r)}, 0" for r in range(4)]
        for i, (kt, q, dg) in enumerate(tiles):
            if dg:
                for r in range(4): sc.raw(f"v_add_f32 {V(Sw(i)+r)}, {V(NM(q)+r)}, {V((TC if kt & 1 else MK)+r)}", -1 if i < 4 else 4*i - 4 + r // 2, "post2")
        sc.raw(init, -1)
        for i, (kt, q, dg) in enumerate(tiles):
            ex, cv = softmax_ops(i, 0, kt, q)
            for r in range(4): sc.raw(ex[r], 4*i + 7 + r)
            sc.raw(cv[0], 4*i + 10, "post"); sc.raw(cv[1], 4*i + 11, "post2")
        for i, (kt, q, dg) in enumerate(tiles):
            sc.raw(f"@need {A(64 + 16*kt, 16)} " + " ".join(Qf(ds, q) for ds in range(4)), 4*i - 1, "pre")
        sc.raw(["@waitvm v", "s_waitcnt lgkmcnt(0)", "s_barrier"], gb, "post2")
        for k, r in enumerate(next_reads(1)): sc.raw(r, gb + 1 + k, "pre")
        assert gb + 8 < n
        sc.seq(next_k_dma(0, 1)[:12], 14)
        return sc.emit()
    def iteration(par, qk, pv, carry, exit_lab=None, side=None, first=False):
        act = [(kp, q) for kp in range(2) for q in range(4)] if pv == "full" else diag_active(pv)
        fresh = pv != "full"
        def chain(dst, a, q):
            m = []; f = fresh
            for kp in range(2):
                if (kp, q) in act: m.append(MF(dst, a(kp), V(P(par, kp, q), 4), "0" if f else dst)); f = False
            return m
        groups = []
        for g in range(16):
            m = []
            if qk:
                kt, q = g >> 2, g & 3
                for ds in range(4): m.append(MF(V(Sw(g), 4), Kf(kt, ds), Qf(ds, q), V(Sw(g), 4) if ds else V(NM(q), 4)))
            dt = g >> 1
            if qk and fresh:
                order = sorted(range(4), key=lambda q: -sum((kp, q) in act for kp in range(2)))
                qs = (order[0], order[3]) if g & 1 else (order[1], order[2])
            else: qs = (2*(g & 1), 2*(g & 1) + 1)
            for q in qs: m += chain(V(O(dt, q), 4), lambda kp: Vf(dt, kp), q)
            if qk and g % 4 == 2: m += chain(A(Lr(g >> 2), 4), lambda kp: ONES, g >> 2)
            if not qk and g in (2, 4, 6, 8): m += chain(A(Lr(g // 2 - 1), 4), lambda kp: ONES, g // 2 - 1)
            groups.append(m)
        st = [0]
        for m in groups: st.append(st[-1] + len(m))
        n = st[16]
        sc = Sched([x for m in groups for x in m])
        if qk and not fresh:
            cvs = place_softmax(sc, softmax_ops(15, par, 3, 3), 0, 2)
            for g in range(15): cvs += place_softmax(sc, softmax_ops(g, par ^ 1, g >> 2, g & 3), st[g+1], 2)
            for c, e in cvs: sc.put(c, e)
            for sp in range(4):
                rd = next_reads(par) if sp == 3 else [x for k in range(4) for x in (rdK(par ^ 1, sp + 1, k), rdV(par, 2*sp + 2 + (k >> 1), k & 1))]
                rd = rd[0::2] + rd[1::2]
                pos = [st[4*sp + gg] + o for gg in range(4) for o in ((1, 3, 7) if sp == 2 else (3, 7))]
                for r, p in zip(rd, pos): assert sc.put(r, p) == p
                if sp != 2: sc.raw("s_waitcnt lgkmcnt(1)", st[4*sp + 4] - 1, "pre")
                sc.raw(f"@need {A(128 + 8*((2*sp + 1) & 3), 8)}", st[4*sp + 2] + 2, "pre")
            gv = sc.seq(next_v_dma(par ^ 1), 0, VST)
            sc.raw(["@waitvm v", "s_waitcnt lgkmcnt(0)", "s_barrier"], st[12] - 1)
            kd = next_k_dma(par ^ 1)
            g = sc.seq(kd[:12], st[11] - 4) ; assert g < st[12]
            g = sc.seq(kd[12:], st[12], 2); assert g < n - 2, g
            if side: side(sc, st, gv)
        elif qk:
            cvs = []
            for g in range(15):
                ex, cv = softmax_ops(g, par ^ 1, g >> 2, g & 3)
                lo, ln = st[g+1] + 1, st[g+2] - st[g+1]
                ps = [lo + (r * ln) // 4 for r in range(4)]
                for e, p in zip(ex, ps): sc.put(e, p, force=True)
                cvs += [(cv[0], ps[1] + 1, ps[1] + 5), (cv[1], ps[3] + 1, ps[3] + 4)]
            dm = vgroups(next_k_dma(0, 1) + ([] if first else next_v_dma(1))); g = 0
            free_at = {}
            if first:
                firstw = lambda r: min([k for k, x in enumerate(sc.mf) if x.split()[1] == V(r, 4) + ","] + [st[11]])
                for k, (r, w) in enumerate(vw1):
                    hi = firstw(r) - 1
                    lo = max(0, min(hi - 4, 8*k))
                    free_at[r] = sc.putw(w, lo, min(hi, lo + 4))
                for k, gr in enumerate(st0[10:]):
                    gr = toI([x.t.replace(f", {V(vL16)},", f", {V(vL)},") for x in gr]); gr[-1].tag = "kv0"
                    r = rno(gr[-1].t.split()[1]); hi = min(firstw(r) - 1, st[4*(k//2) + 4] - 1)
                    lo = hi - (4 if k & 1 else 16)
                    free_at[r] = gg = sc.putw(gr[-1], lo, lo + 3)
                    sc.raw(gr[0], gg - 1, "post")
            dm[0] = dm[0][12:]
            for k, gr in enumerate(dm):
                lo = max(g, (k * (st[9] - 4)) // 16)
                if len(gr) > 1: lo = sc.seq(gr[:-1], lo)
                g = sc.putw(gr[-1], lo + 1, lo + 4) + 1
            if pv == 1:
                for dt in range(8):
                    for r in range(4): sc.putw(f"v_mov_b32 {V(O(dt, 2)+r)}, 0", free_at.get(O(dt, 2), 0) + 2, n - 3)
            sc.raw(["@waitvm k" if first else "@waitvm v", "s_waitcnt lgkmcnt(0)", "s_barrier"], st[12] - 1)
            kd = next_k_dma(1)
            assert g < st[10] and sc.seq(kd[:12], st[10]) < st[12]
            g = st[12]
            for k, gr in enumerate(vgroups(kd[12:])):
                lo = max(g, st[12] + (k * (n - 4 - st[12])) // 8)
                for x in gr[:-1]: sc.raw(x, lo, "pre")
                g = sc.putw(gr[-1], lo + 1, lo + 2) + 1
            assert g < n
            for sp in range(4):
                rd = next_reads(par) if sp == 3 else [x for k in range(4) for x in (rdK(par ^ 1, sp + 1, k), rdV(par, 2*sp + 2 + (k >> 1), k & 1))]
                lo, hi = st[4*sp], st[4*sp + 3] + 1
                for k, r in enumerate(rd): sc.putw(r, lo + (k * (hi - lo)) // 8, lo + ((k + 1) * (hi - lo)) // 8)
                if sp != 2: sc.raw("s_waitcnt lgkmcnt(0)", st[4*sp + 4] - 1, "pre")
            for c, lo, hi in cvs: sc.putw(c, lo, min(hi, n - 1))
        else:
            if pv == 1:
                for k in range(32): sc.raw(f"v_mov_b32 {V(O(k >> 2, 2) + (k & 3))}, 0", k)
            if carry:
                ex, cv = softmax_ops(15, par, 3, 3)
                sc.raw(ex[:2], -1); sc.raw(ex[2], 0); sc.raw(ex[3], 1); sc.raw(cv[0], 2); sc.raw(cv[1], 3)
            for g in range(12): sc.put(rdV(par, (g >> 1) + 2, g & 1), st[g], force=True)
            busy, idle = 65536 + (par ^ 1)*32768, 65536 + par*32768
            sc.raw([f"v_add_u32 {V(vX)}, {S(sXa + par)}, {V(vL)}"], 2); sc.raw([f"v_add_u32 {V(vXp)}, {S(sXa + 2 + par)}, {V(vL)}"], 3)
            sc.raw([f"s_lshl_b32 {S(sT2)}, {S(sWV)}, 10"], 4, "pre")
            sc.raw([f"v_add_u32 {V(vLx)}, {busy}, {V(vL)}", f"v_add_u32 v19, {S(sT2)}, {V(vLx)}"], 5)
            gb = st[12] + 2
            sc.raw([f"@need {A(128, 32)}", "s_barrier"], gb, "pre")
            g = 0
            for dt in range(8):
                for q in range(2):
                    lastm = max(k for k, x in enumerate(sc.mf) if x.split()[1] == V(O(dt, q), 4) + ",")
                    g = sc.put(f"ds_write_b128 {V(vX)}, {V(O(dt, q), 4)} offset:{(q*8+dt)*1024}", max(g, lastm + 6, 6)) + 3
            lastl = max(k for k, x in enumerate(sc.mf) if x.split()[1].startswith("a["))
            gl = sc.seq([f"v_accvgpr_read_b32 {V(28+q)}, {A(Lr(q))}" for q in range(4)], lastl + 6)
            sc.put(f"ds_write_b128 v19, v[28:31]", max(gl + 1, gb + 1))
            if side: side(sc, st, 0)
        if qk:
            sc.raw(f"s_add_u32 {S(sN)}, {S(sN)}, 1", n - 2, "pre")
            if exit_lab: sc.raw(f"s_cmp_eq_u32 {S(sN)}, {S(sBLK)}", n - 1, "pre"); sc.raw(f"s_cbranch_scc1 {exit_lab}", 999)
        out = sc.emit()
        if drop and qk and pv == "full":
            out = [i for i in out if not (("dma" in drop and i.kind == "vmem") or ("bar" in drop and i.op == "s_barrier") or ("ds" in drop and i.kind == "ds")
                                          or ("exp" in drop and i.op == "v_exp_f32") or ("cvt" in drop and i.op.startswith("v_cvt")) or ("vmw" in drop and i.kind == "wait"))]
        return out
    reent = State(vm=[(set(), "v", False)] + [(set(), "cx", False)] * NCX)
    b.label(name + "_blk", b.flush() + [reent])
    b(f"s_mov_b32 {S(sSafe)}, 0")
    ST("qrd")
    b.label(name + "_retry", b.flush() + [reent])
    b(f"""
    s_mov_b32 {S(sN)}, 0
    s_mov_b32 {S(sUb)}, {S(sR0)}
    s_cmp_eq_u32 {S(sR0)}, 0
    s_cselect_b32 {S(sKu)}, 1, 0
    s_cmp_ge_u32 {S(sWV)}, 2
    s_cbranch_scc1 {name}_d2
    """)
    pre = b.flush()
    gen0 = {}
    def diag_tail(kg):
        ST("diag")
        b(f"s_or_b32 {S(sT2)}, {S(sPass)}, {S(sSafe)}"); b(f"s_cmp_lg_u32 {S(sT2)}, 0"); b(f"s_cbranch_scc1 {name}_g{kg}")
        gen0[kg] = b.flush()
        spin(f"{name}_pk{kg}", 26, poll_kv.replace(f"dword {V(vPk)},", "dword v26,"), 32)
        ST("dtail")
        b(iteration(0, True, kg, False, None, None, True))
    b(qk_diag(0)); diag_tail(0); b(f"s_branch {name}_it1"); f0a = b.flush()
    b.label(name + "_d2", pre)
    b(qk_diag(1)); diag_tail(1); f0b = b.flush()
    gtext = {}; spv = {}; skip = []
    for kg in range(2):
        h1, spv[kg] = seg(pf_code(f"g{kg}", 21, 22) + [f"s_cmp_eq_u32 {S(sBLK)}, 0", f"s_cbranch_scc1 {name}_pvd{kg}"], gen0[kg])
        h2, ex_ = seg(iteration(0, True, kg, False, name + "_pv1") + toI([f"s_branch {name}_odd"]), spv[kg])
        gtext[kg] = h1 + h2; skip += ex_
    spv0, spv1 = spv[0], spv[1]; it0a, it0b = skip, []
    b.label(name + "_it1", f0a + f0b)
    ST("it0")
    def side_stash(sc, st, gv):
        for k in range(16): sc.put(rdQ(192, k >> 2, k & 3), st[k % 12] + 5 + 16 * 0)
    sWO = sWU; sWo, sHc = 54, 55
    vWo = 23
    sCx, sOb = 81, 82
    def side_osetup(sc, st, gv):
        o = []
        for i in range(5):
            o.append(f"""
            v_add_u32 v28, {64*i}, v0
            v_mul_u32_u24 v29, 3277, v28
            v_lshrrev_b32 v29, 16, v29
            v_mul_u32_u24 v30, 20, v29
            v_sub_u32 v28, v28, v30
            v_bfe_u32 v30, v29, 2, 1
            v_lshlrev_b32 v30, 1, v30
            v_xor_b32 v28, v28, v30
            v_mul_u32_u24 v29, 1280, v29
            v_lshl_add_u32 {V(vWo+i)}, v28, 4, v29
            """)
        sc.seq(o, 0)
        sc.seq([f"""
        s_and_b32 {S(sT3)}, {S(sHD)}, 3
        s_mul_i32 {S(sWo)}, {S(sT3)}, 320
        s_mul_i32 {S(sT3)}, {S(sWV)}, {32*1280}
        s_add_u32 {S(sWo)}, {S(sWo)}, {S(sT3)}
        s_lshr_b32 {S(sT3)}, {S(sHD)}, 2
        s_mul_i32 {S(sT3)}, {S(sT3)}, {512*1280}
        s_add_u32 {S(sWo)}, {S(sWo)}, {S(sT3)}
        s_and_b32 {S(sT3)}, {S(sWV)}, 1
        s_lshl_b32 {S(sT3)}, {S(sT3)}, 14
        s_add_u32 s40, {S(sT3)}, 131072
        s_add_u32 s41, {S(sT3)}, 65536
        s_add_u32 s42, {S(sT3)}, 98304
        s_cmp_ge_u32 {S(sWV)}, 2
        s_cselect_b32 {S(sXa)}, s41, s40
        s_cmp_ge_u32 {S(sWV)}, 2
        s_cselect_b32 {S(sXa+1)}, s42, s40
        s_cmp_ge_u32 {S(sWV)}, 2
        s_cselect_b32 {S(sXa+2)}, s40, s41
        s_cmp_ge_u32 {S(sWV)}, 2
        s_cselect_b32 {S(sXa+3)}, s40, s42
        s_mul_i32 s71, {S(sWV)}, 10240
        s_lshr_b32 {S(sCx)}, {S(sHD)}, 2
        s_lshl_b32 {S(sCx)}, {S(sCx)}, 3
        s_add_u32 {S(sCx)}, {S(sCx)}, {S(sJ)}
        s_lshl_b32 {S(sCx)}, {S(sCx)}, 2
        s_add_u32 {S(sOb)}, {S(sCx)}, {S(sWV)}
        s_lshl_b32 {S(sCx)}, {S(sOb)}, 2
        s_and_b32 {S(sT3)}, {S(sHD)}, 3
        s_add_u32 {S(sCx)}, {S(sCx)}, {S(sT3)}
        s_lshl_b32 {S(sCx)}, {S(sCx)}, 14
        s_add_u32 {S(sCx)}, {S(sCx)}, {WS_CTX}
        """], 50)
    sJs, sJd, sJp, sJb, sJi = 16, 17, 18, 19, 8
    vJr, vJc, vJo, vJa = 17, 18, 19, 12
    JR = [A(180, 4), A(184, 4), A(188, 4), V(28, 4)]
    def half(r, hf): return (A if r[0] == "a" else V)(rno(r) + 2*hf, 2)
    def j_setup():
        return toI([f"""
        v_lshrrev_b32 {V(vJr)}, 3, v0
        v_bfe_u32 {V(vJc)}, v0, 4, 2
        v_lshlrev_b32 {V(vJc)}, 1, {V(vJc)}
        v_and_b32 v4, 7, v0
        v_xor_b32 {V(vJc)}, {V(vJc)}, v4
        v_lshlrev_b32 {V(vJc)}, 4, {V(vJc)}
        s_lshl_b32 {S(sJi)}, s2, 2
        s_add_u32 {S(sJi)}, {S(sJi)}, {S(sWV)}
        s_add_u32 {S(sJb)}, {S(sLw)}, 131072
        """])
    def j_dma(srd, buf):
        o = [f"v_mad_u32_u24 {V(vJo)}, {V(vJr)}, {S(sJp)}, {V(vJc)}", f"s_lshl_b32 {S(sJp)}, {S(sJp)}, 3"]
        for i in range(4):
            if i: o.append(f"s_add_u32 {S(sJs)}, {S(sJs)}, {S(sJp)}")
            o += [f"s_add_u32 m0, {S(sJb)}, {buf*4096 + i*1024}", I(f"buffer_load_dwordx4 {V(vJo)}, {S(srd,4)}, {S(sJs)} offen{nt('j')} lds", "j")]
        return toI(o)
    def t_addr():
        return toI([f"""
        s_sub_u32 {S(sT3)}, {S(sJi)}, 540
        s_cmp_lt_u32 {S(sJi)}, 540
        s_cselect_b32 {S(sT3)}, {S(sJi)}, {S(sT3)}
        s_cmp_lt_u32 {S(sJi)}, 540
        s_cselect_b32 {S(RT)}, {S(RT)}, {S(RO)}
        s_cmp_lt_u32 {S(sJi)}, 540
        s_cselect_b32 {S(RT+1)}, {S(RT+1)}, {S(RO+1)}
        s_cmp_lt_u32 {S(sJi)}, 540
        s_cselect_b32 {S(RT+2)}, {S(RT+2)}, {S(RO+2)}
        s_mov_b32 s9, {hex((2**32 + 9)//10)}
        s_cmp_lt_u32 {S(sJi)}, 540
        s_cselect_b32 s9, {hex((2**32 + 26)//27)}, s9
        s_cmp_lt_u32 {S(sJi)}, 540
        s_cselect_b32 s10, 27, 10
        s_mov_b32 {S(sJd)}, {WS_WOUT}
        s_cmp_lt_u32 {S(sJi)}, 540
        s_cselect_b32 {S(sJd)}, {WS_WIN}, {S(sJd)}
        s_lshl_b32 {S(sJp)}, s10, 7
        s_mul_hi_u32 s9, {S(sT3)}, s9
        s_mul_i32 s10, s9, s10
        s_sub_u32 s10, {S(sT3)}, s10
        s_lshl_b32 {S(sT3)}, {S(sT3)}, 12
        s_add_u32 {S(sJd)}, {S(sJd)}, {S(sT3)}
        s_mul_i32 {S(sJs)}, s9, {S(sJp)}
        s_lshl_b32 {S(sJs)}, {S(sJs)}, 5
        s_lshl_b32 s10, s10, 7
        s_add_u32 {S(sJs)}, {S(sJs)}, s10
        s_cmp_lt_u32 {S(sJi)}, 810
        s_cselect_b32 {S(sJd)}, {S(sJd)}, {hex(OOB)}
        """])
    def t_out():
        o = [f"""
        v_lshrrev_b32 v4, 2, v0
        v_bfe_u32 {V(vJa)}, v0, 3, 2
        v_lshlrev_b32 {V(vJa)}, 5, {V(vJa)}
        v_lshl_add_u32 {V(vJa)}, v4, 7, {V(vJa)}
        v_and_b32 v4, 3, v0
        v_lshl_add_u32 {V(vJa)}, v4, 3, {V(vJa)}
        v_add_u32 {V(vJa)}, {S(sJb)}, {V(vJa)}
        v_xor_b32 {V(vJa+1)}, 32, {V(vJa)}
        v_xor_b32 {V(vJa+2)}, 64, {V(vJa)}
        v_xor_b32 {V(vJa+3)}, 96, {V(vJa)}
        """]
        rd = [f"ds_read_b64_tr_b16 {half(JR[n], hf)}, {V(vJa+n)} offset:{hf*2048}" for n in range(4) for hf in range(2)]
        st = [f"buffer_store_dwordx4 {JR[n]}, {V(vL)}, {sWS}, {S(sJd)} offen offset:{n*1024}{SC}" for n in range(4)]
        return toI(o), toI(rd), toI(st)
    def s_addr(k):
        return toI([f"""
        s_lshr_b32 s9, {S(sJi)}, 5
        s_add_u32 s9, s9, {32*k}
        s_and_b32 s10, {S(sJi)}, 31
        s_lshl_b32 {S(sJs)}, s9, 17
        s_lshl_b32 s10, s10, 7
        s_add_u32 {S(sJs)}, {S(sJs)}, s10
        s_mov_b32 {S(sJp)}, 4096
        """])
    def s_out(k, buf):
        o = [f"""
        s_lshr_b32 {S(sJd)}, {S(sJi)}, 6
        s_add_u32 {S(sJd)}, {S(sJd)}, {16*k}
        s_lshl_b32 {S(sJd)}, {S(sJd)}, 18
        s_and_b32 s11, {S(sJi)}, 31
        s_lshl_b32 s11, s11, 13
        s_add_u32 {S(sJd)}, {S(sJd)}, s11
        s_bfe_u32 s11, {S(sJi)}, 0x10005
        s_lshl_b32 s11, s11, 11
        s_add_u32 {S(sJd)}, {S(sJd)}, s11
        s_add_u32 {S(sJd)}, {S(sJd)}, {WS_WSP}
        s_add_u32 s11, {S(sJd)}, 4096
        """]
        if k == 0: o.append(f"""
        v_bfe_u32 {V(vJa)}, v0, 1, 2
        v_lshlrev_b32 {V(vJa)}, 5, {V(vJa)}
        v_and_b32 v4, 15, v0
        v_lshl_add_u32 {V(vJa)}, v4, 7, {V(vJa)}
        v_lshrrev_b32 v4, 4, v0
        v_lshl_add_u32 {V(vJa)}, v4, 3, {V(vJa)}
        v_add_u32 {V(vJa)}, {S(sJb)}, {V(vJa)}
        v_xor_b32 {V(vJa+1)}, 32, {V(vJa)}
        v_xor_b32 {V(vJa+2)}, 64, {V(vJa)}
        v_xor_b32 {V(vJa+3)}, 96, {V(vJa)}
        """)
        rd = [f"ds_read_b64 {half(JR[2*ks+mt], hf)}, {V(vJa+2*ks+hf)} offset:{buf*4096 + mt*2048}" for ks in range(2) for mt in range(2) for hf in range(2)]
        st = [f"buffer_store_dwordx4 {JR[2*ks+mt]}, {V(vL)}, {sWS}, {'s11' if ks else S(sJd)} offen offset:{mt*1024}{SC}" for ks in range(2) for mt in range(2)]
        return toI(o), toI(rd), toI(st)
    def wseq(sc, ins, lo, step=1):
        ins = toI(ins); sc.seqs.append(ins); g = lo; prev = None
        for i in ins:
            if i.kind in ("salu", "pseudo"):
                if prev is not None and prev.op.startswith("s_cmp"): sc.put(i, g, force=True)
                else: g = sc.put(i, g + (prev is not None and prev.kind != "salu"))
            else: g = sc.putw(i, g + 1, g + 3) + (step if i.kind == "vmem" else 0)
            prev = i
        return g
    def job_out(sc, st, gv, parts, nxt):
        o, rd, sto = parts
        g = wseq(sc, o, 0)
        g = wseq(sc, ["@waitvm j"] + rd, max(g, gv - 14))
        g = wseq(sc, nxt, max(g, gv), 3); assert g < st[12] + 2, (g, st[12])
        for x in sto: x.tag = 'js'
        g = wseq(sc, sto, g, JST)
    def side1(sc, st, gv):
        side_stash(sc, st, gv); wseq(sc, j_setup() + t_addr(), 40)
    def st_init():
        return toI([f"""
        v_and_b32 v21, 15, v0
        v_lshlrev_b32 v21, 3, v21
        v_bfe_u32 v22, v0, 4, 1
        v_mul_u32_u24 v22, {WS_ST2 - WS_ST1}, v22
        v_add_u32 v21, v21, v22
        v_mov_b32 v14, -1.0
        v_mov_b32 v15, -1.0
        s_lshl_b32 s9, {S(sJi)}, 7
        s_add_u32 s9, s9, {WS_ST1}
        buffer_store_dwordx2 v[14:15], v21, {sWS}, s9 offen sc1
        """])
    def side2(sc, st, gv):
        wseq(sc, ["@waitvm kv0", f"s_lshl_b32 s9, {S(sHD)}, 7", f"s_add_u32 s9, s9, {WS_FLG + FL_K0*128}", f"buffer_atomic_add {V(vOne)}, {V(vFlagW)}, {sWS}, s9 offen"], 8)
        side_osetup(sc, st, gv); g = wseq(sc, j_dma(RT, 0), gv, 3)
        wseq(sc, st_init(), g)
    def side3(sc, st, gv): job_out(sc, st, gv, t_out(), [])
    poll_t = f"buffer_load_dword v22, v21, {sWS}, 0 offen sc1"
    def side4(sc, st, gv):
        g = wseq(sc, ["s_and_b32 s11, s2, 31", "s_lshl_b32 s11, s11, 7", f"s_add_u32 s11, s11, {WS_FLG + FL_T*128}", "@waitvm js",
                      f"buffer_atomic_add {V(vOne)}, {V(vFlagW)}, {sWS}, s11 offen"], gv - 2, 3)
        wseq(sc, s_addr(0) + j_dma(RS, 0), g - 6, 3)
    def side5(sc, st, gv): job_out(sc, st, gv, s_out(0, 0), [f"v_add_u32 {V(vPa)}, {(FL_K0 - FL_KV)*128}, {V(vPa)}", poll_kv])
    def side6(sc, st, gv):
        g = wseq(sc, ["v_and_b32 v21, 31, v0", "v_lshlrev_b32 v21, 7, v21", f"v_add_u32 v21, {WS_FLG + FL_T*128}, v21", poll_t], gv - 6, 3)
        g = wseq(sc, s_addr(1) + j_dma(RS, 0), g - 6, 3)
        if CPF: sc.raw(pf_code("s", 4, 28), g + 4)
    def side7(sc, st, gv): job_out(sc, st, gv, s_out(1, 0), [])
    sides = [side1, side2, side3, side4, side5, side6, side7]
    if fine == "side": T.stamp(b, "it0")
    for k, sd in enumerate(sides):
        it_ = iteration((k + 1) & 1, True, "full", True, name + "_pv0" if k == 6 else None, sd)
        if "sld" in drop2: it_ = [i for i in it_ if not (i.kind == "vmem" and "load" in i.op and i.tag not in ("k", "v"))]
        if "sst" in drop2: it_ = [i for i in it_ if not (i.kind == "vmem" and "store" in i.op)]
        b(it_)
        if k == 4: spin(name + "_p0", vPk, poll_kv, 32)
        if k == 5: spin(name + "_pt", 22, poll_t, 32)
        if k == 6: ex7 = b.flush()
        if fine == "side": T.stamp(b, f"it{k+1}")
    if fine == "att0": ST("it2")
    ins, outs = b.chain_loop([(name + "_even", iteration(0, True, "full", True, name + "_pv1")),
                              (name + "_odd", iteration(1, True, "full", True, name + "_pv0") + toI([f"s_branch {name}_even"]))], extra={1: skip})
    outs = outs[::-1]
    for kg in range(2): b.label(f"{name}_g{kg}"); b.out += gtext[kg]
    TMP, CF = 64, 32
    CB = [0, 40960, 81920, 122880]
    def dmaO(c):
        o = [f"s_add_u32 {S(sHc)}, {S(sHD)}, {c}", f"s_and_b32 {S(sHc)}, {S(sHc)}, 3", f"s_mul_i32 {S(sHc)}, {S(sHc)}, {128*1280}", f"s_add_u32 {S(sHc)}, {S(sHc)}, {S(sWo)}"]
        for k in range(10):
            if k == 5: o.append(f"s_add_u32 {S(sHc)}, {S(sHc)}, {16*1280}")
            o += [f"s_add_u32 m0, s71, {CB[c] + k*1024}", I(f"buffer_load_dwordx4 {V(vWo + k % 5)}, {sWO}, {S(sHc)} offen{nt('O')} lds", f"o{c}")]
        return toI(o)
    def Xf(c, ks, m):
        if c == 0: return A(192 + 8*ks + 4*m, 4) if m < 2 else V(CF + 8*ks + 4*(m-2), 4)
        return A(64*(c-1) + 16*ks + 4*m, 4)
    sCc = 58
    def ldX(c, passes):
        o = [f"s_add_u32 {S(sCc)}, {S(sHD)}, {c}", f"s_and_b32 {S(sCc)}, {S(sCc)}, 3", f"s_lshl_b32 {S(sT2)}, {S(sOb)}, 2", f"s_add_u32 {S(sCc)}, {S(sCc)}, {S(sT2)}",
             f"s_lshl_b32 {S(sCc)}, {S(sCc)}, 14", f"s_add_u32 {S(sCc)}, {S(sCc)}, {WS_CTX}"]
        for p in passes:
            for ks in range(4):
                if ks % 2 == 0: o.append(f"s_add_u32 {S(sT2)}, {S(sCc)}, {p*8192 + ks*2048}")
                for a in range(2): o.append(f"buffer_load_dwordx4 {Xf(c, ks, 2*p + a)}, {V(vL)}, {sWS}, {S(sT2)} offen offset:{(ks & 1)*2048 + a*1024}{CXL}")
        return toI(o)
    def own_long(tag):
        return toI(["v_lshlrev_b32 v21, 7, v0", f"buffer_load_dword a108, v21, {sWS}, {S(sCx)} offen{CXL}"])
    sFx = 79
    def side_o0(sc, st, gv):
        arr = toI([f"s_lshl_b32 {S(sFx)}, {S(sOb)}, 8", f"s_add_u32 {S(sFx)}, {S(sFx)}, {WS_FLG + FL_CX*128}",
                   f"s_cmp_eq_u32 {S(sSafe)}, 0", f"s_cselect_b32 {S(sKs)}, {S(sFx)}, {hex(OOB)}", f"v_mov_b32 {V(vPa)}, {S(sFx)}", "@waitvm cx",
                   f"buffer_atomic_add {V(vOne)}, {V(vFlagW)}, {sWS}, {S(sKs)} offen offset:128",
                   f"s_and_b32 {S(sKs)}, s2, 31", f"s_lshl_b32 {S(sKs)}, {S(sKs)}, 7", f"s_add_u32 {S(sKs)}, {S(sKs)}, {WS_FLG + FL_R*128}",
                   f"s_cmp_eq_u32 {S(sSafe)}, 0", f"s_cselect_b32 {S(sKs)}, {S(sKs)}, {hex(OOB)}",
                   f"buffer_atomic_add {V(vOne)}, {V(vFlagW)}, {sWS}, {S(sKs)} offen"])
        paced(sc, vgroups(arr + dmaO(0) + own_long(0)), 0, len(sc.mf) - 4)
    def side_vec(sc, st, gv):
        o = [f"""
        v_and_b32 v21, 15, v0
        v_lshrrev_b32 v22, 4, v0
        v_lshlrev_b32 v22, 4, v22
        v_lshl_add_u32 v22, v21, 6, v22
        v_cmp_gt_u32 vcc, 2, v21
        v_mov_b32 v21, {hex(OOB)}
        v_cndmask_b32 v22, v21, v22, vcc
        s_mul_i32 s9, {S(sWV)}, 640
        s_add_u32 s9, s9, {WS_MODB}
        s_mul_i32 s10, {S(sWV)}, {5*108*1024}
        s_lshl_b32 s11, s2, 10
        s_add_u32 s10, s10, s11
        s_add_u32 s10, s10, {WS_WIN}
        s_cmp_lt_u32 s2, 108
        s_cselect_b32 s10, s10, {hex(OOB)}
        """]
        for k in range(5):
            if k: o.append(f"s_add_u32 s10, s10, {108*1024}")
            o += [f"buffer_load_dwordx4 {A(64+8*k,4)}, {V(vL)}, {sWS}, s10 offen sc1", f"buffer_load_dwordx4 {A(68+8*k,4)}, v22, {sWS}, s9 offen offset:{128*k} sc1"]
        o = toI(o)
        sc.seq(o[7:15], 0); g = sc.seq(o[:7], 4)
        g = paced(sc, vgroups(o[15:]), max(g + 1, 9), 46)
        g = sc.seq(masks(False, 48), 12)
        pw = toI([f"""
        v_lshlrev_b32 v50, 7, v0
        v_cmp_gt_u32 vcc, 40, v0
        v_cndmask_b32 v50, v21, v50, vcc
        s_lshr_b32 s11, s2, 3
        s_lshl_b32 s11, s11, 2
        s_add_u32 s11, s11, {S(sWV)}
        s_lshr_b32 s8, {S(sHD)}, 2
        s_lshl_b32 s8, s8, 7
        s_add_u32 s11, s11, s8
        s_mul_i32 s11, s11, 5120
        buffer_load_dword v51, v50, {sWO}, s11 offen{nt('o')}
        v_lshlrev_b32 v22, 2, v0
        v_cmp_gt_u32 vcc, 16, v0
        v_cndmask_b32 v22, v21, v22, vcc
        s_lshl_b32 s9, s2, 6
        s_add_u32 s9, s9, {WS_VEC}
        s_cmp_lt_u32 s2, 108
        s_cselect_b32 s9, s9, {hex(OOB)}
        s_cmp_eq_u32 {S(sWV)}, 0
        s_cselect_b32 s9, s9, {hex(OOB)}
        s_add_u32 s10, s9, 0x2000
        """])
        pw[10] = I(pw[10].t.replace("v51,", "a108,"))
        sc.seq(pw, max(g + 1, 47))
        sc.raw([MF(A(104,4), A(68+8*k,4), A(64+8*k,4), A(104,4) if k else "0") for k in range(5)], len(sc.mf) - 1, "pre")
        sc.raw(f"ds_write_b128 v19, {A(104,4)} offset:4096", 999)
    fin0 = []; fin1 = []
    for par, preds in ((0, outs[0] + ex7), (1, outs[1] + it0a + it0b)):
        b.label(f"{name}_pv{par}", preds); ST("loop")
        b(f"s_cmp_eq_u32 {S(sPass)}, 1"); b(f"s_cbranch_scc1 {name}_pw{par}"); pw = b.flush()
        b(iteration(par, False, "full", True, None, side_vec)); b(f"s_branch {name}_fin0"); fin0 += b.flush()
        b.label(f"{name}_pw{par}", pw); b(iteration(par, False, "full", True, None, side_o0)); b(f"s_branch {name}_fin1"); fin1 += b.flush()
    b.label(name + "_pvd0", spv0); b(iteration(0, False, 0, False, None, side_o0)); b(f"s_branch {name}_fin1"); fin1 += b.flush()
    b.label(name + "_pvd1", spv1); b(iteration(0, False, 1, False, None, side_o0)); b(f"s_branch {name}_fin1"); fin1 += b.flush()
    def merge_reads():
        b("s_waitcnt lgkmcnt(0)"); b("s_barrier")
        for w in range(4): b(f"ds_read_b128 {V(48+4*w, 4)}, {V(vLx)} offset:{w*1024}")
        for i in range(4):
            for a in range(2):
                for dt in (2*i, 2*i+1): b(f"ds_read_b128 {V(TMP + 4*(a*8+dt), 4)}, {V(vXp)} offset:{(a*8+dt)*1024}")
    def check():
        for r in range(8): b(f"v_add_f32 {V(48+r)}, {V(48+r)}, {V(56+(r ^ 2))}")
        b(f"""
        v_min3_f32 v56, v48, v49, v50
        v_min3_f32 v56, v56, v51, v52
        v_min3_f32 v56, v56, v53, v54
        v_min_f32 v56, v56, v55
        v_pk_add_f32 v[58:59], v[48:49], v[50:51]
        v_pk_add_f32 v[60:61], v[52:53], v[54:55]
        v_pk_add_f32 v[58:59], v[58:59], v[60:61]
        s_mov_b32 {S(sMK+2)}, {FH(L_HI)}
        v_add_f32 v57, v58, v59
        v_cmp_nle_f32 vcc, {FH(L_LO)}, v56
        v_cmp_nge_f32 {S(sMK,2)}, {S(sMK+2)}, v57
        s_or_b64 vcc, vcc, {S(sMK,2)}
        s_cselect_b32 {S(sT2)}, 1, {1 if force_fallback else 0}
        s_andn2_b32 {S(sT2)}, {S(sT2)}, {S(sSafe)}
        {"s_nop 0" if drop else f"s_cbranch_scc1 {name}_slow"}
        s_bitcmp1_b32 {S(sWV)}, 0
        s_cselect_b64 vcc, -1, 0
        s_bitcmp1_b32 {S(sWV)}, 1
        s_cselect_b64 {S(sMK,2)}, -1, 0
        """)
        for r in range(4): b(f"v_cndmask_b32 {V(48+r)}, {V(48+r)}, {V(52+r)}, vcc")
        b(f"""
        v_cndmask_b32 v28, v50, v48, {S(sMK,2)}
        v_cndmask_b32 v30, v51, v49, {S(sMK,2)}
        v_rcp_f32 v28, v28
        v_rcp_f32 v30, v30
        """)
    def normalise(off):
        for i in range(4):
            for a in range(2):
                for dt in (2*i, 2*i+1):
                    o = O(dt, 2 + a); t = TMP + 4*(a*8+dt)
                    for h in (0, 2): b(f"v_pk_add_f32 {V(t+h,2)}, {V(t+h,2)}, {V(o+h,2)}")
                    for h in (0, 2): b(f"v_pk_mul_f32 {V(t+h,2)}, {V(t+h,2)}, {V(28+2*a,2)} op_sel_hi:[1,0]")
                t = TMP + 4*(a*8+2*i); d = CF + 8*i + 4*a if off else t
                for k in range(4): b(f"v_cvt_pk_bf16_f32 {V(d+k)}, {V(t+2*k)}, {V(t+2*k+1)}")
                if (i, a) in ((0, 0), (2, 0)): b(f"s_add_u32 {S(sT3)}, {S(sCx)}, {off + i*2048}")
                b(f"buffer_store_dwordx4 {V(d,4)}, {V(vL)}, {sWS}, {S(sT3)} offen offset:{(i & 1)*2048 + a*1024}{CXS}", "cx")
                if not off:
                    for k in range(4): b(f"v_accvgpr_write_b32 {A(rno(Xf(0, i, a)) + k)}, {V(d+k)}")
    b.label(name + "_fin0", fin0)
    ST("pv")
    merge_reads(); ST("xr"); check()
    for w in range(4): b(f"ds_read_b64 {V(56+2*w,2)}, {V(vLx)} offset:{4096 + w*1024}")
    b(f"""
    s_mov_b32 {S(sPass)}, 1
    s_mov_b32 {S(sBLK)}, {S(sBLK2)}
    s_mov_b32 {S(sR0)}, 0
    s_mov_b32 {S(sA0)}, {hex(OOB)}
    s_mov_b32 {S(sA1)}, {hex(OOB)}
    s_mov_b32 {S(sAl)}, 163840
    @waitvm k
    s_waitcnt lgkmcnt(0)
    s_barrier
    """)
    b([rdK0(0, ds) for ds in range(4)])
    b(f"""
    v_pk_add_f32 v[56:57], v[56:57], v[58:59]
    v_pk_add_f32 v[60:61], v[60:61], v[62:63]
    v_pk_add_f32 v[56:57], v[56:57], v[60:61]
    buffer_store_dword v56, v22, {sWS}, s9 offen sc1
    buffer_store_dword v57, v22, {sWS}, s10 offen sc1
    """)
    for k, gr in enumerate(vgroups(toI(unit_diag(sVs, sVb)) + dmaKV(1, 0, sVs, "v"))):
        b(gr)
        for r in range(8*k, 8*k + 8): b(f"v_accvgpr_mov_b32 {A(r)}, {A(192+r)}")
    normalise(0)
    b(f"s_cmp_eq_u32 {S(sSafe)}, 0"); b(f"s_cbranch_scc1 {name}_nz"); nz = b.flush()
    for r in range(16): b(f"v_mov_b32 {V(NM(0)+r)}, 0")
    b.label(name + "_nz", nz + b.flush())
    if fine is not True: T.stamp(b, "blk1end")
    b("s_waitcnt lgkmcnt(0)"); b(f"s_branch {name}_blk")
    for x in b.flush(): assert [e[1] for e in x.vm][-NCX-1:] == ["v"] + ["cx"] * NCX
    b.label(name + "_slow", [State()])
    b(f"""
    s_waitcnt vmcnt(0) lgkmcnt(0)
    s_mov_b32 {S(sSafe)}, 1
    s_mov_b32 {S(sN)}, 0
    """)
    for q in range(4): b(f"v_mov_b32 {V(64+q)}, {FH(NEGBIG)}")
    b(f"""
    v_lshrrev_b32 v69, 4, v0
    v_lshlrev_b32 v69, 2, v69
    v_and_b32 v68, 15, v0
    v_sub_u32 v68, v68, v69
    s_and_b32 {S(sT2)}, {S(sWV)}, 1
    s_lshl_b32 {S(sT2)}, {S(sT2)}, 4
    v_add_u32 v68, {S(sT2)}, v68
    s_lshr_b32 {S(sT2)}, {S(sWV)}, 1
    s_lshl_b32 {S(sMK)}, {S(sT2)}, 5
    s_add_u32 {S(sMK+1)}, {S(sMK)}, 16
    s_sub_u32 {S(sMK+2)}, 96, {S(sMK)}
    s_add_u32 {S(sMK+3)}, {S(sMK+2)}, 16
    s_lshl_b32 s4, {S(sT2)}, 6
    s_xor_b32 s5, s4, 32
    s_xor_b32 s6, s4, 64
    s_xor_b32 s7, s4, 96
    v_mov_b32 v70, {FH(NEGBIG)}
    """)
    body = toI(["s_barrier", f"s_lshl_b32 {S(sKs)}, {S(sN)}, 15", f"s_add_u32 {S(sKs)}, {S(sKs)}, {S(sKb)}"]) + dmaKV(0, 0, sKs, "k")
    body += toI(["s_waitcnt vmcnt(0)", "s_barrier",
                 f"s_cmp_eq_u32 {S(sN)}, {S(sBLK)}", f"s_cselect_b32 {S(sT3)}, 0, 4096"])
    for kt in range(4):
        body += toI([rdK(0, kt, ds) for ds in range(4)])
        body += toI([f"v_subrev_u32 v69, {S(sMK+kt)}, v68", f"v_add_u32 v69, {S(sT3)}, v69"])
        for q in range(4):
            for ds in range(4): body += toI([MF(V(Sw(q), 4), Kf(kt, ds), Qf(ds, q), V(Sw(q), 4) if ds else "0")])
        for q in range(4):
            body += toI([f"v_add_u32 v72, {S(4+q)}, v69"])
            for r in range(4):
                body += toI([f"v_cmp_gt_i32 vcc, {r}, v72", f"v_cndmask_b32 v71, {V(Sw(q)+r)}, v70, vcc", f"v_max_f32 {V(64+q)}, {V(64+q)}, v71"])
    body += toI(["s_waitcnt lgkmcnt(0)", f"s_add_u32 {S(sN)}, {S(sN)}, 1", f"s_cmp_le_u32 {S(sN)}, {S(sBLK)}", f"s_cbranch_scc1 {name}_mx"])
    b.chain_loop([(name + "_mx", body)], align=0)
    for q in range(4):
        b(f"""
        v_mov_b32 v68, {V(64+q)}
        v_permlane16_swap_b32 {V(64+q)}, v68
        v_max_f32 {V(64+q)}, {V(64+q)}, v68
        v_mov_b32 v68, {V(64+q)}
        v_permlane32_swap_b32 {V(64+q)}, v68
        v_max_f32 {V(64+q)}, {V(64+q)}, v68
        """)
    b(f"""
    s_lshl_b32 {S(sT3)}, {S(sWV)}, 10
    v_add_u32 v19, {S(sT3)}, {V(vLx)}
    ds_write_b128 v19, v[64:67]
    v_xor_b32 v19, 0x800, v19
    s_waitcnt lgkmcnt(0)
    s_barrier
    ds_read_b128 v[68:71], v19
    """)
    for q in range(4):
        b(f"v_max_f32 {V(64+q)}, {V(64+q)}, {V(68+(q ^ 2))}")
        for r in range(4): b(f"v_sub_f32 {V(NM(q)+r)}, 0, {V(64+q)}")
    b("s_barrier")
    b(unit_r0(sKs, sKb)); b(dmaKV(0, 1, sKs, "k")); b(unit_diag(sVs, sVb)); b(dmaKV(1, 0, sVs, "v"))
    b([rdK0(0, ds) for ds in range(4)])
    b("s_waitcnt vmcnt(0) lgkmcnt(0)"); b(f"s_branch {name}_retry")
    b.label(name + "_fin1", fin1)
    ST("pv")
    poll_l = poll_kv.replace(" offen", " offen offset:128")
    b(poll_l)
    merge_reads(); ST("xr"); check()
    normalise(8192)
    T.stamp(b, "attend")
    vOa = 8
    b(f"""
    v_lshrrev_b32 v28, 2, v0
    v_mul_u32_u24 v28, 320, v28
    v_and_b32 v29, 3, v0
    v_lshl_add_u32 v28, v29, 3, v28
    v_bfe_u32 v29, v0, 4, 1
    v_lshlrev_b32 v29, 5, v29
    v_add_u32 {V(vOa)}, v28, v29
    v_sub_u32 v28, v28, v29
    v_add_u32 {V(vOa+1)}, 32, v28
    @waitvm o0
    s_barrier
    """)
    def oacc(n, m): return 96 + 16*n + 4*m
    def OWf(k, off, n): return V(64 + 16*(k & 3) + off, n) if (k & 3) < 2 else A(192 + 16*(k & 3) + off, n)
    ALL = (0, 1, 2, 3)
    outers = [(0, n, ALL) for n in range(10)]
    outers += ([(1, n, (0, 1)) for n in range(10)] + [(1, n, (2, 3)) for n in range(10)]) if OSP else [(1, n, ALL) for n in range(10)]
    outers += [(2, n, ALL) for n in range(OH)] + [(3, n, ALL) for n in range(OH)] + [(c, n, ALL) for n in range(OH, 10) for c in (2, 3)]
    if OB1:
        outers = [(0, n, ALL) for n in range(10)] + [(c, n, (0, 1)) for c in (1, 2, 3) for n in range(10)]
        outers += [(1, n, (2, 3)) for n in range(10)] + [(c, n, (2, 3)) for n in range(10) for c in (2, 3)]
    def rdO(k):
        c, n, _ = outers[k]
        return [f"ds_read_b64_tr_b16 {OWf(k, 4*ks + 2*hf, 2)}, {V(vOa + 2*c + (n & 1))} offset:{(32*ks + 16*hf)*320 + (n & ~1)*32}"
                for ks in range(4) for hf in range(2)]
    b(rdO(0))
    spin(name + "_pl", vPk, poll_l, 4)
    mf = []; og = []
    for k, (c, n, ms) in enumerate(outers):
        og.append(len(mf))
        for m in ms:
            for ks in range(4):
                d = V(oacc(n, m), 4)
                mf.append(MF(d, OWf(k, 4*ks, 4), Xf(c, ks, m), "0" if (c == 0 and ks == 0) else d))
    og.append(len(mf))
    sc = Sched(mf)
    rstart = {}
    for k in range(1, len(outers)):
        rstart[k] = og[k] - 16
        for r, x in enumerate(rdO(k)): sc.put(x, rstart[k] + r, force=True)
        sc.raw(f"@need {OWf(k, 0, 16)}", og[k] - 1, "pre")
    seq(sc, [f"v_add_u32 {V(vOa + 2*c + e)}, {CB[c]}, {V(vOa + e)}" for c in (1, 2, 3) for e in (0, 1)], 8)
    firstc = {c: min(k for k, o in enumerate(outers) if o[0] == c) for c in (1, 2, 3)}
    for c in (1, 2, 3): sc.raw([f"@waitvm o{c}", "s_barrier"], rstart[firstc[c]] - 1, "post2")
    def pace2(groups, g0, step):
        g = g0
        for gr in groups:
            for x in gr[:-1]: sc.raw(x, g - 1, "post")
            g = sc.putw(gr[-1], g, g + 1) + step
        return g
    if OPF:
        pf = toI([f"""
        s_lshr_b32 s6, s2, 3
        s_lshl_b32 s6, s6, 2
        s_add_u32 s6, s6, {S(sWV)}
        s_lshl_b32 s6, s6, 6
        v_add_u32 v28, s6, v0
        v_mul_u32_u24 v29, 1171, v28
        v_lshrrev_b32 v29, 18, v29
        v_mul_u32_u24 v30, 224, v29
        v_sub_u32 v28, v28, v30
        v_mul_u32_u24 v30, {108*8}, v29
        v_add_u32 v28, v28, v30
        v_subrev_u32 v30, {20*108*8 + 54*8}, v28
        v_cmp_gt_u32 vcc, 20, v29
        v_cndmask_b32 v28, v30, v28, vcc
        v_add_u32 v28, {54*8}, v28
        v_lshlrev_b32 v28, 7, v28
        s_and_b32 s6, s2, 1
        s_mul_i32 s6, s6, {28*1024}
        s_add_u32 s6, s6, {WS_WIN}
        s_bfe_u32 s7, s2, 0x20001
        s_lshl_b32 s7, s7, 3
        s_lshr_b32 s4, s2, 5
        s_add_u32 s7, s7, s4
        s_lshl_b32 s7, s7, 2
        s_add_u32 s7, s7, {S(sWV)}
        s_mul_i32 s7, s7, {16*1280}
        s_and_b32 s4, s2, 1
        s_lshl_b32 s4, s4, 2
        s_bfe_u32 s5, s2, 0x20003
        s_add_u32 s4, s4, s5
        s_mul_i32 s4, s4, 160
        s_add_u32 s7, s7, s4
        v_bfe_u32 v29, v0, 1, 4
        v_mul_u32_u24 v29, 1280, v29
        v_and_b32 v30, 1, v0
        v_lshl_add_u32 v29, v30, 7, v29
        """])
        seq(sc, pf, 20)
        opf = [toI([f"buffer_load_dword v31, v28, {sWS}, s6 offen sc1"]), toI([f"buffer_load_dword v31, v29, {S(R['dbg'],4)}, s7 offen"])]
    d1 = vgroups(dmaO(1))
    g = pace2(d1[:OE], OA - 4*OE, 4)
    g = pace2([toI(["@waitvm cx", f"buffer_atomic_add {V(vOne)}, {V(vFlagW)}, {sWS}, {S(sFx)} offen"])] + d1[OE:], max(g, OA), 4)
    assert g < og[firstc[1] - 1] - 12, g
    if not OB1:
        x1 = vgroups(ldX(1, (0,)))
        g = pace2(x1[:OX], g, 4)
        gp = sc.put(poll_kv, g, force=True)
        d2 = vgroups(dmaO(2))
        g = pace2(x1[OX:] + d2[:OD], gp + 3, 4)
        OC = max(g, gp + OW)
        sc.raw("@mark pc", OC)
        need2 = 240 if OSP else 160
        g = pace2(vgroups(ldX(1, (1,))), OC + 2, 4 if OC + 40 < need2 else 1); assert g <= need2, g
        g = pace2(d2[OD:], g, 4); assert g < og[firstc[2] - 1] - 8, g
        g = pace2(vgroups(ldX(2, (0, 1))), g, OS); assert g <= og[firstc[2]], g
        g = pace2(vgroups(dmaO(3)), g, OS); assert g < og[firstc[3] - 1] - 4, g
        g = pace2(vgroups(ldX(3, (0, 1))), g, OS); assert g <= og[firstc[3]], (g, og[firstc[3]])
    else:
        g = pace2(vgroups(ldX(1, (0,))), g, 4); assert g <= 160
        g = pace2(vgroups(dmaO(2)), g, 4); assert g < 212
        g = pace2(vgroups(ldX(2, (0,))), g, 4); assert g <= 240, g
        gp = sc.put(poll_kv, g, force=True)
        g = pace2(vgroups(dmaO(3)), g + 3, 4); assert g < 292
        g = pace2(vgroups(ldX(3, (0,))), g, 4); assert g <= 320
        OC = g
        sc.raw("@mark pc", OC)
        g = pace2(vgroups(ldX(1, (1,))), OC + 2, 4); assert g <= 400
        g = pace2(vgroups(ldX(2, (1,))) + vgroups(ldX(3, (1,))), g, OS + 2); assert g <= 476, g
    gl = g
    if OPF: pace2(opf, OG, 4)
    sP0, sP1 = 60, 61
    seq(sc, [f"s_lshr_b32 {S(sT3)}, {S(sHD)}, 2", f"s_mul_i32 {S(sP0)}, {S(sT3)}, {32*20*4096}", f"s_add_u32 {S(sP0)}, {S(sP0)}, {WS_PART + 20*4096}",
             f"s_lshr_b32 {S(sT3)}, {S(sWV)}, 1", f"s_mul_i32 {S(sT3)}, {S(sT3)}, {20*4096}", f"s_sub_u32 {S(sP0)}, {S(sP0)}, {S(sT3)}",
             f"s_and_b32 {S(sT3)}, {S(sWV)}, 1", f"s_lshl_b32 {S(sT3)}, {S(sT3)}, 10", f"s_add_u32 {S(sP0)}, {S(sP0)}, {S(sT3)}",
             f"s_and_b32 {S(sT3)}, {S(sHD)}, 3", f"s_mul_i32 {S(sT3)}, {S(sT3)}, {5*4096}", f"s_add_u32 {S(sP0)}, {S(sP0)}, {S(sT3)}",
             f"s_mul_i32 {S(sT3)}, {S(sJ)}, {40*4096}", f"s_add_u32 {S(sP1)}, {S(sP0)}, {S(sT3)}",
             f"s_sub_u32 {S(sP0)}, {S(sP0)}, {S(sT3)}", f"s_add_u32 {S(sP0)}, {S(sP0)}, {15*40*4096}"], 10)
    def done(n, m):
        k = max(k for k, o in enumerate(outers) if o[1] == n and m in o[2]); return og[k] + 4*outers[k][2].index(m)
    g = 0
    order = sorted([(p, m) for p in range(5) for m in range(4)], key=lambda x: done(2*x[0] + 1, x[1]))
    for p, m in order:
        if True:
            r0, r1 = oacc(2*p, m), oacc(2*p + 1, m)
            cv = lambda d, x: f"v_cvt_pk_bf16_f32 {V(d)}, {V(x)}, {V(x+1)}"
            seq(sc, [cv(r0, r0), cv(r0+1, r0+2)], done(2*p, m) + 9)
            g = wseq(sc, [cv(r0+2, r1), cv(r0+3, r1+2), f"s_add_u32 {S(sT3)}, {S(sP1 if m >> 1 else sP0)}, {p*4096}",
                         I(f"buffer_store_dwordx4 {V(r0,4)}, {V(vL)}, {sWS}, {S(sT3)} offen offset:{(m & 1)*2048}{PST}", f"pt{m >> 1}")],
                    max(g + (OT if done(2*p + 1, m) < 600 else 0), done(2*p + 1, m) + 9))
            if m < 2: g_long = g
    hk = {"pc": lambda: spin(name + "_pc", vPk, poll_kv, 4)}
    seq(sc, [f"s_lshl_b32 s75, {S(sJ)}, 2", f"s_and_b32 s74, {S(sHD)}, 3", "s_add_u32 s75, s75, s74", "s_lshl_b32 s75, s75, 2", f"s_add_u32 s75, s75, {S(sWV)}",
             "s_lshl_b32 s75, s75, 8", f"s_add_u32 s75, s75, {WS_FLG + FL_P*128}", f"s_lshr_b32 s74, {S(sHD)}, 2", "s_lshl_b32 s74, 1, s74", "v_mov_b32 v31, s74"], 40)
    gr = seq(sc, [f"v_and_b32 {V(vPa)}, 31, v0", f"v_lshlrev_b32 {V(vPa)}, 7, {V(vPa)}", f"v_add_u32 {V(vPa)}, {WS_FLG + FL_R*128}, {V(vPa)}"], OC + 4)
    gr = sc.put(poll_kv, gr + 1, force=True)
    sc.raw("@mark pr", gr + 50, "post2"); hk["pr"] = lambda: spin(name + "_pr", vPk, poll_kv, 32)
    pace2([toI(["@waitvm pt0", f"buffer_atomic_add v31, {V(vFlagW)}, {sWS}, s75 offen offset:128"])], g_long + OQ, 1)
    pre_t = tail.pre(WS_FLG + FL_P*128, vPa, vL)
    assert seq(sc, pre_t, max(gl, gr + 52)) < OZ
    sc.raw([f"v_mov_b32 {V(vPk)}, 0", "s_add_u32 s7, s7, s6"], OZ - 1)
    sc.put(f"buffer_atomic_add {V(vPk)}, {V(vFlagW)}, {sWS}, s7 offen sc0", OZ, force=True)
    if fine == "op":
        for gg in (OA + 1, OC - 1, OC + 1, 159, 175, 239, 255, 319, 335, 479):
            sc.raw(f"@mark g{gg}", gg, "post2"); hk[f"g{gg}"] = lambda gg=gg: T.stamp(b, f"g{gg}")
    emit_split(sc, hk)
    T.stamp(b, "end")
    tail(b, T, name, R, vPa, vPk)
    if probe:
        T.n = 7; T.names[:] = [f"p{k}" for k in range(7)]
        for k in range(7): b(f"s_mov_b32 {S(84 + k)}, {S(86 + 2*k)}")
    T.dump(b, R["ws"], 2, sWV, 12)
    b.label(name + "_end")
    b("s_endpgm")
    b.flush()
    if probe:
        la, lb, step, skip_ = (list(probe) + [0])[:4]
        ia = next(k for k, i in enumerate(b.out) if i.t == f"{name}_{la}:"); ib = next(k for k, i in enumerate(b.out) if i.t == f"{name}_{lb}:")
        new = []; cnt = 0; n0 = 0
        for k, i in enumerate(b.out):
            if ia < k < ib and i.kind not in ("label", "pseudo"):
                if cnt >= skip_ + n0 * step and n0 < 7 and not i.op.startswith(("s_cselect", "s_cbranch", "s_addc")):
                    new.append(I(f"s_memtime s[{86 + 2*n0}:{87 + 2*n0}]")); n0 += 1
                cnt += 1
            new.append(i)
        b.out = new
    lastw = {}
    for i in b.out:
        if i.kind == "label" and i.t.endswith("_blk:"): break
        if i.tag in ("kv0", "kv1") or i.op == "ds_write_b128":
            data = regs_of(i.t.split(None, 1)[1].split(",")[0 if i.kind == "vmem" else 1].split()[0])
            assert all(lastw[r].op in ("v_cvt_pk_bf16_f32", "v_accvgpr_write_b32") for r in data), i.t
        if i.op == "v_accvgpr_write_b32" and not i.t.endswith("v12"): assert all(lastw[r].op == "v_cvt_pk_bf16_f32" for r in i.r), i.t
        for r in i.w: lastw[r] = i
    return dict(name=name, text=b.text(), kd=kd(name, 512, 256), launch=f"; @launch {'' if name.startswith('adaLN') and not aslist else f'kernel={name} '}grid=(256,1,1) block=(256,1,1) lds=163840", stamps=T.names)
```

```python
from common import *
from kt import (sWV, sRB, sCS, sT, sT2, sT3, vL16, vG, vR, slices, tile_voffs, xg, row_sums, fin_stats,
                store_act, gelu, GC1, GC2, SPIN_MAX)
from kf2 import vgroups
FA, FD, FC, FB = 0, 128, 256, 512

def fused(**kw):
    def f(b, T, name, RA, vPa0, vPk0):
        body(b, T, name + "_t", RA, vPa0, vPk0, **kw)
        T.stamp(b, "tend")
    f.pre = pre
    return f

def pre(flp, vPa0, vL):
    return toI([f"""
    s_and_b32 {S(sCS)}, s2, 1
    s_lshl_b32 {S(sCS)}, {S(sCS)}, 2
    s_bfe_u32 s6, s2, 0x20003
    s_add_u32 {S(sCS)}, {S(sCS)}, s6
    s_bfe_u32 {S(sRB)}, s2, 0x20001
    s_lshl_b32 {S(sRB)}, {S(sRB)}, 2
    s_bfe_u32 s6, s2, 0x20005
    s_add_u32 {S(sRB)}, {S(sRB)}, s6
    s_lshr_b32 s6, s2, 7
    s_lshl_b32 s6, s6, 4
    s_add_u32 {S(sRB)}, {S(sRB)}, s6
    s_lshr_b32 s6, {S(sCS)}, 1
    s_mul_i32 s6, s6, 10
    s_and_b32 s7, {S(sCS)}, 1
    s_add_u32 s55, s6, 4
    s_add_u32 s55, s55, s7
    s_mul_i32 s7, s7, 6
    s_add_u32 s54, s6, s7
    s_mul_i32 s59, {S(sRB)}, {20*4096}
    s_lshl_b32 s6, {S(sWV)}, 10
    s_add_u32 s59, s59, s6
    s_add_u32 s58, s59, {WS_PART}
    s_add_u32 s59, s59, {WS_XA}
    s_lshl_b32 s6, s54, 11
    v_add_u32 v28, s6, {V(vL)}
    v_add_u32 v29, 4096, v28
    s_lshr_b32 s6, s55, 1
    s_lshl_b32 s6, s6, 12
    v_add_u32 v30, s6, {V(vL)}
    s_lshr_b32 s6, {S(sRB)}, 1
    s_sub_u32 s7, 15, s6
    s_min_u32 s6, s6, s7
    s_lshl_b32 s6, s6, 2
    s_lshr_b32 s7, {S(sCS)}, 1
    s_add_u32 s6, s6, s7
    s_lshl_b32 s6, s6, 1
    s_and_b32 s7, {S(sRB)}, 1
    s_xor_b32 s7, s7, 1
    s_add_u32 s6, s6, s7
    s_lshl_b32 s6, s6, 1
    s_and_b32 s7, {S(sWV)}, 1
    s_add_u32 s6, s6, s7
    s_lshl_b32 s6, s6, 1
    s_lshr_b32 s7, {S(sRB)}, 4
    s_add_u32 s6, s6, s7
    s_lshl_b32 s6, s6, 7
    s_add_u32 s6, s6, {flp}
    v_mov_b32 {V(vPa0)}, s6
    s_cmp_eq_u32 s7, 0
    s_cselect_b32 s7, {hex(OOB)}, 0
    """])

def body(b, T0, name, RA, vPa0, vPk0, few=None, SP=(3, 4, 2, 4), PT=2, AC=40, EV=9, PNT='', WI=(), NE=2, dbg=(), ZS=2, CS=6, CA=False):
    class TT:
        def stamp(self, b, nm):
            if few is None or nm in few: T0.stamp(b, nm)
    T = TT()
    R = {"x": RA["dbg"], "ws": RA["ws"], "bsp": 8, "out": 12}
    sWS = S(R["ws"], 4); sX = S(R["x"], 4)
    sRd, sDone, sNew, sWr, sLr = 65, 66, 67, 70, 71
    PF = lambda x, f: A(12*x + 4*f, 4)
    def ldP(x): return toI([f"s_add_u32 {S(sT)}, s58, {x*32*20*4096}"] + [f"buffer_load_dwordx4 {PF(x, f)}, {V(28+f)}, {sWS}, {S(sT)} offen sc1{PNT}" for f in range(3)])
    b(f"""
    s_load_dwordx2 s[8:9], s[0:1], {ARG['bsp']}
    s_load_dwordx2 s[12:13], s[0:1], {ARG['out']}
    v_readfirstlane_b32 {S(sNew)}, {V(vPk0)}
    v_readfirstlane_b32 s82, {V(vPa0)}
    v_mov_b32 v14, {V(vPk0)}
    s_mov_b32 {S(sDone)}, 0
    s_and_b32 {S(sNew)}, {S(sNew)}, {(1 << NE) - 1}
    s_cmp_lg_u32 {S(sNew)}, {(1 << NE) - 1}
    s_cbranch_scc1 {name}_ne
    """)
    ne = b.flush()
    for x in range(NE): b(ldP(x))
    b(f"s_mov_b32 {S(sDone)}, {(1 << NE) - 1}")
    early = b.flush()
    b.label(name + "_ne", [State()])
    b(f"""
    s_mov_b32 s10, {hex(SIZE['bsp'])}
    s_mov_b32 s11, 0x20000
    s_mov_b32 s14, {hex(SIZE['out'])}
    s_mov_b32 s15, 0x20000
    v_lshlrev_b32 {V(vL16)}, 4, v0
    v_lshrrev_b32 {V(vG)}, 4, v0
    v_and_b32 {V(vR)}, 15, v0
    s_waitcnt lgkmcnt(0)
    """)
    sB5, sE5, sB7, sE7 = 54, 55, 56, 57
    sW, sXo, sW1, sW2, sRow, sLb, sSp = 58, 59, 60, 61, 62, 76, 77
    SM, SV, TB = 156 * 1024, 157 * 1024, 140 * 1024
    vFW, vOne, vPa, vPoll, vSm, vOob = 40, 12, 13, 14, 38, 39
    vSt, vSl, vVec, vXm = 36, 37, 41, 170
    slices(b, 7, sB7, sE7)
    at5 = tile_voffs(b, 5, sB5, sE5, 4, 5, 6, 1024, vL16)
    at7 = tile_voffs(b, 7, sB7, sE7, 4, 5, 7, 1024, vL16)
    b(f"""
    s_mul_i32 {S(sW1)}, {S(sWV)}, {108*1024}
    s_lshl_b32 {S(sT)}, {S(sB7)}, 10
    s_add_u32 {S(sW1)}, {S(sW1)}, {S(sT)}
    s_add_u32 {S(sW1)}, {S(sW1)}, {WS_WIN - 1024}
    s_add_u32 {S(sW2)}, {S(sW1)}, {54*1024}
    s_mul_i32 {S(sLb)}, {S(sWV)}, 7168
    s_lshl_b32 {S(sRow)}, {S(sRB)}, 2
    s_add_u32 {S(sRow)}, {S(sRow)}, {S(sWV)}
    v_mov_b32 {V(vOob)}, {hex(OOB)}
    v_mov_b32 {V(vFW)}, {hex(OOB)}
    v_writelane_b32 {V(vFW)}, 0, 0
    v_mov_b32 {V(vOne)}, 1
    v_lshlrev_b32 v44, 3, {V(vG)}
    v_mul_u32_u24 v15, 1280, {V(vR)}
    v_add_u32 v15, v44, v15
    s_mul_i32 s68, {S(sRow)}, {16*1280}
    s_lshl_b32 s69, {S(sE5)}, 5
    s_add_u32 s69, s69, s68
    s_lshl_b32 s70, {S(sB5)}, 5
    s_add_u32 s68, s68, s70
    v_lshlrev_b32 {V(vSl)}, 6, {V(vR)}
    v_cmp_eq_u32 vcc, 0, {V(vG)}
    v_cndmask_b32 {V(vSt)}, {V(vOob)}, {V(vSl)}, vcc
    v_lshl_add_u32 {V(vSl)}, {V(vG)}, 4, {V(vSl)}
    s_lshl_b32 s63, {S(sRow)}, 10
    s_lshl_b32 {S(sT2)}, {S(sCS)}, 3
    s_add_u32 s64, s63, {S(sT2)}
    s_lshl_b32 {S(sSp)}, {S(sRB)}, 18
    s_add_u32 {S(sSp)}, {S(sSp)}, {WS_WSP}
    v_lshlrev_b32 {V(vSm)}, 4, {V(vG)}
    v_add_u32 {V(vSm)}, {SM}, {V(vSm)}
    """)
    for t in range(4):
        b(f"""
        s_lshr_b32 {S(sT)}, {S(sRB)}, 2
        s_add_u32 {S(sT)}, {S(sT)}, {1 + t}
        s_and_b32 {S(sT)}, {S(sT)}, 3
        s_lshl_b32 {S(sT)}, {S(sT)}, 2
        s_add_u32 {S(16+t)}, {S(sT)}, {S(sWV)}
        s_lshl_b32 {S(sT)}, {S(16+t)}, 13
        s_add_u32 {S(20+t)}, {S(sT)}, {S(sSp)}
        """)
    kofs = lambda k: (32 if (k & 3) < 2 else 0) + (k & 1)
    def small_voff(dst, per, sB, sE, mul, strides):
        b(f"""
        v_mul_u32_u24 v44, {mul}, v0
        v_lshrrev_b32 v44, 10, v44
        v_mul_u32_u24 v45, {4*per}, v44
        v_sub_u32 v45, v0, v45
        v_lshlrev_b32 v46, 4, v45
        s_lshl_b32 {S(sT)}, {S(sB)}, 6
        s_sub_u32 {S(sT2)}, {S(sE)}, {per-1}
        s_lshl_b32 {S(sT2)}, {S(sT2)}, 6
        """)
        if per == 7: b(f"s_cmp_ge_u32 {S(sCS)}, 6"); b(f"s_cselect_b32 {S(sT2)}, {hex(OOB)}, {S(sT2)}")
        b(f"""
        v_mov_b32 v47, {S(sT)}
        v_mov_b32 {V(dst)}, {S(sT2)}
        v_cmp_gt_u32 vcc, {4*(per-1)}, v45
        v_cndmask_b32 v47, {V(dst)}, v47, vcc
        v_add_u32 v46, v46, v47
        v_mov_b32 {V(dst)}, {V(vOob)}
        """)
        for k, st in enumerate(strides):
            b(f"v_add_u32 v47, {st}, v46"); b(f"v_cmp_eq_u32 vcc, {k}, v44"); b(f"v_cndmask_b32 {V(dst)}, {V(dst)}, v47, vcc")
    small_voff(42, 5, sB5, sE5, 52, [WS_MOD + 2*2560, WS_MOD + 4*2560, WS_MOD + 5*2560])
    small_voff(vVec, 7, sB7, sE7, 37, [WS_VEC, WS_VEC + 0x2000])
    SEL = 44
    b(f"""
    v_lshlrev_b32 v56, 2, {V(vG)}
    v_sub_u32 v56, {V(vR)}, v56
    v_mov_b32 v57, 0x3f80
    v_mov_b32 v58, 0x3f800000
    v_cmp_eq_u32 vcc, 0, v56
    v_cndmask_b32 v44, 0, v57, vcc
    v_cmp_eq_u32 vcc, 1, v56
    v_cndmask_b32 v44, v44, v58, vcc
    v_cmp_eq_u32 vcc, 2, v56
    v_cndmask_b32 v45, 0, v57, vcc
    v_cmp_eq_u32 vcc, 3, v56
    v_cndmask_b32 v45, v45, v58, vcc
    v_mov_b32 v46, 0
    v_mov_b32 v47, 0
    v_mov_b32 v48, 0
    v_mov_b32 v49, 0
    v_mov_b32 v50, v44
    v_mov_b32 v51, v45
    s_bitcmp1_b32 {S(sE5)}, 0
    s_cselect_b64 vcc, -1, 0
    """)
    for k in range(4): b(f"v_cndmask_b32 {V(52+k)}, {V(44+k)}, {V(48+k)}, vcc")
    def dmaW(nW, at, soff, goff, sl, loff, tag, valid=None):
        o = [f"s_add_u32 {S(sT2)}, {S(soff)}, {goff}"]
        if valid: o += [valid, f"s_cselect_b32 {S(sT2)}, {S(sT2)}, {hex(OOB)}"]
        for n in range(nW):
            v, ofs = at(n)
            if ofs == 0: o.append(f"s_add_u32 m0, {S(sl)}, {loff + n*1024}")
            o.append(I(f"buffer_load_dwordx4 {v}, {sWS}, {S(sT2)} offen offset:{ofs} sc1 lds", tag))
        return toI(o)
    dW2 = lambda r: dmaW(7, at7, sW2, 4*r*108*1024, sLb, 4*r*7168, "w2")
    dW1 = lambda r: dmaW(7, at7, sW1, 4*r*108*1024, sLb, 4*r*7168, "w1")
    def arrive_ins(tag, line_ins):
        return toI(line_ins + [f"s_lshl_b32 {S(sT)}, {S(sT)}, 7", f"s_add_u32 {S(sT)}, {S(sT)}, {WS_FL2}", f"@waitvm {tag}",
                               f"buffer_atomic_add {V(vOne)}, {V(vFW)}, {sWS}, {S(sT)} offen"])
    poll = f"buffer_load_dword {V(vPoll)}, {V(vPa)}, {sWS}, 0 offen sc1"
    def poll_addr(line_ins, four):
        o = line_ins + [f"s_lshl_b32 {S(sT)}, {S(sT)}, 7", f"s_add_u32 {S(sT)}, {S(sT)}, {WS_FL2}"]
        if four: o += [f"v_and_b32 {V(vPa)}, 3, v0", f"v_lshl_add_u32 {V(vPa)}, {V(vPa)}, 7, {S(sT)}"]
        else: o += [f"v_mov_b32 {V(vPa)}, {S(sT)}"]
        return toI(o)
    def spin(lab, test, again):
        b(test)
        b(f"s_cbranch_vccz {lab}_ok")
        sts = b.flush()
        b(f"s_mov_b32 {S(sT3)}, 0")
        b.label(f"{lab}_spin")
        b(again)
        b(f"s_add_u32 {S(sT3)}, {S(sT3)}, 1")
        b(f"s_cmp_gt_u32 {S(sT3)}, {SPIN_MAX}")
        b("s_waitcnt vmcnt(0)")
        b(f"s_cbranch_scc1 {lab}_ok")
        b(test)
        b(f"s_cbranch_vccnz {lab}_spin")
        b.label(f"{lab}_ok", sts + b.flush())
    def spin_cnt(lab, target): spin(lab, f"v_cmp_gt_u32 vcc, {target}, {V(vPoll)}", ([f"s_sleep {CS}"] if CS else []) + [poll])
    sFl = 82
    apoll = [f"v_mov_b32 {V(vPoll)}, 0", f"buffer_atomic_add {V(vPoll)}, {V(vFW)}, {sWS}, {S(sFl)} offen sc0"]
    def arrive_ret(tag, line):
        return toI([f"s_add_u32 {S(sFl)}, {S(sRow)}, {line}", f"s_lshl_b32 {S(sFl)}, {S(sFl)}, 7", f"s_add_u32 {S(sFl)}, {S(sFl)}, {WS_FL2}", f"v_mov_b32 {V(vPoll)}, 1"]
                   + ([f"@waitvm {tag}"] if tag else []) + [f"buffer_atomic_add {V(vPoll)}, {V(vFW)}, {sWS}, {S(sFl)} offen sc0"])
    def spin_at(lab, first, target):
        b(f"v_readfirstlane_b32 {S(sT)}, {V(vPoll)}"); b(f"s_cmp_ge_u32 {S(sT)}, {first}"); b(f"s_cbranch_scc1 {lab}_ok")
        sts = b.flush()
        b(f"s_mov_b32 {S(sT3)}, 0")
        b.label(f"{lab}_spin")
        b(apoll)
        b(f"s_add_u32 {S(sT3)}, {S(sT3)}, 1")
        b(f"s_cmp_gt_u32 {S(sT3)}, {SPIN_MAX}")
        b("s_waitcnt vmcnt(0)")
        b(f"s_cbranch_scc1 {lab}_ok")
        b(f"v_readfirstlane_b32 {S(sT)}, {V(vPoll)}"); b(f"s_cmp_lt_u32 {S(sT)}, {target}"); b(f"s_cbranch_scc1 {lab}_spin")
        b.label(f"{lab}_ok", sts + b.flush())
    def spin_st(lab, st, ld):
        spin(lab, [f"v_cmp_gt_f32 vcc, 0, {V(st+1)}", f"v_cmp_gt_f32 s[72:73], 0, {V(st+3)}", "s_or_b64 vcc, vcc, s[72:73]"], ld)
    def capture(f):
        n = len(b.cur); f(); o = b.cur[n:]; del b.cur[n:]; return o
    def tagged(f, tag):
        o = capture(f)
        for i in o:
            if i.kind == "vmem": i.tag = tag
        b(o)
    def weave_v(valu, groups, every):
        groups = list(groups)
        for k, i in enumerate(valu):
            b(i)
            if k % every == every - 1 and groups: b(groups.pop(0))
        for g in groups: b(g)
    def emit_marks(sc, hooks):
        cur = []
        for i in sc.emit():
            if i.kind == "pseudo" and i.op == "@mark": b(cur); cur = []; hooks[i.t.split()[1]]()
            else: cur.append(i)
        b(cur)
    def xs(k, m):
        k = k % 14
        return A((240 - 16*k if k < 11 else 32 + 16*(k - 11)) + 4*m, 4)
    def lS(k): return toI([f"s_add_u32 {S(sT)}, {S(20 + (k >> 2))}, {kofs(k)*4096}"] + [f"buffer_load_dwordx4 {xs(k, m)}, {V(vXm+m)}, {sWS}, {S(sT)} offen sc1" for m in range(4)])
    spn = [0]
    def more_sp(n):
        o = []
        for _ in range(n): o += lS(spn[0]); spn[0] += 1
        return o
    XP, GA, AB, X1 = 96, 56, 76, 16
    b(f"""
    s_mov_b32 {S(sRd)}, 0
    s_mov_b32 {S(sWr)}, {S(sW2)}
    s_mov_b32 {S(sLr)}, {S(sLb)}
    s_mov_b32 s3, 0
    s_waitcnt vmcnt({3*NE})
    s_cmp_lg_u32 {S(sDone)}, 0
    s_cbranch_scc1 {name}_ak
    s_waitcnt vmcnt(0)
    """)
    b.label(name + "_ak")
    b(f"""
    buffer_atomic_add v31, {V(vFW)}, {sWS}, s75 offen
    s_barrier
    """)
    T.stamp(b, "arrP")
    b(f"s_mov_b32 m0, {SM}"); b(f"buffer_load_dwordx4 v42, {sWS}, 0 offen sc1 lds")
    for h in range(2):
        b(f"s_mov_b32 m0, {SV + 1024*h}"); b(f"s_mov_b32 {S(sT)}, {h*54*64}"); b(f"buffer_load_dwordx4 {V(vVec)}, {sWS}, {S(sT)} offen sc1 lds")
    for n in range(5): b(f"buffer_load_dwordx2 {V(XP+2*n,2)}, v15, {sX}, {'s68' if n < 4 else 's69'} offen offset:{32*n if n < 4 else 0}")
    for m in range(4):
        b(f"s_add_u32 {S(sT)}, {S(sWV)}, {m}"); b(f"s_and_b32 {S(sT)}, {S(sT)}, 3"); b(f"s_lshl_b32 {S(sT)}, {S(sT)}, 10")
        b(f"v_add_u32 {V(vXm+m)}, {S(sT)}, {V(vL16)}")
    def w2round():
        return dmaW(7, at7, sWr, 0, sLr, 0, "w2") + toI([f"s_add_u32 {S(sWr)}, {S(sWr)}, {4*108*1024}", f"s_add_u32 {S(sLr)}, {S(sLr)}, {4*7168}", f"s_add_u32 {S(sRd)}, {S(sRd)}, 1"])
    b.flush(); b.label(name + "_pl", [State()])
    b(f"""
    v_readfirstlane_b32 {S(sNew)}, {V(vPoll)}
    s_andn2_b32 {S(sNew)}, {S(sNew)}, {S(sDone)}
    s_or_b32 {S(sDone)}, {S(sDone)}, {S(sNew)}
    """)
    for x in range(8):
        b(f"s_bitcmp0_b32 {S(sNew)}, {x}"); b(f"s_cbranch_scc1 {name}_px{x}"); b(ldP(x))
        if x in WI: b(f"s_cmp_ge_u32 {S(sRd)}, 5"); b(f"s_cbranch_scc1 {name}_px{x}"); b(w2round())
        b.flush(); b.label(f"{name}_px{x}", [State()])
    b(f"""
    s_cmp_eq_u32 {S(sDone)}, 0xff
    s_cbranch_scc1 {name}_po
    s_add_u32 s3, s3, 1
    s_cmp_gt_u32 s3, {SPIN_MAX}
    s_cbranch_scc1 {name}_po
    s_cmp_ge_u32 {S(sRd)}, 5
    s_cbranch_scc1 {name}_pn
    """)
    b(w2round()); b.flush(); b.label(name + "_pn", [State()])
    b(apoll); b("s_waitcnt vmcnt(0)"); b(f"s_branch {name}_pl")
    b.flush(); b.label(name + "_po", [State()])
    T.stamp(b, "gotP")
    b(f"s_cmp_ge_u32 {S(sRd)}, 5"); b(f"s_cbranch_scc1 {name}_pw")
    b(w2round()); b("s_waitcnt vmcnt(7)"); b(f"s_branch {name}_pz"); s1 = b.flush()
    b.label(name + "_pw", [State()]); b("s_waitcnt vmcnt(0)")
    b.label(name + "_pz", s1 + b.flush())
    for n in range(5):
        b(f"ds_read_b128 {V(GA+4*n,4)}, {V(vSm)} offset:{n*64}"); b(f"ds_read_b128 {V(AB+4*n,4)}, {V(vSm)} offset:{320 + n*64}")
    sc = Sched([MF(V(X1 + 4*n, 4), V(SEL + (8 if n == 4 else 4*(n & 1)), 4), PF(x, n >> 1), V(X1 + 4*n, 4) if x else "0") for n in range(5) for x in range(8)])
    sc.seq([y for n in range(5) for j in range(2) for y in (f"v_lshlrev_b32 {V(112+4*n+2*j)}, 16, {V(XP+2*n+j)}", f"v_and_b32 {V(113+4*n+2*j)}, 0xffff0000, {V(XP+2*n+j)}")], 0)
    for n in range(4):
        sc.seq([f"v_fma_f32 {V(X1+k)}, {V(X1+k)}, {V(GA+k)}, {V(112+k)}" for k in range(4*n, 4*n + 4)]
               + [f"v_mul_f32 {V(GA+k)}, {V(X1+k)}, {V(AB+k)}" for k in range(4*n, 4*n + 4)], 8*n + 12)
    b(sc.emit())
    T.stamp(b, "red")
    for k in (16, 18): b(f"v_pk_fma_f32 {V(X1+k,2)}, {V(X1+k,2)}, {V(GA+k,2)}, {V(112+k,2)}")
    for k in (16, 18): b(f"v_pk_mul_f32 {V(GA+k,2)}, {V(X1+k,2)}, {V(AB+k,2)}")
    tagged(lambda: store_act(b, sWS, 5, GA, WS_XA, 20, sB5, sE5, 12, " sc1"), "A")
    row_sums(b, X1, 20, 116, 112)
    b(f"s_add_u32 {S(sT)}, s64, {WS_ST1}")
    b(f"buffer_store_dwordx2 v[116:117], {V(vSt)}, {sWS}, {S(sT)} offen sc1")
    def w2if(tag):
        b(f"s_cmp_ge_u32 {S(sRd)}, 5"); b(f"s_cbranch_scc1 {name}_{tag}"); sk = b.flush()
        b(w2round()); b.label(f"{name}_{tag}", sk + b.flush())
    b(arrive_ret("A", FA))
    T.stamp(b, "arrA")
    w2if("wa"); w2if("wb"); w2if("wc"); w2if("wd")
    b(more_sp(SP[0]))
    V1, V2, TM, Z2, Z1, ST, ST2 = 76, 104, 104, 132, 48, 160, 164
    b(f"""
    v_mov_b32 v44, {FH(-GC1)}
    v_mov_b32 v45, {FH(-GC1)}
    v_mov_b32 v46, {FH(-GC2)}
    v_mov_b32 v47, {FH(-GC2)}
    v_add_u32 v8, 65536, {V(vL16)}
    v_add_u32 v9, 131072, {V(vL16)}
    @waitvm w2
    s_barrier
    """)
    NR = 12
    def wring(i): return V(176 + 4*(i % NR), 4)
    def rdl(i, addr): return f"ds_read_b128 {wring(i)}, {V((vL16, 8, 9)[addr >> 16])} offset:{addr & 0xffff}"
    def msplit(order, accf, xf, addr, lead=10):
        seen = set(); mf = []
        for i, (ks, n) in enumerate(order):
            mf.append(MF(accf(n), wring(i), xf(ks), accf(n) if n in seen else "0")); seen.add(n)
        sc = Sched(mf)
        for i in range(lead, len(order)): sc.put(rdl(i, addr(*order[i])), i - lead, force=True)
        for i in range(1, len(order) - 1, 2): sc.raw(f"@need {wring(i+1)} {wring(min(i+2, len(order)-1))}", i, "pre")
        return sc, [rdl(i, addr(*order[i])) for i in range(lead)]
    ordz = [(4*r + k, n) for r in range(5) for n in range(7) for k in range(4)]
    xz = lambda ks: A((32 + 4*ks) % 80, 4)
    adz = lambda ks, n: (ks*7 + n)*1024
    sc2, pre2 = msplit(ordz, lambda n: V(Z2 + 4*n, 4), xz, adz)
    b(pre2)
    spin_at(name + "_pa", 7, 8)
    T.stamp(b, "gotA")
    def lX(reg, ks): return toI([f"s_add_u32 {S(sT)}, {S(sXo)}, {ks*4096}", f"buffer_load_dwordx4 {reg}, {V(vL16)}, {sWS}, {S(sT)} offen sc1"])
    for ks in range(8): b(lX(xz(ks), ks))
    def place(sc, groups, g0, step):
        g = g0
        for gr in groups:
            for x in gr[:-1]: sc.raw(x, g - 1, "post")
            sc.put(gr[-1], g, force=True); g += step
        return g
    ldst1 = f"buffer_load_dwordx4 {V(ST,4)}, {V(vSl)}, {sWS}, s66 offen sc1"
    ldst2 = f"buffer_load_dwordx4 {V(ST2,4)}, {V(vSl)}, {sWS}, s66 offen sc1"
    g = place(sc2, [lX(xz(ks), ks) for ks in range(8, 20)] + [toI([f"s_add_u32 s66, s63, {WS_ST1}", ldst1])], 1, 4)
    g = max(g, 58)
    sc2.raw("s_barrier", g - 1, "pre")
    w1 = [x for r in range(5) for x in vgroups(dW1(r))]
    g = place(sc2, w1[:14], g + 1, 5); assert g < 146
    for n in range(7):
        sc2.raw(f"ds_read_b128 {V(V1+4*n,4)}, {V(vSm)} offset:{1024 + 1024 + n*64}", 122 + 2*n, "post")
        sc2.raw(f"ds_read_b128 {V(V2+4*n,4)}, {V(vSm)} offset:{1024 + 1024 + 448 + n*64}", 123 + 2*n, "post")
    b(sc2.emit())
    b("s_barrier")
    T.stamp(b, "g2")
    spin_st(name + "_p1", ST, ldst1)
    def apply2():
        for k in range(0, 28, 2): b(f"v_pk_fma_f32 {V(Z2+k,2)}, {V(V1+k,2)}, {V(ST,2)}, {V(Z2+k,2)} op_sel_hi:[1,0,1]")
        for k in range(0, 28, 2): b(f"v_pk_fma_f32 {V(Z2+k,2)}, {V(Z2+k,2)}, {V(ST+2,2)}, {V(V2+k,2)} op_sel_hi:[1,0,1]")
    ep = capture(lambda: (fin_stats(b, ST, 640, 164), apply2(), gelu(b, Z2, 28, TM, 44, 46), row_sums(b, Z2, 28, 164, TM)))
    nv = min(21, len(ep) // EV // 7 * 7)
    weave_v(ep, w1[14:14 + nv], EV)
    b(f"s_add_u32 {S(sT)}, s64, {WS_ST2}")
    b(f"buffer_store_dwordx2 v[164:165], {V(vSt)}, {sWS}, {S(sT)} offen sc1")
    b(arrive_ret(None, FB))
    T.stamp(b, "e2")
    for gr in w1[14 + nv:]: b(gr)
    b(more_sp(SP[1] // 2))
    b(f"s_add_u32 s66, s63, {WS_ST2}")
    b(f"""
    v_lshlrev_b32 v168, 5, {V(vR)}
    v_lshl_add_u32 v168, {V(vG)}, 3, v168
    s_lshl_b32 {S(sT)}, {S(sWV)}, 9
    s_add_u32 {S(sT)}, {S(sT)}, {TB}
    v_add_u32 v174, {S(sT)}, v168
    s_and_b32 {S(sT)}, {S(sWV)}, 1
    s_lshr_b32 {S(sT2)}, {S(sWV)}, 1
    s_lshl_b32 {S(sT3)}, {S(sT)}, 10
    s_lshl_b32 s65, {S(sT2)}, 13
    s_add_u32 {S(sT3)}, {S(sT3)}, s65
    s_add_u32 {S(sT3)}, {S(sT3)}, {TB}
    v_lshl_add_u32 v175, v0, 3, {S(sT3)}
    s_lshl_b32 s65, {S(sRB)}, 1
    s_add_u32 s65, s65, {S(sT)}
    s_mul_i32 s65, s65, {54*1024}
    s_add_u32 s65, s65, {WS_Z2}
    s_lshl_b32 s70, {S(sT2)}, 2
    s_add_u32 s70, s70, {S(sB7)}
    s_lshl_b32 s70, s70, 10
    s_add_u32 s70, s70, s65
    s_lshl_b32 s67, {S(sE7)}, 10
    s_add_u32 s67, s67, s65
    s_cmp_ge_u32 {S(sCS)}, 6
    s_cselect_b32 s67, {hex(OOB)}, s67
    s_add_u32 s74, s70, 2048
    s_add_u32 s75, s70, 3072
    s_cmp_eq_u32 {S(sT2)}, 1
    s_cselect_b32 s74, s67, s74
    s_cselect_b32 s75, {hex(OOB)}, s75
    """)
    spin_at(name + "_pb", 7, 8)
    b(ldst2)
    b(more_sp(SP[1] - SP[1] // 2))
    spin_st(name + "_p2", ST2, ldst2)
    T.stamp(b, "gotB")
    def norm():
        fin_stats(b, ST2, 864, 168)
        b(f"v_mul_f32 {V(ST2)}, {V(ST2)}, {V(ST2+2)}")
        for n in range(7):
            for k in (4*n, 4*n + 2): b(f"v_pk_fma_f32 {V(Z2+k,2)}, {V(Z2+k,2)}, {V(ST2+2,2)}, {V(ST2,2)} op_sel_hi:[1,0,0]")
            for k in (2*n, 2*n + 1): b(f"v_cvt_pk_bf16_f32 {V(76+k)}, {V(Z2+2*k)}, {V(Z2+2*k+1)}")
            b(f"ds_write_b64 v174, {V(76+2*n,2)} offset:{n*2048}")
    weave_v(capture(norm), vgroups(more_sp(SP[2])) if SP[2] else [], 6)
    assert spn[0] <= 11
    b("@waitvm w1"); b("s_waitcnt lgkmcnt(0)"); b("s_barrier")
    for n in range(4):
        for hf in range(2): b(f"ds_read_b64_tr_b16 {V(104+4*n+2*hf,2)}, v175 offset:{n*2048 + hf*512}")
    sc1, pre1 = msplit(ordz, lambda n: V(Z1 + 4*n, 4), xz, adz)
    b(pre1[:6])
    for n in range(4):
        b(f"buffer_store_dwordx4 {V(104+4*n,4)}, {V(vL16)}, {sWS}, {('s70','s70','s74','s75')[n]} offen offset:{1024 if n == 1 else 0} sc1", "C")
    b(pre1[6:])
    T.stamp(b, "stC")
    arr = arrive_ins("C", [f"s_lshl_b32 {S(sT)}, {S(sCS)}, 4", f"s_and_b32 {S(sT2)}, {S(sRB)}, 15", f"s_add_u32 {S(sT)}, {S(sT)}, {S(sT2)}", f"s_add_u32 {S(sT)}, {S(sT)}, {FC}"])
    def pcs(t):
        a = [f"s_lshl_b32 {S(sFl)}, {S(sCS)}, 4", f"s_add_u32 {S(sFl)}, {S(sFl)}, {S(16+t)}", f"s_lshl_b32 {S(sFl)}, {S(sFl)}, 7", f"s_add_u32 {S(sFl)}, {S(sFl)}, {WS_FL2 + FC*128}"]
        return toI(a + (apoll if CA else [f"v_mov_b32 {V(vPa)}, {S(sFl)}", poll]))
    def spin_c(lab): spin_at(lab, 8, 8) if CA else spin_cnt(lab, 8)
    pc = pcs(0)
    wg = lambda k, n: V(76 + 28*(k % 3) + 4*n, 4)
    def lZ(k):
        o = [f"s_add_u32 {S(sT2)}, {S(24 + (k >> 2))}, {kofs(k)*54*1024}"]
        for n in range(7):
            v, ofs = at7(n); o.append(f"buffer_load_dwordx4 {wg(k, n)}, {v}, {sWS}, {S(sT2)} offen offset:{ofs} sc1")
        return toI(o)
    g = place(sc1, [arr], AC, 4)
    for t in range(SP[3] + 1):
        if t == PT: g = place(sc1, [pc], g, 4); gp = g
        if t < SP[3]:
            if spn[0] >= 11: g = max(g, 28 * (spn[0] - 10) + 1)
            g = place(sc1, vgroups(more_sp(1)), g, 4)
    assert spn[0] <= 14
    g = place(sc1, [toI([f"s_lshl_b32 {S(sT)}, {S(sRow)}, 5", f"v_lshlrev_b32 v42, 1, {V(vR)}", f"buffer_load_ushort v42, v42, {S(R['bsp'],4)}, {S(sT)} offen"])], g, 4)
    g = min(max(g, gp + 24), 138)
    sc1.raw("@mark pc", g - 2, "post2")
    place(sc1, vgroups(lZ(0) + lZ(1)), g, 3)
    sc1.raw(toI([f"""
    s_lshl_b32 s65, {S(sB7)}, 10
    s_add_u32 {S(sW)}, s65, {WS_Z2 - 1024}
    s_mul_i32 s24, s16, {2*54*1024}
    s_mul_i32 s25, s17, {2*54*1024}
    s_mul_i32 s26, s18, {2*54*1024}
    s_mul_i32 s27, s19, {2*54*1024}
    s_add_u32 s24, s24, {S(sW)}
    s_add_u32 s25, s25, {S(sW)}
    s_add_u32 s26, s26, {S(sW)}
    s_add_u32 s27, s27, {S(sW)}
    s_mul_i32 {S(sW1)}, {S(sWV)}, {40*1024}
    s_lshl_b32 s65, {S(sB5)}, 10
    s_add_u32 {S(sW1)}, {S(sW1)}, s65
    s_add_u32 {S(sW1)}, {S(sW1)}, {WS_WOUT - 1024}
    s_mul_i32 {S(sLb)}, {S(sWV)}, 5120
    s_mov_b32 s70, {FH(-GC2)}
    """]), 10, "post")
    emit_marks(sc1, {"pc": lambda: (spin_c(name + "_pc"), T.stamp(b, "gotC"))})
    T.stamp(b, "g1")
    G = 176
    def gacc(n, m):
        if m == 0: return A(4*n, 4)
        i = (m - 1)*7 + n
        return V(G + 4*i, 4) if i < 20 else A(28, 4)
    OB = lambda r: 49152 + r*20480 if r < 5 else (r - 5)*20480
    dWo = lambda r: dmaW(5, at5, sW1, 4*r*40*1024, sLb, OB(r), "wo", valid=f"s_cmp_lt_u32 {S(sWV)}, 3" if r == 6 else None)
    def z1rd(n): return [f"ds_read_b128 v[164:167], {V(vSm)} offset:{1024 + n*64}", f"ds_read_b128 v[8:11], {V(vSm)} offset:{1024 + 448 + n*64}"]
    def z1ep(n):
        z = Z1 + 4*n; tt = (168, 169, 174, 175); o = []
        o += [f"v_fmac_f32 {V(z+r)}, {V(164+r)}, {V(ST)}" for r in range(4)]
        o += [f"v_fma_f32 {V(z+r)}, {V(z+r)}, {V(ST+2)}, {V(8+r)}" for r in range(4)]
        o2 = [f"v_mul_f32 {V(tt[r])}, {V(z+r)}, {V(z+r)}" for r in range(4)]
        o2 += [f"v_fma_f32 {V(tt[r])}, {V(tt[r])}, s70, v44" for r in range(4)]
        o2 += [f"v_mul_f32 {V(tt[r])}, {V(tt[r])}, {V(z+r)}" for r in range(4)]
        o2 += [f"v_exp_f32 {V(tt[r])}, {V(tt[r])}" for r in range(4)]
        o2 += [f"v_add_f32 {V(tt[r])}, 1.0, {V(tt[r])}" for r in range(4)]
        o2 += [f"v_rcp_f32 {V(tt[r])}, {V(tt[r])}" for r in range(4)]
        o2 += [f"v_mul_f32 {V(z+r)}, {V(z+r)}, {V(tt[r])}" for r in range(4)]
        return o, o2
    b(z1rd(0))
    radr = []
    for m in range(1, 4):
        radr += [f"s_add_u32 s65, {S(sWV)}, {m}", "s_and_b32 s65, s65, 3", "s_mul_i32 s65, s65, 12288", f"s_add_u32 s65, s65, {(m-1)*4096}",
                 f"v_add_u32 {V(160+m)}, s65, {V(vL16)}"]
    radr += [f"s_mul_i32 s65, {S(sWV)}, 12288", f"v_add_u32 v160, s65, {V(vL16)}",
             f"v_add_u32 v8, 65536, {V(vL16)}", f"v_add_u32 v9, 131072, {V(vL16)}"]
    selm = toI([f"""
    v_lshlrev_b32 v168, 2, {V(vG)}
    v_sub_u32 v168, {V(vR)}, v168
    v_mov_b32 v169, 0x3f80
    v_mov_b32 v174, 0x3f800000
    v_cmp_eq_u32 vcc, 0, v168
    v_cndmask_b32 v164, 0, v169, vcc
    v_cmp_eq_u32 vcc, 1, v168
    v_cndmask_b32 v164, v164, v174, vcc
    v_cmp_eq_u32 vcc, 2, v168
    v_cndmask_b32 v165, 0, v169, vcc
    v_cmp_eq_u32 vcc, 3, v168
    v_cndmask_b32 v165, v165, v174, vcc
    v_mov_b32 v166, 0
    v_mov_b32 v167, 0
    v_mov_b32 v44, 0
    v_mov_b32 v45, 0
    v_mov_b32 v46, v164
    v_mov_b32 v47, v165
    v_lshlrev_b32 v42, 16, v42
    """])
    wo_early = [x for r in range(5) for x in vgroups(dWo(r))]
    rno = lambda t: int(t[2:t.index(":")])
    cv = lambda d, x: f"v_cvt_pk_bf16_f32 {V(d)}, {V(x)}, {V(x+1)}"
    def packw(m, p):
        r0 = rno(gacc(2*p, m)); o = []
        if p < 3: o += [cv(r0, r0), cv(r0+1, r0+2), cv(r0+2, r0+4), cv(r0+3, r0+6)]
        else:
            if m == 3: r0 = 104; o += [f"v_accvgpr_read_b32 {V(r0+k)}, {A(28+k)}" for k in range(4)]
            o += [cv(r0, r0), cv(r0+1, r0+2), f"v_mov_b32 {V(r0+2)}, 0", f"v_mov_b32 {V(r0+3)}, 0"]
        return o + [f"ds_write_b128 {V(160+m)}, {V(r0,4)} offset:{p*1024}"]
    for k in range(16):
        mo = [(n, m) for n in range(7) for m in range(4)] if k < 15 else [(n, m) for m in (3, 1, 2, 0) for n in range(7)]
        sc = Sched([MF(gacc(n, m), wg(k, n), xs(k, m), gacc(n, m) if k else "0") for n, m in mo])
        f = lZ(k + 2) if k + 2 < 16 else [x for gr in wo_early[7*(k-14) : 7*(k-13)] for x in gr]
        if spn[0] < 16 and k >= 2 and spn[0] - k <= 5: f = f + more_sp(1)
        if k in (0, 4, 8): f = pcs(k // 4 + 1) + f
        if k in (2, 6, 10): spin_c(f"{name}_pe{k}")
        sc.seq(f, 0, ZS if k < 14 else 4)
        if k < 14:
            o, o2 = z1ep(k >> 1)
            if k % 2 == 0: sc.seq(o + (z1rd(k//2 + 1) if k < 12 else []) + o2[:12], 0)
            else: sc.seq(o2[12:], 0)
        if k == 13: sc.raw("s_barrier", 27, "post2")
        if k == 14: sc.seq(radr, 0); sc.seq(selm, 0)
        if k == 15:
            g = 0; late = []
            for i, m in enumerate((3, 1, 2)):
                for p in range(4):
                    e = max(g, 7*i + min(2*p + 1, 6) + 5)
                    if e < 24: g = sc.seq(packw(m, p), e) + 1
                    else: late.append(toI(packw(m, p)))
        b(sc.emit())
        if k in (0, 3, 7, 11, 13, 14): T.stamp(b, f"k{k}")
    assert spn[0] == 16
    rest = wo_early[14:]
    for gr in late:
        b(gr)
        if rest: b(rest.pop(0))
    T.stamp(b, "g4")
    b("s_waitcnt lgkmcnt(0)"); b("s_barrier")
    XF = lambda m, p: V(108 + 16*m + 4*p, 4)
    for p in range(4):
        for m in range(3): b(f"ds_read_b128 {XF(m, p)}, v160 offset:{m*4096 + p*1024}")
    sc = Sched([MF(A(4*n, 4), V(44 if n & 1 else 164, 4), XF(m, n >> 1), A(4*n, 4)) for n in range(7) for m in range(3)])
    g = place(sc, rest, 1, 3)
    fin = []
    for n in range(7):
        d = G + 4*n
        fin.append([f"v_accvgpr_read_b32 {V(d+r)}, {A(4*n+r)}" for r in range(4)])
    g = 0
    for n in range(7): g = sc.seq(fin[n], max(g, 3*n + 8))
    b(sc.emit())
    b("s_barrier")
    for k in range(0, 28, 2): b(f"v_pk_add_f32 {V(G+k,2)}, {V(G+k,2)}, v[42:43] op_sel_hi:[1,0]")
    for k in range(0, 28, 2): b(f"v_pk_mul_f32 {V(G+k,2)}, {V(G+k,2)}, {V(Z1+k,2)}")
    tagged(lambda: store_act(b, sWS, 7, G, WS_U, 27, sB7, sE7, 12, " sc1"), "D")
    b(dWo(5))
    b(arrive_ret("D", FD))
    T.stamp(b, "arrD")
    b(dWo(6))
    GB, Y = 48, 76
    for n in range(5): b(f"ds_read_b128 {V(GB+4*n,4)}, {V(vSm)} offset:{640 + n*64}")
    b(f"""
    s_mul_i32 {S(sXo)}, {S(sRB)}, {27*4096}
    s_lshl_b32 {S(sT)}, {S(sWV)}, 10
    s_add_u32 {S(sXo)}, {S(sXo)}, {S(sT)}
    s_add_u32 {S(sXo)}, {S(sXo)}, {WS_U}
    """)
    xu = lambda ks: A(4*ks, 4)
    ordo = [(3*r + k, n) for r in range(9) for n in range(5) for k in range(3)]
    sc5, pre5 = msplit(ordo, lambda n: V(Y + 4*n, 4), xu, lambda ks, n: OB(ks >> 2) + (ks & 3)*5120 + n*1024)
    b("@waitvm wo"); b("s_barrier"); b(pre5)
    spin_at(name + "_pd", 7, 8)
    T.stamp(b, "gotD")
    for ks in range(9): b(lX(xu(ks), ks))
    place(sc5, [lX(xu(ks), ks) for ks in range(9, 27)], 1, 4)
    b(sc5.emit())
    T.stamp(b, "g5")
    for k in range(0, 20, 2): b(f"v_pk_fma_f32 {V(Y+k,2)}, {V(Y+k,2)}, {V(GB+k,2)}, {V(X1+k,2)}")
    for k in range(10): b(f"v_cvt_pk_bf16_f32 {V(Y+k)}, {V(Y+2*k)}, {V(Y+2*k+1)}")
    for n in range(5): b(f"buffer_store_dwordx2 {V(Y+2*n,2)}, v15, {S(R['out'],4)}, {'s68' if n < 4 else 's69'} offen offset:{32*n if n < 4 else 0}")
```

```python
import re

REG = re.compile(r"^(-?)(abs\()?([vas])(?:(\d+)|\[(\d+):(\d+)\])\)?$")

def regs_of(tok):
    tok = tok.strip()
    if tok.startswith("|") and tok.endswith("|"): tok = tok[1:-1]
    if tok.startswith("-|") and tok.endswith("|"): tok = tok[2:-1]
    if tok in ("vcc", "vcc_lo", "vcc_hi"): return {("s", 106), ("s", 107)}
    if tok in ("exec", "exec_lo", "exec_hi"): return {("s", 126), ("s", 127)}
    if tok == "m0": return {("s", 124)}
    m = REG.match(tok)
    if not m: return set()
    f = m.group(3)
    if m.group(4) is not None: return {(f, int(m.group(4)))}
    return {(f, i) for i in range(int(m.group(5)), int(m.group(6)) + 1)}

TRANS = ("v_exp_f32", "v_log_f32", "v_rcp_f32", "v_rsq_f32", "v_sqrt_f32", "v_sin_f32", "v_cos_f32", "v_rcp_iflag_f32")

class I:
    __slots__ = ("t", "op", "kind", "w", "r", "srcc", "tag", "passes", "dpp", "ab")
    def __init__(self, text, tag=None):
        self.t = text; self.tag = tag
        s = text.split(";")[0].strip()
        self.w = set(); self.r = set(); self.srcc = set(); self.ab = set(); self.passes = 0; self.dpp = False
        if s.endswith(":") or s.startswith(".") or s == "":
            self.op = ""; self.kind = "label"; return
        if s.startswith("@"):
            self.op = s.split()[0]; self.kind = "pseudo"; return
        p = s.split(None, 1); op = p[0]; self.op = op
        rest = p[1] if len(p) > 1 else ""
        ops = [x.strip() for x in rest.split(",")]
        if ops:
            last = ops[-1].split()
            mods = last[1:]; ops[-1] = last[0] if last else ""
        else: mods = []
        R = [regs_of(o) for o in ops]
        def rd(idx):
            for i in idx:
                if i < len(R): self.r |= R[i]
        if op.startswith("v_mfma"):
            self.kind = "mfma"; self.w = R[0]; rd((1, 2, 3)); self.srcc = R[3]; self.ab = R[1] | R[2]
            self.passes = 8 if "32x32" in op else 4
        elif op.startswith("ds_read") or op.startswith("ds_bpermute") or op.startswith("ds_swizzle") or op.startswith("ds_permute") or (op.startswith("ds_") and "_rtn" in op):
            self.kind = "ds"; self.w = R[0]; rd(range(1, len(R)))
        elif op.startswith("ds_"):
            self.kind = "ds"; rd(range(len(R)))
        elif op.startswith("buffer_load") or op.startswith("global_load"):
            self.kind = "vmem"
            if "lds" in mods or "_lds_" in op:
                rd(range(len(R))); self.r |= {("s", 124)}
            else:
                self.w = R[0]; rd(range(1, len(R)))
        elif op.startswith("buffer_atomic") or op.startswith("global_atomic"):
            self.kind = "vmem"; rd(range(len(R)))
            if "sc0" in mods: self.w = R[0]
        elif op.startswith("buffer_") or op.startswith("global_"):
            self.kind = "vmem"; rd(range(len(R)))
        elif op.startswith("s_load") or op.startswith("s_buffer_load") or op in ("s_memtime", "s_memrealtime"):
            self.kind = "smem"; self.w = R[0]; rd(range(1, len(R)))
        elif op == "s_waitcnt": self.kind = "wait"
        elif op == "s_nop": self.kind = "nop"
        elif op in ("s_barrier", "s_endpgm", "s_setprio", "s_sleep") or op.startswith("s_branch") or op.startswith("s_cbranch"):
            self.kind = "ctl"
            if "vcc" in op: self.r |= regs_of("vcc")
            if "exec" in op: self.r |= regs_of("exec")
        elif op.startswith("s_"):
            self.kind = "salu"
            if op.startswith("s_cmp") or op.startswith("s_bitcmp"): rd(range(len(R)))
            else:
                self.w = R[0]; rd(range(1, len(R)))
                if "saveexec" in op: self.w |= regs_of("exec"); self.r |= regs_of("exec")
                if op in ("s_addk_i32", "s_mulk_i32", "s_cmov_b32", "s_cmov_b64", "s_bitset1_b32", "s_bitset0_b32"): self.r |= R[0]
        elif op.startswith("v_"):
            self.kind = "valu"
            self.dpp = any(m.startswith(("row_", "quad_perm", "wave_")) for m in mods) or op.endswith("_dpp")
            if op == "v_nop": pass
            elif op.startswith("v_permlane") and "swap" in op:
                self.w = R[0] | R[1]; rd((0, 1))
            elif op.startswith("v_cmpx"):
                self.w = R[0] | regs_of("exec"); rd(range(1, len(R)))
            elif "_co_" in op or op.startswith("v_div_scale") or op.startswith("v_mad_u64"):
                self.w = R[0] | R[1]; rd(range(2, len(R)))
            else:
                self.w = R[0]; rd(range(1, len(R)))
                if op.startswith(("v_fmac", "v_pk_fmac", "v_writelane", "v_dot2c")) or self.dpp: self.r |= R[0]
                if op.startswith("v_cndmask") and len(ops) == 3: self.r |= regs_of("vcc")
        else:
            raise ValueError("unknown op: " + text)
    def states(self):
        if self.kind in ("label", "pseudo"): return 0
        if self.kind == "nop": return int(self.t.split()[1]) + 1
        return 1
    def is_trans(self): return self.op.replace("_e32", "").replace("_e64", "") in TRANS

def need_states(p, c):
    n = 0
    vw = {x for x in p.w if x[0] != "s"}; sw = {x for x in p.w if x[0] == "s"}
    if p.kind == "valu":
        if c.kind == "mfma" and vw & c.r: n = max(n, 2)
        if c.kind == "mfma" and ("s", 126) in sw: n = max(n, 4)
        if c.kind == "valu":
            if c.dpp and vw & c.r: n = max(n, 2)
            if c.dpp and ("s", 126) in sw: n = max(n, 5)
            if c.op.startswith("v_permlane") and vw & c.r: n = max(n, 2)
            if c.op.startswith(("v_permlane", "v_readlane", "v_readfirstlane", "v_writelane")) and ("s", 126) in sw: n = max(n, 4)
            if c.op.startswith(("v_readlane", "v_readfirstlane")) and vw & c.r: n = max(n, 1)
            if p.is_trans() and vw & c.r: n = max(n, 1)
            if sw & c.r:
                n = max(n, 4 if c.op.startswith(("v_readlane", "v_writelane", "v_div_fmas")) else 2)
            if ("op_sel" in p.t or "sdwa" in p.t or "dst_sel" in p.t) and vw & (c.r | c.w): n = max(n, 1)
        if c.kind == "vmem" and sw & c.r: n = max(n, 5)
        if c.kind in ("salu", "ctl", "smem") and sw & c.r: n = max(n, 1 if c.kind != "ctl" else 1)
    if p.kind == "salu" and ("s", 124) in sw:
        if (c.kind == "vmem" and ("s", 124) in c.r) or "addtid" in c.op or c.op.startswith("s_movrel") or (c.kind == "valu" and ("s", 124) in c.r): n = max(n, 1)
    if p.kind == "mfma":
        k = {4: 0, 8: 1}[p.passes]
        if c.kind == "mfma":
            if p.w & c.ab: n = max(n, (8, 12)[k])
            if p.w & c.srcc:
                if not (p.w == c.srcc and p.passes == c.passes): n = max(n, (6, 10)[k])
            elif p.w & c.w: n = max(n, (6, 10)[k])
        elif c.kind in ("valu", "ds", "vmem"):
            if p.w & (c.r | c.w): n = max(n, (8, 12)[k])
        if c.kind == "valu" and p.srcc & c.w: n = max(n, (3, 7)[k])
        if c.kind in ("ds", "vmem") and p.srcc & c.w: n = max(n, (3, 7)[k])
    if p.kind == "vmem" and ("x4" in p.op or "x3" in p.op) and "store" in p.op:
        data = regs_of(p.t.split(None, 1)[1].split(",")[0 if p.op.startswith("buffer") else 1])
        if data & c.w: n = max(n, 2 if c.kind == "valu" else 1)
    return n

class State:
    def __init__(self, lg=None, vm=None, tail=None):
        self.lg = list(lg or []); self.vm = list(vm or []); self.tail = list(tail or [])
    def copy(self): return State(self.lg, self.vm, self.tail)

def _parse_wait(t):
    vm = re.search(r"vmcnt\((\d+)\)", t); lg = re.search(r"lgkmcnt\((\d+)\)", t)
    return (int(vm.group(1)) if vm else None, int(lg.group(1)) if lg else None)

def resolve(ins, st, stats=None):
    out = []
    def emit(i):
        if i.kind not in ("label", "pseudo"):
            dist = 0; need = 0
            for p in reversed(st.tail):
                n = need_states(p, i)
                if n > dist: need = max(need, n - dist)
                dist += p.states()
                if dist >= 20: break
            if need > 0:
                while need > 0:
                    k = min(need, 16); nop = I(f"s_nop {k-1}"); out.append(nop); st.tail.append(nop); need -= k
                    if stats is not None: stats["nops"] = stats.get("nops", 0) + k
            st.tail.append(i); st.tail = st.tail[-24:]
        out.append(i)
    def do_wait(vm, lg):
        parts = []
        if vm is not None and vm < len(st.vm):
            vm = min(vm, 62); parts.append(f"vmcnt({vm})"); st.vm = st.vm[len(st.vm) - vm:] if vm else []
        if lg is not None and lg < len(st.lg):
            if any(e[2] for e in st.lg): lg = 0
            lg = min(lg, 14); parts.append(f"lgkmcnt({lg})"); st.lg = st.lg[len(st.lg) - lg:] if lg else []
        if parts: emit(I("s_waitcnt " + " ".join(parts)))
    for i in ins:
        if i.kind == "pseudo":
            a = i.t.split()
            if a[0] == "@waitvm":
                idx = [k for k, e in enumerate(st.vm) if e[1] == a[1]]
                if idx: do_wait(len(st.vm) - 1 - max(idx), None)
            elif a[0] == "@waitlg":
                idx = [k for k, e in enumerate(st.lg) if e[1] == a[1]]
                if idx: do_wait(None, len(st.lg) - 1 - max(idx))
            elif a[0] == "@hop": pass
            elif a[0] == "@retag":
                st.vm = [(e[0], a[2] if e[1] == a[1] else e[1], e[2]) for e in st.vm]
            elif a[0] == "@need":
                rs = set()
                for x in a[1:]: rs |= regs_of(x)
                vm = [k for k, e in enumerate(st.vm) if e[0] & rs]; lg = [k for k, e in enumerate(st.lg) if e[0] & rs]
                do_wait(len(st.vm) - 1 - max(vm) if vm else None, len(st.lg) - 1 - max(lg) if lg else None)
            else: raise ValueError(i.t)
            out.append(i)
            continue
        if i.kind == "wait":
            vm, lg = _parse_wait(i.t)
            if vm is not None and vm < len(st.vm): st.vm = st.vm[len(st.vm) - vm:] if vm else []
            if lg is not None and lg < len(st.lg):
                if lg == 0 or not any(e[2] for e in st.lg): st.lg = st.lg[len(st.lg) - lg:] if lg else []
            emit(i); continue
        touch = i.r | i.w
        if touch:
            vm = [k for k, e in enumerate(st.vm) if e[0] & touch]
            lg = [k for k, e in enumerate(st.lg) if e[0] & touch]
            if i.kind == "vmem": vm = [k for k in vm if st.vm[k][0] & i.r]
            if i.kind == "ds": lg = [k for k in lg if st.lg[k][0] & i.r or st.lg[k][2]]
            if vm or lg:
                do_wait(len(st.vm) - 1 - max(vm) if vm else None, len(st.lg) - 1 - max(lg) if lg else None)
        emit(i)
        if i.kind == "vmem": st.vm.append((set(i.w), i.tag, False))
        elif i.kind == "ds": st.lg.append((set(i.w), i.tag, False))
        elif i.kind == "smem": st.lg.append((set(i.w), i.tag, True))
    return out

def _sig(st):
    return (tuple((tuple(sorted(e[0])), e[1], e[2]) for e in st.lg), tuple((tuple(sorted(e[0])), e[1]) for e in st.vm),
            tuple(x.t for x in st.tail[-20:]))

def dedupe(states):
    seen = {}
    for s in states: seen.setdefault(_sig(s), s)
    return list(seen.values())

def toI(ins):
    out = []
    for b in ins:
        if isinstance(b, I): out.append(b)
        elif isinstance(b, (list, tuple)): out += toI(b)
        else:
            for l in b.split("\n"):
                if l.strip(): out.append(I(l.strip()))
    return out

def seg(ins, preds):
    r = toI(ins)
    while True:
        n = len(r); exits = []
        for st in preds:
            s = st.copy(); r = resolve(r, s); exits.append(s)
        if len(r) == n: return r, dedupe(exits)

MERGE = True
class B:
    def __init__(self):
        self.out = []; self.cur = []; self.sts = [State()]
    def __call__(self, text, tag=None):
        if isinstance(text, I): self.cur.append(text); return
        if isinstance(text, (list, tuple)):
            for t in text: self(t, tag)
            return
        for l in text.split("\n"):
            l = l.strip()
            if l: self.cur.append(I(l, tag))
    def flush(self):
        if self.cur:
            r, self.sts = seg(self.cur, self.sts); self.out += r; self.cur = []
        return self.sts
    def label(self, name, preds=None, align=0):
        self.flush()
        if align: self.out.append(I(f".p2align {align}"))
        self.out.append(I(name + ":"))
        if preds is not None: self.sts = dedupe(preds)
    def outline(self, label, ins, back):
        sts = self.flush()
        r, ex = seg(toI(ins) + toI([f"s_branch {back}"]), sts + [State()])
        self.cold = getattr(self, "cold", []) + [I(label + ":")] + r
        self.label(back, sts + ex)
    def emit_cold(self):
        self.flush(); self.out += getattr(self, "cold", []); self.cold = []
    def chain_loop(self, bodies, align=6, extra={}):
        self.flush()
        rs = [toI(b) for _, b in bodies]
        ins = list(self.sts)
        st = ins
        for k in range(len(rs)): _, st = seg(rs[k], st)
        ins = dedupe(st + ins)
        while True:
            n0 = [len(r) for r in rs]; st = ins; outs = []
            for k in range(len(rs)):
                rs[k], st = seg(rs[k], dedupe(st + extra.get(k, []))); outs.append(st)
            new = dedupe(ins + st)
            if len(new) == len(ins) and n0 == [len(r) for r in rs]: break
            ins = new
        for k, ((lab, _), r) in enumerate(zip(bodies, rs)):
            if k == 0 and align: self.out.append(I(f".p2align {align}"))
            self.out.append(I(lab + ":")); self.out += r
        self.sts = outs[-1]
        return ins, outs
    def check_scc(self):
        last = None
        for i in self.out:
            if i.op.startswith(("s_cselect", "s_cbranch_scc", "s_addc", "s_cmov")):
                assert last is None or last.op.startswith(("s_cmp", "s_bitcmp", "s_or_b64", "s_andn2", "s_and_b64")), f"SCC consumer {i.t} after {last.t}"
            if i.kind == "salu" and not i.op.startswith(("s_mov", "s_cselect", "s_mul", "s_getpc", "s_getreg", "s_cmov")): last = i
    def merge_waits(self):
        out = []; src = [i for i in self.out if i.kind != "pseudo" or i.op == "@hop"]
        for k, i in enumerate(src):
            if (MERGE and i.kind == "wait" and out and out[-1].kind == "wait" and self._slack(out)
                    and not any("branch" in x.op for x in src[k:k+20])):
                a, b_ = _parse_wait(out[-1].t), _parse_wait(i.t)
                m = [min(x for x in p if x is not None) if any(x is not None for x in p) else None for p in zip(a, b_)]
                out[-1] = I("s_waitcnt " + " ".join(([f"vmcnt({m[0]})"] if m[0] is not None else []) + ([f"lgkmcnt({m[1]})"] if m[1] is not None else [])))
            else: out.append(i)
        st = State(); res = []
        for i in out:
            if i.kind == "label": res.append(i); continue
            st.vm = []; st.lg = []
            res += resolve([i], st)
        self.out = res
    def _slack(self, out):
        return not any(x.kind == "label" for x in out[-24:])
    def text(self):
        self.flush(); self.merge_waits(); self.check_scc(); return "\n".join(("" if i.kind == "label" else "  ") + i.t for i in self.out if i.kind != "pseudo" or i.op == "@hop")

def weave(mf, fill):
    out = list(fill.get(-1, []))
    for k, m in enumerate(mf):
        out.append(m); out += fill.get(k, [])
    return out

def kd(name, vgpr, acc, sgpr=102):
    return f""".amdhsa_kernel {name}
  .amdhsa_next_free_vgpr {vgpr}
  .amdhsa_next_free_sgpr {sgpr}
  .amdhsa_accum_offset {acc}
  .amdhsa_group_segment_fixed_size 0
  .amdhsa_kernarg_size 128
  .amdhsa_user_sgpr_count 2
  .amdhsa_user_sgpr_kernarg_segment_ptr 1
  .amdhsa_system_sgpr_workgroup_id_x 1
  .amdhsa_float_denorm_mode_32 3
.end_amdhsa_kernel"""

def V(i, n=1): return f"v{i}" if n == 1 else f"v[{i}:{i+n-1}]"
def A(i, n=1): return f"a{i}" if n == 1 else f"a[{i}:{i+n-1}]"
def S(i, n=1): return f"s{i}" if n == 1 else f"s[{i}:{i+n-1}]"
def MF(d, a, b, c): return f"v_mfma_f32_16x16x32_bf16 {d}, {a}, {b}, {c}"


class Sched:
    ORDER = {"pre": 0, "salu": 1, "ds": 2, "vmem": 2, "valu": 3, "post": 4, "post2": 5}
    def __init__(self, mf, cap=2):
        self.mf = list(mf); n = len(mf)
        self.free = [cap] * n; self.g = [[] for _ in range(n)]; self.head = []; self.nsalu = [0] * n
        self.over = []
        self.seqs = []
    def put(self, ins, earliest, tag=None, force=False):
        i = ins if isinstance(ins, I) else I(ins, tag)
        earliest = max(earliest, 0)
        if i.kind == "valu": cost = 2 if i.is_trans() else 1; cls = "valu"
        elif i.kind == "ds": cost = 1; cls = "ds"
        elif i.kind == "vmem": cost = 2; cls = "vmem"
        else: cost = 0; cls = "salu"
        for k in range(earliest, len(self.mf)):
            if force: ok = True
            elif cls == "salu": ok = self.nsalu[k] < 1
            elif cls == "ds": ok = self.free[k] >= 1 and not any(c in ("ds", "vmem") for c, _ in self.g[k])
            else: ok = self.free[k] >= cost
            if ok:
                self.free[k] -= cost
                if cls == "salu": self.nsalu[k] += 1
                self.g[k].append((cls, i)); return k
        self.over.append(i); return len(self.mf)
    def putw(self, ins, lo, hi, tag=None):
        i = ins if isinstance(ins, I) else I(ins, tag)
        lo = max(lo, 0); hi = min(max(hi, lo), len(self.mf) - 1)
        if lo >= len(self.mf): self.over.append(i); return len(self.mf)
        def load(items):
            c = 0; mem = 0; tr = 0
            for x in items:
                if x.kind == "valu": c += 2 if x.is_trans() else 1; tr += x.is_trans()
                elif x.kind == "ds": c += 1; mem += 1
                elif x.kind == "vmem": c += 2; mem += 1
                elif x.kind == "salu": c += 0.3
            if mem > 1: c += mem - 1
            return max(c, 2.3)
        best = None
        for k in range(lo, hi + 1):
            cur = [x for _, x in self.g[k]]
            d = load(cur + [i]) - load(cur)
            if best is None or d < best[0] - 1e-9: best = (d, k)
        return self.put(i, best[1], force=True)
    def raw(self, ins, gap, where="post"):
        for x in (ins if isinstance(ins, (list, tuple)) else [ins]):
            i = x if isinstance(x, I) else I(x)
            if gap >= len(self.mf): self.over.append(i)
            elif gap < 0: self.head.append(i)
            else: self.g[gap].append((where, i))
    def emit(self):
        out = list(self.head)
        for k, m in enumerate(self.mf):
            out.append(m if isinstance(m, I) else I(m))
            out += [i for _, i in sorted(self.g[k], key=lambda e: self.ORDER[e[0]])]
        out = out + self.over
        pos = {id(i): k for k, i in enumerate(out)}
        for sq in self.seqs:
            for k, i in enumerate(sq):
                if k: assert pos[id(sq[k-1])] < pos[id(i)], f"order broken at {i.t}"
                for r in i.r:
                    ps = [p for p in sq[:k] if r in p.w]
                    if ps:
                        for x in out[pos[id(ps[-1])] + 1 : pos[id(i)]]:
                            assert r not in x.w, f"{r} clobbered by '{x.t}' between '{ps[-1].t}' and '{i.t}'"
        return out
    def seq(self, ins, start, vstride=0):
        ins = toI(ins); self.seqs.append(ins)
        g = start; prev = None
        rank = {"salu": 1, "ds": 2, "vmem": 2, "valu": 3}
        for i in ins:
            e = g
            if prev is not None:
                if rank.get(i.kind, 1) < rank.get(prev.kind, 1) or need_states(prev, i) > 0: e = g + 1
                if prev.kind == "vmem": e = max(e, g + vstride)
                if prev.op.startswith(("s_cmp", "s_bitcmp")):
                    self.put(i, g, force=True); prev = i; continue
            g = self.put(i, e); prev = i
        return g
```

```python
from common import *

QSCALE = LOG2E / (128 ** 0.5)
NEGBIG = -1.0e30
L_LO, L_HI = 2.0 ** -40, 2.0 ** 40
DB_MOD, DB_MO2 = 0, 32
FL_H, FL_KV, FL_M, FL_K0, FL_R, FL_T, FL_RK, FL_RG = 0, 16, 48, 64, 96, 128, 160, 168
FL_P, FL_CX = 256, 512
CODE_BYTES = 50000
SPIN_MAX = 1000000

def gen(name="ka_kernel", stamps=False, force_fallback=False, fine=False, PF=True, END=72, QEND=104, QST=(4, 4, 3, 3), BA=46, MW=24, QF=16, QB=7, PFP=8, NC1=6, MS0=True, PMG=54, CPF=True, JST=10, HOP=True, HX=('pvd0', 'pvd1'), JR0=20, JSP=(43, 55, 65, 81), EXACT=True, MSG=14, QD=(0, 6, 11, 16), S7=2, PFA=(1, 2), PQ4=False, PHG=28, HA=0, drop=(), QMIX=False, DWS=3, KVM=' sc1', KVL=' sc1', CXS=' sc1', CXL=' sc1', M2=False, VST=6, BPOS=3, KST=2, V0=4, OA=64, OD=6, OW=28, OE=4, OX=8, OSP=True, OH=4, OS=3, OT=8, OB1=True, OPF=False, OQ=44, OZ=596, RANK=False, OG=162, NTS='jm', PST='', total_code=None, tail=None, aslist=False, afew=None, drop2=(), probe=None):
    b = B()
    T = Stamper(stamps, 84, 0)
    if afew is not None:
        _st = T.stamp
        T.stamp = lambda b_, nm, cond=None: _st(b_, nm, cond) if (nm in afew or nm not in ("C0", "kvstart", "kvend", "qend", "blk1end", "attend", "end")) else None
    SC = ' sc1' if tail else ''
    nt = lambda c: ' nt' if c in NTS else ''
    b(f"{name}:")
    b("s_cmp_ge_u32 s2, 256")
    b(f"s_cbranch_scc1 {name}_end")
    T.stamp(b, "start")
    b(f"{name}_go:")
    names_ = ["x", "ckv", "wq", "wuk", "wuv", "ws", "dbg", "wmod", "c"]
    R = {n: 8 + 4*i for i, n in enumerate(names_)}
    for n in ("ckv", "wuk", "wuv", "x", "wq", "ws", "dbg", "wmod", "c"): b(f"s_load_dwordx2 {S(R[n],2)}, s[0:1], {ARG[n]}")
    def build_rest():
        for n in names_:
            if n == "ckv": continue
            b(f"s_mov_b32 {S(R[n]+2)}, {hex(SIZE[n])}"); b(f"s_mov_b32 {S(R[n]+3)}, 0x20000")
    sX, sCKV, sWQ, sWS, sDBG, sWM, sC = (S(R[n], 4) for n in ("x", "ckv", "wq", "ws", "dbg", "wmod", "c"))
    WU = 44; sWU = S(WU, 4)
    sWV, sHD, sJ = 48, 49, 50
    sT, sT2, sT3 = 51, 52, 53
    sCb, sWb, sLw = 54, 55, 56
    sRot = 57
    sBLK, sBLK2, sS, sN = 58, 59, 60, 61
    sKo, sVo, sKb, sVb = 62, 63, 64, 65
    sKs, sVs = 66, 67
    sPass, sSafe = 68, 69
    sHb = 70; sVar = 71
    sMK = 72
    b(f"""
    v_lshrrev_b32 v1, 6, v0
    v_and_b32 v0, 63, v0
    v_readfirstlane_b32 {S(sWV)}, v1
    s_and_b32 {S(sT)}, s2, 7
    s_lshr_b32 {S(sT2)}, s2, 3
    s_and_b32 {S(sHD)}, {S(sT2)}, 3
    s_lshl_b32 {S(sT3)}, {S(sT)}, 2
    s_add_u32 {S(sHD)}, {S(sHD)}, {S(sT3)}
    s_lshr_b32 {S(sJ)}, {S(sT2)}, 2
    s_getpc_b64 s[4:5]
    {name}_pc1:
    s_lshl_b32 s6, {S(sT2)}, 2
    s_add_u32 s6, s6, {S(sWV)}
    s_lshl_b32 s6, s6, 10
    v_and_b32 v91, 7, v0
    v_lshl_add_u32 v91, v91, 7, s6
    v_min_u32 v91, code_end - {name}_pc1 - 4, v91
    {"global_load_dword v23, v91, s[4:5]" if HOP else ""}
    v_lshrrev_b32 v21, 4, v0
    v_and_b32 v22, 15, v0
    v_and_b32 v24, 7, v0
    v_xor_b32 v24, v24, v21
    v_lshrrev_b32 v25, 3, v0
    v_lshlrev_b32 v25, 10, v25
    v_lshl_add_u32 v1, v24, 4, v25
    v_xor_b32 v2, 64, v1
    v_add_u32 v2, 8192, v2
    v_lshlrev_b32 v24, 1, v21
    v_xor_b32 v24, v22, v24
    v_lshlrev_b32 v25, 13, v21
    v_lshl_add_u32 v3, v24, 4, v25
    v_xor_b32 v4, 128, v3
    s_mov_b32 {S(R['ckv']+2)}, {hex(SIZE['ckv'])}
    s_mov_b32 {S(R['ckv']+3)}, 0x20000
    s_waitcnt lgkmcnt(0)
    s_cmp_ge_u32 {S(sWV)}, 2
    s_cselect_b32 {S(WU)}, {S(R['wuv'])}, {S(R['wuk'])}
    s_cselect_b32 {S(WU+1)}, {S(R['wuv']+1)}, {S(R['wuk']+1)}
    s_mov_b32 {S(WU+2)}, {hex(SIZE['wuk'])}
    s_mov_b32 {S(WU+3)}, 0x20000
    """)
    MB = 128 * 1024
    sCG, sMB, sQb, sKq = 80, 81, 82, 83
    vC0, vC1, vW0, vW1 = 1, 2, 3, 4
    vRC0, vRC1 = 5, 6
    vRW = 7
    vL16 = 15
    vPW, vPQ, vMo, vDum = 12, 13, 14, 23
    b(f"""
    s_sub_u32 {S(sBLK)}, 15, {S(sJ)}
    s_mov_b32 {S(sBLK2)}, {S(sJ)}
    s_and_b32 {S(sT)}, {S(sWV)}, 1
    s_lshl_b32 {S(sWb)}, {S(sT)}, 18
    s_lshl_b32 {S(sT2)}, {S(sHD)}, 8
    s_add_u32 {S(sWb)}, {S(sWb)}, {S(sT2)}
    s_cmp_ge_u32 {S(sWV)}, 2
    s_cselect_b32 {S(sCb)}, {S(sBLK2)}, {S(sBLK)}
    s_lshl_b32 {S(sCb)}, {S(sCb)}, 17
    s_lshl_b32 {S(sT3)}, {S(sT)}, 16
    s_add_u32 {S(sCb)}, {S(sCb)}, {S(sT3)}
    s_lshl_b32 {S(sLw)}, {S(sWV)}, 13
    """)
    def dmaC(s):
        o = []
        for i in range(8):
            o.append((f"s_add_u32 m0, {S(sLw)}, {65536 + (s & 1) * 32768 + i * 1024}",
                      f"s_add_u32 {S(sT)}, {S(sCb)}, {(i >> 1) * 16384 + s * 128}",
                      I(f"buffer_load_dwordx4 {V(vC1 if i & 1 else vC0)}, {sCKV}, {S(sT)} offen lds", f"C{s}")))
        return o
    def dmaW(s):
        o = []
        for i in range(8):
            o.append((f"s_add_u32 m0, {S(sLw)}, {(s & 1) * 32768 + i * 1024}",
                      f"s_add_u32 {S(sT)}, {S(sWb)}, {(s * 64 + 4 * i) * 8192}",
                      I(f"buffer_load_dwordx4 {V(vW1 if (i >> 1) & 1 else vW0)}, {sWU}, {S(sT)} offen{nt('W')} lds", f"W{s}")))
        return o
    def dmaQ(s):
        o = []
        for i in range(8):
            o.append((f"s_add_u32 m0, {S(sLw)}, {65536 + (s % 3) * 32768 + i * 1024}",
                      f"s_add_u32 {S(sT)}, {S(sQb)}, {(s * 128 + 4 * i) * 8192}",
                      I(f"buffer_load_dwordx4 {V(vW1 if (i >> 1) & 1 else vW0)}, {sWQ}, {S(sT)} offen{nt('Q')} lds", f"Q{s}")))
        return o
    sPW = 57
    def pf_setup():
        b(f"""
        s_and_b32 s6, {S(sWV)}, 1
        v_lshrrev_b32 v24, 1, v0
        v_lshlrev_b32 v24, 13, v24
        v_and_b32 v25, 1, v0
        v_lshl_add_u32 v24, v25, 7, v24
        v_mov_b32 v25, {hex(OOB)}
        v_cmp_gt_u32 vcc, 16, v0
        v_cndmask_b32 {V(vPW)}, v25, v24, vcc
        v_lshlrev_b32 v26, 7, v0
        v_cndmask_b32 v26, v25, v26, vcc
        v_cmp_gt_u32 vcc, 20, v0
        v_cndmask_b32 {V(vPQ)}, v25, v24, vcc
        s_lshl_b32 {S(sPW)}, s6, 19
        s_lshl_b32 {S(sT3)}, {S(sJ)}, 16
        s_add_u32 {S(sPW)}, {S(sPW)}, {S(sT3)}
        s_add_u32 {S(sPW)}, {S(sPW)}, {S(sT2)}
        s_lshl_b32 {S(sT3)}, s2, 2
        s_add_u32 {S(sT3)}, {S(sT3)}, {S(sWV)}
        s_lshl_b32 {S(sT3)}, {S(sT3)}, 11
        v_add_u32 v90, {S(sT3)}, v26
        s_add_u32 s6, {S(sPW)}, {64*8192}
        buffer_load_dword {V(vDum)}, v90, {sCKV}, 0 offen
        buffer_load_dword {V(vDum)}, {V(vPW)}, {sWU}, s6 offen{nt('w')}
        """)
    first = dmaC(0) + dmaW(0) + dmaC(1)[:NC1]
    for k, d in enumerate(first + [None]):
        if k == min(PFP, len(first)): pf_setup()
        if k == 8: build_rest()
        if d: b(list(d))
    b(f"""
    s_lshl_b32 {S(sQb)}, {S(sWV)}, 18
    s_add_u32 {S(sQb)}, {S(sQb)}, {S(sT2)}
    """)
    if HOP: b(f"s_branch {name}_main"); b.label(name + "_main", align=12)
    def pfW(t): return toI([f"s_add_u32 {S(sT2)}, {S(sPW)}, {(2*t + 1)*64*8192}", f"buffer_load_dword {V(vDum)}, {V(vPW)}, {sWU}, {S(sT2)} offen{nt('w')}"])
    def pfQ(t):
        return toI([f"s_lshl_b32 {S(sT2)}, {S(sJ)}, 2", f"s_add_u32 {S(sT2)}, {S(sT2)}, {S(sWV)}", f"s_mul_i32 {S(sT2)}, {S(sT2)}, {10*8192}",
                    f"s_lshl_b32 s5, {S(sHD)}, 8", f"s_add_u32 {S(sT2)}, {S(sT2)}, s5", f"s_add_u32 {S(sT2)}, {S(sT2)}, {t*320*8192}",
                    f"buffer_load_dword {V(vDum)}, {V(vPQ)}, {sWQ}, {S(sT2)} offen{nt('q')}"])
    pf0 = [toI([f"buffer_load_dword {V(vDum)}, v90, {sCKV}, 0 offen"]), pfW(0), toI([f"global_load_dword {V(vDum)}, v91, s[4:5]"])]
    b(f"""
    s_lshr_b32 {S(sCG)}, s2, 2
    s_and_b32 {S(sKq)}, s2, 3
    s_lshl_b32 {S(sMB)}, {S(sWV)}, 10
    s_add_u32 {S(sMB)}, {S(sMB)}, {MB + 20480}
    v_lshrrev_b32 v24, 3, v0
    v_mul_u32_u24 v24, 7680, v24
    v_and_b32 v25, 7, v0
    v_lshl_add_u32 {V(vMo)}, v25, 4, v24
    v_lshlrev_b32 v89, 2, v0
    """)
    def m_c(): return toI([f"s_mul_i32 {S(sT2)}, {S(sKq)}, 320", f"buffer_load_dword v17, v89, {sC}, {S(sT2)} offen", f"buffer_load_dword v18, v89, {sC}, {S(sT2)} offen offset:256"])
    def m_dma():
        o = [f"s_lshl_b32 {S(sT3)}, {S(sKq)}, 2", f"s_add_u32 {S(sT3)}, {S(sT3)}, {S(sWV)}", f"s_mul_i32 {S(sT3)}, {S(sT3)}, {40 * 7680}",
             f"s_lshl_b32 {S(sT2)}, {S(sCG)}, 7", f"s_add_u32 {S(sT3)}, {S(sT3)}, {S(sT2)}", f"s_cmp_lt_u32 {S(sCG)}, 60", f"s_cselect_b32 {S(sT3)}, {S(sT3)}, {hex(OOB)}",
             f"s_mul_i32 s7, {S(sWV)}, 5120"]
        for i in range(5):
            o += [f"s_add_u32 m0, s7, {MB + i*1024}", f"s_add_u32 {S(sT2)}, {S(sT3)}, {i*8*7680}",
                  I(f"buffer_load_dwordx4 {V(vMo)}, {sWM}, {S(sT2)} offen{nt('m')} lds", "m")]
        return toI(o)
    sK1, sV1 = 72, 74
    b(f"""
    v_lshlrev_b32 {V(vL16)}, 4, v0
    v_lshrrev_b32 v24, 1, v22
    v_xor_b32 v24, v24, v21
    v_lshlrev_b32 v24, 4, v24
    v_lshl_add_u32 v24, v22, 7, v24
    s_and_b32 {S(sT)}, {S(sWV)}, 1
    s_lshl_b32 {S(sT)}, {S(sT)}, 13
    s_add_u32 {S(sT)}, {S(sT)}, 65536
    v_add_u32 {V(vRC0)}, {S(sT)}, v24
    v_xor_b32 {V(vRC1)}, 64, {V(vRC0)}
    v_lshrrev_b32 v26, 2, v22
    v_and_b32 v24, 1, v21
    v_lshl_add_u32 v24, v24, 2, v26
    v_lshl_add_u32 v26, v21, 3, v26
    v_lshlrev_b32 v26, 8, v26
    v_and_b32 v25, 3, v0
    v_lshl_add_u32 v26, v25, 3, v26
    v_lshl_add_u32 v26, v24, 5, v26
    s_lshr_b32 {S(sT)}, {S(sWV)}, 1
    s_lshl_b32 {S(sT)}, {S(sT)}, 7
    v_xor_b32 {V(vRW)}, {S(sT)}, v26
    v_xor_b32 {V(vRW+1)}, 32, {V(vRW)}
    v_xor_b32 {V(vRW+2)}, 64, {V(vRW)}
    v_xor_b32 {V(vRW+3)}, 96, {V(vRW)}
    s_cmp_ge_u32 {S(sWV)}, 2
    s_cselect_b32 {S(sHb)}, {S(sBLK2)}, {S(sBLK)}
    s_lshl_b32 {S(sT2)}, {S(sHb)}, 7
    s_add_u32 {S(sT2)}, {S(sT2)}, {WS_FLG + FL_H*128}
    v_mov_b32 v11, {S(sT2)}
    s_lshl_b32 {S(sHb)}, {S(sHb)}, 1
    s_and_b32 {S(sT2)}, {S(sWV)}, 1
    s_add_u32 {S(sHb)}, {S(sHb)}, {S(sT2)}
    s_mul_i32 {S(sHb)}, {S(sHb)}, {20*4096}
    s_add_u32 {S(sHb)}, {S(sHb)}, {WS_H}
    s_lshl_b32 {S(sKb)}, {S(sHD)}, 19
    s_add_u32 {S(sVb)}, {S(sKb)}, {WS_V}
    s_add_u32 {S(sKb)}, {S(sKb)}, {WS_K}
    s_lshr_b32 {S(sT3)}, {S(sWV)}, 1
    s_mul_i32 {S(sK1)}, {S(sT2)}, {16384 + 8192}
    s_lshl_b32 {S(sT)}, {S(sT3)}, 11
    s_add_u32 {S(sK1)}, {S(sK1)}, {S(sT)}
    s_xor_b32 {S(sK1+1)}, {S(sK1)}, 16384
    s_mul_i32 {S(sV1)}, {S(sT2)}, {16384 + 1024}
    s_lshl_b32 {S(sT)}, {S(sT3)}, 13
    s_add_u32 {S(sV1)}, {S(sV1)}, {S(sT)}
    s_xor_b32 {S(sV1+1)}, {S(sV1)}, 16384
    """)
    vFlag, vOne, vPoll, vZero, vXo, vHo, vFlagW = 19, 20, 18, 17, 21, 22, 16
    b(f"""
    v_mov_b32 {V(vFlag)}, {hex(OOB)}
    s_cmp_eq_u32 {S(sWV)}, 0
    s_cselect_b32 {S(sT)}, 0, {hex(OOB)}
    v_mov_b32 {V(vFlagW)}, {hex(OOB)}
    v_writelane_b32 {V(vFlag)}, {S(sT)}, 0
    v_writelane_b32 {V(vFlagW)}, 0, 0
    v_mov_b32 {V(vOne)}, 1
    {"@hop a" if HOP else ""}
    @waitvm W0
    s_barrier
    """)
    if not fine: T.stamp(b, "C0")
    def m_silu():
        o = ["v_lshlrev_b32 v24, 16, v17", "v_and_b32 v25, 0xffff0000, v17", "v_lshlrev_b32 v26, 16, v18", "v_and_b32 v27, 0xffff0000, v18"]
        o += [f"v_mul_f32 {V(28+k)}, {FH(-LOG2E)}, {V(24+k)}" for k in range(4)]
        o += [f"v_exp_f32 {V(28+k)}, {V(28+k)}" for k in range(4)]
        o += [f"v_add_f32 {V(28+k)}, 1.0, {V(28+k)}" for k in range(4)]
        o += [f"v_rcp_f32 {V(28+k)}, {V(28+k)}" for k in range(4)]
        o += [f"v_mul_f32 {V(24+k)}, {V(24+k)}, {V(28+k)}" for k in range(4)]
        o += ["v_cvt_pk_bf16_f32 v24, v24, v25", "v_cvt_pk_bf16_f32 v25, v26, v27", f"v_lshl_add_u32 v26, v0, 2, {S(sMB)}",
              "ds_write_b32 v26, v24", "ds_write_b32 v26, v25 offset:256",
              "v_lshrrev_b32 v27, 4, v0", "v_bfe_u32 v28, v0, 2, 2", "v_lshl_add_u32 v28, v27, 3, v28", "v_lshlrev_b32 v28, 7, v28",
              "v_and_b32 v29, 3, v0", "v_lshl_add_u32 v28, v29, 3, v28", f"s_lshl_b32 s6, {S(sWV)}, 5", f"s_add_u32 s6, s6, {MB}",
              "v_add_u32 v28, s6, v28", f"v_lshl_add_u32 v27, v27, 4, {S(sMB)}"]
        o += [f"ds_read_b128 {V(32+4*ks,4)}, v27 offset:{ks*64}" for ks in range(5)]
        return toI(o)
    def m_reads(): return toI([f"ds_read_b64_tr_b16 {V(52+4*ks+2*hf,2)}, v28 offset:{ks*4096 + hf*512}" for ks in range(5) for hf in range(2)])
    def m_mfma(): return [MF(V(72,4), V(32+4*ks,4), V(52+4*ks,4), V(72,4) if ks else "0") for ks in range(5)]
    def m_store():
        return toI([f"s_lshl_b32 {S(sT3)}, {S(sCG)}, 2", f"s_add_u32 {S(sT3)}, {S(sT3)}, {S(sWV)}", f"s_lshl_b32 {S(sT3)}, {S(sT3)}, 6",
                    f"s_add_u32 {S(sT3)}, {S(sT3)}, {S(sKq)}", f"s_lshl_b32 {S(sT3)}, {S(sT3)}, 2", f"s_add_u32 {S(sT3)}, {S(sT3)}, {WS_MP}",
                    "v_and_b32 v29, 15, v0", "v_lshlrev_b32 v29, 4, v29"]) + [I(f"buffer_store_dword v72, v29, {sWS}, {S(sT3)} offen sc1", "ms")]
    def rnd(r): return [f"v_cvt_pk_bf16_f32 {V(r)}, {V(r)}, {V(r)}", f"v_lshlrev_b32 {V(r)}, 16, {V(r)}"]
    def sum4(r): return [f"v_add_f32 {V(r)}, {V(r)}, {V(r+1)}", f"v_add_f32 {V(r+2)}, {V(r+2)}, {V(r+3)}", f"v_add_f32 {V(r)}, {V(r)}, {V(r+2)}"] + rnd(r)
    def acc(o, kt): return A(32*o + 4*kt, 4) if o < 3 else V(96 + 32*(o-3) + 4*kt, 4)
    def Cf(buf, kt, ks): return A(96 + 64*buf + 8*kt + 4*ks, 4)
    def rdC(s, kt, ks): return f"ds_read_b128 {Cf(s & 1, kt, ks)}, {V(vRC1 if ks else vRC0)} offset:{(s & 1)*32768 + (kt >> 2)*16384 + (kt & 3)*2048}"
    def Wf(buf, ks): return 224 + 8*buf + 4*ks
    def rdW(s, o): return [f"ds_read_b64_tr_b16 {A(Wf(o & 1, ks) + 2*hf, 2)}, {V(vRW + (o & 3))} offset:{(s & 1)*32768 + (o >> 2)*16384 + ks*8192 + hf*1024}"
                           for ks in range(2) for hf in range(2)]
    b(rdW(0, 0))
    for kt in range(5):
        for ks in range(2): b(rdC(0, kt, ks))
    T.stamp(b, "kvstart")

    def spin(lab, vreg, soff, target, sc_=None):
        b(f"@need {V(vreg)}")
        b(f"v_cmp_gt_u32 vcc, {target}, {V(vreg)}")
        b(f"s_cbranch_vccnz {lab}_w")
        b.outline(f"{lab}_w", ["s_mov_b32 s3, 0", f"{lab}_spin:", "s_sleep 4", soff, "s_add_u32 s3, s3, 1", f"s_cmp_gt_u32 s3, {SPIN_MAX}", "s_waitcnt vmcnt(0)",
                               f"s_cbranch_scc1 {lab}_ok", f"v_cmp_gt_u32 vcc, {target}, {V(vreg)}", f"s_cbranch_vccnz {lab}_spin"], f"{lab}_ok")
    def emit_split(sc, hooks):
        cur = []
        for i in sc.emit():
            if i.kind == "pseudo" and i.op == "@mark":
                b(cur); cur = []; hooks[i.t.split()[1]]()
            else: cur.append(i)
        b(cur)

    XP, XF, MA, MS = 76, 32, 52, 72
    HP = 52
    poll_mod = f"buffer_load_dword {V(vPoll)}, {V(vZero)}, {sDBG}, 0 offen sc1"
    poll_mo2 = f"buffer_load_dword {V(vPoll)}, {V(vZero)}, {sWS}, 0 offen sc1"
    def h_setup():
        return toI([f"""
        v_and_b32 v92, 31, v0
        v_lshrrev_b32 v93, 5, v0
        v_mul_u32_u24 {V(vXo)}, 1280, v93
        v_lshl_add_u32 {V(vXo)}, v92, 3, {V(vXo)}
        v_lshrrev_b32 v94, 1, v92
        v_mul_u32_u24 {V(vHo)}, 144, v94
        v_lshl_add_u32 {V(vHo)}, v93, 4, {V(vHo)}
        v_and_b32 v94, 1, v92
        v_lshl_add_u32 {V(vHo)}, v94, 3, {V(vHo)}
        s_lshl_b32 s6, {S(sWV)}, 5
        s_add_u32 s6, s6, {MB + 8192}
        v_add_u32 {V(vHo)}, s6, {V(vHo)}
        v_lshlrev_b32 v95, 4, v92
        v_add_u32 v95, {MB}, v95
        """])
    def h_loadx():
        o = [f"s_lshl_b32 {S(sT2)}, s2, 2", f"s_add_u32 {S(sT2)}, {S(sT2)}, {S(sWV)}", f"s_mul_i32 {S(sT2)}, {S(sT2)}, 2560"]
        o += [f"buffer_load_dwordx2 {V(XP+2*m,2)}, {V(vXo)}, {sX}, {S(sT2)} offen offset:{256*m}" for m in range(5)]
        return toI(o)
    def mp_load():
        o = [f"s_lshl_b32 {S(sT3)}, {S(sWV)}, 10"]
        for i in range(5): o += [f"s_add_u32 {S(sT2)}, {S(sT3)}, {WS_MP + 4096*i}", f"buffer_load_dwordx4 {V(52+4*i,4)}, {V(vL16)}, {sWS}, {S(sT2)} offen sc1"]
        return toI(o)
    def mp_sum():
        o = [f"s_cmp_ge_u32 {S(sWV)}, 2", "s_cselect_b32 s6, 1.0, 0", f"s_cmp_ge_u32 {S(sWV)}, 2", f"s_cselect_b32 s7, 1.0, {FH(QSCALE)}",
             f"s_lshl_b32 {S(sT3)}, {S(sWV)}, 8", f"s_add_u32 {S(sT3)}, {S(sT3)}, {MB}", f"v_lshl_add_u32 v94, v0, 2, {S(sT3)}"]
        for i in range(5):
            r = 52 + 4*i; o += sum4(r)
            if i < 2: o.append(f"v_mul_f32 {V(r)}, {FH(QSCALE)}, {V(r)}")
            elif i == 2: o += [f"v_add_f32 {V(r)}, s6, {V(r)}"] + rnd(r) + [f"v_mul_f32 {V(r)}, s7, {V(r)}"]
            else: o += [f"v_add_f32 {V(r)}, 1.0, {V(r)}"] + rnd(r)
            o.append(I(f"ds_write_b32 v94, {V(r)} offset:{1024*i}", "mw"))
        return toI(o)
    def mod_read(): return toI([f"ds_read_b128 {V(r+4*m,4)}, v95 offset:{off + 512*m}" for m in range(5) for r, off in ((MA, 2560), (MS, 0))])
    def red32(r, t):
        o = [f"v_add_f32 {V(r)}, {V(r)}, {V(r)} row_ror:{k}" for k in (1, 2, 4, 8)]
        o += [f"v_mov_b32 {V(t)}, {V(r)}", f"v_permlane16_swap_b32 {V(r)}, {V(t)}", f"v_add_f32 {V(r)}, {V(r)}, {V(t)}"]
        return o
    def h_stats():
        o = []
        for k in range(10):
            o += [f"v_lshlrev_b32 {V(XF+2*k)}, 16, {V(XP+k)}", f"v_and_b32 {V(XF+2*k+1)}, 0xffff0000, {V(XP+k)}"]
        o += [f"v_add_f32 v92, {V(XF)}, {V(XF+1)}", f"v_add_f32 v93, {V(XF+2)}, {V(XF+3)}"]
        for k in range(4, 20): o.append(f"v_add_f32 {V(92 + (k & 1))}, {V(92 + (k & 1))}, {V(XF+k)}")
        o.append("v_add_f32 v92, v92, v93")
        o += red32(92, 93)
        o.append(f"v_mul_f32 v92, {FH(1/640)}, v92")
        for k in range(20): o.append(f"v_sub_f32 {V(XF+k)}, {V(XF+k)}, v92")
        o2 = [f"v_mul_f32 v92, {V(XF)}, {V(XF)}", f"v_mul_f32 v93, {V(XF+1)}, {V(XF+1)}"]
        for k in range(2, 20): o2.append(f"v_fmac_f32 {V(92 + (k & 1))}, {V(XF+k)}, {V(XF+k)}")
        o2.append("v_add_f32 v92, v92, v93")
        o2 += red32(92, 93)
        o2 += [f"v_mov_b32 v93, {FH(1e-5)}", f"v_fmac_f32 v93, {FH(1/640)}, v92", "v_rsq_f32 v93, v93", f"v_mul_f32 v93, {FH(QSCALE)}, v93"]
        for k in range(20): o2.append(f"v_mul_f32 {V(XF+k)}, {V(XF+k)}, v93")
        return toI(o), toI(o2)
    sHs = 61
    def h_addr():
        return toI([f"s_lshr_b32 {S(sHs)}, s2, 4", f"s_lshl_b32 {S(sHs)}, {S(sHs)}, 1", f"s_bfe_u32 {S(sT3)}, s2, 0x10001",
              f"s_add_u32 {S(sHs)}, {S(sHs)}, {S(sT3)}", f"s_mul_i32 {S(sHs)}, {S(sHs)}, {20*4096}",
              f"s_bfe_u32 {S(sT3)}, s2, 0x20002", f"s_lshl_b32 {S(sT3)}, {S(sT3)}, 10", f"s_add_u32 {S(sHs)}, {S(sHs)}, {S(sT3)}",
              f"s_and_b32 {S(sT3)}, s2, 1", f"s_lshl_b32 {S(sT3)}, {S(sT3)}, 7", f"s_add_u32 {S(sHs)}, {S(sHs)}, {S(sT3)}",
              f"s_add_u32 {S(sHs)}, {S(sHs)}, {S(sLw)}", f"s_add_u32 {S(sHs)}, {S(sHs)}, {WS_H}"])
    def h_fin():
        o = []
        for m in range(5):
            for k in range(4*m, 4*m + 4): o.append(f"v_fma_f32 {V(XF+k)}, {V(XF+k)}, {V(MA+k)}, {V(MS+k)}")
            for k in (2*m, 2*m + 1): o.append(f"v_cvt_pk_bf16_f32 {V(24+(k & 3))}, {V(XF+2*k)}, {V(XF+2*k+1)}")
            o.append(f"ds_write_b64 {V(vHo)}, {V(24 + 2*(m & 1), 2)} offset:{2304*m}")
        return toI(o)
    def h_back():
        return toI([f"s_mul_i32 s6, {S(sWV)}, 1152", f"s_add_u32 s6, s6, {MB + 8192}", f"v_add_u32 v92, s6, {V(vL16)}",
                    "v_lshrrev_b32 v93, 3, v0", "v_lshl_add_u32 v92, v93, 4, v92",
                    "v_lshrrev_b32 v93, 5, v0", "v_lshlrev_b32 v93, 12, v93", "v_bfe_u32 v94, v0, 3, 2", "v_lshl_add_u32 v93, v94, 8, v93",
                    "v_and_b32 v94, 7, v0", "v_lshl_add_u32 v93, v94, 4, v93"]), toI([f"ds_read_b128 {V(32+4*k,4)}, v92 offset:{4608*k}" for k in range(3)])
    def h_store():
        o = []
        for k in range(3):
            o.append(f"s_add_u32 {S(sT3)}, {S(sHs)}, {32768*k}")
            if k == 2: o += [f"s_cmp_lt_u32 {S(sWV)}, 2", f"s_cselect_b32 {S(sT3)}, {S(sT3)}, {hex(OOB)}"]
            o.append(I(f"buffer_store_dwordx4 {V(32+4*k,4)}, v93, {sWS}, {S(sT3)} offen sc1", "hs"))
        return toI(o)
    def f_load():
        return toI([f"s_lshl_b32 {S(sT2)}, s2, 8", f"s_add_u32 {S(sT2)}, {S(sT2)}, {WS_MP + 1280*16}", "v_and_b32 v28, 15, v0", "v_lshlrev_b32 v29, 4, v28",
                    f"buffer_load_dwordx4 v[24:27], v29, {sWS}, {S(sT2)} offen sc1"])
    def f_fin():
        return toI(["s_sub_u32 s6, s2, 80", "s_cmp_lt_u32 s6, 40", "s_cselect_b32 s6, 1.0, 0", "s_lshl_b32 s7, s2, 6", f"s_add_u32 s7, s7, {WS_MOD + 1280*4}",
                    "s_cmp_lt_u32 s2, 160", f"s_cselect_b32 s7, s7, {hex(OOB)}", f"s_cmp_eq_u32 {S(sWV)}, 0", f"s_cselect_b32 s7, s7, {hex(OOB)}"]
                   + sum4(24) + ["v_add_f32 v24, s6, v24"] + rnd(24) + ["v_lshlrev_b32 v29, 2, v28", f"buffer_store_dword v24, v29, {sWS}, s7 offen sc1",
                      "s_sub_u32 s6, s2, 40", "s_cmp_lt_u32 s6, 40", "s_cselect_b32 s7, 64, 0", "s_cmp_lt_u32 s6, 40", "s_cselect_b32 s5, 0, 40",
                      "s_sub_u32 s5, s6, s5", "s_lshr_b32 s4, s5, 1", "s_lshl_b32 s4, s4, 7", "s_add_u32 s7, s7, s4", "s_and_b32 s5, s5, 1", "s_lshl_b32 s5, s5, 3",
                      "s_add_u32 s7, s7, s5", f"s_add_u32 s7, s7, {WS_MODB}", "s_cmp_lt_u32 s6, 80", f"s_cselect_b32 s7, s7, {hex(OOB)}",
                      f"s_cmp_eq_u32 {S(sWV)}, 0", f"s_cselect_b32 s7, s7, {hex(OOB)}",
                      "v_lshrrev_b32 v29, 2, v28", "v_lshlrev_b32 v29, 4, v29", "v_and_b32 v28, 3, v28", "v_lshl_add_u32 v29, v28, 1, v29",
                      f"buffer_store_short_d16_hi v24, v29, {sWS}, s7 offen sc1"])
    def seq(sc, ins, start): return sc.seq(ins, start)
    poll_h = f"buffer_load_dword {V(vPoll)}, v11, {sWS}, 0 offen sc1"
    def Hf(buf, ks, qt): return A(96 + 64*buf + 16*ks + 4*qt, 4)
    def ldH(s):
        o = []
        for ks in range(4):
            o.append(f"s_add_u32 {S(sT2)}, {S(sHb)}, {(4*s + ks)*4096}")
            for qt in range(4): o.append(f"buffer_load_dwordx4 {Hf(s & 1, ks, qt)}, {V(vL16)}, {sWS}, {S(sT2)} offen offset:{qt*1024} sc1")
        return toI(o)
    tmpi = [0]
    def rno(t): return int(t[2:t.index(":")])
    def pack(t0, t1, dst=None):
        o = []
        def src(t, d=None):
            if t[0] == "v": return rno(t)
            if d is None: d = 24 + 4 * (tmpi[0] % 8); tmpi[0] += 1
            for k in range(4): o.append(f"v_accvgpr_read_b32 {V(d+k)}, {A(rno(t)+k)}")
            return d
        r0 = src(t0, dst); r1 = src(t1)
        cv = lambda d, s: f"v_cvt_pk_bf16_f32 {V(d)}, {V(s)}, {V(s+1)}"
        if t0[0] == "a" and t1[0] == "v":
            o += [cv(r1+3, r1+2), cv(r1+2, r1), cv(r1, r0), cv(r1+1, r0+2)]; return toI(o), r1
        o += [cv(r0, r0), cv(r0+1, r0+2), cv(r0+2, r1), cv(r0+3, r1+2)]; return toI(o), r0
    sG = 36
    def kvstore(reg, isv, u, pl, off):
        return toI([f"s_add_u32 {S(sT3)}, {S(sG + 4*isv + 2*u + pl)}, {off}"]) + [I(f"buffer_store_dwordx4 {reg}, {V(vL16)}, {sWS}, {S(sT3)} offen{KVM}", f"kv{u}")]
    def QWf(buf, ks): return (240 if buf == 0 else 224) + 4*ks
    def rdQW(s, dt): return [f"ds_read_b64_tr_b16 {A(QWf(dt & 1, ks) + 2*hf, 2)}, {V(vRW + dt)} offset:{(s % 3 == 1)*32768 + ks*8192 + hf*1024}"
                             for ks in range(4) for hf in range(2)]
    st1 = []; st0 = []; kwr = []; vwr = []; vpack = []; park = []; vw1 = []
    vKw, vVw = (21, 22), (17, 19)
    def flag(off_ins, srd, imm, vf=vFlag): return toI(off_ins + [f"buffer_atomic_add {V(vOne)}, {V(vf)}, {srd}, {S(sT2)} offen offset:{imm}"])
    def paced(sc, groups, g0, g1):
        g = g0
        for k, gr in enumerate(groups):
            t = max(g, g0 + (k * (g1 - g0)) // len(groups))
            gr = toI(list(gr))
            if EXACT and gr[-1].kind == "vmem":
                e = seq(sc, gr[:-1], max(g, t - len(gr) + 1)) + 1 if len(gr) > 1 else t
                g = sc.putw(gr[-1], max(e, t), max(e, t) + 1) + 1
                sc.seqs.append(gr)
            else: g = seq(sc, gr, t) + 1
        return g
    def vgroups(ins):
        out = [[]]
        for i in ins:
            out[-1].append(i)
            if i.kind == "vmem": out.append([])
        assert not out[-1]; return out[:-1]
    def kv_dma(s):
        d = []
        if s < 7: d += dmaW(s + 1)
        if s < 6: d += dmaC(s + 2)
        if s == 6: d += dmaQ(0)
        if s == 7: d += dmaQ(1)
        return d
    NT = 3
    for s in range(8):
        mf = []
        for o in range(8):
            for kt in range(8):
                for ks in range(2):
                    w = A(Wf(o & 1, ks), 4); c = Cf(s & 1, kt, ks)
                    cin = "0" if (s == 0 and ks == 0) else acc(o, kt)
                    mf.append(MF(acc(o, kt), w, c, cin) if o < 4 else MF(acc(o, kt), c, w, cin))
        sc = Sched(mf)
        if s == 0:
            for n in range(10, 16): sc.put(rdC(0, n >> 1, n & 1), n - 10)
        for o in range(7):
            for k, r in enumerate(rdW(s, o + 1)): sc.put(r, 16*o + k)
            sc.raw(f"@need {A(Wf((o+1) & 1, 0), 8)}", 16*o + 15, "pre")
        d = kv_dma(s)
        sc.raw(([f"@waitvm {d[-1][2].tag}"] if s < 7 else []) + ["s_waitcnt lgkmcnt(0)", "s_barrier"], 111)
        if s < 7:
            for k, r in enumerate(rdW(s + 1, 0)): sc.put(r, 112 + k)
            sc.raw(f"@need {A(Wf(0, 0), 8)}", 127, "pre")
            for n in range(16): sc.put(rdC(s + 1, n >> 1, n & 1), (5 + 6*n) if s else (BA + 1 + ((106 - BA)*n) // 16))
        hooks = {}
        if s == 0:
            sc.raw(["@waitvm C1", "s_waitcnt lgkmcnt(0)", "s_barrier"], BA)
            sc.raw([x for gr in dmaC(1)[NC1:] for x in gr], -1)
            g = paced(sc, d[:8], 10, BA - 2); assert g <= BA + 2, g
            g0 = paced(sc, d[8:], BA + 1, BA + 36)
            g0 = paced(sc, ([] if HOP else pf0[2:]) + vgroups(m_c()) + (vgroups(m_dma()) if MS0 else []), g0, 126 if MS0 else 110); assert g0 < 129, g0
            seq(sc, h_setup(), 20)
        elif s < 7: g0 = paced(sc, d[(0 if s == 1 and MS0 else NT):], 0, END + (10 if s == 1 and MS0 else 0))
        if s < 7 and not (s == 0 and MS0): paced(sc, kv_dma(s + 1)[:NT], 116, 127)
        def m_part(g):
            g = seq(sc, m_reads(), g)
            sc.raw(m_mfma(), g + 6)
            return seq(sc, toI([f"v_mov_b32 {V(vZero)}, 0", "v_and_b32 v90, 31, v0", "v_lshlrev_b32 v90, 7, v90", f"s_lshl_b32 s6, s2, 12",
                             f"s_cmp_lt_u32 s2, 80", f"s_cselect_b32 s6, s6, {hex(OOB)}",
                             f"s_cmp_eq_u32 {S(sWV)}, 0", f"s_cselect_b32 s6, s6, {hex(OOB)}",
                             f"s_add_u32 s6, s6, {WS_FLG}", f"buffer_store_dword {V(vZero)}, v90, {sWS}, s6 offen sc1"]) + m_store(), g + 2)
        def m_arrive(gm):
            sc.raw(["@waitvm ms", "s_barrier"], gm)
            return seq(sc, flag([f"s_lshl_b32 {S(sT2)}, {S(sKq)}, 6", f"s_cmp_lt_u32 s2, 80", f"s_cselect_b32 {S(sT2)}, {S(sT2)}, {hex(OOB)}"], sDBG, 0), gm + 1)
        if s == 1:
            g = seq(sc, m_silu(), 4)
            if MS0:
                sc.raw(["@waitvm m", "s_barrier"], g + 1)
                paced(sc, [pfW(t) for t in PFA], g0, g0 + 4*len(PFA))
                assert m_part(g + 2) < 128
            else: assert paced(sc, [pfW(1)] + vgroups(m_dma()), g0, 112) < 117
        if s == 2:
            if MS0:
                g = m_arrive(MW)
                assert paced(sc, vgroups(h_loadx()) + [pfW(t) for t in (1, 2, 3) if t not in PFA], max(g, g0) + 1, g0 + 26) < 111
            else:
                sc.raw(["@waitvm m", "s_barrier"], 30)
                assert m_part(31) < 80
                assert paced(sc, [pfW(2)] + vgroups(h_loadx()), max(g0, 80), 110) < 114
                m_arrive(113)
        if s == 3:
            seq(sc, [f"v_and_b32 {V(vZero)}, 3, v0", f"v_lshlrev_b32 {V(vZero)}, 6, {V(vZero)}"], 0)
            gp = sc.put(poll_mod, PMG); assert gp < PMG + 8
            sc.raw("@mark pm", gp + 30, "post2"); hooks["pm"] = lambda: spin(name + "_pm", vPoll, poll_mod, 20)
            fl = flag([f"s_and_b32 {S(sT2)}, {S(sCG)}, 7", f"s_lshl_b32 {S(sT2)}, {S(sT2)}, 7", f"s_add_u32 {S(sT2)}, {S(sT2)}, {WS_FLG + FL_M*128}",
                       f"s_sub_u32 s5, s2, 80", f"s_cmp_lt_u32 s5, 160", f"s_cselect_b32 {S(sT2)}, {S(sT2)}, {hex(OOB)}"], sWS, 0)
            assert paced(sc, vgroups(mp_load()) + [fl], gp + 31, min(gp + 56, 126)) < 129
            assert seq(sc, h_addr(), 0) < gp + 30
            assert seq(sc, h_stats()[0] + h_stats()[1], 4) < 128
        if s == 4:
            paced(sc, [pfQ(0)] + ([pfQ(1)] if PQ4 else []), g0, g0 + 2)
            g = seq(sc, mp_sum(), MSG)
            sc.raw(["@waitlg mw", "s_barrier"], g + 4, "pre")
            gr = g + 5; mr = mod_read(); hf_ = h_fin(); pos = []
            for m in range(5): gr = seq(sc, mr[2*m : 2*m + 2], gr) + 1; pos.append(gr)
            for m in range(5): g = seq(sc, hf_[7*m : 7*m + 7], max(g + 1, pos[m] + 5))
            assert g < 108, g
            hb = h_back(); assert seq(sc, hb[0], 60) < 111
            seq(sc, hb[1], 116)
        if s == 5:
            g = paced(sc, vgroups(h_store()), 2, 30)
            seq(sc, [f"v_and_b32 {V(vZero)}, 7, v0", f"v_lshlrev_b32 {V(vZero)}, 7, {V(vZero)}", f"v_add_u32 {V(vZero)}, {WS_FLG + FL_M*128}, {V(vZero)}"], 30)
            assert sc.put(poll_mo2, 40) < 60
            fl = flag([f"s_lshr_b32 {S(sT2)}, s2, 4", f"s_lshl_b32 {S(sT2)}, {S(sT2)}, 7", f"s_add_u32 {S(sT2)}, {S(sT2)}, {WS_FLG + FL_H*128}", "@waitvm hs"], sWS, 0, vFlagW)
            assert paced(sc, [fl] + ([] if PQ4 else [pfQ(1)]), HA or g0, (HA or g0) + 8) < 100
            sc.raw("@mark p2", 111); hooks["p2"] = lambda: spin(name + "_p2", vPoll, poll_mo2, 20)
        if s == 6:
            assert paced(sc, dmaQ(2), g0, 112) < 117
            seq(sc, f_load(), 2)
            sc.put(poll_h, 126, force=True)
            g = seq(sc, f_fin(), 40)
            ga = []
            for isv, (base, rel) in enumerate(((sKb, sK1), (sVb, sV1))):
                for u, blk in enumerate((sBLK, sBLK2)):
                    ga += [f"s_lshl_b32 {S(sT3)}, {S(blk)}, 15", f"s_add_u32 {S(sT3)}, {S(sT3)}, {S(base)}"]
                    ga += [f"s_add_u32 {S(sG + 4*isv + 2*u + pl)}, {S(sT3)}, {S(rel + pl)}" for pl in range(2)]
            ga += [f"v_add_u32 {V(vKw[pl])}, {S(sK1+pl)}, {V(vL16)}" for pl in range(2)]
            ga += [f"v_add_u32 {V(vVw[pl])}, {S(sV1+pl)}, {V(vL16)}" for pl in range(2)] + [f"v_add_u32 {V(vVw[pl])}, 65536, {V(vVw[pl])}" for pl in range(2)]
            seq(sc, ga, 76)
        if s == 7:
            g = paced(sc, d[NT:], 0, PHG - 2)
            sc.raw("@mark ph", PHG, "post2"); hooks["ph"] = lambda: spin(name + "_ph", vPoll, poll_h, 64)
            assert paced(sc, vgroups(ldH(0)), PHG + 1, 104) < 112
            qa = [f"s_lshr_b32 s6, {S(sWV)}, 1", f"s_lshl_b32 s6, s6, 7", f"s_add_u32 s6, s6, 65536", f"v_xor_b32 {V(vRW)}, s6, {V(vRW)}"]
            qa += [f"v_xor_b32 {V(vRW+n)}, {32*n}, {V(vRW)}" for n in range(1, 8)]
            assert seq(sc, toI(qa), 101) < 112
            for k, r in enumerate(rdQW(0, 0)): sc.put(r, 112 + k)
            g = 0
            for kt in range(8):
                g = seq(sc, [f"v_accvgpr_read_b32 {V(64+4*kt+k)}, {A(4*kt+k)}" for k in range(4)]
                        + [f"v_cvt_pk_bf16_f32 {V(64+4*kt+k)}, {V(64+4*kt+2*k)}, {V(65+4*kt+2*k)}" for k in range(2)], max(g, 2*kt + 6))
            for a in range(2):
                for kt in range(8):
                    u, pl = kt >> 2, (kt >> 1) & 1
                    ins, r = pack(acc(2*a, kt), acc(2*a+1, kt), 64 + 4*kt if a == 0 else None)
                    if a == 0: ins = ins[4:8] + ins[10:]
                    off = ((kt & 1)*4 + a)*1024
                    kwr.append(f"ds_write_b128 {V(vKw[pl])}, {V(r,4)} offset:{u*32768 + off}")
                    if a == 0 and u == 0:
                        park += [f"v_accvgpr_write_b32 {A(4*kt+k)}, {V(r+k)}" for k in range(4)]
                        st0.append(kvstore(A(4*kt, 4), 0, u, pl, off))
                    elif a == 0 and kt - 4 < S7: ins += kvstore(V(r, 4), 0, u, pl, off)
                    else: (st1 if u else st0).append(kvstore(V(r, 4), 0, u, pl, off))
                    g = seq(sc, ins, max(g, 16*(2*a+1) + 2*kt + 6))
            for o in range(4, 8):
                for p in range(4):
                    u, pl = p >> 1, p & 1
                    ins, r = pack(acc(o, 2*p), acc(o, 2*p+1))
                    off = (o-4)*2048
                    (st1 if u else st0).append(kvstore(V(r, 4), 1, u, pl, off))
                    if u == 0: vwr.append(f"ds_write_b128 {V(vVw[pl])}, {V(r,4)} offset:{32768 + off}")
                    else: vw1.append((r, f"ds_write_b128 {V(vVw[pl])}, {V(r,4)} offset:{off}"))
                    vpack.append(ins)
        emit_split(sc, hooks)
        if fine is True and s < 7: T.stamp(b, f"kv{s}")
    T.stamp(b, "kvend")
    def qacc(dt, qt):
        i = dt*4 + qt
        return 32 + 4*i if i < 8 else (128 + 8*(i - 8) + 4 if i < 24 else 64 + 4*(i - 24))
    vKr, vVr, vDm, vQw, vQr = 1, 2, 5, 6, 24
    qsetup = toI([f"""
    s_lshl_b32 s6, {S(sHD)}, 7
    s_add_u32 s6, s6, {WS_FLG + FL_KV*128}
    v_mov_b32 v25, s6
    s_lshr_b32 s6, {S(sWV)}, 1
    s_lshl_b32 s7, s6, 14
    v_add_u32 {V(vKr)}, s7, {V(vL16)}
    v_add_u32 {V(vVr)}, 65536, {V(vKr)}
    v_add_u32 {V(vDm)}, {S(sLw)}, {V(vL16)}
    s_and_b32 s7, {S(sWV)}, 1
    s_lshl_b32 s7, s7, 14
    s_add_u32 s7, s7, 65536
    v_add_u32 {V(vQr)}, s7, {V(vL16)}
    s_lshl_b32 s6, s6, 16
    v_add_u32 {V(vQw)}, s6, {V(vQr)}
    """])
    def dmaKV(isv, slot, soff, tag, sl=sLw):
        base = (65536 + (slot ^ 1)*32768) if isv else slot*32768
        o = []
        for hf in range(2):
            o.append(I(f"s_add_u32 m0, {S(sl)}, {base + hf*4096}"))
            if hf: o.append(I(f"s_add_u32 {S(soff)}, {S(soff)}, 4096"))
            for i in range(4): o.append(I(f"buffer_load_dwordx4 {V(vDm)}, {sWS}, {S(soff)} offen offset:{i*1024}{KVL} lds", tag))
        return o
    sR0, sKu, sUa, sUb = 57, 60, 70, 62
    sA0, sA1, sAl = 63, 78, 77
    def unit_diag(dst, base): return [f"s_lshl_b32 {S(dst)}, {S(sBLK)}, 15", f"s_add_u32 {S(dst)}, {S(dst)}, {S(base)}"]
    def unit_r0(dst, base): return [f"s_lshl_b32 {S(dst)}, {S(sR0)}, 15", f"s_add_u32 {S(dst)}, {S(dst)}, {S(base)}"]
    assert sum(QST) + S7 == 16
    def pf_code(tag, vt, vd):
        return toI([f"s_getpc_b64 s[4:5]", f"{name}_pc{tag}:", f"s_lshr_b32 s6, s2, 3", f"s_lshl_b32 s6, s6, 2", f"s_add_u32 s6, s6, {S(sWV)}", f"s_lshl_b32 s6, s6, 9",
                    f"v_and_b32 {V(vt)}, 3, v0", f"v_lshl_add_u32 {V(vt)}, {V(vt)}, 7, s6", f"v_min_u32 {V(vt)}, code_end - {name}_pc{tag} - 4, {V(vt)}",
                    f"global_load_dword {V(vd)}, {V(vt)}, s[4:5]"])
    for s in range(5):
        mf = []
        for dt in range(8):
            for qt in range(4):
                for ks in range(4):
                    d = V(qacc(dt, qt), 4)
                    mf.append(MF(d, A(QWf(dt & 1, ks), 4), Hf(s & 1, ks, qt), "0" if (s == 0 and ks == 0) else d))
        sc = Sched(mf)
        for dt in range(7):
            for k, r in enumerate(rdQW(s, dt + 1)): sc.put(r, 16*dt + k)
            sc.raw(f"@need {A(QWf((dt+1) & 1, 0), 16)}", 16*dt + 15, "pre")
        sc.raw([f"@waitvm Q{s+1}", "s_waitcnt lgkmcnt(0)", "s_barrier"], 111)
        if s < 4:
            for k, r in enumerate(rdQW(s + 1, 0)): sc.put(r, 112 + k)
            sc.raw(f"@need {A(QWf(0, 0), 16)} {A(96 + 64*((s+1) & 1), 64)}", 127, "pre")
        ld = ((dmaQ(3) + dmaQ(4))[QD[s-1] : QD[s]] if 1 <= s < 4 else []) + (vgroups(ldH(s + 1)) if s < 4 else [])
        if s in (1, 2):
            for dt in range(8): sc.put(f"v_xor_b32 {V(vRW + dt)}, 0x30000, {V(vRW + dt)}", max(16*(dt - 1) + 8, 8))
        if s < 2:
            g = 8
            for w in kwr[8*s : 8*s + 8]: g = sc.put(w, g) + DWS
            assert g < 95
        if s < 4:
            mine = st1[sum(QST[:s]) : sum(QST[:s+1])]
            if s == 0:
                g = paced(sc, mine[:4-S7], 0, 6*(4-S7)); g = paced(sc, ld, g, QEND); mine = mine[4-S7:]
            else: g = paced(sc, ld, 0, QEND)
            if mine: assert paced(sc, mine, g, 126) < 129
        if s == 0:
            g = 0
            for k, ins in enumerate(vpack):
                g = seq(sc, ins, g); assert g < 32 + 4*k - 2, (k, g)
            assert seq(sc, park, g) < 94
        if s == 3: seq(sc, qsetup + toI([f"s_mov_b32 {S(sR0)}, {S(sJ)}"]), 40)
        if s == 3 and CPF: sc.raw(pf_code("q", 27, vDum), 126)
        if s == 4:
            sc.raw("@waitvm kv1", QF)
            g = seq(sc, flag([f"s_lshl_b32 {S(sT2)}, {S(sHD)}, 7", f"s_add_u32 {S(sT2)}, {S(sT2)}, {WS_FLG + FL_KV*128}"], sWS, 0, vFlagW), QF + 1)
            g = paced(sc, st0[:QB], g + 1, 110)
            g = 0; gw = 0
            for ds in range(4):
                for qt in range(4):
                    r0, r1 = qacc(2*ds, qt), qacc(2*ds+1, qt)
                    seq(sc, toI([f"v_cvt_pk_bf16_f32 {V(r0)}, {V(r0)}, {V(r0+1)}", f"v_cvt_pk_bf16_f32 {V(r0+1)}, {V(r0+2)}, {V(r0+3)}"]), 16*(2*ds) + 4*qt + 9)
                    g = seq(sc, toI([f"v_cvt_pk_bf16_f32 {V(r0+2)}, {V(r1)}, {V(r1+1)}", f"v_cvt_pk_bf16_f32 {V(r0+3)}, {V(r1+2)}, {V(r1+3)}"]),
                            max(g, 16*(2*ds+1) + 4*qt + 8))
                    gw = sc.putw(f"ds_write_b128 {V(vQw)}, {V(r0, 4)} offset:{(ds*4+qt)*1024}", max(g + 1, gw), max(g + 1, gw) + 2) + 4
            for k in range(3): sc.raw(vwr[k], 112 + 4*k)
            sc.raw([x for gr in st0[QB:10] for x in gr], 999)
        out = sc.emit()
        if "qtr" in drop: out = [i for i in out if "_tr_" not in i.op]
        if "qvm" in drop: out = [i for i in out if not (i.kind == "vmem" and "load" in i.op)]
        if "qst" in drop: out = [i for i in out if not (i.kind == "vmem" and "store" in i.op)]
        if "qdw" in drop: out = [i for i in out if not i.op.startswith("ds_write")]
        b(out)
        if fine is True and s < 4: T.stamp(b, f"q{s}")
    T.stamp(b, "qend")
    def O(dt, qt): return 128 + 16*dt + 4*qt
    def P(buf, kp, qt): return 64 + 32*buf + 16*kp + 4*qt
    def Sw(i): return 48 + 4*(i & 3)
    def NM(qt): return 32 + 4*qt
    def Lr(qt): return 164 + 4*qt
    MK, TC = 8, 12
    vL, vXp, vPa, vPk = 3, 4, 6, 7
    vX, vLx, vQa, vQb = 17, 18, 21, 22
    def Qf(ds, qt): return A(16*ds + 4*qt, 4)
    def Kf(kt, ds): return A(64 + 16*kt + 4*ds, 4)
    def Vf(dt, kp): return A(128 + 8*(dt & 3) + 4*kp, 4)
    ONES = A(160, 4)
    sTop = 76; NCX = 8; sXa = 36
    sLk = 80
    att = fine in ("att0", "att1"); cnd = f"s_cmp_eq_u32 {S(sPass)}, {str(fine)[-1]}"
    def ST(nm):
        if not att: return
        if nm in T.names:
            n = T.n; T.n = T.names.index(nm); T.stamp(b, nm, cnd); T.names.pop(); T.n = n
        else: T.stamp(b, nm, cnd)
    def rdK(slot, kt, ds): return f"ds_read_b128 {Kf(kt, ds)}, {V(vKr)} offset:{slot*32768 + (kt*4+ds)*1024}"
    def rdK0(kt, ds): return rdK(0, kt, ds)
    def rdV(slot, dt, kp): return f"ds_read_b128 {Vf(dt, kp)}, {V(vVr)} offset:{(slot ^ 1)*32768 + (dt*2+kp)*1024}"
    def rdQ(base, ds, qt): return f"ds_read_b128 {A(base + 16*ds + 4*qt, 4)}, {V(vQb if qt >> 1 else vQa)} offset:{ds*4096 + (qt & 1)*1024}"
    poll_kv = f"buffer_load_dword {V(vPk)}, {V(vPa)}, {sWS}, 0 offen sc1"
    b([rdK0(0, ds) for ds in range(4)])
    b(f"s_load_dwordx2 {S(WU,2)}, s[0:1], {ARG['wo']}")
    RT, RO, RS = R["wuk"], R["wuv"], R["ckv"]
    for r_, n_ in ((RT, "win"), (RO, "wout"), (RS, "wsp"), (R["dbg"], "x")):
        b(f"s_load_dwordx2 {S(r_,2)}, s[0:1], {ARG[n_]}"); b(f"s_mov_b32 {S(r_+2)}, {hex(SIZE[n_])}")
    b(f"""
    s_mov_b32 {S(WU+2)}, {hex(SIZE['wo'])}
    v_mov_b32 {V(vL)}, {V(vL16)}
    s_lshr_b32 {S(sT2)}, {S(sWV)}, 1
    s_lshl_b32 {S(sT2)}, {S(sT2)}, 11
    v_add_u32 {V(vQa)}, {S(sT2)}, {V(vQr)}
    v_xor_b32 {V(vQb)}, 0x800, {V(vQa)}
    s_lshl_b32 {S(sA0)}, {S(sBLK2)}, 15
    s_add_u32 {S(sA0)}, {S(sA0)}, {S(sKb)}
    s_mov_b32 {S(sA1)}, {S(sKb)}
    s_mov_b32 {S(sAl)}, {S(sLw)}
    v_mov_b32 v12, 0x3f803f80
    s_mov_b32 {S(sPass)}, 0
    s_mov_b32 {S(sTop)}, 131072
    v_mov_b32 {V(vPa)}, v25
    """)
    for r in range(4): b(f"v_accvgpr_write_b32 {A(160+r)}, v12")
    def masks(first, t0=28):
        o = [f"""
        v_lshrrev_b32 {V(t0)}, 4, v0
        v_lshlrev_b32 {V(t0)}, 2, {V(t0)}
        v_and_b32 {V(t0+1)}, 15, v0
        v_sub_u32 {V(t0)}, {V(t0+1)}, {V(t0)}
        s_and_b32 s7, {S(sWV)}, 1
        s_lshl_b32 s7, s7, 4
        v_add_u32 {V(t0)}, s7, {V(t0)}
        v_mov_b32 {V(t0+1)}, {FH(NEGBIG)}
        """]
        for base, dst in ([(0, MK)] if first else []) + [(16, TC)]:
            for r in (0, 2):
                o += [f"v_cmp_gt_i32 vcc, {base + r}, {V(t0)}", f"v_cmp_gt_i32 {S(sMK,2)}, {base + r + 1}, {V(t0)}", "v_nop",
                      f"v_cndmask_b32 {V(dst+r)}, 0, {V(t0+1)}, vcc", f"v_cndmask_b32 {V(dst+r+1)}, 0, {V(t0+1)}, {S(sMK,2)}"]
        return toI(o)
    b(masks(True))
    b(poll_kv.replace(f'dword {V(vPk)},', 'dword v26,'))
    for r in range(16): b(f'v_mov_b32 {V(NM(0)+r)}, 0')
    b("s_waitcnt lgkmcnt(0)"); b("s_barrier")
    for qt in range(4):
        for ds in range(4):
            b(rdQ(0, ds, qt))
            if HOP and (qt, ds) == (3, 1): b("@hop b")
    b(vwr[3:])
    b(f"v_add_u32 {V(vQa)}, 65536, {V(vQa)}"); b(f"v_add_u32 {V(vQb)}, 65536, {V(vQb)}")
    def softmax_ops(si, pbuf, kt, qt):
        s = Sw(si); p = P(pbuf, kt >> 1, qt) + 2*(kt & 1)
        return ([f"v_exp_f32 {V(s+r)}, {V(s+r)}" for r in range(4)],
                [f"v_cvt_pk_bf16_f32 {V(p)}, {V(s)}, {V(s+1)}", f"v_cvt_pk_bf16_f32 {V(p+1)}, {V(s+2)}, {V(s+3)}"])
    def place_softmax(sc, ops, start, stride):
        ex, cv = ops; g = start; gs = []
        for e in ex:
            g = sc.put(e, g); gs.append(g); g += stride
        return [(cv[0], gs[1] + 1), (cv[1], gs[3] + 1)]
    def diag_active(kg): return [(kp, q) for kp in range(2) for q in range(4) if (3 - kg if kp else kg) <= (q ^ (2*kg))]
    def next_k_dma(slot, ahead=2):
        return toI([f"s_mov_b32 {S(sUa)}, {S(sUb)}", f"s_mov_b32 {S(sUb)}, {S(sKu)}",
                    f"s_lshl_b32 {S(sKs)}, {S(sKu)}, 15", f"s_add_u32 {S(sKs)}, {S(sKs)}, {S(sKb)}", f"s_add_u32 {S(sKu)}, {S(sKu)}, 1",
                    f"s_cmp_eq_u32 {S(sKu)}, {S(sR0)}", f"s_addc_u32 {S(sKu)}, {S(sKu)}, 0", f"s_add_u32 {S(sT2)}, {S(sN)}, {ahead}",
                    f"s_cmp_gt_u32 {S(sBLK)}, {S(sT2)}", f"s_cselect_b32 {S(sKs)}, {S(sKs)}, {S(sA1 if slot else sA0)}",
                    f"s_cmp_gt_u32 {S(sBLK)}, {S(sT2)}", f"s_cselect_b32 {S(sLk)}, {S(sLw)}, {S(sAl)}"]) + dmaKV(0, slot, sKs, "k", sLk)
    def next_v_dma(slot):
        return toI([f"s_lshl_b32 {S(sVs)}, {S(sUa)}, 15", f"s_add_u32 {S(sVs)}, {S(sVs)}, {S(sVb)}"]) + dmaKV(1, slot, sVs, "v")
    def next_reads(n_par):
        rd = []
        for k in range(4): rd += [rdK(n_par, 0, k), rdV(n_par ^ 1, k >> 1, k & 1)]
        return rd
    def qk_diag(kg):
        act = diag_active(kg); tiles = []; zero = []
        for kt in range(4):
            p = 3 - kg if kt >> 1 else kg
            for q in range(4):
                if (kt >> 1, q) in act: tiles.append((kt, q, p == (q ^ (2*kg))))
        mf = []
        for i, (kt, q, dg) in enumerate(tiles):
            for ds in range(4):
                mf.append(MF(V(Sw(i), 4), Kf(kt, ds), Qf(ds, q), V(Sw(i), 4) if ds else V(Sw(i) if dg else NM(q), 4)))
        n = len(mf)
        sc = Sched(mf)
        g = 0
        for kt in sorted({t[0] for t in tiles} - {0}):
            for ds in range(4): g = sc.put(rdK0(kt, ds), g, force=True) + 1
        gb = max(g + 5, 4 * max(i for i, t in enumerate(tiles) if t[0] == 0) + 4, n - 10)
        init = []
        for kt, q in zero:
            p = P(0, kt >> 1, q) + 2*(kt & 1); init += [f"v_mov_b32 {V(p)}, 0", f"v_mov_b32 {V(p+1)}, 0"]
        if kg == 1: init += [f"v_accvgpr_write_b32 {A(Lr(2)+r)}, 0" for r in range(4)]
        for i, (kt, q, dg) in enumerate(tiles):
            if dg:
                for r in range(4): sc.raw(f"v_add_f32 {V(Sw(i)+r)}, {V(NM(q)+r)}, {V((TC if kt & 1 else MK)+r)}", -1 if i < 4 else 4*i - 4 + r // 2, "post2")
        sc.raw(init, -1)
        for i, (kt, q, dg) in enumerate(tiles):
            ex, cv = softmax_ops(i, 0, kt, q)
            for r in range(4): sc.raw(ex[r], 4*i + 7 + r)
            sc.raw(cv[0], 4*i + 10, "post"); sc.raw(cv[1], 4*i + 11, "post2")
        for i, (kt, q, dg) in enumerate(tiles):
            sc.raw(f"@need {A(64 + 16*kt, 16)} " + " ".join(Qf(ds, q) for ds in range(4)), 4*i - 1, "pre")
        sc.raw(["@waitvm v", "s_waitcnt lgkmcnt(0)", "s_barrier"], gb, "post2")
        for k, r in enumerate(next_reads(1)): sc.raw(r, gb + 1 + k, "pre")
        assert gb + 8 < n
        sc.seq(next_k_dma(0, 1)[:12], 14)
        return sc.emit()
    def iteration(par, qk, pv, carry, exit_lab=None, side=None, first=False):
        act = [(kp, q) for kp in range(2) for q in range(4)] if pv == "full" else diag_active(pv)
        fresh = pv != "full"
        def chain(dst, a, q):
            m = []; f = fresh
            for kp in range(2):
                if (kp, q) in act: m.append(MF(dst, a(kp), V(P(par, kp, q), 4), "0" if f else dst)); f = False
            return m
        groups = []
        for g in range(16):
            m = []
            if qk:
                kt, q = g >> 2, g & 3
                for ds in range(4): m.append(MF(V(Sw(g), 4), Kf(kt, ds), Qf(ds, q), V(Sw(g), 4) if ds else V(NM(q), 4)))
            dt = g >> 1
            if qk and fresh:
                order = sorted(range(4), key=lambda q: -sum((kp, q) in act for kp in range(2)))
                qs = (order[0], order[3]) if g & 1 else (order[1], order[2])
            else: qs = (2*(g & 1), 2*(g & 1) + 1)
            for q in qs: m += chain(V(O(dt, q), 4), lambda kp: Vf(dt, kp), q)
            if qk and g % 4 == 2: m += chain(A(Lr(g >> 2), 4), lambda kp: ONES, g >> 2)
            if not qk and g in (2, 4, 6, 8): m += chain(A(Lr(g // 2 - 1), 4), lambda kp: ONES, g // 2 - 1)
            groups.append(m)
        st = [0]
        for m in groups: st.append(st[-1] + len(m))
        n = st[16]
        sc = Sched([x for m in groups for x in m])
        if qk and not fresh:
            cvs = place_softmax(sc, softmax_ops(15, par, 3, 3), 0, 2)
            for g in range(15): cvs += place_softmax(sc, softmax_ops(g, par ^ 1, g >> 2, g & 3), st[g+1], 2)
            for c, e in cvs: sc.put(c, e)
            for sp in range(4):
                rd = next_reads(par) if sp == 3 else [x for k in range(4) for x in (rdK(par ^ 1, sp + 1, k), rdV(par, 2*sp + 2 + (k >> 1), k & 1))]
                rd = rd[0::2] + rd[1::2]
                pos = [st[4*sp + gg] + o for gg in range(4) for o in ((1, 3, 7) if sp == 2 else (3, 7))]
                for r, p in zip(rd, pos): assert sc.put(r, p) == p
                if sp != 2: sc.raw("s_waitcnt lgkmcnt(1)", st[4*sp + 4] - 1, "pre")
                sc.raw(f"@need {A(128 + 8*((2*sp + 1) & 3), 8)}", st[4*sp + 2] + 2, "pre")
            gv = sc.seq(next_v_dma(par ^ 1), 0 if side else V0, 4 if side else VST)
            sc.raw(["@waitvm v", "s_waitcnt lgkmcnt(0)", "s_barrier"], st[12] - BPOS, "pre" if BPOS == 3 else "post")
            kd = next_k_dma(par ^ 1)
            g = sc.seq(kd[:12], st[11] - 8) ; assert g < st[12] - BPOS
            g = sc.seq(kd[12:], st[12] - BPOS + 1, KST); assert g < n - 2, g
            if side: side(sc, st, gv)
        elif qk:
            cvs = []
            for g in range(15):
                ex, cv = softmax_ops(g, par ^ 1, g >> 2, g & 3)
                lo, ln = st[g+1] + 1, st[g+2] - st[g+1]
                ps = [lo + (r * ln) // 4 for r in range(4)]
                for e, p in zip(ex, ps): sc.put(e, p, force=True)
                cvs += [(cv[0], ps[1] + 1, ps[1] + 5), (cv[1], ps[3] + 1, ps[3] + 4)]
            dm = vgroups(next_k_dma(0, 1) + ([] if first else next_v_dma(1))); g = 0
            free_at = {}
            if first:
                firstw = lambda r: min([k for k, x in enumerate(sc.mf) if x.split()[1] == V(r, 4) + ","] + [st[11]])
                for k, (r, w) in enumerate(vw1):
                    hi = firstw(r) - 1
                    lo = max(0, min(hi - 4, 8*k))
                    free_at[r] = sc.putw(w, lo, min(hi, lo + 4))
                for k, gr in enumerate(st0[10:]):
                    gr = toI([x.t.replace(f", {V(vL16)},", f", {V(vL)},") for x in gr]); gr[-1].tag = "kv0"
                    r = rno(gr[-1].t.split()[1]); hi = min(firstw(r) - 1, st[4*(k//2) + 4] - 1)
                    lo = hi - (4 if k & 1 else 16)
                    free_at[r] = gg = sc.putw(gr[-1], lo, lo + 3)
                    sc.raw(gr[0], gg - 1, "post")
            dm[0] = dm[0][12:]
            for k, gr in enumerate(dm):
                lo = max(g, (k * (st[9] - 4)) // 16)
                if len(gr) > 1: lo = sc.seq(gr[:-1], lo)
                g = sc.putw(gr[-1], lo + 1, lo + 4) + 1
            if pv == 1:
                for dt in range(8):
                    for r in range(4): sc.putw(f"v_mov_b32 {V(O(dt, 2)+r)}, 0", free_at.get(O(dt, 2), 0) + 2, n - 3)
            sc.raw(["@waitvm k" if first else "@waitvm v", "s_waitcnt lgkmcnt(0)", "s_barrier"], st[12] - 1)
            kd = next_k_dma(1)
            assert g < st[10] and sc.seq(kd[:12], st[10]) < st[12]
            g = st[12]
            for k, gr in enumerate(vgroups(kd[12:])):
                lo = max(g, st[12] + (k * (n - 4 - st[12])) // 8)
                for x in gr[:-1]: sc.raw(x, lo, "pre")
                g = sc.putw(gr[-1], lo + 1, lo + 2) + 1
            assert g < n
            for sp in range(4):
                rd = next_reads(par) if sp == 3 else [x for k in range(4) for x in (rdK(par ^ 1, sp + 1, k), rdV(par, 2*sp + 2 + (k >> 1), k & 1))]
                lo, hi = st[4*sp], st[4*sp + 3] + 1
                for k, r in enumerate(rd): sc.putw(r, lo + (k * (hi - lo)) // 8, lo + ((k + 1) * (hi - lo)) // 8)
                if sp != 2: sc.raw("s_waitcnt lgkmcnt(0)", st[4*sp + 4] - 1, "pre")
            for c, lo, hi in cvs: sc.putw(c, lo, min(hi, n - 1))
        else:
            if pv == 1:
                for k in range(32): sc.raw(f"v_mov_b32 {V(O(k >> 2, 2) + (k & 3))}, 0", k)
            if carry:
                ex, cv = softmax_ops(15, par, 3, 3)
                sc.raw(ex[:2], -1); sc.raw(ex[2], 0); sc.raw(ex[3], 1); sc.raw(cv[0], 2); sc.raw(cv[1], 3)
            for g in range(12): sc.put(rdV(par, (g >> 1) + 2, g & 1), st[g], force=True)
            busy, idle = 65536 + (par ^ 1)*32768, 65536 + par*32768
            sc.raw([f"v_add_u32 {V(vX)}, {S(sXa + par)}, {V(vL)}"], 2); sc.raw([f"v_add_u32 {V(vXp)}, {S(sXa + 2 + par)}, {V(vL)}"], 3)
            sc.raw([f"s_lshl_b32 {S(sT2)}, {S(sWV)}, 10"], 4, "pre")
            sc.raw([f"v_add_u32 {V(vLx)}, {busy}, {V(vL)}", f"v_add_u32 v19, {S(sT2)}, {V(vLx)}"], 5)
            gb = st[12] + 2
            sc.raw([f"@need {A(128, 32)}", "s_barrier"], gb, "pre")
            g = 0
            for dt in range(8):
                for q in range(2):
                    lastm = max(k for k, x in enumerate(sc.mf) if x.split()[1] == V(O(dt, q), 4) + ",")
                    g = sc.put(f"ds_write_b128 {V(vX)}, {V(O(dt, q), 4)} offset:{(q*8+dt)*1024}", max(g, lastm + 6, 6)) + 3
            lastl = max(k for k, x in enumerate(sc.mf) if x.split()[1].startswith("a["))
            gl = sc.seq([f"v_accvgpr_read_b32 {V(28+q)}, {A(Lr(q))}" for q in range(4)], lastl + 6)
            sc.put(f"ds_write_b128 v19, v[28:31]", max(gl + 1, gb + 1))
            if side: side(sc, st, 0)
        if qk:
            sc.raw(f"s_add_u32 {S(sN)}, {S(sN)}, 1", n - 2, "pre")
            if exit_lab: sc.raw(f"s_cmp_eq_u32 {S(sN)}, {S(sBLK)}", n - 1, "pre"); sc.raw(f"s_cbranch_scc1 {exit_lab}", 999)
        out = sc.emit()
        if drop and qk and pv == "full":
            out = [i for i in out if not (("dma" in drop and i.kind == "vmem") or ("bar" in drop and i.op == "s_barrier") or ("ds" in drop and i.kind == "ds")
                                          or ("exp" in drop and i.op == "v_exp_f32") or ("cvt" in drop and i.op.startswith("v_cvt")) or ("vmw" in drop and i.kind == "wait"))]
        return out
    reent = State(vm=[(set(), "v", False)] + [(set(), "cx", False)] * NCX)
    b.label(name + "_blk", b.flush() + [reent])
    b(f"s_mov_b32 {S(sSafe)}, 0")
    ST("qrd")
    b.label(name + "_retry", b.flush() + [reent])
    b(f"""
    s_mov_b32 {S(sN)}, 0
    s_mov_b32 {S(sUb)}, {S(sR0)}
    s_cmp_eq_u32 {S(sR0)}, 0
    s_cselect_b32 {S(sKu)}, 1, 0
    s_cmp_ge_u32 {S(sWV)}, 2
    s_cbranch_scc1 {name}_d2
    """)
    pre = b.flush()
    gen0 = {}
    def diag_tail(kg):
        ST("diag")
        b(f"s_or_b32 {S(sT2)}, {S(sPass)}, {S(sSafe)}"); b(f"s_cmp_lg_u32 {S(sT2)}, 0"); b(f"s_cbranch_scc1 {name}_g{kg}")
        gen0[kg] = b.flush()
        spin(f"{name}_pk{kg}", 26, poll_kv.replace(f"dword {V(vPk)},", "dword v26,"), 32)
        ST("dtail")
        b(iteration(0, True, kg, False, None, None, True))
    b(qk_diag(0)); diag_tail(0); b(f"s_branch {name}_it1"); f0a = b.flush()
    b.label(name + "_d2", pre)
    b(qk_diag(1)); diag_tail(1); f0b = b.flush()
    gtext = {}; spv = {}; skip = []
    for kg in range(2):
        h1, spv[kg] = seg(pf_code(f"g{kg}", 21, 22) + [f"s_cmp_eq_u32 {S(sBLK)}, 0", f"s_cbranch_scc1 {name}_pvd{kg}"], gen0[kg])
        h2, ex_ = seg(iteration(0, True, kg, False, name + "_pv1") + toI([f"s_branch {name}_odd"]), spv[kg])
        gtext[kg] = h1 + h2; skip += ex_
    spv0, spv1 = spv[0], spv[1]; it0a, it0b = skip, []
    b.label(name + "_it1", f0a + f0b)
    ST("it0")
    def side_stash(sc, st, gv):
        for k in range(16): assert sc.putw(rdQ(192, k >> 2, k & 3), 0, st[12] - 12) < st[12] - 8
    sWO = sWU; sWo, sHc = 54, 55
    vWo = 23
    sCx, sOb = 81, 82
    def side_osetup(sc, part, lo=0):
        o = []
        for i in range(5):
            o.append(f"""
            v_add_u32 {V(vWo+i)}, {64*i}, v0
            v_mul_u32_u24 v19, 3277, {V(vWo+i)}
            v_lshrrev_b32 v19, 16, v19
            v_mul_u32_u24 v4, 20, v19
            v_sub_u32 {V(vWo+i)}, {V(vWo+i)}, v4
            v_bfe_u32 v4, v19, 2, 1
            v_lshlrev_b32 v4, 1, v4
            v_xor_b32 {V(vWo+i)}, {V(vWo+i)}, v4
            v_mul_u32_u24 v19, 1280, v19
            v_lshl_add_u32 {V(vWo+i)}, {V(vWo+i)}, 4, v19
            """)
        if part < 5: sc.seq(o[part:part+1], lo); return
        sc.seq([f"""
        s_and_b32 {S(sT3)}, {S(sHD)}, 3
        s_mul_i32 {S(sWo)}, {S(sT3)}, 320
        s_mul_i32 {S(sT3)}, {S(sWV)}, {32*1280}
        s_add_u32 {S(sWo)}, {S(sWo)}, {S(sT3)}
        s_lshr_b32 {S(sT3)}, {S(sHD)}, 2
        s_mul_i32 {S(sT3)}, {S(sT3)}, {512*1280}
        s_add_u32 {S(sWo)}, {S(sWo)}, {S(sT3)}
        s_and_b32 {S(sT3)}, {S(sWV)}, 1
        s_lshl_b32 {S(sT3)}, {S(sT3)}, 14
        s_add_u32 s40, {S(sT3)}, 131072
        s_add_u32 s41, {S(sT3)}, 65536
        s_add_u32 s42, {S(sT3)}, 98304
        s_cmp_ge_u32 {S(sWV)}, 2
        s_cselect_b32 {S(sXa)}, s41, s40
        s_cmp_ge_u32 {S(sWV)}, 2
        s_cselect_b32 {S(sXa+1)}, s42, s40
        s_cmp_ge_u32 {S(sWV)}, 2
        s_cselect_b32 {S(sXa+2)}, s40, s41
        s_cmp_ge_u32 {S(sWV)}, 2
        s_cselect_b32 {S(sXa+3)}, s40, s42
        s_mul_i32 s71, {S(sWV)}, 10240
        s_lshr_b32 {S(sCx)}, {S(sHD)}, 2
        s_lshl_b32 {S(sCx)}, {S(sCx)}, 3
        s_add_u32 {S(sCx)}, {S(sCx)}, {S(sJ)}
        s_lshl_b32 {S(sCx)}, {S(sCx)}, 2
        s_add_u32 {S(sOb)}, {S(sCx)}, {S(sWV)}
        s_lshl_b32 {S(sCx)}, {S(sOb)}, 2
        s_and_b32 {S(sT3)}, {S(sHD)}, 3
        s_add_u32 {S(sCx)}, {S(sCx)}, {S(sT3)}
        s_lshl_b32 {S(sCx)}, {S(sCx)}, 14
        s_add_u32 {S(sCx)}, {S(sCx)}, {WS_CTX}
        """], 50)
    sJs, sJd, sJp, sJb, sJi = 16, 17, 18, 19, 8
    vJr, vJc, vJo, vJa = 17, 18, 19, 12
    JR = [A(180, 4), A(184, 4), A(188, 4), V(28, 4)]
    def half(r, hf): return (A if r[0] == "a" else V)(rno(r) + 2*hf, 2)
    def j_setup():
        return toI([f"""
        v_lshrrev_b32 {V(vJr)}, 3, v0
        v_bfe_u32 {V(vJc)}, v0, 4, 2
        v_lshlrev_b32 {V(vJc)}, 1, {V(vJc)}
        v_and_b32 v4, 7, v0
        v_xor_b32 {V(vJc)}, {V(vJc)}, v4
        v_lshlrev_b32 {V(vJc)}, 4, {V(vJc)}
        s_lshl_b32 {S(sJi)}, s2, 2
        s_add_u32 {S(sJi)}, {S(sJi)}, {S(sWV)}
        s_add_u32 {S(sJb)}, {S(sLw)}, 131072
        """])
    def j_dma(srd, buf):
        o = [f"v_mad_u32_u24 {V(vJo)}, {V(vJr)}, {S(sJp)}, {V(vJc)}", f"s_lshl_b32 {S(sJp)}, {S(sJp)}, 3"]
        for i in range(4):
            if i: o.append(f"s_add_u32 {S(sJs)}, {S(sJs)}, {S(sJp)}")
            o += [f"s_add_u32 m0, {S(sJb)}, {buf*4096 + i*1024}", I(f"buffer_load_dwordx4 {V(vJo)}, {S(srd,4)}, {S(sJs)} offen{nt('j')} lds", "j")]
        return toI(o)
    def t_addr():
        return toI([f"""
        s_sub_u32 {S(sT3)}, {S(sJi)}, 540
        s_cmp_lt_u32 {S(sJi)}, 540
        s_cselect_b32 {S(sT3)}, {S(sJi)}, {S(sT3)}
        s_cmp_lt_u32 {S(sJi)}, 540
        s_cselect_b32 {S(RT)}, {S(RT)}, {S(RO)}
        s_cmp_lt_u32 {S(sJi)}, 540
        s_cselect_b32 {S(RT+1)}, {S(RT+1)}, {S(RO+1)}
        s_cmp_lt_u32 {S(sJi)}, 540
        s_cselect_b32 {S(RT+2)}, {S(RT+2)}, {S(RO+2)}
        s_mov_b32 s9, {hex((2**32 + 9)//10)}
        s_cmp_lt_u32 {S(sJi)}, 540
        s_cselect_b32 s9, {hex((2**32 + 26)//27)}, s9
        s_cmp_lt_u32 {S(sJi)}, 540
        s_cselect_b32 s10, 27, 10
        s_mov_b32 {S(sJd)}, {WS_WOUT}
        s_cmp_lt_u32 {S(sJi)}, 540
        s_cselect_b32 {S(sJd)}, {WS_WIN}, {S(sJd)}
        s_lshl_b32 {S(sJp)}, s10, 7
        s_mul_hi_u32 s9, {S(sT3)}, s9
        s_mul_i32 s10, s9, s10
        s_sub_u32 s10, {S(sT3)}, s10
        s_lshl_b32 {S(sT3)}, {S(sT3)}, 12
        s_add_u32 {S(sJd)}, {S(sJd)}, {S(sT3)}
        s_mul_i32 {S(sJs)}, s9, {S(sJp)}
        s_lshl_b32 {S(sJs)}, {S(sJs)}, 5
        s_lshl_b32 s10, s10, 7
        s_add_u32 {S(sJs)}, {S(sJs)}, s10
        s_cmp_lt_u32 {S(sJi)}, 810
        s_cselect_b32 {S(sJd)}, {S(sJd)}, {hex(OOB)}
        """])
    def t_out():
        o = [f"""
        v_lshrrev_b32 v4, 2, v0
        v_bfe_u32 {V(vJa)}, v0, 3, 2
        v_lshlrev_b32 {V(vJa)}, 5, {V(vJa)}
        v_lshl_add_u32 {V(vJa)}, v4, 7, {V(vJa)}
        v_and_b32 v4, 3, v0
        v_lshl_add_u32 {V(vJa)}, v4, 3, {V(vJa)}
        v_add_u32 {V(vJa)}, {S(sJb)}, {V(vJa)}
        v_xor_b32 {V(vJa+1)}, 32, {V(vJa)}
        v_xor_b32 {V(vJa+2)}, 64, {V(vJa)}
        v_xor_b32 {V(vJa+3)}, 96, {V(vJa)}
        """]
        rd = [f"ds_read_b64_tr_b16 {half(JR[n], hf)}, {V(vJa+n)} offset:{hf*2048}" for n in range(4) for hf in range(2)]
        st = [f"buffer_store_dwordx4 {JR[n]}, {V(vL)}, {sWS}, {S(sJd)} offen offset:{n*1024}{SC}" for n in range(4)]
        return toI(o), toI(rd), toI(st)
    def s_addr(k):
        return toI([f"""
        s_lshr_b32 s9, {S(sJi)}, 5
        s_add_u32 s9, s9, {32*k}
        s_and_b32 s10, {S(sJi)}, 31
        s_lshl_b32 {S(sJs)}, s9, 17
        s_lshl_b32 s10, s10, 7
        s_add_u32 {S(sJs)}, {S(sJs)}, s10
        s_mov_b32 {S(sJp)}, 4096
        """])
    def s_out(k, buf):
        o = [f"""
        s_lshr_b32 {S(sJd)}, {S(sJi)}, 6
        s_add_u32 {S(sJd)}, {S(sJd)}, {16*k}
        s_lshl_b32 {S(sJd)}, {S(sJd)}, 18
        s_and_b32 s11, {S(sJi)}, 31
        s_lshl_b32 s11, s11, 13
        s_add_u32 {S(sJd)}, {S(sJd)}, s11
        s_bfe_u32 s11, {S(sJi)}, 0x10005
        s_lshl_b32 s11, s11, 11
        s_add_u32 {S(sJd)}, {S(sJd)}, s11
        s_add_u32 {S(sJd)}, {S(sJd)}, {WS_WSP}
        s_add_u32 s11, {S(sJd)}, 4096
        """]
        if k == 0: o.append(f"""
        v_bfe_u32 {V(vJa)}, v0, 1, 2
        v_lshlrev_b32 {V(vJa)}, 5, {V(vJa)}
        v_and_b32 v4, 15, v0
        v_lshl_add_u32 {V(vJa)}, v4, 7, {V(vJa)}
        v_lshrrev_b32 v4, 4, v0
        v_lshl_add_u32 {V(vJa)}, v4, 3, {V(vJa)}
        v_add_u32 {V(vJa)}, {S(sJb)}, {V(vJa)}
        v_xor_b32 {V(vJa+1)}, 32, {V(vJa)}
        v_xor_b32 {V(vJa+2)}, 64, {V(vJa)}
        v_xor_b32 {V(vJa+3)}, 96, {V(vJa)}
        """)
        rd = [f"ds_read_b64 {half(JR[2*ks+mt], hf)}, {V(vJa+2*ks+hf)} offset:{buf*4096 + mt*2048}" for ks in range(2) for mt in range(2) for hf in range(2)]
        st = [f"buffer_store_dwordx4 {JR[2*ks+mt]}, {V(vL)}, {sWS}, {'s11' if ks else S(sJd)} offen offset:{mt*1024}{SC}" for ks in range(2) for mt in range(2)]
        return toI(o), toI(rd), toI(st)
    def wseq(sc, ins, lo, step=1):
        ins = toI(ins); sc.seqs.append(ins); g = lo; prev = None
        for i in ins:
            if i.kind in ("salu", "pseudo"):
                if prev is not None and prev.op.startswith("s_cmp"): sc.put(i, g, force=True)
                else: g = sc.put(i, g + (prev is not None and prev.kind != "salu"))
            else: g = sc.putw(i, g + 1, g + 3) + (step if i.kind == "vmem" else 0)
            prev = i
        return g
    def freeg(sc, lo):
        return next(g for g in range(lo, len(sc.mf)) if sc.free[g] == 2)
    def job_out(sc, st, gv, parts):
        _, rd, sto = parts
        for x in sto: x.tag = "js"
        g = freeg(sc, JR0); sc.raw("@waitvm j", g, "pre")
        for x in rd[:4] + sto[:1] + rd[4:6] + sto[1:2] + rd[6:] + sto[2:]:
            if x.kind == "vmem": g = max(g, JSP[sto.index(x)])
            g = sc.put(x, freeg(sc, g)) + 1
        assert g < st[12] - 4
    def side1(sc, st, gv):
        side_stash(sc, st, gv); sc.seq(j_setup() + t_addr(), 20)
    def st_init():
        return toI([f"""
        v_and_b32 v21, 15, v0
        v_lshlrev_b32 v21, 3, v21
        v_bfe_u32 v22, v0, 4, 1
        v_mul_u32_u24 v22, {WS_ST2 - WS_ST1}, v22
        v_add_u32 v21, v21, v22
        v_mov_b32 v14, -1.0
        v_mov_b32 v15, -1.0
        s_lshl_b32 s9, {S(sJi)}, 7
        s_add_u32 s9, s9, {WS_ST1}
        buffer_store_dwordx2 v[14:15], v21, {sWS}, s9 offen sc1
        """])
    def side2(sc, st, gv):
        g = sc.seq(["@waitvm kv0", f"s_lshl_b32 s9, {S(sHD)}, 7", f"s_add_u32 s9, s9, {WS_FLG + FL_K0*128}", f"buffer_atomic_add {V(vOne)}, {V(vFlagW)}, {sWS}, s9 offen"], 8)
        g = sc.seq(j_dma(RT, 0), max(g, gv) + 1, 4); assert g < st[12] - 8
        g = sc.seq(st_init(), g + 1)
        sc.seq(t_out()[0], g + 1)
    poll_t = f"buffer_load_dword v22, v21, {sWS}, 0 offen sc1"
    def side3(sc, st, gv):
        job_out(sc, st, gv, t_out()); sc.seq(s_addr(0), 40); side_osetup(sc, 5); side_osetup(sc, 0); side_osetup(sc, 1, 70)
    def side4(sc, st, gv):
        g = sc.seq(["s_and_b32 s9, s2, 31", "s_lshl_b32 s9, s9, 7", f"s_add_u32 s9, s9, {WS_FLG + FL_T*128}", "@waitvm js",
                    f"buffer_atomic_add {V(vOne)}, {V(vFlagW)}, {sWS}, s9 offen"], gv - 2)
        g = sc.seq(j_dma(RS, 0), g + 1, 4); assert g < st[12] - 8
        sc.seq(s_out(0, 0)[0], 20)
    def side5(sc, st, gv):
        job_out(sc, st, gv, s_out(0, 0)); sc.seq(s_addr(1), 40)
        assert sc.seq([f"v_add_u32 {V(vPa)}, {(FL_K0 - FL_KV)*128}, {V(vPa)}", poll_kv], 56) < st[12]
        side_osetup(sc, 2)
    def side6(sc, st, gv):
        g = sc.seq(["v_and_b32 v21, 31, v0", "v_lshlrev_b32 v21, 7, v21", f"v_add_u32 v21, {WS_FLG + FL_T*128}, v21", poll_t], 20)
        g = sc.seq(j_dma(RS, 0), max(g, gv) + 1, 4); assert g < st[12] - 8
        sc.seq(s_out(1, 0)[0], 4)
        if CPF:
            pc = pf_code("s", 4, 28); sc.raw(pc[:2], g + 1); sc.seq(pc[2:], g + 2)
    def side7(sc, st, gv): job_out(sc, st, gv, s_out(1, 0)); side_osetup(sc, 3); side_osetup(sc, 4, 70)
    sides = [side1, side2, side3, side4, side5, side6, side7]
    if fine == "side": T.stamp(b, "it0")
    for k, sd in enumerate(sides):
        it_ = iteration((k + 1) & 1, True, "full", True, name + "_pv0" if k == 6 else None, sd)
        if "sld" in drop2: it_ = [i for i in it_ if not (i.kind == "vmem" and i.tag == "j")]
        if "sst" in drop2: it_ = [i for i in it_ if not (i.kind == "vmem" and "store" in i.op)]
        b(it_)
        if k == 4: spin(name + "_p0", vPk, poll_kv, 32)
        if k == 5: spin(name + "_pt", 22, poll_t, 32)
        if k == 6: ex7 = b.flush()
        if fine == "side": T.stamp(b, f"it{k+1}")
    if fine == "att0": ST("it2")
    ins, outs = b.chain_loop([(name + "_even", iteration(0, True, "full", True, name + "_pv1")),
                              (name + "_odd", iteration(1, True, "full", True, name + "_pv0")[:-1] + toI([f"s_cbranch_scc0 {name}_even", f"s_branch {name}_pv0"]))], extra={1: skip})
    outs = outs[::-1]
    for kg in range(2): b.label(f"{name}_g{kg}"); b.out += gtext[kg]
    TMP, CF = 64, 32
    CB = [0, 40960, 81920, 122880]
    def dmaO(c):
        o = [f"s_add_u32 {S(sHc)}, {S(sHD)}, {c}", f"s_and_b32 {S(sHc)}, {S(sHc)}, 3", f"s_mul_i32 {S(sHc)}, {S(sHc)}, {128*1280}", f"s_add_u32 {S(sHc)}, {S(sHc)}, {S(sWo)}"]
        for k in range(10):
            if k == 5: o.append(f"s_add_u32 {S(sHc)}, {S(sHc)}, {16*1280}")
            o += [f"s_add_u32 m0, s71, {CB[c] + k*1024}", I(f"buffer_load_dwordx4 {V(vWo + k % 5)}, {sWO}, {S(sHc)} offen{nt('O')} lds", f"o{c}")]
        return toI(o)
    def Xf(c, ks, m):
        if c == 0: return A(192 + 8*ks + 4*m, 4) if m < 2 else V(CF + 8*ks + 4*(m-2), 4)
        return A(64*(c-1) + 16*ks + 4*m, 4)
    sCc = 58
    def ldX(c, passes):
        o = [f"s_add_u32 {S(sCc)}, {S(sHD)}, {c}", f"s_and_b32 {S(sCc)}, {S(sCc)}, 3", f"s_lshl_b32 {S(sT2)}, {S(sOb)}, 2", f"s_add_u32 {S(sCc)}, {S(sCc)}, {S(sT2)}",
             f"s_lshl_b32 {S(sCc)}, {S(sCc)}, 14", f"s_add_u32 {S(sCc)}, {S(sCc)}, {WS_CTX}"]
        for p in passes:
            for ks in range(4):
                if ks % 2 == 0: o.append(f"s_add_u32 {S(sT2)}, {S(sCc)}, {p*8192 + ks*2048}")
                for a in range(2): o.append(f"buffer_load_dwordx4 {Xf(c, ks, 2*p + a)}, {V(vL)}, {sWS}, {S(sT2)} offen offset:{(ks & 1)*2048 + a*1024}{CXL}")
        return toI(o)
    def own_long(tag):
        return toI(["v_lshlrev_b32 v21, 7, v0", f"buffer_load_dword a108, v21, {sWS}, {S(sCx)} offen{CXL}"])
    sFx = 79
    def side_o0(sc, st, gv):
        arr = toI([f"s_lshl_b32 {S(sFx)}, {S(sOb)}, 8", f"s_add_u32 {S(sFx)}, {S(sFx)}, {WS_FLG + FL_CX*128}",
                   f"s_cmp_eq_u32 {S(sSafe)}, 0", f"s_cselect_b32 {S(sKs)}, {S(sFx)}, {hex(OOB)}", f"v_mov_b32 {V(vPa)}, {S(sFx)}", "@waitvm cx",
                   f"buffer_atomic_add {V(vOne)}, {V(vFlagW)}, {sWS}, {S(sKs)} offen offset:128",
                   f"s_and_b32 {S(sKs)}, s2, 31", f"s_lshl_b32 {S(sKs)}, {S(sKs)}, 7", f"s_add_u32 {S(sKs)}, {S(sKs)}, {WS_FLG + FL_R*128}",
                   f"s_cmp_eq_u32 {S(sSafe)}, 0", f"s_cselect_b32 {S(sKs)}, {S(sKs)}, {hex(OOB)}",
                   f"buffer_atomic_add {V(vOne)}, {V(vFlagW)}, {sWS}, {S(sKs)} offen"])
        paced(sc, vgroups(arr + dmaO(0) + own_long(0)), 0, len(sc.mf) - 4)
    def side_vec(sc, st, gv):
        o = [f"""
        v_and_b32 v21, 15, v0
        v_lshrrev_b32 v22, 4, v0
        v_lshlrev_b32 v22, 4, v22
        v_lshl_add_u32 v22, v21, 6, v22
        v_cmp_gt_u32 vcc, 2, v21
        v_mov_b32 v21, {hex(OOB)}
        v_cndmask_b32 v22, v21, v22, vcc
        s_mul_i32 s9, {S(sWV)}, 640
        s_add_u32 s9, s9, {WS_MODB}
        s_mul_i32 s10, {S(sWV)}, {5*108*1024}
        s_lshl_b32 s11, s2, 10
        s_add_u32 s10, s10, s11
        s_add_u32 s10, s10, {WS_WIN}
        s_cmp_lt_u32 s2, 108
        s_cselect_b32 s10, s10, {hex(OOB)}
        """]
        for k in range(5):
            if k: o.append(f"s_add_u32 s10, s10, {108*1024}")
            o += [f"buffer_load_dwordx4 {A(64+8*k,4)}, {V(vL)}, {sWS}, s10 offen sc1", f"buffer_load_dwordx4 {A(68+8*k,4)}, v22, {sWS}, s9 offen offset:{128*k} sc1"]
        o = toI(o)
        sc.seq(o[7:15], 0); g = sc.seq(o[:7], 4)
        g = paced(sc, vgroups(o[15:]), max(g + 1, 9), 46)
        g = sc.seq(masks(False, 48), 12)
        pw = toI([f"""
        v_lshlrev_b32 v50, 7, v0
        v_cmp_gt_u32 vcc, 40, v0
        v_cndmask_b32 v50, v21, v50, vcc
        s_lshr_b32 s11, s2, 3
        s_lshl_b32 s11, s11, 2
        s_add_u32 s11, s11, {S(sWV)}
        s_lshr_b32 s8, {S(sHD)}, 2
        s_lshl_b32 s8, s8, 7
        s_add_u32 s11, s11, s8
        s_mul_i32 s11, s11, 5120
        buffer_load_dword v51, v50, {sWO}, s11 offen{nt('o')}
        v_lshlrev_b32 v22, 2, v0
        v_cmp_gt_u32 vcc, 16, v0
        v_cndmask_b32 v22, v21, v22, vcc
        s_lshl_b32 s9, s2, 6
        s_add_u32 s9, s9, {WS_VEC}
        s_cmp_lt_u32 s2, 108
        s_cselect_b32 s9, s9, {hex(OOB)}
        s_cmp_eq_u32 {S(sWV)}, 0
        s_cselect_b32 s9, s9, {hex(OOB)}
        s_add_u32 s10, s9, 0x2000
        """])
        pw[10] = I(pw[10].t.replace("v51,", "a108,"))
        sc.seq(pw, max(g + 1, 47))
        sc.raw([MF(A(104,4), A(68+8*k,4), A(64+8*k,4), A(104,4) if k else "0") for k in range(5)], len(sc.mf) - 1, "pre")
        sc.raw(f"ds_write_b128 v19, {A(104,4)} offset:4096", 999)
    fin0 = []; fin1 = []
    for par, preds in ((0, outs[0] + ex7), (1, outs[1] + it0a + it0b)):
        b.label(f"{name}_pv{par}", preds); ST("loop")
        b(f"s_cmp_eq_u32 {S(sPass)}, 1"); b(f"s_cbranch_scc1 {name}_pw{par}"); pw = b.flush()
        b(iteration(par, False, "full", True, None, side_vec)); b(f"s_branch {name}_fin0"); fin0 += b.flush()
        b.label(f"{name}_pw{par}", pw); b(iteration(par, False, "full", True, None, side_o0)); b(f"s_branch {name}_fin1"); fin1 += b.flush()
    b.label(name + "_pvd0", spv0); b(iteration(0, False, 0, False, None, side_o0)); b(f"s_branch {name}_fin1"); fin1 += b.flush()
    b.label(name + "_pvd1", spv1); b(iteration(0, False, 1, False, None, side_o0)); b(f"s_branch {name}_fin1"); fin1 += b.flush()
    def merge_reads(hop):
        b("s_waitcnt lgkmcnt(0)"); b("s_barrier")
        for w in range(4): b(f"ds_read_b128 {V(48+4*w, 4)}, {V(vLx)} offset:{w*1024}")
        for i in range(4):
            for a in range(2):
                for dt in (2*i, 2*i+1): b(f"ds_read_b128 {V(TMP + 4*(a*8+dt), 4)}, {V(vXp)} offset:{(a*8+dt)*1024}")
                if HOP and (i, a) == (2, 0): b(hop)
    def check():
        for r in range(8): b(f"v_add_f32 {V(48+r)}, {V(48+r)}, {V(56+(r ^ 2))}")
        b(f"""
        v_min3_f32 v56, v48, v49, v50
        v_min3_f32 v56, v56, v51, v52
        v_min3_f32 v56, v56, v53, v54
        v_min_f32 v56, v56, v55
        v_pk_add_f32 v[58:59], v[48:49], v[50:51]
        v_pk_add_f32 v[60:61], v[52:53], v[54:55]
        v_pk_add_f32 v[58:59], v[58:59], v[60:61]
        s_mov_b32 {S(sMK+2)}, {FH(L_HI)}
        v_add_f32 v57, v58, v59
        v_cmp_nle_f32 vcc, {FH(L_LO)}, v56
        v_cmp_nge_f32 {S(sMK,2)}, {S(sMK+2)}, v57
        s_or_b64 vcc, vcc, {S(sMK,2)}
        s_cselect_b32 {S(sT2)}, 1, {1 if force_fallback else 0}
        s_andn2_b32 {S(sT2)}, {S(sT2)}, {S(sSafe)}
        {"s_nop 0" if drop else f"s_cbranch_scc1 {name}_slow"}
        s_bitcmp1_b32 {S(sWV)}, 0
        s_cselect_b64 vcc, -1, 0
        s_bitcmp1_b32 {S(sWV)}, 1
        s_cselect_b64 {S(sMK,2)}, -1, 0
        """)
        for r in range(4): b(f"v_cndmask_b32 {V(48+r)}, {V(48+r)}, {V(52+r)}, vcc")
        b(f"""
        v_cndmask_b32 v28, v50, v48, {S(sMK,2)}
        v_cndmask_b32 v30, v51, v49, {S(sMK,2)}
        v_rcp_f32 v28, v28
        v_rcp_f32 v30, v30
        """)
    def normalise(off):
        for i in range(4):
            for a in range(2):
                for dt in (2*i, 2*i+1):
                    o = O(dt, 2 + a); t = TMP + 4*(a*8+dt)
                    for h in (0, 2): b(f"v_pk_add_f32 {V(t+h,2)}, {V(t+h,2)}, {V(o+h,2)}")
                    for h in (0, 2): b(f"v_pk_mul_f32 {V(t+h,2)}, {V(t+h,2)}, {V(28+2*a,2)} op_sel_hi:[1,0]")
                t = TMP + 4*(a*8+2*i); d = CF + 8*i + 4*a if off else t
                for k in range(4): b(f"v_cvt_pk_bf16_f32 {V(d+k)}, {V(t+2*k)}, {V(t+2*k+1)}")
                if (i, a) in ((0, 0), (2, 0)): b(f"s_add_u32 {S(sT3)}, {S(sCx)}, {off + i*2048}")
                b(f"buffer_store_dwordx4 {V(d,4)}, {V(vL)}, {sWS}, {S(sT3)} offen offset:{(i & 1)*2048 + a*1024}{CXS}", "cx")
                if not off:
                    for k in range(4): b(f"v_accvgpr_write_b32 {A(rno(Xf(0, i, a)) + k)}, {V(d+k)}")
    b.label(name + "_fin0", fin0)
    ST("pv")
    merge_reads("@hop d")
    ST("xr"); check()
    for w in range(4): b(f"ds_read_b64 {V(56+2*w,2)}, {V(vLx)} offset:{4096 + w*1024}")
    b(f"""
    s_mov_b32 {S(sPass)}, 1
    s_mov_b32 {S(sBLK)}, {S(sBLK2)}
    s_mov_b32 {S(sR0)}, 0
    s_mov_b32 {S(sA0)}, {hex(OOB)}
    s_mov_b32 {S(sA1)}, {hex(OOB)}
    s_mov_b32 {S(sAl)}, 163840
    @waitvm k
    s_waitcnt lgkmcnt(0)
    s_barrier
    """)
    b([rdK0(0, ds) for ds in range(4)])
    b(f"""
    v_pk_add_f32 v[56:57], v[56:57], v[58:59]
    v_pk_add_f32 v[60:61], v[60:61], v[62:63]
    v_pk_add_f32 v[56:57], v[56:57], v[60:61]
    buffer_store_dword v56, v22, {sWS}, s9 offen sc1
    buffer_store_dword v57, v22, {sWS}, s10 offen sc1
    """)
    for k, gr in enumerate(vgroups(toI(unit_diag(sVs, sVb)) + dmaKV(1, 0, sVs, "v"))):
        b(gr)
        for r in range(8*k, 8*k + 8): b(f"v_accvgpr_mov_b32 {A(r)}, {A(192+r)}")
    normalise(0)
    b(f"s_cmp_eq_u32 {S(sSafe)}, 0"); b(f"s_cbranch_scc1 {name}_nz"); nz = b.flush()
    for r in range(16): b(f"v_mov_b32 {V(NM(0)+r)}, 0")
    b.label(name + "_nz", nz + b.flush())
    if fine is not True: T.stamp(b, "blk1end")
    b("s_waitcnt lgkmcnt(0)"); b(f"s_branch {name}_blk")
    for x in b.flush(): assert [e[1] for e in x.vm][-NCX-1:] == ["v"] + ["cx"] * NCX
    b.label(name + "_fin1", fin1)
    ST("pv")
    poll_l = poll_kv.replace(" offen", " offen offset:128")
    b(poll_l)
    merge_reads(["@hop e", f"{name}_op0:"])
    ST("xr"); check()
    normalise(8192)
    T.stamp(b, "attend")
    vOa = 8
    b(f"""
    v_lshrrev_b32 v28, 2, v0
    v_mul_u32_u24 v28, 320, v28
    v_and_b32 v29, 3, v0
    v_lshl_add_u32 v28, v29, 3, v28
    v_bfe_u32 v29, v0, 4, 1
    v_lshlrev_b32 v29, 5, v29
    v_add_u32 {V(vOa)}, v28, v29
    v_sub_u32 v28, v28, v29
    v_add_u32 {V(vOa+1)}, 32, v28
    @waitvm o0
    s_barrier
    """)
    def oacc(n, m): return 96 + 16*n + 4*m
    def OWf(k, off, n): return V(64 + 16*(k & 3) + off, n) if (k & 3) < 2 else A(192 + 16*(k & 3) + off, n)
    ALL = (0, 1, 2, 3)
    outers = [(0, n, ALL) for n in range(10)]
    outers += ([(1, n, (0, 1)) for n in range(10)] + [(1, n, (2, 3)) for n in range(10)]) if OSP else [(1, n, ALL) for n in range(10)]
    outers += [(2, n, ALL) for n in range(OH)] + [(3, n, ALL) for n in range(OH)] + [(c, n, ALL) for n in range(OH, 10) for c in (2, 3)]
    if OB1:
        outers = [(0, n, ALL) for n in range(10)] + [(c, n, (0, 1)) for c in (1, 2, 3) for n in range(10)]
        outers += [(1, n, (2, 3)) for n in range(10)] + [(c, n, (2, 3)) for n in range(10) for c in (2, 3)]
    def rdO(k):
        c, n, _ = outers[k]
        return [f"ds_read_b64_tr_b16 {OWf(k, 4*ks + 2*hf, 2)}, {V(vOa + 2*c + (n & 1))} offset:{(32*ks + 16*hf)*320 + (n & ~1)*32}"
                for ks in range(4) for hf in range(2)]
    b(rdO(0))
    spin(name + "_pl", vPk, poll_l, 4)
    mf = []; og = []
    for k, (c, n, ms) in enumerate(outers):
        og.append(len(mf))
        for m in ms:
            for ks in range(4):
                d = V(oacc(n, m), 4)
                mf.append(MF(d, OWf(k, 4*ks, 4), Xf(c, ks, m), "0" if (c == 0 and ks == 0) else d))
    og.append(len(mf))
    sc = Sched(mf)
    rstart = {}
    for k in range(1, len(outers)):
        rstart[k] = og[k] - 16
        for r, x in enumerate(rdO(k)): sc.put(x, rstart[k] + r, force=True)
        sc.raw(f"@need {OWf(k, 0, 16)}", og[k] - 1, "pre")
    seq(sc, [f"v_add_u32 {V(vOa + 2*c + e)}, {CB[c]}, {V(vOa + e)}" for c in (1, 2, 3) for e in (0, 1)], 8)
    firstc = {c: min(k for k, o in enumerate(outers) if o[0] == c) for c in (1, 2, 3)}
    for c in (1, 2, 3): sc.raw([f"@waitvm o{c}", "s_barrier"], rstart[firstc[c]] - 1, "post2")
    def pace2(groups, g0, step):
        g = g0
        for gr in groups:
            for x in gr[:-1]: sc.raw(x, g - 1, "post")
            g = sc.putw(gr[-1], g, g + 1) + step
        return g
    if OPF:
        pf = toI([f"""
        s_lshr_b32 s6, s2, 3
        s_lshl_b32 s6, s6, 2
        s_add_u32 s6, s6, {S(sWV)}
        s_lshl_b32 s6, s6, 6
        v_add_u32 v28, s6, v0
        v_mul_u32_u24 v29, 1171, v28
        v_lshrrev_b32 v29, 18, v29
        v_mul_u32_u24 v30, 224, v29
        v_sub_u32 v28, v28, v30
        v_mul_u32_u24 v30, {108*8}, v29
        v_add_u32 v28, v28, v30
        v_subrev_u32 v30, {20*108*8 + 54*8}, v28
        v_cmp_gt_u32 vcc, 20, v29
        v_cndmask_b32 v28, v30, v28, vcc
        v_add_u32 v28, {54*8}, v28
        v_lshlrev_b32 v28, 7, v28
        s_and_b32 s6, s2, 1
        s_mul_i32 s6, s6, {28*1024}
        s_add_u32 s6, s6, {WS_WIN}
        s_bfe_u32 s7, s2, 0x20001
        s_lshl_b32 s7, s7, 3
        s_lshr_b32 s4, s2, 5
        s_add_u32 s7, s7, s4
        s_lshl_b32 s7, s7, 2
        s_add_u32 s7, s7, {S(sWV)}
        s_mul_i32 s7, s7, {16*1280}
        s_and_b32 s4, s2, 1
        s_lshl_b32 s4, s4, 2
        s_bfe_u32 s5, s2, 0x20003
        s_add_u32 s4, s4, s5
        s_mul_i32 s4, s4, 160
        s_add_u32 s7, s7, s4
        v_bfe_u32 v29, v0, 1, 4
        v_mul_u32_u24 v29, 1280, v29
        v_and_b32 v30, 1, v0
        v_lshl_add_u32 v29, v30, 7, v29
        """])
        seq(sc, pf, 20)
        opf = [toI([f"buffer_load_dword v31, v28, {sWS}, s6 offen sc1"]), toI([f"buffer_load_dword v31, v29, {S(R['dbg'],4)}, s7 offen"])]
    d1 = vgroups(dmaO(1))
    g = pace2(d1[:OE], OA - 4*OE, 4)
    g = pace2([toI(["@waitvm cx", f"buffer_atomic_add {V(vOne)}, {V(vFlagW)}, {sWS}, {S(sFx)} offen"])] + d1[OE:], max(g, OA), 4)
    assert g < og[firstc[1] - 1] - 12, g
    if not OB1:
        x1 = vgroups(ldX(1, (0,)))
        g = pace2(x1[:OX], g, 4)
        gp = sc.put(poll_kv, g, force=True)
        d2 = vgroups(dmaO(2))
        g = pace2(x1[OX:] + d2[:OD], gp + 3, 4)
        OC = max(g, gp + OW)
        sc.raw("@mark pc", OC)
        need2 = 240 if OSP else 160
        g = pace2(vgroups(ldX(1, (1,))), OC + 2, 4 if OC + 40 < need2 else 1); assert g <= need2, g
        g = pace2(d2[OD:], g, 4); assert g < og[firstc[2] - 1] - 8, g
        g = pace2(vgroups(ldX(2, (0, 1))), g, OS); assert g <= og[firstc[2]], g
        g = pace2(vgroups(dmaO(3)), g, OS); assert g < og[firstc[3] - 1] - 4, g
        g = pace2(vgroups(ldX(3, (0, 1))), g, OS); assert g <= og[firstc[3]], (g, og[firstc[3]])
    else:
        g = pace2(vgroups(ldX(1, (0,))), g, 4); assert g <= 160
        g = pace2(vgroups(dmaO(2)), g, 4); assert g < 212
        g = pace2(vgroups(ldX(2, (0,))), g, 4); assert g <= 240, g
        gp = sc.put(poll_kv, g, force=True)
        g = pace2(vgroups(dmaO(3)), g + 3, 4); assert g < 292
        g = pace2(vgroups(ldX(3, (0,))), g, 4); assert g <= 320
        OC = g
        sc.raw("@mark pc", OC)
        g = pace2(vgroups(ldX(1, (1,))), OC + 2, 4); assert g <= 400
        g = pace2(vgroups(ldX(2, (1,))) + vgroups(ldX(3, (1,))), g, OS + 2); assert g <= 476, g
    gl = g
    if OPF: pace2(opf, OG, 4)
    sP0, sP1 = 60, 61
    seq(sc, [f"s_lshr_b32 {S(sT3)}, {S(sHD)}, 2", f"s_mul_i32 {S(sP0)}, {S(sT3)}, {32*20*4096}", f"s_add_u32 {S(sP0)}, {S(sP0)}, {WS_PART + 20*4096}",
             f"s_lshr_b32 {S(sT3)}, {S(sWV)}, 1", f"s_mul_i32 {S(sT3)}, {S(sT3)}, {20*4096}", f"s_sub_u32 {S(sP0)}, {S(sP0)}, {S(sT3)}",
             f"s_and_b32 {S(sT3)}, {S(sWV)}, 1", f"s_lshl_b32 {S(sT3)}, {S(sT3)}, 10", f"s_add_u32 {S(sP0)}, {S(sP0)}, {S(sT3)}",
             f"s_and_b32 {S(sT3)}, {S(sHD)}, 3", f"s_mul_i32 {S(sT3)}, {S(sT3)}, {5*4096}", f"s_add_u32 {S(sP0)}, {S(sP0)}, {S(sT3)}",
             f"s_mul_i32 {S(sT3)}, {S(sJ)}, {40*4096}", f"s_add_u32 {S(sP1)}, {S(sP0)}, {S(sT3)}",
             f"s_sub_u32 {S(sP0)}, {S(sP0)}, {S(sT3)}", f"s_add_u32 {S(sP0)}, {S(sP0)}, {15*40*4096}"], 10)
    def done(n, m):
        k = max(k for k, o in enumerate(outers) if o[1] == n and m in o[2]); return og[k] + 4*outers[k][2].index(m)
    g = 0
    order = sorted([(p, m) for p in range(5) for m in range(4)], key=lambda x: done(2*x[0] + 1, x[1]))
    for p, m in order:
        if True:
            r0, r1 = oacc(2*p, m), oacc(2*p + 1, m)
            cv = lambda d, x: f"v_cvt_pk_bf16_f32 {V(d)}, {V(x)}, {V(x+1)}"
            seq(sc, [cv(r0, r0), cv(r0+1, r0+2)], done(2*p, m) + 9)
            g = wseq(sc, [cv(r0+2, r1), cv(r0+3, r1+2), f"s_add_u32 {S(sT3)}, {S(sP1 if m >> 1 else sP0)}, {p*4096}",
                         I(f"buffer_store_dwordx4 {V(r0,4)}, {V(vL)}, {sWS}, {S(sT3)} offen offset:{(m & 1)*2048}{PST}", f"pt{m >> 1}")],
                    max(g + (OT if done(2*p + 1, m) < 600 else 0), done(2*p + 1, m) + 9))
            if m < 2: g_long = g
    hk = {"pc": lambda: spin(name + "_pc", vPk, poll_kv, 4)}
    seq(sc, [f"s_lshl_b32 s75, {S(sJ)}, 2", f"s_and_b32 s74, {S(sHD)}, 3", "s_add_u32 s75, s75, s74", "s_lshl_b32 s75, s75, 2", f"s_add_u32 s75, s75, {S(sWV)}",
             "s_lshl_b32 s75, s75, 8", f"s_add_u32 s75, s75, {WS_FLG + FL_P*128}", f"s_lshr_b32 s74, {S(sHD)}, 2", "s_lshl_b32 s74, 1, s74", "v_mov_b32 v31, s74"], 40)
    gr = seq(sc, [f"v_and_b32 {V(vPa)}, 31, v0", f"v_lshlrev_b32 {V(vPa)}, 7, {V(vPa)}", f"v_add_u32 {V(vPa)}, {WS_FLG + FL_R*128}, {V(vPa)}"], OC + 4)
    gr = sc.put(poll_kv, gr + 1, force=True)
    sc.raw("@mark pr", gr + 50, "post2"); hk["pr"] = lambda: spin(name + "_pr", vPk, poll_kv, 32)
    pace2([toI(["@waitvm pt0", f"buffer_atomic_add v31, {V(vFlagW)}, {sWS}, s75 offen offset:128"])], g_long + OQ, 1)
    if RANK:
        seq(sc, ["s_lshr_b32 s6, s2, 3", f"s_or_b32 s6, s6, {S(sWV)}", "s_cmp_eq_u32 s6, 0", f"s_cselect_b32 s6, 0, {hex(OOB)}", "s_and_b32 s7, s2, 7", "s_lshl_b32 s7, s7, 7",
                 f"s_add_u32 s7, s7, {WS_FLG + FL_RG*128}", "v_mov_b32 v18, s7", "s_add_u32 s7, s7, s6", f"s_add_u32 s6, s6, {WS_FLG + FL_RK*128}", "v_mov_b32 v17, 1",
                 f"buffer_atomic_add v17, {V(vFlagW)}, {sWS}, s6 offen sc0"], 0)
        pace2([toI(["v_add_u32 v17, 1, v17", f"buffer_store_dword v17, {V(vFlagW)}, {sWS}, s7 offen sc1"])], OA + 30, 1)
        poll_r = f"buffer_load_dword v19, v18, {sWS}, 0 offen sc1"
        sc.put(poll_r, gr + 2, force=True)
        sc.raw("@mark pg", gr + 51, "post2"); hk["pg"] = lambda: (spin(name + "_pg", 19, poll_r, 1), b("v_readfirstlane_b32 s5, v19"), b("s_sub_u32 s5, s5, 1"), b("s_and_b32 s5, s5, 7"))
    pre_t = tail.pre(WS_FLG + FL_P*128, vPa, vL, RANK)
    assert seq(sc, pre_t, max(gl, gr + 53)) < OZ
    sc.raw([f"v_mov_b32 {V(vPk)}, 0", "s_add_u32 s7, s7, s6"], OZ - 1)
    sc.put(f"buffer_atomic_add {V(vPk)}, {V(vFlagW)}, {sWS}, s7 offen sc0", OZ, force=True)
    if fine == "op":
        for gg in (OA + 1, OC - 1, OC + 1, 159, 175, 239, 255, 319, 335, 479):
            sc.raw(f"@mark g{gg}", gg, "post2"); hk[f"g{gg}"] = lambda gg=gg: T.stamp(b, f"g{gg}")
    emit_split(sc, hk)
    T.stamp(b, "end")
    tail(b, T, name, R, vPa, vPk, RANK, HOP)
    if probe:
        T.n = 7; T.names[:] = [f"p{k}" for k in range(7)]
        for k in range(7): b(f"s_mov_b32 {S(84 + k)}, {S(86 + 2*k)}")
    T.dump(b, R["ws"], 2, sWV, 12)
    b.label(name + "_end")
    b("s_endpgm")
    b.emit_cold()
    b.label(name + "_slow", [State()])
    b(f"""
    s_waitcnt vmcnt(0) lgkmcnt(0)
    s_mov_b32 {S(sSafe)}, 1
    s_mov_b32 {S(sN)}, 0
    """)
    for q in range(4): b(f"v_mov_b32 {V(64+q)}, {FH(NEGBIG)}")
    b(f"""
    v_lshrrev_b32 v69, 4, v0
    v_lshlrev_b32 v69, 2, v69
    v_and_b32 v68, 15, v0
    v_sub_u32 v68, v68, v69
    s_and_b32 {S(sT2)}, {S(sWV)}, 1
    s_lshl_b32 {S(sT2)}, {S(sT2)}, 4
    v_add_u32 v68, {S(sT2)}, v68
    s_lshr_b32 {S(sT2)}, {S(sWV)}, 1
    s_lshl_b32 {S(sMK)}, {S(sT2)}, 5
    s_add_u32 {S(sMK+1)}, {S(sMK)}, 16
    s_sub_u32 {S(sMK+2)}, 96, {S(sMK)}
    s_add_u32 {S(sMK+3)}, {S(sMK+2)}, 16
    s_lshl_b32 s4, {S(sT2)}, 6
    s_xor_b32 s5, s4, 32
    s_xor_b32 s6, s4, 64
    s_xor_b32 s7, s4, 96
    v_mov_b32 v70, {FH(NEGBIG)}
    """)
    body = toI(["s_barrier", f"s_lshl_b32 {S(sKs)}, {S(sN)}, 15", f"s_add_u32 {S(sKs)}, {S(sKs)}, {S(sKb)}"]) + dmaKV(0, 0, sKs, "k")
    body += toI(["s_waitcnt vmcnt(0)", "s_barrier",
                 f"s_cmp_eq_u32 {S(sN)}, {S(sBLK)}", f"s_cselect_b32 {S(sT3)}, 0, 4096"])
    for kt in range(4):
        body += toI([rdK(0, kt, ds) for ds in range(4)])
        body += toI([f"v_subrev_u32 v69, {S(sMK+kt)}, v68", f"v_add_u32 v69, {S(sT3)}, v69"])
        for q in range(4):
            for ds in range(4): body += toI([MF(V(Sw(q), 4), Kf(kt, ds), Qf(ds, q), V(Sw(q), 4) if ds else "0")])
        for q in range(4):
            body += toI([f"v_add_u32 v72, {S(4+q)}, v69"])
            for r in range(4):
                body += toI([f"v_cmp_gt_i32 vcc, {r}, v72", f"v_cndmask_b32 v71, {V(Sw(q)+r)}, v70, vcc", f"v_max_f32 {V(64+q)}, {V(64+q)}, v71"])
    body += toI(["s_waitcnt lgkmcnt(0)", f"s_add_u32 {S(sN)}, {S(sN)}, 1", f"s_cmp_le_u32 {S(sN)}, {S(sBLK)}", f"s_cbranch_scc1 {name}_mx"])
    b.chain_loop([(name + "_mx", body)], align=0)
    for q in range(4):
        b(f"""
        v_mov_b32 v68, {V(64+q)}
        v_permlane16_swap_b32 {V(64+q)}, v68
        v_max_f32 {V(64+q)}, {V(64+q)}, v68
        v_mov_b32 v68, {V(64+q)}
        v_permlane32_swap_b32 {V(64+q)}, v68
        v_max_f32 {V(64+q)}, {V(64+q)}, v68
        """)
    b(f"""
    s_lshl_b32 {S(sT3)}, {S(sWV)}, 10
    v_add_u32 v19, {S(sT3)}, {V(vLx)}
    ds_write_b128 v19, v[64:67]
    v_xor_b32 v19, 0x800, v19
    s_waitcnt lgkmcnt(0)
    s_barrier
    ds_read_b128 v[68:71], v19
    """)
    for q in range(4):
        b(f"v_max_f32 {V(64+q)}, {V(64+q)}, {V(68+(q ^ 2))}")
        for r in range(4): b(f"v_sub_f32 {V(NM(q)+r)}, 0, {V(64+q)}")
    b("s_barrier")
    b(unit_r0(sKs, sKb)); b(dmaKV(0, 1, sKs, "k")); b(unit_diag(sVs, sVb)); b(dmaKV(1, 0, sVs, "v"))
    b([rdK0(0, ds) for ds in range(4)])
    b("s_waitcnt vmcnt(0) lgkmcnt(0)"); b(f"s_branch {name}_retry")
    b.flush()
    if probe:
        la, lb, step, skip_ = (list(probe) + [0])[:4]
        ia = next(k for k, i in enumerate(b.out) if i.t == f"{name}_{la}:"); ib = next(k for k, i in enumerate(b.out) if i.t == f"{name}_{lb}:")
        new = []; cnt = 0; n0 = 0
        for k, i in enumerate(b.out):
            if ia < k < ib and i.kind not in ("label", "pseudo"):
                if cnt >= skip_ + n0 * step and n0 < 7 and not i.op.startswith(("s_cselect", "s_cbranch", "s_addc")):
                    new.append(I(f"s_memtime s[{86 + 2*n0}:{87 + 2*n0}]")); n0 += 1
                cnt += 1
            new.append(i)
        b.out = new
    lastw = {}
    for i in b.out:
        if i.kind == "label" and i.t.endswith("_blk:"): break
        if i.tag in ("kv0", "kv1") or i.op == "ds_write_b128":
            data = regs_of(i.t.split(None, 1)[1].split(",")[0 if i.kind == "vmem" else 1].split()[0])
            assert all(lastw[r].op in ("v_cvt_pk_bf16_f32", "v_accvgpr_write_b32") for r in data), i.t
        if i.op == "v_accvgpr_write_b32" and not i.t.endswith("v12"): assert all(lastw[r].op == "v_cvt_pk_bf16_f32" for r in i.r), i.t
        for r in i.w: lastw[r] = i
    text = b.text()
    if HOP:
        import hops
        L = lambda x: f"{name}_{x}"
        text, cnt = hops.apply(text, S(sWV), L("main"), [(e, L(x), L("end")) for e, x in (("a", "main"), ("b", "even"), ("d", "g0"), ("b", "pv0"), ("d", "pw0"), ("b", "pv1"),
                                                                   ("d", "pw1"), ("b", "fin0"), ("d", "fin1"), ("e", "op0"), ("c", "t_ne"))],
                               {L(x) for x in ("d2", "it1", "g0", "g1", "pv0", "pw0", "pv1", "pw1", "fin0", "fin1") + HX})
        if stamps: print(cnt)
    return dict(name=name, text=text, kd=kd(name, 512, 256), launch=f"; @launch {'' if name.startswith('adaLN') and not aslist else f'kernel={name} '}grid=(256,1,1) block=(256,1,1) lds=163840", stamps=T.names)
```

```python
from common import *
from kt import (sWV, sRB, sCS, sT, sT2, sT3, vL16, vG, vR, slices, tile_voffs, xg, row_sums, fin_stats,
                store_act, gelu, GC1, GC2, SPIN_MAX)
from kf2 import vgroups
FA, FD, FC, FB = 0, 128, 256, 512

def fused(**kw):
    def f(b, T, name, RA, vPa0, vPk0, RANK, HOP):
        body(b, T, name + "_t", RA, vPa0, vPk0, RANK, HOP, **kw)
        T.stamp(b, "tend")
    f.pre = pre
    return f

def pre(flp, vPa0, vL, RANK):
    return toI([f"""
    s_and_b32 {S(sCS)}, s5, 1
    s_lshl_b32 {S(sCS)}, {S(sCS)}, 2
    s_bfe_u32 s6, s2, 0x20003
    s_add_u32 {S(sCS)}, {S(sCS)}, s6
    s_lshr_b32 {S(sRB)}, s5, 1
    s_lshl_b32 {S(sRB)}, {S(sRB)}, 3
    s_lshr_b32 s6, s2, 5
    s_add_u32 {S(sRB)}, {S(sRB)}, s6
    """ if RANK else f"""
    s_and_b32 {S(sCS)}, s2, 1
    s_lshl_b32 {S(sCS)}, {S(sCS)}, 2
    s_bfe_u32 s6, s2, 0x20003
    s_add_u32 {S(sCS)}, {S(sCS)}, s6
    s_bfe_u32 {S(sRB)}, s2, 0x20001
    s_lshl_b32 {S(sRB)}, {S(sRB)}, 2
    s_bfe_u32 s6, s2, 0x20005
    s_add_u32 {S(sRB)}, {S(sRB)}, s6
    s_lshr_b32 s6, s2, 7
    s_lshl_b32 s6, s6, 4
    s_add_u32 {S(sRB)}, {S(sRB)}, s6
    """, f"""    s_lshr_b32 s6, {S(sCS)}, 1
    s_mul_i32 s6, s6, 10
    s_and_b32 s7, {S(sCS)}, 1
    s_add_u32 s55, s6, 4
    s_add_u32 s55, s55, s7
    s_mul_i32 s7, s7, 6
    s_add_u32 s54, s6, s7
    s_mul_i32 s59, {S(sRB)}, {20*4096}
    s_lshl_b32 s6, {S(sWV)}, 10
    s_add_u32 s59, s59, s6
    s_add_u32 s58, s59, {WS_PART}
    s_add_u32 s59, s59, {WS_XA}
    s_lshl_b32 s6, s54, 11
    v_add_u32 v28, s6, {V(vL)}
    v_add_u32 v29, 4096, v28
    s_lshr_b32 s6, s55, 1
    s_lshl_b32 s6, s6, 12
    v_add_u32 v30, s6, {V(vL)}
    s_lshr_b32 s6, {S(sRB)}, 1
    s_sub_u32 s7, 15, s6
    s_min_u32 s6, s6, s7
    s_lshl_b32 s6, s6, 2
    s_lshr_b32 s7, {S(sCS)}, 1
    s_add_u32 s6, s6, s7
    s_lshl_b32 s6, s6, 1
    s_and_b32 s7, {S(sRB)}, 1
    s_xor_b32 s7, s7, 1
    s_add_u32 s6, s6, s7
    s_lshl_b32 s6, s6, 1
    s_and_b32 s7, {S(sWV)}, 1
    s_add_u32 s6, s6, s7
    s_lshl_b32 s6, s6, 1
    s_lshr_b32 s7, {S(sRB)}, 4
    s_add_u32 s6, s6, s7
    s_lshl_b32 s6, s6, 7
    s_add_u32 s6, s6, {flp}
    v_mov_b32 {V(vPa0)}, s6
    s_cmp_eq_u32 s7, 0
    s_cselect_b32 s7, {hex(OOB)}, 0
    """])

def body(b, T0, name, RA, vPa0, vPk0, RANK, HOP, few=None, SP=(3, 4, 2, 5), PT=3, AC=30, EV=9, PNT='', WI=(), NE=2, dbg=(), ZS=2, CS=6, CA=False, ZR=0, AT=1, OW=True, OM=''):
    class TT:
        def stamp(self, b, nm):
            if few is None or nm in few: T0.stamp(b, nm)
    T = TT()
    R = {"x": RA["dbg"], "ws": RA["ws"], "bsp": 8, "out": 12}
    sWS = S(R["ws"], 4); sX = S(R["x"], 4)
    sRd, sDone, sNew, sWr, sLr = 65, 66, 67, 70, 71
    PF = lambda x, f: A(12*x + 4*f, 4)
    def ldP(x): return toI([f"s_add_u32 {S(sT)}, s58, {x*32*20*4096}"] + [f"buffer_load_dwordx4 {PF(x, f)}, {V(28+f)}, {sWS}, {S(sT)} offen sc1{PNT}" for f in range(3)])
    b(f"""
    s_load_dwordx2 s[8:9], s[0:1], {ARG['bsp']}
    s_load_dwordx2 s[12:13], s[0:1], {ARG['out']}
    v_readfirstlane_b32 {S(sNew)}, {V(vPk0)}
    v_readfirstlane_b32 s82, {V(vPa0)}
    v_mov_b32 v14, {V(vPk0)}
    s_mov_b32 {S(sDone)}, 0
    s_and_b32 {S(sNew)}, {S(sNew)}, {(1 << NE) - 1}
    s_cmp_lg_u32 {S(sNew)}, {(1 << NE) - 1}
    s_cbranch_scc1 {name}_ne
    """)
    ne = b.flush()
    for x in range(NE): b(ldP(x))
    b(f"s_mov_b32 {S(sDone)}, {(1 << NE) - 1}")
    early = b.flush()
    b.label(name + "_ne", [State()])
    if HOP: b("@hop c")
    b(f"""
    s_mov_b32 s10, {hex(SIZE['bsp'])}
    s_mov_b32 s11, 0x20000
    s_mov_b32 s14, {hex(SIZE['out'])}
    s_mov_b32 s15, 0x20000
    v_lshlrev_b32 {V(vL16)}, 4, v0
    v_lshrrev_b32 {V(vG)}, 4, v0
    v_and_b32 {V(vR)}, 15, v0
    s_waitcnt lgkmcnt(0)
    """)
    sB5, sE5, sB7, sE7 = 54, 55, 56, 57
    sW, sXo, sW1, sW2, sRow, sLb, sSp = 58, 59, 60, 61, 62, 76, 77
    SM, SV, TB = 156 * 1024, 157 * 1024, 140 * 1024
    vFW, vOne, vPa, vPoll, vSm, vOob = 40, 12, 13, 14, 38, 39
    vSt, vSl, vVec, vXm = 36, 37, 41, 170
    slices(b, 7, sB7, sE7)
    at5 = tile_voffs(b, 5, sB5, sE5, 4, 5, 6, 1024, vL16)
    at7 = tile_voffs(b, 7, sB7, sE7, 4, 5, 7, 1024, vL16)
    b(f"""
    s_mul_i32 {S(sW1)}, {S(sWV)}, {108*1024}
    s_lshl_b32 {S(sT)}, {S(sB7)}, 10
    s_add_u32 {S(sW1)}, {S(sW1)}, {S(sT)}
    s_add_u32 {S(sW1)}, {S(sW1)}, {WS_WIN - 1024}
    s_add_u32 {S(sW2)}, {S(sW1)}, {54*1024}
    s_mul_i32 {S(sLb)}, {S(sWV)}, 7168
    s_lshl_b32 {S(sRow)}, {S(sRB)}, 2
    s_add_u32 {S(sRow)}, {S(sRow)}, {S(sWV)}
    v_mov_b32 {V(vOob)}, {hex(OOB)}
    v_mov_b32 {V(vFW)}, {hex(OOB)}
    v_writelane_b32 {V(vFW)}, 0, 0
    v_mov_b32 {V(vOne)}, 1
    v_lshlrev_b32 v44, 3, {V(vG)}
    v_mul_u32_u24 v15, 1280, {V(vR)}
    v_add_u32 v15, v44, v15
    s_mul_i32 s68, {S(sRow)}, {16*1280}
    s_lshl_b32 s69, {S(sE5)}, 5
    s_add_u32 s69, s69, s68
    s_lshl_b32 s70, {S(sB5)}, 5
    s_add_u32 s68, s68, s70
    v_lshlrev_b32 {V(vSl)}, 6, {V(vR)}
    v_cmp_eq_u32 vcc, 0, {V(vG)}
    v_cndmask_b32 {V(vSt)}, {V(vOob)}, {V(vSl)}, vcc
    v_lshl_add_u32 {V(vSl)}, {V(vG)}, 4, {V(vSl)}
    s_lshl_b32 s63, {S(sRow)}, 10
    s_lshl_b32 {S(sT2)}, {S(sCS)}, 3
    s_add_u32 s64, s63, {S(sT2)}
    s_lshl_b32 {S(sSp)}, {S(sRB)}, 18
    s_add_u32 {S(sSp)}, {S(sSp)}, {WS_WSP}
    v_lshlrev_b32 {V(vSm)}, 4, {V(vG)}
    v_add_u32 {V(vSm)}, {SM}, {V(vSm)}
    """)
    for t in range(4):
        b(f"""
        s_lshr_b32 {S(sT)}, {S(sRB)}, {3 if RANK else 2}
        s_add_u32 {S(sT)}, {S(sT)}, {1 + t}
        s_and_b32 {S(sT)}, {S(sT)}, 3
        s_lshl_b32 {S(sT)}, {S(sT)}, 2
        s_add_u32 {S(16+t)}, {S(sT)}, {S(sWV)}
        s_lshl_b32 {S(sT)}, {S(16+t)}, {14 if RANK else 13}
        s_add_u32 {S(20+t)}, {S(sT)}, {S(sSp)}
        """)
    kofs = lambda k: k & 3 if RANK else (32 if (k & 3) < 2 else 0) + (k & 1)
    def small_voff(dst, per, sB, sE, mul, strides):
        b(f"""
        v_mul_u32_u24 v44, {mul}, v0
        v_lshrrev_b32 v44, 10, v44
        v_mul_u32_u24 v45, {4*per}, v44
        v_sub_u32 v45, v0, v45
        v_lshlrev_b32 v46, 4, v45
        s_lshl_b32 {S(sT)}, {S(sB)}, 6
        s_sub_u32 {S(sT2)}, {S(sE)}, {per-1}
        s_lshl_b32 {S(sT2)}, {S(sT2)}, 6
        """)
        if per == 7: b(f"s_cmp_ge_u32 {S(sCS)}, 6"); b(f"s_cselect_b32 {S(sT2)}, {hex(OOB)}, {S(sT2)}")
        b(f"""
        v_mov_b32 v47, {S(sT)}
        v_mov_b32 {V(dst)}, {S(sT2)}
        v_cmp_gt_u32 vcc, {4*(per-1)}, v45
        v_cndmask_b32 v47, {V(dst)}, v47, vcc
        v_add_u32 v46, v46, v47
        v_mov_b32 {V(dst)}, {V(vOob)}
        """)
        for k, st in enumerate(strides):
            b(f"v_add_u32 v47, {st}, v46"); b(f"v_cmp_eq_u32 vcc, {k}, v44"); b(f"v_cndmask_b32 {V(dst)}, {V(dst)}, v47, vcc")
    small_voff(42, 5, sB5, sE5, 52, [WS_MOD + 2*2560, WS_MOD + 4*2560, WS_MOD + 5*2560])
    small_voff(vVec, 7, sB7, sE7, 37, [WS_VEC, WS_VEC + 0x2000])
    SEL = 44
    b(f"""
    v_lshlrev_b32 v56, 2, {V(vG)}
    v_sub_u32 v56, {V(vR)}, v56
    v_mov_b32 v57, 0x3f80
    v_mov_b32 v58, 0x3f800000
    v_cmp_eq_u32 vcc, 0, v56
    v_cndmask_b32 v44, 0, v57, vcc
    v_cmp_eq_u32 vcc, 1, v56
    v_cndmask_b32 v44, v44, v58, vcc
    v_cmp_eq_u32 vcc, 2, v56
    v_cndmask_b32 v45, 0, v57, vcc
    v_cmp_eq_u32 vcc, 3, v56
    v_cndmask_b32 v45, v45, v58, vcc
    v_mov_b32 v46, 0
    v_mov_b32 v47, 0
    v_mov_b32 v48, 0
    v_mov_b32 v49, 0
    v_mov_b32 v50, v44
    v_mov_b32 v51, v45
    s_bitcmp1_b32 {S(sE5)}, 0
    s_cselect_b64 vcc, -1, 0
    """)
    for k in range(4): b(f"v_cndmask_b32 {V(52+k)}, {V(44+k)}, {V(48+k)}, vcc")
    def dmaW(nW, at, soff, goff, sl, loff, tag, valid=None):
        o = [f"s_add_u32 {S(sT2)}, {S(soff)}, {goff}"]
        if valid: o += [valid, f"s_cselect_b32 {S(sT2)}, {S(sT2)}, {hex(OOB)}"]
        for n in range(nW):
            v, ofs = at(n)
            if ofs == 0: o.append(f"s_add_u32 m0, {S(sl)}, {loff + n*1024}")
            o.append(I(f"buffer_load_dwordx4 {v}, {sWS}, {S(sT2)} offen offset:{ofs} sc1 lds", tag))
        return toI(o)
    dW2 = lambda r: dmaW(7, at7, sW2, 4*r*108*1024, sLb, 4*r*7168, "w2")
    dW1 = lambda r: dmaW(7, at7, sW1, 4*r*108*1024, sLb, 4*r*7168, "w1a" if r < ZR else "w1")
    def arrive_ins(tag, line_ins):
        return toI(line_ins + [f"s_lshl_b32 {S(sT)}, {S(sT)}, 7", f"s_add_u32 {S(sT)}, {S(sT)}, {WS_FL2}", f"@waitvm {tag}",
                               f"buffer_atomic_add {V(vOne)}, {V(vFW)}, {sWS}, {S(sT)} offen"])
    poll = f"buffer_load_dword {V(vPoll)}, {V(vPa)}, {sWS}, 0 offen sc1"
    def poll_addr(line_ins, four):
        o = line_ins + [f"s_lshl_b32 {S(sT)}, {S(sT)}, 7", f"s_add_u32 {S(sT)}, {S(sT)}, {WS_FL2}"]
        if four: o += [f"v_and_b32 {V(vPa)}, 3, v0", f"v_lshl_add_u32 {V(vPa)}, {V(vPa)}, 7, {S(sT)}"]
        else: o += [f"v_mov_b32 {V(vPa)}, {S(sT)}"]
        return toI(o)
    def spin(lab, test, again):
        b(test)
        b(f"s_cbranch_vccnz {lab}_w")
        b.outline(f"{lab}_w", [f"s_mov_b32 {S(sT3)}, 0", f"{lab}_spin:", again, f"s_add_u32 {S(sT3)}, {S(sT3)}, 1", f"s_cmp_gt_u32 {S(sT3)}, {SPIN_MAX}",
                               "s_waitcnt vmcnt(0)", f"s_cbranch_scc1 {lab}_ok", test, f"s_cbranch_vccnz {lab}_spin"], f"{lab}_ok")
    def spin_cnt(lab, target): spin(lab, f"v_cmp_gt_u32 vcc, {target}, {V(vPoll)}", ([f"s_sleep {CS}"] if CS else []) + [poll])
    sFl = 82
    apoll = [f"v_mov_b32 {V(vPoll)}, 0", f"buffer_atomic_add {V(vPoll)}, {V(vFW)}, {sWS}, {S(sFl)} offen sc0"]
    def arrive_ret(tag, line):
        return toI([f"s_add_u32 {S(sFl)}, {S(sRow)}, {line}", f"s_lshl_b32 {S(sFl)}, {S(sFl)}, 7", f"s_add_u32 {S(sFl)}, {S(sFl)}, {WS_FL2}", f"v_mov_b32 {V(vPoll)}, 1"]
                   + ([f"@waitvm {tag}"] if tag else []) + [f"buffer_atomic_add {V(vPoll)}, {V(vFW)}, {sWS}, {S(sFl)} offen sc0"])
    def spin_at(lab, first, target):
        b(f"v_readfirstlane_b32 {S(sT)}, {V(vPoll)}"); b(f"s_cmp_ge_u32 {S(sT)}, {first}"); b(f"s_cbranch_scc1 {lab}_ok")
        sts = b.flush()
        b(f"s_mov_b32 {S(sT3)}, 0")
        b.label(f"{lab}_spin")
        b(apoll)
        b(f"s_add_u32 {S(sT3)}, {S(sT3)}, 1")
        b(f"s_cmp_gt_u32 {S(sT3)}, {SPIN_MAX}")
        b("s_waitcnt vmcnt(0)")
        b(f"s_cbranch_scc1 {lab}_ok")
        b(f"v_readfirstlane_b32 {S(sT)}, {V(vPoll)}"); b(f"s_cmp_lt_u32 {S(sT)}, {target}"); b(f"s_cbranch_scc1 {lab}_spin")
        b.label(f"{lab}_ok", sts + b.flush())
    def spin_st(lab, st, ld):
        spin(lab, [f"v_cmp_gt_f32 vcc, 0, {V(st+1)}", f"v_cmp_gt_f32 s[72:73], 0, {V(st+3)}", "s_or_b64 vcc, vcc, s[72:73]"], ld)
    def capture(f):
        n = len(b.cur); f(); o = b.cur[n:]; del b.cur[n:]; return o
    def tagged(f, tag):
        o = capture(f)
        for i in o:
            if i.kind == "vmem": i.tag = tag
        b(o)
    def weave_v(valu, groups, every):
        groups = list(groups)
        for k, i in enumerate(valu):
            b(i)
            if k % every == every - 1 and groups: b(groups.pop(0))
        for g in groups: b(g)
    def emit_marks(sc, hooks):
        cur = []
        for i in sc.emit():
            if i.kind == "pseudo" and i.op == "@mark": b(cur); cur = []; hooks[i.t.split()[1]]()
            else: cur.append(i)
        b(cur)
    def xs(k, m):
        k = k % 14
        return A((240 - 16*k if k < 11 else 32 + 16*(k - 11)) + 4*m, 4)
    def lS(k): return toI([f"s_add_u32 {S(sT)}, {S(20 + (k >> 2))}, {kofs(k)*4096}"] + [f"buffer_load_dwordx4 {xs(k, m)}, {V(vXm+m)}, {sWS}, {S(sT)} offen sc1" for m in range(4)])
    spn = [0]
    def more_sp(n):
        o = []
        for _ in range(n): o += lS(spn[0]); spn[0] += 1
        return o
    XP, GA, AB, X1 = 96, 56, 76, 16
    b(f"""
    s_mov_b32 {S(sRd)}, 0
    s_mov_b32 {S(sWr)}, {S(sW2)}
    s_mov_b32 {S(sLr)}, {S(sLb)}
    s_mov_b32 s3, 0
    s_waitcnt vmcnt({3*NE})
    s_cmp_lg_u32 {S(sDone)}, 0
    s_cbranch_scc1 {name}_ak
    s_waitcnt vmcnt(0)
    """)
    b.label(name + "_ak")
    b(f"""
    buffer_atomic_add v31, {V(vFW)}, {sWS}, s75 offen
    s_barrier
    """)
    T.stamp(b, "arrP")
    b(f"s_mov_b32 m0, {SM}"); b(f"buffer_load_dwordx4 v42, {sWS}, 0 offen sc1 lds")
    for h in range(2):
        b(f"s_mov_b32 m0, {SV + 1024*h}"); b(f"s_mov_b32 {S(sT)}, {h*54*64}"); b(f"buffer_load_dwordx4 {V(vVec)}, {sWS}, {S(sT)} offen sc1 lds")
    for n in range(5): b(f"buffer_load_dwordx2 {V(XP+2*n,2)}, v15, {sX}, {'s68' if n < 4 else 's69'} offen offset:{32*n if n < 4 else 0}")
    for m in range(4):
        b(f"s_add_u32 {S(sT)}, {S(sWV)}, {m}"); b(f"s_and_b32 {S(sT)}, {S(sT)}, 3"); b(f"s_lshl_b32 {S(sT)}, {S(sT)}, 10")
        b(f"v_add_u32 {V(vXm+m)}, {S(sT)}, {V(vL16)}")
    def w2round():
        return dmaW(7, at7, sWr, 0, sLr, 0, "w2") + toI([f"s_add_u32 {S(sWr)}, {S(sWr)}, {4*108*1024}", f"s_add_u32 {S(sLr)}, {S(sLr)}, {4*7168}", f"s_add_u32 {S(sRd)}, {S(sRd)}, 1"])
    b.flush(); b.label(name + "_pl", [State()])
    b(f"""
    v_readfirstlane_b32 {S(sNew)}, {V(vPoll)}
    s_andn2_b32 {S(sNew)}, {S(sNew)}, {S(sDone)}
    s_or_b32 {S(sDone)}, {S(sDone)}, {S(sNew)}
    """)
    for x in range(8):
        b(f"s_bitcmp0_b32 {S(sNew)}, {x}"); b(f"s_cbranch_scc1 {name}_px{x}"); b(ldP(x))
        if x in WI: b(f"s_cmp_ge_u32 {S(sRd)}, 5"); b(f"s_cbranch_scc1 {name}_px{x}"); b(w2round())
        b.flush(); b.label(f"{name}_px{x}", [State()])
    b(f"""
    s_cmp_eq_u32 {S(sDone)}, 0xff
    s_cbranch_scc1 {name}_po
    s_add_u32 s3, s3, 1
    s_cmp_gt_u32 s3, {SPIN_MAX}
    s_cbranch_scc1 {name}_po
    s_cmp_ge_u32 {S(sRd)}, 5
    s_cbranch_scc1 {name}_pn
    """)
    b(w2round()); b.flush(); b.label(name + "_pn", [State()])
    b(apoll); b("s_waitcnt vmcnt(0)"); b(f"s_branch {name}_pl")
    b.flush(); b.label(name + "_po", [State()])
    T.stamp(b, "gotP")
    b(f"s_cmp_ge_u32 {S(sRd)}, 5"); b(f"s_cbranch_scc1 {name}_pw")
    b(w2round()); b("s_waitcnt vmcnt(7)"); b(f"s_branch {name}_pz"); s1 = b.flush()
    b.label(name + "_pw", [State()]); b("s_waitcnt vmcnt(0)")
    b.label(name + "_pz", s1 + b.flush())
    for n in range(5):
        b(f"ds_read_b128 {V(GA+4*n,4)}, {V(vSm)} offset:{n*64}"); b(f"ds_read_b128 {V(AB+4*n,4)}, {V(vSm)} offset:{320 + n*64}")
    sc = Sched([MF(V(X1 + 4*n, 4), V(SEL + (8 if n == 4 else 4*(n & 1)), 4), PF(x, n >> 1), V(X1 + 4*n, 4) if x else "0") for n in range(5) for x in range(8)])
    sc.seq([y for n in range(5) for j in range(2) for y in (f"v_lshlrev_b32 {V(112+4*n+2*j)}, 16, {V(XP+2*n+j)}", f"v_and_b32 {V(113+4*n+2*j)}, 0xffff0000, {V(XP+2*n+j)}")], 0)
    for n in range(4):
        sc.seq([f"v_fma_f32 {V(X1+k)}, {V(X1+k)}, {V(GA+k)}, {V(112+k)}" for k in range(4*n, 4*n + 4)]
               + [f"v_mul_f32 {V(GA+k)}, {V(X1+k)}, {V(AB+k)}" for k in range(4*n, 4*n + 4)], 8*n + 12)
    b(sc.emit())
    T.stamp(b, "red")
    for k in (16, 18): b(f"v_pk_fma_f32 {V(X1+k,2)}, {V(X1+k,2)}, {V(GA+k,2)}, {V(112+k,2)}")
    for k in (16, 18): b(f"v_pk_mul_f32 {V(GA+k,2)}, {V(X1+k,2)}, {V(AB+k,2)}")
    tagged(lambda: store_act(b, sWS, 5, GA, WS_XA, 20, sB5, sE5, 12, " sc1"), "A")
    row_sums(b, X1, 20, 116, 112)
    b(f"s_add_u32 {S(sT)}, s64, {WS_ST1}")
    b(f"buffer_store_dwordx2 v[116:117], {V(vSt)}, {sWS}, {S(sT)} offen sc1")
    def w2if(tag):
        b(f"s_cmp_ge_u32 {S(sRd)}, 5"); b(f"s_cbranch_scc1 {name}_{tag}"); sk = b.flush()
        b(w2round()); b.label(f"{name}_{tag}", sk + b.flush())
    b(arrive_ret("A", FA))
    T.stamp(b, "arrA")
    w2if("wa"); w2if("wb"); w2if("wc"); w2if("wd")
    b(more_sp(SP[0]))
    V1, V2, TM, Z2, Z1, ST, ST2 = 76, 104, 104, 132, 48, 160, 164
    b(f"""
    v_mov_b32 v44, {FH(-GC1)}
    v_mov_b32 v45, {FH(-GC1)}
    v_mov_b32 v46, {FH(-GC2)}
    v_mov_b32 v47, {FH(-GC2)}
    v_add_u32 v8, 65536, {V(vL16)}
    v_add_u32 v9, 131072, {V(vL16)}
    @waitvm w2
    s_barrier
    """)
    NR = 12
    def wring(i): return V(176 + 4*(i % NR), 4)
    def rdl(i, addr): return f"ds_read_b128 {wring(i)}, {V((vL16, 8, 9)[addr >> 16])} offset:{addr & 0xffff}"
    def msplit(order, accf, xf, addr, lead=10, cont=False):
        seen = set(range(7)) if cont else set(); mf = []
        for i, (ks, n) in enumerate(order):
            mf.append(MF(accf(n), wring(i), xf(ks), accf(n) if n in seen else "0")); seen.add(n)
        sc = Sched(mf)
        for i in range(lead, len(order)): sc.put(rdl(i, addr(*order[i])), i - lead, force=True)
        for i in range(1, len(order) - 1, 2): sc.raw(f"@need {wring(i+1)} {wring(min(i+2, len(order)-1))}", i, "pre")
        return sc, [rdl(i, addr(*order[i])) for i in range(lead)]
    ordz = [(4*r + k, n) for r in range(5) for n in range(7) for k in range(4)]
    xz = lambda ks: A((32 + 4*ks) % 80, 4)
    adz = lambda ks, n: (ks*7 + n)*1024
    sc2, pre2 = msplit(ordz, lambda n: V(Z2 + 4*n, 4), xz, adz)
    b(pre2)
    spin_at(name + "_pa", 7, 8)
    T.stamp(b, "gotA")
    def lX(reg, ks): return toI([f"s_add_u32 {S(sT)}, {S(sXo)}, {ks*4096}", f"buffer_load_dwordx4 {reg}, {V(vL16)}, {sWS}, {S(sT)} offen sc1"])
    for ks in range(8): b(lX(xz(ks), ks))
    def place(sc, groups, g0, step):
        g = g0
        for gr in groups:
            for x in gr[:-1]: sc.raw(x, g - 1, "post")
            sc.put(gr[-1], g, force=True); g += step
        return g
    ldst1 = f"buffer_load_dwordx4 {V(ST,4)}, {V(vSl)}, {sWS}, s66 offen sc1"
    ldst2 = f"buffer_load_dwordx4 {V(ST2,4)}, {V(vSl)}, {sWS}, s66 offen sc1"
    g = place(sc2, [lX(xz(ks), ks) for ks in range(8, 20)] + [toI([f"s_add_u32 s66, s63, {WS_ST1}", ldst1])], 1, 4)
    g = max(g, 58)
    sc2.raw("s_barrier", g - 1, "pre")
    w1 = [x for r in range(5) for x in vgroups(dW1(r))]
    g = place(sc2, w1[:14], g + 1, 5); assert g < 146
    for n in range(7):
        sc2.raw(f"ds_read_b128 {V(V1+4*n,4)}, {V(vSm)} offset:{1024 + 1024 + n*64}", 122 + 2*n, "post")
        sc2.raw(f"ds_read_b128 {V(V2+4*n,4)}, {V(vSm)} offset:{1024 + 1024 + 448 + n*64}", 123 + 2*n, "post")
    b(sc2.emit())
    b("s_barrier")
    T.stamp(b, "g2")
    spin_st(name + "_p1", ST, ldst1)
    def apply2():
        for k in range(0, 28, 2): b(f"v_pk_fma_f32 {V(Z2+k,2)}, {V(V1+k,2)}, {V(ST,2)}, {V(Z2+k,2)} op_sel_hi:[1,0,1]")
        for k in range(0, 28, 2): b(f"v_pk_fma_f32 {V(Z2+k,2)}, {V(Z2+k,2)}, {V(ST+2,2)}, {V(V2+k,2)} op_sel_hi:[1,0,1]")
    ep = capture(lambda: (fin_stats(b, ST, 640, 164), apply2(), gelu(b, Z2, 28, TM, 44, 46), row_sums(b, Z2, 28, 164, TM)))
    nv = min(21, len(ep) // EV // 7 * 7)
    weave_v(ep, w1[14:14 + nv], EV)
    b(f"s_add_u32 {S(sT)}, s64, {WS_ST2}")
    b(f"buffer_store_dwordx2 v[164:165], {V(vSt)}, {sWS}, {S(sT)} offen sc1")
    b(arrive_ret(None, FB))
    T.stamp(b, "e2")
    for gr in w1[14 + nv:]: b(gr)
    b(f"s_add_u32 s66, s63, {WS_ST2}")
    if ZR:
        sca, prea = msplit(ordz[:28*ZR], lambda n: V(Z1 + 4*n, 4), xz, adz)
        b("@waitvm w1a"); b("s_barrier"); b(prea)
    else: b(more_sp(SP[1] // 2))
    b(f"""
    v_lshlrev_b32 v168, 5, {V(vR)}
    v_lshl_add_u32 v168, {V(vG)}, 3, v168
    s_lshl_b32 {S(sT)}, {S(sWV)}, 9
    s_add_u32 {S(sT)}, {S(sT)}, {TB}
    v_add_u32 v174, {S(sT)}, v168
    s_and_b32 {S(sT)}, {S(sWV)}, 1
    s_lshr_b32 {S(sT2)}, {S(sWV)}, 1
    s_lshl_b32 {S(sT3)}, {S(sT)}, 10
    s_lshl_b32 s65, {S(sT2)}, 13
    s_add_u32 {S(sT3)}, {S(sT3)}, s65
    s_add_u32 {S(sT3)}, {S(sT3)}, {TB}
    v_lshl_add_u32 v175, v0, 3, {S(sT3)}
    s_lshl_b32 s65, {S(sRB)}, 1
    s_add_u32 s65, s65, {S(sT)}
    s_mul_i32 s65, s65, {54*1024}
    s_add_u32 s65, s65, {WS_Z2}
    s_lshl_b32 s70, {S(sT2)}, 2
    s_add_u32 s70, s70, {S(sB7)}
    s_lshl_b32 s70, s70, 10
    s_add_u32 s70, s70, s65
    s_lshl_b32 s67, {S(sE7)}, 10
    s_add_u32 s67, s67, s65
    s_cmp_ge_u32 {S(sCS)}, 6
    s_cselect_b32 s67, {hex(OOB)}, s67
    s_add_u32 s74, s70, 2048
    s_add_u32 s75, s70, 3072
    s_cmp_eq_u32 {S(sT2)}, 1
    s_cselect_b32 s74, s67, s74
    s_cselect_b32 s75, {hex(OOB)}, s75
    """)
    if ZR:
        g = place(sca, vgroups(more_sp(SP[1] // 2)) + [toI(apoll)], 1, 4)
        gm = max(g + 8, 28*ZR - 30)
        sca.raw("@mark pb", gm - 2, "post2")
        place(sca, [toI([ldst2])] + vgroups(more_sp(SP[1] - SP[1] // 2)), gm, 4)
        emit_marks(sca, {"pb": lambda: spin_at(name + "_pb", 8, 8)})
    else:
        spin_at(name + "_pb", 7, 8)
        b(ldst2)
        b(more_sp(SP[1] - SP[1] // 2))
    spin_st(name + "_p2", ST2, ldst2)
    T.stamp(b, "gotB")
    def norm():
        fin_stats(b, ST2, 864, 168)
        b(f"v_mul_f32 {V(ST2)}, {V(ST2)}, {V(ST2+2)}")
        for n in range(7):
            for k in (4*n, 4*n + 2): b(f"v_pk_fma_f32 {V(Z2+k,2)}, {V(Z2+k,2)}, {V(ST2+2,2)}, {V(ST2,2)} op_sel_hi:[1,0,0]")
            for k in (2*n, 2*n + 1): b(f"v_cvt_pk_bf16_f32 {V(76+k)}, {V(Z2+2*k)}, {V(Z2+2*k+1)}")
            b(f"ds_write_b64 v174, {V(76+2*n,2)} offset:{n*2048}")
    weave_v(capture(norm), vgroups(more_sp(SP[2])) if SP[2] else [], 6)
    assert spn[0] <= 11 + ZR
    b("@waitvm w1"); b("s_waitcnt lgkmcnt(0)"); b("s_barrier")
    for n in range(4):
        for hf in range(2): b(f"ds_read_b64_tr_b16 {V(104+4*n+2*hf,2)}, v175 offset:{n*2048 + hf*512}")
    sc1, pre1 = msplit(ordz[28*ZR:], lambda n: V(Z1 + 4*n, 4), xz, adz, cont=ZR > 0)
    n1 = 140 - 28*ZR
    b(pre1[:6])
    for n in range(4):
        b(f"buffer_store_dwordx4 {V(104+4*n,4)}, {V(vL16)}, {sWS}, {('s70','s70','s74','s75')[n]} offen offset:{1024 if n == 1 else 0} sc1", "C")
    b(pre1[6:])
    T.stamp(b, "stC")
    arr = arrive_ins("C", [f"s_lshl_b32 {S(sT)}, {S(sCS)}, 4", f"s_lshr_b32 {S(sT2)}, {S(sRB)}, 1" if RANK else f"s_and_b32 {S(sT2)}, {S(sRB)}, 15", f"s_add_u32 {S(sT)}, {S(sT)}, {S(sT2)}", f"s_add_u32 {S(sT)}, {S(sT)}, {FC}"])
    def pcs(t):
        a = [f"s_lshl_b32 {S(sFl)}, {S(sCS)}, 4", f"s_add_u32 {S(sFl)}, {S(sFl)}, {S(16+t)}", f"s_lshl_b32 {S(sFl)}, {S(sFl)}, 7", f"s_add_u32 {S(sFl)}, {S(sFl)}, {WS_FL2 + FC*128}"]
        return toI(a + (apoll if CA else [f"v_mov_b32 {V(vPa)}, {S(sFl)}", poll]))
    def spin_c(lab): spin_at(lab, 8, 8) if CA else spin_cnt(lab, 8)
    pc = pcs(0)
    wg = lambda k, n: V(76 + 28*(k % 3) + 4*n, 4)
    def lZ(k):
        o = [f"s_add_u32 {S(sT2)}, {S(24 + (k >> 2))}, {kofs(k)*54*1024}"]
        for n in range(7):
            v, ofs = at7(n); o.append(f"buffer_load_dwordx4 {wg(k, n)}, {v}, {sWS}, {S(sT2)} offen offset:{ofs} sc1")
        return toI(o)
    g = 1
    for t in range(SP[3] + 1):
        if t == AT: g = place(sc1, [arr], max(g, AC), 4)
        if t == PT: g = place(sc1, [pc], g, 4); gp = g
        if t < SP[3]:
            if spn[0] >= 11: g = max(g, 28 * (spn[0] - 10 - ZR) + 1)
            g = place(sc1, vgroups(more_sp(1)), g, 4)
    assert spn[0] <= 14
    g = place(sc1, [toI([f"s_lshl_b32 {S(sT)}, {S(sRow)}, 5", f"v_lshlrev_b32 v42, 1, {V(vR)}", f"buffer_load_ushort v42, v42, {S(R['bsp'],4)}, {S(sT)} offen"])], g, 4)
    g = max(g, gp + 24)
    sc1.raw("@mark pc", g - 2, "post2")
    place(sc1, vgroups(lZ(0) + lZ(1)), g, 3)
    sc1.raw(toI([f"""
    s_lshl_b32 s65, {S(sB7)}, 10
    s_add_u32 {S(sW)}, s65, {WS_Z2 - 1024}
    s_mul_i32 s24, s16, {(4 if RANK else 2)*54*1024}
    s_mul_i32 s25, s17, {(4 if RANK else 2)*54*1024}
    s_mul_i32 s26, s18, {(4 if RANK else 2)*54*1024}
    s_mul_i32 s27, s19, {(4 if RANK else 2)*54*1024}
    s_add_u32 s24, s24, {S(sW)}
    s_add_u32 s25, s25, {S(sW)}
    s_add_u32 s26, s26, {S(sW)}
    s_add_u32 s27, s27, {S(sW)}
    s_mul_i32 {S(sW1)}, {S(sWV)}, {40*1024}
    s_lshl_b32 s65, {S(sB5)}, 10
    s_add_u32 {S(sW1)}, {S(sW1)}, s65
    s_add_u32 {S(sW1)}, {S(sW1)}, {WS_WOUT - 1024}
    s_mul_i32 {S(sLb)}, {S(sWV)}, 5120
    s_mov_b32 s70, {FH(-GC2)}
    """]), 10, "post")
    emit_marks(sc1, {"pc": lambda: (spin_c(name + "_pc"), T.stamp(b, "gotC"))})
    T.stamp(b, "g1")
    G = 176
    def gacc(n, m):
        if m == 0: return A(4*n, 4)
        i = (m - 1)*7 + n
        return V(G + 4*i, 4) if i < 20 else A(28, 4)
    OB = lambda r: 49152 + r*20480 if r < 5 else (r - 5)*20480
    dWo = lambda r: dmaW(5, at5, sW1, 4*r*40*1024, sLb, OB(r), "wo", valid=f"s_cmp_lt_u32 {S(sWV)}, 3" if r == 6 else None)
    def z1rd(n): return [f"ds_read_b128 v[164:167], {V(vSm)} offset:{1024 + n*64}", f"ds_read_b128 v[8:11], {V(vSm)} offset:{1024 + 448 + n*64}"]
    def z1ep(n):
        z = Z1 + 4*n; tt = (168, 169, 174, 175); o = []
        o += [f"v_fmac_f32 {V(z+r)}, {V(164+r)}, {V(ST)}" for r in range(4)]
        o += [f"v_fma_f32 {V(z+r)}, {V(z+r)}, {V(ST+2)}, {V(8+r)}" for r in range(4)]
        o2 = [f"v_mul_f32 {V(tt[r])}, {V(z+r)}, {V(z+r)}" for r in range(4)]
        o2 += [f"v_fma_f32 {V(tt[r])}, {V(tt[r])}, s70, v44" for r in range(4)]
        o2 += [f"v_mul_f32 {V(tt[r])}, {V(tt[r])}, {V(z+r)}" for r in range(4)]
        o2 += [f"v_exp_f32 {V(tt[r])}, {V(tt[r])}" for r in range(4)]
        o2 += [f"v_add_f32 {V(tt[r])}, 1.0, {V(tt[r])}" for r in range(4)]
        o2 += [f"v_rcp_f32 {V(tt[r])}, {V(tt[r])}" for r in range(4)]
        o2 += [f"v_mul_f32 {V(z+r)}, {V(z+r)}, {V(tt[r])}" for r in range(4)]
        return o, o2
    b(z1rd(0))
    radr = []
    for m in range(1, 4):
        radr += [f"s_add_u32 s65, {S(sWV)}, {m}", "s_and_b32 s65, s65, 3", "s_mul_i32 s65, s65, 12288", f"s_add_u32 s65, s65, {(m-1)*4096}",
                 f"v_add_u32 {V(160+m)}, s65, {V(vL16)}"]
    radr += [f"s_mul_i32 s65, {S(sWV)}, 12288", f"v_add_u32 v160, s65, {V(vL16)}",
             f"v_add_u32 v8, 65536, {V(vL16)}", f"v_add_u32 v9, 131072, {V(vL16)}"]
    selm = toI([f"""
    v_lshlrev_b32 v168, 2, {V(vG)}
    v_sub_u32 v168, {V(vR)}, v168
    v_mov_b32 v169, 0x3f80
    v_mov_b32 v174, 0x3f800000
    v_cmp_eq_u32 vcc, 0, v168
    v_cndmask_b32 v164, 0, v169, vcc
    v_cmp_eq_u32 vcc, 1, v168
    v_cndmask_b32 v164, v164, v174, vcc
    v_cmp_eq_u32 vcc, 2, v168
    v_cndmask_b32 v165, 0, v169, vcc
    v_cmp_eq_u32 vcc, 3, v168
    v_cndmask_b32 v165, v165, v174, vcc
    v_mov_b32 v166, 0
    v_mov_b32 v167, 0
    v_mov_b32 v44, 0
    v_mov_b32 v45, 0
    v_mov_b32 v46, v164
    v_mov_b32 v47, v165
    v_lshlrev_b32 v42, 16, v42
    """])
    wo_early = [x for r in range(5) for x in vgroups(dWo(r))]
    rno = lambda t: int(t[2:t.index(":")])
    cv = lambda d, x: f"v_cvt_pk_bf16_f32 {V(d)}, {V(x)}, {V(x+1)}"
    def packw(m, p):
        r0 = rno(gacc(2*p, m)); o = []
        if p < 3: o += [cv(r0, r0), cv(r0+1, r0+2), cv(r0+2, r0+4), cv(r0+3, r0+6)]
        else:
            if m == 3: r0 = 104; o += [f"v_accvgpr_read_b32 {V(r0+k)}, {A(28+k)}" for k in range(4)]
            o += [cv(r0, r0), cv(r0+1, r0+2), f"v_mov_b32 {V(r0+2)}, 0", f"v_mov_b32 {V(r0+3)}, 0"]
        return o + [f"ds_write_b128 {V(160+m)}, {V(r0,4)} offset:{p*1024}"]
    for k in range(16):
        mo = [(n, m) for n in range(7) for m in range(4)] if k < 15 else [(n, m) for m in (3, 1, 2, 0) for n in range(7)]
        sc = Sched([MF(gacc(n, m), wg(k, n), xs(k, m), gacc(n, m) if k else "0") for n, m in mo])
        f = lZ(k + 2) if k + 2 < 16 else [x for gr in wo_early[7*(k-14) : 7*(k-13)] for x in gr]
        if spn[0] < 16 and k >= 2 and spn[0] - k <= 5: f = f + more_sp(1)
        if k in (0, 4, 8): f = pcs(k // 4 + 1) + f
        if k in (2, 6, 10): spin_c(f"{name}_pe{k}")
        sc.seq(f, 0, ZS if k < 14 else 4)
        if k < 14:
            o, o2 = z1ep(k >> 1)
            if k % 2 == 0: sc.seq(o + (z1rd(k//2 + 1) if k < 12 else []) + o2[:12], 0)
            else: sc.seq(o2[12:], 0)
        if k == 13: sc.raw("s_barrier", 27, "post2")
        if k == 14: sc.seq(radr, 0); sc.seq(selm, 0)
        if k == 15:
            g = 0; late = []
            for i, m in enumerate((3, 1, 2)):
                for p in range(4):
                    e = max(g, 7*i + min(2*p + 1, 6) + 5)
                    if e < 24: g = sc.seq(packw(m, p), e) + 1
                    else: late.append(toI(packw(m, p)))
        b(sc.emit())
        if k in (0, 3, 7, 11, 13, 14): T.stamp(b, f"k{k}")
    assert spn[0] == 16
    rest = wo_early[14:]
    for gr in late:
        b(gr)
        if rest: b(rest.pop(0))
    T.stamp(b, "g4")
    b("s_waitcnt lgkmcnt(0)"); b("s_barrier")
    XF = lambda m, p: V(108 + 16*m + 4*p, 4)
    for p in range(4):
        for m in range(3): b(f"ds_read_b128 {XF(m, p)}, v160 offset:{m*4096 + p*1024}")
    sc = Sched([MF(A(4*n, 4), V(44 if n & 1 else 164, 4), XF(m, n >> 1), A(4*n, 4)) for n in range(7) for m in range(3)])
    g = place(sc, rest, 1, 3)
    fin = []
    for n in range(7):
        d = G + 4*n
        fin.append([f"v_accvgpr_read_b32 {V(d+r)}, {A(4*n+r)}" for r in range(4)])
    g = 0
    for n in range(7): g = sc.seq(fin[n], max(g, 3*n + 8))
    b(sc.emit())
    b("s_barrier")
    for k in range(0, 28, 2): b(f"v_pk_add_f32 {V(G+k,2)}, {V(G+k,2)}, v[42:43] op_sel_hi:[1,0]")
    for k in range(0, 28, 2): b(f"v_pk_mul_f32 {V(G+k,2)}, {V(G+k,2)}, {V(Z1+k,2)}")
    tagged(lambda: store_act(b, sWS, 7, G, WS_U, 27, sB7, sE7, 12, " sc1"), "D")
    b(dWo(5))
    b(arrive_ret("D", FD))
    T.stamp(b, "arrD")
    b(dWo(6))
    GB, Y = 48, 76
    for n in range(5): b(f"ds_read_b128 {V(GB+4*n,4)}, {V(vSm)} offset:{640 + n*64}")
    b(f"""
    s_mul_i32 {S(sXo)}, {S(sRB)}, {27*4096}
    s_lshl_b32 {S(sT)}, {S(sWV)}, 10
    s_add_u32 {S(sXo)}, {S(sXo)}, {S(sT)}
    s_add_u32 {S(sXo)}, {S(sXo)}, {WS_U}
    """)
    xu = lambda ks: A(4*ks, 4)
    ordo = [(3*r + k, n) for r in range(9) for n in range(5) for k in range(3)]
    sc5, pre5 = msplit(ordo, lambda n: V(Y + 4*n, 4), xu, lambda ks, n: OB(ks >> 2) + (ks & 3)*5120 + n*1024)
    b("@waitvm wo"); b("s_barrier"); b(pre5)
    spin_at(name + "_pd", 7, 8)
    T.stamp(b, "gotD")
    for ks in range(9): b(lX(xu(ks), ks))
    place(sc5, [lX(xu(ks), ks) for ks in range(9, 27)], 1, 4)
    sc5.seq([f"v_mul_u32_u24 v10, 1280, {V(vR)}", f"v_and_b32 v11, 1, {V(vG)}", "v_lshl_add_u32 v10, v11, 5, v10", f"v_lshrrev_b32 v11, 1, {V(vG)}", "v_lshl_add_u32 v10, v11, 4, v10"], 90)
    b(sc5.emit())
    T.stamp(b, "g5")
    for k in range(0, 20, 2): b(f"v_pk_fma_f32 {V(Y+k,2)}, {V(Y+k,2)}, {V(GB+k,2)}, {V(X1+k,2)}")
    for k in range(10): b(f"v_cvt_pk_bf16_f32 {V(Y+k)}, {V(Y+2*k)}, {V(Y+2*k+1)}")
    if OW:
        b(f"buffer_store_dwordx2 {V(Y+8,2)}, v15, {S(R['out'],4)}, s69 offen{OM}")
        for p in range(2):
            b(f"v_permlane16_swap_b32 {V(Y+4*p)}, {V(Y+4*p+2)}"); b(f"v_permlane16_swap_b32 {V(Y+4*p+1)}, {V(Y+4*p+3)}")
            b(f"buffer_store_dwordx4 {V(Y+4*p,4)}, v10, {S(R['out'],4)}, s68 offen offset:{64*p}{OM}")
    else:
        for n in range(5): b(f"buffer_store_dwordx2 {V(Y+2*n,2)}, v15, {S(R['out'],4)}, {'s68' if n < 4 else 's69'} offen offset:{32*n if n < 4 else 0}{OM}")
```

```python
from common import *

QSCALE = LOG2E / (128 ** 0.5)
NEGBIG = -1.0e30
L_LO, L_HI = 2.0 ** -40, 2.0 ** 40
DB_MOD, DB_MO2 = 0, 32
FL_H, FL_KV, FL_M, FL_K0, FL_R, FL_T, FL_RK, FL_RG = 0, 16, 48, 64, 96, 128, 160, 168
FL_P, FL_CX = 256, 512
CODE_BYTES = 50000
SPIN_MAX = 1000000

def gen(name="ka_kernel", stamps=False, force_fallback=False, fine=False, PF=True, END=72, QEND=104, QST=(4, 4, 3, 3), BA=46, MW=24, QF=16, QB=7, PFP=8, NC1=6, MS0=True, PMG=54, CPF=True, JST=10, HOP=True, HX=(), TLB=-1, QR=0, PW=True, JR0=20, JSP=(43, 55, 65, 81), EXACT=True, MSG=14, QD=(0, 6, 11, 16), S7=2, PFA=(1, 2), PQ4=False, PHG=28, HA=0, drop=(), QMIX=False, DWS=3, KVM=' sc1', KVL=' sc1', CXS=' sc1', CXL=' sc1', M2=False, VST=6, BPOS=3, KST=2, V0=4, OA=2, OD=6, OW=28, OE=4, OX=8, OSP=True, OH=4, OS=3, OT=8, OB1=True, OPF=False, OQ=44, OZ=596, OY=310, OR=0, CX0=3, CX1=5, OL=5, OU=10, OG=162, NTS='jm', PST='', total_code=None, tail=None, aslist=False, afew=None, drop2=(), probe=None):
    b = B()
    T = Stamper(stamps, 84, 0)
    if afew is not None:
        _st = T.stamp
        T.stamp = lambda b_, nm, cond=None: _st(b_, nm, cond) if (nm in afew or nm not in ("C0", "kvstart", "kvend", "qend", "blk1end", "attend", "end")) else None
    SC = ' sc1' if tail else ''
    nt = lambda c: ' nt' if c in NTS else ''
    b(f"{name}:")
    b("s_cmp_ge_u32 s2, 256")
    b(f"s_cbranch_scc1 {name}_end")
    T.stamp(b, "start")
    b(f"{name}_go:")
    names_ = ["x", "ckv", "wq", "wuk", "wuv", "ws", "dbg", "wmod", "c"]
    R = {n: 8 + 4*i for i, n in enumerate(names_)}
    for n in ("ckv", "wuk", "wuv", "x", "wq", "ws", "dbg", "wmod", "c"): b(f"s_load_dwordx2 {S(R[n],2)}, s[0:1], {ARG[n]}")
    def build_rest():
        for n in names_:
            if n == "ckv": continue
            b(f"s_mov_b32 {S(R[n]+2)}, {hex(SIZE[n])}"); b(f"s_mov_b32 {S(R[n]+3)}, 0x20000")
    sX, sCKV, sWQ, sWS, sDBG, sWM, sC = (S(R[n], 4) for n in ("x", "ckv", "wq", "ws", "dbg", "wmod", "c"))
    WU = 44; sWU = S(WU, 4)
    sWV, sHD, sJ = 48, 49, 50
    sT, sT2, sT3 = 51, 52, 53
    sCb, sWb, sLw = 54, 55, 56
    sRot = 57
    sBLK, sBLK2, sS, sN = 58, 59, 60, 61
    sKo, sVo, sKb, sVb = 62, 63, 64, 65
    sKs, sVs = 66, 67
    sPass, sSafe = 68, 69
    sHb = 70; sVar = 71
    sMK = 72
    b(f"""
    v_lshrrev_b32 v1, 6, v0
    v_and_b32 v0, 63, v0
    v_readfirstlane_b32 {S(sWV)}, v1
    s_and_b32 {S(sT)}, s2, 7
    s_lshr_b32 {S(sT2)}, s2, 3
    s_and_b32 {S(sHD)}, {S(sT2)}, 3
    s_lshl_b32 {S(sT3)}, {S(sT)}, 2
    s_add_u32 {S(sHD)}, {S(sHD)}, {S(sT3)}
    s_lshr_b32 {S(sJ)}, {S(sT2)}, 2
    s_getpc_b64 s[4:5]
    {name}_pc1:
    s_lshl_b32 s6, {S(sT2)}, 2
    s_add_u32 s6, s6, {S(sWV)}
    s_lshl_b32 s6, s6, 10
    v_and_b32 v91, 7, v0
    v_lshl_add_u32 v91, v91, 7, s6
    v_min_u32 v91, code_end - {name}_pc1 - 4, v91
    {"global_load_dword v23, v91, s[4:5]" if HOP else ""}
    v_lshrrev_b32 v21, 4, v0
    v_and_b32 v22, 15, v0
    v_and_b32 v24, 7, v0
    v_xor_b32 v24, v24, v21
    v_lshrrev_b32 v25, 3, v0
    v_lshlrev_b32 v25, 10, v25
    v_lshl_add_u32 v1, v24, 4, v25
    v_xor_b32 v2, 64, v1
    v_add_u32 v2, 8192, v2
    v_lshlrev_b32 v24, 1, v21
    v_xor_b32 v24, v22, v24
    v_lshlrev_b32 v25, 13, v21
    v_lshl_add_u32 v3, v24, 4, v25
    v_xor_b32 v4, 128, v3
    s_mov_b32 {S(R['ckv']+2)}, {hex(SIZE['ckv'])}
    s_mov_b32 {S(R['ckv']+3)}, 0x20000
    s_waitcnt lgkmcnt(0)
    s_cmp_ge_u32 {S(sWV)}, 2
    s_cselect_b32 {S(WU)}, {S(R['wuv'])}, {S(R['wuk'])}
    s_cselect_b32 {S(WU+1)}, {S(R['wuv']+1)}, {S(R['wuk']+1)}
    s_mov_b32 {S(WU+2)}, {hex(SIZE['wuk'])}
    s_mov_b32 {S(WU+3)}, 0x20000
    """)
    MB = 128 * 1024
    sCG, sMB, sQb, sKq = 80, 81, 82, 83
    vC0, vC1, vW0, vW1 = 1, 2, 3, 4
    vRC0, vRC1 = 5, 6
    vRW = 7
    vL16 = 15
    vPW, vPQ, vMo, vDum = 12, 13, 14, 23
    b(f"""
    s_sub_u32 {S(sBLK)}, 15, {S(sJ)}
    s_mov_b32 {S(sBLK2)}, {S(sJ)}
    s_and_b32 {S(sT)}, {S(sWV)}, 1
    s_lshl_b32 {S(sWb)}, {S(sT)}, 18
    s_lshl_b32 {S(sT2)}, {S(sHD)}, 8
    s_add_u32 {S(sWb)}, {S(sWb)}, {S(sT2)}
    s_cmp_ge_u32 {S(sWV)}, 2
    s_cselect_b32 {S(sCb)}, {S(sBLK2)}, {S(sBLK)}
    s_lshl_b32 {S(sCb)}, {S(sCb)}, 17
    s_lshl_b32 {S(sT3)}, {S(sT)}, 16
    s_add_u32 {S(sCb)}, {S(sCb)}, {S(sT3)}
    s_lshl_b32 {S(sLw)}, {S(sWV)}, 13
    """)
    def dmaC(s):
        o = []
        for i in range(8):
            o.append((f"s_add_u32 m0, {S(sLw)}, {65536 + (s & 1) * 32768 + i * 1024}",
                      f"s_add_u32 {S(sT)}, {S(sCb)}, {(i >> 1) * 16384 + s * 128}",
                      I(f"buffer_load_dwordx4 {V(vC1 if i & 1 else vC0)}, {sCKV}, {S(sT)} offen lds", f"C{s}")))
        return o
    def dmaW(s):
        o = []
        for i in range(8):
            o.append((f"s_add_u32 m0, {S(sLw)}, {(s & 1) * 32768 + i * 1024}",
                      f"s_add_u32 {S(sT)}, {S(sWb)}, {(s * 64 + 4 * i) * 8192}",
                      I(f"buffer_load_dwordx4 {V(vW1 if (i >> 1) & 1 else vW0)}, {sWU}, {S(sT)} offen{nt('W')} lds", f"W{s}")))
        return o
    def dmaQ(s):
        o = []
        for i in range(8):
            o.append((f"s_add_u32 m0, {S(sLw)}, {65536 + (s % 3) * 32768 + i * 1024}",
                      f"s_add_u32 {S(sT)}, {S(sQb if s < 5 - QR else 76)}, {(s * 128 + 4 * i) * 8192}",
                      I(f"buffer_load_dwordx4 {V(vW1 if (i >> 1) & 1 else vW0)}, {sWQ}, {S(sT)} offen{nt('Q')} lds", f"Q{s}")))
        return o
    sPW = 57
    def pf_setup():
        b(f"""
        s_and_b32 s6, {S(sWV)}, 1
        v_lshrrev_b32 v24, 1, v0
        v_lshlrev_b32 v24, 13, v24
        v_and_b32 v25, 1, v0
        v_lshl_add_u32 v24, v25, 7, v24
        v_mov_b32 v25, {hex(OOB)}
        v_cmp_gt_u32 vcc, 16, v0
        v_cndmask_b32 {V(vPW)}, v25, v24, vcc
        v_lshlrev_b32 v26, 7, v0
        v_cndmask_b32 v26, v25, v26, vcc
        v_cmp_gt_u32 vcc, 20, v0
        v_cndmask_b32 {V(vPQ)}, v25, v24, vcc
        s_lshl_b32 {S(sPW)}, s6, 19
        s_lshl_b32 {S(sT3)}, {S(sJ)}, 16
        s_add_u32 {S(sPW)}, {S(sPW)}, {S(sT3)}
        s_add_u32 {S(sPW)}, {S(sPW)}, {S(sT2)}
        s_lshl_b32 {S(sT3)}, s2, 2
        s_add_u32 {S(sT3)}, {S(sT3)}, {S(sWV)}
        s_lshl_b32 {S(sT3)}, {S(sT3)}, 11
        v_add_u32 v90, {S(sT3)}, v26
        s_add_u32 s6, {S(sPW)}, {64*8192}
        buffer_load_dword {V(vDum)}, v90, {sCKV}, 0 offen
        buffer_load_dword {V(vDum)}, {V(vPW)}, {sWU}, s6 offen{nt('w')}
        """)
    first = dmaC(0) + dmaW(0) + dmaC(1)[:NC1]
    for k, d in enumerate(first + [None]):
        if k == min(PFP, len(first)): pf_setup()
        if k == 8: build_rest()
        if d: b(list(d))
    b(f"""
    s_lshl_b32 {S(sQb)}, {S(sWV)}, 18
    s_add_u32 {S(sQb)}, {S(sQb)}, {S(sT2)}
    """)
    if HOP: b(f"s_branch {name}_main"); b.label(name + "_main", align=12)
    def pfW(t): return toI([f"s_add_u32 {S(sT2)}, {S(sPW)}, {(2*t + 1)*64*8192}", f"buffer_load_dword {V(vDum)}, {V(vPW)}, {sWU}, {S(sT2)} offen{nt('w')}"])
    def pfQ(t):
        return toI([f"s_lshl_b32 {S(sT2)}, {S(sJ)}, 2", f"s_add_u32 {S(sT2)}, {S(sT2)}, {S(sWV)}", f"s_mul_i32 {S(sT2)}, {S(sT2)}, {10*8192}",
                    f"s_lshl_b32 s5, {S(sHD)}, 8", f"s_add_u32 {S(sT2)}, {S(sT2)}, s5", f"s_add_u32 {S(sT2)}, {S(sT2)}, {t*320*8192}",
                    f"buffer_load_dword {V(vDum)}, {V(vPQ)}, {sWQ}, {S(sT2)} offen{nt('q')}"])
    pf0 = [toI([f"buffer_load_dword {V(vDum)}, v90, {sCKV}, 0 offen"]), pfW(0), toI([f"global_load_dword {V(vDum)}, v91, s[4:5]"])]
    b(f"""
    s_lshr_b32 {S(sCG)}, s2, 2
    s_and_b32 {S(sKq)}, s2, 3
    s_lshl_b32 {S(sMB)}, {S(sWV)}, 10
    s_add_u32 {S(sMB)}, {S(sMB)}, {MB + 20480}
    v_lshrrev_b32 v24, 3, v0
    v_mul_u32_u24 v24, 7680, v24
    v_and_b32 v25, 7, v0
    v_lshl_add_u32 {V(vMo)}, v25, 4, v24
    v_lshlrev_b32 v89, 2, v0
    """)
    def m_c(): return toI([f"s_mul_i32 {S(sT2)}, {S(sKq)}, 320", f"buffer_load_dword v17, v89, {sC}, {S(sT2)} offen", f"buffer_load_dword v18, v89, {sC}, {S(sT2)} offen offset:256"])
    def m_dma():
        o = [f"s_lshl_b32 {S(sT3)}, {S(sKq)}, 2", f"s_add_u32 {S(sT3)}, {S(sT3)}, {S(sWV)}", f"s_mul_i32 {S(sT3)}, {S(sT3)}, {40 * 7680}",
             f"s_lshl_b32 {S(sT2)}, {S(sCG)}, 7", f"s_add_u32 {S(sT3)}, {S(sT3)}, {S(sT2)}", f"s_cmp_lt_u32 {S(sCG)}, 60", f"s_cselect_b32 {S(sT3)}, {S(sT3)}, {hex(OOB)}",
             f"s_mul_i32 s7, {S(sWV)}, 5120"]
        for i in range(5):
            o += [f"s_add_u32 m0, s7, {MB + i*1024}", f"s_add_u32 {S(sT2)}, {S(sT3)}, {i*8*7680}",
                  I(f"buffer_load_dwordx4 {V(vMo)}, {sWM}, {S(sT2)} offen{nt('m')} lds", "m")]
        return toI(o)
    sK1, sV1 = 72, 74
    b(f"""
    v_lshlrev_b32 {V(vL16)}, 4, v0
    v_lshrrev_b32 v24, 1, v22
    v_xor_b32 v24, v24, v21
    v_lshlrev_b32 v24, 4, v24
    v_lshl_add_u32 v24, v22, 7, v24
    s_and_b32 {S(sT)}, {S(sWV)}, 1
    s_lshl_b32 {S(sT)}, {S(sT)}, 13
    s_add_u32 {S(sT)}, {S(sT)}, 65536
    v_add_u32 {V(vRC0)}, {S(sT)}, v24
    v_xor_b32 {V(vRC1)}, 64, {V(vRC0)}
    v_lshrrev_b32 v26, 2, v22
    v_and_b32 v24, 1, v21
    v_lshl_add_u32 v24, v24, 2, v26
    v_lshl_add_u32 v26, v21, 3, v26
    v_lshlrev_b32 v26, 8, v26
    v_and_b32 v25, 3, v0
    v_lshl_add_u32 v26, v25, 3, v26
    v_lshl_add_u32 v26, v24, 5, v26
    s_lshr_b32 {S(sT)}, {S(sWV)}, 1
    s_lshl_b32 {S(sT)}, {S(sT)}, 7
    v_xor_b32 {V(vRW)}, {S(sT)}, v26
    v_xor_b32 {V(vRW+1)}, 32, {V(vRW)}
    v_xor_b32 {V(vRW+2)}, 64, {V(vRW)}
    v_xor_b32 {V(vRW+3)}, 96, {V(vRW)}
    s_cmp_ge_u32 {S(sWV)}, 2
    s_cselect_b32 {S(sHb)}, {S(sBLK2)}, {S(sBLK)}
    s_lshl_b32 {S(sT2)}, {S(sHb)}, 7
    s_add_u32 {S(sT2)}, {S(sT2)}, {WS_FLG + FL_H*128}
    v_mov_b32 v11, {S(sT2)}
    s_lshl_b32 {S(sHb)}, {S(sHb)}, 1
    s_and_b32 {S(sT2)}, {S(sWV)}, 1
    s_add_u32 {S(sHb)}, {S(sHb)}, {S(sT2)}
    s_mul_i32 {S(sHb)}, {S(sHb)}, {20*4096}
    s_add_u32 {S(sHb)}, {S(sHb)}, {WS_H}
    s_bfe_u32 s6, {S(sHD)}, 0x10001
    s_mul_i32 s7, s6, {QR*128*8192}
    s_add_u32 {S(sQb)}, {S(sQb)}, s7
    s_mul_i32 s7, s6, {5*128*8192}
    s_sub_u32 s76, {S(sQb)}, s7
    s_mul_i32 s7, s6, {QR*16384}
    s_add_u32 {S(sHb)}, {S(sHb)}, s7
    s_mul_i32 s7, s6, {5*16384}
    s_sub_u32 s77, {S(sHb)}, s7
    s_lshl_b32 {S(sKb)}, {S(sHD)}, 19
    s_add_u32 {S(sVb)}, {S(sKb)}, {WS_V}
    s_add_u32 {S(sKb)}, {S(sKb)}, {WS_K}
    s_lshr_b32 {S(sT3)}, {S(sWV)}, 1
    s_mul_i32 {S(sK1)}, {S(sT2)}, {16384 + 8192}
    s_lshl_b32 {S(sT)}, {S(sT3)}, 11
    s_add_u32 {S(sK1)}, {S(sK1)}, {S(sT)}
    s_xor_b32 {S(sK1+1)}, {S(sK1)}, 16384
    s_mul_i32 {S(sV1)}, {S(sT2)}, {16384 + 1024}
    s_lshl_b32 {S(sT)}, {S(sT3)}, 13
    s_add_u32 {S(sV1)}, {S(sV1)}, {S(sT)}
    s_xor_b32 {S(sV1+1)}, {S(sV1)}, 16384
    """)
    vFlag, vOne, vPoll, vZero, vXo, vHo, vFlagW = 19, 20, 18, 17, 21, 22, 16
    b(f"""
    v_mov_b32 {V(vFlag)}, {hex(OOB)}
    s_cmp_eq_u32 {S(sWV)}, 0
    s_cselect_b32 {S(sT)}, 0, {hex(OOB)}
    v_mov_b32 {V(vFlagW)}, {hex(OOB)}
    v_writelane_b32 {V(vFlag)}, {S(sT)}, 0
    v_writelane_b32 {V(vFlagW)}, 0, 0
    v_mov_b32 {V(vOne)}, 1
    {"@hop a" if HOP else ""}
    @waitvm W0
    s_barrier
    """)
    if not fine: T.stamp(b, "C0")
    def m_silu():
        o = ["v_lshlrev_b32 v24, 16, v17", "v_and_b32 v25, 0xffff0000, v17", "v_lshlrev_b32 v26, 16, v18", "v_and_b32 v27, 0xffff0000, v18"]
        o += [f"v_mul_f32 {V(28+k)}, {FH(-LOG2E)}, {V(24+k)}" for k in range(4)]
        o += [f"v_exp_f32 {V(28+k)}, {V(28+k)}" for k in range(4)]
        o += [f"v_add_f32 {V(28+k)}, 1.0, {V(28+k)}" for k in range(4)]
        o += [f"v_rcp_f32 {V(28+k)}, {V(28+k)}" for k in range(4)]
        o += [f"v_mul_f32 {V(24+k)}, {V(24+k)}, {V(28+k)}" for k in range(4)]
        o += ["v_cvt_pk_bf16_f32 v24, v24, v25", "v_cvt_pk_bf16_f32 v25, v26, v27", f"v_lshl_add_u32 v26, v0, 2, {S(sMB)}",
              "ds_write_b32 v26, v24", "ds_write_b32 v26, v25 offset:256",
              "v_lshrrev_b32 v27, 4, v0", "v_bfe_u32 v28, v0, 2, 2", "v_lshl_add_u32 v28, v27, 3, v28", "v_lshlrev_b32 v28, 7, v28",
              "v_and_b32 v29, 3, v0", "v_lshl_add_u32 v28, v29, 3, v28", f"s_lshl_b32 s6, {S(sWV)}, 5", f"s_add_u32 s6, s6, {MB}",
              "v_add_u32 v28, s6, v28", f"v_lshl_add_u32 v27, v27, 4, {S(sMB)}"]
        o += [f"ds_read_b128 {V(32+4*ks,4)}, v27 offset:{ks*64}" for ks in range(5)]
        return toI(o)
    def m_reads(): return toI([f"ds_read_b64_tr_b16 {V(52+4*ks+2*hf,2)}, v28 offset:{ks*4096 + hf*512}" for ks in range(5) for hf in range(2)])
    def m_mfma(): return [MF(V(72,4), V(32+4*ks,4), V(52+4*ks,4), V(72,4) if ks else "0") for ks in range(5)]
    def m_store():
        return toI([f"s_lshl_b32 {S(sT3)}, {S(sCG)}, 2", f"s_add_u32 {S(sT3)}, {S(sT3)}, {S(sWV)}", f"s_lshl_b32 {S(sT3)}, {S(sT3)}, 6",
                    f"s_add_u32 {S(sT3)}, {S(sT3)}, {S(sKq)}", f"s_lshl_b32 {S(sT3)}, {S(sT3)}, 2", f"s_add_u32 {S(sT3)}, {S(sT3)}, {WS_MP}",
                    "v_and_b32 v29, 15, v0", "v_lshlrev_b32 v29, 4, v29"]) + [I(f"buffer_store_dword v72, v29, {sWS}, {S(sT3)} offen sc1", "ms")]
    def rnd(r): return [f"v_cvt_pk_bf16_f32 {V(r)}, {V(r)}, {V(r)}", f"v_lshlrev_b32 {V(r)}, 16, {V(r)}"]
    def sum4(r): return [f"v_add_f32 {V(r)}, {V(r)}, {V(r+1)}", f"v_add_f32 {V(r+2)}, {V(r+2)}, {V(r+3)}", f"v_add_f32 {V(r)}, {V(r)}, {V(r+2)}"] + rnd(r)
    def acc(o, kt): return A(32*o + 4*kt, 4) if o < 3 else V(96 + 32*(o-3) + 4*kt, 4)
    def Cf(buf, kt, ks): return A(96 + 64*buf + 8*kt + 4*ks, 4)
    def rdC(s, kt, ks): return f"ds_read_b128 {Cf(s & 1, kt, ks)}, {V(vRC1 if ks else vRC0)} offset:{(s & 1)*32768 + (kt >> 2)*16384 + (kt & 3)*2048}"
    def Wf(buf, ks): return 224 + 8*buf + 4*ks
    def rdW(s, o): return [f"ds_read_b64_tr_b16 {A(Wf(o & 1, ks) + 2*hf, 2)}, {V(vRW + (o & 3))} offset:{(s & 1)*32768 + (o >> 2)*16384 + ks*8192 + hf*1024}"
                           for ks in range(2) for hf in range(2)]
    b(rdW(0, 0))
    for kt in range(5):
        for ks in range(2): b(rdC(0, kt, ks))
    T.stamp(b, "kvstart")

    def spin(lab, vreg, soff, target, sc_=None):
        b(f"@need {V(vreg)}")
        b(f"v_cmp_gt_u32 vcc, {target}, {V(vreg)}")
        b(f"s_cbranch_vccnz {lab}_w")
        b.outline(f"{lab}_w", ["s_mov_b32 s3, 0", f"{lab}_spin:", "s_sleep 4", soff, "s_add_u32 s3, s3, 1", f"s_cmp_gt_u32 s3, {SPIN_MAX}", "s_waitcnt vmcnt(0)",
                               f"s_cbranch_scc1 {lab}_ok", f"v_cmp_gt_u32 vcc, {target}, {V(vreg)}", f"s_cbranch_vccnz {lab}_spin"], f"{lab}_ok")
    def spin_at(lab, vreg, again, target):
        b(f"v_readfirstlane_b32 s3, {V(vreg)}"); b(f"s_cmp_lt_u32 s3, {target}"); b(f"s_cbranch_scc1 {lab}_w")
        b.outline(f"{lab}_w", ["s_mov_b32 vcc_lo, 0", f"{lab}_spin:", again, "s_add_u32 vcc_lo, vcc_lo, 1", f"s_cmp_gt_u32 vcc_lo, {SPIN_MAX}", "s_waitcnt vmcnt(0)",
                               f"s_cbranch_scc1 {lab}_ok", f"v_readfirstlane_b32 s3, {V(vreg)}", f"s_cmp_lt_u32 s3, {target}", f"s_cbranch_scc1 {lab}_spin"], f"{lab}_ok")
    def emit_split(sc, hooks):
        cur = []
        for i in sc.emit():
            if i.kind == "pseudo" and i.op == "@mark":
                b(cur); cur = []; hooks[i.t.split()[1]]()
            else: cur.append(i)
        b(cur)

    XP, XF, MA, MS = 76, 32, 52, 72
    HP = 52
    poll_mod = f"buffer_load_dword {V(vPoll)}, {V(vZero)}, {sDBG}, 0 offen sc1"
    poll_mo2 = f"buffer_load_dword {V(vPoll)}, {V(vZero)}, {sWS}, 0 offen sc1"
    def h_setup():
        return toI([f"""
        v_and_b32 v92, 31, v0
        v_lshrrev_b32 v93, 5, v0
        v_mul_u32_u24 {V(vXo)}, 1280, v93
        v_lshl_add_u32 {V(vXo)}, v92, 3, {V(vXo)}
        v_lshrrev_b32 v94, 1, v92
        v_mul_u32_u24 {V(vHo)}, 144, v94
        v_lshl_add_u32 {V(vHo)}, v93, 4, {V(vHo)}
        v_and_b32 v94, 1, v92
        v_lshl_add_u32 {V(vHo)}, v94, 3, {V(vHo)}
        s_lshl_b32 s6, {S(sWV)}, 5
        s_add_u32 s6, s6, {MB + 8192}
        v_add_u32 {V(vHo)}, s6, {V(vHo)}
        v_lshlrev_b32 v95, 4, v92
        v_add_u32 v95, {MB}, v95
        """])
    def h_loadx():
        o = [f"s_lshl_b32 {S(sT2)}, s2, 2", f"s_add_u32 {S(sT2)}, {S(sT2)}, {S(sWV)}", f"s_mul_i32 {S(sT2)}, {S(sT2)}, 2560"]
        o += [f"buffer_load_dwordx2 {V(XP+2*m,2)}, {V(vXo)}, {sX}, {S(sT2)} offen offset:{256*m}" for m in range(5)]
        return toI(o)
    def mp_load():
        o = [f"s_lshl_b32 {S(sT3)}, {S(sWV)}, 10"]
        for i in range(5): o += [f"s_add_u32 {S(sT2)}, {S(sT3)}, {WS_MP + 4096*i}", f"buffer_load_dwordx4 {V(52+4*i,4)}, {V(vL16)}, {sWS}, {S(sT2)} offen sc1"]
        return toI(o)
    def mp_sum():
        o = [f"s_cmp_ge_u32 {S(sWV)}, 2", "s_cselect_b32 s6, 1.0, 0", f"s_cmp_ge_u32 {S(sWV)}, 2", f"s_cselect_b32 s7, 1.0, {FH(QSCALE)}",
             f"s_lshl_b32 {S(sT3)}, {S(sWV)}, 8", f"s_add_u32 {S(sT3)}, {S(sT3)}, {MB}", f"v_lshl_add_u32 v94, v0, 2, {S(sT3)}"]
        for i in range(5):
            r = 52 + 4*i; o += sum4(r)
            if i < 2: o.append(f"v_mul_f32 {V(r)}, {FH(QSCALE)}, {V(r)}")
            elif i == 2: o += [f"v_add_f32 {V(r)}, s6, {V(r)}"] + rnd(r) + [f"v_mul_f32 {V(r)}, s7, {V(r)}"]
            else: o += [f"v_add_f32 {V(r)}, 1.0, {V(r)}"] + rnd(r)
            o.append(I(f"ds_write_b32 v94, {V(r)} offset:{1024*i}", "mw"))
        return toI(o)
    def mod_read(): return toI([f"ds_read_b128 {V(r+4*m,4)}, v95 offset:{off + 512*m}" for m in range(5) for r, off in ((MA, 2560), (MS, 0))])
    def red32(r, t):
        o = [f"v_add_f32 {V(r)}, {V(r)}, {V(r)} row_ror:{k}" for k in (1, 2, 4, 8)]
        o += [f"v_mov_b32 {V(t)}, {V(r)}", f"v_permlane16_swap_b32 {V(r)}, {V(t)}", f"v_add_f32 {V(r)}, {V(r)}, {V(t)}"]
        return o
    def h_stats():
        o = []
        for k in range(10):
            o += [f"v_lshlrev_b32 {V(XF+2*k)}, 16, {V(XP+k)}", f"v_and_b32 {V(XF+2*k+1)}, 0xffff0000, {V(XP+k)}"]
        o += [f"v_add_f32 v92, {V(XF)}, {V(XF+1)}", f"v_add_f32 v93, {V(XF+2)}, {V(XF+3)}"]
        for k in range(4, 20): o.append(f"v_add_f32 {V(92 + (k & 1))}, {V(92 + (k & 1))}, {V(XF+k)}")
        o.append("v_add_f32 v92, v92, v93")
        o += red32(92, 93)
        o.append(f"v_mul_f32 v92, {FH(1/640)}, v92")
        for k in range(20): o.append(f"v_sub_f32 {V(XF+k)}, {V(XF+k)}, v92")
        o2 = [f"v_mul_f32 v92, {V(XF)}, {V(XF)}", f"v_mul_f32 v93, {V(XF+1)}, {V(XF+1)}"]
        for k in range(2, 20): o2.append(f"v_fmac_f32 {V(92 + (k & 1))}, {V(XF+k)}, {V(XF+k)}")
        o2.append("v_add_f32 v92, v92, v93")
        o2 += red32(92, 93)
        o2 += [f"v_mov_b32 v93, {FH(1e-5)}", f"v_fmac_f32 v93, {FH(1/640)}, v92", "v_rsq_f32 v93, v93", f"v_mul_f32 v93, {FH(QSCALE)}, v93"]
        for k in range(20): o2.append(f"v_mul_f32 {V(XF+k)}, {V(XF+k)}, v93")
        return toI(o), toI(o2)
    sHs = 61
    def h_addr():
        return toI([f"s_lshr_b32 {S(sHs)}, s2, 4", f"s_lshl_b32 {S(sHs)}, {S(sHs)}, 1", f"s_bfe_u32 {S(sT3)}, s2, 0x10001",
              f"s_add_u32 {S(sHs)}, {S(sHs)}, {S(sT3)}", f"s_mul_i32 {S(sHs)}, {S(sHs)}, {20*4096}",
              f"s_bfe_u32 {S(sT3)}, s2, 0x20002", f"s_lshl_b32 {S(sT3)}, {S(sT3)}, 10", f"s_add_u32 {S(sHs)}, {S(sHs)}, {S(sT3)}",
              f"s_and_b32 {S(sT3)}, s2, 1", f"s_lshl_b32 {S(sT3)}, {S(sT3)}, 7", f"s_add_u32 {S(sHs)}, {S(sHs)}, {S(sT3)}",
              f"s_add_u32 {S(sHs)}, {S(sHs)}, {S(sLw)}", f"s_add_u32 {S(sHs)}, {S(sHs)}, {WS_H}"])
    def h_fin():
        o = []
        for m in range(5):
            for k in range(4*m, 4*m + 4): o.append(f"v_fma_f32 {V(XF+k)}, {V(XF+k)}, {V(MA+k)}, {V(MS+k)}")
            for k in (2*m, 2*m + 1): o.append(f"v_cvt_pk_bf16_f32 {V(24+(k & 3))}, {V(XF+2*k)}, {V(XF+2*k+1)}")
            o.append(f"ds_write_b64 {V(vHo)}, {V(24 + 2*(m & 1), 2)} offset:{2304*m}")
        return toI(o)
    def h_back():
        return toI([f"s_mul_i32 s6, {S(sWV)}, 1152", f"s_add_u32 s6, s6, {MB + 8192}", f"v_add_u32 v92, s6, {V(vL16)}",
                    "v_lshrrev_b32 v93, 3, v0", "v_lshl_add_u32 v92, v93, 4, v92",
                    "v_lshrrev_b32 v93, 5, v0", "v_lshlrev_b32 v93, 12, v93", "v_bfe_u32 v94, v0, 3, 2", "v_lshl_add_u32 v93, v94, 8, v93",
                    "v_and_b32 v94, 7, v0", "v_lshl_add_u32 v93, v94, 4, v93"]), toI([f"ds_read_b128 {V(32+4*k,4)}, v92 offset:{4608*k}" for k in range(3)])
    def h_store():
        o = []
        for k in range(3):
            o.append(f"s_add_u32 {S(sT3)}, {S(sHs)}, {32768*k}")
            if k == 2: o += [f"s_cmp_lt_u32 {S(sWV)}, 2", f"s_cselect_b32 {S(sT3)}, {S(sT3)}, {hex(OOB)}"]
            o.append(I(f"buffer_store_dwordx4 {V(32+4*k,4)}, v93, {sWS}, {S(sT3)} offen sc1", "hs"))
        return toI(o)
    def f_load():
        return toI([f"s_lshl_b32 {S(sT2)}, s2, 8", f"s_add_u32 {S(sT2)}, {S(sT2)}, {WS_MP + 1280*16}", "v_and_b32 v28, 15, v0", "v_lshlrev_b32 v29, 4, v28",
                    f"buffer_load_dwordx4 v[24:27], v29, {sWS}, {S(sT2)} offen sc1"])
    def f_fin():
        return toI(["s_sub_u32 s6, s2, 80", "s_cmp_lt_u32 s6, 40", "s_cselect_b32 s6, 1.0, 0", "s_lshl_b32 s7, s2, 6", f"s_add_u32 s7, s7, {WS_MOD + 1280*4}",
                    "s_cmp_lt_u32 s2, 160", f"s_cselect_b32 s7, s7, {hex(OOB)}", f"s_cmp_eq_u32 {S(sWV)}, 0", f"s_cselect_b32 s7, s7, {hex(OOB)}"]
                   + sum4(24) + ["v_add_f32 v24, s6, v24"] + rnd(24) + ["v_lshlrev_b32 v29, 2, v28", f"buffer_store_dword v24, v29, {sWS}, s7 offen sc1",
                      "s_sub_u32 s6, s2, 40", "s_cmp_lt_u32 s6, 40", "s_cselect_b32 s7, 64, 0", "s_cmp_lt_u32 s6, 40", "s_cselect_b32 s5, 0, 40",
                      "s_sub_u32 s5, s6, s5", "s_lshr_b32 s4, s5, 1", "s_lshl_b32 s4, s4, 7", "s_add_u32 s7, s7, s4", "s_and_b32 s5, s5, 1", "s_lshl_b32 s5, s5, 3",
                      "s_add_u32 s7, s7, s5", f"s_add_u32 s7, s7, {WS_MODB}", "s_cmp_lt_u32 s6, 80", f"s_cselect_b32 s7, s7, {hex(OOB)}",
                      f"s_cmp_eq_u32 {S(sWV)}, 0", f"s_cselect_b32 s7, s7, {hex(OOB)}",
                      "v_lshrrev_b32 v29, 2, v28", "v_lshlrev_b32 v29, 4, v29", "v_and_b32 v28, 3, v28", "v_lshl_add_u32 v29, v28, 1, v29",
                      f"buffer_store_short_d16_hi v24, v29, {sWS}, s7 offen sc1"])
    def seq(sc, ins, start): return sc.seq(ins, start)
    poll_h = f"buffer_load_dword {V(vPoll)}, v11, {sWS}, 0 offen sc1"
    def Hf(buf, ks, qt): return A(96 + 64*buf + 16*ks + 4*qt, 4)
    def ldH(s):
        o = []
        for ks in range(4):
            o.append(f"s_add_u32 {S(sT2)}, {S(sHb if s < 5 - QR else 77)}, {((0 if 'hhit' in drop2 else 4*s) + ks)*4096}")
            for qt in range(4): o.append(f"buffer_load_dwordx4 {Hf(s & 1, ks, qt)}, {V(vL16)}, {sWS}, {S(sT2)} offen offset:{qt*1024} sc1")
        return toI(o)
    tmpi = [0]
    def rno(t): return int(t[2:t.index(":")])
    def pack(t0, t1, dst=None):
        o = []
        def src(t, d=None):
            if t[0] == "v": return rno(t)
            if d is None: d = 24 + 4 * (tmpi[0] % 8); tmpi[0] += 1
            for k in range(4): o.append(f"v_accvgpr_read_b32 {V(d+k)}, {A(rno(t)+k)}")
            return d
        r0 = src(t0, dst); r1 = src(t1)
        cv = lambda d, s: f"v_cvt_pk_bf16_f32 {V(d)}, {V(s)}, {V(s+1)}"
        if t0[0] == "a" and t1[0] == "v":
            o += [cv(r1+3, r1+2), cv(r1+2, r1), cv(r1, r0), cv(r1+1, r0+2)]; return toI(o), r1
        o += [cv(r0, r0), cv(r0+1, r0+2), cv(r0+2, r1), cv(r0+3, r1+2)]; return toI(o), r0
    sG = 36
    def kvstore(reg, isv, u, pl, off):
        return toI([f"s_add_u32 {S(sT3)}, {S(sG + 4*isv + 2*u + pl)}, {off}"]) + [I(f"buffer_store_dwordx4 {reg}, {V(vL16)}, {sWS}, {S(sT3)} offen{KVM}", f"kv{u}")]
    def QWf(buf, ks): return (240 if buf == 0 else 224) + 4*ks
    def rdQW(s, dt): return [f"ds_read_b64_tr_b16 {A(QWf(dt & 1, ks) + 2*hf, 2)}, {V(vRW + dt)} offset:{(s % 3 == 1)*32768 + ks*8192 + hf*1024}"
                             for ks in range(4) for hf in range(2)]
    st1 = []; st0 = []; kwr = []; vwr = []; vpack = []; park = []; vw1 = []
    vKw, vVw = (21, 22), (17, 19)
    def flag(off_ins, srd, imm, vf=vFlag): return toI(off_ins + [f"buffer_atomic_add {V(vOne)}, {V(vf)}, {srd}, {S(sT2)} offen offset:{imm}"])
    def paced(sc, groups, g0, g1):
        g = g0
        for k, gr in enumerate(groups):
            t = max(g, g0 + (k * (g1 - g0)) // len(groups))
            gr = toI(list(gr))
            if EXACT and gr[-1].kind == "vmem":
                e = seq(sc, gr[:-1], max(g, t - len(gr) + 1)) + 1 if len(gr) > 1 else t
                g = sc.putw(gr[-1], max(e, t), max(e, t) + 1) + 1
                sc.seqs.append(gr)
            else: g = seq(sc, gr, t) + 1
        return g
    def vgroups(ins):
        out = [[]]
        for i in ins:
            out[-1].append(i)
            if i.kind == "vmem": out.append([])
        assert not out[-1]; return out[:-1]
    def kv_dma(s):
        d = []
        if s < 7: d += dmaW(s + 1)
        if s < 6: d += dmaC(s + 2)
        if s == 6: d += dmaQ(0)
        if s == 7: d += dmaQ(1)
        return d
    NT = 3
    for s in range(8):
        mf = []
        for o in range(8):
            for kt in range(8):
                for ks in range(2):
                    w = A(Wf(o & 1, ks), 4); c = Cf(s & 1, kt, ks)
                    cin = "0" if (s == 0 and ks == 0) else acc(o, kt)
                    mf.append(MF(acc(o, kt), w, c, cin) if o < 4 else MF(acc(o, kt), c, w, cin))
        sc = Sched(mf)
        if s == 0:
            for n in range(10, 16): sc.put(rdC(0, n >> 1, n & 1), n - 10)
        for o in range(7):
            for k, r in enumerate(rdW(s, o + 1)): sc.put(r, 16*o + k)
            sc.raw(f"@need {A(Wf((o+1) & 1, 0), 8)}", 16*o + 15, "pre")
        d = kv_dma(s)
        sc.raw(([f"@waitvm {d[-1][2].tag}"] if s < 7 else []) + ["s_waitcnt lgkmcnt(0)", "s_barrier"], 111)
        if s < 7:
            for k, r in enumerate(rdW(s + 1, 0)): sc.put(r, 112 + k)
            sc.raw(f"@need {A(Wf(0, 0), 8)}", 127, "pre")
            for n in range(16): sc.put(rdC(s + 1, n >> 1, n & 1), (5 + 6*n) if s else (BA + 1 + ((106 - BA)*n) // 16))
        hooks = {}
        if s == 0:
            sc.raw(["@waitvm C1", "s_waitcnt lgkmcnt(0)", "s_barrier"], BA)
            sc.raw([x for gr in dmaC(1)[NC1:] for x in gr], -1)
            g = paced(sc, d[:8], 10, BA - 2); assert g <= BA + 2, g
            g0 = paced(sc, d[8:], BA + 1, BA + 36)
            g0 = paced(sc, ([] if HOP else pf0[2:]) + vgroups(m_c()) + (vgroups(m_dma()) if MS0 else []), g0, 126 if MS0 else 110); assert g0 < 129, g0
            seq(sc, h_setup(), 20)
        elif s < 7: g0 = paced(sc, d[(0 if s == 1 and MS0 else NT):], 0, END + (10 if s == 1 and MS0 else 0))
        if s < 7 and not (s == 0 and MS0): paced(sc, kv_dma(s + 1)[:NT], 116, 127)
        def m_part(g):
            g = seq(sc, m_reads(), g)
            sc.raw(m_mfma(), g + 6)
            return seq(sc, toI([f"v_mov_b32 {V(vZero)}, 0", "v_and_b32 v90, 31, v0", "v_lshlrev_b32 v90, 7, v90", f"s_lshl_b32 s6, s2, 12",
                             f"s_cmp_lt_u32 s2, 80", f"s_cselect_b32 s6, s6, {hex(OOB)}",
                             f"s_cmp_eq_u32 {S(sWV)}, 0", f"s_cselect_b32 s6, s6, {hex(OOB)}",
                             f"s_add_u32 s6, s6, {WS_FLG}", f"buffer_store_dword {V(vZero)}, v90, {sWS}, s6 offen sc1"]) + m_store(), g + 2)
        def m_arrive(gm):
            sc.raw(["@waitvm ms", "s_barrier"], gm)
            return seq(sc, flag([f"s_lshl_b32 {S(sT2)}, {S(sKq)}, 6", f"s_cmp_lt_u32 s2, 80", f"s_cselect_b32 {S(sT2)}, {S(sT2)}, {hex(OOB)}"], sDBG, 0), gm + 1)
        if s == 1:
            g = seq(sc, m_silu(), 4)
            if MS0:
                sc.raw(["@waitvm m", "s_barrier"], g + 1)
                paced(sc, [pfW(t) for t in PFA], g0, g0 + 4*len(PFA))
                assert m_part(g + 2) < 128
            else: assert paced(sc, [pfW(1)] + vgroups(m_dma()), g0, 112) < 117
        if s == 2:
            if MS0:
                g = m_arrive(MW)
                assert paced(sc, vgroups(h_loadx()) + [pfW(t) for t in (1, 2, 3) if t not in PFA], max(g, g0) + 1, g0 + 26) < 111
            else:
                sc.raw(["@waitvm m", "s_barrier"], 30)
                assert m_part(31) < 80
                assert paced(sc, [pfW(2)] + vgroups(h_loadx()), max(g0, 80), 110) < 114
                m_arrive(113)
        if s == TLB:
            paced(sc, [toI(["v_lshlrev_b32 v91, 21, v0", "s_mov_b32 s4, 0x1fff80", f"buffer_load_dword {V(vDum)}, v91, {sWS}, s4 offen"])], g0, g0 + 1)
        if s == 3:
            seq(sc, [f"v_and_b32 {V(vZero)}, 3, v0", f"v_lshlrev_b32 {V(vZero)}, 6, {V(vZero)}"], 0)
            gp = sc.put(poll_mod, PMG); assert gp < PMG + 8
            sc.raw("@mark pm", gp + 30, "post2"); hooks["pm"] = lambda: spin(name + "_pm", vPoll, poll_mod, 20)
            fl = flag([f"s_and_b32 {S(sT2)}, {S(sCG)}, 7", f"s_lshl_b32 {S(sT2)}, {S(sT2)}, 7", f"s_add_u32 {S(sT2)}, {S(sT2)}, {WS_FLG + FL_M*128}",
                       f"s_sub_u32 s5, s2, 80", f"s_cmp_lt_u32 s5, 160", f"s_cselect_b32 {S(sT2)}, {S(sT2)}, {hex(OOB)}"], sWS, 0)
            assert paced(sc, vgroups(mp_load()) + [fl], gp + 31, min(gp + 56, 126)) < 129
            assert seq(sc, h_addr(), 0) < gp + 30
            assert seq(sc, h_stats()[0] + h_stats()[1], 4) < 128
        if s == 4:
            paced(sc, [pfQ(0)] + ([pfQ(1)] if PQ4 else []), g0, g0 + 2)
            g = seq(sc, mp_sum(), MSG)
            sc.raw(["@waitlg mw", "s_barrier"], g + 4, "pre")
            gr = g + 5; mr = mod_read(); hf_ = h_fin(); pos = []
            for m in range(5): gr = seq(sc, mr[2*m : 2*m + 2], gr) + 1; pos.append(gr)
            for m in range(5): g = seq(sc, hf_[7*m : 7*m + 7], max(g + 1, pos[m] + 5))
            assert g < 108, g
            hb = h_back(); assert seq(sc, hb[0], 60) < 111
            seq(sc, hb[1], 116)
        if s == 5:
            g = paced(sc, vgroups(h_store()), 2, 30)
            seq(sc, [f"v_and_b32 {V(vZero)}, 7, v0", f"v_lshlrev_b32 {V(vZero)}, 7, {V(vZero)}", f"v_add_u32 {V(vZero)}, {WS_FLG + FL_M*128}, {V(vZero)}"], 30)
            assert sc.put(poll_mo2, 40) < 60
            fl = flag([f"s_lshr_b32 {S(sT2)}, s2, 4", f"s_lshl_b32 {S(sT2)}, {S(sT2)}, 7", f"s_add_u32 {S(sT2)}, {S(sT2)}, {WS_FLG + FL_H*128}", "@waitvm hs"], sWS, 0, vFlagW)
            assert paced(sc, [fl] + ([] if PQ4 else [pfQ(1)]), HA or g0, (HA or g0) + 8) < 100
            sc.raw("@mark p2", 111); hooks["p2"] = lambda: spin(name + "_p2", vPoll, poll_mo2, 20)
        if s == 6:
            assert paced(sc, dmaQ(2), g0, 112) < 117
            seq(sc, f_load(), 2)
            sc.put(poll_h, 126, force=True)
            g = seq(sc, f_fin(), 40)
            ga = []
            for isv, (base, rel) in enumerate(((sKb, sK1), (sVb, sV1))):
                for u, blk in enumerate((sBLK, sBLK2)):
                    ga += [f"s_lshl_b32 {S(sT3)}, {S(blk)}, 15", f"s_add_u32 {S(sT3)}, {S(sT3)}, {S(base)}"]
                    ga += [f"s_add_u32 {S(sG + 4*isv + 2*u + pl)}, {S(sT3)}, {S(rel + pl)}" for pl in range(2)]
            ga += [f"v_add_u32 {V(vKw[pl])}, {S(sK1+pl)}, {V(vL16)}" for pl in range(2)]
            ga += [f"v_add_u32 {V(vVw[pl])}, {S(sV1+pl)}, {V(vL16)}" for pl in range(2)] + [f"v_add_u32 {V(vVw[pl])}, 65536, {V(vVw[pl])}" for pl in range(2)]
            seq(sc, ga, 76)
        if s == 7:
            g = paced(sc, d[NT:], 0, PHG - 2)
            sc.raw("@mark ph", PHG, "post2"); hooks["ph"] = lambda: spin(name + "_ph", vPoll, poll_h, 64)
            assert paced(sc, vgroups(ldH(0)), PHG + 1, 104) < 112
            qa = [f"s_lshr_b32 s6, {S(sWV)}, 1", f"s_lshl_b32 s6, s6, 7", f"s_add_u32 s6, s6, 65536", f"v_xor_b32 {V(vRW)}, s6, {V(vRW)}"]
            qa += [f"v_xor_b32 {V(vRW+n)}, {32*n}, {V(vRW)}" for n in range(1, 8)]
            assert seq(sc, toI(qa), 101) < 112
            for k, r in enumerate(rdQW(0, 0)): sc.put(r, 112 + k)
            g = 0
            for kt in range(8):
                g = seq(sc, [f"v_accvgpr_read_b32 {V(64+4*kt+k)}, {A(4*kt+k)}" for k in range(4)]
                        + [f"v_cvt_pk_bf16_f32 {V(64+4*kt+k)}, {V(64+4*kt+2*k)}, {V(65+4*kt+2*k)}" for k in range(2)], max(g, 2*kt + 6))
            for a in range(2):
                for kt in range(8):
                    u, pl = kt >> 2, (kt >> 1) & 1
                    ins, r = pack(acc(2*a, kt), acc(2*a+1, kt), 64 + 4*kt if a == 0 else None)
                    if a == 0: ins = ins[4:8] + ins[10:]
                    off = ((kt & 1)*4 + a)*1024
                    kwr.append(f"ds_write_b128 {V(vKw[pl])}, {V(r,4)} offset:{u*32768 + off}")
                    if a == 0 and u == 0:
                        park += [f"v_accvgpr_write_b32 {A(4*kt+k)}, {V(r+k)}" for k in range(4)]
                        st0.append(kvstore(A(4*kt, 4), 0, u, pl, off))
                    elif a == 0 and kt - 4 < S7: ins += kvstore(V(r, 4), 0, u, pl, off)
                    else: (st1 if u else st0).append(kvstore(V(r, 4), 0, u, pl, off))
                    g = seq(sc, ins, max(g, 16*(2*a+1) + 2*kt + 6))
            for o in range(4, 8):
                for p in range(4):
                    u, pl = p >> 1, p & 1
                    ins, r = pack(acc(o, 2*p), acc(o, 2*p+1))
                    off = (o-4)*2048
                    (st1 if u else st0).append(kvstore(V(r, 4), 1, u, pl, off))
                    if u == 0: vwr.append(f"ds_write_b128 {V(vVw[pl])}, {V(r,4)} offset:{32768 + off}")
                    else: vw1.append((r, f"ds_write_b128 {V(vVw[pl])}, {V(r,4)} offset:{off}"))
                    vpack.append(ins)
        emit_split(sc, hooks)
        if fine is True and s < 7: T.stamp(b, f"kv{s}")
    T.stamp(b, "kvend")
    def qacc(dt, qt):
        i = dt*4 + qt
        return 32 + 4*i if i < 8 else (128 + 8*(i - 8) + 4 if i < 24 else 64 + 4*(i - 24))
    vKr, vVr, vDm, vQw, vQr = 1, 2, 5, 6, 24
    qsetup = toI([f"""
    s_lshl_b32 s6, {S(sHD)}, 7
    s_add_u32 s6, s6, {WS_FLG + FL_KV*128}
    v_mov_b32 v25, s6
    s_lshr_b32 s6, {S(sWV)}, 1
    s_lshl_b32 s7, s6, 14
    v_add_u32 {V(vKr)}, s7, {V(vL16)}
    v_add_u32 {V(vVr)}, 65536, {V(vKr)}
    v_add_u32 {V(vDm)}, {S(sLw)}, {V(vL16)}
    s_and_b32 s7, {S(sWV)}, 1
    s_lshl_b32 s7, s7, 14
    s_add_u32 s7, s7, 65536
    v_add_u32 {V(vQr)}, s7, {V(vL16)}
    s_lshl_b32 s6, s6, 16
    v_add_u32 {V(vQw)}, s6, {V(vQr)}
    """])
    def dmaKV(isv, slot, soff, tag, sl=sLw):
        base = (65536 + (slot ^ 1)*32768) if isv else slot*32768
        o = []
        for hf in range(2):
            o.append(I(f"s_add_u32 m0, {S(sl)}, {base + hf*4096}"))
            if hf: o.append(I(f"s_add_u32 {S(soff)}, {S(soff)}, 4096"))
            for i in range(4): o.append(I(f"buffer_load_dwordx4 {V(vDm)}, {sWS}, {S(soff)} offen offset:{i*1024}{KVL} lds", tag))
        return o
    sR0, sKu, sUa, sUb = 57, 60, 70, 62
    sA0, sA1, sAl = 63, 78, 77
    def unit_diag(dst, base): return [f"s_lshl_b32 {S(dst)}, {S(sBLK)}, 15", f"s_add_u32 {S(dst)}, {S(dst)}, {S(base)}"]
    def unit_r0(dst, base): return [f"s_lshl_b32 {S(dst)}, {S(sR0)}, 15", f"s_add_u32 {S(dst)}, {S(dst)}, {S(base)}"]
    assert sum(QST) + S7 == 16
    def pf_code(tag, vt, vd):
        return toI([f"s_getpc_b64 s[4:5]", f"{name}_pc{tag}:", f"s_lshr_b32 s6, s2, 3", f"s_lshl_b32 s6, s6, 2", f"s_add_u32 s6, s6, {S(sWV)}", f"s_lshl_b32 s6, s6, 9",
                    f"v_and_b32 {V(vt)}, 3, v0", f"v_lshl_add_u32 {V(vt)}, {V(vt)}, 7, s6", f"v_min_u32 {V(vt)}, code_end - {name}_pc{tag} - 4, {V(vt)}",
                    f"global_load_dword {V(vd)}, {V(vt)}, s[4:5]"])
    for s in range(5):
        mf = []
        for dt in range(8):
            for qt in range(4):
                for ks in range(4):
                    d = V(qacc(dt, qt), 4)
                    mf.append(MF(d, A(QWf(dt & 1, ks), 4), Hf(s & 1, ks, qt), "0" if (s == 0 and ks == 0) else d))
        sc = Sched(mf)
        for dt in range(7):
            for k, r in enumerate(rdQW(s, dt + 1)): sc.put(r, 16*dt + k)
            sc.raw(f"@need {A(QWf((dt+1) & 1, 0), 16)}", 16*dt + 15, "pre")
        sc.raw([f"@waitvm Q{s+1}", "s_waitcnt lgkmcnt(0)", "s_barrier"], 111)
        if s < 4:
            for k, r in enumerate(rdQW(s + 1, 0)): sc.put(r, 112 + k)
            sc.raw(f"@need {A(QWf(0, 0), 16)} {A(96 + 64*((s+1) & 1), 64)}", 127, "pre")
        ld = ((dmaQ(3) + dmaQ(4))[QD[s-1] : QD[s]] if 1 <= s < 4 else []) + (vgroups(ldH(s + 1)) if s < 4 else [])
        if s in (1, 2):
            for dt in range(8): sc.put(f"v_xor_b32 {V(vRW + dt)}, 0x30000, {V(vRW + dt)}", max(16*(dt - 1) + 8, 8))
        if s < 2:
            g = 8
            for w in kwr[8*s : 8*s + 8]: g = sc.put(w, g) + DWS
            assert g < 95
        if s < 4:
            mine = st1[sum(QST[:s]) : sum(QST[:s+1])]
            if s == 0:
                g = paced(sc, mine[:4-S7], 0, 6*(4-S7)); g = paced(sc, ld, g, QEND); mine = mine[4-S7:]
            else: g = paced(sc, ld, 0, QEND)
            if mine: assert paced(sc, mine, g, 126) < 129
        if s == 0:
            g = 0
            for k, ins in enumerate(vpack):
                g = seq(sc, ins, g); assert g < 32 + 4*k - 2, (k, g)
            assert seq(sc, park, g) < 94
        if s == 3: seq(sc, qsetup + toI([f"s_mov_b32 {S(sR0)}, {S(sJ)}"]), 40)
        if s == 3 and CPF: sc.raw(pf_code("q", 27, vDum), 126)
        if s == 4:
            sc.raw("@waitvm kv1", QF)
            g = seq(sc, flag([f"s_lshl_b32 {S(sT2)}, {S(sHD)}, 7", f"s_add_u32 {S(sT2)}, {S(sT2)}, {WS_FLG + FL_KV*128}"], sWS, 0, vFlagW), QF + 1)
            g = paced(sc, st0[:QB], g + 1, 110)
            g = 0; gw = 0
            for ds in range(4):
                for qt in range(4):
                    r0, r1 = qacc(2*ds, qt), qacc(2*ds+1, qt)
                    seq(sc, toI([f"v_cvt_pk_bf16_f32 {V(r0)}, {V(r0)}, {V(r0+1)}", f"v_cvt_pk_bf16_f32 {V(r0+1)}, {V(r0+2)}, {V(r0+3)}"]), 16*(2*ds) + 4*qt + 9)
                    g = seq(sc, toI([f"v_cvt_pk_bf16_f32 {V(r0+2)}, {V(r1)}, {V(r1+1)}", f"v_cvt_pk_bf16_f32 {V(r0+3)}, {V(r1+2)}, {V(r1+3)}"]),
                            max(g, 16*(2*ds+1) + 4*qt + 8))
                    gw = sc.putw(f"ds_write_b128 {V(vQw)}, {V(r0, 4)} offset:{(ds*4+qt)*1024}", max(g + 1, gw), max(g + 1, gw) + 2) + 4
            for k in range(3): sc.raw(vwr[k], 112 + 4*k)
            sc.raw([x for gr in st0[QB:10] for x in gr], 999)
        out = sc.emit()
        if "qtr" in drop: out = [i for i in out if "_tr_" not in i.op]
        if "qvm" in drop: out = [i for i in out if not (i.kind == "vmem" and "load" in i.op)]
        if "qst" in drop: out = [i for i in out if not (i.kind == "vmem" and "store" in i.op)]
        if "qdw" in drop: out = [i for i in out if not i.op.startswith("ds_write")]
        b(out)
        if fine is True and s < 4: T.stamp(b, f"q{s}")
    T.stamp(b, "qend")
    def O(dt, qt): return 128 + 16*dt + 4*qt
    def P(buf, kp, qt): return 64 + 32*buf + 16*kp + 4*qt
    def Sw(i): return 48 + 4*(i & 3)
    def NM(qt): return 32 + 4*qt
    def Lr(qt): return 164 + 4*qt
    MK, TC = 8, 12
    vL, vXp, vPa, vPk = 3, 4, 6, 7
    vX, vLx, vQa, vQb = 17, 18, 21, 22
    def Qf(ds, qt): return A(16*ds + 4*qt, 4)
    def Kf(kt, ds): return A(64 + 16*kt + 4*ds, 4)
    def Vf(dt, kp): return A(128 + 8*(dt & 3) + 4*kp, 4)
    ONES = A(160, 4)
    sTop = 76; NCX = 8; sXa = 36
    sLk = 80
    att = fine in ("att0", "att1"); cnd = f"s_cmp_eq_u32 {S(sPass)}, {str(fine)[-1]}"
    def ST(nm):
        if not att: return
        if nm in T.names:
            n = T.n; T.n = T.names.index(nm); T.stamp(b, nm, cnd); T.names.pop(); T.n = n
        else: T.stamp(b, nm, cnd)
    def rdK(slot, kt, ds): return f"ds_read_b128 {Kf(kt, ds)}, {V(vKr)} offset:{slot*32768 + (kt*4+ds)*1024}"
    def rdK0(kt, ds): return rdK(0, kt, ds)
    def rdV(slot, dt, kp): return f"ds_read_b128 {Vf(dt, kp)}, {V(vVr)} offset:{(slot ^ 1)*32768 + (dt*2+kp)*1024}"
    def rdQ(base, ds, qt): return f"ds_read_b128 {A(base + 16*ds + 4*qt, 4)}, {V(vQb if qt >> 1 else vQa)} offset:{ds*4096 + (qt & 1)*1024}"
    poll_kv = f"buffer_load_dword {V(vPk)}, {V(vPa)}, {sWS}, 0 offen sc1"
    b([rdK0(0, ds) for ds in range(4)])
    b(f"s_load_dwordx2 {S(WU,2)}, s[0:1], {ARG['wo']}")
    RT, RO, RS = R["wuk"], R["wuv"], R["ckv"]
    for r_, n_ in ((RT, "win"), (RO, "wout"), (RS, "wsp"), (R["dbg"], "x")):
        b(f"s_load_dwordx2 {S(r_,2)}, s[0:1], {ARG[n_]}"); b(f"s_mov_b32 {S(r_+2)}, {hex(SIZE[n_])}")
    b(f"""
    s_mov_b32 {S(WU+2)}, {hex(SIZE['wo'])}
    v_mov_b32 {V(vL)}, {V(vL16)}
    s_lshr_b32 {S(sT2)}, {S(sWV)}, 1
    s_lshl_b32 {S(sT2)}, {S(sT2)}, 11
    v_add_u32 {V(vQa)}, {S(sT2)}, {V(vQr)}
    v_xor_b32 {V(vQb)}, 0x800, {V(vQa)}
    s_lshl_b32 {S(sA0)}, {S(sBLK2)}, 15
    s_add_u32 {S(sA0)}, {S(sA0)}, {S(sKb)}
    s_mov_b32 {S(sA1)}, {S(sKb)}
    s_mov_b32 {S(sAl)}, {S(sLw)}
    v_mov_b32 v12, 0x3f803f80
    s_mov_b32 {S(sPass)}, 0
    s_mov_b32 {S(sTop)}, 131072
    v_mov_b32 {V(vPa)}, v25
    """)
    for r in range(4): b(f"v_accvgpr_write_b32 {A(160+r)}, v12")
    def masks(first, t0=28):
        o = [f"""
        v_lshrrev_b32 {V(t0)}, 4, v0
        v_lshlrev_b32 {V(t0)}, 2, {V(t0)}
        v_and_b32 {V(t0+1)}, 15, v0
        v_sub_u32 {V(t0)}, {V(t0+1)}, {V(t0)}
        s_and_b32 s7, {S(sWV)}, 1
        s_lshl_b32 s7, s7, 4
        v_add_u32 {V(t0)}, s7, {V(t0)}
        v_mov_b32 {V(t0+1)}, {FH(NEGBIG)}
        """]
        for base, dst in ([(0, MK)] if first else []) + [(16, TC)]:
            for r in (0, 2):
                o += [f"v_cmp_gt_i32 vcc, {base + r}, {V(t0)}", f"v_cmp_gt_i32 {S(sMK,2)}, {base + r + 1}, {V(t0)}", "v_nop",
                      f"v_cndmask_b32 {V(dst+r)}, 0, {V(t0+1)}, vcc", f"v_cndmask_b32 {V(dst+r+1)}, 0, {V(t0+1)}, {S(sMK,2)}"]
        return toI(o)
    b(masks(True))
    b(poll_kv.replace(f'dword {V(vPk)},', 'dword v26,'))
    for r in range(16): b(f'v_mov_b32 {V(NM(0)+r)}, 0')
    b("s_waitcnt lgkmcnt(0)"); b("s_barrier")
    for qt in range(4):
        for ds in range(4):
            b(rdQ(0, ds, qt))
            if HOP and (qt, ds) == (3, 1): b("@hop b")
    b(vwr[3:])
    b(f"v_add_u32 {V(vQa)}, 65536, {V(vQa)}"); b(f"v_add_u32 {V(vQb)}, 65536, {V(vQb)}")
    def softmax_ops(si, pbuf, kt, qt):
        s = Sw(si); p = P(pbuf, kt >> 1, qt) + 2*(kt & 1)
        return ([f"v_exp_f32 {V(s+r)}, {V(s+r)}" for r in range(4)],
                [f"v_cvt_pk_bf16_f32 {V(p)}, {V(s)}, {V(s+1)}", f"v_cvt_pk_bf16_f32 {V(p+1)}, {V(s+2)}, {V(s+3)}"])
    def place_softmax(sc, ops, start, stride):
        ex, cv = ops; g = start; gs = []
        for e in ex:
            g = sc.put(e, g); gs.append(g); g += stride
        return [(cv[0], gs[1] + 1), (cv[1], gs[3] + 1)]
    def diag_active(kg): return [(kp, q) for kp in range(2) for q in range(4) if (3 - kg if kp else kg) <= (q ^ (2*kg))]
    def next_k_dma(slot, ahead=2):
        return toI([f"s_mov_b32 {S(sUa)}, {S(sUb)}", f"s_mov_b32 {S(sUb)}, {S(sKu)}",
                    f"s_lshl_b32 {S(sKs)}, {S(sKu)}, 15", f"s_add_u32 {S(sKs)}, {S(sKs)}, {S(sKb)}", f"s_add_u32 {S(sKu)}, {S(sKu)}, 1",
                    f"s_cmp_eq_u32 {S(sKu)}, {S(sR0)}", f"s_addc_u32 {S(sKu)}, {S(sKu)}, 0", f"s_add_u32 {S(sT2)}, {S(sN)}, {ahead}",
                    f"s_cmp_gt_u32 {S(sBLK)}, {S(sT2)}", f"s_cselect_b32 {S(sKs)}, {S(sKs)}, {S(sA1 if slot else sA0)}",
                    f"s_cmp_gt_u32 {S(sBLK)}, {S(sT2)}", f"s_cselect_b32 {S(sLk)}, {S(sLw)}, {S(sAl)}"]) + dmaKV(0, slot, sKs, "k", sLk)
    def next_v_dma(slot):
        return toI([f"s_lshl_b32 {S(sVs)}, {S(sUa)}, 15", f"s_add_u32 {S(sVs)}, {S(sVs)}, {S(sVb)}"]) + dmaKV(1, slot, sVs, "v")
    def next_reads(n_par):
        rd = []
        for k in range(4): rd += [rdK(n_par, 0, k), rdV(n_par ^ 1, k >> 1, k & 1)]
        return rd
    def qk_diag(kg):
        act = diag_active(kg); tiles = []; zero = []
        for kt in range(4):
            p = 3 - kg if kt >> 1 else kg
            for q in range(4):
                if (kt >> 1, q) in act: tiles.append((kt, q, p == (q ^ (2*kg))))
        mf = []
        for i, (kt, q, dg) in enumerate(tiles):
            for ds in range(4):
                mf.append(MF(V(Sw(i), 4), Kf(kt, ds), Qf(ds, q), V(Sw(i), 4) if ds else V(Sw(i) if dg else NM(q), 4)))
        n = len(mf)
        sc = Sched(mf)
        g = 0
        for kt in sorted({t[0] for t in tiles} - {0}):
            for ds in range(4): g = sc.put(rdK0(kt, ds), g, force=True) + 1
        gb = max(g + 5, 4 * max(i for i, t in enumerate(tiles) if t[0] == 0) + 4, n - 10)
        init = []
        for kt, q in zero:
            p = P(0, kt >> 1, q) + 2*(kt & 1); init += [f"v_mov_b32 {V(p)}, 0", f"v_mov_b32 {V(p+1)}, 0"]
        if kg == 1: init += [f"v_accvgpr_write_b32 {A(Lr(2)+r)}, 0" for r in range(4)]
        for i, (kt, q, dg) in enumerate(tiles):
            if dg:
                for r in range(4): sc.raw(f"v_add_f32 {V(Sw(i)+r)}, {V(NM(q)+r)}, {V((TC if kt & 1 else MK)+r)}", -1 if i < 4 else 4*i - 4 + r // 2, "post2")
        sc.raw(init, -1)
        for i, (kt, q, dg) in enumerate(tiles):
            ex, cv = softmax_ops(i, 0, kt, q)
            for r in range(4): sc.raw(ex[r], 4*i + 7 + r)
            sc.raw(cv[0], 4*i + 10, "post"); sc.raw(cv[1], 4*i + 11, "post2")
        for i, (kt, q, dg) in enumerate(tiles):
            sc.raw(f"@need {A(64 + 16*kt, 16)} " + " ".join(Qf(ds, q) for ds in range(4)), 4*i - 1, "pre")
        sc.raw(["@waitvm v", "s_waitcnt lgkmcnt(0)", "s_barrier"], gb, "post2")
        for k, r in enumerate(next_reads(1)): sc.raw(r, gb + 1 + k, "pre")
        assert gb + 8 < n
        sc.seq(next_k_dma(0, 1)[:12], 14)
        return sc.emit()
    def iteration(par, qk, pv, carry, exit_lab=None, side=None, first=False):
        act = [(kp, q) for kp in range(2) for q in range(4)] if pv == "full" else diag_active(pv)
        fresh = pv != "full"
        def chain(dst, a, q):
            m = []; f = fresh
            for kp in range(2):
                if (kp, q) in act: m.append(MF(dst, a(kp), V(P(par, kp, q), 4), "0" if f else dst)); f = False
            return m
        groups = []
        for g in range(16):
            m = []
            if qk:
                kt, q = g >> 2, g & 3
                for ds in range(4): m.append(MF(V(Sw(g), 4), Kf(kt, ds), Qf(ds, q), V(Sw(g), 4) if ds else V(NM(q), 4)))
            dt = g >> 1
            if qk and fresh:
                order = sorted(range(4), key=lambda q: -sum((kp, q) in act for kp in range(2)))
                qs = (order[0], order[3]) if g & 1 else (order[1], order[2])
            else: qs = (2*(g & 1), 2*(g & 1) + 1)
            for q in qs: m += chain(V(O(dt, q), 4), lambda kp: Vf(dt, kp), q)
            if qk and g % 4 == 2: m += chain(A(Lr(g >> 2), 4), lambda kp: ONES, g >> 2)
            if not qk and g in (2, 4, 6, 8): m += chain(A(Lr(g // 2 - 1), 4), lambda kp: ONES, g // 2 - 1)
            groups.append(m)
        st = [0]
        for m in groups: st.append(st[-1] + len(m))
        n = st[16]
        sc = Sched([x for m in groups for x in m])
        if qk and not fresh:
            cvs = place_softmax(sc, softmax_ops(15, par, 3, 3), 0, 2)
            for g in range(15): cvs += place_softmax(sc, softmax_ops(g, par ^ 1, g >> 2, g & 3), st[g+1], 2)
            for c, e in cvs: sc.put(c, e)
            for sp in range(4):
                rd = next_reads(par) if sp == 3 else [x for k in range(4) for x in (rdK(par ^ 1, sp + 1, k), rdV(par, 2*sp + 2 + (k >> 1), k & 1))]
                rd = rd[0::2] + rd[1::2]
                pos = [st[4*sp + gg] + o for gg in range(4) for o in ((1, 3, 7) if sp == 2 else (3, 7))]
                for r, p in zip(rd, pos): assert sc.put(r, p) == p
                if sp != 2: sc.raw("s_waitcnt lgkmcnt(1)", st[4*sp + 4] - 1, "pre")
                sc.raw(f"@need {A(128 + 8*((2*sp + 1) & 3), 8)}", st[4*sp + 2] + 2, "pre")
            gv = sc.seq(next_v_dma(par ^ 1), 0 if side else V0, 4 if side else VST)
            sc.raw(["@waitvm v", "s_waitcnt lgkmcnt(0)", "s_barrier"], st[12] - BPOS, "pre" if BPOS == 3 else "post")
            kd = next_k_dma(par ^ 1)
            g = sc.seq(kd[:12], st[11] - 8) ; assert g < st[12] - BPOS
            g = sc.seq(kd[12:], st[12] - BPOS + 1, KST); assert g < n - 2, g
            if side: side(sc, st, gv)
        elif qk:
            cvs = []
            for g in range(15):
                ex, cv = softmax_ops(g, par ^ 1, g >> 2, g & 3)
                lo, ln = st[g+1] + 1, st[g+2] - st[g+1]
                ps = [lo + (r * ln) // 4 for r in range(4)]
                for e, p in zip(ex, ps): sc.put(e, p, force=True)
                cvs += [(cv[0], ps[1] + 1, ps[1] + 5), (cv[1], ps[3] + 1, ps[3] + 4)]
            dm = vgroups(next_k_dma(0, 1) + ([] if first else next_v_dma(1))); g = 0
            free_at = {}
            if first:
                firstw = lambda r: min([k for k, x in enumerate(sc.mf) if x.split()[1] == V(r, 4) + ","] + [st[11]])
                for k, (r, w) in enumerate(vw1):
                    hi = firstw(r) - 1
                    lo = max(0, min(hi - 4, 8*k))
                    free_at[r] = sc.putw(w, lo, min(hi, lo + 4))
                for k, gr in enumerate(st0[10:]):
                    gr = toI([x.t.replace(f", {V(vL16)},", f", {V(vL)},") for x in gr]); gr[-1].tag = "kv0"
                    r = rno(gr[-1].t.split()[1]); hi = min(firstw(r) - 1, st[4*(k//2) + 4] - 1)
                    lo = hi - (4 if k & 1 else 16)
                    free_at[r] = gg = sc.putw(gr[-1], lo, lo + 3)
                    sc.raw(gr[0], gg - 1, "post")
            dm[0] = dm[0][12:]
            for k, gr in enumerate(dm):
                lo = max(g, (k * (st[9] - 4)) // 16)
                if len(gr) > 1: lo = sc.seq(gr[:-1], lo)
                g = sc.putw(gr[-1], lo + 1, lo + 4) + 1
            if pv == 1:
                for dt in range(8):
                    for r in range(4): sc.putw(f"v_mov_b32 {V(O(dt, 2)+r)}, 0", free_at.get(O(dt, 2), 0) + 2, n - 3)
            sc.raw(["@waitvm k" if first else "@waitvm v", "s_waitcnt lgkmcnt(0)", "s_barrier"], st[12] - 1)
            kd = next_k_dma(1)
            assert g < st[10] and sc.seq(kd[:12], st[10]) < st[12]
            g = st[12]
            for k, gr in enumerate(vgroups(kd[12:])):
                lo = max(g, st[12] + (k * (n - 4 - st[12])) // 8)
                for x in gr[:-1]: sc.raw(x, lo, "pre")
                g = sc.putw(gr[-1], lo + 1, lo + 2) + 1
            assert g < n
            for sp in range(4):
                rd = next_reads(par) if sp == 3 else [x for k in range(4) for x in (rdK(par ^ 1, sp + 1, k), rdV(par, 2*sp + 2 + (k >> 1), k & 1))]
                lo, hi = st[4*sp], st[4*sp + 3] + 1
                for k, r in enumerate(rd): sc.putw(r, lo + (k * (hi - lo)) // 8, lo + ((k + 1) * (hi - lo)) // 8)
                if sp != 2: sc.raw("s_waitcnt lgkmcnt(0)", st[4*sp + 4] - 1, "pre")
            for c, lo, hi in cvs: sc.putw(c, lo, min(hi, n - 1))
        else:
            if pv == 1:
                for k in range(32): sc.raw(f"v_mov_b32 {V(O(k >> 2, 2) + (k & 3))}, 0", k)
            if carry:
                ex, cv = softmax_ops(15, par, 3, 3)
                sc.raw(ex[:2], -1); sc.raw(ex[2], 0); sc.raw(ex[3], 1); sc.raw(cv[0], 2); sc.raw(cv[1], 3)
            for g in range(12): sc.put(rdV(par, (g >> 1) + 2, g & 1), st[g], force=True)
            busy, idle = 65536 + (par ^ 1)*32768, 65536 + par*32768
            sc.raw([f"v_add_u32 {V(vX)}, {S(sXa + par)}, {V(vL)}"], 2); sc.raw([f"v_add_u32 {V(vXp)}, {S(sXa + 2 + par)}, {V(vL)}"], 3)
            sc.raw([f"s_lshl_b32 {S(sT2)}, {S(sWV)}, 10"], 4, "pre")
            sc.raw([f"v_add_u32 {V(vLx)}, {busy}, {V(vL)}", f"v_add_u32 v19, {S(sT2)}, {V(vLx)}"], 5)
            gb = st[12] + 2
            sc.raw([f"@need {A(128, 32)}", "s_barrier"], gb, "pre")
            g = 0
            for dt in range(8):
                for q in range(2):
                    lastm = max(k for k, x in enumerate(sc.mf) if x.split()[1] == V(O(dt, q), 4) + ",")
                    g = sc.put(f"ds_write_b128 {V(vX)}, {V(O(dt, q), 4)} offset:{(q*8+dt)*1024}", max(g, lastm + 6, 6)) + 3
            lastl = max(k for k, x in enumerate(sc.mf) if x.split()[1].startswith("a["))
            gl = sc.seq([f"v_accvgpr_read_b32 {V(28+q)}, {A(Lr(q))}" for q in range(4)], lastl + 6)
            sc.put(f"ds_write_b128 v19, v[28:31]", max(gl + 1, gb + 1))
            if side: side(sc, st, 0)
        if qk:
            sc.raw(f"s_add_u32 {S(sN)}, {S(sN)}, 1", n - 2, "pre")
            if exit_lab: sc.raw(f"s_cmp_eq_u32 {S(sN)}, {S(sBLK)}", n - 1, "pre"); sc.raw(f"s_cbranch_scc1 {exit_lab}", 999)
        out = sc.emit()
        if drop and qk and pv == "full":
            out = [i for i in out if not (("dma" in drop and i.kind == "vmem") or ("bar" in drop and i.op == "s_barrier") or ("ds" in drop and i.kind == "ds")
                                          or ("exp" in drop and i.op == "v_exp_f32") or ("cvt" in drop and i.op.startswith("v_cvt")) or ("vmw" in drop and i.kind == "wait"))]
        return out
    reent = State(vm=[(set(), "v", False)] + [(set(), "cx", False)] * NCX)
    b.label(name + "_blk", b.flush() + [reent])
    b(f"s_mov_b32 {S(sSafe)}, 0")
    ST("qrd")
    b.label(name + "_retry", b.flush() + [reent])
    b(f"""
    s_mov_b32 {S(sN)}, 0
    s_mov_b32 {S(sUb)}, {S(sR0)}
    s_cmp_eq_u32 {S(sR0)}, 0
    s_cselect_b32 {S(sKu)}, 1, 0
    s_cmp_ge_u32 {S(sWV)}, 2
    s_cbranch_scc1 {name}_d2
    """)
    pre = b.flush()
    gen0 = {}
    def diag_tail(kg):
        ST("diag")
        b(f"s_or_b32 {S(sT2)}, {S(sPass)}, {S(sSafe)}"); b(f"s_cmp_lg_u32 {S(sT2)}, 0"); b(f"s_cbranch_scc1 {name}_g{kg}")
        gen0[kg] = b.flush()
        spin(f"{name}_pk{kg}", 26, poll_kv.replace(f"dword {V(vPk)},", "dword v26,"), 32)
        ST("dtail")
        b(iteration(0, True, kg, False, None, None, True))
    b(qk_diag(0)); diag_tail(0); b(f"s_branch {name}_it1"); f0a = b.flush()
    b.label(name + "_d2", pre)
    b(qk_diag(1)); diag_tail(1); f0b = b.flush()
    gtext = {}; spv = {}; skip = []
    for kg in range(2):
        h1, spv[kg] = seg(pf_code(f"g{kg}", 21, 22) + [f"s_cmp_eq_u32 {S(sBLK)}, 0", f"s_cbranch_scc1 {name}_pvd{kg}"], gen0[kg])
        h2, ex_ = seg(iteration(0, True, kg, False, name + "_pv1") + toI([f"s_branch {name}_odd"]), spv[kg])
        gtext[kg] = h1 + h2; skip += ex_
    spv0, spv1 = spv[0], spv[1]; it0a, it0b = skip, []
    b.label(name + "_it1", f0a + f0b)
    ST("it0")
    def side_stash(sc, st, gv):
        for k in range(16): assert sc.putw(rdQ(192, k >> 2, k & 3), 0, st[12] - 12) < st[12] - 8
    sWO = sWU; sWo, sHc = 54, 55
    vWo = 23
    sCx, sOb = 81, 82
    def side_osetup(sc, part, lo=0):
        o = []
        for i in range(5):
            o.append(f"""
            v_add_u32 {V(vWo+i)}, {64*i}, v0
            v_mul_u32_u24 v19, 3277, {V(vWo+i)}
            v_lshrrev_b32 v19, 16, v19
            v_mul_u32_u24 v4, 20, v19
            v_sub_u32 {V(vWo+i)}, {V(vWo+i)}, v4
            v_bfe_u32 v4, v19, 2, 1
            v_lshlrev_b32 v4, 1, v4
            v_xor_b32 {V(vWo+i)}, {V(vWo+i)}, v4
            v_mul_u32_u24 v19, 1280, v19
            v_lshl_add_u32 {V(vWo+i)}, {V(vWo+i)}, 4, v19
            """)
        if part < 5: sc.seq(o[part:part+1], lo); return
        sc.seq([f"""
        s_and_b32 {S(sT3)}, {S(sHD)}, 3
        s_mul_i32 {S(sWo)}, {S(sT3)}, 320
        s_mul_i32 {S(sT3)}, {S(sWV)}, {32*1280}
        s_add_u32 {S(sWo)}, {S(sWo)}, {S(sT3)}
        s_lshr_b32 {S(sT3)}, {S(sHD)}, 2
        s_mul_i32 {S(sT3)}, {S(sT3)}, {512*1280}
        s_add_u32 {S(sWo)}, {S(sWo)}, {S(sT3)}
        s_and_b32 {S(sT3)}, {S(sWV)}, 1
        s_lshl_b32 {S(sT3)}, {S(sT3)}, 14
        s_add_u32 s40, {S(sT3)}, 131072
        s_add_u32 s41, {S(sT3)}, 65536
        s_add_u32 s42, {S(sT3)}, 98304
        s_cmp_ge_u32 {S(sWV)}, 2
        s_cselect_b32 {S(sXa)}, s41, s40
        s_cmp_ge_u32 {S(sWV)}, 2
        s_cselect_b32 {S(sXa+1)}, s42, s40
        s_cmp_ge_u32 {S(sWV)}, 2
        s_cselect_b32 {S(sXa+2)}, s40, s41
        s_cmp_ge_u32 {S(sWV)}, 2
        s_cselect_b32 {S(sXa+3)}, s40, s42
        s_mul_i32 s71, {S(sWV)}, 10240
        s_lshr_b32 {S(sCx)}, {S(sHD)}, 2
        s_lshl_b32 {S(sCx)}, {S(sCx)}, 3
        s_add_u32 {S(sCx)}, {S(sCx)}, {S(sJ)}
        s_lshl_b32 {S(sCx)}, {S(sCx)}, 2
        s_add_u32 {S(sOb)}, {S(sCx)}, {S(sWV)}
        s_lshl_b32 {S(sCx)}, {S(sOb)}, 2
        s_and_b32 {S(sT3)}, {S(sHD)}, 3
        s_add_u32 {S(sCx)}, {S(sCx)}, {S(sT3)}
        s_lshl_b32 {S(sCx)}, {S(sCx)}, 14
        s_add_u32 {S(sCx)}, {S(sCx)}, {WS_CTX}
        """], 50)
    sJs, sJd, sJp, sJb, sJi = 16, 17, 18, 19, 8
    vJr, vJc, vJo, vJa = 17, 18, 19, 12
    JR = [A(180, 4), A(184, 4), A(188, 4), V(28, 4)]
    def half(r, hf): return (A if r[0] == "a" else V)(rno(r) + 2*hf, 2)
    def j_setup():
        return toI([f"""
        v_lshrrev_b32 {V(vJr)}, 3, v0
        v_bfe_u32 {V(vJc)}, v0, 4, 2
        v_lshlrev_b32 {V(vJc)}, 1, {V(vJc)}
        v_and_b32 v4, 7, v0
        v_xor_b32 {V(vJc)}, {V(vJc)}, v4
        v_lshlrev_b32 {V(vJc)}, 4, {V(vJc)}
        s_lshl_b32 {S(sJi)}, s2, 2
        s_add_u32 {S(sJi)}, {S(sJi)}, {S(sWV)}
        s_add_u32 {S(sJb)}, {S(sLw)}, 131072
        """])
    def j_dma(srd, buf):
        o = [f"v_mad_u32_u24 {V(vJo)}, {V(vJr)}, {S(sJp)}, {V(vJc)}", f"s_lshl_b32 {S(sJp)}, {S(sJp)}, 3"]
        for i in range(4):
            if i: o.append(f"s_add_u32 {S(sJs)}, {S(sJs)}, {S(sJp)}")
            o += [f"s_add_u32 m0, {S(sJb)}, {buf*4096 + i*1024}", I(f"buffer_load_dwordx4 {V(vJo)}, {S(srd,4)}, {S(sJs)} offen{nt('j')} lds", "j")]
        return toI(o)
    def t_addr():
        return toI([f"""
        s_sub_u32 {S(sT3)}, {S(sJi)}, 540
        s_cmp_lt_u32 {S(sJi)}, 540
        s_cselect_b32 {S(sT3)}, {S(sJi)}, {S(sT3)}
        s_cmp_lt_u32 {S(sJi)}, 540
        s_cselect_b32 {S(RT)}, {S(RT)}, {S(RO)}
        s_cmp_lt_u32 {S(sJi)}, 540
        s_cselect_b32 {S(RT+1)}, {S(RT+1)}, {S(RO+1)}
        s_cmp_lt_u32 {S(sJi)}, 540
        s_cselect_b32 {S(RT+2)}, {S(RT+2)}, {S(RO+2)}
        s_mov_b32 s9, {hex((2**32 + 9)//10)}
        s_cmp_lt_u32 {S(sJi)}, 540
        s_cselect_b32 s9, {hex((2**32 + 26)//27)}, s9
        s_cmp_lt_u32 {S(sJi)}, 540
        s_cselect_b32 s10, 27, 10
        s_mov_b32 {S(sJd)}, {WS_WOUT}
        s_cmp_lt_u32 {S(sJi)}, 540
        s_cselect_b32 {S(sJd)}, {WS_WIN}, {S(sJd)}
        s_lshl_b32 {S(sJp)}, s10, 7
        s_mul_hi_u32 s9, {S(sT3)}, s9
        s_mul_i32 s10, s9, s10
        s_sub_u32 s10, {S(sT3)}, s10
        s_lshl_b32 {S(sT3)}, {S(sT3)}, 12
        s_add_u32 {S(sJd)}, {S(sJd)}, {S(sT3)}
        s_mul_i32 {S(sJs)}, s9, {S(sJp)}
        s_lshl_b32 {S(sJs)}, {S(sJs)}, 5
        s_lshl_b32 s10, s10, 7
        s_add_u32 {S(sJs)}, {S(sJs)}, s10
        s_cmp_lt_u32 {S(sJi)}, 810
        s_cselect_b32 {S(sJd)}, {S(sJd)}, {hex(OOB)}
        """])
    def t_out():
        o = [f"""
        v_lshrrev_b32 v4, 2, v0
        v_bfe_u32 {V(vJa)}, v0, 3, 2
        v_lshlrev_b32 {V(vJa)}, 5, {V(vJa)}
        v_lshl_add_u32 {V(vJa)}, v4, 7, {V(vJa)}
        v_and_b32 v4, 3, v0
        v_lshl_add_u32 {V(vJa)}, v4, 3, {V(vJa)}
        v_add_u32 {V(vJa)}, {S(sJb)}, {V(vJa)}
        v_xor_b32 {V(vJa+1)}, 32, {V(vJa)}
        v_xor_b32 {V(vJa+2)}, 64, {V(vJa)}
        v_xor_b32 {V(vJa+3)}, 96, {V(vJa)}
        """]
        rd = [f"ds_read_b64_tr_b16 {half(JR[n], hf)}, {V(vJa+n)} offset:{hf*2048}" for n in range(4) for hf in range(2)]
        st = [f"buffer_store_dwordx4 {JR[n]}, {V(vL)}, {sWS}, {S(sJd)} offen offset:{n*1024}{SC}" for n in range(4)]
        return toI(o), toI(rd), toI(st)
    def s_addr(k):
        return toI([f"""
        s_lshr_b32 s9, {S(sJi)}, 5
        s_add_u32 s9, s9, {32*k}
        s_and_b32 s10, {S(sJi)}, 31
        s_lshl_b32 {S(sJs)}, s9, 17
        s_lshl_b32 s10, s10, 7
        s_add_u32 {S(sJs)}, {S(sJs)}, s10
        s_mov_b32 {S(sJp)}, 4096
        """])
    def s_out(k, buf):
        o = [f"""
        s_lshr_b32 {S(sJd)}, {S(sJi)}, 6
        s_add_u32 {S(sJd)}, {S(sJd)}, {16*k}
        s_lshl_b32 {S(sJd)}, {S(sJd)}, 18
        s_and_b32 s11, {S(sJi)}, 31
        s_lshl_b32 s11, s11, 13
        s_add_u32 {S(sJd)}, {S(sJd)}, s11
        s_bfe_u32 s11, {S(sJi)}, 0x10005
        s_lshl_b32 s11, s11, 11
        s_add_u32 {S(sJd)}, {S(sJd)}, s11
        s_add_u32 {S(sJd)}, {S(sJd)}, {WS_WSP}
        s_add_u32 s11, {S(sJd)}, 4096
        """]
        if k == 0: o.append(f"""
        v_bfe_u32 {V(vJa)}, v0, 1, 2
        v_lshlrev_b32 {V(vJa)}, 5, {V(vJa)}
        v_and_b32 v4, 15, v0
        v_lshl_add_u32 {V(vJa)}, v4, 7, {V(vJa)}
        v_lshrrev_b32 v4, 4, v0
        v_lshl_add_u32 {V(vJa)}, v4, 3, {V(vJa)}
        v_add_u32 {V(vJa)}, {S(sJb)}, {V(vJa)}
        v_xor_b32 {V(vJa+1)}, 32, {V(vJa)}
        v_xor_b32 {V(vJa+2)}, 64, {V(vJa)}
        v_xor_b32 {V(vJa+3)}, 96, {V(vJa)}
        """)
        rd = [f"ds_read_b64 {half(JR[2*ks+mt], hf)}, {V(vJa+2*ks+hf)} offset:{buf*4096 + mt*2048}" for ks in range(2) for mt in range(2) for hf in range(2)]
        st = [f"buffer_store_dwordx4 {JR[2*ks+mt]}, {V(vL)}, {sWS}, {'s11' if ks else S(sJd)} offen offset:{mt*1024}{SC}" for ks in range(2) for mt in range(2)]
        return toI(o), toI(rd), toI(st)
    def wseq(sc, ins, lo, step=1):
        ins = toI(ins); sc.seqs.append(ins); g = lo; prev = None
        for i in ins:
            if i.kind in ("salu", "pseudo"):
                if prev is not None and prev.op.startswith("s_cmp"): sc.put(i, g, force=True)
                else: g = sc.put(i, g + (prev is not None and prev.kind != "salu"))
            else: g = sc.putw(i, g + 1, g + 3) + (step if i.kind == "vmem" else 0)
            prev = i
        return g
    def freeg(sc, lo):
        return next(g for g in range(lo, len(sc.mf)) if sc.free[g] == 2)
    def job_out(sc, st, gv, parts):
        _, rd, sto = parts
        for x in sto: x.tag = "js"
        g = freeg(sc, JR0); sc.raw("@waitvm j", g, "pre")
        for x in rd[:4] + sto[:1] + rd[4:6] + sto[1:2] + rd[6:] + sto[2:]:
            if x.kind == "vmem": g = max(g, JSP[sto.index(x)])
            g = sc.put(x, freeg(sc, g)) + 1
        assert g < st[12] - 4
    def side1(sc, st, gv):
        side_stash(sc, st, gv); sc.seq(j_setup() + t_addr(), 20)
    def st_init():
        return toI([f"""
        v_and_b32 v21, 15, v0
        v_lshlrev_b32 v21, 3, v21
        v_bfe_u32 v22, v0, 4, 1
        v_mul_u32_u24 v22, {WS_ST2 - WS_ST1}, v22
        v_add_u32 v21, v21, v22
        v_mov_b32 v14, -1.0
        v_mov_b32 v15, -1.0
        s_lshl_b32 s9, {S(sJi)}, 7
        s_add_u32 s9, s9, {WS_ST1}
        buffer_store_dwordx2 v[14:15], v21, {sWS}, s9 offen sc1
        """])
    def side2(sc, st, gv):
        g = sc.seq(["@waitvm kv0", f"s_lshl_b32 s9, {S(sHD)}, 7", f"s_add_u32 s9, s9, {WS_FLG + FL_K0*128}", f"buffer_atomic_add {V(vOne)}, {V(vFlagW)}, {sWS}, s9 offen"], 8)
        g = sc.seq(j_dma(RT, 0), max(g, gv) + 1, 4); assert g < st[12] - 8
        g = sc.seq(st_init(), g + 1)
        sc.seq(t_out()[0], g + 1)
    poll_t = f"buffer_load_dword v22, v21, {sWS}, 0 offen sc1"
    def side3(sc, st, gv):
        job_out(sc, st, gv, t_out()); sc.seq(s_addr(0), 40); side_osetup(sc, 5); side_osetup(sc, 0); side_osetup(sc, 1, 70)
    def side4(sc, st, gv):
        g = sc.seq(["s_and_b32 s9, s2, 31", "s_lshl_b32 s9, s9, 7", f"s_add_u32 s9, s9, {WS_FLG + FL_T*128}", "@waitvm js",
                    f"buffer_atomic_add {V(vOne)}, {V(vFlagW)}, {sWS}, s9 offen"], gv - 2)
        g = sc.seq(j_dma(RS, 0), g + 1, 4); assert g < st[12] - 8
        sc.seq(s_out(0, 0)[0], 20)
        if PW:
            sc.seq([f"s_lshr_b32 s4, {S(sJi)}, 7", f"s_bfe_u32 s5, {S(sJi)}, 0x50002", "s_mul_i32 s6, s5, 20", "s_mul_i32 s7, s4, 5", "s_add_u32 s6, s6, s7",
                    f"s_add_u32 s6, s6, {WS_XA // 4096 + 2}", "s_mul_i32 s5, s5, 27", "s_mul_i32 s7, s4, 7", "s_add_u32 s5, s5, s7", f"s_add_u32 s5, s5, {WS_U // 4096 + 3 - 28}",
                    "s_cmp_lt_u32 s4, 4", "s_cselect_b32 s6, s6, s5", "s_lshl_b32 s6, s6, 2", f"s_add_u32 s6, s6, {S(sWV)}", "s_lshl_b32 s6, s6, 10",
                    "s_cmp_lt_u32 s4, 7", f"s_cselect_b32 s6, s6, {hex(OOB)}",
                    f"buffer_store_dwordx4 {V(NM(0), 4)}, {V(vL)}, {sWS}, s6 offen sc1"], 3)
    def side5(sc, st, gv):
        job_out(sc, st, gv, s_out(0, 0)); sc.seq(s_addr(1), 40)
        assert sc.seq([f"v_add_u32 {V(vPa)}, {(FL_K0 - FL_KV)*128}, {V(vPa)}", poll_kv], 56) < st[12]
        side_osetup(sc, 2)
    def side6(sc, st, gv):
        g = sc.seq(["v_and_b32 v21, 31, v0", "v_lshlrev_b32 v21, 7, v21", f"v_add_u32 v21, {WS_FLG + FL_T*128}, v21", poll_t], 20)
        g = sc.seq(j_dma(RS, 0), max(g, gv) + 1, 4); assert g < st[12] - 8
        sc.seq(s_out(1, 0)[0], 4)
        if CPF:
            pc = pf_code("s", 4, 28); sc.raw(pc[:2], g + 1); sc.seq(pc[2:], g + 2)
    def side7(sc, st, gv):
        if TLB == 17: sc.seq(["v_lshlrev_b32 v21, 21, v0", "s_mov_b32 s4, 0x1fff80", f"buffer_load_dword v22, v21, {sWS}, s4 offen"], 84)
        job_out(sc, st, gv, s_out(1, 0)); side_osetup(sc, 3); side_osetup(sc, 4, 70)
    sides = [side1, side2, side3, side4, side5, side6, side7]
    if fine == "side": T.stamp(b, "it0")
    for k, sd in enumerate(sides):
        it_ = iteration((k + 1) & 1, True, "full", True, name + "_pv0" if k == 6 else None, sd)
        if "sld" in drop2: it_ = [i for i in it_ if not (i.kind == "vmem" and i.tag == "j")]
        if "sst" in drop2: it_ = [i for i in it_ if not (i.kind == "vmem" and "store" in i.op)]
        b(it_)
        if k == 4: spin(name + "_p0", vPk, poll_kv, 32)
        if k == 5: spin(name + "_pt", 22, poll_t, 32)
        if k == 6: ex7 = b.flush()
        if fine == "side": T.stamp(b, f"it{k+1}")
    if fine == "att0": ST("it2")
    ins, outs = b.chain_loop([(name + "_even", iteration(0, True, "full", True, name + "_pv1")),
                              (name + "_odd", iteration(1, True, "full", True, name + "_pv0")[:-1] + toI([f"s_cbranch_scc0 {name}_even", f"s_branch {name}_pv0"]))], extra={1: skip})
    outs = outs[::-1]
    for kg in range(2): b.label(f"{name}_g{kg}"); b.out += gtext[kg]
    TMP, CF = 64, 32
    CB = [0, 40960, 81920, 122880]
    def dmaO(c):
        o = [f"s_add_u32 {S(sHc)}, {S(sHD)}, {0 if 'ohit' in drop2 else c}", f"s_and_b32 {S(sHc)}, {S(sHc)}, 3", f"s_mul_i32 {S(sHc)}, {S(sHc)}, {128*1280}", f"s_add_u32 {S(sHc)}, {S(sHc)}, {S(sWo)}"]
        for k in range(10):
            if k == 5: o.append(f"s_add_u32 {S(sHc)}, {S(sHc)}, {16*1280}")
            o += [f"s_add_u32 m0, s71, {CB[c] + k*1024}", I(f"buffer_load_dwordx4 {V(vWo + k % 5)}, {sWO}, {S(sHc)} offen{nt('O')} lds", f"o{c}")]
        return toI(o)
    def Xf(c, ks, m):
        if c == 0: return A(192 + 8*ks + 4*m, 4) if m < 2 else V(CF + 8*ks + 4*(m-2), 4)
        return A(64*(c-1) + 16*ks + 4*m, 4)
    sCc = 58
    def ldX(c, passes):
        o = [f"s_add_u32 {S(sCc)}, {S(sHD)}, {0 if 'xhit' in drop2 else c}", f"s_and_b32 {S(sCc)}, {S(sCc)}, 3", f"s_lshl_b32 {S(sT2)}, {S(sOb)}, 2", f"s_add_u32 {S(sCc)}, {S(sCc)}, {S(sT2)}",
             f"s_lshl_b32 {S(sCc)}, {S(sCc)}, 14", f"s_add_u32 {S(sCc)}, {S(sCc)}, {WS_CTX}"]
        for p in passes:
            for ks in range(4):
                if ks % 2 == 0: o.append(f"s_add_u32 {S(sT2)}, {S(sCc)}, {(0 if 'xhit' in drop2 else p)*8192 + ks*2048}")
                for a in range(2): o.append(f"buffer_load_dwordx4 {Xf(c, ks, 2*p + a)}, {V(vL)}, {sWS}, {S(sT2)} offen offset:{(ks & 1)*2048 + a*1024}{CXL}")
        return toI(o)
    def own_long(tag):
        return toI(["v_lshlrev_b32 v21, 7, v0", f"buffer_load_dword a108, v21, {sWS}, {S(sCx)} offen{CXL}"])
    sFx = 79
    def side_o0(sc, st, gv):
        arr = toI([f"s_lshl_b32 {S(sFx)}, {S(sOb)}, 8", f"s_add_u32 {S(sFx)}, {S(sFx)}, {WS_FLG + FL_CX*128}",
                   f"s_cmp_eq_u32 {S(sSafe)}, 0", f"s_cselect_b32 {S(sKs)}, {S(sFx)}, {hex(OOB)}", "@waitvm cx",
                   f"buffer_atomic_add {V(vOne)}, {V(vFlagW)}, {sWS}, {S(sKs)} offen offset:128",
                   f"s_and_b32 {S(sKs)}, s2, 31", f"s_lshl_b32 {S(sKs)}, {S(sKs)}, 7", f"s_add_u32 {S(sKs)}, {S(sKs)}, {WS_FLG + FL_R*128}",
                   f"s_cmp_eq_u32 {S(sSafe)}, 0", f"s_cselect_b32 {S(sKs)}, {S(sKs)}, {hex(OOB)}",
                   f"buffer_atomic_add {V(vOne)}, {V(vFlagW)}, {sWS}, {S(sKs)} offen"])
        paced(sc, vgroups(arr + dmaO(0) + own_long(0)), 0, len(sc.mf) - 4)
    def side_vec(sc, st, gv):
        o = [f"""
        v_and_b32 v21, 15, v0
        v_lshrrev_b32 v22, 4, v0
        v_lshlrev_b32 v22, 4, v22
        v_lshl_add_u32 v22, v21, 6, v22
        v_cmp_gt_u32 vcc, 2, v21
        v_mov_b32 v21, {hex(OOB)}
        v_cndmask_b32 v22, v21, v22, vcc
        s_mul_i32 s9, {S(sWV)}, 640
        s_add_u32 s9, s9, {WS_MODB}
        s_mul_i32 s10, {S(sWV)}, {5*108*1024}
        s_lshl_b32 s11, s2, 10
        s_add_u32 s10, s10, s11
        s_add_u32 s10, s10, {WS_WIN}
        s_cmp_lt_u32 s2, 108
        s_cselect_b32 s10, s10, {hex(OOB)}
        """]
        for k in range(5):
            if k: o.append(f"s_add_u32 s10, s10, {108*1024}")
            o += [f"buffer_load_dwordx4 {A(64+8*k,4)}, {V(vL)}, {sWS}, s10 offen sc1", f"buffer_load_dwordx4 {A(68+8*k,4)}, v22, {sWS}, s9 offen offset:{128*k} sc1"]
        o = toI(o)
        sc.seq(o[7:15], 0); g = sc.seq(o[:7], 4)
        g = paced(sc, vgroups(o[15:]), max(g + 1, 9), 46)
        g = sc.seq(masks(False, 48), 12)
        pw = toI([f"""
        v_lshlrev_b32 v50, 7, v0
        v_cmp_gt_u32 vcc, 40, v0
        v_cndmask_b32 v50, v21, v50, vcc
        s_lshr_b32 s11, s2, 3
        s_lshl_b32 s11, s11, 2
        s_add_u32 s11, s11, {S(sWV)}
        s_lshr_b32 s8, {S(sHD)}, 2
        s_lshl_b32 s8, s8, 7
        s_add_u32 s11, s11, s8
        s_mul_i32 s11, s11, 5120
        buffer_load_dword v51, v50, {sWO}, s11 offen{nt('o')}
        v_lshlrev_b32 v22, 2, v0
        v_cmp_gt_u32 vcc, 16, v0
        v_cndmask_b32 v22, v21, v22, vcc
        s_lshl_b32 s9, s2, 6
        s_add_u32 s9, s9, {WS_VEC}
        s_cmp_lt_u32 s2, 108
        s_cselect_b32 s9, s9, {hex(OOB)}
        s_cmp_eq_u32 {S(sWV)}, 0
        s_cselect_b32 s9, s9, {hex(OOB)}
        s_add_u32 s10, s9, 0x2000
        """])
        pw[10] = I(pw[10].t.replace("v51,", "a108,"))
        sc.seq(pw, max(g + 1, 47))
        sc.raw([MF(A(104,4), A(68+8*k,4), A(64+8*k,4), A(104,4) if k else "0") for k in range(5)], len(sc.mf) - 1, "pre")
        sc.raw(f"ds_write_b128 v19, {A(104,4)} offset:4096", 999)
    fin0 = []; fin1 = []
    for par, preds in ((0, outs[0] + ex7), (1, outs[1] + it0a + it0b)):
        b.label(f"{name}_pv{par}", preds); ST("loop")
        b(f"s_cmp_eq_u32 {S(sPass)}, 1"); b(f"s_cbranch_scc1 {name}_pw{par}"); pw = b.flush()
        b(iteration(par, False, "full", True, None, side_vec)); b(f"s_branch {name}_fin0"); fin0 += b.flush()
        b.label(f"{name}_pw{par}", pw); b(iteration(par, False, "full", True, None, side_o0)); b(f"s_branch {name}_fin1"); fin1 += b.flush()
    b.label(name + "_pvd0", spv0); b(iteration(0, False, 0, False, None, side_o0)); b(f"s_branch {name}_fin1"); fin1 += b.flush()
    b.label(name + "_pvd1", spv1); b(iteration(0, False, 1, False, None, side_o0)); b(f"s_branch {name}_fin1"); fin1 += b.flush()
    def merge_reads(hop):
        b("s_waitcnt lgkmcnt(0)"); b("s_barrier")
        for w in range(4): b(f"ds_read_b128 {V(48+4*w, 4)}, {V(vLx)} offset:{w*1024}")
        for i in range(4):
            for a in range(2):
                for dt in (2*i, 2*i+1): b(f"ds_read_b128 {V(TMP + 4*(a*8+dt), 4)}, {V(vXp)} offset:{(a*8+dt)*1024}")
                if HOP and (i, a) == (2, 0): b(hop)
    def check():
        for r in range(8): b(f"v_add_f32 {V(48+r)}, {V(48+r)}, {V(56+(r ^ 2))}")
        b(f"""
        v_min3_f32 v56, v48, v49, v50
        v_min3_f32 v56, v56, v51, v52
        v_min3_f32 v56, v56, v53, v54
        v_min_f32 v56, v56, v55
        v_pk_add_f32 v[58:59], v[48:49], v[50:51]
        v_pk_add_f32 v[60:61], v[52:53], v[54:55]
        v_pk_add_f32 v[58:59], v[58:59], v[60:61]
        s_mov_b32 {S(sMK+2)}, {FH(L_HI)}
        v_add_f32 v57, v58, v59
        v_cmp_nle_f32 vcc, {FH(L_LO)}, v56
        v_cmp_nge_f32 {S(sMK,2)}, {S(sMK+2)}, v57
        s_or_b64 vcc, vcc, {S(sMK,2)}
        s_cselect_b32 {S(sT2)}, 1, {1 if force_fallback else 0}
        s_andn2_b32 {S(sT2)}, {S(sT2)}, {S(sSafe)}
        {"s_nop 0" if drop else f"s_cbranch_scc1 {name}_slow"}
        s_bitcmp1_b32 {S(sWV)}, 0
        s_cselect_b64 vcc, -1, 0
        s_bitcmp1_b32 {S(sWV)}, 1
        s_cselect_b64 {S(sMK,2)}, -1, 0
        """)
        for r in range(4): b(f"v_cndmask_b32 {V(48+r)}, {V(48+r)}, {V(52+r)}, vcc")
        b(f"""
        v_cndmask_b32 v28, v50, v48, {S(sMK,2)}
        v_cndmask_b32 v30, v51, v49, {S(sMK,2)}
        v_rcp_f32 v28, v28
        v_rcp_f32 v30, v30
        """)
    cxl = []
    def normalise(off):
        for i in range(4):
            for a in range(2):
                for dt in (2*i, 2*i+1):
                    o = O(dt, 2 + a); t = TMP + 4*(a*8+dt)
                    for h in (0, 2): b(f"v_pk_add_f32 {V(t+h,2)}, {V(t+h,2)}, {V(o+h,2)}")
                    for h in (0, 2): b(f"v_pk_mul_f32 {V(t+h,2)}, {V(t+h,2)}, {V(28+2*a,2)} op_sel_hi:[1,0]")
                t = TMP + 4*(a*8+2*i); d = CF + 8*i + 4*a if off else t
                for k in range(4): b(f"v_cvt_pk_bf16_f32 {V(d+k)}, {V(t+2*k)}, {V(t+2*k+1)}")
                if off and 2*i + a >= CX0:
                    cxl.append(toI([f"s_add_u32 {S(sKs)}, {S(sCx)}, {off + (i >> 1)*4096}"])
                               + [I(f"buffer_store_dwordx4 {V(d,4)}, {V(vL)}, {sWS}, {S(sKs)} offen offset:{(i & 1)*2048 + a*1024}{CXS}", "cx")])
                    continue
                if (i, a) in ((0, 0), (2, 0)): b(f"s_add_u32 {S(sT3)}, {S(sCx)}, {off + i*2048}")
                b(f"buffer_store_dwordx4 {V(d,4)}, {V(vL)}, {sWS}, {S(sT3)} offen offset:{(i & 1)*2048 + a*1024}{CXS}", "cx")
                if not off:
                    for k in range(4): b(f"v_accvgpr_write_b32 {A(rno(Xf(0, i, a)) + k)}, {V(d+k)}")
    b.label(name + "_fin0", fin0)
    ST("pv")
    merge_reads("@hop d")
    ST("xr"); check()
    for w in range(4): b(f"ds_read_b64 {V(56+2*w,2)}, {V(vLx)} offset:{4096 + w*1024}")
    b(f"""
    s_mov_b32 {S(sPass)}, 1
    s_mov_b32 {S(sBLK)}, {S(sBLK2)}
    s_mov_b32 {S(sR0)}, 0
    s_mov_b32 {S(sA0)}, {hex(OOB)}
    s_mov_b32 {S(sA1)}, {hex(OOB)}
    s_mov_b32 {S(sAl)}, 163840
    @waitvm k
    s_waitcnt lgkmcnt(0)
    s_barrier
    """)
    b([rdK0(0, ds) for ds in range(4)])
    b(f"""
    v_pk_add_f32 v[56:57], v[56:57], v[58:59]
    v_pk_add_f32 v[60:61], v[60:61], v[62:63]
    v_pk_add_f32 v[56:57], v[56:57], v[60:61]
    buffer_store_dword v56, v22, {sWS}, s9 offen sc1
    buffer_store_dword v57, v22, {sWS}, s10 offen sc1
    """)
    for k, gr in enumerate(vgroups(toI(unit_diag(sVs, sVb)) + dmaKV(1, 0, sVs, "v"))):
        b(gr)
        for r in range(8*k, 8*k + 8): b(f"v_accvgpr_mov_b32 {A(r)}, {A(192+r)}")
    normalise(0)
    b(f"s_cmp_eq_u32 {S(sSafe)}, 0"); b(f"s_cbranch_scc1 {name}_nz"); nz = b.flush()
    for r in range(16): b(f"v_mov_b32 {V(NM(0)+r)}, 0")
    b.label(name + "_nz", nz + b.flush())
    if fine is not True: T.stamp(b, "blk1end")
    b("s_waitcnt lgkmcnt(0)"); b(f"s_branch {name}_blk")
    for x in b.flush(): assert [e[1] for e in x.vm][-NCX-1:] == ["v"] + ["cx"] * NCX
    b.label(name + "_fin1", fin1)
    ST("pv")
    poll_l = [f"v_mov_b32 {V(vPk)}, 0", f"buffer_atomic_add {V(vPk)}, {V(vFlagW)}, {sWS}, {S(sFx)} offen offset:128 sc0"]
    b(poll_l)
    b(f"s_load_dwordx2 s[8:9], s[0:1], {ARG['bsp']}"); b(f"s_load_dwordx2 s[12:13], s[0:1], {ARG['out']}")
    merge_reads(["@hop e", f"{name}_op0:"])
    ST("xr"); check()
    normalise(8192)
    T.stamp(b, "attend")
    vOa = 8
    b(f"""
    v_lshrrev_b32 v28, 2, v0
    v_mul_u32_u24 v28, 320, v28
    v_and_b32 v29, 3, v0
    v_lshl_add_u32 v28, v29, 3, v28
    v_bfe_u32 v29, v0, 4, 1
    v_lshlrev_b32 v29, 5, v29
    v_add_u32 {V(vOa)}, v28, v29
    v_sub_u32 v28, v28, v29
    v_add_u32 {V(vOa+1)}, 32, v28
    @waitvm o0
    s_barrier
    """)
    def oacc(n, m): return 96 + 16*n + 4*m
    def OWf(k, off, n): return V(64 + 16*(k & 3) + off, n) if (k & 3) < 2 else A(192 + 16*(k & 3) + off, n)
    ALL = (0, 1, 2, 3)
    outers = [(0, n, ALL) for n in range(10)]
    outers += ([(1, n, (0, 1)) for n in range(10)] + [(1, n, (2, 3)) for n in range(10)]) if OSP else [(1, n, ALL) for n in range(10)]
    outers += [(2, n, ALL) for n in range(OH)] + [(3, n, ALL) for n in range(OH)] + [(c, n, ALL) for n in range(OH, 10) for c in (2, 3)]
    if OB1:
        outers = [(0, n, ALL) for n in range(10)] + [(c, n, (0, 1)) for c in (1, 2, 3) for n in range(10)]
        outers += [(1, n, (2, 3)) for n in range(10)] + [(c, n, (2, 3)) for n in range(10) for c in (2, 3)]
    def rdO(k):
        c, n, _ = outers[k]
        return [f"ds_read_b64_tr_b16 {OWf(k, 4*ks + 2*hf, 2)}, {V(vOa + 2*c + (n & 1))} offset:{(32*ks + 16*hf)*320 + (n & ~1)*32}"
                for ks in range(4) for hf in range(2)]
    b(rdO(0))
    spin_at(name + "_pl", vPk, poll_l, 4)
    vPa, vPk = 17, 18
    poll_kv = f"buffer_load_dword {V(vPk)}, {V(vPa)}, {sWS}, 0 offen sc1"
    mf = []; og = []
    for k, (c, n, ms) in enumerate(outers):
        og.append(len(mf))
        for m in ms:
            for ks in range(4):
                d = V(oacc(n, m), 4)
                mf.append(MF(d, OWf(k, 4*ks, 4), Xf(c, ks, m), "0" if (c == 0 and ks == 0) else d))
    og.append(len(mf))
    sc = Sched(mf)
    rstart = {}
    for k in range(1, len(outers)):
        rstart[k] = og[k] - 16
        for r, x in enumerate(rdO(k)): sc.put(x, rstart[k] + r, force=True)
        sc.raw(f"@need {OWf(k, 0, 16)}", og[k] - 1, "pre")
    seq(sc, [f"v_add_u32 {V(vOa + 2*c + e)}, {CB[c]}, {V(vOa + e)}" for c in (1, 2, 3) for e in (0, 1)], 8)
    firstc = {c: min(k for k, o in enumerate(outers) if o[0] == c) for c in (1, 2, 3)}
    for c in (1, 2, 3): sc.raw([f"@waitvm o{c}", "s_barrier"], rstart[firstc[c]] - 1, "post2")
    def pace2(groups, g0, step):
        g = g0
        for gr in groups:
            for x in gr[:-1]: sc.raw(x, g - 1, "post")
            g = sc.putw(gr[-1], g, g + 1) + step
        return g
    if OPF:
        pf = toI([f"""
        s_lshr_b32 s6, s2, 3
        s_lshl_b32 s6, s6, 2
        s_add_u32 s6, s6, {S(sWV)}
        s_lshl_b32 s6, s6, 6
        v_add_u32 v28, s6, v0
        v_mul_u32_u24 v29, 1171, v28
        v_lshrrev_b32 v29, 18, v29
        v_mul_u32_u24 v30, 224, v29
        v_sub_u32 v28, v28, v30
        v_mul_u32_u24 v30, {108*8}, v29
        v_add_u32 v28, v28, v30
        v_subrev_u32 v30, {20*108*8 + 54*8}, v28
        v_cmp_gt_u32 vcc, 20, v29
        v_cndmask_b32 v28, v30, v28, vcc
        v_add_u32 v28, {54*8}, v28
        v_lshlrev_b32 v28, 7, v28
        s_and_b32 s6, s2, 1
        s_mul_i32 s6, s6, {28*1024}
        s_add_u32 s6, s6, {WS_WIN}
        s_bfe_u32 s7, s2, 0x20001
        s_lshl_b32 s7, s7, 3
        s_lshr_b32 s4, s2, 5
        s_add_u32 s7, s7, s4
        s_lshl_b32 s7, s7, 2
        s_add_u32 s7, s7, {S(sWV)}
        s_mul_i32 s7, s7, {16*1280}
        s_and_b32 s4, s2, 1
        s_lshl_b32 s4, s4, 2
        s_bfe_u32 s5, s2, 0x20003
        s_add_u32 s4, s4, s5
        s_mul_i32 s4, s4, 160
        s_add_u32 s7, s7, s4
        v_bfe_u32 v29, v0, 1, 4
        v_mul_u32_u24 v29, 1280, v29
        v_and_b32 v30, 1, v0
        v_lshl_add_u32 v29, v30, 7, v29
        """])
        seq(sc, pf, 20)
        opf = [toI([f"buffer_load_dword v31, v28, {sWS}, s6 offen sc1"]), toI([f"buffer_load_dword v31, v29, {S(R['dbg'],4)}, s7 offen"])]
    def mix(lds, sts, g, step, sstep):
        k = 0
        for n_, gr in enumerate(lds):
            g = pace2([gr], g, step)
            while k < len(sts) and (k + 1) * len(lds) <= (n_ + 1) * len(sts): g = pace2([sts[k]], g, sstep); k += 1
        return g
    n1 = min(len(cxl), CX1)
    g = mix(vgroups(dmaO(1)) + vgroups(ldX(1, (0,))), cxl[:n1], OA, OL, OU); assert g <= 160 + OU, g
    arr = [toI(["@waitvm cx", f"buffer_atomic_add {V(vOne)}, {V(vFlagW)}, {sWS}, {S(sFx)} offen"])]
    g = mix(vgroups(dmaO(2)), cxl[n1:], g, 4, 4); assert g < 216, g
    early = n1 == len(cxl)
    g = pace2((arr if early else []) + vgroups(ldX(2, (0,))), g, 4 if g < 200 else 2); assert g <= 242, g
    g = pace2(([] if early else arr) + vgroups(dmaO(3)), g, 4); assert g < 296, g
    poll_c = [f"v_mov_b32 {V(vPk)}, 0", f"buffer_atomic_add {V(vPk)}, {V(vFlagW)}, {sWS}, {S(sFx)} offen sc0"]
    pace2([toI(poll_c)], g, 1)
    g = pace2(vgroups(ldX(3, (0,))), g + 3, 4 if g < 280 else 3); assert g <= 322, g
    OC = g
    sc.raw("@mark pc", OC)
    g = pace2(vgroups(ldX(1, (1,))), OC + 2, 5); assert g <= 400
    g = pace2(vgroups(ldX(2, (1,))) + vgroups(ldX(3, (1,))), g, OS + 2); assert g <= 480, g
    gl = g
    if OPF: pace2(opf, OG, 4)
    sP0, sP1 = 40, 41
    seq(sc, [f"s_lshr_b32 {S(sT3)}, {S(sHD)}, 2", f"s_mul_i32 {S(sP0)}, {S(sT3)}, {32*20*4096}", f"s_add_u32 {S(sP0)}, {S(sP0)}, {WS_PART + 20*4096}",
             f"s_lshr_b32 {S(sT3)}, {S(sWV)}, 1", f"s_mul_i32 {S(sT3)}, {S(sT3)}, {20*4096}", f"s_sub_u32 {S(sP0)}, {S(sP0)}, {S(sT3)}",
             f"s_and_b32 {S(sT3)}, {S(sWV)}, 1", f"s_lshl_b32 {S(sT3)}, {S(sT3)}, 10", f"s_add_u32 {S(sP0)}, {S(sP0)}, {S(sT3)}",
             f"s_and_b32 {S(sT3)}, {S(sHD)}, 3", f"s_mul_i32 {S(sT3)}, {S(sT3)}, {5*4096}", f"s_add_u32 {S(sP0)}, {S(sP0)}, {S(sT3)}",
             f"s_mul_i32 {S(sT3)}, {S(sJ)}, {40*4096}", f"s_add_u32 {S(sP1)}, {S(sP0)}, {S(sT3)}",
             f"s_sub_u32 {S(sP0)}, {S(sP0)}, {S(sT3)}", f"s_add_u32 {S(sP0)}, {S(sP0)}, {15*40*4096}"], 10)
    def done(n, m):
        k = max(k for k, o in enumerate(outers) if o[1] == n and m in o[2]); return og[k] + 4*outers[k][2].index(m)
    g = 0
    order = sorted([(p, m) for p in range(5) for m in range(4)], key=lambda x: done(2*x[0] + 1, x[1]))
    for p, m in order:
        if True:
            r0, r1 = oacc(2*p, m), oacc(2*p + 1, m)
            cv = lambda d, x: f"v_cvt_pk_bf16_f32 {V(d)}, {V(x)}, {V(x+1)}"
            seq(sc, [cv(r0, r0), cv(r0+1, r0+2)], done(2*p, m) + 9)
            g = wseq(sc, [cv(r0+2, r1), cv(r0+3, r1+2), f"s_add_u32 {S(sT3)}, {S(sP1 if m >> 1 else sP0)}, {p*4096}",
                         I(f"buffer_store_dwordx4 {V(r0,4)}, {V(vL)}, {sWS}, {S(sT3)} offen offset:{(m & 1)*2048}{PST}", f"pt{m >> 1}")],
                    max(g + (OT if done(2*p + 1, m) < 600 else 0), done(2*p + 1, m) + 9))
            if m < 2: g_long = g
    hk = {"pc": lambda: spin_at(name + "_pc", vPk, poll_c, 4)}
    seq(sc, [f"s_lshl_b32 s75, {S(sJ)}, 2", f"s_and_b32 s74, {S(sHD)}, 3", "s_add_u32 s75, s75, s74", "s_lshl_b32 s75, s75, 2", f"s_add_u32 s75, s75, {S(sWV)}",
             "s_lshl_b32 s75, s75, 8", f"s_add_u32 s75, s75, {WS_FLG + FL_P*128}", f"s_lshr_b32 s74, {S(sHD)}, 2", "s_lshl_b32 s74, 1, s74", "v_mov_b32 v31, s74"], 40)
    gr = seq(sc, [f"v_and_b32 {V(vPa)}, 31, v0", f"v_lshlrev_b32 {V(vPa)}, 7, {V(vPa)}", f"v_add_u32 {V(vPa)}, {WS_FLG + FL_R*128}, {V(vPa)}"], OC + 4)
    gr = sc.put(poll_kv, max(gr + 1, OR), force=True)
    sc.raw("@mark pr", gr + 50, "post2"); hk["pr"] = lambda: spin(name + "_pr", vPk, poll_kv, 32)
    pace2([toI(["@waitvm pt0", f"buffer_atomic_add v31, {V(vFlagW)}, {sWS}, s75 offen offset:128"])], g_long + OQ, 1)
    assert seq(sc, tail.pre(WS_FLG + FL_P*128, R), OY) < OZ - 2 and gr + 52 < OZ
    sc.raw([f"v_mov_b32 {V(vPk)}, 0"], OZ - 1)
    sc.put(f"buffer_atomic_add {V(vPk)}, {V(vFlagW)}, {sWS}, s83 offen sc0", OZ, force=True)
    if fine == "op":
        for gg in (79, 159, 239, 319, 399, 479, 559):
            sc.raw(f"@mark g{gg}", gg, "post2"); hk[f"g{gg}"] = lambda gg=gg: T.stamp(b, f"g{gg}")
    if "nopt" in drop2:
        for gl_ in sc.g: gl_[:] = [x for x in gl_ if not (x[1].tag or "").startswith("pt")]
        sc.seqs = []
    emit_split(sc, hk)
    T.stamp(b, "end")
    tail(b, T, name, R, vPk, HOP)
    if probe:
        T.n = 7; T.names[:] = [f"p{k}" for k in range(7)]
        for k in range(7): b(f"s_mov_b32 {S(84 + k)}, {S(86 + 2*k)}")
    T.dump(b, R["ws"], 2, sWV, 12)
    b.label(name + "_end")
    b("s_endpgm")
    b.emit_cold()
    b.label(name + "_slow", [State()])
    b(f"""
    s_waitcnt vmcnt(0) lgkmcnt(0)
    s_mov_b32 {S(sSafe)}, 1
    s_mov_b32 {S(sN)}, 0
    """)
    for q in range(4): b(f"v_mov_b32 {V(64+q)}, {FH(NEGBIG)}")
    b(f"""
    v_lshrrev_b32 v69, 4, v0
    v_lshlrev_b32 v69, 2, v69
    v_and_b32 v68, 15, v0
    v_sub_u32 v68, v68, v69
    s_and_b32 {S(sT2)}, {S(sWV)}, 1
    s_lshl_b32 {S(sT2)}, {S(sT2)}, 4
    v_add_u32 v68, {S(sT2)}, v68
    s_lshr_b32 {S(sT2)}, {S(sWV)}, 1
    s_lshl_b32 {S(sMK)}, {S(sT2)}, 5
    s_add_u32 {S(sMK+1)}, {S(sMK)}, 16
    s_sub_u32 {S(sMK+2)}, 96, {S(sMK)}
    s_add_u32 {S(sMK+3)}, {S(sMK+2)}, 16
    s_lshl_b32 s4, {S(sT2)}, 6
    s_xor_b32 s5, s4, 32
    s_xor_b32 s6, s4, 64
    s_xor_b32 s7, s4, 96
    v_mov_b32 v70, {FH(NEGBIG)}
    """)
    body = toI(["s_barrier", f"s_lshl_b32 {S(sKs)}, {S(sN)}, 15", f"s_add_u32 {S(sKs)}, {S(sKs)}, {S(sKb)}"]) + dmaKV(0, 0, sKs, "k")
    body += toI(["s_waitcnt vmcnt(0)", "s_barrier",
                 f"s_cmp_eq_u32 {S(sN)}, {S(sBLK)}", f"s_cselect_b32 {S(sT3)}, 0, 4096"])
    for kt in range(4):
        body += toI([rdK(0, kt, ds) for ds in range(4)])
        body += toI([f"v_subrev_u32 v69, {S(sMK+kt)}, v68", f"v_add_u32 v69, {S(sT3)}, v69"])
        for q in range(4):
            for ds in range(4): body += toI([MF(V(Sw(q), 4), Kf(kt, ds), Qf(ds, q), V(Sw(q), 4) if ds else "0")])
        for q in range(4):
            body += toI([f"v_add_u32 v72, {S(4+q)}, v69"])
            for r in range(4):
                body += toI([f"v_cmp_gt_i32 vcc, {r}, v72", f"v_cndmask_b32 v71, {V(Sw(q)+r)}, v70, vcc", f"v_max_f32 {V(64+q)}, {V(64+q)}, v71"])
    body += toI(["s_waitcnt lgkmcnt(0)", f"s_add_u32 {S(sN)}, {S(sN)}, 1", f"s_cmp_le_u32 {S(sN)}, {S(sBLK)}", f"s_cbranch_scc1 {name}_mx"])
    b.chain_loop([(name + "_mx", body)], align=0)
    for q in range(4):
        b(f"""
        v_mov_b32 v68, {V(64+q)}
        v_permlane16_swap_b32 {V(64+q)}, v68
        v_max_f32 {V(64+q)}, {V(64+q)}, v68
        v_mov_b32 v68, {V(64+q)}
        v_permlane32_swap_b32 {V(64+q)}, v68
        v_max_f32 {V(64+q)}, {V(64+q)}, v68
        """)
    b(f"""
    s_lshl_b32 {S(sT3)}, {S(sWV)}, 10
    v_add_u32 v19, {S(sT3)}, {V(vLx)}
    ds_write_b128 v19, v[64:67]
    v_xor_b32 v19, 0x800, v19
    s_waitcnt lgkmcnt(0)
    s_barrier
    ds_read_b128 v[68:71], v19
    """)
    for q in range(4):
        b(f"v_max_f32 {V(64+q)}, {V(64+q)}, {V(68+(q ^ 2))}")
        for r in range(4): b(f"v_sub_f32 {V(NM(q)+r)}, 0, {V(64+q)}")
    b("s_barrier")
    b(unit_r0(sKs, sKb)); b(dmaKV(0, 1, sKs, "k")); b(unit_diag(sVs, sVb)); b(dmaKV(1, 0, sVs, "v"))
    b([rdK0(0, ds) for ds in range(4)])
    b("s_waitcnt vmcnt(0) lgkmcnt(0)"); b(f"s_branch {name}_retry")
    b.flush()
    if probe:
        la, lb, step, skip_ = (list(probe) + [0])[:4]
        ia = next(k for k, i in enumerate(b.out) if i.t == f"{name}_{la}:"); ib = next(k for k, i in enumerate(b.out) if i.t == f"{name}_{lb}:")
        new = []; cnt = 0; n0 = 0
        for k, i in enumerate(b.out):
            if ia < k < ib and i.kind not in ("label", "pseudo"):
                if cnt >= skip_ + n0 * step and n0 < 7 and not i.op.startswith(("s_cselect", "s_cbranch", "s_addc")):
                    new.append(I(f"s_memtime s[{86 + 2*n0}:{87 + 2*n0}]")); n0 += 1
                cnt += 1
            new.append(i)
        b.out = new
    lastw = {}
    for i in b.out:
        if i.kind == "label" and i.t.endswith("_blk:"): break
        if i.tag in ("kv0", "kv1") or i.op == "ds_write_b128":
            data = regs_of(i.t.split(None, 1)[1].split(",")[0 if i.kind == "vmem" else 1].split()[0])
            assert all(lastw[r].op in ("v_cvt_pk_bf16_f32", "v_accvgpr_write_b32") for r in data), i.t
        if i.op == "v_accvgpr_write_b32" and not i.t.endswith("v12"): assert all(lastw[r].op == "v_cvt_pk_bf16_f32" for r in i.r), i.t
        for r in i.w: lastw[r] = i
    text = b.text()
    if HOP:
        import hops
        L = lambda x: f"{name}_{x}"
        text, cnt = hops.apply(text, S(sWV), L("main"), [(e, L(x), L("end")) for e, x in (("a", "main"), ("b", "even"), ("d", "g0"), ("b", "pv0"), ("d", "pw0"), ("b", "pv1"),
                                                                   ("d", "pw1"), ("b", "fin0"), ("d", "fin1"), ("e", "op0"), ("c", "t_ne"))],
                               {L(x) for x in ("d2", "it1", "g0", "g1", "pv0", "pw0", "pv1", "pw1", "fin0", "fin1") + HX})
        if stamps: print(cnt)
    return dict(name=name, text=text, kd=kd(name, 512, 256), launch=f"; @launch {'' if name.startswith('adaLN') and not aslist else f'kernel={name} '}grid=(256,1,1) block=(256,1,1) lds=163840", stamps=T.names)
```

```python
import re
from common import *
from kt import (sWV, sRB, sCS, sT, sT2, sT3, vL16, vG, vR, slices, tile_voffs, xg, row_sums, fin_stats,
                store_act, gelu, GC1, GC2, SPIN_MAX)
from kf2 import vgroups
FA, FD, FC, FB = 0, 128, 256, 512

def fused(**kw):
    def f(b, T, name, RA, vPk0, HOP):
        body(b, T, name + "_t", RA, vPk0, HOP, **kw)
        T.stamp(b, "tend")
    f.pre = lambda flp, RA: pre(flp) + body(None, None, "", RA, 0, False, **kw)
    return f

def pre(flp, vL=vL16):
    return toI([f"""
    s_and_b32 {S(sCS)}, s2, 1
    s_lshl_b32 {S(sCS)}, {S(sCS)}, 2
    s_bfe_u32 s6, s2, 0x20003
    s_add_u32 {S(sCS)}, {S(sCS)}, s6
    s_bfe_u32 {S(sRB)}, s2, 0x20001
    s_lshl_b32 {S(sRB)}, {S(sRB)}, 2
    s_bfe_u32 s6, s2, 0x20005
    s_add_u32 {S(sRB)}, {S(sRB)}, s6
    s_lshr_b32 s6, s2, 7
    s_lshl_b32 s6, s6, 4
    s_add_u32 {S(sRB)}, {S(sRB)}, s6
    s_lshr_b32 s6, {S(sCS)}, 1
    s_mul_i32 s6, s6, 10
    s_and_b32 s7, {S(sCS)}, 1
    s_add_u32 s37, s6, 4
    s_add_u32 s37, s37, s7
    s_mul_i32 s7, s7, 6
    s_add_u32 s36, s6, s7
    s_mul_i32 s59, {S(sRB)}, {20*4096}
    s_lshl_b32 s6, {S(sWV)}, 10
    s_add_u32 s59, s59, s6
    s_add_u32 s38, s59, {WS_PART}
    s_add_u32 s59, s59, {WS_XA}
    s_lshl_b32 s6, s36, 11
    v_add_u32 v28, s6, {V(vL)}
    v_add_u32 v29, 4096, v28
    s_lshr_b32 s6, s37, 1
    s_lshl_b32 s6, s6, 12
    v_add_u32 v30, s6, {V(vL)}
    s_lshr_b32 s6, {S(sRB)}, 1
    s_sub_u32 s7, 15, s6
    s_min_u32 s6, s6, s7
    s_lshl_b32 s6, s6, 2
    s_lshr_b32 s7, {S(sCS)}, 1
    s_add_u32 s6, s6, s7
    s_lshl_b32 s6, s6, 1
    s_and_b32 s7, {S(sRB)}, 1
    s_xor_b32 s7, s7, 1
    s_add_u32 s6, s6, s7
    s_lshl_b32 s6, s6, 1
    s_and_b32 s7, {S(sWV)}, 1
    s_add_u32 s6, s6, s7
    s_lshl_b32 s6, s6, 1
    s_lshr_b32 s7, {S(sRB)}, 4
    s_add_u32 s6, s6, s7
    s_lshl_b32 s6, s6, 7
    s_add_u32 s39, s6, {flp}
    s_cmp_eq_u32 s7, 0
    s_cselect_b32 s83, {hex(OOB)}, s39
    """])

def body(b, T0, name, RA, vPk0, HOP, few=None, SP=(3, 4, 2, 5), PT=3, AC=30, EV=9, PNT='', WI=(3, 5), NE=2, dbg=(), ZS=2, CS=6, CA=False, ZR=0, AT=1, OW=True, OM='', XL=True, AR=60):
    class TT:
        def stamp(self, b, nm):
            if few is None or nm in few: T0.stamp(b, nm)
    T = TT()
    R = {"x": RA["dbg"], "ws": RA["ws"], "bsp": 8, "out": 12}
    sWS = S(R["ws"], 4); sX = S(R["x"], 4)
    sRd, sDone, sNew, sWr, sLr = 65, 66, 67, 70, 71
    PF = lambda x, f: A(12*x + 4*f, 4)
    def ldP(x): return toI([f"s_add_u32 {S(sT)}, s38, {x*32*20*4096}"] + [f"buffer_load_dwordx4 {PF(x, f)}, {V(28+f)}, {sWS}, {S(sT)} offen sc1{PNT}" for f in range(3)])
    bmain = b; b = B()
    b(f"""
    s_mov_b32 s10, {hex(SIZE['bsp'])}
    s_mov_b32 s11, 0x20000
    s_mov_b32 s14, {hex(SIZE['out'])}
    s_mov_b32 s15, 0x20000
    v_lshrrev_b32 {V(vG)}, 4, v0
    v_and_b32 {V(vR)}, 15, v0
    """)
    sB5, sE5, sB7, sE7 = 36, 37, 56, 57
    sW, sXo, sW1, sW2, sRow, sLb, sSp = 58, 59, 60, 61, 62, 76, 77
    SM, SV, TB = 156 * 1024, 157 * 1024, 140 * 1024
    vFW, vOne, vPa, vPoll, vSm, vOob = 40, 12, 13, 14, 38, 39
    vSt, vSl, vVec, vXm = 36, 37, 41, 170
    slices(b, 7, sB7, sE7)
    at5 = tile_voffs(b, 5, sB5, sE5, 4, 5, 6, 1024, vL16)
    at7 = tile_voffs(b, 7, sB7, sE7, 4, 5, 7, 1024, vL16)
    b(f"""
    s_mul_i32 {S(sW1)}, {S(sWV)}, {108*1024}
    s_lshl_b32 {S(sT)}, {S(sB7)}, 10
    s_add_u32 {S(sW1)}, {S(sW1)}, {S(sT)}
    s_add_u32 {S(sW1)}, {S(sW1)}, {WS_WIN - 1024}
    s_add_u32 {S(sW2)}, {S(sW1)}, {54*1024}
    s_mul_i32 {S(sLb)}, {S(sWV)}, 7168
    s_lshl_b32 {S(sRow)}, {S(sRB)}, 2
    s_add_u32 {S(sRow)}, {S(sRow)}, {S(sWV)}
    v_mov_b32 {V(vOob)}, {hex(OOB)}
    v_mov_b32 {V(vFW)}, {hex(OOB)}
    v_writelane_b32 {V(vFW)}, 0, 0
    s_mul_i32 s68, {S(sRow)}, {16*1280}
    s_lshl_b32 s69, {S(sE5)}, 5
    s_add_u32 s69, s69, s68
    s_lshl_b32 s70, {S(sB5)}, 5
    s_add_u32 s68, s68, s70
    v_lshlrev_b32 {V(vSl)}, 6, {V(vR)}
    v_cmp_eq_u32 vcc, 0, {V(vG)}
    v_cndmask_b32 {V(vSt)}, {V(vOob)}, {V(vSl)}, vcc
    v_lshl_add_u32 {V(vSl)}, {V(vG)}, 4, {V(vSl)}
    s_lshl_b32 s63, {S(sRow)}, 10
    s_lshl_b32 {S(sT2)}, {S(sCS)}, 3
    s_add_u32 s64, s63, {S(sT2)}
    s_lshl_b32 {S(sSp)}, {S(sRB)}, 18
    s_add_u32 {S(sSp)}, {S(sSp)}, {WS_WSP}
    v_lshlrev_b32 {V(vSm)}, 4, {V(vG)}
    v_add_u32 {V(vSm)}, {SM}, {V(vSm)}
    """)
    for t in range(4):
        b(f"""
        s_lshr_b32 {S(sT)}, {S(sRB)}, 2
        s_add_u32 {S(sT)}, {S(sT)}, {1 + t}
        s_and_b32 {S(sT)}, {S(sT)}, 3
        s_lshl_b32 {S(sT)}, {S(sT)}, 2
        s_add_u32 {S(16+t)}, {S(sT)}, {S(sWV)}
        s_lshl_b32 {S(sT)}, {S(16+t)}, 13
        s_add_u32 {S(20+t)}, {S(sT)}, {S(sSp)}
        """)
    kofs = lambda k: (32 if (k & 3) < 2 else 0) + (k & 1)
    def small_voff(dst, per, sB, sE, mul, strides):
        b(f"""
        v_mul_u32_u24 v44, {mul}, v0
        v_lshrrev_b32 v44, 10, v44
        v_mul_u32_u24 v45, {4*per}, v44
        v_sub_u32 v45, v0, v45
        v_lshlrev_b32 v46, 4, v45
        s_lshl_b32 {S(sT)}, {S(sB)}, 6
        s_sub_u32 {S(sT2)}, {S(sE)}, {per-1}
        s_lshl_b32 {S(sT2)}, {S(sT2)}, 6
        """)
        if per == 7: b(f"s_cmp_ge_u32 {S(sCS)}, 6"); b(f"s_cselect_b32 {S(sT2)}, {hex(OOB)}, {S(sT2)}")
        b(f"""
        v_mov_b32 v47, {S(sT)}
        v_mov_b32 {V(dst)}, {S(sT2)}
        v_cmp_gt_u32 vcc, {4*(per-1)}, v45
        v_cndmask_b32 v47, {V(dst)}, v47, vcc
        v_add_u32 v46, v46, v47
        v_mov_b32 {V(dst)}, {V(vOob)}
        """)
        for k, st in enumerate(strides):
            b(f"v_add_u32 v47, {st}, v46"); b(f"v_cmp_eq_u32 vcc, {k}, v44"); b(f"v_cndmask_b32 {V(dst)}, {V(dst)}, v47, vcc")
    small_voff(42, 5, sB5, sE5, 52, [WS_MOD + 2*2560, WS_MOD + 4*2560, WS_MOD + 5*2560])
    small_voff(vVec, 7, sB7, sE7, 37, [WS_VEC, WS_VEC + 0x2000])
    if XL:
        for i in range(3):
            b(f"""
            v_add_u32 v44, {64*i}, v0
            v_mul_u32_u24 v45, 205, v44
            v_lshrrev_b32 v45, 11, v45
            v_mul_u32_u24 v45, 1280 - 160, v45
            v_lshl_add_u32 {V(60+i)}, v44, 4, v45
            """)
        b(f"""
        v_cmp_gt_u32 vcc, 32, v0
        v_cndmask_b32 v62, {V(vOob)}, v62, vcc
        s_mul_i32 s72, {S(sRow)}, {16*1280}
        s_mul_i32 {S(sT)}, {S(sCS)}, 160
        s_add_u32 s72, s72, {S(sT)}
        s_mul_i32 s73, {S(sWV)}, 3072
        s_add_u32 s73, s73, {TB}
        v_mul_u32_u24 v44, 160, {V(vR)}
        v_lshl_add_u32 v44, {V(vG)}, 3, v44
        s_and_b32 {S(sT)}, {S(sCS)}, 1
        s_lshl_b32 {S(sT2)}, {S(sT)}, 5
        s_add_u32 {S(sT2)}, {S(sT2)}, s73
        v_add_u32 v63, {S(sT2)}, v44
        s_lshl_b32 {S(sT)}, {S(sT)}, 7
        s_sub_u32 {S(sT)}, s73, {S(sT)}
        v_add_u32 v59, {S(sT)}, v44
        """)
    SEL = 44
    b(f"""
    v_lshlrev_b32 v56, 2, {V(vG)}
    v_sub_u32 v56, {V(vR)}, v56
    v_mov_b32 v57, 0x3f80
    v_mov_b32 v58, 0x3f800000
    v_cmp_eq_u32 vcc, 0, v56
    v_cndmask_b32 v44, 0, v57, vcc
    v_cmp_eq_u32 vcc, 1, v56
    v_cndmask_b32 v44, v44, v58, vcc
    v_cmp_eq_u32 vcc, 2, v56
    v_cndmask_b32 v45, 0, v57, vcc
    v_cmp_eq_u32 vcc, 3, v56
    v_cndmask_b32 v45, v45, v58, vcc
    v_mov_b32 v46, 0
    v_mov_b32 v47, 0
    v_mov_b32 v48, 0
    v_mov_b32 v49, 0
    v_mov_b32 v50, v44
    v_mov_b32 v51, v45
    s_bitcmp1_b32 {S(sE5)}, 0
    s_cselect_b64 vcc, -1, 0
    """)
    for k in range(4): b(f"v_cndmask_b32 {V(52+k)}, {V(44+k)}, {V(48+k)}, vcc")
    b(f"""
    s_mov_b32 {S(sRd)}, 0
    s_mov_b32 {S(sDone)}, 0
    s_mov_b32 {S(sWr)}, {S(sW2)}
    """)
    if bmain is None: return toI([re.sub(r"\bs52\b", "s7", re.sub(r"\bs51\b", "s6", i.t)).replace("vcc", "s[4:5]") for i in b.cur])
    b = bmain
    def dmaW(nW, at, soff, goff, sl, loff, tag, valid=None):
        o = [f"s_add_u32 {S(sT2)}, {S(soff)}, {goff}"]
        if valid: o += [valid, f"s_cselect_b32 {S(sT2)}, {S(sT2)}, {hex(OOB)}"]
        for n in range(nW):
            v, ofs = at(n)
            if ofs == 0: o.append(f"s_add_u32 m0, {S(sl)}, {loff + n*1024}")
            o.append(I(f"buffer_load_dwordx4 {v}, {sWS}, {S(sT2)} offen offset:{ofs} sc1 lds", tag))
        return toI(o)
    dW2 = lambda r: dmaW(7, at7, sW2, 4*r*108*1024, sLb, 4*r*7168, "w2")
    dW1 = lambda r: dmaW(7, at7, sW1, 4*r*108*1024, sLb, 4*r*7168, "w1a" if r < ZR else "w1")
    def arrive_ins(tag, line_ins):
        return toI(line_ins + [f"s_lshl_b32 {S(sT)}, {S(sT)}, 7", f"s_add_u32 {S(sT)}, {S(sT)}, {WS_FL2}", f"@waitvm {tag}",
                               f"buffer_atomic_add {V(vOne)}, {V(vFW)}, {sWS}, {S(sT)} offen"])
    poll = f"buffer_load_dword {V(vPoll)}, {V(vPa)}, {sWS}, 0 offen sc1"
    def poll_addr(line_ins, four):
        o = line_ins + [f"s_lshl_b32 {S(sT)}, {S(sT)}, 7", f"s_add_u32 {S(sT)}, {S(sT)}, {WS_FL2}"]
        if four: o += [f"v_and_b32 {V(vPa)}, 3, v0", f"v_lshl_add_u32 {V(vPa)}, {V(vPa)}, 7, {S(sT)}"]
        else: o += [f"v_mov_b32 {V(vPa)}, {S(sT)}"]
        return toI(o)
    def spin(lab, test, again):
        b(test)
        b(f"s_cbranch_vccnz {lab}_w")
        b.outline(f"{lab}_w", [f"s_mov_b32 {S(sT3)}, 0", f"{lab}_spin:", again, f"s_add_u32 {S(sT3)}, {S(sT3)}, 1", f"s_cmp_gt_u32 {S(sT3)}, {SPIN_MAX}",
                               "s_waitcnt vmcnt(0)", f"s_cbranch_scc1 {lab}_ok", test, f"s_cbranch_vccnz {lab}_spin"], f"{lab}_ok")
    def spin_cnt(lab, target): spin(lab, f"v_cmp_gt_u32 vcc, {target}, {V(vPoll)}", ([f"s_sleep {CS}"] if CS else []) + [poll])
    sFl = 39
    apoll = [f"v_mov_b32 {V(vPoll)}, 0", f"buffer_atomic_add {V(vPoll)}, {V(vFW)}, {sWS}, {S(sFl)} offen sc0"]
    def arrive_ret(tag, line):
        return toI([f"s_add_u32 {S(sFl)}, {S(sRow)}, {line}", f"s_lshl_b32 {S(sFl)}, {S(sFl)}, 7", f"s_add_u32 {S(sFl)}, {S(sFl)}, {WS_FL2}", f"v_mov_b32 {V(vPoll)}, 1"]
                   + ([f"@waitvm {tag}"] if tag else []) + [f"buffer_atomic_add {V(vPoll)}, {V(vFW)}, {sWS}, {S(sFl)} offen sc0"])
    def spin_at(lab, first, target):
        b(f"v_readfirstlane_b32 {S(sT)}, {V(vPoll)}"); b(f"s_cmp_ge_u32 {S(sT)}, {first}"); b(f"s_cbranch_scc1 {lab}_ok")
        sts = b.flush()
        b(f"s_mov_b32 {S(sT3)}, 0")
        b.label(f"{lab}_spin")
        b(apoll)
        b(f"s_add_u32 {S(sT3)}, {S(sT3)}, 1")
        b(f"s_cmp_gt_u32 {S(sT3)}, {SPIN_MAX}")
        b("s_waitcnt vmcnt(0)")
        b(f"s_cbranch_scc1 {lab}_ok")
        b(f"v_readfirstlane_b32 {S(sT)}, {V(vPoll)}"); b(f"s_cmp_lt_u32 {S(sT)}, {target}"); b(f"s_cbranch_scc1 {lab}_spin")
        b.label(f"{lab}_ok", sts + b.flush())
    def spin_st(lab, st, ld):
        spin(lab, [f"v_cmp_gt_f32 vcc, 0, {V(st+1)}", f"v_cmp_gt_f32 s[72:73], 0, {V(st+3)}", "s_or_b64 vcc, vcc, s[72:73]"], ld)
    def capture(f):
        n = len(b.cur); f(); o = b.cur[n:]; del b.cur[n:]; return o
    def tagged(f, tag):
        o = capture(f)
        if "nox2" in dbg: o = [i for i in o if i.op != "buffer_store_dwordx2"]
        for i in o:
            if i.kind == "vmem": i.tag = tag
        b(o)
    def weave_v(valu, groups, every):
        groups = list(groups)
        for k, i in enumerate(valu):
            b(i)
            if k % every == every - 1 and groups: b(groups.pop(0))
        for g in groups: b(g)
    def emit_marks(sc, hooks):
        cur = []
        for i in sc.emit():
            if i.kind == "pseudo" and i.op == "@mark": b(cur); cur = []; hooks[i.t.split()[1]]()
            else: cur.append(i)
        b(cur)
    def xs(k, m):
        k = k % 14
        return A((240 - 16*k if k < 11 else 32 + 16*(k - 11)) + 4*m, 4)
    def lS(k): return toI([f"s_add_u32 {S(sT)}, {S(20 + (k >> 2))}, {kofs(k)*4096}"] + [f"buffer_load_dwordx4 {xs(k, m)}, {V(vXm+m)}, {sWS}, {S(sT)} offen sc1" for m in range(4)])
    spn = [0]
    def more_sp(n):
        o = []
        for _ in range(n): o += lS(spn[0]); spn[0] += 1
        return o
    XP, GA, AB, X1 = 96, 56, 76, 16
    b(f"""
    v_readfirstlane_b32 {S(sNew)}, {V(vPk0)}
    v_mov_b32 v14, {V(vPk0)}
    s_and_b32 {S(sNew)}, {S(sNew)}, {(1 << NE) - 1}
    s_cmp_lg_u32 {S(sNew)}, {(1 << NE) - 1}
    s_cbranch_scc1 {name}_ne
    """)
    b.flush()
    for x in range(NE): b(ldP(x))
    b(f"s_mov_b32 {S(sDone)}, {(1 << NE) - 1}")
    b.label(name + "_ne", [State()])
    if HOP: b("@hop c")
    b(f"""
    v_mov_b32 {V(vOne)}, 1
    s_mov_b32 {S(sLr)}, {S(sLb)}
    s_mov_b32 s3, 0
    s_barrier
    s_waitcnt vmcnt({3*NE})
    s_cmp_lg_u32 {S(sDone)}, 0
    s_cbranch_scc1 {name}_ak
    s_waitcnt vmcnt(0)
    """)
    b.label(name + "_ak")
    b(f"buffer_atomic_add v31, v16, {sWS}, s75 offen")
    T.stamp(b, "arrP")
    b(f"s_mov_b32 m0, {SM}"); b(f"buffer_load_dwordx4 v42, {sWS}, 0 offen sc1 lds")
    for h in range(2):
        b(f"s_mov_b32 m0, {SV + 1024*h}"); b(f"s_mov_b32 {S(sT)}, {h*54*64}"); b(f"buffer_load_dwordx4 {V(vVec)}, {sWS}, {S(sT)} offen sc1 lds")
    if XL:
        for i in range(3): b(f"s_add_u32 m0, s73, {i*1024}"); b(f"buffer_load_dwordx4 {V(60+i)}, {sX}, s72 offen lds")
    else:
        for n in range(5): b(f"buffer_load_dwordx2 {V(XP+2*n,2)}, v15, {sX}, {'s68' if n < 4 else 's69'} offen offset:{32*n if n < 4 else 0}")
    for m in range(4):
        b(f"s_add_u32 {S(sT)}, {S(sWV)}, {m}"); b(f"s_and_b32 {S(sT)}, {S(sT)}, 3"); b(f"s_lshl_b32 {S(sT)}, {S(sT)}, 10")
        b(f"v_add_u32 {V(vXm+m)}, {S(sT)}, {V(vL16)}")
    def w2round():
        return dmaW(7, at7, sWr, 0, sLr, 0, "w2") + toI([f"s_add_u32 {S(sWr)}, {S(sWr)}, {4*108*1024}", f"s_add_u32 {S(sLr)}, {S(sLr)}, {4*7168}", f"s_add_u32 {S(sRd)}, {S(sRd)}, 1"])
    b.flush(); b.label(name + "_pl", [State()])
    b(f"""
    v_readfirstlane_b32 {S(sNew)}, {V(vPoll)}
    s_andn2_b32 {S(sNew)}, {S(sNew)}, {S(sDone)}
    s_or_b32 {S(sDone)}, {S(sDone)}, {S(sNew)}
    """)
    for x in range(8):
        b(f"s_bitcmp0_b32 {S(sNew)}, {x}"); b(f"s_cbranch_scc1 {name}_px{x}"); b(ldP(x))
        if x in WI: b(f"s_cmp_ge_u32 {S(sRd)}, 5"); b(f"s_cbranch_scc1 {name}_px{x}"); b(w2round())
        b.flush(); b.label(f"{name}_px{x}", [State()])
    b(f"""
    s_cmp_eq_u32 {S(sDone)}, 0xff
    s_cbranch_scc1 {name}_po
    s_add_u32 s3, s3, 1
    s_cmp_gt_u32 s3, {SPIN_MAX}
    s_cbranch_scc1 {name}_po
    s_cmp_ge_u32 {S(sRd)}, 5
    s_cbranch_scc1 {name}_pn
    """)
    b(w2round()); b.flush(); b.label(name + "_pn", [State()])
    b(apoll); b("s_waitcnt vmcnt(0)"); b(f"s_branch {name}_pl")
    b.flush(); b.label(name + "_po", [State()])
    T.stamp(b, "gotP")
    b(f"s_cmp_ge_u32 {S(sRd)}, 5"); b(f"s_cbranch_scc1 {name}_pw")
    b(w2round()); b("s_waitcnt vmcnt(7)"); b(f"s_branch {name}_pz"); s1 = b.flush()
    b.label(name + "_pw", [State()]); b("s_waitcnt vmcnt(0)")
    b.label(name + "_pz", s1 + b.flush())
    if XL:
        for n in range(5): b(f"ds_read_b64 {V(XP+2*n,2)}, {V(59 if n == 4 else 63)} offset:{32*n}")
    for n in range(5):
        b(f"ds_read_b128 {V(GA+4*n,4)}, {V(vSm)} offset:{n*64}"); b(f"ds_read_b128 {V(AB+4*n,4)}, {V(vSm)} offset:{320 + n*64}")
    sc = Sched([MF(V(X1 + 4*n, 4), V(SEL + (8 if n == 4 else 4*(n & 1)), 4), PF(x, n >> 1), V(X1 + 4*n, 4) if x else "0") for n in range(5) for x in range(8)])
    sc.seq([y for n in range(5) for j in range(2) for y in (f"v_lshlrev_b32 {V(112+4*n+2*j)}, 16, {V(XP+2*n+j)}", f"v_and_b32 {V(113+4*n+2*j)}, 0xffff0000, {V(XP+2*n+j)}")], 3 if XL else 0)
    for n in range(4):
        sc.seq([f"v_fma_f32 {V(X1+k)}, {V(X1+k)}, {V(GA+k)}, {V(112+k)}" for k in range(4*n, 4*n + 4)]
               + [f"v_mul_f32 {V(GA+k)}, {V(X1+k)}, {V(AB+k)}" for k in range(4*n, 4*n + 4)], max(8*n + 12, 14))
    b(sc.emit())
    T.stamp(b, "red")
    for k in (16, 18): b(f"v_pk_fma_f32 {V(X1+k,2)}, {V(X1+k,2)}, {V(GA+k,2)}, {V(112+k,2)}")
    for k in (16, 18): b(f"v_pk_mul_f32 {V(GA+k,2)}, {V(X1+k,2)}, {V(AB+k,2)}")
    tagged(lambda: store_act(b, sWS, 5, GA, WS_XA, 20, sB5, sE5, 12, " sc1"), "A")
    row_sums(b, X1, 20, 116, 112)
    b(f"s_add_u32 {S(sT)}, s64, {WS_ST1}")
    b(f"buffer_store_dwordx2 v[116:117], {V(vSt)}, {sWS}, {S(sT)} offen sc1")
    def w2if(tag):
        b(f"s_cmp_ge_u32 {S(sRd)}, 5"); b(f"s_cbranch_scc1 {name}_{tag}"); sk = b.flush()
        b(w2round()); b.label(f"{name}_{tag}", sk + b.flush())
    b(arrive_ret("A", FA))
    T.stamp(b, "arrA")
    w2if("wa"); w2if("wb"); w2if("wc"); w2if("wd")
    b(more_sp(SP[0]))
    V1, V2, TM, Z2, Z1, ST, ST2 = 76, 104, 104, 132, 48, 160, 164
    b(f"""
    v_mov_b32 v44, {FH(-GC1)}
    v_mov_b32 v45, {FH(-GC1)}
    v_mov_b32 v46, {FH(-GC2)}
    v_mov_b32 v47, {FH(-GC2)}
    v_add_u32 v8, 65536, {V(vL16)}
    v_add_u32 v9, 131072, {V(vL16)}
    @waitvm w2
    s_barrier
    """)
    NR = 12
    def wring(i): return V(176 + 4*(i % NR), 4)
    def rdl(i, addr): return f"ds_read_b128 {wring(i)}, {V((vL16, 8, 9)[addr >> 16])} offset:{addr & 0xffff}"
    def msplit(order, accf, xf, addr, lead=10, cont=False):
        seen = set(range(7)) if cont else set(); mf = []
        for i, (ks, n) in enumerate(order):
            mf.append(MF(accf(n), wring(i), xf(ks), accf(n) if n in seen else "0")); seen.add(n)
        sc = Sched(mf)
        for i in range(lead, len(order)): sc.put(rdl(i, addr(*order[i])), i - lead, force=True)
        for i in range(1, len(order) - 1, 2): sc.raw(f"@need {wring(i+1)} {wring(min(i+2, len(order)-1))}", i, "pre")
        return sc, [rdl(i, addr(*order[i])) for i in range(lead)]
    ordz = [(4*r + k, n) for r in range(5) for n in range(7) for k in range(4)]
    xz = lambda ks: A((32 + 4*ks) % 80, 4)
    adz = lambda ks, n: (ks*7 + n)*1024
    sc2, pre2 = msplit(ordz, lambda n: V(Z2 + 4*n, 4), xz, adz)
    b(pre2)
    spin_at(name + "_pa", 7, 8)
    T.stamp(b, "gotA")
    def lX(reg, ks): return toI([f"s_add_u32 {S(sT)}, {S(sXo)}, {ks*4096}", f"buffer_load_dwordx4 {reg}, {V(vL16)}, {sWS}, {S(sT)} offen sc1"])
    for ks in range(8): b(lX(xz(ks), ks))
    def place(sc, groups, g0, step):
        g = g0
        for gr in groups:
            for x in gr[:-1]: sc.raw(x, g - 1, "post")
            sc.put(gr[-1], g, force=True); g += step
        return g
    ldst1 = f"buffer_load_dwordx4 {V(ST,4)}, {V(vSl)}, {sWS}, s66 offen sc1"
    ldst2 = f"buffer_load_dwordx4 {V(ST2,4)}, {V(vSl)}, {sWS}, s66 offen sc1"
    g = place(sc2, [lX(xz(ks), ks) for ks in range(8, 20)] + [toI([f"s_add_u32 s66, s63, {WS_ST1}", ldst1])], 1, 4)
    g = max(g, 58)
    sc2.raw("s_barrier", g - 1, "pre")
    w1 = [x for r in range(5) for x in vgroups(dW1(r))]
    g = place(sc2, w1[:14], g + 1, 5); assert g < 146
    for n in range(7):
        sc2.raw(f"ds_read_b128 {V(V1+4*n,4)}, {V(vSm)} offset:{1024 + 1024 + n*64}", 122 + 2*n, "post")
        sc2.raw(f"ds_read_b128 {V(V2+4*n,4)}, {V(vSm)} offset:{1024 + 1024 + 448 + n*64}", 123 + 2*n, "post")
    b(sc2.emit())
    b("s_barrier")
    T.stamp(b, "g2")
    spin_st(name + "_p1", ST, ldst1)
    def apply2():
        for k in range(0, 28, 2): b(f"v_pk_fma_f32 {V(Z2+k,2)}, {V(V1+k,2)}, {V(ST,2)}, {V(Z2+k,2)} op_sel_hi:[1,0,1]")
        for k in range(0, 28, 2): b(f"v_pk_fma_f32 {V(Z2+k,2)}, {V(Z2+k,2)}, {V(ST+2,2)}, {V(V2+k,2)} op_sel_hi:[1,0,1]")
    ep = capture(lambda: (fin_stats(b, ST, 640, 164), apply2(), gelu(b, Z2, 28, TM, 44, 46), row_sums(b, Z2, 28, 164, TM)))
    nv = min(21, len(ep) // EV // 7 * 7)
    weave_v(ep, w1[14:14 + nv], EV)
    b(f"s_add_u32 {S(sT)}, s64, {WS_ST2}")
    b(f"buffer_store_dwordx2 v[164:165], {V(vSt)}, {sWS}, {S(sT)} offen sc1")
    b(arrive_ret(None, FB))
    T.stamp(b, "e2")
    for gr in w1[14 + nv:]: b(gr)
    b(f"s_add_u32 s66, s63, {WS_ST2}")
    if ZR:
        sca, prea = msplit(ordz[:28*ZR], lambda n: V(Z1 + 4*n, 4), xz, adz)
        b("@waitvm w1a"); b("s_barrier"); b(prea)
    else: b(more_sp(SP[1] // 2))
    b(f"""
    v_lshlrev_b32 v168, 5, {V(vR)}
    v_lshl_add_u32 v168, {V(vG)}, 3, v168
    s_lshl_b32 {S(sT)}, {S(sWV)}, 9
    s_add_u32 {S(sT)}, {S(sT)}, {TB}
    v_add_u32 v174, {S(sT)}, v168
    s_and_b32 {S(sT)}, {S(sWV)}, 1
    s_lshr_b32 {S(sT2)}, {S(sWV)}, 1
    s_lshl_b32 {S(sT3)}, {S(sT)}, 10
    s_lshl_b32 s65, {S(sT2)}, 13
    s_add_u32 {S(sT3)}, {S(sT3)}, s65
    s_add_u32 {S(sT3)}, {S(sT3)}, {TB}
    v_lshl_add_u32 v175, v0, 3, {S(sT3)}
    s_lshl_b32 s65, {S(sRB)}, 1
    s_add_u32 s65, s65, {S(sT)}
    s_mul_i32 s65, s65, {54*1024}
    s_add_u32 s65, s65, {WS_Z2}
    s_lshl_b32 s70, {S(sT2)}, 2
    s_add_u32 s70, s70, {S(sB7)}
    s_lshl_b32 s70, s70, 10
    s_add_u32 s70, s70, s65
    s_lshl_b32 s67, {S(sE7)}, 10
    s_add_u32 s67, s67, s65
    s_cmp_ge_u32 {S(sCS)}, 6
    s_cselect_b32 s67, {hex(OOB)}, s67
    s_add_u32 s74, s70, 2048
    s_add_u32 s75, s70, 3072
    s_cmp_eq_u32 {S(sT2)}, 1
    s_cselect_b32 s74, s67, s74
    s_cselect_b32 s75, {hex(OOB)}, s75
    """)
    if ZR:
        g = place(sca, vgroups(more_sp(SP[1] // 2)) + [toI(apoll)], 1, 4)
        gm = max(g + 8, 28*ZR - 30)
        sca.raw("@mark pb", gm - 2, "post2")
        place(sca, [toI([ldst2])] + vgroups(more_sp(SP[1] - SP[1] // 2)), gm, 4)
        emit_marks(sca, {"pb": lambda: spin_at(name + "_pb", 8, 8)})
    else:
        spin_at(name + "_pb", 7, 8)
        b(ldst2)
        b(more_sp(SP[1] - SP[1] // 2))
    spin_st(name + "_p2", ST2, ldst2)
    T.stamp(b, "gotB")
    def norm():
        fin_stats(b, ST2, 864, 168)
        b(f"v_mul_f32 {V(ST2)}, {V(ST2)}, {V(ST2+2)}")
        for n in range(7):
            for k in (4*n, 4*n + 2): b(f"v_pk_fma_f32 {V(Z2+k,2)}, {V(Z2+k,2)}, {V(ST2+2,2)}, {V(ST2,2)} op_sel_hi:[1,0,0]")
            for k in (2*n, 2*n + 1): b(f"v_cvt_pk_bf16_f32 {V(76+k)}, {V(Z2+2*k)}, {V(Z2+2*k+1)}")
            b(f"ds_write_b64 v174, {V(76+2*n,2)} offset:{n*2048}")
    weave_v(capture(norm), vgroups(more_sp(SP[2])) if SP[2] else [], 6)
    assert spn[0] <= 11 + ZR
    b("@waitvm w1"); b("s_waitcnt lgkmcnt(0)"); b("s_barrier")
    for n in range(4):
        for hf in range(2): b(f"ds_read_b64_tr_b16 {V(104+4*n+2*hf,2)}, v175 offset:{n*2048 + hf*512}")
    sc1, pre1 = msplit(ordz[28*ZR:], lambda n: V(Z1 + 4*n, 4), xz, adz, cont=ZR > 0)
    n1 = 140 - 28*ZR
    b(pre1[:6])
    for n in range(4):
        b(f"buffer_store_dwordx4 {V(104+4*n,4)}, {V(vL16)}, {sWS}, {('s70','s70','s74','s75')[n]} offen offset:{1024 if n == 1 else 0} sc1", "C")
    b(pre1[6:])
    T.stamp(b, "stC")
    arr = arrive_ins("C", [f"s_lshl_b32 {S(sT)}, {S(sCS)}, 4", f"s_and_b32 {S(sT2)}, {S(sRB)}, 15", f"s_add_u32 {S(sT)}, {S(sT)}, {S(sT2)}", f"s_add_u32 {S(sT)}, {S(sT)}, {FC}"])
    def pcs(t):
        a = [f"s_lshl_b32 {S(sFl)}, {S(sCS)}, 4", f"s_add_u32 {S(sFl)}, {S(sFl)}, {S(16+t)}", f"s_lshl_b32 {S(sFl)}, {S(sFl)}, 7", f"s_add_u32 {S(sFl)}, {S(sFl)}, {WS_FL2 + FC*128}"]
        return toI(a + (apoll if CA else [f"v_mov_b32 {V(vPa)}, {S(sFl)}", poll]))
    def spin_c(lab): spin_at(lab, 8, 8) if CA else spin_cnt(lab, 8)
    pc = pcs(0)
    wg = lambda k, n: V(76 + 28*(k % 3) + 4*n, 4)
    def lZ(k):
        o = [f"s_add_u32 {S(sT2)}, {S(24 + (k >> 2))}, {kofs(k)*54*1024}"]
        for n in range(7):
            v, ofs = at7(n); o.append(f"buffer_load_dwordx4 {wg(k, n)}, {v}, {sWS}, {S(sT2)} offen offset:{ofs} sc1")
        return toI(o)
    g = 1
    for t in range(SP[3] + 1):
        if t == AT: g = place(sc1, [arr], max(g, AC), 4)
        if t == PT: g = place(sc1, [pc], g, 4); gp = g
        if t < SP[3]:
            if spn[0] >= 11: g = max(g, 28 * (spn[0] - 10 - ZR) + 1)
            g = place(sc1, vgroups(more_sp(1)), g, 4)
    assert spn[0] <= 14
    g = place(sc1, [toI([f"s_lshl_b32 {S(sT)}, {S(sRow)}, 5", f"v_lshlrev_b32 v42, 1, {V(vR)}", f"buffer_load_ushort v42, v42, {S(R['bsp'],4)}, {S(sT)} offen"])], g, 4)
    g = max(g, gp + 24)
    sc1.raw("@mark pc", g - 2, "post2")
    place(sc1, vgroups(lZ(0) + lZ(1)), g, 3)
    sc1.raw(toI([f"""
    s_lshl_b32 s65, {S(sB7)}, 10
    s_add_u32 {S(sW)}, s65, {WS_Z2 - 1024}
    s_mul_i32 s24, s16, {2*54*1024}
    s_mul_i32 s25, s17, {2*54*1024}
    s_mul_i32 s26, s18, {2*54*1024}
    s_mul_i32 s27, s19, {2*54*1024}
    s_add_u32 s24, s24, {S(sW)}
    s_add_u32 s25, s25, {S(sW)}
    s_add_u32 s26, s26, {S(sW)}
    s_add_u32 s27, s27, {S(sW)}
    s_mul_i32 {S(sW1)}, {S(sWV)}, {40*1024}
    s_lshl_b32 s65, {S(sB5)}, 10
    s_add_u32 {S(sW1)}, {S(sW1)}, s65
    s_add_u32 {S(sW1)}, {S(sW1)}, {WS_WOUT - 1024}
    s_mul_i32 {S(sLb)}, {S(sWV)}, 5120
    s_mov_b32 s70, {FH(-GC2)}
    """]), 10, "post")
    emit_marks(sc1, {"pc": lambda: (spin_c(name + "_pc"), T.stamp(b, "gotC"))})
    T.stamp(b, "g1")
    G = 176
    def gacc(n, m):
        if m == 0: return A(4*n, 4)
        i = (m - 1)*7 + n
        return V(G + 4*i, 4) if i < 20 else A(28, 4)
    OB = lambda r: 49152 + r*20480 if r < 5 else (r - 5)*20480
    dWo = lambda r: dmaW(5, at5, sW1, 4*r*40*1024, sLb, OB(r), "wo", valid=f"s_cmp_lt_u32 {S(sWV)}, 3" if r == 6 else None)
    def z1rd(n): return [f"ds_read_b128 v[164:167], {V(vSm)} offset:{1024 + n*64}", f"ds_read_b128 v[8:11], {V(vSm)} offset:{1024 + 448 + n*64}"]
    def z1ep(n):
        z = Z1 + 4*n; tt = (168, 169, 174, 175); o = []
        o += [f"v_fmac_f32 {V(z+r)}, {V(164+r)}, {V(ST)}" for r in range(4)]
        o += [f"v_fma_f32 {V(z+r)}, {V(z+r)}, {V(ST+2)}, {V(8+r)}" for r in range(4)]
        o2 = [f"v_mul_f32 {V(tt[r])}, {V(z+r)}, {V(z+r)}" for r in range(4)]
        o2 += [f"v_fma_f32 {V(tt[r])}, {V(tt[r])}, s70, v44" for r in range(4)]
        o2 += [f"v_mul_f32 {V(tt[r])}, {V(tt[r])}, {V(z+r)}" for r in range(4)]
        o2 += [f"v_exp_f32 {V(tt[r])}, {V(tt[r])}" for r in range(4)]
        o2 += [f"v_add_f32 {V(tt[r])}, 1.0, {V(tt[r])}" for r in range(4)]
        o2 += [f"v_rcp_f32 {V(tt[r])}, {V(tt[r])}" for r in range(4)]
        o2 += [f"v_mul_f32 {V(z+r)}, {V(z+r)}, {V(tt[r])}" for r in range(4)]
        return o, o2
    b(z1rd(0))
    radr = []
    for m in range(1, 4):
        radr += [f"s_add_u32 s65, {S(sWV)}, {m}", "s_and_b32 s65, s65, 3", "s_mul_i32 s65, s65, 12288", f"s_add_u32 s65, s65, {(m-1)*4096}",
                 f"v_add_u32 {V(160+m)}, s65, {V(vL16)}"]
    radr += [f"s_mul_i32 s65, {S(sWV)}, 12288", f"v_add_u32 v160, s65, {V(vL16)}",
             f"v_add_u32 v8, 65536, {V(vL16)}", f"v_add_u32 v9, 131072, {V(vL16)}"]
    selm = toI([f"""
    v_lshlrev_b32 v168, 2, {V(vG)}
    v_sub_u32 v168, {V(vR)}, v168
    v_mov_b32 v169, 0x3f80
    v_mov_b32 v174, 0x3f800000
    v_cmp_eq_u32 vcc, 0, v168
    v_cndmask_b32 v164, 0, v169, vcc
    v_cmp_eq_u32 vcc, 1, v168
    v_cndmask_b32 v164, v164, v174, vcc
    v_cmp_eq_u32 vcc, 2, v168
    v_cndmask_b32 v165, 0, v169, vcc
    v_cmp_eq_u32 vcc, 3, v168
    v_cndmask_b32 v165, v165, v174, vcc
    v_mov_b32 v166, 0
    v_mov_b32 v167, 0
    v_mov_b32 v44, 0
    v_mov_b32 v45, 0
    v_mov_b32 v46, v164
    v_mov_b32 v47, v165
    v_lshlrev_b32 v42, 16, v42
    """])
    wo_early = [x for r in range(5) for x in vgroups(dWo(r))]
    rno = lambda t: int(t[2:t.index(":")])
    cv = lambda d, x: f"v_cvt_pk_bf16_f32 {V(d)}, {V(x)}, {V(x+1)}"
    def packw(m, p):
        r0 = rno(gacc(2*p, m)); o = []
        if p < 3: o += [cv(r0, r0), cv(r0+1, r0+2), cv(r0+2, r0+4), cv(r0+3, r0+6)]
        else:
            if m == 3: r0 = 104; o += [f"v_accvgpr_read_b32 {V(r0+k)}, {A(28+k)}" for k in range(4)]
            o += [cv(r0, r0), cv(r0+1, r0+2), f"v_mov_b32 {V(r0+2)}, 0", f"v_mov_b32 {V(r0+3)}, 0"]
        return o + [f"ds_write_b128 {V(160+m)}, {V(r0,4)} offset:{p*1024}"]
    for k in range(16):
        mo = [(n, m) for n in range(7) for m in range(4)] if k < 15 else [(n, m) for m in (3, 1, 2, 0) for n in range(7)]
        sc = Sched([MF(gacc(n, m), wg(k, n), xs(k, m), gacc(n, m) if k else "0") for n, m in mo])
        f = lZ(k + 2) if k + 2 < 16 else [x for gr in wo_early[7*(k-14) : 7*(k-13)] for x in gr]
        if spn[0] < 16 and k >= 2 and spn[0] - k <= 5: f = f + more_sp(1)
        if k in (0, 4, 8): f = pcs(k // 4 + 1) + f
        if k in (2, 6, 10): spin_c(f"{name}_pe{k}")
        sc.seq(f, 0, ZS if k < 14 else 4)
        if k < 14:
            o, o2 = z1ep(k >> 1)
            if k % 2 == 0: sc.seq(o + (z1rd(k//2 + 1) if k < 12 else []) + o2[:12], 0)
            else: sc.seq(o2[12:], 0)
        if k == 13: sc.raw("s_barrier", 27, "post2")
        if k == 14: sc.seq(radr, 0); sc.seq(selm, 0)
        if k == 15:
            g = 0; late = []
            for i, m in enumerate((3, 1, 2)):
                for p in range(4):
                    e = max(g, 7*i + min(2*p + 1, 6) + 5)
                    if e < 24: g = sc.seq(packw(m, p), e) + 1
                    else: late.append(toI(packw(m, p)))
        b(sc.emit())
        if k in (0, 3, 7, 11, 13, 14): T.stamp(b, f"k{k}")
    assert spn[0] == 16
    rest = wo_early[14:]
    for gr in late:
        b(gr)
        if rest: b(rest.pop(0))
    T.stamp(b, "g4")
    b("s_waitcnt lgkmcnt(0)"); b("s_barrier")
    XF = lambda m, p: V(108 + 16*m + 4*p, 4)
    for p in range(4):
        for m in range(3): b(f"ds_read_b128 {XF(m, p)}, v160 offset:{m*4096 + p*1024}")
    sc = Sched([MF(A(4*n, 4), V(44 if n & 1 else 164, 4), XF(m, n >> 1), A(4*n, 4)) for n in range(7) for m in range(3)])
    g = place(sc, rest, 1, 3)
    fin = []
    for n in range(7):
        d = G + 4*n
        fin.append([f"v_accvgpr_read_b32 {V(d+r)}, {A(4*n+r)}" for r in range(4)])
    g = 0
    for n in range(7): g = sc.seq(fin[n], max(g, 3*n + 8))
    b(sc.emit())
    b("s_barrier")
    for k in range(0, 28, 2): b(f"v_pk_add_f32 {V(G+k,2)}, {V(G+k,2)}, v[42:43] op_sel_hi:[1,0]")
    for k in range(0, 28, 2): b(f"v_pk_mul_f32 {V(G+k,2)}, {V(G+k,2)}, {V(Z1+k,2)}")
    tagged(lambda: store_act(b, sWS, 7, G, WS_U, 27, sB7, sE7, 12, " sc1"), "D")
    b(dWo(5))
    b(arrive_ret("D", FD))
    T.stamp(b, "arrD")
    b(dWo(6))
    GB, Y = 48, 76
    for n in range(5): b(f"ds_read_b128 {V(GB+4*n,4)}, {V(vSm)} offset:{640 + n*64}")
    b(f"""
    s_mul_i32 {S(sXo)}, {S(sRB)}, {27*4096}
    s_lshl_b32 {S(sT)}, {S(sWV)}, 10
    s_add_u32 {S(sXo)}, {S(sXo)}, {S(sT)}
    s_add_u32 {S(sXo)}, {S(sXo)}, {WS_U}
    """)
    xu = lambda ks: A(4*ks, 4)
    ordo = [(3*r + k, n) for r in range(9) for n in range(5) for k in range(3)]
    sc5, pre5 = msplit(ordo, lambda n: V(Y + 4*n, 4), xu, lambda ks, n: OB(ks >> 2) + (ks & 3)*5120 + n*1024)
    b("@waitvm wo"); b("s_barrier"); b(pre5)
    spin_at(name + "_pd", 7, 8)
    T.stamp(b, "gotD")
    for ks in range(9): b(lX(xu(ks), ks))
    place(sc5, [lX(xu(ks), ks) for ks in range(9, 27)], 1, 4)
    sc5.seq([f"v_mul_u32_u24 v10, 1280, {V(vR)}", f"v_and_b32 v11, 1, {V(vG)}", "v_lshl_add_u32 v10, v11, 5, v10", f"v_lshrrev_b32 v11, 1, {V(vG)}", "v_lshl_add_u32 v10, v11, 4, v10",
             f"v_mul_u32_u24 v15, 1280, {V(vR)}", f"v_lshl_add_u32 v15, {V(vG)}, 3, v15"], 90)
    b(sc5.emit())
    T.stamp(b, "g5")
    for k in range(0, 20, 2): b(f"v_pk_fma_f32 {V(Y+k,2)}, {V(Y+k,2)}, {V(GB+k,2)}, {V(X1+k,2)}")
    for k in range(10): b(f"v_cvt_pk_bf16_f32 {V(Y+k)}, {V(Y+2*k)}, {V(Y+2*k+1)}")
    if OW:
        b(f"buffer_store_dwordx2 {V(Y+8,2)}, v15, {S(R['out'],4)}, s69 offen{OM}")
        for p in range(2):
            b(f"v_permlane16_swap_b32 {V(Y+4*p)}, {V(Y+4*p+2)}"); b(f"v_permlane16_swap_b32 {V(Y+4*p+1)}, {V(Y+4*p+3)}")
            b(f"buffer_store_dwordx4 {V(Y+4*p,4)}, v10, {S(R['out'],4)}, s68 offen offset:{64*p}{OM}")
    else:
        for n in range(5): b(f"buffer_store_dwordx2 {V(Y+2*n,2)}, v15, {S(R['out'],4)}, {'s68' if n < 4 else 's69'} offen offset:{32*n if n < 4 else 0}{OM}")
```

```python
from common import *

QSCALE = LOG2E / (128 ** 0.5)
NEGBIG = -1.0e30
L_LO, L_HI = 2.0 ** -40, 2.0 ** 40
DB_MOD, DB_MO2 = 0, 32
FL_H, FL_KV, FL_M, FL_K0, FL_T, FL_R = 0, 16, 48, 64, 96, 128
FL_P, FL_CX = 256, 512
CODE_BYTES = 50000
SPIN_MAX = 1000000

def gen(name="ka_kernel", stamps=False, force_fallback=False, fine=False, PF=True, END=72, QEND=104, QST=(4, 4, 3, 3), BA=46, MW=24, QF=24, QB=7, PFP=8, NC1=6, MS0=True, PMG=54, CPF=True, JST=10, HOP=True, HX=(), TLB=-1, QR=0, PW=True, JR0=20, JSP=(43, 55, 65, 81), EXACT=True, MSG=14, QD=(0, 6, 11, 16), S7=2, PFA=(1, 2), PQ4=False, PHG=28, HA=0, drop=(), QMIX=False, DWS=3, KVM=' sc1', KVL=' sc1', CXS=' sc1', CXL=' sc1', M2=False, VST=6, BPOS=3, KST=2, V0=4, OA=2, OD=6, OW=28, OE=4, OX=8, OSP=True, OH=4, OS=4, OT=8, OB1=True, OPF=False, OQ=44, OZ=596, OY=310, OR=0, CX0=3, CX1=5, OL=5, OU=10, OE1=6, OE2=2, OL2=5, OWN=3, LF=False, OG=162, NTS='jm', PST='', total_code=None, tail=None, aslist=False, afew=None, drop2=(), probe=None):
    b = B()
    T = Stamper(stamps, 84, 0)
    if afew is not None:
        _st = T.stamp
        T.stamp = lambda b_, nm, cond=None: _st(b_, nm, cond) if (nm in afew or nm not in ("C0", "kvstart", "kvend", "qend", "blk1end", "attend", "end")) else None
    SC = ' sc1' if tail else ''
    nt = lambda c: ' nt' if c in NTS else ''
    b(f"{name}:")
    b("s_cmp_ge_u32 s2, 256")
    b(f"s_cbranch_scc1 {name}_end")
    T.stamp(b, "start")
    b(f"{name}_go:")
    names_ = ["x", "ckv", "wq", "wuk", "wuv", "ws", "dbg", "wmod", "c"]
    R = {n: 8 + 4*i for i, n in enumerate(names_)}
    for n in ("ckv", "wuk", "wuv", "x", "wq", "ws", "dbg", "wmod", "c"): b(f"s_load_dwordx2 {S(R[n],2)}, s[0:1], {ARG[n]}")
    def build_rest():
        for n in names_:
            if n == "ckv": continue
            b(f"s_mov_b32 {S(R[n]+2)}, {hex(SIZE[n])}"); b(f"s_mov_b32 {S(R[n]+3)}, 0x20000")
    sX, sCKV, sWQ, sWS, sDBG, sWM, sC = (S(R[n], 4) for n in ("x", "ckv", "wq", "ws", "dbg", "wmod", "c"))
    WU = 44; sWU = S(WU, 4)
    sWV, sHD, sJ = 48, 49, 50
    sT, sT2, sT3 = 51, 52, 53
    sCb, sWb, sLw = 54, 55, 56
    sRot = 57
    sBLK, sBLK2, sS, sN = 58, 59, 60, 61
    sKo, sVo, sKb, sVb = 62, 63, 64, 65
    sKs, sVs = 66, 67
    sPass, sSafe = 68, 69
    sHb = 70; sVar = 71
    sMK = 72
    b(f"""
    v_lshrrev_b32 v1, 6, v0
    v_and_b32 v0, 63, v0
    v_readfirstlane_b32 {S(sWV)}, v1
    s_and_b32 {S(sT)}, s2, 7
    s_lshr_b32 {S(sT2)}, s2, 3
    s_and_b32 {S(sHD)}, {S(sT2)}, 3
    s_lshl_b32 {S(sT3)}, {S(sT)}, 2
    s_add_u32 {S(sHD)}, {S(sHD)}, {S(sT3)}
    s_lshr_b32 {S(sJ)}, {S(sT2)}, 2
    s_getpc_b64 s[4:5]
    {name}_pc1:
    s_lshl_b32 s6, {S(sT2)}, 2
    s_add_u32 s6, s6, {S(sWV)}
    s_lshl_b32 s6, s6, 10
    v_and_b32 v91, 7, v0
    v_lshl_add_u32 v91, v91, 7, s6
    v_min_u32 v91, code_end - {name}_pc1 - 4, v91
    {"global_load_dword v23, v91, s[4:5]" if HOP else ""}
    v_lshrrev_b32 v21, 4, v0
    v_and_b32 v22, 15, v0
    v_and_b32 v24, 7, v0
    v_xor_b32 v24, v24, v21
    v_lshrrev_b32 v25, 3, v0
    v_lshlrev_b32 v25, 10, v25
    v_lshl_add_u32 v1, v24, 4, v25
    v_xor_b32 v2, 64, v1
    v_add_u32 v2, 8192, v2
    v_lshlrev_b32 v24, 1, v21
    v_xor_b32 v24, v22, v24
    v_lshlrev_b32 v25, 13, v21
    v_lshl_add_u32 v3, v24, 4, v25
    v_xor_b32 v4, 128, v3
    s_mov_b32 {S(R['ckv']+2)}, {hex(SIZE['ckv'])}
    s_mov_b32 {S(R['ckv']+3)}, 0x20000
    s_waitcnt lgkmcnt(0)
    s_cmp_ge_u32 {S(sWV)}, 2
    s_cselect_b32 {S(WU)}, {S(R['wuv'])}, {S(R['wuk'])}
    s_cselect_b32 {S(WU+1)}, {S(R['wuv']+1)}, {S(R['wuk']+1)}
    s_mov_b32 {S(WU+2)}, {hex(SIZE['wuk'])}
    s_mov_b32 {S(WU+3)}, 0x20000
    """)
    MB = 128 * 1024
    sCG, sMB, sQb, sKq = 80, 81, 82, 83
    vC0, vC1, vW0, vW1 = 1, 2, 3, 4
    vRC0, vRC1 = 5, 6
    vRW = 7
    vL16 = 15
    vPW, vPQ, vMo, vDum = 12, 13, 14, 23
    b(f"""
    s_sub_u32 {S(sBLK)}, 15, {S(sJ)}
    s_mov_b32 {S(sBLK2)}, {S(sJ)}
    s_and_b32 {S(sT)}, {S(sWV)}, 1
    s_lshl_b32 {S(sWb)}, {S(sT)}, 18
    s_lshl_b32 {S(sT2)}, {S(sHD)}, 8
    s_add_u32 {S(sWb)}, {S(sWb)}, {S(sT2)}
    s_cmp_ge_u32 {S(sWV)}, 2
    s_cselect_b32 {S(sCb)}, {S(sBLK2)}, {S(sBLK)}
    s_lshl_b32 {S(sCb)}, {S(sCb)}, 17
    s_lshl_b32 {S(sT3)}, {S(sT)}, 16
    s_add_u32 {S(sCb)}, {S(sCb)}, {S(sT3)}
    s_lshl_b32 {S(sLw)}, {S(sWV)}, 13
    """)
    def dmaC(s):
        o = []
        for i in range(8):
            o.append((f"s_add_u32 m0, {S(sLw)}, {65536 + (s & 1) * 32768 + i * 1024}",
                      f"s_add_u32 {S(sT)}, {S(sCb)}, {(i >> 1) * 16384 + s * 128}",
                      I(f"buffer_load_dwordx4 {V(vC1 if i & 1 else vC0)}, {sCKV}, {S(sT)} offen lds", f"C{s}")))
        return o
    def dmaW(s):
        o = []
        for i in range(8):
            o.append((f"s_add_u32 m0, {S(sLw)}, {(s & 1) * 32768 + i * 1024}",
                      f"s_add_u32 {S(sT)}, {S(sWb)}, {(s * 64 + 4 * i) * 8192}",
                      I(f"buffer_load_dwordx4 {V(vW1 if (i >> 1) & 1 else vW0)}, {sWU}, {S(sT)} offen{nt('W')} lds", f"W{s}")))
        return o
    def dmaQ(s):
        o = []
        for i in range(8):
            o.append((f"s_add_u32 m0, {S(sLw)}, {65536 + (s % 3) * 32768 + i * 1024}",
                      f"s_add_u32 {S(sT)}, {S(sQb if s < 5 - QR else 76)}, {(s * 128 + 4 * i) * 8192}",
                      I(f"buffer_load_dwordx4 {V(vW1 if (i >> 1) & 1 else vW0)}, {sWQ}, {S(sT)} offen{nt('Q')} lds", f"Q{s}")))
        return o
    sPW = 57
    def pf_setup():
        b(f"""
        s_and_b32 s6, {S(sWV)}, 1
        v_lshrrev_b32 v24, 1, v0
        v_lshlrev_b32 v24, 13, v24
        v_and_b32 v25, 1, v0
        v_lshl_add_u32 v24, v25, 7, v24
        v_mov_b32 v25, {hex(OOB)}
        v_cmp_gt_u32 vcc, 16, v0
        v_cndmask_b32 {V(vPW)}, v25, v24, vcc
        v_lshlrev_b32 v26, 7, v0
        v_cndmask_b32 v26, v25, v26, vcc
        v_cmp_gt_u32 vcc, 20, v0
        v_cndmask_b32 {V(vPQ)}, v25, v24, vcc
        s_lshl_b32 {S(sPW)}, s6, 19
        s_lshl_b32 {S(sT3)}, {S(sJ)}, 16
        s_add_u32 {S(sPW)}, {S(sPW)}, {S(sT3)}
        s_add_u32 {S(sPW)}, {S(sPW)}, {S(sT2)}
        s_lshl_b32 {S(sT3)}, s2, 2
        s_add_u32 {S(sT3)}, {S(sT3)}, {S(sWV)}
        s_lshl_b32 {S(sT3)}, {S(sT3)}, 11
        v_add_u32 v90, {S(sT3)}, v26
        s_add_u32 s6, {S(sPW)}, {64*8192}
        buffer_load_dword {V(vDum)}, v90, {sCKV}, 0 offen
        buffer_load_dword {V(vDum)}, {V(vPW)}, {sWU}, s6 offen{nt('w')}
        """)
    first = dmaC(0) + dmaW(0) + dmaC(1)[:NC1]
    for k, d in enumerate(first + [None]):
        if k == min(PFP, len(first)): pf_setup()
        if k == 8: build_rest()
        if d: b(list(d))
    b(f"""
    s_lshl_b32 {S(sQb)}, {S(sWV)}, 18
    s_add_u32 {S(sQb)}, {S(sQb)}, {S(sT2)}
    """)
    if HOP: b(f"s_branch {name}_main"); b.label(name + "_main", align=12)
    def pfW(t): return toI([f"s_add_u32 {S(sT2)}, {S(sPW)}, {(2*t + 1)*64*8192}", f"buffer_load_dword {V(vDum)}, {V(vPW)}, {sWU}, {S(sT2)} offen{nt('w')}"])
    def pfQ(t):
        return toI([f"s_lshl_b32 {S(sT2)}, {S(sJ)}, 2", f"s_add_u32 {S(sT2)}, {S(sT2)}, {S(sWV)}", f"s_mul_i32 {S(sT2)}, {S(sT2)}, {10*8192}",
                    f"s_lshl_b32 s5, {S(sHD)}, 8", f"s_add_u32 {S(sT2)}, {S(sT2)}, s5", f"s_add_u32 {S(sT2)}, {S(sT2)}, {t*320*8192}",
                    f"buffer_load_dword {V(vDum)}, {V(vPQ)}, {sWQ}, {S(sT2)} offen{nt('q')}"])
    pf0 = [toI([f"buffer_load_dword {V(vDum)}, v90, {sCKV}, 0 offen"]), pfW(0), toI([f"global_load_dword {V(vDum)}, v91, s[4:5]"])]
    b(f"""
    s_lshr_b32 {S(sCG)}, s2, 2
    s_and_b32 {S(sKq)}, s2, 3
    s_lshl_b32 {S(sMB)}, {S(sWV)}, 10
    s_add_u32 {S(sMB)}, {S(sMB)}, {MB + 20480}
    v_lshrrev_b32 v24, 3, v0
    v_mul_u32_u24 v24, 7680, v24
    v_and_b32 v25, 7, v0
    v_lshl_add_u32 {V(vMo)}, v25, 4, v24
    v_lshlrev_b32 v89, 2, v0
    """)
    def m_c(): return toI([f"s_mul_i32 {S(sT2)}, {S(sKq)}, 320", f"buffer_load_dword v17, v89, {sC}, {S(sT2)} offen", f"buffer_load_dword v18, v89, {sC}, {S(sT2)} offen offset:256"])
    def m_dma():
        o = [f"s_lshl_b32 {S(sT3)}, {S(sKq)}, 2", f"s_add_u32 {S(sT3)}, {S(sT3)}, {S(sWV)}", f"s_mul_i32 {S(sT3)}, {S(sT3)}, {40 * 7680}",
             f"s_lshl_b32 {S(sT2)}, {S(sCG)}, 7", f"s_add_u32 {S(sT3)}, {S(sT3)}, {S(sT2)}", f"s_cmp_lt_u32 {S(sCG)}, 60", f"s_cselect_b32 {S(sT3)}, {S(sT3)}, {hex(OOB)}",
             f"s_mul_i32 s7, {S(sWV)}, 5120"]
        for i in range(5):
            o += [f"s_add_u32 m0, s7, {MB + i*1024}", f"s_add_u32 {S(sT2)}, {S(sT3)}, {i*8*7680}",
                  I(f"buffer_load_dwordx4 {V(vMo)}, {sWM}, {S(sT2)} offen{nt('m')} lds", "m")]
        return toI(o)
    sK1, sV1 = 72, 74
    b(f"""
    v_lshlrev_b32 {V(vL16)}, 4, v0
    v_lshrrev_b32 v24, 1, v22
    v_xor_b32 v24, v24, v21
    v_lshlrev_b32 v24, 4, v24
    v_lshl_add_u32 v24, v22, 7, v24
    s_and_b32 {S(sT)}, {S(sWV)}, 1
    s_lshl_b32 {S(sT)}, {S(sT)}, 13
    s_add_u32 {S(sT)}, {S(sT)}, 65536
    v_add_u32 {V(vRC0)}, {S(sT)}, v24
    v_xor_b32 {V(vRC1)}, 64, {V(vRC0)}
    v_lshrrev_b32 v26, 2, v22
    v_and_b32 v24, 1, v21
    v_lshl_add_u32 v24, v24, 2, v26
    v_lshl_add_u32 v26, v21, 3, v26
    v_lshlrev_b32 v26, 8, v26
    v_and_b32 v25, 3, v0
    v_lshl_add_u32 v26, v25, 3, v26
    v_lshl_add_u32 v26, v24, 5, v26
    s_lshr_b32 {S(sT)}, {S(sWV)}, 1
    s_lshl_b32 {S(sT)}, {S(sT)}, 7
    v_xor_b32 {V(vRW)}, {S(sT)}, v26
    v_xor_b32 {V(vRW+1)}, 32, {V(vRW)}
    v_xor_b32 {V(vRW+2)}, 64, {V(vRW)}
    v_xor_b32 {V(vRW+3)}, 96, {V(vRW)}
    s_cmp_ge_u32 {S(sWV)}, 2
    s_cselect_b32 {S(sHb)}, {S(sBLK2)}, {S(sBLK)}
    s_lshl_b32 {S(sT2)}, {S(sHb)}, 7
    s_add_u32 {S(sT2)}, {S(sT2)}, {WS_FLG + FL_H*128}
    v_mov_b32 v11, {S(sT2)}
    s_lshl_b32 {S(sHb)}, {S(sHb)}, 1
    s_and_b32 {S(sT2)}, {S(sWV)}, 1
    s_add_u32 {S(sHb)}, {S(sHb)}, {S(sT2)}
    s_mul_i32 {S(sHb)}, {S(sHb)}, {20*4096}
    s_add_u32 {S(sHb)}, {S(sHb)}, {WS_H}
    s_bfe_u32 s6, {S(sHD)}, 0x10001
    s_mul_i32 s7, s6, {QR*128*8192}
    s_add_u32 {S(sQb)}, {S(sQb)}, s7
    s_mul_i32 s7, s6, {5*128*8192}
    s_sub_u32 s76, {S(sQb)}, s7
    s_mul_i32 s7, s6, {QR*16384}
    s_add_u32 {S(sHb)}, {S(sHb)}, s7
    s_mul_i32 s7, s6, {5*16384}
    s_sub_u32 s77, {S(sHb)}, s7
    s_lshl_b32 {S(sKb)}, {S(sHD)}, 19
    s_add_u32 {S(sVb)}, {S(sKb)}, {WS_V}
    s_add_u32 {S(sKb)}, {S(sKb)}, {WS_K}
    s_lshr_b32 {S(sT3)}, {S(sWV)}, 1
    s_mul_i32 {S(sK1)}, {S(sT2)}, {16384 + 8192}
    s_lshl_b32 {S(sT)}, {S(sT3)}, 11
    s_add_u32 {S(sK1)}, {S(sK1)}, {S(sT)}
    s_xor_b32 {S(sK1+1)}, {S(sK1)}, 16384
    s_mul_i32 {S(sV1)}, {S(sT2)}, {16384 + 1024}
    s_lshl_b32 {S(sT)}, {S(sT3)}, 13
    s_add_u32 {S(sV1)}, {S(sV1)}, {S(sT)}
    s_xor_b32 {S(sV1+1)}, {S(sV1)}, 16384
    """)
    vFlag, vOne, vPoll, vZero, vXo, vHo, vFlagW = 19, 20, 18, 17, 21, 22, 16
    b(f"""
    v_mov_b32 {V(vFlag)}, {hex(OOB)}
    s_cmp_eq_u32 {S(sWV)}, 0
    s_cselect_b32 {S(sT)}, 0, {hex(OOB)}
    v_mov_b32 {V(vFlagW)}, {hex(OOB)}
    v_writelane_b32 {V(vFlag)}, {S(sT)}, 0
    v_writelane_b32 {V(vFlagW)}, 0, 0
    v_mov_b32 {V(vOne)}, 1
    {"@hop a" if HOP else ""}
    @waitvm W0
    s_barrier
    """)
    if not fine: T.stamp(b, "C0")
    def m_silu():
        o = ["v_lshlrev_b32 v24, 16, v17", "v_and_b32 v25, 0xffff0000, v17", "v_lshlrev_b32 v26, 16, v18", "v_and_b32 v27, 0xffff0000, v18"]
        o += [f"v_mul_f32 {V(28+k)}, {FH(-LOG2E)}, {V(24+k)}" for k in range(4)]
        o += [f"v_exp_f32 {V(28+k)}, {V(28+k)}" for k in range(4)]
        o += [f"v_add_f32 {V(28+k)}, 1.0, {V(28+k)}" for k in range(4)]
        o += [f"v_rcp_f32 {V(28+k)}, {V(28+k)}" for k in range(4)]
        o += [f"v_mul_f32 {V(24+k)}, {V(24+k)}, {V(28+k)}" for k in range(4)]
        o += ["v_cvt_pk_bf16_f32 v24, v24, v25", "v_cvt_pk_bf16_f32 v25, v26, v27", f"v_lshl_add_u32 v26, v0, 2, {S(sMB)}",
              "ds_write_b32 v26, v24", "ds_write_b32 v26, v25 offset:256",
              "v_lshrrev_b32 v27, 4, v0", "v_bfe_u32 v28, v0, 2, 2", "v_lshl_add_u32 v28, v27, 3, v28", "v_lshlrev_b32 v28, 7, v28",
              "v_and_b32 v29, 3, v0", "v_lshl_add_u32 v28, v29, 3, v28", f"s_lshl_b32 s6, {S(sWV)}, 5", f"s_add_u32 s6, s6, {MB}",
              "v_add_u32 v28, s6, v28", f"v_lshl_add_u32 v27, v27, 4, {S(sMB)}"]
        o += [f"ds_read_b128 {V(32+4*ks,4)}, v27 offset:{ks*64}" for ks in range(5)]
        return toI(o)
    def m_reads(): return toI([f"ds_read_b64_tr_b16 {V(52+4*ks+2*hf,2)}, v28 offset:{ks*4096 + hf*512}" for ks in range(5) for hf in range(2)])
    def m_mfma(): return [MF(V(72,4), V(32+4*ks,4), V(52+4*ks,4), V(72,4) if ks else "0") for ks in range(5)]
    def m_store():
        return toI([f"s_lshl_b32 {S(sT3)}, {S(sCG)}, 2", f"s_add_u32 {S(sT3)}, {S(sT3)}, {S(sWV)}", f"s_lshl_b32 {S(sT3)}, {S(sT3)}, 6",
                    f"s_add_u32 {S(sT3)}, {S(sT3)}, {S(sKq)}", f"s_lshl_b32 {S(sT3)}, {S(sT3)}, 2", f"s_add_u32 {S(sT3)}, {S(sT3)}, {WS_MP}",
                    "v_and_b32 v29, 15, v0", "v_lshlrev_b32 v29, 4, v29"]) + [I(f"buffer_store_dword v72, v29, {sWS}, {S(sT3)} offen sc1", "ms")]
    def rnd(r): return [f"v_cvt_pk_bf16_f32 {V(r)}, {V(r)}, {V(r)}", f"v_lshlrev_b32 {V(r)}, 16, {V(r)}"]
    def sum4(r): return [f"v_add_f32 {V(r)}, {V(r)}, {V(r+1)}", f"v_add_f32 {V(r+2)}, {V(r+2)}, {V(r+3)}", f"v_add_f32 {V(r)}, {V(r)}, {V(r+2)}"] + rnd(r)
    def acc(o, kt): return A(32*o + 4*kt, 4) if o < 3 else V(96 + 32*(o-3) + 4*kt, 4)
    def Cf(buf, kt, ks): return A(96 + 64*buf + 8*kt + 4*ks, 4)
    def rdC(s, kt, ks): return f"ds_read_b128 {Cf(s & 1, kt, ks)}, {V(vRC1 if ks else vRC0)} offset:{(s & 1)*32768 + (kt >> 2)*16384 + (kt & 3)*2048}"
    def Wf(buf, ks): return 224 + 8*buf + 4*ks
    def rdW(s, o): return [f"ds_read_b64_tr_b16 {A(Wf(o & 1, ks) + 2*hf, 2)}, {V(vRW + (o & 3))} offset:{(s & 1)*32768 + (o >> 2)*16384 + ks*8192 + hf*1024}"
                           for ks in range(2) for hf in range(2)]
    b(rdW(0, 0))
    for kt in range(5):
        for ks in range(2): b(rdC(0, kt, ks))
    T.stamp(b, "kvstart")

    def spin(lab, vreg, soff, target, sc_=None):
        b(f"@need {V(vreg)}")
        b(f"v_cmp_gt_u32 vcc, {target}, {V(vreg)}")
        b(f"s_cbranch_vccnz {lab}_w")
        b.outline(f"{lab}_w", ["s_mov_b32 s3, 0", f"{lab}_spin:", "s_sleep 4", soff, "s_add_u32 s3, s3, 1", f"s_cmp_gt_u32 s3, {SPIN_MAX}", "s_waitcnt vmcnt(0)",
                               f"s_cbranch_scc1 {lab}_ok", f"v_cmp_gt_u32 vcc, {target}, {V(vreg)}", f"s_cbranch_vccnz {lab}_spin"], f"{lab}_ok")
    def spin_at(lab, vreg, again, target):
        b(f"v_readfirstlane_b32 s3, {V(vreg)}"); b(f"s_cmp_lt_u32 s3, {target}"); b(f"s_cbranch_scc1 {lab}_w")
        b.outline(f"{lab}_w", ["s_mov_b32 vcc_lo, 0", f"{lab}_spin:", again, "s_add_u32 vcc_lo, vcc_lo, 1", f"s_cmp_gt_u32 vcc_lo, {SPIN_MAX}", "s_waitcnt vmcnt(0)",
                               f"s_cbranch_scc1 {lab}_ok", f"v_readfirstlane_b32 s3, {V(vreg)}", f"s_cmp_lt_u32 s3, {target}", f"s_cbranch_scc1 {lab}_spin"], f"{lab}_ok")
    def emit_split(sc, hooks):
        cur = []
        for i in sc.emit():
            if i.kind == "pseudo" and i.op == "@mark":
                b(cur); cur = []; hooks[i.t.split()[1]]()
            else: cur.append(i)
        b(cur)

    XP, XF, MA, MS = 76, 32, 52, 72
    HP = 52
    poll_mod = f"buffer_load_dword {V(vPoll)}, {V(vZero)}, {sDBG}, 0 offen sc1"
    poll_mo2 = f"buffer_load_dword {V(vPoll)}, {V(vZero)}, {sWS}, 0 offen sc1"
    def h_setup():
        return toI([f"""
        v_and_b32 v92, 31, v0
        v_lshrrev_b32 v93, 5, v0
        v_mul_u32_u24 {V(vXo)}, 1280, v93
        v_lshl_add_u32 {V(vXo)}, v92, 3, {V(vXo)}
        v_lshrrev_b32 v94, 1, v92
        v_mul_u32_u24 {V(vHo)}, 144, v94
        v_lshl_add_u32 {V(vHo)}, v93, 4, {V(vHo)}
        v_and_b32 v94, 1, v92
        v_lshl_add_u32 {V(vHo)}, v94, 3, {V(vHo)}
        s_lshl_b32 s6, {S(sWV)}, 5
        s_add_u32 s6, s6, {MB + 8192}
        v_add_u32 {V(vHo)}, s6, {V(vHo)}
        v_lshlrev_b32 v95, 4, v92
        v_add_u32 v95, {MB}, v95
        """])
    def h_loadx():
        o = [f"s_lshl_b32 {S(sT2)}, s2, 2", f"s_add_u32 {S(sT2)}, {S(sT2)}, {S(sWV)}", f"s_mul_i32 {S(sT2)}, {S(sT2)}, 2560"]
        o += [f"buffer_load_dwordx2 {V(XP+2*m,2)}, {V(vXo)}, {sX}, {S(sT2)} offen offset:{256*m}" for m in range(5)]
        return toI(o)
    def mp_load():
        o = [f"s_lshl_b32 {S(sT3)}, {S(sWV)}, 10"]
        for i in range(5): o += [f"s_add_u32 {S(sT2)}, {S(sT3)}, {WS_MP + 4096*i}", f"buffer_load_dwordx4 {V(52+4*i,4)}, {V(vL16)}, {sWS}, {S(sT2)} offen sc1"]
        return toI(o)
    def mp_sum():
        o = [f"s_cmp_ge_u32 {S(sWV)}, 2", "s_cselect_b32 s6, 1.0, 0", f"s_cmp_ge_u32 {S(sWV)}, 2", f"s_cselect_b32 s7, 1.0, {FH(QSCALE)}",
             f"s_lshl_b32 {S(sT3)}, {S(sWV)}, 8", f"s_add_u32 {S(sT3)}, {S(sT3)}, {MB}", f"v_lshl_add_u32 v94, v0, 2, {S(sT3)}"]
        for i in range(5):
            r = 52 + 4*i; o += sum4(r)
            if i < 2: o.append(f"v_mul_f32 {V(r)}, {FH(QSCALE)}, {V(r)}")
            elif i == 2: o += [f"v_add_f32 {V(r)}, s6, {V(r)}"] + rnd(r) + [f"v_mul_f32 {V(r)}, s7, {V(r)}"]
            else: o += [f"v_add_f32 {V(r)}, 1.0, {V(r)}"] + rnd(r)
            o.append(I(f"ds_write_b32 v94, {V(r)} offset:{1024*i}", "mw"))
        return toI(o)
    def mod_read(): return toI([f"ds_read_b128 {V(r+4*m,4)}, v95 offset:{off + 512*m}" for m in range(5) for r, off in ((MA, 2560), (MS, 0))])
    def red32(r, t):
        o = [f"v_add_f32 {V(r)}, {V(r)}, {V(r)} row_ror:{k}" for k in (1, 2, 4, 8)]
        o += [f"v_mov_b32 {V(t)}, {V(r)}", f"v_permlane16_swap_b32 {V(r)}, {V(t)}", f"v_add_f32 {V(r)}, {V(r)}, {V(t)}"]
        return o
    def h_stats():
        o = []
        for k in range(10):
            o += [f"v_lshlrev_b32 {V(XF+2*k)}, 16, {V(XP+k)}", f"v_and_b32 {V(XF+2*k+1)}, 0xffff0000, {V(XP+k)}"]
        o += [f"v_add_f32 v92, {V(XF)}, {V(XF+1)}", f"v_add_f32 v93, {V(XF+2)}, {V(XF+3)}"]
        for k in range(4, 20): o.append(f"v_add_f32 {V(92 + (k & 1))}, {V(92 + (k & 1))}, {V(XF+k)}")
        o.append("v_add_f32 v92, v92, v93")
        o += red32(92, 93)
        o.append(f"v_mul_f32 v92, {FH(1/640)}, v92")
        for k in range(20): o.append(f"v_sub_f32 {V(XF+k)}, {V(XF+k)}, v92")
        o2 = [f"v_mul_f32 v92, {V(XF)}, {V(XF)}", f"v_mul_f32 v93, {V(XF+1)}, {V(XF+1)}"]
        for k in range(2, 20): o2.append(f"v_fmac_f32 {V(92 + (k & 1))}, {V(XF+k)}, {V(XF+k)}")
        o2.append("v_add_f32 v92, v92, v93")
        o2 += red32(92, 93)
        o2 += [f"v_mov_b32 v93, {FH(1e-5)}", f"v_fmac_f32 v93, {FH(1/640)}, v92", "v_rsq_f32 v93, v93", f"v_mul_f32 v93, {FH(QSCALE)}, v93"]
        for k in range(20): o2.append(f"v_mul_f32 {V(XF+k)}, {V(XF+k)}, v93")
        return toI(o), toI(o2)
    sHs = 61
    def h_addr():
        return toI([f"s_lshr_b32 {S(sHs)}, s2, 4", f"s_lshl_b32 {S(sHs)}, {S(sHs)}, 1", f"s_bfe_u32 {S(sT3)}, s2, 0x10001",
              f"s_add_u32 {S(sHs)}, {S(sHs)}, {S(sT3)}", f"s_mul_i32 {S(sHs)}, {S(sHs)}, {20*4096}",
              f"s_bfe_u32 {S(sT3)}, s2, 0x20002", f"s_lshl_b32 {S(sT3)}, {S(sT3)}, 10", f"s_add_u32 {S(sHs)}, {S(sHs)}, {S(sT3)}",
              f"s_and_b32 {S(sT3)}, s2, 1", f"s_lshl_b32 {S(sT3)}, {S(sT3)}, 7", f"s_add_u32 {S(sHs)}, {S(sHs)}, {S(sT3)}",
              f"s_add_u32 {S(sHs)}, {S(sHs)}, {S(sLw)}", f"s_add_u32 {S(sHs)}, {S(sHs)}, {WS_H}"])
    def h_fin():
        o = []
        for m in range(5):
            for k in range(4*m, 4*m + 4): o.append(f"v_fma_f32 {V(XF+k)}, {V(XF+k)}, {V(MA+k)}, {V(MS+k)}")
            for k in (2*m, 2*m + 1): o.append(f"v_cvt_pk_bf16_f32 {V(24+(k & 3))}, {V(XF+2*k)}, {V(XF+2*k+1)}")
            o.append(f"ds_write_b64 {V(vHo)}, {V(24 + 2*(m & 1), 2)} offset:{2304*m}")
        return toI(o)
    def h_back():
        return toI([f"s_mul_i32 s6, {S(sWV)}, 1152", f"s_add_u32 s6, s6, {MB + 8192}", f"v_add_u32 v92, s6, {V(vL16)}",
                    "v_lshrrev_b32 v93, 3, v0", "v_lshl_add_u32 v92, v93, 4, v92",
                    "v_lshrrev_b32 v93, 5, v0", "v_lshlrev_b32 v93, 12, v93", "v_bfe_u32 v94, v0, 3, 2", "v_lshl_add_u32 v93, v94, 8, v93",
                    "v_and_b32 v94, 7, v0", "v_lshl_add_u32 v93, v94, 4, v93"]), toI([f"ds_read_b128 {V(32+4*k,4)}, v92 offset:{4608*k}" for k in range(3)])
    def h_store():
        o = []
        for k in range(3):
            o.append(f"s_add_u32 {S(sT3)}, {S(sHs)}, {32768*k}")
            if k == 2: o += [f"s_cmp_lt_u32 {S(sWV)}, 2", f"s_cselect_b32 {S(sT3)}, {S(sT3)}, {hex(OOB)}"]
            o.append(I(f"buffer_store_dwordx4 {V(32+4*k,4)}, v93, {sWS}, {S(sT3)} offen sc1", "hs"))
        return toI(o)
    def f_load():
        return toI([f"s_lshl_b32 {S(sT2)}, s2, 8", f"s_add_u32 {S(sT2)}, {S(sT2)}, {WS_MP + 1280*16}", "v_and_b32 v28, 15, v0", "v_lshlrev_b32 v29, 4, v28",
                    f"buffer_load_dwordx4 v[24:27], v29, {sWS}, {S(sT2)} offen sc1"])
    def f_fin():
        return toI(["s_sub_u32 s6, s2, 80", "s_cmp_lt_u32 s6, 40", "s_cselect_b32 s6, 1.0, 0", "s_lshl_b32 s7, s2, 6", f"s_add_u32 s7, s7, {WS_MOD + 1280*4}",
                    "s_cmp_lt_u32 s2, 160", f"s_cselect_b32 s7, s7, {hex(OOB)}", f"s_cmp_eq_u32 {S(sWV)}, 0", f"s_cselect_b32 s7, s7, {hex(OOB)}"]
                   + sum4(24) + ["v_add_f32 v24, s6, v24"] + rnd(24) + ["v_lshlrev_b32 v29, 2, v28", f"buffer_store_dword v24, v29, {sWS}, s7 offen sc1",
                      "s_sub_u32 s6, s2, 40", "s_cmp_lt_u32 s6, 40", "s_cselect_b32 s7, 64, 0", "s_cmp_lt_u32 s6, 40", "s_cselect_b32 s5, 0, 40",
                      "s_sub_u32 s5, s6, s5", "s_lshr_b32 s4, s5, 1", "s_lshl_b32 s4, s4, 7", "s_add_u32 s7, s7, s4", "s_and_b32 s5, s5, 1", "s_lshl_b32 s5, s5, 3",
                      "s_add_u32 s7, s7, s5", f"s_add_u32 s7, s7, {WS_MODB}", "s_cmp_lt_u32 s6, 80", f"s_cselect_b32 s7, s7, {hex(OOB)}",
                      f"s_cmp_eq_u32 {S(sWV)}, 0", f"s_cselect_b32 s7, s7, {hex(OOB)}",
                      "v_lshrrev_b32 v29, 2, v28", "v_lshlrev_b32 v29, 4, v29", "v_and_b32 v28, 3, v28", "v_lshl_add_u32 v29, v28, 1, v29",
                      f"buffer_store_short_d16_hi v24, v29, {sWS}, s7 offen sc1"])
    def seq(sc, ins, start): return sc.seq(ins, start)
    poll_h = f"buffer_load_dword {V(vPoll)}, v11, {sWS}, 0 offen sc1"
    def Hf(buf, ks, qt): return A(96 + 64*buf + 16*ks + 4*qt, 4)
    def ldH(s):
        o = []
        for ks in range(4):
            o.append(f"s_add_u32 {S(sT2)}, {S(sHb if s < 5 - QR else 77)}, {((0 if 'hhit' in drop2 else 4*s) + ks)*4096}")
            for qt in range(4): o.append(f"buffer_load_dwordx4 {Hf(s & 1, ks, qt)}, {V(vL16)}, {sWS}, {S(sT2)} offen offset:{qt*1024} sc1")
        return toI(o)
    tmpi = [0]
    def rno(t): return int(t[2:t.index(":")])
    def pack(t0, t1, dst=None):
        o = []
        def src(t, d=None):
            if t[0] == "v": return rno(t)
            if d is None: d = 24 + 4 * (tmpi[0] % 8); tmpi[0] += 1
            for k in range(4): o.append(f"v_accvgpr_read_b32 {V(d+k)}, {A(rno(t)+k)}")
            return d
        r0 = src(t0, dst); r1 = src(t1)
        cv = lambda d, s: f"v_cvt_pk_bf16_f32 {V(d)}, {V(s)}, {V(s+1)}"
        if t0[0] == "a" and t1[0] == "v":
            o += [cv(r1+3, r1+2), cv(r1+2, r1), cv(r1, r0), cv(r1+1, r0+2)]; return toI(o), r1
        o += [cv(r0, r0), cv(r0+1, r0+2), cv(r0+2, r1), cv(r0+3, r1+2)]; return toI(o), r0
    sG = 36
    def kvstore(reg, isv, u, pl, off):
        return toI([f"s_add_u32 {S(sT3)}, {S(sG + 4*isv + 2*u + pl)}, {off}"]) + [I(f"buffer_store_dwordx4 {reg}, {V(vL16)}, {sWS}, {S(sT3)} offen{KVM}", f"kv{u}")]
    def QWf(buf, ks): return (240 if buf == 0 else 224) + 4*ks
    def rdQW(s, dt): return [f"ds_read_b64_tr_b16 {A(QWf(dt & 1, ks) + 2*hf, 2)}, {V(vRW + dt)} offset:{(s % 3 == 1)*32768 + ks*8192 + hf*1024}"
                             for ks in range(4) for hf in range(2)]
    st1 = []; st0 = []; kwr = []; vwr = []; vpack = []; park = []; vw1 = []
    vKw, vVw = (21, 22), (17, 19)
    def flag(off_ins, srd, imm, vf=vFlag): return toI(off_ins + [f"buffer_atomic_add {V(vOne)}, {V(vf)}, {srd}, {S(sT2)} offen offset:{imm}"])
    def paced(sc, groups, g0, g1):
        g = g0
        for k, gr in enumerate(groups):
            t = max(g, g0 + (k * (g1 - g0)) // len(groups))
            gr = toI(list(gr))
            if EXACT and gr[-1].kind == "vmem":
                e = seq(sc, gr[:-1], max(g, t - len(gr) + 1)) + 1 if len(gr) > 1 else t
                g = sc.putw(gr[-1], max(e, t), max(e, t) + 1) + 1
                sc.seqs.append(gr)
            else: g = seq(sc, gr, t) + 1
        return g
    def vgroups(ins):
        out = [[]]
        for i in ins:
            out[-1].append(i)
            if i.kind == "vmem": out.append([])
        assert not out[-1]; return out[:-1]
    def kv_dma(s):
        d = []
        if s < 7: d += dmaW(s + 1)
        if s < 6: d += dmaC(s + 2)
        if s == 6: d += dmaQ(0)
        if s == 7: d += dmaQ(1)
        return d
    NT = 3
    for s in range(8):
        mf = []
        for o in range(8):
            for kt in range(8):
                for ks in range(2):
                    w = A(Wf(o & 1, ks), 4); c = Cf(s & 1, kt, ks)
                    cin = "0" if (s == 0 and ks == 0) else acc(o, kt)
                    mf.append(MF(acc(o, kt), w, c, cin) if o < 4 else MF(acc(o, kt), c, w, cin))
        sc = Sched(mf)
        if s == 0:
            for n in range(10, 16): sc.put(rdC(0, n >> 1, n & 1), n - 10)
        for o in range(7):
            for k, r in enumerate(rdW(s, o + 1)): sc.put(r, 16*o + k)
            sc.raw(f"@need {A(Wf((o+1) & 1, 0), 8)}", 16*o + 15, "pre")
        d = kv_dma(s)
        sc.raw(([f"@waitvm {d[-1][2].tag}"] if s < 7 else []) + ["s_waitcnt lgkmcnt(0)", "s_barrier"], 111)
        if s < 7:
            for k, r in enumerate(rdW(s + 1, 0)): sc.put(r, 112 + k)
            sc.raw(f"@need {A(Wf(0, 0), 8)}", 127, "pre")
            for n in range(16): sc.put(rdC(s + 1, n >> 1, n & 1), (5 + 6*n) if s else (BA + 1 + ((106 - BA)*n) // 16))
        hooks = {}
        if s == 0:
            sc.raw(["@waitvm C1", "s_waitcnt lgkmcnt(0)", "s_barrier"], BA)
            sc.raw([x for gr in dmaC(1)[NC1:] for x in gr], -1)
            g = paced(sc, d[:8], 10, BA - 2); assert g <= BA + 2, g
            g0 = paced(sc, d[8:], BA + 1, BA + 36)
            g0 = paced(sc, ([] if HOP else pf0[2:]) + vgroups(m_c()) + (vgroups(m_dma()) if MS0 else []), g0, 126 if MS0 else 110); assert g0 < 129, g0
            seq(sc, h_setup(), 20)
        elif s < 7: g0 = paced(sc, d[(0 if s == 1 and MS0 else NT):], 0, END + (10 if s == 1 and MS0 else 0))
        if s < 7 and not (s == 0 and MS0): paced(sc, kv_dma(s + 1)[:NT], 116, 127)
        def m_part(g):
            g = seq(sc, m_reads(), g)
            sc.raw(m_mfma(), g + 6)
            return seq(sc, toI([f"v_mov_b32 {V(vZero)}, 0", "v_and_b32 v90, 31, v0", "v_lshlrev_b32 v90, 7, v90", f"s_lshl_b32 s6, s2, 12",
                             f"s_cmp_lt_u32 s2, 80", f"s_cselect_b32 s6, s6, {hex(OOB)}",
                             f"s_cmp_eq_u32 {S(sWV)}, 0", f"s_cselect_b32 s6, s6, {hex(OOB)}",
                             f"s_add_u32 s6, s6, {WS_FLG}", f"buffer_store_dword {V(vZero)}, v90, {sWS}, s6 offen sc1"]) + m_store(), g + 2)
        def m_arrive(gm):
            sc.raw(["@waitvm ms", "s_barrier"], gm)
            return seq(sc, flag([f"s_lshl_b32 {S(sT2)}, {S(sKq)}, 6", f"s_cmp_lt_u32 s2, 80", f"s_cselect_b32 {S(sT2)}, {S(sT2)}, {hex(OOB)}"], sDBG, 0), gm + 1)
        if s == 1:
            g = seq(sc, m_silu(), 4)
            if MS0:
                sc.raw(["@waitvm m", "s_barrier"], g + 1)
                paced(sc, [pfW(t) for t in PFA], g0, g0 + 4*len(PFA))
                assert m_part(g + 2) < 128
            else: assert paced(sc, [pfW(1)] + vgroups(m_dma()), g0, 112) < 117
        if s == 2:
            if MS0:
                g = m_arrive(MW)
                assert paced(sc, vgroups(h_loadx()) + [pfW(t) for t in (1, 2, 3) if t not in PFA], max(g, g0) + 1, g0 + 26) < 111
            else:
                sc.raw(["@waitvm m", "s_barrier"], 30)
                assert m_part(31) < 80
                assert paced(sc, [pfW(2)] + vgroups(h_loadx()), max(g0, 80), 110) < 114
                m_arrive(113)
        if s == TLB:
            paced(sc, [toI(["v_lshlrev_b32 v91, 21, v0", "s_mov_b32 s4, 0x1fff80", f"buffer_load_dword {V(vDum)}, v91, {sWS}, s4 offen"])], g0, g0 + 1)
        if s == 3:
            seq(sc, [f"v_and_b32 {V(vZero)}, 3, v0", f"v_lshlrev_b32 {V(vZero)}, 6, {V(vZero)}"], 0)
            gp = sc.put(poll_mod, PMG); assert gp < PMG + 8
            sc.raw("@mark pm", gp + 30, "post2"); hooks["pm"] = lambda: spin(name + "_pm", vPoll, poll_mod, 20)
            fl = flag([f"s_and_b32 {S(sT2)}, {S(sCG)}, 7", f"s_lshl_b32 {S(sT2)}, {S(sT2)}, 7", f"s_add_u32 {S(sT2)}, {S(sT2)}, {WS_FLG + FL_M*128}",
                       f"s_sub_u32 s5, s2, 80", f"s_cmp_lt_u32 s5, 160", f"s_cselect_b32 {S(sT2)}, {S(sT2)}, {hex(OOB)}"], sWS, 0)
            assert paced(sc, vgroups(mp_load()) + [fl], gp + 31, min(gp + 56, 126)) < 129
            assert seq(sc, h_addr(), 0) < gp + 30
            assert seq(sc, h_stats()[0] + h_stats()[1], 4) < 128
        if s == 4:
            paced(sc, [pfQ(0)] + ([pfQ(1)] if PQ4 else []), g0, g0 + 2)
            g = seq(sc, mp_sum(), MSG)
            sc.raw(["@waitlg mw", "s_barrier"], g + 4, "pre")
            gr = g + 5; mr = mod_read(); hf_ = h_fin(); pos = []
            for m in range(5): gr = seq(sc, mr[2*m : 2*m + 2], gr) + 1; pos.append(gr)
            for m in range(5): g = seq(sc, hf_[7*m : 7*m + 7], max(g + 1, pos[m] + 5))
            assert g < 108, g
            hb = h_back(); assert seq(sc, hb[0], 60) < 111
            seq(sc, hb[1], 116)
        if s == 5:
            g = paced(sc, vgroups(h_store()), 2, 30)
            seq(sc, [f"v_and_b32 {V(vZero)}, 7, v0", f"v_lshlrev_b32 {V(vZero)}, 7, {V(vZero)}", f"v_add_u32 {V(vZero)}, {WS_FLG + FL_M*128}, {V(vZero)}"], 30)
            assert sc.put(poll_mo2, 40) < 60
            fl = flag([f"s_lshr_b32 {S(sT2)}, s2, 4", f"s_lshl_b32 {S(sT2)}, {S(sT2)}, 7", f"s_add_u32 {S(sT2)}, {S(sT2)}, {WS_FLG + FL_H*128}", "@waitvm hs"], sWS, 0, vFlagW)
            assert paced(sc, [fl] + ([] if PQ4 else [pfQ(1)]), HA or g0, (HA or g0) + 8) < 100
            sc.raw("@mark p2", 111); hooks["p2"] = lambda: spin(name + "_p2", vPoll, poll_mo2, 20)
        if s == 6:
            assert paced(sc, dmaQ(2), g0, 112) < 117
            seq(sc, f_load(), 2)
            sc.put(poll_h, 126, force=True)
            g = seq(sc, f_fin(), 40)
            ga = []
            for isv, (base, rel) in enumerate(((sKb, sK1), (sVb, sV1))):
                for u, blk in enumerate((sBLK, sBLK2)):
                    ga += [f"s_lshl_b32 {S(sT3)}, {S(blk)}, 15", f"s_add_u32 {S(sT3)}, {S(sT3)}, {S(base)}"]
                    ga += [f"s_add_u32 {S(sG + 4*isv + 2*u + pl)}, {S(sT3)}, {S(rel + pl)}" for pl in range(2)]
            ga += [f"v_add_u32 {V(vKw[pl])}, {S(sK1+pl)}, {V(vL16)}" for pl in range(2)]
            ga += [f"v_add_u32 {V(vVw[pl])}, {S(sV1+pl)}, {V(vL16)}" for pl in range(2)] + [f"v_add_u32 {V(vVw[pl])}, 65536, {V(vVw[pl])}" for pl in range(2)]
            seq(sc, ga, 76)
        if s == 7:
            g = paced(sc, d[NT:], 0, PHG - 2)
            sc.raw("@mark ph", PHG, "post2"); hooks["ph"] = lambda: spin(name + "_ph", vPoll, poll_h, 64)
            assert paced(sc, vgroups(ldH(0)), PHG + 1, 104) < 112
            qa = [f"s_lshr_b32 s6, {S(sWV)}, 1", f"s_lshl_b32 s6, s6, 7", f"s_add_u32 s6, s6, 65536", f"v_xor_b32 {V(vRW)}, s6, {V(vRW)}"]
            qa += [f"v_xor_b32 {V(vRW+n)}, {32*n}, {V(vRW)}" for n in range(1, 8)]
            assert seq(sc, toI(qa), 101) < 112
            for k, r in enumerate(rdQW(0, 0)): sc.put(r, 112 + k)
            g = 0
            for kt in range(8):
                g = seq(sc, [f"v_accvgpr_read_b32 {V(64+4*kt+k)}, {A(4*kt+k)}" for k in range(4)]
                        + [f"v_cvt_pk_bf16_f32 {V(64+4*kt+k)}, {V(64+4*kt+2*k)}, {V(65+4*kt+2*k)}" for k in range(2)], max(g, 2*kt + 6))
            for a in range(2):
                for kt in range(8):
                    u, pl = kt >> 2, (kt >> 1) & 1
                    ins, r = pack(acc(2*a, kt), acc(2*a+1, kt), 64 + 4*kt if a == 0 else None)
                    if a == 0: ins = ins[4:8] + ins[10:]
                    off = ((kt & 1)*4 + a)*1024
                    kwr.append(f"ds_write_b128 {V(vKw[pl])}, {V(r,4)} offset:{u*32768 + off}")
                    if a == 0 and u == 0:
                        park += [f"v_accvgpr_write_b32 {A(4*kt+k)}, {V(r+k)}" for k in range(4)]
                        st0.append(kvstore(A(4*kt, 4), 0, u, pl, off))
                    elif a == 0 and kt - 4 < S7: ins += kvstore(V(r, 4), 0, u, pl, off)
                    else: (st1 if u else st0).append(kvstore(V(r, 4), 0, u, pl, off))
                    g = seq(sc, ins, max(g, 16*(2*a+1) + 2*kt + 6))
            for o in range(4, 8):
                for p in range(4):
                    u, pl = p >> 1, p & 1
                    ins, r = pack(acc(o, 2*p), acc(o, 2*p+1))
                    off = (o-4)*2048
                    (st1 if u else st0).append(kvstore(V(r, 4), 1, u, pl, off))
                    if u == 0: vwr.append(f"ds_write_b128 {V(vVw[pl])}, {V(r,4)} offset:{32768 + off}")
                    else: vw1.append((r, f"ds_write_b128 {V(vVw[pl])}, {V(r,4)} offset:{off}"))
                    vpack.append(ins)
        emit_split(sc, hooks)
        if fine is True and s < 7: T.stamp(b, f"kv{s}")
    T.stamp(b, "kvend")
    def qacc(dt, qt):
        i = dt*4 + qt
        return 32 + 4*i if i < 8 else (128 + 8*(i - 8) + 4 if i < 24 else 64 + 4*(i - 24))
    vKr, vVr, vDm, vQw, vQr = 1, 2, 5, 6, 24
    qsetup = toI([f"""
    s_lshl_b32 s6, {S(sHD)}, 7
    s_add_u32 s6, s6, {WS_FLG + FL_KV*128}
    v_mov_b32 v25, s6
    s_lshr_b32 s6, {S(sWV)}, 1
    s_lshl_b32 s7, s6, 14
    v_add_u32 {V(vKr)}, s7, {V(vL16)}
    v_add_u32 {V(vVr)}, 65536, {V(vKr)}
    v_add_u32 {V(vDm)}, {S(sLw)}, {V(vL16)}
    s_and_b32 s7, {S(sWV)}, 1
    s_lshl_b32 s7, s7, 14
    s_add_u32 s7, s7, 65536
    v_add_u32 {V(vQr)}, s7, {V(vL16)}
    s_lshl_b32 s6, s6, 16
    v_add_u32 {V(vQw)}, s6, {V(vQr)}
    """])
    def dmaKV(isv, slot, soff, tag, sl=sLw):
        base = (65536 + (slot ^ 1)*32768) if isv else slot*32768
        o = []
        for hf in range(2):
            o.append(I(f"s_add_u32 m0, {S(sl)}, {base + hf*4096}"))
            if hf: o.append(I(f"s_add_u32 {S(soff)}, {S(soff)}, 4096"))
            for i in range(4): o.append(I(f"buffer_load_dwordx4 {V(vDm)}, {sWS}, {S(soff)} offen offset:{i*1024}{KVL} lds", tag))
        return o
    sR0, sKu, sUa, sUb = 57, 60, 70, 62
    sA0, sA1, sAl = 63, 78, 77
    def unit_diag(dst, base): return [f"s_lshl_b32 {S(dst)}, {S(sBLK)}, 15", f"s_add_u32 {S(dst)}, {S(dst)}, {S(base)}"]
    def unit_r0(dst, base): return [f"s_lshl_b32 {S(dst)}, {S(sR0)}, 15", f"s_add_u32 {S(dst)}, {S(dst)}, {S(base)}"]
    assert sum(QST) + S7 == 16
    MK, TC = 8, 12
    RT, RO, RS = R["wuk"], R["wuv"], R["ckv"]
    def masks(first, t0=28):
        o = [f"""
        v_lshrrev_b32 {V(t0)}, 4, v0
        v_lshlrev_b32 {V(t0)}, 2, {V(t0)}
        v_and_b32 {V(t0+1)}, 15, v0
        v_sub_u32 {V(t0)}, {V(t0+1)}, {V(t0)}
        s_and_b32 s7, {S(sWV)}, 1
        s_lshl_b32 s7, s7, 4
        v_add_u32 {V(t0)}, s7, {V(t0)}
        v_mov_b32 {V(t0+1)}, {FH(NEGBIG)}
        """]
        for base, dst in ([(0, MK)] if first else []) + [(16, TC)]:
            for r in (0, 2):
                o += [f"v_cmp_gt_i32 vcc, {base + r}, {V(t0)}", f"v_cmp_gt_i32 {S(sMK,2)}, {base + r + 1}, {V(t0)}", "v_nop",
                      f"v_cndmask_b32 {V(dst+r)}, 0, {V(t0+1)}, vcc", f"v_cndmask_b32 {V(dst+r+1)}, 0, {V(t0+1)}, {S(sMK,2)}"]
        return toI(o)
    def att_setup(sc):
        sc.seq([f"s_mov_b32 {S(r_+2)}, {hex(SIZE[n_])}" for r_, n_ in ((WU, "wo"), (RT, "win"), (RO, "wout"), (RS, "wsp"), (R["dbg"], "x"))] + [f"""
        s_lshl_b32 {S(sA0)}, {S(sBLK2)}, 15
        s_add_u32 {S(sA0)}, {S(sA0)}, {S(sKb)}
        s_mov_b32 {S(sA1)}, {S(sKb)}
        s_mov_b32 {S(sAl)}, {S(sLw)}
        s_mov_b32 {S(sPass)}, 0
        s_lshr_b32 s6, {S(sWV)}, 1
        s_lshl_b32 s6, s6, 11
        v_add_u32 v21, s6, {V(vQr)}
        v_xor_b32 v22, 0x800, v21
        v_mov_b32 v3, {V(vL16)}
        v_mov_b32 v30, 0x3f803f80
        """] + [f"v_accvgpr_write_b32 {A(160+r)}, v30" for r in range(4)], 30)
        for r in range(16): sc.put(f"v_mov_b32 {V(32+r)}, 0", 56)
        for ds in range(4): sc.put(f"ds_read_b128 {A(64 + 4*ds, 4)}, {V(vKr)} offset:{ds*1024}", 88)
        m = masks(True)
        sc.seq(m[:8], 60); sc.seq(m[8:-2], 104)
    def pf_code(tag, vt, vd):
        return toI([f"s_getpc_b64 s[4:5]", f"{name}_pc{tag}:", f"s_lshr_b32 s6, s2, 3", f"s_lshl_b32 s6, s6, 2", f"s_add_u32 s6, s6, {S(sWV)}", f"s_lshl_b32 s6, s6, 9",
                    f"v_and_b32 {V(vt)}, 3, v0", f"v_lshl_add_u32 {V(vt)}, {V(vt)}, 7, s6", f"v_min_u32 {V(vt)}, code_end - {name}_pc{tag} - 4, {V(vt)}",
                    f"global_load_dword {V(vd)}, {V(vt)}, s[4:5]"])
    for s in range(5):
        mf = []
        for dt in range(8):
            for qt in range(4):
                for ks in range(4):
                    d = V(qacc(dt, qt), 4)
                    mf.append(MF(d, A(QWf(dt & 1, ks), 4), Hf(s & 1, ks, qt), "0" if (s == 0 and ks == 0) else d))
        sc = Sched(mf)
        for dt in range(7):
            for k, r in enumerate(rdQW(s, dt + 1)): sc.put(r, 16*dt + k)
            sc.raw(f"@need {A(QWf((dt+1) & 1, 0), 16)}", 16*dt + 15, "pre")
        sc.raw([f"@waitvm Q{s+1}", "s_waitcnt lgkmcnt(0)", "s_barrier"], 111)
        if s < 4:
            for k, r in enumerate(rdQW(s + 1, 0)): sc.put(r, 112 + k)
            sc.raw(f"@need {A(QWf(0, 0), 16)} {A(96 + 64*((s+1) & 1), 64)}", 127, "pre")
        ld = ((dmaQ(3) + dmaQ(4))[QD[s-1] : QD[s]] if 1 <= s < 4 else []) + (vgroups(ldH(s + 1)) if s < 4 else [])
        if s in (1, 2):
            for dt in range(8): sc.put(f"v_xor_b32 {V(vRW + dt)}, 0x30000, {V(vRW + dt)}", max(16*(dt - 1) + 8, 8))
        if s < 2:
            g = 8
            for w in kwr[8*s : 8*s + 8]: g = sc.put(w, g) + DWS
            assert g < 95
        if s < 4:
            mine = st1[sum(QST[:s]) : sum(QST[:s+1])]
            if s == 0:
                g = paced(sc, mine[:4-S7], 0, 6*(4-S7)); g = paced(sc, ld, g, QEND); mine = mine[4-S7:]
            else: g = paced(sc, ld, 0, QEND)
            if mine: assert paced(sc, mine, g, 126) < 129
        if s == 0:
            g = 0
            for k, ins in enumerate(vpack):
                g = seq(sc, ins, g); assert g < 32 + 4*k - 2, (k, g)
            assert seq(sc, park, g) < 94
        if s == 2:
            sc.raw([f"s_load_dwordx2 {S(r_,2)}, s[0:1], {ARG[n_]}" for r_, n_ in ((WU, "wo"), (RT, "win"), (RO, "wout"), (RS, "wsp"), (R["dbg"], "x"))], 103, "post2")
        if s == 3: seq(sc, qsetup + toI([f"s_mov_b32 {S(sR0)}, {S(sJ)}"]), 40)
        if s == 3 and CPF: sc.raw(pf_code("q", 27, vDum), 126)
        if s == 4:
            sc.raw("@waitvm kv1", QF)
            g = seq(sc, flag([f"s_lshl_b32 {S(sT2)}, {S(sHD)}, 7", f"s_add_u32 {S(sT2)}, {S(sT2)}, {WS_FLG + FL_KV*128}"], sWS, 0, vFlagW), QF + 1)
            g = paced(sc, st0[:QB], g + 1, 110)
            g = 0; gw = 0
            for ds in range(4):
                for qt in range(4):
                    r0, r1 = qacc(2*ds, qt), qacc(2*ds+1, qt)
                    seq(sc, toI([f"v_cvt_pk_bf16_f32 {V(r0)}, {V(r0)}, {V(r0+1)}", f"v_cvt_pk_bf16_f32 {V(r0+1)}, {V(r0+2)}, {V(r0+3)}"]), 16*(2*ds) + 4*qt + 9)
                    g = seq(sc, toI([f"v_cvt_pk_bf16_f32 {V(r0+2)}, {V(r1)}, {V(r1+1)}", f"v_cvt_pk_bf16_f32 {V(r0+3)}, {V(r1+2)}, {V(r1+3)}"]),
                            max(g, 16*(2*ds+1) + 4*qt + 8))
                    gw = sc.putw(f"ds_write_b128 {V(vQw)}, {V(r0, 4)} offset:{(ds*4+qt)*1024}", max(g + 1, gw), max(g + 1, gw) + 2) + 4
            for k in range(3): sc.raw(vwr[k], 112 + 4*k)
            att_setup(sc)
            sc.raw([x for gr in st0[QB:10] for x in gr], 999)
        out = sc.emit()
        if "qtr" in drop: out = [i for i in out if "_tr_" not in i.op]
        if "qvm" in drop: out = [i for i in out if not (i.kind == "vmem" and "load" in i.op)]
        if "qst" in drop: out = [i for i in out if not (i.kind == "vmem" and "store" in i.op)]
        if "qdw" in drop: out = [i for i in out if not i.op.startswith("ds_write")]
        b(out)
        if fine is True and s < 4: T.stamp(b, f"q{s}")
    T.stamp(b, "qend")
    def O(dt, qt): return 128 + 16*dt + 4*qt
    def P(buf, kp, qt): return 64 + 32*buf + 16*kp + 4*qt
    def Sw(i): return 48 + 4*(i & 3)
    def NM(qt): return 32 + 4*qt
    def Lr(qt): return 164 + 4*qt
    MK, TC = 8, 12
    vL, vXp, vPa, vPk = 3, 4, 6, 7
    vX, vLx, vQa, vQb = 17, 18, 21, 22
    def Qf(ds, qt): return A(16*ds + 4*qt, 4)
    def Kf(kt, ds): return A(64 + 16*kt + 4*ds, 4)
    def Vf(dt, kp): return A(128 + 8*(dt & 3) + 4*kp, 4)
    ONES = A(160, 4)
    sTop = 76; NCX = 8; sXa = 36
    sLk = 80
    att = fine in ("att0", "att1"); cnd = f"s_cmp_eq_u32 {S(sPass)}, {str(fine)[-1]}"
    def ST(nm):
        if not att: return
        if nm in T.names:
            n = T.n; T.n = T.names.index(nm); T.stamp(b, nm, cnd); T.names.pop(); T.n = n
        else: T.stamp(b, nm, cnd)
    def rdK(slot, kt, ds): return f"ds_read_b128 {Kf(kt, ds)}, {V(vKr)} offset:{slot*32768 + (kt*4+ds)*1024}"
    def rdK0(kt, ds): return rdK(0, kt, ds)
    def rdV(slot, dt, kp): return f"ds_read_b128 {Vf(dt, kp)}, {V(vVr)} offset:{(slot ^ 1)*32768 + (dt*2+kp)*1024}"
    def rdQ(base, ds, qt): return f"ds_read_b128 {A(base + 16*ds + 4*qt, 4)}, {V(vQb if qt >> 1 else vQa)} offset:{ds*4096 + (qt & 1)*1024}"
    poll_kv = f"buffer_load_dword {V(vPk)}, {V(vPa)}, {sWS}, 0 offen sc1"
    b(f"buffer_load_dword v26, v25, {sWS}, 0 offen sc1")
    b(masks(True)[-2:]); b(f"v_mov_b32 {V(vPa)}, v25")
    b("s_waitcnt lgkmcnt(0)"); b("s_barrier")
    for qt in range(4):
        for ds in range(4):
            b(rdQ(0, ds, qt))
            if HOP and (qt, ds) == (3, 1): b("@hop b")
    b(vwr[3:])
    b(f"v_add_u32 {V(vQa)}, 65536, {V(vQa)}"); b(f"v_add_u32 {V(vQb)}, 65536, {V(vQb)}")
    def softmax_ops(si, pbuf, kt, qt):
        s = Sw(si); p = P(pbuf, kt >> 1, qt) + 2*(kt & 1)
        return ([f"v_exp_f32 {V(s+r)}, {V(s+r)}" for r in range(4)],
                [f"v_cvt_pk_bf16_f32 {V(p)}, {V(s)}, {V(s+1)}", f"v_cvt_pk_bf16_f32 {V(p+1)}, {V(s+2)}, {V(s+3)}"])
    def place_softmax(sc, ops, start, stride):
        ex, cv = ops; g = start; gs = []
        for e in ex:
            g = sc.put(e, g); gs.append(g); g += stride
        return [(cv[0], gs[1] + 1), (cv[1], gs[3] + 1)]
    def diag_active(kg): return [(kp, q) for kp in range(2) for q in range(4) if (3 - kg if kp else kg) <= (q ^ (2*kg))]
    def next_k_dma(slot, ahead=2):
        return toI([f"s_mov_b32 {S(sUa)}, {S(sUb)}", f"s_mov_b32 {S(sUb)}, {S(sKu)}",
                    f"s_lshl_b32 {S(sKs)}, {S(sKu)}, 15", f"s_add_u32 {S(sKs)}, {S(sKs)}, {S(sKb)}", f"s_add_u32 {S(sKu)}, {S(sKu)}, 1",
                    f"s_cmp_eq_u32 {S(sKu)}, {S(sR0)}", f"s_addc_u32 {S(sKu)}, {S(sKu)}, 0", f"s_add_u32 {S(sT2)}, {S(sN)}, {ahead}",
                    f"s_cmp_gt_u32 {S(sBLK)}, {S(sT2)}", f"s_cselect_b32 {S(sKs)}, {S(sKs)}, {S(sA1 if slot else sA0)}",
                    f"s_cmp_gt_u32 {S(sBLK)}, {S(sT2)}", f"s_cselect_b32 {S(sLk)}, {S(sLw)}, {S(sAl)}"]) + dmaKV(0, slot, sKs, "k", sLk)
    def next_v_dma(slot):
        return toI([f"s_lshl_b32 {S(sVs)}, {S(sUa)}, 15", f"s_add_u32 {S(sVs)}, {S(sVs)}, {S(sVb)}"]) + dmaKV(1, slot, sVs, "v")
    def next_reads(n_par):
        rd = []
        for k in range(4): rd += [rdK(n_par, 0, k), rdV(n_par ^ 1, k >> 1, k & 1)]
        return rd
    def qk_diag(kg):
        act = diag_active(kg); tiles = []; zero = []
        for kt in range(4):
            p = 3 - kg if kt >> 1 else kg
            for q in range(4):
                if (kt >> 1, q) in act: tiles.append((kt, q, p == (q ^ (2*kg))))
        mf = []
        for i, (kt, q, dg) in enumerate(tiles):
            for ds in range(4):
                mf.append(MF(V(Sw(i), 4), Kf(kt, ds), Qf(ds, q), V(Sw(i), 4) if ds else V(Sw(i) if dg else NM(q), 4)))
        n = len(mf)
        sc = Sched(mf)
        g = 0
        for kt in sorted({t[0] for t in tiles} - {0}):
            for ds in range(4): g = sc.put(rdK0(kt, ds), g, force=True) + 1
        gb = max(g + 5, 4 * max(i for i, t in enumerate(tiles) if t[0] == 0) + 4, n - 10)
        init = []
        for kt, q in zero:
            p = P(0, kt >> 1, q) + 2*(kt & 1); init += [f"v_mov_b32 {V(p)}, 0", f"v_mov_b32 {V(p+1)}, 0"]
        if kg == 1: init += [f"v_accvgpr_write_b32 {A(Lr(2)+r)}, 0" for r in range(4)]
        for i, (kt, q, dg) in enumerate(tiles):
            if dg:
                for r in range(4): sc.raw(f"v_add_f32 {V(Sw(i)+r)}, {V(NM(q)+r)}, {V((TC if kt & 1 else MK)+r)}", -1 if i < 4 else 4*i - 4 + r // 2, "post2")
        sc.raw(init, -1)
        for i, (kt, q, dg) in enumerate(tiles):
            ex, cv = softmax_ops(i, 0, kt, q)
            for r in range(4): sc.raw(ex[r], 4*i + 7 + r)
            sc.raw(cv[0], 4*i + 10, "post"); sc.raw(cv[1], 4*i + 11, "post2")
        for i, (kt, q, dg) in enumerate(tiles):
            sc.raw(f"@need {A(64 + 16*kt, 16)} " + " ".join(Qf(ds, q) for ds in range(4)), 4*i - 1, "pre")
        sc.raw(["@waitvm v", "s_waitcnt lgkmcnt(0)", "s_barrier"], gb, "post2")
        for k, r in enumerate(next_reads(1)): sc.raw(r, gb + 1 + k, "pre")
        assert gb + 8 < n
        sc.seq(next_k_dma(0, 1)[:12], 14)
        return sc.emit()
    def check():
        o = [f"v_add_f32 {V(48+r)}, {V(48+r)}, {V(56+(r ^ 2))}" for r in range(8)]
        o.append(f"""
        v_min3_f32 v56, v48, v49, v50
        v_add_f32 v57, v48, v49
        v_min3_f32 v56, v56, v51, v52
        v_add_f32 v58, v50, v51
        v_min3_f32 v56, v56, v53, v54
        v_add_f32 v59, v52, v53
        v_min_f32 v56, v56, v55
        v_add_f32 v60, v54, v55
        v_add_f32 v57, v57, v58
        v_add_f32 v59, v59, v60
        v_add_f32 v57, v57, v59
        v_cmp_nle_f32 s[36:37], s40, v56
        v_cmp_nge_f32 s[38:39], s41, v57
        v_cndmask_b32 v48, v48, v52, s[42:43]
        s_or_b64 s[36:37], s[36:37], s[38:39]
        s_cmp_lg_u64 s[36:37], 0
        s_cselect_b32 s36, 1, {1 if force_fallback else 0}
        s_cmp_gt_u32 s36, {S(sSafe)}
        {"s_nop 0" if drop else f"s_cbranch_scc1 {name}_slow"}
        v_cndmask_b32 v49, v49, v53, s[42:43]
        v_cndmask_b32 v50, v50, v54, s[42:43]
        v_cndmask_b32 v51, v51, v55, s[42:43]
        v_cndmask_b32 v28, v50, v48, s[74:75]
        v_cndmask_b32 v30, v51, v49, s[74:75]
        v_rcp_f32 v28, v28
        v_rcp_f32 v30, v30
        """)
        return toI(o)
    def iteration(par, qk, pv, carry, exit_lab=None, side=None, first=False):
        act = [(kp, q) for kp in range(2) for q in range(4)] if pv == "full" else diag_active(pv)
        fresh = pv != "full"
        def chain(dst, a, q):
            m = []; f = fresh
            for kp in range(2):
                if (kp, q) in act: m.append(MF(dst, a(kp), V(P(par, kp, q), 4), "0" if f else dst)); f = False
            return m
        groups = []
        for g in range(16):
            m = []
            if qk:
                kt, q = g >> 2, g & 3
                for ds in range(4): m.append(MF(V(Sw(g), 4), Kf(kt, ds), Qf(ds, q), V(Sw(g), 4) if ds else V(NM(q), 4)))
            dt = g >> 1
            if qk and fresh:
                order = sorted(range(4), key=lambda q: -sum((kp, q) in act for kp in range(2)))
                qs = (order[0], order[3]) if g & 1 else (order[1], order[2])
            else: qs = (2*(g & 1), 2*(g & 1) + 1)
            for q in qs: m += chain(V(O(dt, q), 4), lambda kp: Vf(dt, kp), q)
            if qk and g % 4 == 2: m += chain(A(Lr(g >> 2), 4), lambda kp: ONES, g >> 2)
            if not qk and g in (1, 2, 3, 4): m += chain(A(Lr(g - 1), 4), lambda kp: ONES, g - 1)
            groups.append(m)
        st = [0]
        for m in groups: st.append(st[-1] + len(m))
        n = st[16]
        sc = Sched([x for m in groups for x in m])
        if qk and not fresh:
            cvs = place_softmax(sc, softmax_ops(15, par, 3, 3), 0, 2)
            for g in range(15): cvs += place_softmax(sc, softmax_ops(g, par ^ 1, g >> 2, g & 3), st[g+1], 2)
            for c, e in cvs: sc.put(c, e)
            for sp in range(4):
                rd = next_reads(par) if sp == 3 else [x for k in range(4) for x in (rdK(par ^ 1, sp + 1, k), rdV(par, 2*sp + 2 + (k >> 1), k & 1))]
                rd = rd[0::2] + rd[1::2]
                pos = [st[4*sp + gg] + o for gg in range(4) for o in ((1, 3, 7) if sp == 2 else (3, 7))]
                for r, p in zip(rd, pos): assert sc.put(r, p) == p
                if sp != 2: sc.raw("s_waitcnt lgkmcnt(1)", st[4*sp + 4] - 1, "pre")
                sc.raw(f"@need {A(128 + 8*((2*sp + 1) & 3), 8)}", st[4*sp + 2] + 2, "pre")
            gv = sc.seq(next_v_dma(par ^ 1), 0 if side else V0, 4 if side else VST)
            sc.raw(["@waitvm v", "s_waitcnt lgkmcnt(0)", "s_barrier"], st[12] - BPOS, "pre" if BPOS == 3 else "post")
            kd = next_k_dma(par ^ 1)
            g = sc.seq(kd[:12], st[11] - 8) ; assert g < st[12] - BPOS
            g = sc.seq(kd[12:], st[12] - BPOS + 1, KST); assert g < n - 2, g
            if side: side(sc, st, gv)
        elif qk:
            cvs = []
            for g in range(15):
                ex, cv = softmax_ops(g, par ^ 1, g >> 2, g & 3)
                lo, ln = st[g+1] + 1, st[g+2] - st[g+1]
                ps = [lo + (r * ln) // 4 for r in range(4)]
                for e, p in zip(ex, ps): sc.put(e, p, force=True)
                cvs += [(cv[0], ps[1] + 1, ps[1] + 5), (cv[1], ps[3] + 1, ps[3] + 4)]
            dm = vgroups(next_k_dma(0, 1) + ([] if first else next_v_dma(1))); g = 0
            free_at = {}
            if first:
                firstw = lambda r: min([k for k, x in enumerate(sc.mf) if x.split()[1] == V(r, 4) + ","] + [st[11]])
                for k, (r, w) in enumerate(vw1):
                    hi = firstw(r) - 1
                    lo = max(0, min(hi - 4, 8*k))
                    free_at[r] = sc.putw(w, lo, min(hi, lo + 4))
                for k, gr in enumerate(st0[10:]):
                    gr = toI([x.t.replace(f", {V(vL16)},", f", {V(vL)},") for x in gr]); gr[-1].tag = "kv0"
                    r = rno(gr[-1].t.split()[1]); hi = min(firstw(r) - 1, st[4*(k//2) + 4] - 1)
                    lo = hi - (4 if k & 1 else 16)
                    free_at[r] = gg = sc.putw(gr[-1], lo, lo + 3)
                    sc.raw(gr[0], gg - 1, "post")
            dm[0] = dm[0][12:]
            for k, gr in enumerate(dm):
                lo = max(g, (k * (st[9] - 4)) // 16)
                if len(gr) > 1: lo = sc.seq(gr[:-1], lo)
                g = sc.putw(gr[-1], lo + 1, lo + 4) + 1
            if OWN == 3 and not first:
                sc.putw("v_lshlrev_b32 v21, 7, v0", 0, 8); sc.raw("@waitvm cx", g, "pre")
                sc.putw(f"buffer_load_dword v22, v21, {sWS}, s81 offen{CXL}", g + 1, g + 4)
            if pv == 1:
                for dt in range(8):
                    for r in range(4): sc.putw(f"v_mov_b32 {V(O(dt, 2)+r)}, 0", free_at.get(O(dt, 2), 0) + 2, n - 3)
            sc.raw(["@waitvm k" if first else "@waitvm v", "s_waitcnt lgkmcnt(0)", "s_barrier"], st[12] - 1)
            kd = next_k_dma(1)
            assert g < st[10] and sc.seq(kd[:12], st[10]) < st[12]
            g = st[12]
            for k, gr in enumerate(vgroups(kd[12:])):
                lo = max(g, st[12] + (k * (n - 4 - st[12])) // 8)
                for x in gr[:-1]: sc.raw(x, lo, "pre")
                g = sc.putw(gr[-1], lo + 1, lo + 2) + 1
            assert g < n
            for sp in range(4):
                rd = next_reads(par) if sp == 3 else [x for k in range(4) for x in (rdK(par ^ 1, sp + 1, k), rdV(par, 2*sp + 2 + (k >> 1), k & 1))]
                lo, hi = st[4*sp], st[4*sp + 3] + 1
                for k, r in enumerate(rd): sc.putw(r, lo + (k * (hi - lo)) // 8, lo + ((k + 1) * (hi - lo)) // 8)
                if sp != 2: sc.raw("s_waitcnt lgkmcnt(0)", st[4*sp + 4] - 1, "pre")
            for c, lo, hi in cvs: sc.putw(c, lo, min(hi, n - 1))
        else:
            if pv == 1:
                for k in range(32): sc.raw(f"v_mov_b32 {V(O(k >> 2, 2) + (k & 3))}, 0", k)
            if carry:
                ex, cv = softmax_ops(15, par, 3, 3)
                sc.raw(ex[:2], -1); sc.raw(ex[2], 0); sc.raw(ex[3], 1); sc.raw(cv[0], 2); sc.raw(cv[1], 3)
            for g in range(12): sc.put(rdV(par, (g >> 1) + 2, g & 1), st[g], force=True)
            idle = 65536 + par*32768
            sc.raw([f"v_add_u32 {V(vX)}, 131072, {V(vDm)}"], 2); sc.raw([f"v_xor_b32 {V(vXp)}, 0x4000, {V(vX)}"], 3)
            sc.raw([f"s_lshl_b32 {S(sT2)}, {S(sWV)}, 10"], 4, "pre")
            sc.raw([f"v_add_u32 {V(vLx)}, {idle}, {V(vL)}", f"v_add_u32 v19, {S(sT2)}, {V(vLx)}"], 5)
            lastm = lambda r: max(k for k, x in enumerate(sc.mf) if x.split()[1] == V(r, 4) + ",")
            lastl = max(k for k, x in enumerate(sc.mf) if x.split()[1].startswith("a["))
            gl = sc.seq([f"v_accvgpr_read_b32 {V(28+q)}, {A(Lr(q))}" for q in range(4)] + [I("ds_write_b128 v19, v[28:31]", "lw")], lastl + 5)
            gb = gl + 5
            sc.raw(["@waitlg lw", "s_barrier"], gb, "pre")
            g = sc.seq([f"ds_read_b128 {V(48+4*w, 4)}, {V(vLx)} offset:{w*1024}" for w in range(4)], gb + 1)
            cv = lambda d, x: f"v_cvt_pk_bf16_f32 {V(d)}, {V(x)}, {V(x+1)}"
            gw = 0
            for i in range(4):
                for q in range(2):
                    r0, r1 = O(2*i, q), O(2*i + 1, q)
                    e = sc.seq([cv(r0, r0), cv(r0+1, r0+2)], lastm(r0) + 6)
                    gw = sc.seq([cv(r0+2, r1), cv(r0+3, r1+2), f"ds_write_b128 {V(vX)}, {V(r0, 4)} offset:{(q*4+i)*1024}"], max(lastm(r1) + 5, gw, e + 1)) + 1
            sc.gchk = sc.seq(check(), g + 6)
            if side: side(sc, st, P(par ^ 1, 0, 0))
        if qk:
            sc.raw(f"s_add_u32 {S(sN)}, {S(sN)}, 1", n - 2, "pre")
            if exit_lab: sc.raw(f"s_cmp_eq_u32 {S(sN)}, {S(sBLK)}", n - 1, "pre"); sc.raw(f"s_cbranch_scc1 {exit_lab}", 999)
        out = sc.emit()
        if drop and qk and pv == "full":
            out = [i for i in out if not (("dma" in drop and i.kind == "vmem") or ("bar" in drop and i.op == "s_barrier") or ("ds" in drop and i.kind == "ds")
                                          or ("exp" in drop and i.op == "v_exp_f32") or ("cvt" in drop and i.op.startswith("v_cvt")) or ("vmw" in drop and i.kind == "wait"))]
        return out
    reent = State(vm=[(set(), "v", False)] + [(set(), "cx", False)] * NCX)
    b.label(name + "_blk", b.flush() + [reent])
    b(f"s_mov_b32 {S(sSafe)}, 0")
    ST("qrd")
    b.label(name + "_retry", b.flush() + [reent])
    b(f"""
    s_mov_b32 {S(sN)}, 0
    s_mov_b32 {S(sUb)}, {S(sR0)}
    s_cmp_eq_u32 {S(sR0)}, 0
    s_cselect_b32 {S(sKu)}, 1, 0
    s_cmp_ge_u32 {S(sWV)}, 2
    s_cbranch_scc1 {name}_d2
    """)
    pre = b.flush()
    gen0 = {}
    def diag_tail(kg):
        ST("diag")
        b(f"s_or_b32 {S(sT2)}, {S(sPass)}, {S(sSafe)}"); b(f"s_cmp_lg_u32 {S(sT2)}, 0"); b(f"s_cbranch_scc1 {name}_g{kg}")
        gen0[kg] = b.flush()
        spin(f"{name}_pk{kg}", 26, poll_kv.replace(f"dword {V(vPk)},", "dword v26,"), 32)
        ST("dtail")
        b(iteration(0, True, kg, False, None, None, True))
    b(qk_diag(0)); diag_tail(0); b(f"s_branch {name}_it1"); f0a = b.flush()
    b.label(name + "_d2", pre)
    b(qk_diag(1)); diag_tail(1); f0b = b.flush()
    gtext = {}; spv = {}; skip = []
    for kg in range(2):
        va = [] if kg else toI(["s_and_b32 s10, s2, 3", "s_lshl_b32 s10, s10, 7", f"s_add_u32 s10, s10, {WS_FLG + (FL_R + 32)*128}", f"s_cmp_lt_u32 s9, {hex(OOB)}",
                                f"s_cselect_b32 s10, s10, {hex(OOB)}", f"s_cmp_eq_u32 {S(sSafe)}, 0", f"s_cselect_b32 s10, s10, {hex(OOB)}",
                                f"buffer_atomic_add {V(vOne)}, {V(vFlagW)}, {sWS}, s10 offen"])
        h1, spv[kg] = seg(va + pf_code(f"g{kg}", 21, 22) + [f"s_cmp_eq_u32 {S(sBLK)}, 0", f"s_cbranch_scc1 {name}_pvd{kg}"], gen0[kg])
        h2, ex_ = seg(iteration(0, True, kg, False, name + "_pv1") + toI([f"s_branch {name}_odd"]), spv[kg])
        gtext[kg] = h1 + h2; skip += ex_
    spv0, spv1 = spv[0], spv[1]; it0a, it0b = skip, []
    b.label(name + "_it1", f0a + f0b)
    ST("it0")
    def side_stash(sc, st, gv):
        for k in range(16): assert sc.putw(rdQ(192, k >> 2, k & 3), 0, st[12] - 12) < st[12] - 8
    sWO = sWU; sWo, sHc = 54, 55
    vWo = 23
    sCx, sOb = 81, 82
    def side_osetup(sc, part, lo=0):
        o = []
        for i in range(5):
            o.append(f"""
            v_add_u32 {V(vWo+i)}, {64*i}, v0
            v_mul_u32_u24 v19, 3277, {V(vWo+i)}
            v_lshrrev_b32 v19, 16, v19
            v_mul_u32_u24 v4, 20, v19
            v_sub_u32 {V(vWo+i)}, {V(vWo+i)}, v4
            v_bfe_u32 v4, v19, 2, 1
            v_lshlrev_b32 v4, 1, v4
            v_xor_b32 {V(vWo+i)}, {V(vWo+i)}, v4
            v_mul_u32_u24 v19, 1280, v19
            v_lshl_add_u32 {V(vWo+i)}, {V(vWo+i)}, 4, v19
            """)
        if part < 5: sc.seq(o[part:part+1], lo); return
        sc.seq([f"""
        s_and_b32 {S(sT3)}, {S(sHD)}, 3
        s_mul_i32 {S(sWo)}, {S(sT3)}, 320
        s_mul_i32 {S(sT3)}, {S(sWV)}, {32*1280}
        s_add_u32 {S(sWo)}, {S(sWo)}, {S(sT3)}
        s_lshr_b32 {S(sT3)}, {S(sHD)}, 2
        s_mul_i32 {S(sT3)}, {S(sT3)}, {512*1280}
        s_add_u32 {S(sWo)}, {S(sWo)}, {S(sT3)}
        s_mov_b32 s40, {FH(L_LO)}
        s_mov_b32 s41, {FH(L_HI)}
        s_bitcmp1_b32 {S(sWV)}, 0
        s_cselect_b64 s[42:43], -1, 0
        s_bitcmp1_b32 {S(sWV)}, 1
        s_cselect_b64 s[74:75], -1, 0
        s_mul_i32 s71, {S(sWV)}, 10240
        s_lshr_b32 {S(sCx)}, {S(sHD)}, 2
        s_lshl_b32 {S(sCx)}, {S(sCx)}, 3
        s_add_u32 {S(sCx)}, {S(sCx)}, {S(sJ)}
        s_lshl_b32 {S(sCx)}, {S(sCx)}, 2
        s_add_u32 {S(sOb)}, {S(sCx)}, {S(sWV)}
        s_lshl_b32 {S(sCx)}, {S(sOb)}, 2
        s_and_b32 {S(sT3)}, {S(sHD)}, 3
        s_add_u32 {S(sCx)}, {S(sCx)}, {S(sT3)}
        s_lshl_b32 {S(sCx)}, {S(sCx)}, 14
        s_add_u32 {S(sCx)}, {S(sCx)}, {WS_CTX}
        """], 50)
    sJs, sJd, sJp, sJb, sJi = 16, 17, 18, 19, 8
    vJr, vJc, vJo, vJa = 17, 18, 19, 12
    JR = [A(180, 4), A(184, 4), A(188, 4), V(28, 4)]
    def half(r, hf): return (A if r[0] == "a" else V)(rno(r) + 2*hf, 2)
    def j_setup():
        return toI([f"""
        v_lshrrev_b32 {V(vJr)}, 3, v0
        v_bfe_u32 {V(vJc)}, v0, 4, 2
        v_lshlrev_b32 {V(vJc)}, 1, {V(vJc)}
        v_and_b32 v4, 7, v0
        v_xor_b32 {V(vJc)}, {V(vJc)}, v4
        v_lshlrev_b32 {V(vJc)}, 4, {V(vJc)}
        s_lshl_b32 {S(sJi)}, s2, 2
        s_add_u32 {S(sJi)}, {S(sJi)}, {S(sWV)}
        s_add_u32 {S(sJb)}, {S(sLw)}, 131072
        """])
    def j_dma(srd, buf):
        o = [f"v_mad_u32_u24 {V(vJo)}, {V(vJr)}, {S(sJp)}, {V(vJc)}", f"s_lshl_b32 {S(sJp)}, {S(sJp)}, 3"]
        for i in range(4):
            if i: o.append(f"s_add_u32 {S(sJs)}, {S(sJs)}, {S(sJp)}")
            o += [f"s_add_u32 m0, {S(sJb)}, {buf*4096 + i*1024}", I(f"buffer_load_dwordx4 {V(vJo)}, {S(srd,4)}, {S(sJs)} offen{nt('j')} lds", "j")]
        return toI(o)
    def t_addr():
        return toI([f"""
        s_sub_u32 {S(sT3)}, {S(sJi)}, 540
        s_cmp_lt_u32 {S(sJi)}, 540
        s_cselect_b32 {S(sT3)}, {S(sJi)}, {S(sT3)}
        s_cmp_lt_u32 {S(sJi)}, 540
        s_cselect_b32 {S(RT)}, {S(RT)}, {S(RO)}
        s_cmp_lt_u32 {S(sJi)}, 540
        s_cselect_b32 {S(RT+1)}, {S(RT+1)}, {S(RO+1)}
        s_cmp_lt_u32 {S(sJi)}, 540
        s_cselect_b32 {S(RT+2)}, {S(RT+2)}, {S(RO+2)}
        s_mov_b32 s9, {hex((2**32 + 9)//10)}
        s_cmp_lt_u32 {S(sJi)}, 540
        s_cselect_b32 s9, {hex((2**32 + 26)//27)}, s9
        s_cmp_lt_u32 {S(sJi)}, 540
        s_cselect_b32 s10, 27, 10
        s_mov_b32 {S(sJd)}, {WS_WOUT}
        s_cmp_lt_u32 {S(sJi)}, 540
        s_cselect_b32 {S(sJd)}, {WS_WIN}, {S(sJd)}
        s_lshl_b32 {S(sJp)}, s10, 7
        s_mul_hi_u32 s9, {S(sT3)}, s9
        s_mul_i32 s10, s9, s10
        s_sub_u32 s10, {S(sT3)}, s10
        s_lshl_b32 {S(sT3)}, {S(sT3)}, 12
        s_add_u32 {S(sJd)}, {S(sJd)}, {S(sT3)}
        s_mul_i32 {S(sJs)}, s9, {S(sJp)}
        s_lshl_b32 {S(sJs)}, {S(sJs)}, 5
        s_lshl_b32 s10, s10, 7
        s_add_u32 {S(sJs)}, {S(sJs)}, s10
        s_cmp_lt_u32 {S(sJi)}, 810
        s_cselect_b32 {S(sJd)}, {S(sJd)}, {hex(OOB)}
        """])
    def t_out():
        o = [f"""
        v_lshrrev_b32 v4, 2, v0
        v_bfe_u32 {V(vJa)}, v0, 3, 2
        v_lshlrev_b32 {V(vJa)}, 5, {V(vJa)}
        v_lshl_add_u32 {V(vJa)}, v4, 7, {V(vJa)}
        v_and_b32 v4, 3, v0
        v_lshl_add_u32 {V(vJa)}, v4, 3, {V(vJa)}
        v_add_u32 {V(vJa)}, {S(sJb)}, {V(vJa)}
        v_xor_b32 {V(vJa+1)}, 32, {V(vJa)}
        v_xor_b32 {V(vJa+2)}, 64, {V(vJa)}
        v_xor_b32 {V(vJa+3)}, 96, {V(vJa)}
        """]
        rd = [f"ds_read_b64_tr_b16 {half(JR[n], hf)}, {V(vJa+n)} offset:{hf*2048}" for n in range(4) for hf in range(2)]
        st = [f"buffer_store_dwordx4 {JR[n]}, {V(vL)}, {sWS}, {S(sJd)} offen offset:{n*1024}{SC}" for n in range(4)]
        return toI(o), toI(rd), toI(st)
    def s_addr(k):
        return toI([f"""
        s_lshr_b32 s9, {S(sJi)}, 5
        s_add_u32 s9, s9, {32*k}
        s_and_b32 s10, {S(sJi)}, 31
        s_lshl_b32 {S(sJs)}, s9, 17
        s_lshl_b32 s10, s10, 7
        s_add_u32 {S(sJs)}, {S(sJs)}, s10
        s_mov_b32 {S(sJp)}, 4096
        """])
    def s_out(k, buf):
        o = [f"""
        s_lshr_b32 {S(sJd)}, {S(sJi)}, 6
        s_add_u32 {S(sJd)}, {S(sJd)}, {16*k}
        s_lshl_b32 {S(sJd)}, {S(sJd)}, 18
        s_and_b32 s11, {S(sJi)}, 31
        s_lshl_b32 s11, s11, 13
        s_add_u32 {S(sJd)}, {S(sJd)}, s11
        s_bfe_u32 s11, {S(sJi)}, 0x10005
        s_lshl_b32 s11, s11, 11
        s_add_u32 {S(sJd)}, {S(sJd)}, s11
        s_add_u32 {S(sJd)}, {S(sJd)}, {WS_WSP}
        s_add_u32 s11, {S(sJd)}, 4096
        """]
        if k == 0: o.append(f"""
        v_bfe_u32 {V(vJa)}, v0, 1, 2
        v_lshlrev_b32 {V(vJa)}, 5, {V(vJa)}
        v_and_b32 v4, 15, v0
        v_lshl_add_u32 {V(vJa)}, v4, 7, {V(vJa)}
        v_lshrrev_b32 v4, 4, v0
        v_lshl_add_u32 {V(vJa)}, v4, 3, {V(vJa)}
        v_add_u32 {V(vJa)}, {S(sJb)}, {V(vJa)}
        v_xor_b32 {V(vJa+1)}, 32, {V(vJa)}
        v_xor_b32 {V(vJa+2)}, 64, {V(vJa)}
        v_xor_b32 {V(vJa+3)}, 96, {V(vJa)}
        """)
        rd = [f"ds_read_b64 {half(JR[2*ks+mt], hf)}, {V(vJa+2*ks+hf)} offset:{buf*4096 + mt*2048}" for ks in range(2) for mt in range(2) for hf in range(2)]
        st = [f"buffer_store_dwordx4 {JR[2*ks+mt]}, {V(vL)}, {sWS}, {'s11' if ks else S(sJd)} offen offset:{mt*1024}{SC}" for ks in range(2) for mt in range(2)]
        return toI(o), toI(rd), toI(st)
    def wseq(sc, ins, lo, step=1):
        ins = toI(ins); sc.seqs.append(ins); g = lo; prev = None
        for i in ins:
            if i.kind in ("salu", "pseudo"):
                if prev is not None and prev.op.startswith("s_cmp"): sc.put(i, g, force=True)
                else: g = sc.put(i, g + (prev is not None and prev.kind != "salu"))
            else: g = sc.putw(i, g + 1, g + 3) + (step if i.kind == "vmem" else 0)
            prev = i
        return g
    def freeg(sc, lo):
        return next(g for g in range(lo, len(sc.mf)) if sc.free[g] == 2)
    def job_out(sc, st, gv, parts):
        _, rd, sto = parts
        for x in sto: x.tag = "js"
        g = freeg(sc, JR0); sc.raw("@waitvm j", g, "pre")
        for x in rd[:4] + sto[:1] + rd[4:6] + sto[1:2] + rd[6:] + sto[2:]:
            if x.kind == "vmem": g = max(g, JSP[sto.index(x)])
            g = sc.put(x, freeg(sc, g)) + 1
        assert g < st[12] - 4
    def side1(sc, st, gv):
        side_stash(sc, st, gv); sc.seq(j_setup() + t_addr(), 20)
    def st_init():
        return toI([f"""
        v_and_b32 v21, 15, v0
        v_lshlrev_b32 v21, 3, v21
        v_bfe_u32 v22, v0, 4, 1
        v_mul_u32_u24 v22, {WS_ST2 - WS_ST1}, v22
        v_add_u32 v21, v21, v22
        v_mov_b32 v14, -1.0
        v_mov_b32 v15, -1.0
        s_lshl_b32 s9, {S(sJi)}, 7
        s_add_u32 s9, s9, {WS_ST1}
        buffer_store_dwordx2 v[14:15], v21, {sWS}, s9 offen sc1
        """])
    def side2(sc, st, gv):
        g = sc.seq(["@waitvm kv0", f"s_lshl_b32 s9, {S(sHD)}, 7", f"s_add_u32 s9, s9, {WS_FLG + FL_K0*128}", f"buffer_atomic_add {V(vOne)}, {V(vFlagW)}, {sWS}, s9 offen"], 8)
        g = sc.seq(j_dma(RT, 0), max(g, gv) + 1, 4); assert g < st[12] - 8
        g = sc.seq(st_init(), g + 1)
        sc.seq(t_out()[0], g + 1)
    poll_t = f"buffer_load_dword v22, v21, {sWS}, 0 offen sc1"
    def side3(sc, st, gv):
        job_out(sc, st, gv, t_out()); sc.seq(s_addr(0), 40); side_osetup(sc, 5); side_osetup(sc, 0); side_osetup(sc, 1, 70)
    def side4(sc, st, gv):
        g = sc.seq(["s_and_b32 s9, s2, 31", "s_lshl_b32 s9, s9, 7", f"s_add_u32 s9, s9, {WS_FLG + FL_T*128}", "@waitvm js",
                    f"buffer_atomic_add {V(vOne)}, {V(vFlagW)}, {sWS}, s9 offen"], gv - 2)
        g = sc.seq(j_dma(RS, 0), g + 1, 4); assert g < st[12] - 8
        sc.seq(s_out(0, 0)[0], 20)
        if PW:
            sc.seq([f"s_lshr_b32 s4, {S(sJi)}, 7", f"s_bfe_u32 s5, {S(sJi)}, 0x50002", "s_mul_i32 s6, s5, 20", "s_mul_i32 s7, s4, 5", "s_add_u32 s6, s6, s7",
                    f"s_add_u32 s6, s6, {WS_XA // 4096 + 2}", "s_mul_i32 s5, s5, 27", "s_mul_i32 s7, s4, 7", "s_add_u32 s5, s5, s7", f"s_add_u32 s5, s5, {WS_U // 4096 + 3 - 28}",
                    "s_cmp_lt_u32 s4, 4", "s_cselect_b32 s6, s6, s5", "s_lshl_b32 s6, s6, 2", f"s_add_u32 s6, s6, {S(sWV)}", "s_lshl_b32 s6, s6, 10",
                    "s_cmp_lt_u32 s4, 7", f"s_cselect_b32 s6, s6, {hex(OOB)}",
                    f"buffer_store_dwordx4 {V(NM(0), 4)}, {V(vL)}, {sWS}, s6 offen sc1"], 3)
    def side5(sc, st, gv):
        job_out(sc, st, gv, s_out(0, 0)); sc.seq(s_addr(1), 40)
        assert sc.seq([f"v_add_u32 {V(vPa)}, {(FL_K0 - FL_KV)*128}, {V(vPa)}", poll_kv], 56) < st[12]
        side_osetup(sc, 2)
    def side6(sc, st, gv):
        g = sc.seq(["v_and_b32 v21, 31, v0", "v_lshlrev_b32 v21, 7, v21", f"v_add_u32 v21, {WS_FLG + FL_T*128}, v21", poll_t], 20)
        g = sc.seq(j_dma(RS, 0), max(g, gv) + 1, 4); assert g < st[12] - 8
        sc.seq(s_out(1, 0)[0], 4)
        if CPF:
            pc = pf_code("s", 4, 28); sc.raw(pc[:2], g + 1); sc.seq(pc[2:], g + 2)
    def side7(sc, st, gv):
        if TLB == 17: sc.seq(["v_lshlrev_b32 v21, 21, v0", "s_mov_b32 s4, 0x1fff80", f"buffer_load_dword v22, v21, {sWS}, s4 offen"], 84)
        job_out(sc, st, gv, s_out(1, 0)); side_osetup(sc, 3); side_osetup(sc, 4, 70)
        sc.seq(["s_and_b32 s9, s2, 31", "s_lshl_b32 s9, s9, 7", f"s_add_u32 s9, s9, {WS_FLG + FL_R*128}"], 60)
        sc.raw(["@waitvm js", f"buffer_atomic_add {V(vOne)}, {V(vFlagW)}, {sWS}, s9 offen"], len(sc.mf) - 3)
    sides = [side1, side2, side3, side4, side5, side6, side7]
    if fine == "side": T.stamp(b, "it0")
    for k, sd in enumerate(sides):
        it_ = iteration((k + 1) & 1, True, "full", True, name + "_pv0" if k == 6 else None, sd)
        if "sld" in drop2: it_ = [i for i in it_ if not (i.kind == "vmem" and i.tag == "j")]
        if "sst" in drop2: it_ = [i for i in it_ if not (i.kind == "vmem" and "store" in i.op)]
        b(it_)
        if k == 4: spin(name + "_p0", vPk, poll_kv, 32)
        if k == 5: spin(name + "_pt", 22, poll_t, 32)
        if k == 6: ex7 = b.flush()
        if fine == "side": T.stamp(b, f"it{k+1}")
    if fine == "att0": ST("it2")
    ins, outs = b.chain_loop([(name + "_even", iteration(0, True, "full", True, name + "_pv1")),
                              (name + "_odd", iteration(1, True, "full", True, name + "_pv0")[:-1] + toI([f"s_cbranch_scc0 {name}_even", f"s_branch {name}_pv0"]))], extra={1: skip})
    outs = outs[::-1]
    for kg in range(2): b.label(f"{name}_g{kg}"); b.out += gtext[kg]
    TMP, CF = 64, 32
    CB = [0, 40960, 81920, 122880]
    def dmaO(c):
        o = [f"s_add_u32 {S(sHc)}, {S(sHD)}, {0 if 'ohit' in drop2 else c}", f"s_and_b32 {S(sHc)}, {S(sHc)}, 3", f"s_mul_i32 {S(sHc)}, {S(sHc)}, {128*1280}", f"s_add_u32 {S(sHc)}, {S(sHc)}, {S(sWo)}"]
        for k in range(10):
            if k == 5: o.append(f"s_add_u32 {S(sHc)}, {S(sHc)}, {16*1280}")
            o += [f"s_add_u32 m0, s71, {CB[c] + k*1024}", I(f"buffer_load_dwordx4 {V(vWo + k % 5)}, {sWO}, {S(sHc)} offen{nt('O')} lds", f"o{c}")]
        return toI(o)
    def Xf(c, ks, m):
        if c == 0: return A(192 + 8*ks + 4*m, 4) if m < 2 else V(CF + 8*ks + 4*(m-2), 4)
        return A(64*(c-1) + 16*ks + 4*m, 4)
    sCc = 58
    def ldX(c, passes):
        o = [f"s_add_u32 {S(sCc)}, {S(sHD)}, {0 if 'xhit' in drop2 else c}", f"s_and_b32 {S(sCc)}, {S(sCc)}, 3", f"s_lshl_b32 {S(sT2)}, {S(sOb)}, 2", f"s_add_u32 {S(sCc)}, {S(sCc)}, {S(sT2)}",
             f"s_lshl_b32 {S(sCc)}, {S(sCc)}, 14", f"s_add_u32 {S(sCc)}, {S(sCc)}, {WS_CTX}"]
        for p in passes:
            for ks in range(4):
                if ks % 2 == 0: o.append(f"s_add_u32 {S(sT2)}, {S(sCc)}, {(0 if 'xhit' in drop2 else p)*8192 + ks*2048}")
                for a in range(2): o.append(f"buffer_load_dwordx4 {Xf(c, ks, 2*p + a)}, {V(vL)}, {sWS}, {S(sT2)} offen offset:{(ks & 1)*2048 + a*1024}{CXL}")
        return toI(o)
    def own_long(tag):
        return toI(["v_lshlrev_b32 v21, 7, v0", f"buffer_load_dword a186, v21, {sWS}, {S(sCx)} offen{CXL}"])
    sFx = 79
    poll_r = f"buffer_load_dword v22, {V(vPa)}, {sWS}, 0 offen sc1"
    def side_o0(sc, st, gv):
        arr = toI([f"s_lshl_b32 {S(sFx)}, {S(sOb)}, 8", f"s_add_u32 {S(sFx)}, {S(sFx)}, {WS_FLG + FL_CX*128}",
                   f"s_cmp_eq_u32 {S(sSafe)}, 0", f"s_cselect_b32 {S(sKs)}, {S(sFx)}, {hex(OOB)}", "@waitvm cx",
                   f"buffer_atomic_add {V(vOne)}, {V(vFlagW)}, {sWS}, {S(sKs)} offen offset:128",
                   f"v_min_u32 {V(vPa)}, 35, v0", f"v_lshlrev_b32 {V(vPa)}, 7, {V(vPa)}", f"v_add_u32 {V(vPa)}, {WS_FLG + FL_R*128}, {V(vPa)}", poll_r])
        paced(sc, vgroups(arr + (own_long(0) if OWN == 1 or (OWN == 3 and len(sc.mf) < 60) else []) + dmaO(0) + (own_long(0) if OWN == 2 else [])), 0, len(sc.mf) - 4)
    def side_vec(sc, st, gv):
        o = [f"""
        v_and_b32 v21, 15, v0
        v_lshrrev_b32 v22, 4, v0
        v_lshlrev_b32 v22, 4, v22
        v_lshl_add_u32 v22, v21, 6, v22
        v_cmp_gt_u32 vcc, 2, v21
        v_mov_b32 v21, {hex(OOB)}
        v_cndmask_b32 v22, v21, v22, vcc
        s_mul_i32 s9, {S(sWV)}, 640
        s_add_u32 s9, s9, {WS_MODB}
        s_mul_i32 s10, {S(sWV)}, {5*108*1024}
        s_lshl_b32 s11, s2, 10
        s_add_u32 s10, s10, s11
        s_add_u32 s10, s10, {WS_WIN - 148*1024}
        s_cmp_ge_u32 s2, 148
        s_cselect_b32 s10, s10, {hex(OOB)}
        """]
        for k in range(5):
            if k: o.append(f"s_add_u32 s10, s10, {108*1024}")
            o += [f"buffer_load_dwordx4 {A(64+8*k,4)}, {V(vL)}, {sWS}, s10 offen sc1", f"buffer_load_dwordx4 {A(68+8*k,4)}, v22, {sWS}, s9 offen offset:{128*k} sc1"]
        o = toI(o)
        sc.seq(o[7:15], 0); g = sc.seq(o[:7], 4)
        gv_ = paced(sc, vgroups(o[15:]), max(g + 1, 9), 46)
        g = sc.seq(masks(False, gv), 12); assert g < sc.gchk - 12
        t = gv + 4
        g = sc.seq([f"""
        v_lshrrev_b32 {V(t)}, 4, v0
        v_lshlrev_b32 {V(t)}, 2, {V(t)}
        v_and_b32 {V(t+1)}, 15, v0
        v_sub_u32 {V(t)}, {V(t+1)}, {V(t)}
        v_lshlrev_b32 {V(t+1)}, 4, {V(t)}
        v_mov_b32 {V(t+2)}, 0x3f80
        v_lshlrev_b32 {V(t+1)}, {V(t+1)}, {V(t+2)}
        v_lshrrev_b32 {V(t)}, 1, {V(t)}
        v_cmp_eq_u32 vcc, 0, {V(t)}
        v_cmp_eq_u32 {S(sMK,2)}, 1, {V(t)}
        v_accvgpr_write_b32 a182, 0
        v_accvgpr_write_b32 a183, 0
        v_cndmask_b32 {V(t+2)}, 0, {V(t+1)}, vcc
        v_cndmask_b32 {V(t+3)}, 0, {V(t+1)}, {S(sMK,2)}
        v_accvgpr_write_b32 a180, {V(t+2)}
        v_accvgpr_write_b32 a181, {V(t+3)}
        v_accvgpr_write_b32 a184, {V(t+2)}
        v_accvgpr_write_b32 a185, {V(t+3)}
        """], g + 1)
        pw = toI([f"""
        v_lshlrev_b32 {V(gv)}, 7, v0
        v_cmp_gt_u32 vcc, 40, v0
        v_cndmask_b32 {V(gv)}, v21, {V(gv)}, vcc
        s_lshr_b32 s11, s2, 3
        s_lshl_b32 s11, s11, 2
        s_add_u32 s11, s11, {S(sWV)}
        s_lshr_b32 s8, {S(sHD)}, 2
        s_lshl_b32 s8, s8, 7
        s_add_u32 s11, s11, s8
        s_mul_i32 s11, s11, 5120
        buffer_load_dword v51, {V(gv)}, {sWO}, s11 offen{nt('o')}
        v_lshlrev_b32 v22, 2, v0
        v_cmp_gt_u32 vcc, 16, v0
        v_cndmask_b32 v22, v21, v22, vcc
        s_lshl_b32 s9, s2, 6
        s_add_u32 s9, s9, {WS_VEC - 148*64}
        s_cmp_ge_u32 s2, 148
        s_cselect_b32 s9, s9, {hex(OOB)}
        s_cmp_eq_u32 {S(sWV)}, 0
        s_cselect_b32 s9, s9, {hex(OOB)}
        s_add_u32 s10, s9, 0x2000
        """])
        pw[10] = I(pw[10].t.replace("v51,", "a186,"))
        sc.seq(pw[3:10], 10); sc.seq(pw[14:], gv_ + 1)
        sc.seq(pw[:3] + pw[10:14], max(g, gv_) + 1)
        sc.raw([MF(A(104,4), A(68+8*k,4), A(64+8*k,4), A(104,4) if k else "0") for k in range(5)], len(sc.mf) - 1, "pre")
        sc.raw(f"ds_write_b128 v19, {A(104,4)} offset:4096", 999)
    fin0 = []; fin1 = []
    for par, preds in ((0, outs[0] + ex7), (1, outs[1] + it0a + it0b)):
        b.label(f"{name}_pv{par}", preds); ST("loop")
        b(f"s_cmp_eq_u32 {S(sPass)}, 1"); b(f"s_cbranch_scc1 {name}_pw{par}"); pw = b.flush()
        b(iteration(par, False, "full", True, None, side_vec)); b(f"s_branch {name}_fin0"); fin0 += b.flush()
        b.label(f"{name}_pw{par}", pw); b(iteration(par, False, "full", True, None, side_o0)); b(f"s_branch {name}_fin1"); fin1 += b.flush()
    b.label(name + "_pvd0", spv0); b(iteration(0, False, 0, False, None, side_o0)); b(f"s_branch {name}_fin1"); fin1 += b.flush()
    b.label(name + "_pvd1", spv1); b(iteration(0, False, 1, False, None, side_o0)); b(f"s_branch {name}_fin1"); fin1 += b.flush()
    def merge_reads(hop, more=[]):
        b("s_waitcnt lgkmcnt(0)"); b("s_barrier")
        for i in range(4):
            for a in range(2): b(f"ds_read_b128 {V(TMP + 8*i + 4*a, 4)}, {V(vXp)} offset:{(a*4+i)*1024}")
        b(more)
        if HOP: b(hop)
    def merge_add():
        return Sched([MF(V(O(2*i + h, 2 + a), 4), A(180 + 2*h, 4), V(TMP + 8*i + 4*a, 4), V(O(2*i + h, 2 + a), 4)) for i in range(4) for a in range(2) for h in range(2)])
    cxl = []
    def normalise(off, skip=0):
        for i in range(4):
            for a in range(2):
                r0, r1 = O(2*i, 2 + a), O(2*i + 1, 2 + a)
                if 2*i + a >= skip:
                    for t in (r0, r0 + 2, r1, r1 + 2): b(f"v_pk_mul_f32 {V(t,2)}, {V(t,2)}, {V(28+2*a,2)} op_sel_hi:[1,0]")
                d = CF + 8*i + 4*a if off else r0
                for k, t in enumerate((r0, r0 + 2, r1, r1 + 2)): b(f"v_cvt_pk_bf16_f32 {V(d+k)}, {V(t)}, {V(t+1)}")
                if off and 2*i + a >= CX0:
                    cxl.append(toI([f"s_add_u32 {S(sKs)}, {S(sCx)}, {off + (i >> 1)*4096}"])
                               + [I(f"buffer_store_dwordx4 {V(d,4)}, {V(vL)}, {sWS}, {S(sKs)} offen offset:{(i & 1)*2048 + a*1024}{CXS}", "cx")])
                    continue
                if (i, a) in ((0, 0), (2, 0)): b(f"s_add_u32 {S(sT3)}, {S(sCx)}, {off + i*2048}")
                b(f"buffer_store_dwordx4 {V(d,4)}, {V(vL)}, {sWS}, {S(sT3)} offen offset:{(i & 1)*2048 + a*1024}{CXS}", "cx")
                if not off:
                    for k in range(4): b(f"v_accvgpr_write_b32 {A(rno(Xf(0, i, a)) + k)}, {V(d+k)}")
    b.label(name + "_fin0", fin0)
    ST("pv")
    b(f"""
    s_mov_b32 {S(sPass)}, 1
    s_mov_b32 {S(sBLK)}, {S(sBLK2)}
    s_mov_b32 {S(sR0)}, 0
    s_mov_b32 {S(sA0)}, {hex(OOB)}
    s_mov_b32 {S(sA1)}, {hex(OOB)}
    s_mov_b32 {S(sAl)}, 163840
    @waitvm k
    """)
    merge_reads("@hop d", [f"ds_read_b64 {V(56+2*w,2)}, {V(vLx)} offset:{4096 + w*1024}" for w in range(4)])
    ST("xr")
    b([rdK0(0, ds) for ds in range(4)])
    b(f"""
    v_pk_add_f32 v[56:57], v[56:57], v[58:59]
    v_pk_add_f32 v[60:61], v[60:61], v[62:63]
    v_pk_add_f32 v[56:57], v[56:57], v[60:61]
    buffer_store_dword v56, v22, {sWS}, s9 offen sc1
    buffer_store_dword v57, v22, {sWS}, s10 offen sc1
    """)
    movs = [f"v_accvgpr_mov_b32 {A(r)}, {A(192+r)}" for r in range(64)]
    vd = vgroups(toI(unit_diag(sVs, sVb)) + dmaKV(1, 0, sVs, "v"))
    sc = merge_add()
    paced(sc, vd[:4], 0, 16)
    nm_ = sum(sc.free)
    for x in movs[:nm_]: sc.put(x, 0)
    b(sc.emit())
    rest = movs[nm_:]
    for k, gr in enumerate(vd[4:]): b(gr); b(rest[k*len(rest)//4 : (k+1)*len(rest)//4])
    normalise(0)
    b(f"s_cmp_eq_u32 {S(sSafe)}, 0"); b(f"s_cbranch_scc1 {name}_nz"); nz = b.flush()
    for r in range(16): b(f"v_mov_b32 {V(NM(0)+r)}, 0")
    b.label(name + "_nz", nz + b.flush())
    if fine is not True: T.stamp(b, "blk1end")
    b("s_waitcnt lgkmcnt(0)"); b(f"s_branch {name}_blk")
    for x in b.flush():
        assert [e[1] for e in x.vm][-NCX-1:] == ["v"] + ["cx"] * NCX and not x.lg and all(e[0] <= {("a", 186)} for e in x.vm)
    b.label(name + "_fin1", fin1)
    ST("pv")
    poll_l = [f"v_mov_b32 {V(vPk)}, 0", f"buffer_atomic_add {V(vPk)}, {V(vFlagW)}, {sWS}, {S(sFx)} offen offset:128 sc0"]
    b(poll_l)
    b(f"s_load_dwordx2 s[8:9], s[0:1], {ARG['bsp']}"); b(f"s_load_dwordx2 s[12:13], s[0:1], {ARG['out']}")
    d1 = vgroups(dmaO(1))
    merge_reads(["@hop e", f"{name}_op0:"], [x for gr in d1[:OE1] for x in gr])
    ST("xr")
    sc = merge_add()
    if OE2: paced(sc, d1[OE1:OE1 + OE2], 0, 7)
    for k in range(2):
        r0, r1 = O(0, 2 + k), O(1, 2 + k)
        sc.seq([f"v_mul_f32 {V(t)}, {V(t)}, {V(28+2*k)}" for r in (r0, r1) for t in range(r, r + 4)], 7 + 4*k)
    b(sc.emit())
    normalise(8192, 2)
    T.stamp(b, "attend")
    vOa = 8
    b(f"""
    v_lshrrev_b32 v28, 2, v0
    v_mul_u32_u24 v28, 320, v28
    v_and_b32 v29, 3, v0
    v_lshl_add_u32 v28, v29, 3, v28
    v_bfe_u32 v29, v0, 4, 1
    v_lshlrev_b32 v29, 5, v29
    v_add_u32 {V(vOa)}, v28, v29
    v_sub_u32 v28, v28, v29
    v_add_u32 {V(vOa+1)}, 32, v28
    @waitvm o0
    s_barrier
    """)
    def oacc(n, m): return 96 + 16*n + 4*m
    def OWf(k, off, n): return V(64 + 16*(k & 3) + off, n) if (k & 3) < 2 else A(192 + 16*(k & 3) + off, n)
    ALL = (0, 1, 2, 3)
    outers = [(0, n, ALL) for n in range(10)]
    outers += ([(1, n, (0, 1)) for n in range(10)] + [(1, n, (2, 3)) for n in range(10)]) if OSP else [(1, n, ALL) for n in range(10)]
    outers += [(2, n, ALL) for n in range(OH)] + [(3, n, ALL) for n in range(OH)] + [(c, n, ALL) for n in range(OH, 10) for c in (2, 3)]
    if OB1:
        outers = [(0, n, ALL) for n in range(10)] + [(c, n, (0, 1)) for c in (1, 2, 3) for n in range(10)]
        outers += [(1, n, (2, 3)) for n in range(10)] + [(c, n, (2, 3)) for n in range(10) for c in (2, 3)]
    def rdO(k):
        c, n, _ = outers[k]
        return [f"ds_read_b64_tr_b16 {OWf(k, 4*ks + 2*hf, 2)}, {V(vOa + 2*c + (n & 1))} offset:{(32*ks + 16*hf)*320 + (n & ~1)*32}"
                for ks in range(4) for hf in range(2)]
    b(rdO(0))
    spin_at(name + "_pl", vPk, poll_l, 4)
    b("v_cmp_gt_u32 vcc, 32, v0"); b("v_cndmask_b32 v21, 27, 32, vcc".replace("v_cndmask_b32", "v_cndmask_b32_e64"))
    spin(name + "_pr", 22, poll_r, "v21")
    vPa, vPk = 17, 18
    poll_kv = f"buffer_load_dword {V(vPk)}, {V(vPa)}, {sWS}, 0 offen sc1"
    mf = []; og = []
    for k, (c, n, ms) in enumerate(outers):
        og.append(len(mf))
        for m in ms:
            for ks in range(4):
                d = V(oacc(n, m), 4)
                mf.append(MF(d, OWf(k, 4*ks, 4), Xf(c, ks, m), "0" if (c == 0 and ks == 0) else d))
    og.append(len(mf))
    sc = Sched(mf)
    rstart = {}
    for k in range(1, len(outers)):
        rstart[k] = og[k] - 16
        for r, x in enumerate(rdO(k)): sc.put(x, rstart[k] + r, force=True)
        sc.raw(f"@need {OWf(k, 0, 16)}", og[k] - 1, "pre")
    seq(sc, [f"v_add_u32 {V(vOa + 2*c + e)}, {CB[c]}, {V(vOa + e)}" for c in (1, 2, 3) for e in (0, 1)], 8)
    firstc = {c: min(k for k, o in enumerate(outers) if o[0] == c) for c in (1, 2, 3)}
    for c in (1, 2, 3): sc.raw([f"@waitvm o{c}", "s_barrier"], rstart[firstc[c]] - 1, "post2")
    def pace2(groups, g0, step):
        g = g0
        for gr in groups:
            for x in gr[:-1]: sc.raw(x, g - 1, "post")
            g = sc.putw(gr[-1], g, g + 1) + step
        return g
    if OPF:
        pf = toI([f"""
        s_lshr_b32 s6, s2, 3
        s_lshl_b32 s6, s6, 2
        s_add_u32 s6, s6, {S(sWV)}
        s_lshl_b32 s6, s6, 6
        v_add_u32 v28, s6, v0
        v_mul_u32_u24 v29, 1171, v28
        v_lshrrev_b32 v29, 18, v29
        v_mul_u32_u24 v30, 224, v29
        v_sub_u32 v28, v28, v30
        v_mul_u32_u24 v30, {108*8}, v29
        v_add_u32 v28, v28, v30
        v_subrev_u32 v30, {20*108*8 + 54*8}, v28
        v_cmp_gt_u32 vcc, 20, v29
        v_cndmask_b32 v28, v30, v28, vcc
        v_add_u32 v28, {54*8}, v28
        v_lshlrev_b32 v28, 7, v28
        s_and_b32 s6, s2, 1
        s_mul_i32 s6, s6, {28*1024}
        s_add_u32 s6, s6, {WS_WIN}
        s_bfe_u32 s7, s2, 0x20001
        s_lshl_b32 s7, s7, 3
        s_lshr_b32 s4, s2, 5
        s_add_u32 s7, s7, s4
        s_lshl_b32 s7, s7, 2
        s_add_u32 s7, s7, {S(sWV)}
        s_mul_i32 s7, s7, {16*1280}
        s_and_b32 s4, s2, 1
        s_lshl_b32 s4, s4, 2
        s_bfe_u32 s5, s2, 0x20003
        s_add_u32 s4, s4, s5
        s_mul_i32 s4, s4, 160
        s_add_u32 s7, s7, s4
        v_bfe_u32 v29, v0, 1, 4
        v_mul_u32_u24 v29, 1280, v29
        v_and_b32 v30, 1, v0
        v_lshl_add_u32 v29, v30, 7, v29
        """])
        seq(sc, pf, 20)
        opf = [toI([f"buffer_load_dword v31, v28, {sWS}, s6 offen sc1"]), toI([f"buffer_load_dword v31, v29, {S(R['dbg'],4)}, s7 offen"])]
    def mix(lds, sts, g, step, sstep):
        k = 0
        for n_, gr in enumerate(lds):
            g = pace2([gr], g, step)
            while k < len(sts) and (k + 1) * len(lds) <= (n_ + 1) * len(sts): g = pace2([sts[k]], g, sstep); k += 1
        return g
    n1 = min(len(cxl), CX1)
    g = mix(d1[OE1 + OE2:] + vgroups(ldX(1, (0,))), cxl[:n1], OA, OL, OU); assert g <= 160 + OU, g
    arr = [toI(["@waitvm cx", f"buffer_atomic_add {V(vOne)}, {V(vFlagW)}, {sWS}, {S(sFx)} offen"])]
    g = mix(vgroups(dmaO(2)), cxl[n1:], g, OL2, 4); assert g < 216, g
    early = n1 == len(cxl)
    g = pace2((arr if early else []) + vgroups(ldX(2, (0,))), g, OL2 if g < 190 else 4 if g < 200 else 2); assert g <= 242, g
    g = pace2(([] if early else arr) + vgroups(dmaO(3)), max(g, 146), OL2 if g < 230 else 4); assert g < 296, g
    poll_c = [f"v_mov_b32 {V(vPk)}, 0", f"buffer_atomic_add {V(vPk)}, {V(vFlagW)}, {sWS}, {S(sFx)} offen sc0"]
    pace2([toI(poll_c)], g, 1)
    g = pace2(vgroups(ldX(3, (0,))), g + 3, 4 if g < 280 else 3); assert g <= 322, g
    OC = g
    sc.raw("@mark pc", OC)
    g = pace2(vgroups(ldX(1, (1,))), OC + 2, 5); assert g <= 400
    g = pace2(vgroups(ldX(2, (1,))) + vgroups(ldX(3, (1,))), g, OS + 2); assert g <= 480, g
    gl = g
    if OPF: pace2(opf, OG, 4)
    sP0, sP1 = 40, 41
    seq(sc, [f"s_lshr_b32 {S(sT3)}, {S(sHD)}, 2", f"s_mul_i32 {S(sP0)}, {S(sT3)}, {32*20*4096}", f"s_add_u32 {S(sP0)}, {S(sP0)}, {WS_PART + 20*4096}",
             f"s_lshr_b32 {S(sT3)}, {S(sWV)}, 1", f"s_mul_i32 {S(sT3)}, {S(sT3)}, {20*4096}", f"s_sub_u32 {S(sP0)}, {S(sP0)}, {S(sT3)}",
             f"s_and_b32 {S(sT3)}, {S(sWV)}, 1", f"s_lshl_b32 {S(sT3)}, {S(sT3)}, 10", f"s_add_u32 {S(sP0)}, {S(sP0)}, {S(sT3)}",
             f"s_and_b32 {S(sT3)}, {S(sHD)}, 3", f"s_mul_i32 {S(sT3)}, {S(sT3)}, {5*4096}", f"s_add_u32 {S(sP0)}, {S(sP0)}, {S(sT3)}",
             f"s_mul_i32 {S(sT3)}, {S(sJ)}, {40*4096}", f"s_add_u32 {S(sP1)}, {S(sP0)}, {S(sT3)}",
             f"s_sub_u32 {S(sP0)}, {S(sP0)}, {S(sT3)}", f"s_add_u32 {S(sP0)}, {S(sP0)}, {15*40*4096}"], 10)
    def done(n, m):
        k = max(k for k, o in enumerate(outers) if o[1] == n and m in o[2]); return og[k] + 4*outers[k][2].index(m)
    g = gl - OT if LF else 0
    order = sorted([(p, m) for p in range(5) for m in range(4)], key=lambda x: done(2*x[0] + 1, x[1]))
    for p, m in order:
        if True:
            r0, r1 = oacc(2*p, m), oacc(2*p + 1, m)
            cv = lambda d, x: f"v_cvt_pk_bf16_f32 {V(d)}, {V(x)}, {V(x+1)}"
            seq(sc, [cv(r0, r0), cv(r0+1, r0+2)], done(2*p, m) + 9)
            g = wseq(sc, [cv(r0+2, r1), cv(r0+3, r1+2), f"s_add_u32 {S(sT3)}, {S(sP1 if m >> 1 else sP0)}, {p*4096}",
                         I(f"buffer_store_dwordx4 {V(r0,4)}, {V(vL)}, {sWS}, {S(sT3)} offen offset:{(m & 1)*2048}{PST}", f"pt{m >> 1}")],
                    max(g + (OT if done(2*p + 1, m) < 600 else 0), done(2*p + 1, m) + 9))
            if m < 2: g_long = g
    hk = {"pc": lambda: spin_at(name + "_pc", vPk, poll_c, 4)}
    seq(sc, [f"s_lshl_b32 s75, {S(sJ)}, 2", f"s_and_b32 s74, {S(sHD)}, 3", "s_add_u32 s75, s75, s74", "s_lshl_b32 s75, s75, 2", f"s_add_u32 s75, s75, {S(sWV)}",
             "s_lshl_b32 s75, s75, 8", f"s_add_u32 s75, s75, {WS_FLG + FL_P*128}", f"s_lshr_b32 s74, {S(sHD)}, 2", "s_lshl_b32 s74, 1, s74", "v_mov_b32 v31, s74"], 40)
    pace2([toI(["@waitvm pt0", f"buffer_atomic_add v31, {V(vFlagW)}, {sWS}, s75 offen offset:128"])], g_long + OQ, 1)
    assert seq(sc, tail.pre(WS_FLG + FL_P*128, R), OY) < OZ - 2
    sc.raw([f"v_mov_b32 {V(vPk)}, 0"], OZ - 1)
    sc.put(f"buffer_atomic_add {V(vPk)}, {V(vFlagW)}, {sWS}, s83 offen sc0", OZ, force=True)
    if fine == "op":
        for gg in (79, 159, 239, 319, 399, 479, 559):
            sc.raw(f"@mark g{gg}", gg, "post2"); hk[f"g{gg}"] = lambda gg=gg: T.stamp(b, f"g{gg}")
    if "nopt" in drop2:
        for gl_ in sc.g: gl_[:] = [x for x in gl_ if not (x[1].tag or "").startswith("pt")]
        sc.seqs = []
    emit_split(sc, hk)
    T.stamp(b, "end")
    tail(b, T, name, R, vPk, HOP)
    if probe:
        T.n = 7; T.names[:] = [f"p{k}" for k in range(7)]
        for k in range(7): b(f"s_mov_b32 {S(84 + k)}, {S(86 + 2*k)}")
    T.dump(b, R["ws"], 2, sWV, 12)
    b.label(name + "_end")
    b("s_endpgm")
    b.emit_cold()
    b.label(name + "_slow", [State()])
    b(f"""
    s_waitcnt vmcnt(0) lgkmcnt(0)
    s_mov_b32 {S(sSafe)}, 1
    s_mov_b32 {S(sN)}, 0
    """)
    for q in range(4): b(f"v_mov_b32 {V(64+q)}, {FH(NEGBIG)}")
    b(f"""
    v_lshrrev_b32 v69, 4, v0
    v_lshlrev_b32 v69, 2, v69
    v_and_b32 v68, 15, v0
    v_sub_u32 v68, v68, v69
    s_and_b32 {S(sT2)}, {S(sWV)}, 1
    s_lshl_b32 {S(sT2)}, {S(sT2)}, 4
    v_add_u32 v68, {S(sT2)}, v68
    s_lshr_b32 {S(sT2)}, {S(sWV)}, 1
    s_lshl_b32 s36, {S(sT2)}, 5
    s_add_u32 s37, s36, 16
    s_sub_u32 s38, 96, s36
    s_add_u32 s39, s38, 16
    s_lshl_b32 s4, {S(sT2)}, 6
    s_xor_b32 s5, s4, 32
    s_xor_b32 s6, s4, 64
    s_xor_b32 s7, s4, 96
    v_mov_b32 v70, {FH(NEGBIG)}
    """)
    body = toI(["s_barrier", f"s_lshl_b32 {S(sKs)}, {S(sN)}, 15", f"s_add_u32 {S(sKs)}, {S(sKs)}, {S(sKb)}"]) + dmaKV(0, 0, sKs, "k")
    body += toI(["s_waitcnt vmcnt(0)", "s_barrier",
                 f"s_cmp_eq_u32 {S(sN)}, {S(sBLK)}", f"s_cselect_b32 {S(sT3)}, 0, 4096"])
    for kt in range(4):
        body += toI([rdK(0, kt, ds) for ds in range(4)])
        body += toI([f"v_subrev_u32 v69, {S(36+kt)}, v68", f"v_add_u32 v69, {S(sT3)}, v69"])
        for q in range(4):
            for ds in range(4): body += toI([MF(V(Sw(q), 4), Kf(kt, ds), Qf(ds, q), V(Sw(q), 4) if ds else "0")])
        for q in range(4):
            body += toI([f"v_add_u32 v72, {S(4+q)}, v69"])
            for r in range(4):
                body += toI([f"v_cmp_gt_i32 vcc, {r}, v72", f"v_cndmask_b32 v71, {V(Sw(q)+r)}, v70, vcc", f"v_max_f32 {V(64+q)}, {V(64+q)}, v71"])
    body += toI(["s_waitcnt lgkmcnt(0)", f"s_add_u32 {S(sN)}, {S(sN)}, 1", f"s_cmp_le_u32 {S(sN)}, {S(sBLK)}", f"s_cbranch_scc1 {name}_mx"])
    b.chain_loop([(name + "_mx", body)], align=0)
    for q in range(4):
        b(f"""
        v_mov_b32 v68, {V(64+q)}
        v_permlane16_swap_b32 {V(64+q)}, v68
        v_max_f32 {V(64+q)}, {V(64+q)}, v68
        v_mov_b32 v68, {V(64+q)}
        v_permlane32_swap_b32 {V(64+q)}, v68
        v_max_f32 {V(64+q)}, {V(64+q)}, v68
        """)
    b(f"""
    s_lshl_b32 {S(sT3)}, {S(sWV)}, 10
    v_add_u32 v19, {S(sT3)}, {V(vLx)}
    ds_write_b128 v19, v[64:67]
    v_xor_b32 v19, 0x800, v19
    s_waitcnt lgkmcnt(0)
    s_barrier
    ds_read_b128 v[68:71], v19
    """)
    for q in range(4):
        b(f"v_max_f32 {V(64+q)}, {V(64+q)}, {V(68+(q ^ 2))}")
        for r in range(4): b(f"v_sub_f32 {V(NM(q)+r)}, 0, {V(64+q)}")
    b("s_barrier")
    b(unit_r0(sKs, sKb)); b(dmaKV(0, 1, sKs, "k")); b(unit_diag(sVs, sVb)); b(dmaKV(1, 0, sVs, "v"))
    b([rdK0(0, ds) for ds in range(4)])
    b("s_waitcnt vmcnt(0) lgkmcnt(0)"); b(f"s_branch {name}_retry")
    b.flush()
    if probe:
        la, lb, step, skip_ = (list(probe) + [0])[:4]
        ia = next(k for k, i in enumerate(b.out) if i.t == f"{name}_{la}:"); ib = next(k for k, i in enumerate(b.out) if i.t == f"{name}_{lb}:")
        new = []; cnt = 0; n0 = 0
        for k, i in enumerate(b.out):
            if ia < k < ib and i.kind not in ("label", "pseudo"):
                if cnt >= skip_ + n0 * step and n0 < 7 and not i.op.startswith(("s_cselect", "s_cbranch", "s_addc")):
                    new.append(I(f"s_memtime s[{86 + 2*n0}:{87 + 2*n0}]")); n0 += 1
                cnt += 1
            new.append(i)
        b.out = new
    lastw = {}
    for i in b.out:
        if i.kind == "label" and i.t.endswith("_blk:"): break
        if i.tag in ("kv0", "kv1") or i.op == "ds_write_b128":
            data = regs_of(i.t.split(None, 1)[1].split(",")[0 if i.kind == "vmem" else 1].split()[0])
            assert all(lastw[r].op in ("v_cvt_pk_bf16_f32", "v_accvgpr_write_b32") for r in data), i.t
        if i.op == "v_accvgpr_write_b32" and not i.t.endswith("v30"): assert all(lastw[r].op == "v_cvt_pk_bf16_f32" for r in i.r), i.t
        for r in i.w: lastw[r] = i
    text = b.text()
    if HOP:
        import hops
        L = lambda x: f"{name}_{x}"
        text, cnt = hops.apply(text, S(sWV), L("main"), [(e, L(x), L("end")) for e, x in (("a", "main"), ("b", "even"), ("d", "g0"), ("b", "pv0"), ("d", "pw0"), ("b", "pv1"),
                                                                   ("d", "pw1"), ("b", "fin0"), ("d", "fin1"), ("e", "op0"), ("c", "t_ne"))],
                               {L(x) for x in ("d2", "it1", "g0", "g1", "pv0", "pw0", "pv1", "pw1", "fin0", "fin1") + HX})
        if stamps: print(cnt)
    return dict(name=name, text=text, kd=kd(name, 512, 256), launch=f"; @launch {'' if name.startswith('adaLN') and not aslist else f'kernel={name} '}grid=(256,1,1) block=(256,1,1) lds=163840", stamps=T.names)
```

```python
import re
from common import *
from kt import (sWV, sRB, sCS, sT, sT2, sT3, vL16, vG, vR, slices, tile_voffs, xg, row_sums, fin_stats,
                store_act, gelu, GC1, GC2, SPIN_MAX)
from kf2 import vgroups
FA, FD, FC, FB = 0, 128, 256, 512

def fused(**kw):
    def f(b, T, name, RA, vPk0, HOP):
        body(b, T, name + "_t", RA, vPk0, HOP, **kw)
        T.stamp(b, "tend")
    f.pre = lambda flp, RA: pre(flp, kw.get('EP', True)) + body(None, None, "", RA, 0, False, **kw)
    return f

def pre(flp, EP, vL=vL16):
    return toI([f"""
    s_and_b32 {S(sCS)}, s2, 1
    s_lshl_b32 {S(sCS)}, {S(sCS)}, 2
    s_bfe_u32 s6, s2, 0x20003
    s_add_u32 {S(sCS)}, {S(sCS)}, s6
    s_bfe_u32 {S(sRB)}, s2, 0x20001
    s_lshl_b32 {S(sRB)}, {S(sRB)}, 2
    s_bfe_u32 s6, s2, 0x20005
    s_add_u32 {S(sRB)}, {S(sRB)}, s6
    s_lshr_b32 s6, s2, 7
    s_lshl_b32 s6, s6, 4
    s_add_u32 {S(sRB)}, {S(sRB)}, s6
    s_lshr_b32 s6, {S(sCS)}, 1
    s_mul_i32 s6, s6, 10
    s_and_b32 s7, {S(sCS)}, 1
    s_add_u32 s37, s6, 4
    s_add_u32 s37, s37, s7
    s_mul_i32 s7, s7, 6
    s_add_u32 s36, s6, s7
    s_mul_i32 s59, {S(sRB)}, {20*4096}
    s_lshl_b32 s6, {S(sWV)}, 10
    s_add_u32 s59, s59, s6
    s_add_u32 s38, s59, {WS_PART}
    s_add_u32 s59, s59, {WS_XA}
    s_lshl_b32 s6, s36, 11
    v_add_u32 v28, s6, {V(vL)}
    v_add_u32 v29, 4096, v28
    s_lshr_b32 s6, s37, 1
    s_lshl_b32 s6, s6, 12
    v_add_u32 v30, s6, {V(vL)}
    s_lshr_b32 s6, {S(sRB)}, 1
    s_sub_u32 s7, 15, s6
    s_min_u32 s6, s6, s7
    s_lshl_b32 s6, s6, 2
    s_lshr_b32 s7, {S(sCS)}, 1
    s_add_u32 s6, s6, s7
    s_lshl_b32 s6, s6, 1
    s_and_b32 s7, {S(sRB)}, 1
    s_xor_b32 s7, s7, 1
    s_add_u32 s6, s6, s7
    s_lshl_b32 s6, s6, 1
    s_and_b32 s7, {S(sWV)}, 1
    s_add_u32 s6, s6, s7
    s_lshl_b32 s6, s6, 1
    s_lshr_b32 s7, {S(sRB)}, 4
    s_add_u32 s6, s6, s7
    s_lshl_b32 s6, s6, 7
    s_add_u32 s39, s6, {flp}
    s_cmp_eq_u32 s7, {2 if EP else 0}
    s_cselect_b32 s83, {hex(OOB)}, s39
    """])

def body(b, T0, name, RA, vPk0, HOP, few=None, SP=(3, 4, 2, 5), PT=3, AC=30, EV=9, PNT='', WI=(3, 5), NE=2, dbg=(), ZS=2, CS=6, CA=False, ZR=0, AT=1, OW=True, OM='', XL=True, AR=60, EP=True, PS=12, AS=0, NP=False):
    class TT:
        def stamp(self, b, nm):
            if few is None or nm in few: T0.stamp(b, nm)
    T = TT()
    R = {"x": RA["dbg"], "ws": RA["ws"], "bsp": 8, "out": 12}
    sWS = S(R["ws"], 4); sX = S(R["x"], 4)
    sRd, sDone, sNew, sWr, sLr = 65, 66, 67, 70, 71
    PF = lambda x, f: A(12*x + 4*f, 4)
    def ldP(x): return toI([f"s_add_u32 {S(sT)}, s38, {x*32*20*4096}"] + [f"buffer_load_dwordx4 {PF(x, f)}, {V(28+f)}, {sWS}, {S(sT)} offen sc1{PNT}" for f in range(3)])
    bmain = b; b = B()
    b(f"""
    s_mov_b32 s10, {hex(SIZE['bsp'])}
    s_mov_b32 s11, 0x20000
    s_mov_b32 s14, {hex(SIZE['out'])}
    s_mov_b32 s15, 0x20000
    v_lshrrev_b32 {V(vG)}, 4, v0
    v_and_b32 {V(vR)}, 15, v0
    """)
    sB5, sE5, sB7, sE7 = 36, 37, 56, 57
    sW, sXo, sW1, sW2, sRow, sLb, sSp = 58, 59, 60, 61, 62, 76, 77
    SM, SV, TB = 156 * 1024, 157 * 1024, 140 * 1024
    vFW, vOne, vPa, vPoll, vSm, vOob = 40, 12, 13, 14, 38, 39
    vSt, vSl, vVec, vXm = 36, 37, 41, 170
    slices(b, 7, sB7, sE7)
    at5 = tile_voffs(b, 5, sB5, sE5, 4, 5, 6, 1024, vL16)
    at7 = tile_voffs(b, 7, sB7, sE7, 4, 5, 7, 1024, vL16)
    b(f"""
    s_mul_i32 {S(sW1)}, {S(sWV)}, {108*1024}
    s_lshl_b32 {S(sT)}, {S(sB7)}, 10
    s_add_u32 {S(sW1)}, {S(sW1)}, {S(sT)}
    s_add_u32 {S(sW1)}, {S(sW1)}, {WS_WIN - 1024}
    s_add_u32 {S(sW2)}, {S(sW1)}, {54*1024}
    s_mul_i32 {S(sLb)}, {S(sWV)}, 7168
    s_lshl_b32 {S(sRow)}, {S(sRB)}, 2
    s_add_u32 {S(sRow)}, {S(sRow)}, {S(sWV)}
    v_mov_b32 {V(vOob)}, {hex(OOB)}
    v_mov_b32 {V(vFW)}, {hex(OOB)}
    v_writelane_b32 {V(vFW)}, 0, 0
    s_mul_i32 s68, {S(sRow)}, {16*1280}
    s_lshl_b32 s69, {S(sE5)}, 5
    s_add_u32 s69, s69, s68
    s_lshl_b32 s70, {S(sB5)}, 5
    s_add_u32 s68, s68, s70
    v_lshlrev_b32 {V(vSl)}, 6, {V(vR)}
    v_cmp_eq_u32 vcc, 0, {V(vG)}
    v_cndmask_b32 {V(vSt)}, {V(vOob)}, {V(vSl)}, vcc
    v_lshl_add_u32 {V(vSl)}, {V(vG)}, 4, {V(vSl)}
    s_lshl_b32 s63, {S(sRow)}, 10
    s_lshl_b32 {S(sT2)}, {S(sCS)}, 3
    s_add_u32 s64, s63, {S(sT2)}
    s_lshl_b32 {S(sSp)}, {S(sRB)}, 18
    s_add_u32 {S(sSp)}, {S(sSp)}, {WS_WSP}
    v_lshlrev_b32 {V(vSm)}, 4, {V(vG)}
    v_add_u32 {V(vSm)}, {SM}, {V(vSm)}
    """)
    for t in range(4):
        b(f"""
        s_lshr_b32 {S(sT)}, {S(sRB)}, 2
        s_add_u32 {S(sT)}, {S(sT)}, {1 + t}
        s_and_b32 {S(sT)}, {S(sT)}, 3
        s_lshl_b32 {S(sT)}, {S(sT)}, 2
        s_add_u32 {S(16+t)}, {S(sT)}, {S(sWV)}
        s_lshl_b32 {S(sT)}, {S(16+t)}, 13
        s_add_u32 {S(20+t)}, {S(sT)}, {S(sSp)}
        """)
    kofs = lambda k: (32 if (k & 3) < 2 else 0) + (k & 1)
    def small_voff(dst, per, sB, sE, mul, strides):
        b(f"""
        v_mul_u32_u24 v44, {mul}, v0
        v_lshrrev_b32 v44, 10, v44
        v_mul_u32_u24 v45, {4*per}, v44
        v_sub_u32 v45, v0, v45
        v_lshlrev_b32 v46, 4, v45
        s_lshl_b32 {S(sT)}, {S(sB)}, 6
        s_sub_u32 {S(sT2)}, {S(sE)}, {per-1}
        s_lshl_b32 {S(sT2)}, {S(sT2)}, 6
        """)
        if per == 7: b(f"s_cmp_ge_u32 {S(sCS)}, 6"); b(f"s_cselect_b32 {S(sT2)}, {hex(OOB)}, {S(sT2)}")
        b(f"""
        v_mov_b32 v47, {S(sT)}
        v_mov_b32 {V(dst)}, {S(sT2)}
        v_cmp_gt_u32 vcc, {4*(per-1)}, v45
        v_cndmask_b32 v47, {V(dst)}, v47, vcc
        v_add_u32 v46, v46, v47
        v_mov_b32 {V(dst)}, {V(vOob)}
        """)
        for k, st in enumerate(strides):
            b(f"v_add_u32 v47, {st}, v46"); b(f"v_cmp_eq_u32 vcc, {k}, v44"); b(f"v_cndmask_b32 {V(dst)}, {V(dst)}, v47, vcc")
    small_voff(42, 5, sB5, sE5, 52, [WS_MOD + 2*2560, WS_MOD + 4*2560, WS_MOD + 5*2560])
    small_voff(vVec, 7, sB7, sE7, 37, [WS_VEC, WS_VEC + 0x2000])
    if XL:
        for i in range(3):
            b(f"""
            v_add_u32 v44, {64*i}, v0
            v_mul_u32_u24 v45, 205, v44
            v_lshrrev_b32 v45, 11, v45
            v_mul_u32_u24 v45, 1280 - 160, v45
            v_lshl_add_u32 {V(60+i)}, v44, 4, v45
            """)
        b(f"""
        v_cmp_gt_u32 vcc, 32, v0
        v_cndmask_b32 v62, {V(vOob)}, v62, vcc
        s_mul_i32 s72, {S(sRow)}, {16*1280}
        s_mul_i32 {S(sT)}, {S(sCS)}, 160
        s_add_u32 s72, s72, {S(sT)}
        s_mul_i32 s73, {S(sWV)}, 3072
        s_add_u32 s73, s73, {TB}
        v_mul_u32_u24 v44, 160, {V(vR)}
        v_lshl_add_u32 v44, {V(vG)}, 3, v44
        s_and_b32 {S(sT)}, {S(sCS)}, 1
        s_lshl_b32 {S(sT2)}, {S(sT)}, 5
        s_add_u32 {S(sT2)}, {S(sT2)}, s73
        v_add_u32 v63, {S(sT2)}, v44
        s_lshl_b32 {S(sT)}, {S(sT)}, 7
        s_sub_u32 {S(sT)}, s73, {S(sT)}
        v_add_u32 v59, {S(sT)}, v44
        """)
    SEL = 44
    b(f"""
    v_lshlrev_b32 v56, 2, {V(vG)}
    v_sub_u32 v56, {V(vR)}, v56
    v_mov_b32 v57, 0x3f80
    v_mov_b32 v58, 0x3f800000
    v_cmp_eq_u32 vcc, 0, v56
    v_cndmask_b32 v44, 0, v57, vcc
    v_cmp_eq_u32 vcc, 1, v56
    v_cndmask_b32 v44, v44, v58, vcc
    v_cmp_eq_u32 vcc, 2, v56
    v_cndmask_b32 v45, 0, v57, vcc
    v_cmp_eq_u32 vcc, 3, v56
    v_cndmask_b32 v45, v45, v58, vcc
    v_mov_b32 v46, 0
    v_mov_b32 v47, 0
    v_mov_b32 v48, 0
    v_mov_b32 v49, 0
    v_mov_b32 v50, v44
    v_mov_b32 v51, v45
    s_bitcmp1_b32 {S(sE5)}, 0
    s_cselect_b64 vcc, -1, 0
    """)
    for k in range(4): b(f"v_cndmask_b32 {V(52+k)}, {V(44+k)}, {V(48+k)}, vcc")
    b(f"""
    s_mov_b32 {S(sRd)}, 0
    s_mov_b32 {S(sDone)}, 0
    s_mov_b32 {S(sWr)}, {S(sW2)}
    """)
    if bmain is None: return toI([re.sub(r"\bs52\b", "s7", re.sub(r"\bs51\b", "s6", i.t)).replace("vcc", "s[4:5]") for i in b.cur])
    b = bmain
    def dmaW(nW, at, soff, goff, sl, loff, tag, valid=None):
        o = [f"s_add_u32 {S(sT2)}, {S(soff)}, {goff}"]
        if valid: o += [valid, f"s_cselect_b32 {S(sT2)}, {S(sT2)}, {hex(OOB)}"]
        for n in range(nW):
            v, ofs = at(n)
            if ofs == 0: o.append(f"s_add_u32 m0, {S(sl)}, {loff + n*1024}")
            o.append(I(f"buffer_load_dwordx4 {v}, {sWS}, {S(sT2)} offen offset:{ofs} sc1 lds", tag))
        return toI(o)
    dW2 = lambda r: dmaW(7, at7, sW2, 4*r*108*1024, sLb, 4*r*7168, "w2")
    dW1 = lambda r: dmaW(7, at7, sW1, 4*r*108*1024, sLb, 4*r*7168, "w1a" if r < ZR else "w1")
    def arrive_ins(tag, line_ins):
        return toI(line_ins + [f"s_lshl_b32 {S(sT)}, {S(sT)}, 7", f"s_add_u32 {S(sT)}, {S(sT)}, {WS_FL2}", f"@waitvm {tag}",
                               f"buffer_atomic_add {V(vOne)}, {V(vFW)}, {sWS}, {S(sT)} offen"])
    poll = f"buffer_load_dword {V(vPoll)}, {V(vPa)}, {sWS}, 0 offen sc1"
    def poll_addr(line_ins, four):
        o = line_ins + [f"s_lshl_b32 {S(sT)}, {S(sT)}, 7", f"s_add_u32 {S(sT)}, {S(sT)}, {WS_FL2}"]
        if four: o += [f"v_and_b32 {V(vPa)}, 3, v0", f"v_lshl_add_u32 {V(vPa)}, {V(vPa)}, 7, {S(sT)}"]
        else: o += [f"v_mov_b32 {V(vPa)}, {S(sT)}"]
        return toI(o)
    def spin(lab, test, again):
        b(test)
        b(f"s_cbranch_vccnz {lab}_w")
        b.outline(f"{lab}_w", [f"s_mov_b32 {S(sT3)}, 0", f"{lab}_spin:", again, f"s_add_u32 {S(sT3)}, {S(sT3)}, 1", f"s_cmp_gt_u32 {S(sT3)}, {SPIN_MAX}",
                               "s_waitcnt vmcnt(0)", f"s_cbranch_scc1 {lab}_ok", test, f"s_cbranch_vccnz {lab}_spin"], f"{lab}_ok")
    def spin_cnt(lab, target): spin(lab, f"v_cmp_gt_u32 vcc, {target}, {V(vPoll)}", ([f"s_sleep {CS}"] if CS else []) + [poll])
    sFl = 39
    apoll = [f"v_mov_b32 {V(vPoll)}, 0", f"buffer_atomic_add {V(vPoll)}, {V(vFW)}, {sWS}, {S(sFl)} offen sc0"]
    def arrive_ret(tag, line):
        return toI([f"s_add_u32 {S(sFl)}, {S(sRow)}, {line}", f"s_lshl_b32 {S(sFl)}, {S(sFl)}, 7", f"s_add_u32 {S(sFl)}, {S(sFl)}, {WS_FL2}", f"v_mov_b32 {V(vPoll)}, 1"]
                   + ([f"@waitvm {tag}"] if tag else []) + [f"buffer_atomic_add {V(vPoll)}, {V(vFW)}, {sWS}, {S(sFl)} offen sc0"])
    def spin_at(lab, first, target):
        b(f"v_readfirstlane_b32 {S(sT)}, {V(vPoll)}"); b(f"s_cmp_ge_u32 {S(sT)}, {first}"); b(f"s_cbranch_scc1 {lab}_ok")
        sts = b.flush()
        b(f"s_mov_b32 {S(sT3)}, 0")
        b.label(f"{lab}_spin")
        if AS: b(f"s_sleep {AS}")
        b(apoll)
        b(f"s_add_u32 {S(sT3)}, {S(sT3)}, 1")
        b(f"s_cmp_gt_u32 {S(sT3)}, {SPIN_MAX}")
        b("s_waitcnt vmcnt(0)")
        b(f"s_cbranch_scc1 {lab}_ok")
        b(f"v_readfirstlane_b32 {S(sT)}, {V(vPoll)}"); b(f"s_cmp_lt_u32 {S(sT)}, {target}"); b(f"s_cbranch_scc1 {lab}_spin")
        b.label(f"{lab}_ok", sts + b.flush())
    def spin_st(lab, st, ld):
        spin(lab, [f"v_cmp_gt_f32 vcc, 0, {V(st+1)}", f"v_cmp_gt_f32 s[72:73], 0, {V(st+3)}", "s_or_b64 vcc, vcc, s[72:73]"], ld)
    def capture(f):
        n = len(b.cur); f(); o = b.cur[n:]; del b.cur[n:]; return o
    def tagged(f, tag):
        o = capture(f)
        if "nox2" in dbg: o = [i for i in o if i.op != "buffer_store_dwordx2"]
        for i in o:
            if i.kind == "vmem": i.tag = tag
        b(o)
    def weave_v(valu, groups, every):
        groups = list(groups)
        for k, i in enumerate(valu):
            b(i)
            if k % every == every - 1 and groups: b(groups.pop(0))
        for g in groups: b(g)
    def emit_marks(sc, hooks):
        cur = []
        for i in sc.emit():
            if i.kind == "pseudo" and i.op == "@mark": b(cur); cur = []; hooks[i.t.split()[1]]()
            else: cur.append(i)
        b(cur)
    def xs(k, m):
        k = k % 14
        return A((240 - 16*k if k < 11 else 32 + 16*(k - 11)) + 4*m, 4)
    def lS(k): return toI([f"s_add_u32 {S(sT)}, {S(20 + (k >> 2))}, {kofs(k)*4096}"] + [f"buffer_load_dwordx4 {xs(k, m)}, {V(vXm+m)}, {sWS}, {S(sT)} offen sc1" for m in range(4)])
    spn = [0]
    def more_sp(n):
        o = []
        for _ in range(n): o += lS(spn[0]); spn[0] += 1
        return o
    XP, GA, AB, X1 = 96, 56, 76, 16
    b(f"""
    v_readfirstlane_b32 {S(sNew)}, {V(vPk0)}
    v_mov_b32 v14, {V(vPk0)}
    s_and_b32 {S(sNew)}, {S(sNew)}, {(1 << NE) - 1}
    s_cmp_lg_u32 {S(sNew)}, {(1 << NE) - 1}
    s_cbranch_scc1 {name}_ne
    """)
    b.flush()
    for x in range(NE): b(ldP(x))
    b(f"s_mov_b32 {S(sDone)}, {(1 << NE) - 1}")
    b.label(name + "_ne", [State()])
    if HOP: b("@hop c")
    b(f"""
    v_mov_b32 {V(vOne)}, 1
    s_mov_b32 {S(sLr)}, {S(sLb)}
    s_mov_b32 s3, 0
    s_barrier
    s_waitcnt vmcnt({3*NE})
    s_cmp_lg_u32 {S(sDone)}, 0
    s_cbranch_scc1 {name}_ak
    s_waitcnt vmcnt(0)
    """)
    b.label(name + "_ak")
    b(f"buffer_atomic_add v31, v16, {sWS}, s75 offen")
    T.stamp(b, "arrP")
    b(f"s_mov_b32 m0, {SM}"); b(f"buffer_load_dwordx4 v42, {sWS}, 0 offen sc1 lds")
    for h in range(2):
        b(f"s_mov_b32 m0, {SV + 1024*h}"); b(f"s_mov_b32 {S(sT)}, {h*54*64}"); b(f"buffer_load_dwordx4 {V(vVec)}, {sWS}, {S(sT)} offen sc1 lds")
    if XL:
        for i in range(3): b(f"s_add_u32 m0, s73, {i*1024}"); b(f"buffer_load_dwordx4 {V(60+i)}, {sX}, s72 offen lds")
    else:
        for n in range(5): b(f"buffer_load_dwordx2 {V(XP+2*n,2)}, v15, {sX}, {'s68' if n < 4 else 's69'} offen offset:{32*n if n < 4 else 0}")
    for m in range(4):
        b(f"s_add_u32 {S(sT)}, {S(sWV)}, {m}"); b(f"s_and_b32 {S(sT)}, {S(sT)}, 3"); b(f"s_lshl_b32 {S(sT)}, {S(sT)}, 10")
        b(f"v_add_u32 {V(vXm+m)}, {S(sT)}, {V(vL16)}")
    def w2round():
        return dmaW(7, at7, sWr, 0, sLr, 0, "w2") + toI([f"s_add_u32 {S(sWr)}, {S(sWr)}, {4*108*1024}", f"s_add_u32 {S(sLr)}, {S(sLr)}, {4*7168}", f"s_add_u32 {S(sRd)}, {S(sRd)}, 1"])
    b.flush(); b.label(name + "_pl", [State()])
    b(f"""
    v_readfirstlane_b32 {S(sNew)}, {V(vPoll)}
    {f"s_cmp_eq_u32 {S(sNew)}, 0xff" if NP else ""}
    {f"s_cselect_b32 {S(sNew)}, {S(sNew)}, 0" if NP else ""}
    s_andn2_b32 {S(sNew)}, {S(sNew)}, {S(sDone)}
    s_or_b32 {S(sDone)}, {S(sDone)}, {S(sNew)}
    """)
    for x in range(8):
        b(f"s_bitcmp0_b32 {S(sNew)}, {x}"); b(f"s_cbranch_scc1 {name}_px{x}"); b(ldP(x))
        if x in WI: b(f"s_cmp_ge_u32 {S(sRd)}, 5"); b(f"s_cbranch_scc1 {name}_px{x}"); b(w2round())
        b.flush(); b.label(f"{name}_px{x}", [State()])
    b(f"""
    s_cmp_eq_u32 {S(sDone)}, 0xff
    s_cbranch_scc1 {name}_po
    s_add_u32 s3, s3, 1
    s_cmp_gt_u32 s3, {SPIN_MAX}
    s_cbranch_scc1 {name}_po
    s_cmp_ge_u32 {S(sRd)}, 5
    s_cbranch_scc1 {name}_pn
    """)
    b(w2round()); b.flush(); b.label(name + "_pn", [State()])
    if PS: b(f"s_sleep {PS}")
    b(apoll); b("s_waitcnt vmcnt(0)"); b(f"s_branch {name}_pl")
    b.flush(); b.label(name + "_po", [State()])
    T.stamp(b, "gotP")
    b(f"s_cmp_ge_u32 {S(sRd)}, 5"); b(f"s_cbranch_scc1 {name}_pw")
    b(w2round()); b("s_waitcnt vmcnt(7)"); b(f"s_branch {name}_pz"); s1 = b.flush()
    b.label(name + "_pw", [State()]); b("s_waitcnt vmcnt(0)")
    b.label(name + "_pz", s1 + b.flush())
    if XL:
        for n in range(5): b(f"ds_read_b64 {V(XP+2*n,2)}, {V(59 if n == 4 else 63)} offset:{32*n}")
    for n in range(5):
        b(f"ds_read_b128 {V(GA+4*n,4)}, {V(vSm)} offset:{n*64}"); b(f"ds_read_b128 {V(AB+4*n,4)}, {V(vSm)} offset:{320 + n*64}")
    sc = Sched([MF(V(X1 + 4*n, 4), V(SEL + (8 if n == 4 else 4*(n & 1)), 4), PF(x, n >> 1), V(X1 + 4*n, 4) if x else "0") for n in range(5) for x in range(8)])
    sc.seq([y for n in range(5) for j in range(2) for y in (f"v_lshlrev_b32 {V(112+4*n+2*j)}, 16, {V(XP+2*n+j)}", f"v_and_b32 {V(113+4*n+2*j)}, 0xffff0000, {V(XP+2*n+j)}")], 3 if XL else 0)
    for n in range(4):
        sc.seq([f"v_fma_f32 {V(X1+k)}, {V(X1+k)}, {V(GA+k)}, {V(112+k)}" for k in range(4*n, 4*n + 4)]
               + [f"v_mul_f32 {V(GA+k)}, {V(X1+k)}, {V(AB+k)}" for k in range(4*n, 4*n + 4)], max(8*n + 12, 14))
    b(sc.emit())
    T.stamp(b, "red")
    for k in (16, 18): b(f"v_pk_fma_f32 {V(X1+k,2)}, {V(X1+k,2)}, {V(GA+k,2)}, {V(112+k,2)}")
    for k in (16, 18): b(f"v_pk_mul_f32 {V(GA+k,2)}, {V(X1+k,2)}, {V(AB+k,2)}")
    tagged(lambda: store_act(b, sWS, 5, GA, WS_XA, 20, sB5, sE5, 12, " sc1"), "A")
    row_sums(b, X1, 20, 116, 112)
    b(f"s_add_u32 {S(sT)}, s64, {WS_ST1}")
    b(f"buffer_store_dwordx2 v[116:117], {V(vSt)}, {sWS}, {S(sT)} offen sc1")
    def w2if(tag):
        b(f"s_cmp_ge_u32 {S(sRd)}, 5"); b(f"s_cbranch_scc1 {name}_{tag}"); sk = b.flush()
        b(w2round()); b.label(f"{name}_{tag}", sk + b.flush())
    b(arrive_ret("A", FA))
    T.stamp(b, "arrA")
    w2if("wa"); w2if("wb"); w2if("wc"); w2if("wd")
    b(more_sp(SP[0]))
    V1, V2, TM, Z2, Z1, ST, ST2 = 76, 104, 104, 132, 48, 160, 164
    b(f"""
    v_mov_b32 v44, {FH(-GC1)}
    v_mov_b32 v45, {FH(-GC1)}
    v_mov_b32 v46, {FH(-GC2)}
    v_mov_b32 v47, {FH(-GC2)}
    v_add_u32 v8, 65536, {V(vL16)}
    v_add_u32 v9, 131072, {V(vL16)}
    @waitvm w2
    s_barrier
    """)
    NR = 12
    def wring(i): return V(176 + 4*(i % NR), 4)
    def rdl(i, addr): return f"ds_read_b128 {wring(i)}, {V((vL16, 8, 9)[addr >> 16])} offset:{addr & 0xffff}"
    def msplit(order, accf, xf, addr, lead=10, cont=False):
        seen = set(range(7)) if cont else set(); mf = []
        for i, (ks, n) in enumerate(order):
            mf.append(MF(accf(n), wring(i), xf(ks), accf(n) if n in seen else "0")); seen.add(n)
        sc = Sched(mf)
        for i in range(lead, len(order)): sc.put(rdl(i, addr(*order[i])), i - lead, force=True)
        for i in range(1, len(order) - 1, 2): sc.raw(f"@need {wring(i+1)} {wring(min(i+2, len(order)-1))}", i, "pre")
        return sc, [rdl(i, addr(*order[i])) for i in range(lead)]
    ordz = [(4*r + k, n) for r in range(5) for n in range(7) for k in range(4)]
    xz = lambda ks: A((32 + 4*ks) % 80, 4)
    adz = lambda ks, n: (ks*7 + n)*1024
    sc2, pre2 = msplit(ordz, lambda n: V(Z2 + 4*n, 4), xz, adz)
    b(pre2)
    spin_at(name + "_pa", 7, 8)
    T.stamp(b, "gotA")
    def lX(reg, ks): return toI([f"s_add_u32 {S(sT)}, {S(sXo)}, {ks*4096}", f"buffer_load_dwordx4 {reg}, {V(vL16)}, {sWS}, {S(sT)} offen sc1"])
    for ks in range(8): b(lX(xz(ks), ks))
    def place(sc, groups, g0, step):
        g = g0
        for gr in groups:
            for x in gr[:-1]: sc.raw(x, g - 1, "post")
            sc.put(gr[-1], g, force=True); g += step
        return g
    ldst1 = f"buffer_load_dwordx4 {V(ST,4)}, {V(vSl)}, {sWS}, s66 offen sc1"
    ldst2 = f"buffer_load_dwordx4 {V(ST2,4)}, {V(vSl)}, {sWS}, s66 offen sc1"
    g = place(sc2, [lX(xz(ks), ks) for ks in range(8, 20)] + [toI([f"s_add_u32 s66, s63, {WS_ST1}", ldst1])], 1, 4)
    g = max(g, 58)
    sc2.raw("s_barrier", g - 1, "pre")
    w1 = [x for r in range(5) for x in vgroups(dW1(r))]
    g = place(sc2, w1[:14], g + 1, 5); assert g < 146
    for n in range(7):
        sc2.raw(f"ds_read_b128 {V(V1+4*n,4)}, {V(vSm)} offset:{1024 + 1024 + n*64}", 122 + 2*n, "post")
        sc2.raw(f"ds_read_b128 {V(V2+4*n,4)}, {V(vSm)} offset:{1024 + 1024 + 448 + n*64}", 123 + 2*n, "post")
    b(sc2.emit())
    b("s_barrier")
    T.stamp(b, "g2")
    spin_st(name + "_p1", ST, ldst1)
    def apply2():
        for k in range(0, 28, 2): b(f"v_pk_fma_f32 {V(Z2+k,2)}, {V(V1+k,2)}, {V(ST,2)}, {V(Z2+k,2)} op_sel_hi:[1,0,1]")
        for k in range(0, 28, 2): b(f"v_pk_fma_f32 {V(Z2+k,2)}, {V(Z2+k,2)}, {V(ST+2,2)}, {V(V2+k,2)} op_sel_hi:[1,0,1]")
    ep = capture(lambda: (fin_stats(b, ST, 640, 164), apply2(), gelu(b, Z2, 28, TM, 44, 46), row_sums(b, Z2, 28, 164, TM)))
    nv = min(21, len(ep) // EV // 7 * 7)
    weave_v(ep, w1[14:14 + nv], EV)
    b(f"s_add_u32 {S(sT)}, s64, {WS_ST2}")
    b(f"buffer_store_dwordx2 v[164:165], {V(vSt)}, {sWS}, {S(sT)} offen sc1")
    b(arrive_ret(None, FB))
    T.stamp(b, "e2")
    for gr in w1[14 + nv:]: b(gr)
    b(f"s_add_u32 s66, s63, {WS_ST2}")
    if ZR:
        sca, prea = msplit(ordz[:28*ZR], lambda n: V(Z1 + 4*n, 4), xz, adz)
        b("@waitvm w1a"); b("s_barrier"); b(prea)
    else: b(more_sp(SP[1] // 2))
    b(f"""
    v_lshlrev_b32 v168, 5, {V(vR)}
    v_lshl_add_u32 v168, {V(vG)}, 3, v168
    s_lshl_b32 {S(sT)}, {S(sWV)}, 9
    s_add_u32 {S(sT)}, {S(sT)}, {TB}
    v_add_u32 v174, {S(sT)}, v168
    s_and_b32 {S(sT)}, {S(sWV)}, 1
    s_lshr_b32 {S(sT2)}, {S(sWV)}, 1
    s_lshl_b32 {S(sT3)}, {S(sT)}, 10
    s_lshl_b32 s65, {S(sT2)}, 13
    s_add_u32 {S(sT3)}, {S(sT3)}, s65
    s_add_u32 {S(sT3)}, {S(sT3)}, {TB}
    v_lshl_add_u32 v175, v0, 3, {S(sT3)}
    s_lshl_b32 s65, {S(sRB)}, 1
    s_add_u32 s65, s65, {S(sT)}
    s_mul_i32 s65, s65, {54*1024}
    s_add_u32 s65, s65, {WS_Z2}
    s_lshl_b32 s70, {S(sT2)}, 2
    s_add_u32 s70, s70, {S(sB7)}
    s_lshl_b32 s70, s70, 10
    s_add_u32 s70, s70, s65
    s_lshl_b32 s67, {S(sE7)}, 10
    s_add_u32 s67, s67, s65
    s_cmp_ge_u32 {S(sCS)}, 6
    s_cselect_b32 s67, {hex(OOB)}, s67
    s_add_u32 s74, s70, 2048
    s_add_u32 s75, s70, 3072
    s_cmp_eq_u32 {S(sT2)}, 1
    s_cselect_b32 s74, s67, s74
    s_cselect_b32 s75, {hex(OOB)}, s75
    """)
    if ZR:
        g = place(sca, vgroups(more_sp(SP[1] // 2)) + [toI(apoll)], 1, 4)
        gm = max(g + 8, 28*ZR - 30)
        sca.raw("@mark pb", gm - 2, "post2")
        place(sca, [toI([ldst2])] + vgroups(more_sp(SP[1] - SP[1] // 2)), gm, 4)
        emit_marks(sca, {"pb": lambda: spin_at(name + "_pb", 8, 8)})
    else:
        spin_at(name + "_pb", 7, 8)
        b(ldst2)
        b(more_sp(SP[1] - SP[1] // 2))
    spin_st(name + "_p2", ST2, ldst2)
    T.stamp(b, "gotB")
    def norm():
        fin_stats(b, ST2, 864, 168)
        b(f"v_mul_f32 {V(ST2)}, {V(ST2)}, {V(ST2+2)}")
        for n in range(7):
            for k in (4*n, 4*n + 2): b(f"v_pk_fma_f32 {V(Z2+k,2)}, {V(Z2+k,2)}, {V(ST2+2,2)}, {V(ST2,2)} op_sel_hi:[1,0,0]")
            for k in (2*n, 2*n + 1): b(f"v_cvt_pk_bf16_f32 {V(76+k)}, {V(Z2+2*k)}, {V(Z2+2*k+1)}")
            b(f"ds_write_b64 v174, {V(76+2*n,2)} offset:{n*2048}")
    weave_v(capture(norm), vgroups(more_sp(SP[2])) if SP[2] else [], 6)
    assert spn[0] <= 11 + ZR
    b("@waitvm w1"); b("s_waitcnt lgkmcnt(0)"); b("s_barrier")
    for n in range(4):
        for hf in range(2): b(f"ds_read_b64_tr_b16 {V(104+4*n+2*hf,2)}, v175 offset:{n*2048 + hf*512}")
    sc1, pre1 = msplit(ordz[28*ZR:], lambda n: V(Z1 + 4*n, 4), xz, adz, cont=ZR > 0)
    n1 = 140 - 28*ZR
    b(pre1[:6])
    for n in range(4):
        b(f"buffer_store_dwordx4 {V(104+4*n,4)}, {V(vL16)}, {sWS}, {('s70','s70','s74','s75')[n]} offen offset:{1024 if n == 1 else 0} sc1", "C")
    b(pre1[6:])
    T.stamp(b, "stC")
    arr = arrive_ins("C", [f"s_lshl_b32 {S(sT)}, {S(sCS)}, 4", f"s_and_b32 {S(sT2)}, {S(sRB)}, 15", f"s_add_u32 {S(sT)}, {S(sT)}, {S(sT2)}", f"s_add_u32 {S(sT)}, {S(sT)}, {FC}"])
    def pcs(t):
        a = [f"s_lshl_b32 {S(sFl)}, {S(sCS)}, 4", f"s_add_u32 {S(sFl)}, {S(sFl)}, {S(16+t)}", f"s_lshl_b32 {S(sFl)}, {S(sFl)}, 7", f"s_add_u32 {S(sFl)}, {S(sFl)}, {WS_FL2 + FC*128}"]
        return toI(a + (apoll if CA else [f"v_mov_b32 {V(vPa)}, {S(sFl)}", poll]))
    def spin_c(lab): spin_at(lab, 8, 8) if CA else spin_cnt(lab, 8)
    pc = pcs(0)
    wg = lambda k, n: V(76 + 28*(k % 3) + 4*n, 4)
    def lZ(k):
        o = [f"s_add_u32 {S(sT2)}, {S(24 + (k >> 2))}, {kofs(k)*54*1024}"]
        for n in range(7):
            v, ofs = at7(n); o.append(f"buffer_load_dwordx4 {wg(k, n)}, {v}, {sWS}, {S(sT2)} offen offset:{ofs} sc1")
        return toI(o)
    g = 1
    for t in range(SP[3] + 1):
        if t == AT: g = place(sc1, [arr], max(g, AC), 4)
        if t == PT: g = place(sc1, [pc], g, 4); gp = g
        if t < SP[3]:
            if spn[0] >= 11: g = max(g, 28 * (spn[0] - 10 - ZR) + 1)
            g = place(sc1, vgroups(more_sp(1)), g, 4)
    assert spn[0] <= 14
    g = place(sc1, [toI([f"s_lshl_b32 {S(sT)}, {S(sRow)}, 5", f"v_lshlrev_b32 v42, 1, {V(vR)}", f"buffer_load_ushort v42, v42, {S(R['bsp'],4)}, {S(sT)} offen"])], g, 4)
    g = max(g, gp + 24)
    sc1.raw("@mark pc", g - 2, "post2")
    place(sc1, vgroups(lZ(0) + lZ(1)), g, 3)
    sc1.raw(toI([f"""
    s_lshl_b32 s65, {S(sB7)}, 10
    s_add_u32 {S(sW)}, s65, {WS_Z2 - 1024}
    s_mul_i32 s24, s16, {2*54*1024}
    s_mul_i32 s25, s17, {2*54*1024}
    s_mul_i32 s26, s18, {2*54*1024}
    s_mul_i32 s27, s19, {2*54*1024}
    s_add_u32 s24, s24, {S(sW)}
    s_add_u32 s25, s25, {S(sW)}
    s_add_u32 s26, s26, {S(sW)}
    s_add_u32 s27, s27, {S(sW)}
    s_mul_i32 {S(sW1)}, {S(sWV)}, {40*1024}
    s_lshl_b32 s65, {S(sB5)}, 10
    s_add_u32 {S(sW1)}, {S(sW1)}, s65
    s_add_u32 {S(sW1)}, {S(sW1)}, {WS_WOUT - 1024}
    s_mul_i32 {S(sLb)}, {S(sWV)}, 5120
    s_mov_b32 s70, {FH(-GC2)}
    """]), 10, "post")
    emit_marks(sc1, {"pc": lambda: (spin_c(name + "_pc"), T.stamp(b, "gotC"))})
    T.stamp(b, "g1")
    G = 176
    def gacc(n, m):
        if m == 0: return A(4*n, 4)
        i = (m - 1)*7 + n
        return V(G + 4*i, 4) if i < 20 else A(28, 4)
    OB = lambda r: 49152 + r*20480 if r < 5 else (r - 5)*20480
    dWo = lambda r: dmaW(5, at5, sW1, 4*r*40*1024, sLb, OB(r), "wo", valid=f"s_cmp_lt_u32 {S(sWV)}, 3" if r == 6 else None)
    def z1rd(n): return [f"ds_read_b128 v[164:167], {V(vSm)} offset:{1024 + n*64}", f"ds_read_b128 v[8:11], {V(vSm)} offset:{1024 + 448 + n*64}"]
    def z1ep(n):
        z = Z1 + 4*n; tt = (168, 169, 174, 175); o = []
        o += [f"v_fmac_f32 {V(z+r)}, {V(164+r)}, {V(ST)}" for r in range(4)]
        o += [f"v_fma_f32 {V(z+r)}, {V(z+r)}, {V(ST+2)}, {V(8+r)}" for r in range(4)]
        o2 = [f"v_mul_f32 {V(tt[r])}, {V(z+r)}, {V(z+r)}" for r in range(4)]
        o2 += [f"v_fma_f32 {V(tt[r])}, {V(tt[r])}, s70, v44" for r in range(4)]
        o2 += [f"v_mul_f32 {V(tt[r])}, {V(tt[r])}, {V(z+r)}" for r in range(4)]
        o2 += [f"v_exp_f32 {V(tt[r])}, {V(tt[r])}" for r in range(4)]
        o2 += [f"v_add_f32 {V(tt[r])}, 1.0, {V(tt[r])}" for r in range(4)]
        o2 += [f"v_rcp_f32 {V(tt[r])}, {V(tt[r])}" for r in range(4)]
        o2 += [f"v_mul_f32 {V(z+r)}, {V(z+r)}, {V(tt[r])}" for r in range(4)]
        return o, o2
    b(z1rd(0))
    radr = []
    for m in range(1, 4):
        radr += [f"s_add_u32 s65, {S(sWV)}, {m}", "s_and_b32 s65, s65, 3", "s_mul_i32 s65, s65, 12288", f"s_add_u32 s65, s65, {(m-1)*4096}",
                 f"v_add_u32 {V(160+m)}, s65, {V(vL16)}"]
    radr += [f"s_mul_i32 s65, {S(sWV)}, 12288", f"v_add_u32 v160, s65, {V(vL16)}",
             f"v_add_u32 v8, 65536, {V(vL16)}", f"v_add_u32 v9, 131072, {V(vL16)}"]
    selm = toI([f"""
    v_lshlrev_b32 v168, 2, {V(vG)}
    v_sub_u32 v168, {V(vR)}, v168
    v_mov_b32 v169, 0x3f80
    v_mov_b32 v174, 0x3f800000
    v_cmp_eq_u32 vcc, 0, v168
    v_cndmask_b32 v164, 0, v169, vcc
    v_cmp_eq_u32 vcc, 1, v168
    v_cndmask_b32 v164, v164, v174, vcc
    v_cmp_eq_u32 vcc, 2, v168
    v_cndmask_b32 v165, 0, v169, vcc
    v_cmp_eq_u32 vcc, 3, v168
    v_cndmask_b32 v165, v165, v174, vcc
    v_mov_b32 v166, 0
    v_mov_b32 v167, 0
    v_mov_b32 v44, 0
    v_mov_b32 v45, 0
    v_mov_b32 v46, v164
    v_mov_b32 v47, v165
    v_lshlrev_b32 v42, 16, v42
    """])
    wo_early = [x for r in range(5) for x in vgroups(dWo(r))]
    rno = lambda t: int(t[2:t.index(":")])
    cv = lambda d, x: f"v_cvt_pk_bf16_f32 {V(d)}, {V(x)}, {V(x+1)}"
    def packw(m, p):
        r0 = rno(gacc(2*p, m)); o = []
        if p < 3: o += [cv(r0, r0), cv(r0+1, r0+2), cv(r0+2, r0+4), cv(r0+3, r0+6)]
        else:
            if m == 3: r0 = 104; o += [f"v_accvgpr_read_b32 {V(r0+k)}, {A(28+k)}" for k in range(4)]
            o += [cv(r0, r0), cv(r0+1, r0+2), f"v_mov_b32 {V(r0+2)}, 0", f"v_mov_b32 {V(r0+3)}, 0"]
        return o + [f"ds_write_b128 {V(160+m)}, {V(r0,4)} offset:{p*1024}"]
    for k in range(16):
        mo = [(n, m) for n in range(7) for m in range(4)] if k < 15 else [(n, m) for m in (3, 1, 2, 0) for n in range(7)]
        sc = Sched([MF(gacc(n, m), wg(k, n), xs(k, m), gacc(n, m) if k else "0") for n, m in mo])
        f = lZ(k + 2) if k + 2 < 16 else [x for gr in wo_early[7*(k-14) : 7*(k-13)] for x in gr]
        if spn[0] < 16 and k >= 2 and spn[0] - k <= 5: f = f + more_sp(1)
        if k in (0, 4, 8): f = pcs(k // 4 + 1) + f
        if k in (2, 6, 10): spin_c(f"{name}_pe{k}")
        sc.seq(f, 0, ZS if k < 14 else 4)
        if k < 14:
            o, o2 = z1ep(k >> 1)
            if k % 2 == 0: sc.seq(o + (z1rd(k//2 + 1) if k < 12 else []) + o2[:12], 0)
            else: sc.seq(o2[12:], 0)
        if k == 13: sc.raw("s_barrier", 27, "post2")
        if k == 14: sc.seq(radr, 0); sc.seq(selm, 0)
        if k == 15:
            g = 0; late = []
            for i, m in enumerate((3, 1, 2)):
                for p in range(4):
                    e = max(g, 7*i + min(2*p + 1, 6) + 5)
                    if e < 24: g = sc.seq(packw(m, p), e) + 1
                    else: late.append(toI(packw(m, p)))
        b(sc.emit())
        if k in (0, 3, 7, 11, 13, 14): T.stamp(b, f"k{k}")
    assert spn[0] == 16
    rest = wo_early[14:]
    for gr in late:
        b(gr)
        if rest: b(rest.pop(0))
    T.stamp(b, "g4")
    b("s_waitcnt lgkmcnt(0)"); b("s_barrier")
    XF = lambda m, p: V(108 + 16*m + 4*p, 4)
    for p in range(4):
        for m in range(3): b(f"ds_read_b128 {XF(m, p)}, v160 offset:{m*4096 + p*1024}")
    sc = Sched([MF(A(4*n, 4), V(44 if n & 1 else 164, 4), XF(m, n >> 1), A(4*n, 4)) for n in range(7) for m in range(3)])
    g = place(sc, rest, 1, 3)
    fin = []
    for n in range(7):
        d = G + 4*n
        fin.append([f"v_accvgpr_read_b32 {V(d+r)}, {A(4*n+r)}" for r in range(4)])
    g = 0
    for n in range(7): g = sc.seq(fin[n], max(g, 3*n + 8))
    b(sc.emit())
    b("s_barrier")
    for k in range(0, 28, 2): b(f"v_pk_add_f32 {V(G+k,2)}, {V(G+k,2)}, v[42:43] op_sel_hi:[1,0]")
    for k in range(0, 28, 2): b(f"v_pk_mul_f32 {V(G+k,2)}, {V(G+k,2)}, {V(Z1+k,2)}")
    tagged(lambda: store_act(b, sWS, 7, G, WS_U, 27, sB7, sE7, 12, " sc1"), "D")
    b(dWo(5))
    b(arrive_ret("D", FD))
    T.stamp(b, "arrD")
    b(dWo(6))
    GB, Y = 48, 76
    for n in range(5): b(f"ds_read_b128 {V(GB+4*n,4)}, {V(vSm)} offset:{640 + n*64}")
    b(f"""
    s_mul_i32 {S(sXo)}, {S(sRB)}, {27*4096}
    s_lshl_b32 {S(sT)}, {S(sWV)}, 10
    s_add_u32 {S(sXo)}, {S(sXo)}, {S(sT)}
    s_add_u32 {S(sXo)}, {S(sXo)}, {WS_U}
    """)
    xu = lambda ks: A(4*ks, 4)
    ordo = [(3*r + k, n) for r in range(9) for n in range(5) for k in range(3)]
    sc5, pre5 = msplit(ordo, lambda n: V(Y + 4*n, 4), xu, lambda ks, n: OB(ks >> 2) + (ks & 3)*5120 + n*1024)
    b("@waitvm wo"); b("s_barrier"); b(pre5)
    spin_at(name + "_pd", 7, 8)
    T.stamp(b, "gotD")
    for ks in range(9): b(lX(xu(ks), ks))
    place(sc5, [lX(xu(ks), ks) for ks in range(9, 27)], 1, 4)
    sc5.seq([f"v_mul_u32_u24 v10, 1280, {V(vR)}", f"v_and_b32 v11, 1, {V(vG)}", "v_lshl_add_u32 v10, v11, 5, v10", f"v_lshrrev_b32 v11, 1, {V(vG)}", "v_lshl_add_u32 v10, v11, 4, v10",
             f"v_mul_u32_u24 v15, 1280, {V(vR)}", f"v_lshl_add_u32 v15, {V(vG)}, 3, v15"], 90)
    b(sc5.emit())
    T.stamp(b, "g5")
    for k in range(0, 20, 2): b(f"v_pk_fma_f32 {V(Y+k,2)}, {V(Y+k,2)}, {V(GB+k,2)}, {V(X1+k,2)}")
    for k in range(10): b(f"v_cvt_pk_bf16_f32 {V(Y+k)}, {V(Y+2*k)}, {V(Y+2*k+1)}")
    if OW:
        b(f"buffer_store_dwordx2 {V(Y+8,2)}, v15, {S(R['out'],4)}, s69 offen{OM}")
        for p in range(2):
            b(f"v_permlane16_swap_b32 {V(Y+4*p)}, {V(Y+4*p+2)}"); b(f"v_permlane16_swap_b32 {V(Y+4*p+1)}, {V(Y+4*p+3)}")
            b(f"buffer_store_dwordx4 {V(Y+4*p,4)}, v10, {S(R['out'],4)}, s68 offen offset:{64*p}{OM}")
    else:
        for n in range(5): b(f"buffer_store_dwordx2 {V(Y+2*n,2)}, v15, {S(R['out'],4)}, {'s68' if n < 4 else 's69'} offen offset:{32*n if n < 4 else 0}{OM}")
```

```python
from asmlib import *
WS_MOD  = 0x0000000
WS_MODB = 0x0004000
WS_VEC  = 0x0008000
WS_FLG  = 0x0070000
WS_ST1  = 0x0010000
WS_ST2  = 0x0040000
WS_FL2  = 0x0090000
WS_MP   = 0x00C0000
WS_STAMP= 0x00C0000
WS_H    = 0x0100000
WS_K    = 0x0400000
WS_V    = 0x1400000
WS_CTX  = 0x2400000
WS_WO   = 0x3400000
WS_WIN  = 0x3A00000
WS_WOUT = 0x3D00000
WS_WSP  = 0x4000000
WS_XA   = 0x4800000
WS_X1   = 0x4B00000
WS_Z1   = 0x5100000
WS_Z2   = 0x5900000
WS_U    = 0x5D00000
WS_PART = 0x6200000
import os as _os
_SH = int(_os.environ.get("WSHIFT", "0"), 0)
WS_H, WS_K, WS_V, WS_CTX, WS_WO, WS_WIN, WS_WOUT, WS_WSP, WS_XA, WS_X1, WS_Z1, WS_Z2, WS_U, WS_PART = (
    x + _SH for x in (WS_H, WS_K, WS_V, WS_CTX, WS_WO, WS_WIN, WS_WOUT, WS_WSP, WS_XA, WS_X1, WS_Z1, WS_Z2, WS_U, WS_PART))
WS_SIZE = 0x10000000
OOB = 0x40000000
ARG = dict(x=0, ckv=8, wq=16, wuk=24, wuv=32, wo=40, bx=48, win=56, wsp=64, bsp=72, wout=80, c=88, wmod=96, out=104, dbg=112, ws=120)
SIZE = dict(x=2048*640*2, ckv=2048*512*2, wq=640*4096*2, wuk=512*4096*2, wuv=512*4096*2, wo=4096*640*2, win=640*1728*2,
            wsp=2048*2048*2, bsp=2048*2, wout=864*640*2, c=640*2, wmod=640*3840*2, out=2048*640*2, dbg=256, ws=WS_SIZE)
LOG2E = 1.4426950408889634
import struct
def f2u(x): return struct.unpack("<I", struct.pack("<f", x))[0]
def FH(x): return hex(f2u(x))

def load_srds(b, names, base):
    r = {}
    for i, n in enumerate(names):
        r[n] = base + 4 * i
        b(f"s_load_dwordx2 {S(r[n],2)}, s[0:1], {ARG[n]}")
    b("s_waitcnt lgkmcnt(0)")
    for n in names:
        b(f"s_mov_b32 {S(r[n]+2)}, {hex(SIZE[n])}")
        b(f"s_mov_b32 {S(r[n]+3)}, 0x20000")
    return r

class Stamper:
    def __init__(self, on, base_sgpr, slot):
        self.on = on; self.base = base_sgpr; self.n = 0; self.slot = slot; self.names = []
    def stamp(self, b, name, cond=None):
        if not self.on: return
        b.flush()
        b("s_memtime s[100:101]" if self.on == "cyc" else "s_memrealtime s[100:101]")
        b("s_waitcnt lgkmcnt(0)")
        if cond: b(cond); b(f"s_cselect_b32 {S(self.base + self.n)}, s100, {S(self.base + self.n)}")
        else: b(f"s_mov_b32 {S(self.base + self.n)}, s100")
        self.n += 1; self.names.append(name)
    def dump(self, b, sws, swg, swave, vt):
        if not self.on: return
        b(f"s_lshl_b32 s100, {S(swg)}, 2"); b(f"s_add_u32 s100, s100, {S(swave)}"); b("s_lshl_b32 s100, s100, 6")
        b(f"s_add_u32 s100, s100, {hex(0x8000000 + self.slot * 0x10000)}")
        b(f"v_mov_b32 {V(vt+1)}, 0")
        for i in range(self.n):
            b(f"v_mov_b32 {V(vt)}, {S(self.base+i)}")
            b(f"buffer_store_dword {V(vt)}, {V(vt+1)}, {S(sws,4)}, s100 offen offset:{4*i}")
            b("s_waitcnt vmcnt(0)")
```

```python
from common import *

QSCALE = LOG2E / (128 ** 0.5)
NEGBIG = -1.0e30
L_LO, L_HI = 2.0 ** -40, 2.0 ** 40
DB_MOD, DB_MO2 = 0, 32
FL_H, FL_KV, FL_M, FL_K0, FL_T, FL_R = 0, 16, 48, 64, 96, 128
FL_P, FL_CX = 256, 512
CODE_BYTES = 50000
SPIN_MAX = 1000000

def gen(name="ka_kernel", stamps=False, force_fallback=False, fine=False, PF=True, END=72, QEND=104, QST=(4, 4, 3, 3), BA=46, MW=24, QF=24, QB=7, PFP=8, NC1=2, MS0=True, PMG=54, CPF=True, JST=10, HOP=True, HX=(), TLB=-1, QR=0, PW=True, JR0=20, JSP=(43, 55, 65, 81), EXACT=True, MSG=14, QD=(0, 6, 11, 16), S7=2, PFA=(1, 2), PQ4=False, PHG=28, HA=0, drop=(), QMIX=False, DWS=3, KVM=' sc1', KVL=' sc1', CXS=' sc1', CXL=' sc1', M2=False, VST=6, BPOS=3, KST=2, V0=4, OA=2, OD=6, OW=28, OE=4, OX=8, OSP=True, OH=4, OS=4, OT=8, OB1=True, OPF=False, OQ=44, OZ=596, OY=310, OR=0, CX0=3, CX1=5, OL=5, OU=10, OE1=6, OE2=2, OL2=5, OWN=3, LF=False, WK1=True, WPF=False, WOP=1, OG=162, NTS='jm', PST='', total_code=None, tail=None, aslist=False, afew=None, drop2=(), probe=None):
    b = B()
    T = Stamper(stamps, 84, 0)
    if afew is not None:
        _st = T.stamp
        T.stamp = lambda b_, nm, cond=None: _st(b_, nm, cond) if (nm in afew or nm not in ("C0", "kvstart", "kvend", "qend", "blk1end", "attend", "end")) else None
    SC = ' sc1' if tail else ''
    nt = lambda c: ' nt' if c in NTS else ''
    b(f"{name}:")
    b("s_cmp_ge_u32 s2, 256")
    b(f"s_cbranch_scc1 {name}_end")
    T.stamp(b, "start")
    b(f"{name}_go:")
    names_ = ["x", "ckv", "wq", "wuk", "wuv", "ws", "dbg", "wmod", "c"]
    R = {n: 8 + 4*i for i, n in enumerate(names_)}
    for n in ("ckv", "wuk", "wuv", "x", "wq", "ws", "dbg", "wmod", "c"): b(f"s_load_dwordx2 {S(R[n],2)}, s[0:1], {ARG[n]}")
    def build_rest():
        for n in names_:
            if n == "ckv": continue
            b(f"s_mov_b32 {S(R[n]+2)}, {hex(SIZE[n])}"); b(f"s_mov_b32 {S(R[n]+3)}, 0x20000")
    sX, sCKV, sWQ, sWS, sDBG, sWM, sC = (S(R[n], 4) for n in ("x", "ckv", "wq", "ws", "dbg", "wmod", "c"))
    WU = 44; sWU = S(WU, 4)
    sWV, sHD, sJ = 48, 49, 50
    sT, sT2, sT3 = 51, 52, 53
    sCb, sWb, sLw = 54, 55, 56
    sRot = 57
    sBLK, sBLK2, sS, sN = 58, 59, 60, 61
    sKo, sVo, sKb, sVb = 62, 63, 64, 65
    sKs, sVs = 66, 67
    sPass, sSafe = 68, 69
    sHb = 70; sVar = 71
    sMK = 72
    b(f"""
    v_lshrrev_b32 v1, 6, v0
    v_and_b32 v0, 63, v0
    v_readfirstlane_b32 {S(sWV)}, v1
    s_and_b32 {S(sT)}, s2, 7
    s_lshr_b32 {S(sT2)}, s2, 3
    s_and_b32 {S(sHD)}, {S(sT2)}, 3
    s_lshl_b32 {S(sT3)}, {S(sT)}, 2
    s_add_u32 {S(sHD)}, {S(sHD)}, {S(sT3)}
    s_lshr_b32 {S(sJ)}, {S(sT2)}, 2
    s_getpc_b64 s[4:5]
    {name}_pc1:
    s_lshl_b32 s6, {S(sT2)}, 2
    s_add_u32 s6, s6, {S(sWV)}
    s_lshl_b32 s6, s6, 10
    v_and_b32 v91, 7, v0
    v_lshl_add_u32 v91, v91, 7, s6
    v_min_u32 v91, code_end - {name}_pc1 - 4, v91
    {"global_load_dword v23, v91, s[4:5]" if HOP else ""}
    v_lshrrev_b32 v21, 4, v0
    v_and_b32 v22, 15, v0
    v_and_b32 v24, 7, v0
    v_xor_b32 v24, v24, v21
    v_lshrrev_b32 v25, 3, v0
    v_lshlrev_b32 v25, 10, v25
    v_lshl_add_u32 v1, v24, 4, v25
    v_xor_b32 v2, 64, v1
    v_add_u32 v2, 8192, v2
    v_lshlrev_b32 v24, 1, v21
    v_xor_b32 v24, v22, v24
    v_lshlrev_b32 v25, 13, v21
    v_lshl_add_u32 v3, v24, 4, v25
    v_xor_b32 v4, 128, v3
    s_mov_b32 {S(R['ckv']+2)}, {hex(SIZE['ckv'])}
    s_mov_b32 {S(R['ckv']+3)}, 0x20000
    s_waitcnt lgkmcnt(0)
    s_cmp_ge_u32 {S(sWV)}, 2
    s_cselect_b32 {S(WU)}, {S(R['wuv'])}, {S(R['wuk'])}
    s_cselect_b32 {S(WU+1)}, {S(R['wuv']+1)}, {S(R['wuk']+1)}
    s_mov_b32 {S(WU+2)}, {hex(SIZE['wuk'])}
    s_mov_b32 {S(WU+3)}, 0x20000
    """)
    MB = 128 * 1024
    sCG, sMB, sQb, sKq = 80, 81, 82, 83
    vC0, vC1, vW0, vW1 = 1, 2, 3, 4
    vRC0, vRC1 = 5, 6
    vRW = 7
    vL16 = 15
    vPW, vPQ, vMo, vDum = 12, 13, 14, 23
    b(f"""
    s_sub_u32 {S(sBLK)}, 15, {S(sJ)}
    s_mov_b32 {S(sBLK2)}, {S(sJ)}
    s_and_b32 {S(sT)}, {S(sWV)}, 1
    s_lshl_b32 {S(sWb)}, {S(sT)}, 18
    s_lshl_b32 {S(sT2)}, {S(sHD)}, 8
    s_add_u32 {S(sWb)}, {S(sWb)}, {S(sT2)}
    s_cmp_ge_u32 {S(sWV)}, 2
    s_cselect_b32 {S(sCb)}, {S(sBLK2)}, {S(sBLK)}
    s_lshl_b32 {S(sCb)}, {S(sCb)}, 17
    s_lshl_b32 {S(sT3)}, {S(sT)}, 16
    s_add_u32 {S(sCb)}, {S(sCb)}, {S(sT3)}
    s_lshl_b32 {S(sLw)}, {S(sWV)}, 13
    """)
    def dmaC(s):
        o = []
        for i in range(8):
            o.append((f"s_add_u32 m0, {S(sLw)}, {65536 + (s & 1) * 32768 + i * 1024}",
                      f"s_add_u32 {S(sT)}, {S(sCb)}, {(i >> 1) * 16384 + s * 128}",
                      I(f"buffer_load_dwordx4 {V(vC1 if i & 1 else vC0)}, {sCKV}, {S(sT)} offen lds", f"C{s}")))
        return o
    def dmaW(s):
        o = []
        for i in range(8):
            o.append((f"s_add_u32 m0, {S(sLw)}, {(s & 1) * 32768 + i * 1024}",
                      f"s_add_u32 {S(sT)}, {S(sWb)}, {(s * 64 + 4 * i) * 8192}",
                      I(f"buffer_load_dwordx4 {V(vW1 if (i >> 1) & 1 else vW0)}, {sWU}, {S(sT)} offen{nt('W')} lds", f"W{s}")))
        return o
    def dmaQ(s):
        o = []
        for i in range(8):
            o.append((f"s_add_u32 m0, {S(sLw)}, {65536 + (s % 3) * 32768 + i * 1024}",
                      f"s_add_u32 {S(sT)}, {S(sQb if s < 5 - QR else 76)}, {(s * 128 + 4 * i) * 8192}",
                      I(f"buffer_load_dwordx4 {V(vW1 if (i >> 1) & 1 else vW0)}, {sWQ}, {S(sT)} offen{nt('Q')} lds", f"Q{s}")))
        return o
    sPW = 57
    def pf_setup():
        b(f"""
        s_and_b32 s6, {S(sWV)}, 1
        v_lshrrev_b32 v24, 1, v0
        v_lshlrev_b32 v24, 13, v24
        v_and_b32 v25, 1, v0
        v_lshl_add_u32 v24, v25, 7, v24
        v_mov_b32 v25, {hex(OOB)}
        v_cmp_gt_u32 vcc, 16, v0
        v_cndmask_b32 {V(vPW)}, v25, v24, vcc
        v_lshlrev_b32 v26, 7, v0
        v_cndmask_b32 v26, v25, v26, vcc
        v_cmp_gt_u32 vcc, 20, v0
        v_cndmask_b32 {V(vPQ)}, v25, v24, vcc
        s_lshl_b32 {S(sPW)}, s6, 19
        s_lshl_b32 {S(sT3)}, {S(sJ)}, 16
        s_add_u32 {S(sPW)}, {S(sPW)}, {S(sT3)}
        s_add_u32 {S(sPW)}, {S(sPW)}, {S(sT2)}
        s_lshl_b32 {S(sT3)}, s2, 2
        s_add_u32 {S(sT3)}, {S(sT3)}, {S(sWV)}
        s_lshl_b32 {S(sT3)}, {S(sT3)}, 11
        v_add_u32 v90, {S(sT3)}, v26
        s_add_u32 s6, {S(sPW)}, {64*8192}
        buffer_load_dword {V(vDum)}, v90, {sCKV}, 0 offen
        buffer_load_dword {V(vDum)}, {V(vPW)}, {sWU}, s6 offen{nt('w')}
        """)
    def dmaW0(m):
        return [(f"s_add_u32 m0, s60, {m*16384 + i*1024}", f"s_add_u32 {S(sT)}, s62, {4*i*8192}",
                 I(f"buffer_load_dwordx4 {V(vW1 if (i >> 1) & 1 else vW0)}, {S(R['wuv' if m else 'wuk'], 4)}, {S(sT)} offen lds", "V0" if m else "W0")) for i in range(4)]
    first = dmaC(0) + (dmaW0(0) + dmaW0(1) if WK1 else dmaW(0)) + dmaC(1)[:NC1]
    for k, d in enumerate(first + [None]):
        if k == min(PFP, len(first)): pf_setup()
        if k == 6:
            build_rest()
            b(f"s_lshl_b32 s60, {S(sWV)}, 12"); b(f"s_lshl_b32 s62, {S(sWV)}, 17"); b(f"s_add_u32 s62, s62, {S(sT2)}")
        if d: b(list(d))
    b(f"""
    s_lshl_b32 {S(sQb)}, {S(sWV)}, 18
    s_add_u32 {S(sQb)}, {S(sQb)}, {S(sT2)}
    """)
    if HOP: b(f"s_branch {name}_main"); b.label(name + "_main", align=12)
    def pfW(t): return toI([f"s_add_u32 {S(sT2)}, {S(sPW)}, {(2*t + 1)*64*8192}", f"buffer_load_dword {V(vDum)}, {V(vPW)}, {sWU}, {S(sT2)} offen{nt('w')}"])
    def pfQ(t):
        return toI([f"s_lshl_b32 {S(sT2)}, {S(sJ)}, 2", f"s_add_u32 {S(sT2)}, {S(sT2)}, {S(sWV)}", f"s_mul_i32 {S(sT2)}, {S(sT2)}, {10*8192}",
                    f"s_lshl_b32 s5, {S(sHD)}, 8", f"s_add_u32 {S(sT2)}, {S(sT2)}, s5", f"s_add_u32 {S(sT2)}, {S(sT2)}, {t*320*8192}",
                    f"buffer_load_dword {V(vDum)}, {V(vPQ)}, {sWQ}, {S(sT2)} offen{nt('q')}"])
    pf0 = [toI([f"buffer_load_dword {V(vDum)}, v90, {sCKV}, 0 offen"]), pfW(0), toI([f"global_load_dword {V(vDum)}, v91, s[4:5]"])]
    b(f"""
    s_lshr_b32 {S(sCG)}, s2, 2
    s_and_b32 {S(sKq)}, s2, 3
    s_lshl_b32 {S(sMB)}, {S(sWV)}, 10
    s_add_u32 {S(sMB)}, {S(sMB)}, {MB + 20480}
    v_lshrrev_b32 v24, 3, v0
    v_mul_u32_u24 v24, 7680, v24
    v_and_b32 v25, 7, v0
    v_lshl_add_u32 {V(vMo)}, v25, 4, v24
    v_lshlrev_b32 v89, 2, v0
    """)
    def m_c(): return toI([f"s_mul_i32 {S(sT2)}, {S(sKq)}, 320", f"buffer_load_dword v17, v89, {sC}, {S(sT2)} offen", f"buffer_load_dword v18, v89, {sC}, {S(sT2)} offen offset:256"])
    def m_dma():
        o = [f"s_lshl_b32 {S(sT3)}, {S(sKq)}, 2", f"s_add_u32 {S(sT3)}, {S(sT3)}, {S(sWV)}", f"s_mul_i32 {S(sT3)}, {S(sT3)}, {40 * 7680}",
             f"s_lshl_b32 {S(sT2)}, {S(sCG)}, 7", f"s_add_u32 {S(sT3)}, {S(sT3)}, {S(sT2)}", f"s_cmp_lt_u32 {S(sCG)}, 60", f"s_cselect_b32 {S(sT3)}, {S(sT3)}, {hex(OOB)}",
             f"s_mul_i32 s7, {S(sWV)}, 5120"]
        for i in range(5):
            o += [f"s_add_u32 m0, s7, {MB + i*1024}", f"s_add_u32 {S(sT2)}, {S(sT3)}, {i*8*7680}",
                  I(f"buffer_load_dwordx4 {V(vMo)}, {sWM}, {S(sT2)} offen{nt('m')} lds", "m")]
        return toI(o)
    sK1, sV1 = 72, 74
    b(f"""
    v_lshlrev_b32 {V(vL16)}, 4, v0
    v_lshrrev_b32 v24, 1, v22
    v_xor_b32 v24, v24, v21
    v_lshlrev_b32 v24, 4, v24
    v_lshl_add_u32 v24, v22, 7, v24
    s_and_b32 {S(sT)}, {S(sWV)}, 1
    s_lshl_b32 {S(sT)}, {S(sT)}, 13
    s_add_u32 {S(sT)}, {S(sT)}, 65536
    v_add_u32 {V(vRC0)}, {S(sT)}, v24
    v_xor_b32 {V(vRC1)}, 64, {V(vRC0)}
    v_lshrrev_b32 v26, 2, v22
    v_and_b32 v24, 1, v21
    v_lshl_add_u32 v24, v24, 2, v26
    v_lshl_add_u32 v26, v21, 3, v26
    v_lshlrev_b32 v26, 8, v26
    v_and_b32 v25, 3, v0
    v_lshl_add_u32 v26, v25, 3, v26
    v_lshl_add_u32 v26, v24, 5, v26
    s_lshr_b32 {S(sT)}, {S(sWV)}, 1
    s_lshl_b32 {S(sT)}, {S(sT)}, 7
    v_xor_b32 {V(vRW)}, {S(sT)}, v26
    v_xor_b32 {V(vRW+1)}, 32, {V(vRW)}
    v_xor_b32 {V(vRW+2)}, 64, {V(vRW)}
    v_xor_b32 {V(vRW+3)}, 96, {V(vRW)}
    s_cmp_ge_u32 {S(sWV)}, 2
    s_cselect_b32 {S(sHb)}, {S(sBLK2)}, {S(sBLK)}
    s_lshl_b32 {S(sT2)}, {S(sHb)}, 7
    s_add_u32 {S(sT2)}, {S(sT2)}, {WS_FLG + FL_H*128}
    v_mov_b32 v11, {S(sT2)}
    s_lshl_b32 {S(sHb)}, {S(sHb)}, 1
    s_and_b32 {S(sT2)}, {S(sWV)}, 1
    s_add_u32 {S(sHb)}, {S(sHb)}, {S(sT2)}
    s_mul_i32 {S(sHb)}, {S(sHb)}, {20*4096}
    s_add_u32 {S(sHb)}, {S(sHb)}, {WS_H}
    s_bfe_u32 s6, {S(sHD)}, 0x10001
    s_mul_i32 s7, s6, {QR*128*8192}
    s_add_u32 {S(sQb)}, {S(sQb)}, s7
    s_mul_i32 s7, s6, {5*128*8192}
    s_sub_u32 s76, {S(sQb)}, s7
    s_mul_i32 s7, s6, {QR*16384}
    s_add_u32 {S(sHb)}, {S(sHb)}, s7
    s_mul_i32 s7, s6, {5*16384}
    s_sub_u32 s77, {S(sHb)}, s7
    s_lshl_b32 {S(sKb)}, {S(sHD)}, 19
    s_add_u32 {S(sVb)}, {S(sKb)}, {WS_V}
    s_add_u32 {S(sKb)}, {S(sKb)}, {WS_K}
    s_lshr_b32 {S(sT3)}, {S(sWV)}, 1
    s_mul_i32 {S(sK1)}, {S(sT2)}, {16384 + 8192}
    s_lshl_b32 {S(sT)}, {S(sT3)}, 11
    s_add_u32 {S(sK1)}, {S(sK1)}, {S(sT)}
    s_xor_b32 {S(sK1+1)}, {S(sK1)}, 16384
    s_mul_i32 {S(sV1)}, {S(sT2)}, {16384 + 1024}
    s_lshl_b32 {S(sT)}, {S(sT3)}, 13
    s_add_u32 {S(sV1)}, {S(sV1)}, {S(sT)}
    s_xor_b32 {S(sV1+1)}, {S(sV1)}, 16384
    """)
    vFlag, vOne, vPoll, vZero, vXo, vHo, vFlagW = 19, 20, 18, 17, 21, 22, 16
    b(f"""
    v_mov_b32 {V(vFlag)}, {hex(OOB)}
    s_cmp_eq_u32 {S(sWV)}, 0
    s_cselect_b32 {S(sT)}, 0, {hex(OOB)}
    v_mov_b32 {V(vFlagW)}, {hex(OOB)}
    v_writelane_b32 {V(vFlag)}, {S(sT)}, 0
    v_writelane_b32 {V(vFlagW)}, 0, 0
    v_mov_b32 {V(vOne)}, 1
    {"@hop a" if HOP else ""}
    @waitvm W0
    s_barrier
    """)
    if not fine: T.stamp(b, "C0")
    def m_silu():
        o = ["v_lshlrev_b32 v24, 16, v17", "v_and_b32 v25, 0xffff0000, v17", "v_lshlrev_b32 v26, 16, v18", "v_and_b32 v27, 0xffff0000, v18"]
        o += [f"v_mul_f32 {V(28+k)}, {FH(-LOG2E)}, {V(24+k)}" for k in range(4)]
        o += [f"v_exp_f32 {V(28+k)}, {V(28+k)}" for k in range(4)]
        o += [f"v_add_f32 {V(28+k)}, 1.0, {V(28+k)}" for k in range(4)]
        o += [f"v_rcp_f32 {V(28+k)}, {V(28+k)}" for k in range(4)]
        o += [f"v_mul_f32 {V(24+k)}, {V(24+k)}, {V(28+k)}" for k in range(4)]
        o += ["v_cvt_pk_bf16_f32 v24, v24, v25", "v_cvt_pk_bf16_f32 v25, v26, v27", f"v_lshl_add_u32 v26, v0, 2, {S(sMB)}",
              "ds_write_b32 v26, v24", "ds_write_b32 v26, v25 offset:256",
              "v_lshrrev_b32 v27, 4, v0", "v_bfe_u32 v28, v0, 2, 2", "v_lshl_add_u32 v28, v27, 3, v28", "v_lshlrev_b32 v28, 7, v28",
              "v_and_b32 v29, 3, v0", "v_lshl_add_u32 v28, v29, 3, v28", f"s_lshl_b32 s6, {S(sWV)}, 5", f"s_add_u32 s6, s6, {MB}",
              "v_add_u32 v28, s6, v28", f"v_lshl_add_u32 v27, v27, 4, {S(sMB)}"]
        o += [f"ds_read_b128 {V(32+4*ks,4)}, v27 offset:{ks*64}" for ks in range(5)]
        return toI(o)
    def m_reads(): return toI([f"ds_read_b64_tr_b16 {V(52+4*ks+2*hf,2)}, v28 offset:{ks*4096 + hf*512}" for ks in range(5) for hf in range(2)])
    def m_mfma(): return [MF(V(72,4), V(32+4*ks,4), V(52+4*ks,4), V(72,4) if ks else "0") for ks in range(5)]
    def m_store():
        return toI([f"s_lshl_b32 {S(sT3)}, {S(sCG)}, 2", f"s_add_u32 {S(sT3)}, {S(sT3)}, {S(sWV)}", f"s_lshl_b32 {S(sT3)}, {S(sT3)}, 6",
                    f"s_add_u32 {S(sT3)}, {S(sT3)}, {S(sKq)}", f"s_lshl_b32 {S(sT3)}, {S(sT3)}, 2", f"s_add_u32 {S(sT3)}, {S(sT3)}, {WS_MP}",
                    "v_and_b32 v29, 15, v0", "v_lshlrev_b32 v29, 4, v29"]) + [I(f"buffer_store_dword v72, v29, {sWS}, {S(sT3)} offen sc1", "ms")]
    def rnd(r): return [f"v_cvt_pk_bf16_f32 {V(r)}, {V(r)}, {V(r)}", f"v_lshlrev_b32 {V(r)}, 16, {V(r)}"]
    def sum4(r): return [f"v_add_f32 {V(r)}, {V(r)}, {V(r+1)}", f"v_add_f32 {V(r+2)}, {V(r+2)}, {V(r+3)}", f"v_add_f32 {V(r)}, {V(r)}, {V(r+2)}"] + rnd(r)
    def acc(o, kt): return A(32*o + 4*kt, 4) if o < 3 else V(96 + 32*(o-3) + 4*kt, 4)
    def Cf(buf, kt, ks): return A(96 + 64*buf + 8*kt + 4*ks, 4)
    def rdC(s, kt, ks): return f"ds_read_b128 {Cf(s & 1, kt, ks)}, {V(vRC1 if ks else vRC0)} offset:{(s & 1)*32768 + (kt >> 2)*16384 + (kt & 3)*2048}"
    def Wf(buf, ks): return 224 + 8*buf + 4*ks
    def rdW(s, o): return [f"ds_read_b64_tr_b16 {A(Wf(o & 1, ks) + 2*hf, 2)}, {V(vRW + (o & 3))} offset:{(s & 1)*32768 + (o >> 2)*16384 + ks*8192 + hf*1024}"
                           for ks in range(2) for hf in range(2)]
    b(rdW(0, 0))
    for kt in range(5):
        for ks in range(2): b(rdC(0, kt, ks))
    T.stamp(b, "kvstart")

    def spin(lab, vreg, soff, target, sc_=None):
        b(f"@need {V(vreg)}")
        b(f"v_cmp_gt_u32 vcc, {target}, {V(vreg)}")
        b(f"s_cbranch_vccnz {lab}_w")
        b.outline(f"{lab}_w", ["s_mov_b32 s3, 0", f"{lab}_spin:", "s_sleep 4", soff, "s_add_u32 s3, s3, 1", f"s_cmp_gt_u32 s3, {SPIN_MAX}", "s_waitcnt vmcnt(0)",
                               f"s_cbranch_scc1 {lab}_ok", f"v_cmp_gt_u32 vcc, {target}, {V(vreg)}", f"s_cbranch_vccnz {lab}_spin"], f"{lab}_ok")
    def spin_at(lab, vreg, again, target):
        b(f"v_readfirstlane_b32 s3, {V(vreg)}"); b(f"s_cmp_lt_u32 s3, {target}"); b(f"s_cbranch_scc1 {lab}_w")
        b.outline(f"{lab}_w", ["s_mov_b32 vcc_lo, 0", f"{lab}_spin:", again, "s_add_u32 vcc_lo, vcc_lo, 1", f"s_cmp_gt_u32 vcc_lo, {SPIN_MAX}", "s_waitcnt vmcnt(0)",
                               f"s_cbranch_scc1 {lab}_ok", f"v_readfirstlane_b32 s3, {V(vreg)}", f"s_cmp_lt_u32 s3, {target}", f"s_cbranch_scc1 {lab}_spin"], f"{lab}_ok")
    def emit_split(sc, hooks):
        cur = []
        for i in sc.emit():
            if i.kind == "pseudo" and i.op == "@mark":
                b(cur); cur = []; hooks[i.t.split()[1]]()
            else: cur.append(i)
        b(cur)

    XP, XF, MA, MS = 76, 32, 52, 72
    HP = 52
    poll_mod = f"buffer_load_dword {V(vPoll)}, {V(vZero)}, {sDBG}, 0 offen sc1"
    poll_mo2 = f"buffer_load_dword {V(vPoll)}, {V(vZero)}, {sWS}, 0 offen sc1"
    def h_setup():
        return toI([f"""
        v_and_b32 v92, 31, v0
        v_lshrrev_b32 v93, 5, v0
        v_mul_u32_u24 {V(vXo)}, 1280, v93
        v_lshl_add_u32 {V(vXo)}, v92, 3, {V(vXo)}
        v_lshrrev_b32 v94, 1, v92
        v_mul_u32_u24 {V(vHo)}, 144, v94
        v_lshl_add_u32 {V(vHo)}, v93, 4, {V(vHo)}
        v_and_b32 v94, 1, v92
        v_lshl_add_u32 {V(vHo)}, v94, 3, {V(vHo)}
        s_lshl_b32 s6, {S(sWV)}, 5
        s_add_u32 s6, s6, {MB + 8192}
        v_add_u32 {V(vHo)}, s6, {V(vHo)}
        v_lshlrev_b32 v95, 4, v92
        v_add_u32 v95, {MB}, v95
        """])
    def h_loadx():
        o = [f"s_lshl_b32 {S(sT2)}, s2, 2", f"s_add_u32 {S(sT2)}, {S(sT2)}, {S(sWV)}", f"s_mul_i32 {S(sT2)}, {S(sT2)}, 2560"]
        o += [f"buffer_load_dwordx2 {V(XP+2*m,2)}, {V(vXo)}, {sX}, {S(sT2)} offen offset:{256*m}" for m in range(5)]
        return toI(o)
    def mp_load():
        o = [f"s_lshl_b32 {S(sT3)}, {S(sWV)}, 10"]
        for i in range(5): o += [f"s_add_u32 {S(sT2)}, {S(sT3)}, {WS_MP + 4096*i}", f"buffer_load_dwordx4 {V(52+4*i,4)}, {V(vL16)}, {sWS}, {S(sT2)} offen sc1"]
        return toI(o)
    def mp_sum():
        o = [f"s_cmp_ge_u32 {S(sWV)}, 2", "s_cselect_b32 s6, 1.0, 0", f"s_cmp_ge_u32 {S(sWV)}, 2", f"s_cselect_b32 s7, 1.0, {FH(QSCALE)}",
             f"s_lshl_b32 {S(sT3)}, {S(sWV)}, 8", f"s_add_u32 {S(sT3)}, {S(sT3)}, {MB}", f"v_lshl_add_u32 v94, v0, 2, {S(sT3)}"]
        for i in range(5):
            r = 52 + 4*i; o += sum4(r)
            if i < 2: o.append(f"v_mul_f32 {V(r)}, {FH(QSCALE)}, {V(r)}")
            elif i == 2: o += [f"v_add_f32 {V(r)}, s6, {V(r)}"] + rnd(r) + [f"v_mul_f32 {V(r)}, s7, {V(r)}"]
            else: o += [f"v_add_f32 {V(r)}, 1.0, {V(r)}"] + rnd(r)
            o.append(I(f"ds_write_b32 v94, {V(r)} offset:{1024*i}", "mw"))
        return toI(o)
    def mod_read(): return toI([f"ds_read_b128 {V(r+4*m,4)}, v95 offset:{off + 512*m}" for m in range(5) for r, off in ((MA, 2560), (MS, 0))])
    def red32(r, t):
        o = [f"v_add_f32 {V(r)}, {V(r)}, {V(r)} row_ror:{k}" for k in (1, 2, 4, 8)]
        o += [f"v_mov_b32 {V(t)}, {V(r)}", f"v_permlane16_swap_b32 {V(r)}, {V(t)}", f"v_add_f32 {V(r)}, {V(r)}, {V(t)}"]
        return o
    def h_stats():
        o = []
        for k in range(10):
            o += [f"v_lshlrev_b32 {V(XF+2*k)}, 16, {V(XP+k)}", f"v_and_b32 {V(XF+2*k+1)}, 0xffff0000, {V(XP+k)}"]
        o += [f"v_add_f32 v92, {V(XF)}, {V(XF+1)}", f"v_add_f32 v93, {V(XF+2)}, {V(XF+3)}"]
        for k in range(4, 20): o.append(f"v_add_f32 {V(92 + (k & 1))}, {V(92 + (k & 1))}, {V(XF+k)}")
        o.append("v_add_f32 v92, v92, v93")
        o += red32(92, 93)
        o.append(f"v_mul_f32 v92, {FH(1/640)}, v92")
        for k in range(20): o.append(f"v_sub_f32 {V(XF+k)}, {V(XF+k)}, v92")
        o2 = [f"v_mul_f32 v92, {V(XF)}, {V(XF)}", f"v_mul_f32 v93, {V(XF+1)}, {V(XF+1)}"]
        for k in range(2, 20): o2.append(f"v_fmac_f32 {V(92 + (k & 1))}, {V(XF+k)}, {V(XF+k)}")
        o2.append("v_add_f32 v92, v92, v93")
        o2 += red32(92, 93)
        o2 += [f"v_mov_b32 v93, {FH(1e-5)}", f"v_fmac_f32 v93, {FH(1/640)}, v92", "v_rsq_f32 v93, v93", f"v_mul_f32 v93, {FH(QSCALE)}, v93"]
        for k in range(20): o2.append(f"v_mul_f32 {V(XF+k)}, {V(XF+k)}, v93")
        return toI(o), toI(o2)
    sHs = 61
    def h_addr():
        return toI([f"s_lshr_b32 {S(sHs)}, s2, 4", f"s_lshl_b32 {S(sHs)}, {S(sHs)}, 1", f"s_bfe_u32 {S(sT3)}, s2, 0x10001",
              f"s_add_u32 {S(sHs)}, {S(sHs)}, {S(sT3)}", f"s_mul_i32 {S(sHs)}, {S(sHs)}, {20*4096}",
              f"s_bfe_u32 {S(sT3)}, s2, 0x20002", f"s_lshl_b32 {S(sT3)}, {S(sT3)}, 10", f"s_add_u32 {S(sHs)}, {S(sHs)}, {S(sT3)}",
              f"s_and_b32 {S(sT3)}, s2, 1", f"s_lshl_b32 {S(sT3)}, {S(sT3)}, 7", f"s_add_u32 {S(sHs)}, {S(sHs)}, {S(sT3)}",
              f"s_add_u32 {S(sHs)}, {S(sHs)}, {S(sLw)}", f"s_add_u32 {S(sHs)}, {S(sHs)}, {WS_H}"])
    def h_fin():
        o = []
        for m in range(5):
            for k in range(4*m, 4*m + 4): o.append(f"v_fma_f32 {V(XF+k)}, {V(XF+k)}, {V(MA+k)}, {V(MS+k)}")
            for k in (2*m, 2*m + 1): o.append(f"v_cvt_pk_bf16_f32 {V(24+(k & 3))}, {V(XF+2*k)}, {V(XF+2*k+1)}")
            o.append(f"ds_write_b64 {V(vHo)}, {V(24 + 2*(m & 1), 2)} offset:{2304*m}")
        return toI(o)
    def h_back():
        return toI([f"s_mul_i32 s6, {S(sWV)}, 1152", f"s_add_u32 s6, s6, {MB + 8192}", f"v_add_u32 v92, s6, {V(vL16)}",
                    "v_lshrrev_b32 v93, 3, v0", "v_lshl_add_u32 v92, v93, 4, v92",
                    "v_lshrrev_b32 v93, 5, v0", "v_lshlrev_b32 v93, 12, v93", "v_bfe_u32 v94, v0, 3, 2", "v_lshl_add_u32 v93, v94, 8, v93",
                    "v_and_b32 v94, 7, v0", "v_lshl_add_u32 v93, v94, 4, v93"]), toI([f"ds_read_b128 {V(32+4*k,4)}, v92 offset:{4608*k}" for k in range(3)])
    def h_store():
        o = []
        for k in range(3):
            o.append(f"s_add_u32 {S(sT3)}, {S(sHs)}, {32768*k}")
            if k == 2: o += [f"s_cmp_lt_u32 {S(sWV)}, 2", f"s_cselect_b32 {S(sT3)}, {S(sT3)}, {hex(OOB)}"]
            o.append(I(f"buffer_store_dwordx4 {V(32+4*k,4)}, v93, {sWS}, {S(sT3)} offen sc1", "hs"))
        return toI(o)
    def f_load():
        return toI([f"s_lshl_b32 {S(sT2)}, s2, 8", f"s_add_u32 {S(sT2)}, {S(sT2)}, {WS_MP + 1280*16}", "v_and_b32 v28, 15, v0", "v_lshlrev_b32 v29, 4, v28",
                    f"buffer_load_dwordx4 v[24:27], v29, {sWS}, {S(sT2)} offen sc1"])
    def f_fin():
        return toI(["s_sub_u32 s6, s2, 80", "s_cmp_lt_u32 s6, 40", "s_cselect_b32 s6, 1.0, 0", "s_lshl_b32 s7, s2, 6", f"s_add_u32 s7, s7, {WS_MOD + 1280*4}",
                    "s_cmp_lt_u32 s2, 160", f"s_cselect_b32 s7, s7, {hex(OOB)}", f"s_cmp_eq_u32 {S(sWV)}, 0", f"s_cselect_b32 s7, s7, {hex(OOB)}"]
                   + sum4(24) + ["v_add_f32 v24, s6, v24"] + rnd(24) + ["v_lshlrev_b32 v29, 2, v28", f"buffer_store_dword v24, v29, {sWS}, s7 offen sc1",
                      "s_sub_u32 s6, s2, 40", "s_cmp_lt_u32 s6, 40", "s_cselect_b32 s7, 64, 0", "s_cmp_lt_u32 s6, 40", "s_cselect_b32 s5, 0, 40",
                      "s_sub_u32 s5, s6, s5", "s_lshr_b32 s4, s5, 1", "s_lshl_b32 s4, s4, 7", "s_add_u32 s7, s7, s4", "s_and_b32 s5, s5, 1", "s_lshl_b32 s5, s5, 3",
                      "s_add_u32 s7, s7, s5", f"s_add_u32 s7, s7, {WS_MODB}", "s_cmp_lt_u32 s6, 80", f"s_cselect_b32 s7, s7, {hex(OOB)}",
                      f"s_cmp_eq_u32 {S(sWV)}, 0", f"s_cselect_b32 s7, s7, {hex(OOB)}",
                      "v_lshrrev_b32 v29, 2, v28", "v_lshlrev_b32 v29, 4, v29", "v_and_b32 v28, 3, v28", "v_lshl_add_u32 v29, v28, 1, v29",
                      f"buffer_store_short_d16_hi v24, v29, {sWS}, s7 offen sc1"])
    def seq(sc, ins, start): return sc.seq(ins, start)
    poll_h = f"buffer_load_dword {V(vPoll)}, v11, {sWS}, 0 offen sc1"
    def Hf(buf, ks, qt): return A(96 + 64*buf + 16*ks + 4*qt, 4)
    def ldH(s):
        o = []
        for ks in range(4):
            o.append(f"s_add_u32 {S(sT2)}, {S(sHb if s < 5 - QR else 77)}, {((0 if 'hhit' in drop2 else 4*s) + ks)*4096}")
            for qt in range(4): o.append(f"buffer_load_dwordx4 {Hf(s & 1, ks, qt)}, {V(vL16)}, {sWS}, {S(sT2)} offen offset:{qt*1024} sc1")
        return toI(o)
    tmpi = [0]
    def rno(t): return int(t[2:t.index(":")])
    def pack(t0, t1, dst=None):
        o = []
        def src(t, d=None):
            if t[0] == "v": return rno(t)
            if d is None: d = 24 + 4 * (tmpi[0] % 8); tmpi[0] += 1
            for k in range(4): o.append(f"v_accvgpr_read_b32 {V(d+k)}, {A(rno(t)+k)}")
            return d
        r0 = src(t0, dst); r1 = src(t1)
        cv = lambda d, s: f"v_cvt_pk_bf16_f32 {V(d)}, {V(s)}, {V(s+1)}"
        if t0[0] == "a" and t1[0] == "v":
            o += [cv(r1+3, r1+2), cv(r1+2, r1), cv(r1, r0), cv(r1+1, r0+2)]; return toI(o), r1
        o += [cv(r0, r0), cv(r0+1, r0+2), cv(r0+2, r1), cv(r0+3, r1+2)]; return toI(o), r0
    sG = 36
    def kvstore(reg, isv, u, pl, off):
        return toI([f"s_add_u32 {S(sT3)}, {S(sG + 4*isv + 2*u + pl)}, {off}"]) + [I(f"buffer_store_dwordx4 {reg}, {V(vL16)}, {sWS}, {S(sT3)} offen{KVM}", f"kv{u}")]
    def QWf(buf, ks): return (240 if buf == 0 else 224) + 4*ks
    def rdQW(s, dt): return [f"ds_read_b64_tr_b16 {A(QWf(dt & 1, ks) + 2*hf, 2)}, {V(vRW + dt)} offset:{(s % 3 == 1)*32768 + ks*8192 + hf*1024}"
                             for ks in range(4) for hf in range(2)]
    st1 = []; st0 = []; kwr = []; vwr = []; vpack = []; park = []; vw1 = []
    vKw, vVw = (21, 22), (17, 19)
    def flag(off_ins, srd, imm, vf=vFlag): return toI(off_ins + [f"buffer_atomic_add {V(vOne)}, {V(vf)}, {srd}, {S(sT2)} offen offset:{imm}"])
    def paced(sc, groups, g0, g1):
        g = g0
        for k, gr in enumerate(groups):
            t = max(g, g0 + (k * (g1 - g0)) // len(groups))
            gr = toI(list(gr))
            if EXACT and gr[-1].kind == "vmem":
                e = seq(sc, gr[:-1], max(g, t - len(gr) + 1)) + 1 if len(gr) > 1 else t
                g = sc.putw(gr[-1], max(e, t), max(e, t) + 1) + 1
                sc.seqs.append(gr)
            else: g = seq(sc, gr, t) + 1
        return g
    def vgroups(ins):
        out = [[]]
        for i in ins:
            out[-1].append(i)
            if i.kind == "vmem": out.append([])
        assert not out[-1]; return out[:-1]
    def kv_dma(s):
        d = []
        if s < 7: d += dmaW(s + 1)
        if s < 6: d += dmaC(s + 2)
        if s == 6: d += dmaQ(0)
        if s == 7: d += dmaQ(1)
        return d
    NT = 3
    for s in range(8):
        mf = []
        for o in range(8):
            for kt in range(8):
                for ks in range(2):
                    w = A(Wf(o & 1, ks), 4); c = Cf(s & 1, kt, ks)
                    cin = "0" if (s == 0 and ks == 0) else acc(o, kt)
                    mf.append(MF(acc(o, kt), w, c, cin) if o < 4 else MF(acc(o, kt), c, w, cin))
        sc = Sched(mf)
        if s == 0:
            for n in range(10, 16): sc.put(rdC(0, n >> 1, n & 1), n - 10)
        for o in range(7):
            for k, r in enumerate(rdW(s, o + 1)): sc.put(r, 16*o + k)
            sc.raw(f"@need {A(Wf((o+1) & 1, 0), 8)}", 16*o + 15, "pre")
        d = kv_dma(s)
        sc.raw(([f"@waitvm {d[-1][2].tag}"] if s < 7 else []) + ["s_waitcnt lgkmcnt(0)", "s_barrier"], 111)
        if s < 7:
            for k, r in enumerate(rdW(s + 1, 0)): sc.put(r, 112 + k)
            sc.raw(f"@need {A(Wf(0, 0), 8)}", 127, "pre")
            for n in range(16): sc.put(rdC(s + 1, n >> 1, n & 1), (5 + 6*n) if s else (BA + 1 + ((106 - BA)*n) // 16))
        hooks = {}
        if s == 0:
            sc.raw(["@waitvm C1", "s_waitcnt lgkmcnt(0)", "s_barrier"], BA)
            sc.raw([x for gr in dmaC(1)[NC1:] for x in gr], -1)
            g = paced(sc, d[:8], 10, BA - 2); assert g <= BA + 2, g
            g0 = paced(sc, d[8:], BA + 1, BA + 36)
            g0 = paced(sc, ([] if HOP else pf0[2:]) + vgroups(m_c()) + (vgroups(m_dma()) if MS0 else []), g0, 126 if MS0 else 110); assert g0 < 129, g0
            seq(sc, h_setup(), 20)
        elif s < 7: g0 = paced(sc, d[(0 if s == 1 and MS0 else NT):], 0, END + (10 if s == 1 and MS0 else 0))
        if s < 7 and not (s == 0 and MS0): paced(sc, kv_dma(s + 1)[:NT], 116, 127)
        def m_part(g):
            g = seq(sc, m_reads(), g)
            sc.raw(m_mfma(), g + 6)
            return seq(sc, toI([f"v_mov_b32 {V(vZero)}, 0", "v_and_b32 v90, 31, v0", "v_lshlrev_b32 v90, 7, v90", f"s_lshl_b32 s6, s2, 12",
                             f"s_cmp_lt_u32 s2, 80", f"s_cselect_b32 s6, s6, {hex(OOB)}",
                             f"s_cmp_eq_u32 {S(sWV)}, 0", f"s_cselect_b32 s6, s6, {hex(OOB)}",
                             f"s_add_u32 s6, s6, {WS_FLG}", f"buffer_store_dword {V(vZero)}, v90, {sWS}, s6 offen sc1"]) + m_store(), g + 2)
        def m_arrive(gm):
            sc.raw(["@waitvm ms", "s_barrier"], gm)
            return seq(sc, flag([f"s_lshl_b32 {S(sT2)}, {S(sKq)}, 6", f"s_cmp_lt_u32 s2, 80", f"s_cselect_b32 {S(sT2)}, {S(sT2)}, {hex(OOB)}"], sDBG, 0), gm + 1)
        if s == 1:
            g = seq(sc, m_silu(), 4)
            if MS0:
                sc.raw(["@waitvm m", "s_barrier"], g + 1)
                paced(sc, [pfW(t) for t in PFA], g0, g0 + 4*len(PFA))
                assert m_part(g + 2) < 128
            else: assert paced(sc, [pfW(1)] + vgroups(m_dma()), g0, 112) < 117
        if s == 2:
            if MS0:
                g = m_arrive(MW)
                assert paced(sc, vgroups(h_loadx()) + [pfW(t) for t in (1, 2, 3) if t not in PFA], max(g, g0) + 1, g0 + 26) < 111
            else:
                sc.raw(["@waitvm m", "s_barrier"], 30)
                assert m_part(31) < 80
                assert paced(sc, [pfW(2)] + vgroups(h_loadx()), max(g0, 80), 110) < 114
                m_arrive(113)
        if s == TLB:
            paced(sc, [toI(["v_lshlrev_b32 v91, 21, v0", "s_mov_b32 s4, 0x1fff80", f"buffer_load_dword {V(vDum)}, v91, {sWS}, s4 offen"])], g0, g0 + 1)
        if s == 3:
            seq(sc, [f"v_and_b32 {V(vZero)}, 3, v0", f"v_lshlrev_b32 {V(vZero)}, 6, {V(vZero)}"], 0)
            gp = sc.put(poll_mod, PMG); assert gp < PMG + 8
            sc.raw("@mark pm", gp + 30, "post2"); hooks["pm"] = lambda: spin(name + "_pm", vPoll, poll_mod, 20)
            fl = flag([f"s_and_b32 {S(sT2)}, {S(sCG)}, 7", f"s_lshl_b32 {S(sT2)}, {S(sT2)}, 7", f"s_add_u32 {S(sT2)}, {S(sT2)}, {WS_FLG + FL_M*128}",
                       f"s_sub_u32 s5, s2, 80", f"s_cmp_lt_u32 s5, 160", f"s_cselect_b32 {S(sT2)}, {S(sT2)}, {hex(OOB)}"], sWS, 0)
            assert paced(sc, vgroups(mp_load()) + [fl], gp + 31, min(gp + 56, 126)) < 129
            assert seq(sc, h_addr(), 0) < gp + 30
            assert seq(sc, h_stats()[0] + h_stats()[1], 4) < 128
        if s == 4:
            paced(sc, [pfQ(0)] + ([pfQ(1)] if PQ4 else []), g0, g0 + 2)
            g = seq(sc, mp_sum(), MSG)
            sc.raw(["@waitlg mw", "s_barrier"], g + 4, "pre")
            gr = g + 5; mr = mod_read(); hf_ = h_fin(); pos = []
            for m in range(5): gr = seq(sc, mr[2*m : 2*m + 2], gr) + 1; pos.append(gr)
            for m in range(5): g = seq(sc, hf_[7*m : 7*m + 7], max(g + 1, pos[m] + 5))
            assert g < 108, g
            hb = h_back(); assert seq(sc, hb[0], 60) < 111
            seq(sc, hb[1], 116)
        if s == 5:
            g = paced(sc, vgroups(h_store()), 2, 30)
            seq(sc, [f"v_and_b32 {V(vZero)}, 7, v0", f"v_lshlrev_b32 {V(vZero)}, 7, {V(vZero)}", f"v_add_u32 {V(vZero)}, {WS_FLG + FL_M*128}, {V(vZero)}"], 30)
            assert sc.put(poll_mo2, 40) < 60
            fl = flag([f"s_lshr_b32 {S(sT2)}, s2, 4", f"s_lshl_b32 {S(sT2)}, {S(sT2)}, 7", f"s_add_u32 {S(sT2)}, {S(sT2)}, {WS_FLG + FL_H*128}", "@waitvm hs"], sWS, 0, vFlagW)
            assert paced(sc, [fl] + ([] if PQ4 else [pfQ(1)]), HA or g0, (HA or g0) + 8) < 100
            sc.raw("@mark p2", 111); hooks["p2"] = lambda: spin(name + "_p2", vPoll, poll_mo2, 20)
        if s == 6:
            assert paced(sc, dmaQ(2), g0, 112) < 117
            seq(sc, f_load(), 2)
            sc.put(poll_h, 126, force=True)
            g = seq(sc, f_fin(), 40)
            ga = []
            for isv, (base, rel) in enumerate(((sKb, sK1), (sVb, sV1))):
                for u, blk in enumerate((sBLK, sBLK2)):
                    ga += [f"s_lshl_b32 {S(sT3)}, {S(blk)}, 15", f"s_add_u32 {S(sT3)}, {S(sT3)}, {S(base)}"]
                    ga += [f"s_add_u32 {S(sG + 4*isv + 2*u + pl)}, {S(sT3)}, {S(rel + pl)}" for pl in range(2)]
            ga += [f"v_add_u32 {V(vKw[pl])}, {S(sK1+pl)}, {V(vL16)}" for pl in range(2)]
            ga += [f"v_add_u32 {V(vVw[pl])}, {S(sV1+pl)}, {V(vL16)}" for pl in range(2)] + [f"v_add_u32 {V(vVw[pl])}, 65536, {V(vVw[pl])}" for pl in range(2)]
            seq(sc, ga, 76)
        if s == 7:
            g = paced(sc, d[NT:], 0, PHG - 2)
            sc.raw("@mark ph", PHG, "post2"); hooks["ph"] = lambda: spin(name + "_ph", vPoll, poll_h, 64)
            assert paced(sc, vgroups(ldH(0)), PHG + 1, 104) < 112
            qa = [f"s_lshr_b32 s6, {S(sWV)}, 1", f"s_lshl_b32 s6, s6, 7", f"s_add_u32 s6, s6, 65536", f"v_xor_b32 {V(vRW)}, s6, {V(vRW)}"]
            qa += [f"v_xor_b32 {V(vRW+n)}, {32*n}, {V(vRW)}" for n in range(1, 8)]
            assert seq(sc, toI(qa), 101) < 112
            for k, r in enumerate(rdQW(0, 0)): sc.put(r, 112 + k)
            g = 0
            for kt in range(8):
                g = seq(sc, [f"v_accvgpr_read_b32 {V(64+4*kt+k)}, {A(4*kt+k)}" for k in range(4)]
                        + [f"v_cvt_pk_bf16_f32 {V(64+4*kt+k)}, {V(64+4*kt+2*k)}, {V(65+4*kt+2*k)}" for k in range(2)], max(g, 2*kt + 6))
            for a in range(2):
                for kt in range(8):
                    u, pl = kt >> 2, (kt >> 1) & 1
                    ins, r = pack(acc(2*a, kt), acc(2*a+1, kt), 64 + 4*kt if a == 0 else None)
                    if a == 0: ins = ins[4:8] + ins[10:]
                    off = ((kt & 1)*4 + a)*1024
                    kwr.append(f"ds_write_b128 {V(vKw[pl])}, {V(r,4)} offset:{u*32768 + off}")
                    if a == 0 and u == 0:
                        park += [f"v_accvgpr_write_b32 {A(4*kt+k)}, {V(r+k)}" for k in range(4)]
                        st0.append(kvstore(A(4*kt, 4), 0, u, pl, off))
                    elif a == 0 and kt - 4 < S7: ins += kvstore(V(r, 4), 0, u, pl, off)
                    else: (st1 if u else st0).append(kvstore(V(r, 4), 0, u, pl, off))
                    g = seq(sc, ins, max(g, 16*(2*a+1) + 2*kt + 6))
            for o in range(4, 8):
                for p in range(4):
                    u, pl = p >> 1, p & 1
                    ins, r = pack(acc(o, 2*p), acc(o, 2*p+1))
                    off = (o-4)*2048
                    (st1 if u else st0).append(kvstore(V(r, 4), 1, u, pl, off))
                    if u == 0: vwr.append(f"ds_write_b128 {V(vVw[pl])}, {V(r,4)} offset:{32768 + off}")
                    else: vw1.append((r, f"ds_write_b128 {V(vVw[pl])}, {V(r,4)} offset:{off}"))
                    vpack.append(ins)
        emit_split(sc, hooks)
        if fine is True and s < 7: T.stamp(b, f"kv{s}")
    T.stamp(b, "kvend")
    def qacc(dt, qt):
        i = dt*4 + qt
        return 32 + 4*i if i < 8 else (128 + 8*(i - 8) + 4 if i < 24 else 64 + 4*(i - 24))
    vKr, vVr, vDm, vQw, vQr = 1, 2, 5, 6, 24
    qsetup = toI([f"""
    s_lshl_b32 s6, {S(sHD)}, 7
    s_add_u32 s6, s6, {WS_FLG + FL_KV*128}
    v_mov_b32 v25, s6
    s_lshr_b32 s6, {S(sWV)}, 1
    s_lshl_b32 s7, s6, 14
    v_add_u32 {V(vKr)}, s7, {V(vL16)}
    v_add_u32 {V(vVr)}, 65536, {V(vKr)}
    v_add_u32 {V(vDm)}, {S(sLw)}, {V(vL16)}
    s_and_b32 s7, {S(sWV)}, 1
    s_lshl_b32 s7, s7, 14
    s_add_u32 s7, s7, 65536
    v_add_u32 {V(vQr)}, s7, {V(vL16)}
    s_lshl_b32 s6, s6, 16
    v_add_u32 {V(vQw)}, s6, {V(vQr)}
    """])
    def dmaKV(isv, slot, soff, tag, sl=sLw):
        base = (65536 + (slot ^ 1)*32768) if isv else slot*32768
        o = []
        for hf in range(2):
            o.append(I(f"s_add_u32 m0, {S(sl)}, {base + hf*4096}"))
            if hf: o.append(I(f"s_add_u32 {S(soff)}, {S(soff)}, 4096"))
            for i in range(4): o.append(I(f"buffer_load_dwordx4 {V(vDm)}, {sWS}, {S(soff)} offen offset:{i*1024}{KVL} lds", tag))
        return o
    sR0, sKu, sUa, sUb = 57, 60, 70, 62
    sA0, sA1, sAl = 63, 78, 77
    def unit_diag(dst, base): return [f"s_lshl_b32 {S(dst)}, {S(sBLK)}, 15", f"s_add_u32 {S(dst)}, {S(dst)}, {S(base)}"]
    def unit_r0(dst, base): return [f"s_lshl_b32 {S(dst)}, {S(sR0)}, 15", f"s_add_u32 {S(dst)}, {S(dst)}, {S(base)}"]
    assert sum(QST) + S7 == 16
    MK, TC = 8, 12
    RT, RO, RS = R["wuk"], R["wuv"], R["ckv"]
    def masks(first, t0=28):
        o = [f"""
        v_lshrrev_b32 {V(t0)}, 4, v0
        v_lshlrev_b32 {V(t0)}, 2, {V(t0)}
        v_and_b32 {V(t0+1)}, 15, v0
        v_sub_u32 {V(t0)}, {V(t0+1)}, {V(t0)}
        s_and_b32 s7, {S(sWV)}, 1
        s_lshl_b32 s7, s7, 4
        v_add_u32 {V(t0)}, s7, {V(t0)}
        v_mov_b32 {V(t0+1)}, {FH(NEGBIG)}
        """]
        for base, dst in ([(0, MK)] if first else []) + [(16, TC)]:
            for r in (0, 2):
                o += [f"v_cmp_gt_i32 vcc, {base + r}, {V(t0)}", f"v_cmp_gt_i32 {S(sMK,2)}, {base + r + 1}, {V(t0)}", "v_nop",
                      f"v_cndmask_b32 {V(dst+r)}, 0, {V(t0+1)}, vcc", f"v_cndmask_b32 {V(dst+r+1)}, 0, {V(t0+1)}, {S(sMK,2)}"]
        return toI(o)
    def att_setup(sc):
        sc.seq([f"s_mov_b32 {S(r_+2)}, {hex(SIZE[n_])}" for r_, n_ in ((WU, "wo"), (RT, "win"), (RO, "wout"), (RS, "wsp"), (R["dbg"], "x"))] + [f"""
        s_lshl_b32 {S(sA0)}, {S(sBLK2)}, 15
        s_add_u32 {S(sA0)}, {S(sA0)}, {S(sKb)}
        s_mov_b32 {S(sA1)}, {S(sKb)}
        s_mov_b32 {S(sAl)}, {S(sLw)}
        s_mov_b32 {S(sPass)}, 0
        s_lshr_b32 s6, {S(sWV)}, 1
        s_lshl_b32 s6, s6, 11
        v_add_u32 v21, s6, {V(vQr)}
        v_xor_b32 v22, 0x800, v21
        v_mov_b32 v3, {V(vL16)}
        v_mov_b32 v30, 0x3f803f80
        """] + [f"v_accvgpr_write_b32 {A(160+r)}, v30" for r in range(4)], 30)
        for r in range(16): sc.put(f"v_mov_b32 {V(32+r)}, 0", 56)
        for ds in range(4): sc.put(f"ds_read_b128 {A(64 + 4*ds, 4)}, {V(vKr)} offset:{ds*1024}", 88)
        m = masks(True)
        sc.seq(m[:8], 60); sc.seq(m[8:-2], 104)
    def pf_code(tag, vt, vd):
        return toI([f"s_getpc_b64 s[4:5]", f"{name}_pc{tag}:", f"s_lshr_b32 s6, s2, 3", f"s_lshl_b32 s6, s6, 2", f"s_add_u32 s6, s6, {S(sWV)}", f"s_lshl_b32 s6, s6, 9",
                    f"v_and_b32 {V(vt)}, 3, v0", f"v_lshl_add_u32 {V(vt)}, {V(vt)}, 7, s6", f"v_min_u32 {V(vt)}, code_end - {name}_pc{tag} - 4, {V(vt)}",
                    f"global_load_dword {V(vd)}, {V(vt)}, s[4:5]"])
    for s in range(5):
        mf = []
        for dt in range(8):
            for qt in range(4):
                for ks in range(4):
                    d = V(qacc(dt, qt), 4)
                    mf.append(MF(d, A(QWf(dt & 1, ks), 4), Hf(s & 1, ks, qt), "0" if (s == 0 and ks == 0) else d))
        sc = Sched(mf)
        for dt in range(7):
            for k, r in enumerate(rdQW(s, dt + 1)): sc.put(r, 16*dt + k)
            sc.raw(f"@need {A(QWf((dt+1) & 1, 0), 16)}", 16*dt + 15, "pre")
        sc.raw([f"@waitvm Q{s+1}", "s_waitcnt lgkmcnt(0)", "s_barrier"], 111)
        if s < 4:
            for k, r in enumerate(rdQW(s + 1, 0)): sc.put(r, 112 + k)
            sc.raw(f"@need {A(QWf(0, 0), 16)} {A(96 + 64*((s+1) & 1), 64)}", 127, "pre")
        ld = ((dmaQ(3) + dmaQ(4))[QD[s-1] : QD[s]] if 1 <= s < 4 else []) + (vgroups(ldH(s + 1)) if s < 4 else [])
        if s in (1, 2):
            for dt in range(8): sc.put(f"v_xor_b32 {V(vRW + dt)}, 0x30000, {V(vRW + dt)}", max(16*(dt - 1) + 8, 8))
        if s < 2:
            g = 8
            for w in kwr[8*s : 8*s + 8]: g = sc.put(w, g) + DWS
            assert g < 95
        if s < 4:
            mine = st1[sum(QST[:s]) : sum(QST[:s+1])]
            if s == 0:
                g = paced(sc, mine[:4-S7], 0, 6*(4-S7)); g = paced(sc, ld, g, QEND); mine = mine[4-S7:]
            else: g = paced(sc, ld, 0, QEND)
            if mine: assert paced(sc, mine, g, 126) < 129
        if s == 0:
            g = 0
            for k, ins in enumerate(vpack):
                g = seq(sc, ins, g); assert g < 32 + 4*k - 2, (k, g)
            assert seq(sc, park, g) < 94
        if s == 2:
            sc.raw([f"s_load_dwordx2 {S(r_,2)}, s[0:1], {ARG[n_]}" for r_, n_ in ((WU, "wo"), (RT, "win"), (RO, "wout"), (RS, "wsp"), (R["dbg"], "x"))], 103, "post2")
        if s == 3: seq(sc, qsetup + toI([f"s_mov_b32 {S(sR0)}, {S(sJ)}"]), 40)
        if s == 3 and CPF: sc.raw(pf_code("q", 27, vDum), 126)
        if s == 4:
            sc.raw("@waitvm kv1", QF)
            g = seq(sc, flag([f"s_lshl_b32 {S(sT2)}, {S(sHD)}, 7", f"s_add_u32 {S(sT2)}, {S(sT2)}, {WS_FLG + FL_KV*128}"], sWS, 0, vFlagW), QF + 1)
            g = paced(sc, st0[:QB], g + 1, 110)
            g = 0; gw = 0
            for ds in range(4):
                for qt in range(4):
                    r0, r1 = qacc(2*ds, qt), qacc(2*ds+1, qt)
                    seq(sc, toI([f"v_cvt_pk_bf16_f32 {V(r0)}, {V(r0)}, {V(r0+1)}", f"v_cvt_pk_bf16_f32 {V(r0+1)}, {V(r0+2)}, {V(r0+3)}"]), 16*(2*ds) + 4*qt + 9)
                    g = seq(sc, toI([f"v_cvt_pk_bf16_f32 {V(r0+2)}, {V(r1)}, {V(r1+1)}", f"v_cvt_pk_bf16_f32 {V(r0+3)}, {V(r1+2)}, {V(r1+3)}"]),
                            max(g, 16*(2*ds+1) + 4*qt + 8))
                    gw = sc.putw(f"ds_write_b128 {V(vQw)}, {V(r0, 4)} offset:{(ds*4+qt)*1024}", max(g + 1, gw), max(g + 1, gw) + 2) + 4
            for k in range(3): sc.raw(vwr[k], 112 + 4*k)
            att_setup(sc)
            sc.raw([x for gr in st0[QB:10] for x in gr], 999)
        out = sc.emit()
        if "qtr" in drop: out = [i for i in out if "_tr_" not in i.op]
        if "qvm" in drop: out = [i for i in out if not (i.kind == "vmem" and "load" in i.op)]
        if "qst" in drop: out = [i for i in out if not (i.kind == "vmem" and "store" in i.op)]
        if "qdw" in drop: out = [i for i in out if not i.op.startswith("ds_write")]
        b(out)
        if fine is True and s < 4: T.stamp(b, f"q{s}")
    T.stamp(b, "qend")
    def O(dt, qt): return 128 + 16*dt + 4*qt
    def P(buf, kp, qt): return 64 + 32*buf + 16*kp + 4*qt
    def Sw(i): return 48 + 4*(i & 3)
    def NM(qt): return 32 + 4*qt
    def Lr(qt): return 164 + 4*qt
    MK, TC = 8, 12
    vL, vXp, vPa, vPk = 3, 4, 6, 7
    vX, vLx, vQa, vQb = 17, 18, 21, 22
    def Qf(ds, qt): return A(16*ds + 4*qt, 4)
    def Kf(kt, ds): return A(64 + 16*kt + 4*ds, 4)
    def Vf(dt, kp): return A(128 + 8*(dt & 3) + 4*kp, 4)
    ONES = A(160, 4)
    sTop = 76; NCX = 9 if WOP in (0, 9) else 8; sXa = 36
    sLk = 80
    att = fine in ("att0", "att1"); cnd = f"s_cmp_eq_u32 {S(sPass)}, {str(fine)[-1]}"
    def ST(nm):
        if not att: return
        if nm in T.names:
            n = T.n; T.n = T.names.index(nm); T.stamp(b, nm, cnd); T.names.pop(); T.n = n
        else: T.stamp(b, nm, cnd)
    def rdK(slot, kt, ds): return f"ds_read_b128 {Kf(kt, ds)}, {V(vKr)} offset:{slot*32768 + (kt*4+ds)*1024}"
    def rdK0(kt, ds): return rdK(0, kt, ds)
    def rdV(slot, dt, kp): return f"ds_read_b128 {Vf(dt, kp)}, {V(vVr)} offset:{(slot ^ 1)*32768 + (dt*2+kp)*1024}"
    def rdQ(base, ds, qt): return f"ds_read_b128 {A(base + 16*ds + 4*qt, 4)}, {V(vQb if qt >> 1 else vQa)} offset:{ds*4096 + (qt & 1)*1024}"
    poll_kv = f"buffer_load_dword {V(vPk)}, {V(vPa)}, {sWS}, 0 offen sc1"
    b(f"buffer_load_dword v26, v25, {sWS}, 0 offen sc1")
    b(masks(True)[-2:]); b(f"v_mov_b32 {V(vPa)}, v25")
    b("s_waitcnt lgkmcnt(0)"); b("s_barrier")
    for qt in range(4):
        for ds in range(4):
            b(rdQ(0, ds, qt))
            if HOP and (qt, ds) == (3, 1): b("@hop b")
    b(vwr[3:])
    b(f"v_add_u32 {V(vQa)}, 65536, {V(vQa)}"); b(f"v_add_u32 {V(vQb)}, 65536, {V(vQb)}")
    def softmax_ops(si, pbuf, kt, qt):
        s = Sw(si); p = P(pbuf, kt >> 1, qt) + 2*(kt & 1)
        return ([f"v_exp_f32 {V(s+r)}, {V(s+r)}" for r in range(4)],
                [f"v_cvt_pk_bf16_f32 {V(p)}, {V(s)}, {V(s+1)}", f"v_cvt_pk_bf16_f32 {V(p+1)}, {V(s+2)}, {V(s+3)}"])
    def place_softmax(sc, ops, start, stride):
        ex, cv = ops; g = start; gs = []
        for e in ex:
            g = sc.put(e, g); gs.append(g); g += stride
        return [(cv[0], gs[1] + 1), (cv[1], gs[3] + 1)]
    def diag_active(kg): return [(kp, q) for kp in range(2) for q in range(4) if (3 - kg if kp else kg) <= (q ^ (2*kg))]
    def next_k_dma(slot, ahead=2):
        return toI([f"s_mov_b32 {S(sUa)}, {S(sUb)}", f"s_mov_b32 {S(sUb)}, {S(sKu)}",
                    f"s_lshl_b32 {S(sKs)}, {S(sKu)}, 15", f"s_add_u32 {S(sKs)}, {S(sKs)}, {S(sKb)}", f"s_add_u32 {S(sKu)}, {S(sKu)}, 1",
                    f"s_cmp_eq_u32 {S(sKu)}, {S(sR0)}", f"s_addc_u32 {S(sKu)}, {S(sKu)}, 0", f"s_add_u32 {S(sT2)}, {S(sN)}, {ahead}",
                    f"s_cmp_gt_u32 {S(sBLK)}, {S(sT2)}", f"s_cselect_b32 {S(sKs)}, {S(sKs)}, {S(sA1 if slot else sA0)}",
                    f"s_cmp_gt_u32 {S(sBLK)}, {S(sT2)}", f"s_cselect_b32 {S(sLk)}, {S(sLw)}, {S(sAl)}"]) + dmaKV(0, slot, sKs, "k", sLk)
    def next_v_dma(slot):
        return toI([f"s_lshl_b32 {S(sVs)}, {S(sUa)}, 15", f"s_add_u32 {S(sVs)}, {S(sVs)}, {S(sVb)}"]) + dmaKV(1, slot, sVs, "v")
    def next_reads(n_par):
        rd = []
        for k in range(4): rd += [rdK(n_par, 0, k), rdV(n_par ^ 1, k >> 1, k & 1)]
        return rd
    def qk_diag(kg):
        act = diag_active(kg); tiles = []; zero = []
        for kt in range(4):
            p = 3 - kg if kt >> 1 else kg
            for q in range(4):
                if (kt >> 1, q) in act: tiles.append((kt, q, p == (q ^ (2*kg))))
        mf = []
        for i, (kt, q, dg) in enumerate(tiles):
            for ds in range(4):
                mf.append(MF(V(Sw(i), 4), Kf(kt, ds), Qf(ds, q), V(Sw(i), 4) if ds else V(Sw(i) if dg else NM(q), 4)))
        n = len(mf)
        sc = Sched(mf)
        g = 0
        for kt in sorted({t[0] for t in tiles} - {0}):
            for ds in range(4): g = sc.put(rdK0(kt, ds), g, force=True) + 1
        gb = max(g + 5, 4 * max(i for i, t in enumerate(tiles) if t[0] == 0) + 4, n - 10)
        init = []
        for kt, q in zero:
            p = P(0, kt >> 1, q) + 2*(kt & 1); init += [f"v_mov_b32 {V(p)}, 0", f"v_mov_b32 {V(p+1)}, 0"]
        if kg == 1: init += [f"v_accvgpr_write_b32 {A(Lr(2)+r)}, 0" for r in range(4)]
        for i, (kt, q, dg) in enumerate(tiles):
            if dg:
                for r in range(4): sc.raw(f"v_add_f32 {V(Sw(i)+r)}, {V(NM(q)+r)}, {V((TC if kt & 1 else MK)+r)}", -1 if i < 4 else 4*i - 4 + r // 2, "post2")
        sc.raw(init, -1)
        for i, (kt, q, dg) in enumerate(tiles):
            ex, cv = softmax_ops(i, 0, kt, q)
            for r in range(4): sc.raw(ex[r], 4*i + 7 + r)
            sc.raw(cv[0], 4*i + 10, "post"); sc.raw(cv[1], 4*i + 11, "post2")
        for i, (kt, q, dg) in enumerate(tiles):
            sc.raw(f"@need {A(64 + 16*kt, 16)} " + " ".join(Qf(ds, q) for ds in range(4)), 4*i - 1, "pre")
        sc.raw(["@waitvm v", "s_waitcnt lgkmcnt(0)", "s_barrier"], gb, "post2")
        for k, r in enumerate(next_reads(1)): sc.raw(r, gb + 1 + k, "pre")
        assert gb + 8 < n
        sc.seq(next_k_dma(0, 1)[:12], 14)
        return sc.emit()
    def check():
        o = [f"v_add_f32 {V(48+r)}, {V(48+r)}, {V(56+(r ^ 2))}" for r in range(8)]
        o.append(f"""
        v_min3_f32 v56, v48, v49, v50
        v_add_f32 v57, v48, v49
        v_min3_f32 v56, v56, v51, v52
        v_add_f32 v58, v50, v51
        v_min3_f32 v56, v56, v53, v54
        v_add_f32 v59, v52, v53
        v_min_f32 v56, v56, v55
        v_add_f32 v60, v54, v55
        v_add_f32 v57, v57, v58
        v_add_f32 v59, v59, v60
        v_add_f32 v57, v57, v59
        v_cmp_nle_f32 s[36:37], s40, v56
        v_cmp_nge_f32 s[38:39], s41, v57
        v_cndmask_b32 v48, v48, v52, s[42:43]
        s_or_b64 s[36:37], s[36:37], s[38:39]
        s_cmp_lg_u64 s[36:37], 0
        s_cselect_b32 s36, 1, {1 if force_fallback else 0}
        s_cmp_gt_u32 s36, {S(sSafe)}
        {"s_nop 0" if drop else f"s_cbranch_scc1 {name}_slow"}
        v_cndmask_b32 v49, v49, v53, s[42:43]
        v_cndmask_b32 v50, v50, v54, s[42:43]
        v_cndmask_b32 v51, v51, v55, s[42:43]
        v_cndmask_b32 v28, v50, v48, s[74:75]
        v_cndmask_b32 v30, v51, v49, s[74:75]
        v_rcp_f32 v28, v28
        v_rcp_f32 v30, v30
        """)
        return toI(o)
    def iteration(par, qk, pv, carry, exit_lab=None, side=None, first=False):
        act = [(kp, q) for kp in range(2) for q in range(4)] if pv == "full" else diag_active(pv)
        fresh = pv != "full"
        def chain(dst, a, q):
            m = []; f = fresh
            for kp in range(2):
                if (kp, q) in act: m.append(MF(dst, a(kp), V(P(par, kp, q), 4), "0" if f else dst)); f = False
            return m
        groups = []
        for g in range(16):
            m = []
            if qk:
                kt, q = g >> 2, g & 3
                for ds in range(4): m.append(MF(V(Sw(g), 4), Kf(kt, ds), Qf(ds, q), V(Sw(g), 4) if ds else V(NM(q), 4)))
            dt = g >> 1
            if qk and fresh:
                order = sorted(range(4), key=lambda q: -sum((kp, q) in act for kp in range(2)))
                qs = (order[0], order[3]) if g & 1 else (order[1], order[2])
            else: qs = (2*(g & 1), 2*(g & 1) + 1)
            for q in qs: m += chain(V(O(dt, q), 4), lambda kp: Vf(dt, kp), q)
            if qk and g % 4 == 2: m += chain(A(Lr(g >> 2), 4), lambda kp: ONES, g >> 2)
            if not qk and g in (1, 2, 3, 4): m += chain(A(Lr(g - 1), 4), lambda kp: ONES, g - 1)
            groups.append(m)
        st = [0]
        for m in groups: st.append(st[-1] + len(m))
        n = st[16]
        sc = Sched([x for m in groups for x in m])
        if qk and not fresh:
            cvs = place_softmax(sc, softmax_ops(15, par, 3, 3), 0, 2)
            for g in range(15): cvs += place_softmax(sc, softmax_ops(g, par ^ 1, g >> 2, g & 3), st[g+1], 2)
            for c, e in cvs: sc.put(c, e)
            for sp in range(4):
                rd = next_reads(par) if sp == 3 else [x for k in range(4) for x in (rdK(par ^ 1, sp + 1, k), rdV(par, 2*sp + 2 + (k >> 1), k & 1))]
                rd = rd[0::2] + rd[1::2]
                pos = [st[4*sp + gg] + o for gg in range(4) for o in ((1, 3, 7) if sp == 2 else (3, 7))]
                for r, p in zip(rd, pos): assert sc.put(r, p) == p
                if sp != 2: sc.raw("s_waitcnt lgkmcnt(1)", st[4*sp + 4] - 1, "pre")
                sc.raw(f"@need {A(128 + 8*((2*sp + 1) & 3), 8)}", st[4*sp + 2] + 2, "pre")
            gv = sc.seq(next_v_dma(par ^ 1), 0 if side else V0, 4 if side else VST)
            sc.raw(["@waitvm v", "s_waitcnt lgkmcnt(0)", "s_barrier"], st[12] - BPOS, "pre" if BPOS == 3 else "post")
            kd = next_k_dma(par ^ 1)
            g = sc.seq(kd[:12], st[11] - 8) ; assert g < st[12] - BPOS
            g = sc.seq(kd[12:], st[12] - BPOS + 1, KST); assert g < n - 2, g
            if side: side(sc, st, gv)
        elif qk:
            cvs = []
            for g in range(15):
                ex, cv = softmax_ops(g, par ^ 1, g >> 2, g & 3)
                lo, ln = st[g+1] + 1, st[g+2] - st[g+1]
                ps = [lo + (r * ln) // 4 for r in range(4)]
                for e, p in zip(ex, ps): sc.put(e, p, force=True)
                cvs += [(cv[0], ps[1] + 1, ps[1] + 5), (cv[1], ps[3] + 1, ps[3] + 4)]
            dm = vgroups(next_k_dma(0, 1) + ([] if first else next_v_dma(1))); g = 0
            free_at = {}
            if first:
                firstw = lambda r: min([k for k, x in enumerate(sc.mf) if x.split()[1] == V(r, 4) + ","] + [st[11]])
                for k, (r, w) in enumerate(vw1):
                    hi = firstw(r) - 1
                    lo = max(0, min(hi - 4, 8*k))
                    free_at[r] = sc.putw(w, lo, min(hi, lo + 4))
                for k, gr in enumerate(st0[10:]):
                    gr = toI([x.t.replace(f", {V(vL16)},", f", {V(vL)},") for x in gr]); gr[-1].tag = "kv0"
                    r = rno(gr[-1].t.split()[1]); hi = min(firstw(r) - 1, st[4*(k//2) + 4] - 1)
                    lo = hi - (4 if k & 1 else 16)
                    free_at[r] = gg = sc.putw(gr[-1], lo, lo + 3)
                    sc.raw(gr[0], gg - 1, "post")
            dm[0] = dm[0][12:]
            for k, gr in enumerate(dm):
                lo = max(g, (k * (st[9] - 4)) // 16)
                if len(gr) > 1: lo = sc.seq(gr[:-1], lo)
                g = sc.putw(gr[-1], lo + 1, lo + 4) + 1
            if OWN == 3 and not first:
                sc.putw("v_lshlrev_b32 v21, 7, v0", 0, 8); sc.raw("@waitvm cx", g, "pre")
                go = sc.putw(f"buffer_load_dword v22, v21, {sWS}, s81 offen{CXL}", g + 1, g + 4)
                if WPF:
                    wp = toI([f"""
                    s_lshr_b32 s6, s2, 3
                    s_lshl_b32 s6, s6, 2
                    s_add_u32 s6, s6, {S(sWV)}
                    s_sub_u32 s6, s6, 16
                    s_mul_i32 s6, s6, 40
                    s_and_b32 s7, s2, 1
                    s_mul_i32 s7, s7, {28*1024}
                    s_add_u32 s7, s7, {WS_WIN + 54*1024}
                    v_min_u32 v17, 39, v0
                    v_add_u32 v17, s6, v17
                    v_mul_u32_u24 v18, 2341, v17
                    v_lshrrev_b32 v18, 19, v18
                    v_mul_u32_u24 v18, {108*8 - 224}, v18
                    v_add_lshl_u32 v17, v17, v18, 7
                    """])
                    e = sc.seq(wp[:8], 0)
                    for x in wp[8:]: e = sc.putw(x, e + 1, e + 3)
                    assert e < go
                    sc.putw(f"buffer_load_dword v22, v17, {sWS}, s7 offen sc1", go + 4, go + 8)
            if pv == 1:
                for dt in range(8):
                    for r in range(4): sc.putw(f"v_mov_b32 {V(O(dt, 2)+r)}, 0", free_at.get(O(dt, 2), 0) + 2, n - 3)
            sc.raw(["@waitvm k" if first else "@waitvm v", "s_waitcnt lgkmcnt(0)", "s_barrier"], st[12] - 1)
            kd = next_k_dma(1)
            assert g < st[10] and sc.seq(kd[:12], st[10]) < st[12]
            g = st[12]
            for k, gr in enumerate(vgroups(kd[12:])):
                lo = max(g, st[12] + (k * (n - 4 - st[12])) // 8)
                for x in gr[:-1]: sc.raw(x, lo, "pre")
                g = sc.putw(gr[-1], lo + 1, lo + 2) + 1
            assert g < n
            for sp in range(4):
                rd = next_reads(par) if sp == 3 else [x for k in range(4) for x in (rdK(par ^ 1, sp + 1, k), rdV(par, 2*sp + 2 + (k >> 1), k & 1))]
                lo, hi = st[4*sp], st[4*sp + 3] + 1
                for k, r in enumerate(rd): sc.putw(r, lo + (k * (hi - lo)) // 8, lo + ((k + 1) * (hi - lo)) // 8)
                if sp != 2: sc.raw("s_waitcnt lgkmcnt(0)", st[4*sp + 4] - 1, "pre")
            for c, lo, hi in cvs: sc.putw(c, lo, min(hi, n - 1))
        else:
            if pv == 1:
                for k in range(32): sc.raw(f"v_mov_b32 {V(O(k >> 2, 2) + (k & 3))}, 0", k)
            if carry:
                ex, cv = softmax_ops(15, par, 3, 3)
                sc.raw(ex[:2], -1); sc.raw(ex[2], 0); sc.raw(ex[3], 1); sc.raw(cv[0], 2); sc.raw(cv[1], 3)
            for g in range(12): sc.put(rdV(par, (g >> 1) + 2, g & 1), st[g], force=True)
            idle = 65536 + par*32768
            sc.raw([f"v_add_u32 {V(vX)}, 131072, {V(vDm)}"], 2); sc.raw([f"v_xor_b32 {V(vXp)}, 0x4000, {V(vX)}"], 3)
            sc.raw([f"s_lshl_b32 {S(sT2)}, {S(sWV)}, 10"], 4, "pre")
            sc.raw([f"v_add_u32 {V(vLx)}, {idle}, {V(vL)}", f"v_add_u32 v19, {S(sT2)}, {V(vLx)}"], 5)
            lastm = lambda r: max(k for k, x in enumerate(sc.mf) if x.split()[1] == V(r, 4) + ",")
            lastl = max(k for k, x in enumerate(sc.mf) if x.split()[1].startswith("a["))
            gl = sc.seq([f"v_accvgpr_read_b32 {V(28+q)}, {A(Lr(q))}" for q in range(4)] + [I("ds_write_b128 v19, v[28:31]", "lw")], lastl + 5)
            gb = gl + 5
            sc.raw(["@waitlg lw", "s_barrier"], gb, "pre")
            g = sc.seq([f"ds_read_b128 {V(48+4*w, 4)}, {V(vLx)} offset:{w*1024}" for w in range(4)], gb + 1)
            cv = lambda d, x: f"v_cvt_pk_bf16_f32 {V(d)}, {V(x)}, {V(x+1)}"
            gw = 0
            for i in range(4):
                for q in range(2):
                    r0, r1 = O(2*i, q), O(2*i + 1, q)
                    e = sc.seq([cv(r0, r0), cv(r0+1, r0+2)], lastm(r0) + 6)
                    gw = sc.seq([cv(r0+2, r1), cv(r0+3, r1+2), f"ds_write_b128 {V(vX)}, {V(r0, 4)} offset:{(q*4+i)*1024}"], max(lastm(r1) + 5, gw, e + 1)) + 1
            sc.gchk = sc.seq(check(), g + 6)
            if side: side(sc, st, P(par ^ 1, 0, 0))
        if qk:
            sc.raw(f"s_add_u32 {S(sN)}, {S(sN)}, 1", n - 2, "pre")
            if exit_lab: sc.raw(f"s_cmp_eq_u32 {S(sN)}, {S(sBLK)}", n - 1, "pre"); sc.raw(f"s_cbranch_scc1 {exit_lab}", 999)
        out = sc.emit()
        if drop and qk and pv == "full":
            out = [i for i in out if not (("dma" in drop and i.kind == "vmem") or ("bar" in drop and i.op == "s_barrier") or ("ds" in drop and i.kind == "ds")
                                          or ("exp" in drop and i.op == "v_exp_f32") or ("cvt" in drop and i.op.startswith("v_cvt")) or ("vmw" in drop and i.kind == "wait"))]
        return out
    reent = State(vm=[(set(), "v", False)] + [(set(), "cx", False)] * NCX)
    b.label(name + "_blk", b.flush() + [reent])
    b(f"s_mov_b32 {S(sSafe)}, 0")
    ST("qrd")
    b.label(name + "_retry", b.flush() + [reent])
    b(f"""
    s_mov_b32 {S(sN)}, 0
    s_mov_b32 {S(sUb)}, {S(sR0)}
    s_cmp_eq_u32 {S(sR0)}, 0
    s_cselect_b32 {S(sKu)}, 1, 0
    s_cmp_ge_u32 {S(sWV)}, 2
    s_cbranch_scc1 {name}_d2
    """)
    pre = b.flush()
    gen0 = {}
    def diag_tail(kg):
        ST("diag")
        b(f"s_or_b32 {S(sT2)}, {S(sPass)}, {S(sSafe)}"); b(f"s_cmp_lg_u32 {S(sT2)}, 0"); b(f"s_cbranch_scc1 {name}_g{kg}")
        gen0[kg] = b.flush()
        spin(f"{name}_pk{kg}", 26, poll_kv.replace(f"dword {V(vPk)},", "dword v26,"), 32)
        ST("dtail")
        b(iteration(0, True, kg, False, None, None, True))
    b(qk_diag(0)); diag_tail(0); b(f"s_branch {name}_it1"); f0a = b.flush()
    b.label(name + "_d2", pre)
    b(qk_diag(1)); diag_tail(1); f0b = b.flush()
    gtext = {}; spv = {}; skip = []
    for kg in range(2):
        va = [] if kg else toI(["s_and_b32 s10, s2, 3", "s_lshl_b32 s10, s10, 7", f"s_add_u32 s10, s10, {WS_FLG + (FL_R + 32)*128}", f"s_cmp_lt_u32 s9, {hex(OOB)}",
                                f"s_cselect_b32 s10, s10, {hex(OOB)}", f"s_cmp_eq_u32 {S(sSafe)}, 0", f"s_cselect_b32 s10, s10, {hex(OOB)}",
                                f"buffer_atomic_add {V(vOne)}, {V(vFlagW)}, {sWS}, s10 offen"])
        h1, spv[kg] = seg(va + pf_code(f"g{kg}", 21, 22) + [f"s_cmp_eq_u32 {S(sBLK)}, 0", f"s_cbranch_scc1 {name}_pvd{kg}"], gen0[kg])
        h2, ex_ = seg(iteration(0, True, kg, False, name + "_pv1") + toI([f"s_branch {name}_odd"]), spv[kg])
        gtext[kg] = h1 + h2; skip += ex_
    spv0, spv1 = spv[0], spv[1]; it0a, it0b = skip, []
    b.label(name + "_it1", f0a + f0b)
    ST("it0")
    def side_stash(sc, st, gv):
        for k in range(16): assert sc.putw(rdQ(192, k >> 2, k & 3), 0, st[12] - 12) < st[12] - 8
    sWO = sWU; sWo, sHc = 54, 55
    vWo = 23
    sCx, sOb = 81, 82
    def side_osetup(sc, part, lo=0):
        o = []
        for i in range(5):
            o.append(f"""
            v_add_u32 {V(vWo+i)}, {64*i}, v0
            v_mul_u32_u24 v19, 3277, {V(vWo+i)}
            v_lshrrev_b32 v19, 16, v19
            v_mul_u32_u24 v4, 20, v19
            v_sub_u32 {V(vWo+i)}, {V(vWo+i)}, v4
            v_bfe_u32 v4, v19, 2, 1
            v_lshlrev_b32 v4, 1, v4
            v_xor_b32 {V(vWo+i)}, {V(vWo+i)}, v4
            v_mul_u32_u24 v19, 1280, v19
            v_lshl_add_u32 {V(vWo+i)}, {V(vWo+i)}, 4, v19
            """)
        if part < 5: sc.seq(o[part:part+1], lo); return
        sc.seq([f"""
        s_and_b32 {S(sT3)}, {S(sHD)}, 3
        s_mul_i32 {S(sWo)}, {S(sT3)}, 320
        s_mul_i32 {S(sT3)}, {S(sWV)}, {32*1280}
        s_add_u32 {S(sWo)}, {S(sWo)}, {S(sT3)}
        s_lshr_b32 {S(sT3)}, {S(sHD)}, 2
        s_mul_i32 {S(sT3)}, {S(sT3)}, {512*1280}
        s_add_u32 {S(sWo)}, {S(sWo)}, {S(sT3)}
        s_mov_b32 s40, {FH(L_LO)}
        s_mov_b32 s41, {FH(L_HI)}
        s_bitcmp1_b32 {S(sWV)}, 0
        s_cselect_b64 s[42:43], -1, 0
        s_bitcmp1_b32 {S(sWV)}, 1
        s_cselect_b64 s[74:75], -1, 0
        s_mul_i32 s71, {S(sWV)}, 10240
        s_lshr_b32 {S(sCx)}, {S(sHD)}, 2
        s_lshl_b32 {S(sCx)}, {S(sCx)}, 3
        s_add_u32 {S(sCx)}, {S(sCx)}, {S(sJ)}
        s_lshl_b32 {S(sCx)}, {S(sCx)}, 2
        s_add_u32 {S(sOb)}, {S(sCx)}, {S(sWV)}
        s_lshl_b32 {S(sCx)}, {S(sOb)}, 2
        s_and_b32 {S(sT3)}, {S(sHD)}, 3
        s_add_u32 {S(sCx)}, {S(sCx)}, {S(sT3)}
        s_lshl_b32 {S(sCx)}, {S(sCx)}, 14
        s_add_u32 {S(sCx)}, {S(sCx)}, {WS_CTX}
        """], 50)
    sJs, sJd, sJp, sJb, sJi = 16, 17, 18, 19, 8
    vJr, vJc, vJo, vJa = 17, 18, 19, 12
    JR = [A(180, 4), A(184, 4), A(188, 4), V(28, 4)]
    def half(r, hf): return (A if r[0] == "a" else V)(rno(r) + 2*hf, 2)
    def j_setup():
        return toI([f"""
        v_lshrrev_b32 {V(vJr)}, 3, v0
        v_bfe_u32 {V(vJc)}, v0, 4, 2
        v_lshlrev_b32 {V(vJc)}, 1, {V(vJc)}
        v_and_b32 v4, 7, v0
        v_xor_b32 {V(vJc)}, {V(vJc)}, v4
        v_lshlrev_b32 {V(vJc)}, 4, {V(vJc)}
        s_lshl_b32 {S(sJi)}, s2, 2
        s_add_u32 {S(sJi)}, {S(sJi)}, {S(sWV)}
        s_add_u32 {S(sJb)}, {S(sLw)}, 131072
        """])
    def j_dma(srd, buf):
        o = [f"v_mad_u32_u24 {V(vJo)}, {V(vJr)}, {S(sJp)}, {V(vJc)}", f"s_lshl_b32 {S(sJp)}, {S(sJp)}, 3"]
        for i in range(4):
            if i: o.append(f"s_add_u32 {S(sJs)}, {S(sJs)}, {S(sJp)}")
            o += [f"s_add_u32 m0, {S(sJb)}, {buf*4096 + i*1024}", I(f"buffer_load_dwordx4 {V(vJo)}, {S(srd,4)}, {S(sJs)} offen{nt('j')} lds", "j")]
        return toI(o)
    def t_addr():
        return toI([f"""
        s_sub_u32 {S(sT3)}, {S(sJi)}, 540
        s_cmp_lt_u32 {S(sJi)}, 540
        s_cselect_b32 {S(sT3)}, {S(sJi)}, {S(sT3)}
        s_cmp_lt_u32 {S(sJi)}, 540
        s_cselect_b32 {S(RT)}, {S(RT)}, {S(RO)}
        s_cmp_lt_u32 {S(sJi)}, 540
        s_cselect_b32 {S(RT+1)}, {S(RT+1)}, {S(RO+1)}
        s_cmp_lt_u32 {S(sJi)}, 540
        s_cselect_b32 {S(RT+2)}, {S(RT+2)}, {S(RO+2)}
        s_mov_b32 s9, {hex((2**32 + 9)//10)}
        s_cmp_lt_u32 {S(sJi)}, 540
        s_cselect_b32 s9, {hex((2**32 + 26)//27)}, s9
        s_cmp_lt_u32 {S(sJi)}, 540
        s_cselect_b32 s10, 27, 10
        s_mov_b32 {S(sJd)}, {WS_WOUT}
        s_cmp_lt_u32 {S(sJi)}, 540
        s_cselect_b32 {S(sJd)}, {WS_WIN}, {S(sJd)}
        s_lshl_b32 {S(sJp)}, s10, 7
        s_mul_hi_u32 s9, {S(sT3)}, s9
        s_mul_i32 s10, s9, s10
        s_sub_u32 s10, {S(sT3)}, s10
        s_lshl_b32 {S(sT3)}, {S(sT3)}, 12
        s_add_u32 {S(sJd)}, {S(sJd)}, {S(sT3)}
        s_mul_i32 {S(sJs)}, s9, {S(sJp)}
        s_lshl_b32 {S(sJs)}, {S(sJs)}, 5
        s_lshl_b32 s10, s10, 7
        s_add_u32 {S(sJs)}, {S(sJs)}, s10
        s_cmp_lt_u32 {S(sJi)}, 810
        s_cselect_b32 {S(sJd)}, {S(sJd)}, {hex(OOB)}
        """])
    def t_out():
        o = [f"""
        v_lshrrev_b32 v4, 2, v0
        v_bfe_u32 {V(vJa)}, v0, 3, 2
        v_lshlrev_b32 {V(vJa)}, 5, {V(vJa)}
        v_lshl_add_u32 {V(vJa)}, v4, 7, {V(vJa)}
        v_and_b32 v4, 3, v0
        v_lshl_add_u32 {V(vJa)}, v4, 3, {V(vJa)}
        v_add_u32 {V(vJa)}, {S(sJb)}, {V(vJa)}
        v_xor_b32 {V(vJa+1)}, 32, {V(vJa)}
        v_xor_b32 {V(vJa+2)}, 64, {V(vJa)}
        v_xor_b32 {V(vJa+3)}, 96, {V(vJa)}
        """]
        rd = [f"ds_read_b64_tr_b16 {half(JR[n], hf)}, {V(vJa+n)} offset:{hf*2048}" for n in range(4) for hf in range(2)]
        st = [f"buffer_store_dwordx4 {JR[n]}, {V(vL)}, {sWS}, {S(sJd)} offen offset:{n*1024}{SC}" for n in range(4)]
        return toI(o), toI(rd), toI(st)
    def s_addr(k):
        return toI([f"""
        s_lshr_b32 s9, {S(sJi)}, 5
        s_add_u32 s9, s9, {32*k}
        s_and_b32 s10, {S(sJi)}, 31
        s_lshl_b32 {S(sJs)}, s9, 17
        s_lshl_b32 s10, s10, 7
        s_add_u32 {S(sJs)}, {S(sJs)}, s10
        s_mov_b32 {S(sJp)}, 4096
        """])
    def s_out(k, buf):
        o = [f"""
        s_lshr_b32 {S(sJd)}, {S(sJi)}, 6
        s_add_u32 {S(sJd)}, {S(sJd)}, {16*k}
        s_lshl_b32 {S(sJd)}, {S(sJd)}, 18
        s_and_b32 s11, {S(sJi)}, 31
        s_lshl_b32 s11, s11, 13
        s_add_u32 {S(sJd)}, {S(sJd)}, s11
        s_bfe_u32 s11, {S(sJi)}, 0x10005
        s_lshl_b32 s11, s11, 11
        s_add_u32 {S(sJd)}, {S(sJd)}, s11
        s_add_u32 {S(sJd)}, {S(sJd)}, {WS_WSP}
        s_add_u32 s11, {S(sJd)}, 4096
        """]
        if k == 0: o.append(f"""
        v_bfe_u32 {V(vJa)}, v0, 1, 2
        v_lshlrev_b32 {V(vJa)}, 5, {V(vJa)}
        v_and_b32 v4, 15, v0
        v_lshl_add_u32 {V(vJa)}, v4, 7, {V(vJa)}
        v_lshrrev_b32 v4, 4, v0
        v_lshl_add_u32 {V(vJa)}, v4, 3, {V(vJa)}
        v_add_u32 {V(vJa)}, {S(sJb)}, {V(vJa)}
        v_xor_b32 {V(vJa+1)}, 32, {V(vJa)}
        v_xor_b32 {V(vJa+2)}, 64, {V(vJa)}
        v_xor_b32 {V(vJa+3)}, 96, {V(vJa)}
        """)
        rd = [f"ds_read_b64 {half(JR[2*ks+mt], hf)}, {V(vJa+2*ks+hf)} offset:{buf*4096 + mt*2048}" for ks in range(2) for mt in range(2) for hf in range(2)]
        st = [f"buffer_store_dwordx4 {JR[2*ks+mt]}, {V(vL)}, {sWS}, {'s11' if ks else S(sJd)} offen offset:{mt*1024}{SC}" for ks in range(2) for mt in range(2)]
        return toI(o), toI(rd), toI(st)
    def wseq(sc, ins, lo, step=1):
        ins = toI(ins); sc.seqs.append(ins); g = lo; prev = None
        for i in ins:
            if i.kind in ("salu", "pseudo"):
                if prev is not None and prev.op.startswith("s_cmp"): sc.put(i, g, force=True)
                else: g = sc.put(i, g + (prev is not None and prev.kind != "salu"))
            else: g = sc.putw(i, g + 1, g + 3) + (step if i.kind == "vmem" else 0)
            prev = i
        return g
    def freeg(sc, lo):
        return next(g for g in range(lo, len(sc.mf)) if sc.free[g] == 2)
    def job_out(sc, st, gv, parts):
        _, rd, sto = parts
        for x in sto: x.tag = "js"
        g = freeg(sc, JR0); sc.raw("@waitvm j", g, "pre")
        for x in rd[:4] + sto[:1] + rd[4:6] + sto[1:2] + rd[6:] + sto[2:]:
            if x.kind == "vmem": g = max(g, JSP[sto.index(x)])
            g = sc.put(x, freeg(sc, g)) + 1
        assert g < st[12] - 4
    def side1(sc, st, gv):
        side_stash(sc, st, gv); sc.seq(j_setup() + t_addr(), 20)
    def st_init():
        return toI([f"""
        v_and_b32 v21, 15, v0
        v_lshlrev_b32 v21, 3, v21
        v_bfe_u32 v22, v0, 4, 1
        v_mul_u32_u24 v22, {WS_ST2 - WS_ST1}, v22
        v_add_u32 v21, v21, v22
        v_mov_b32 v14, -1.0
        v_mov_b32 v15, -1.0
        s_lshl_b32 s9, {S(sJi)}, 7
        s_add_u32 s9, s9, {WS_ST1}
        buffer_store_dwordx2 v[14:15], v21, {sWS}, s9 offen sc1
        """])
    def side2(sc, st, gv):
        g = sc.seq(["@waitvm kv0", f"s_lshl_b32 s9, {S(sHD)}, 7", f"s_add_u32 s9, s9, {WS_FLG + FL_K0*128}", f"buffer_atomic_add {V(vOne)}, {V(vFlagW)}, {sWS}, s9 offen"], 8)
        g = sc.seq(j_dma(RT, 0), max(g, gv) + 1, 4); assert g < st[12] - 8
        g = sc.seq(st_init(), g + 1)
        sc.seq(t_out()[0], g + 1)
    poll_t = f"buffer_load_dword v22, v21, {sWS}, 0 offen sc1"
    def side3(sc, st, gv):
        job_out(sc, st, gv, t_out()); sc.seq(s_addr(0), 40); side_osetup(sc, 5); side_osetup(sc, 0); side_osetup(sc, 1, 70)
    def side4(sc, st, gv):
        g = sc.seq(["s_and_b32 s9, s2, 31", "s_lshl_b32 s9, s9, 7", f"s_add_u32 s9, s9, {WS_FLG + FL_T*128}", "@waitvm js",
                    f"buffer_atomic_add {V(vOne)}, {V(vFlagW)}, {sWS}, s9 offen"], gv - 2)
        g = sc.seq(j_dma(RS, 0), g + 1, 4); assert g < st[12] - 8
        sc.seq(s_out(0, 0)[0], 20)
        if PW:
            sc.seq([f"s_lshr_b32 s4, {S(sJi)}, 7", f"s_bfe_u32 s5, {S(sJi)}, 0x50002", "s_mul_i32 s6, s5, 20", "s_mul_i32 s7, s4, 5", "s_add_u32 s6, s6, s7",
                    f"s_add_u32 s6, s6, {WS_XA // 4096 + 2}", "s_mul_i32 s5, s5, 27", "s_mul_i32 s7, s4, 7", "s_add_u32 s5, s5, s7", f"s_add_u32 s5, s5, {WS_U // 4096 + 3 - 28}",
                    "s_cmp_lt_u32 s4, 4", "s_cselect_b32 s6, s6, s5", "s_lshl_b32 s6, s6, 2", f"s_add_u32 s6, s6, {S(sWV)}", "s_lshl_b32 s6, s6, 10",
                    "s_cmp_lt_u32 s4, 7", f"s_cselect_b32 s6, s6, {hex(OOB)}",
                    f"buffer_store_dwordx4 {V(NM(0), 4)}, {V(vL)}, {sWS}, s6 offen sc1"], 3)
    def side5(sc, st, gv):
        job_out(sc, st, gv, s_out(0, 0)); sc.seq(s_addr(1), 40)
        assert sc.seq([f"v_add_u32 {V(vPa)}, {(FL_K0 - FL_KV)*128}, {V(vPa)}", poll_kv], 56) < st[12]
        side_osetup(sc, 2)
    def side6(sc, st, gv):
        g = sc.seq(["v_and_b32 v21, 31, v0", "v_lshlrev_b32 v21, 7, v21", f"v_add_u32 v21, {WS_FLG + FL_T*128}, v21", poll_t], 20)
        g = sc.seq(j_dma(RS, 0), max(g, gv) + 1, 4); assert g < st[12] - 8
        sc.seq(s_out(1, 0)[0], 4)
        if CPF:
            pc = pf_code("s", 4, 28); sc.raw(pc[:2], g + 1); sc.seq(pc[2:], g + 2)
    def side7(sc, st, gv):
        if TLB == 17: sc.seq(["v_lshlrev_b32 v21, 21, v0", "s_mov_b32 s4, 0x1fff80", f"buffer_load_dword v22, v21, {sWS}, s4 offen"], 84)
        job_out(sc, st, gv, s_out(1, 0)); side_osetup(sc, 3); side_osetup(sc, 4, 70)
        sc.seq(["s_and_b32 s9, s2, 31", "s_lshl_b32 s9, s9, 7", f"s_add_u32 s9, s9, {WS_FLG + FL_R*128}"], 60)
        sc.raw(["@waitvm js", f"buffer_atomic_add {V(vOne)}, {V(vFlagW)}, {sWS}, s9 offen"], len(sc.mf) - 3)
    sides = [side1, side2, side3, side4, side5, side6, side7]
    if WOP:
        def with_wo(f):
            def g_(sc, st, gv):
                sc.seq(["s_lshr_b32 s5, s2, 3", "s_lshl_b32 s5, s5, 2", f"s_add_u32 s5, s5, {S(sWV)}", f"s_lshr_b32 s4, {S(sHD)}, 2", "s_lshl_b32 s4, s4, 7",
                        "s_add_u32 s5, s5, s4", "s_mul_i32 s5, s5, 5120", "v_min_u32 v7, 39, v0", "v_lshlrev_b32 v7, 7, v7",
                        f"buffer_load_dword v7, v7, {sWO}, s5 offen"], gv - 12)
                f(sc, st, gv)
            return g_
        k_ = 0 if WOP == 9 else WOP - 1
        sides[k_] = with_wo(sides[k_])
    if fine == "side": T.stamp(b, "it0")
    for k, sd in enumerate(sides):
        it_ = iteration((k + 1) & 1, True, "full", True, name + "_pv0" if k == 6 else None, sd)
        if "sld" in drop2: it_ = [i for i in it_ if not (i.kind == "vmem" and i.tag == "j")]
        if "sst" in drop2: it_ = [i for i in it_ if not (i.kind == "vmem" and "store" in i.op)]
        b(it_)
        if k == 4: spin(name + "_p0", vPk, poll_kv, 32)
        if k == 5: spin(name + "_pt", 22, poll_t, 32)
        if k == 6: ex7 = b.flush()
        if fine == "side": T.stamp(b, f"it{k+1}")
    if fine == "att0": ST("it2")
    ins, outs = b.chain_loop([(name + "_even", iteration(0, True, "full", True, name + "_pv1")),
                              (name + "_odd", iteration(1, True, "full", True, name + "_pv0")[:-1] + toI([f"s_cbranch_scc0 {name}_even", f"s_branch {name}_pv0"]))], extra={1: skip})
    outs = outs[::-1]
    for kg in range(2): b.label(f"{name}_g{kg}"); b.out += gtext[kg]
    TMP, CF = 64, 32
    CB = [0, 40960, 81920, 122880]
    def dmaO(c):
        o = [f"s_add_u32 {S(sHc)}, {S(sHD)}, {0 if 'ohit' in drop2 else c}", f"s_and_b32 {S(sHc)}, {S(sHc)}, 3", f"s_mul_i32 {S(sHc)}, {S(sHc)}, {128*1280}", f"s_add_u32 {S(sHc)}, {S(sHc)}, {S(sWo)}"]
        for k in range(10):
            if k == 5: o.append(f"s_add_u32 {S(sHc)}, {S(sHc)}, {16*1280}")
            o += [f"s_add_u32 m0, s71, {CB[c] + k*1024}", I(f"buffer_load_dwordx4 {V(vWo + k % 5)}, {sWO}, {S(sHc)} offen{nt('O')} lds", f"o{c}")]
        return toI(o)
    def Xf(c, ks, m):
        if c == 0: return A(192 + 8*ks + 4*m, 4) if m < 2 else V(CF + 8*ks + 4*(m-2), 4)
        return A(64*(c-1) + 16*ks + 4*m, 4)
    sCc = 58
    def ldX(c, passes):
        o = [f"s_add_u32 {S(sCc)}, {S(sHD)}, {0 if 'xhit' in drop2 else c}", f"s_and_b32 {S(sCc)}, {S(sCc)}, 3", f"s_lshl_b32 {S(sT2)}, {S(sOb)}, 2", f"s_add_u32 {S(sCc)}, {S(sCc)}, {S(sT2)}",
             f"s_lshl_b32 {S(sCc)}, {S(sCc)}, 14", f"s_add_u32 {S(sCc)}, {S(sCc)}, {WS_CTX}"]
        for p in passes:
            for ks in range(4):
                if ks % 2 == 0: o.append(f"s_add_u32 {S(sT2)}, {S(sCc)}, {(0 if 'xhit' in drop2 else p)*8192 + ks*2048}")
                for a in range(2): o.append(f"buffer_load_dwordx4 {Xf(c, ks, 2*p + a)}, {V(vL)}, {sWS}, {S(sT2)} offen offset:{(ks & 1)*2048 + a*1024}{CXL}")
        return toI(o)
    def own_long(tag):
        return toI(["v_lshlrev_b32 v21, 7, v0", f"buffer_load_dword a186, v21, {sWS}, {S(sCx)} offen{CXL}"])
    sFx = 79
    poll_r = f"buffer_load_dword v22, {V(vPa)}, {sWS}, 0 offen sc1"
    def side_o0(sc, st, gv):
        arr = toI([f"s_lshl_b32 {S(sFx)}, {S(sOb)}, 8", f"s_add_u32 {S(sFx)}, {S(sFx)}, {WS_FLG + FL_CX*128}",
                   f"s_cmp_eq_u32 {S(sSafe)}, 0", f"s_cselect_b32 {S(sKs)}, {S(sFx)}, {hex(OOB)}", "@waitvm cx",
                   f"buffer_atomic_add {V(vOne)}, {V(vFlagW)}, {sWS}, {S(sKs)} offen offset:128",
                   f"v_min_u32 {V(vPa)}, 35, v0", f"v_lshlrev_b32 {V(vPa)}, 7, {V(vPa)}", f"v_add_u32 {V(vPa)}, {WS_FLG + FL_R*128}, {V(vPa)}", poll_r])
        paced(sc, vgroups(arr + (own_long(0) if OWN == 1 or (OWN == 3 and len(sc.mf) < 60) else []) + dmaO(0) + (own_long(0) if OWN == 2 else [])), 0, len(sc.mf) - 4)
    def side_vec(sc, st, gv):
        o = [f"""
        v_and_b32 v21, 15, v0
        v_lshrrev_b32 v22, 4, v0
        v_lshlrev_b32 v22, 4, v22
        v_lshl_add_u32 v22, v21, 6, v22
        v_cmp_gt_u32 vcc, 2, v21
        v_mov_b32 v21, {hex(OOB)}
        v_cndmask_b32 v22, v21, v22, vcc
        s_mul_i32 s9, {S(sWV)}, 640
        s_add_u32 s9, s9, {WS_MODB}
        s_mul_i32 s10, {S(sWV)}, {5*108*1024}
        s_lshl_b32 s11, s2, 10
        s_add_u32 s10, s10, s11
        s_add_u32 s10, s10, {WS_WIN - 148*1024}
        s_cmp_ge_u32 s2, 148
        s_cselect_b32 s10, s10, {hex(OOB)}
        """]
        for k in range(5):
            if k: o.append(f"s_add_u32 s10, s10, {108*1024}")
            o += [f"buffer_load_dwordx4 {A(64+8*k,4)}, {V(vL)}, {sWS}, s10 offen sc1", f"buffer_load_dwordx4 {A(68+8*k,4)}, v22, {sWS}, s9 offen offset:{128*k} sc1"]
        o = toI(o)
        sc.seq(o[7:15], 0); g = sc.seq(o[:7], 4)
        gv_ = paced(sc, vgroups(o[15:]), max(g + 1, 9), 46)
        g = sc.seq(masks(False, gv), 12); assert g < sc.gchk - 12
        t = gv + 4
        g = sc.seq([f"""
        v_lshrrev_b32 {V(t)}, 4, v0
        v_lshlrev_b32 {V(t)}, 2, {V(t)}
        v_and_b32 {V(t+1)}, 15, v0
        v_sub_u32 {V(t)}, {V(t+1)}, {V(t)}
        v_lshlrev_b32 {V(t+1)}, 4, {V(t)}
        v_mov_b32 {V(t+2)}, 0x3f80
        v_lshlrev_b32 {V(t+1)}, {V(t+1)}, {V(t+2)}
        v_lshrrev_b32 {V(t)}, 1, {V(t)}
        v_cmp_eq_u32 vcc, 0, {V(t)}
        v_cmp_eq_u32 {S(sMK,2)}, 1, {V(t)}
        v_accvgpr_write_b32 a182, 0
        v_accvgpr_write_b32 a183, 0
        v_cndmask_b32 {V(t+2)}, 0, {V(t+1)}, vcc
        v_cndmask_b32 {V(t+3)}, 0, {V(t+1)}, {S(sMK,2)}
        v_accvgpr_write_b32 a180, {V(t+2)}
        v_accvgpr_write_b32 a181, {V(t+3)}
        v_accvgpr_write_b32 a184, {V(t+2)}
        v_accvgpr_write_b32 a185, {V(t+3)}
        """], g + 1)
        pw = toI([f"""
        v_lshlrev_b32 {V(gv)}, 7, v0
        v_cmp_gt_u32 vcc, 40, v0
        v_cndmask_b32 {V(gv)}, v21, {V(gv)}, vcc
        s_lshr_b32 s11, s2, 3
        s_lshl_b32 s11, s11, 2
        s_add_u32 s11, s11, {S(sWV)}
        s_lshr_b32 s8, {S(sHD)}, 2
        s_lshl_b32 s8, s8, 7
        s_add_u32 s11, s11, s8
        s_mul_i32 s11, s11, 5120
        buffer_load_dword v51, {V(gv)}, {sWO}, s11 offen{nt('o')}
        v_lshlrev_b32 v22, 2, v0
        v_cmp_gt_u32 vcc, 16, v0
        v_cndmask_b32 v22, v21, v22, vcc
        s_lshl_b32 s9, s2, 6
        s_add_u32 s9, s9, {WS_VEC - 148*64}
        s_cmp_ge_u32 s2, 148
        s_cselect_b32 s9, s9, {hex(OOB)}
        s_cmp_eq_u32 {S(sWV)}, 0
        s_cselect_b32 s9, s9, {hex(OOB)}
        s_add_u32 s10, s9, 0x2000
        """])
        pw[10] = I(pw[10].t.replace("v51,", "a186,"))
        sc.seq(pw[3:10], 10); sc.seq(pw[14:], gv_ + 1)
        pw[2] = I(f"v_cndmask_b32 v21, v21, {V(gv)}, vcc")
        sc.seq(pw[11:14] + pw[:3], max(g, gv_) + 1)
        sc.raw([MF(A(104,4), A(68+8*k,4), A(64+8*k,4), A(104,4) if k else "0") for k in range(5)], len(sc.mf) - 1, "pre")
        sc.raw(f"ds_write_b128 v19, {A(104,4)} offset:4096", 999)
    fin0 = []; fin1 = []
    for par, preds in ((0, outs[0] + ex7), (1, outs[1] + it0a + it0b)):
        b.label(f"{name}_pv{par}", preds); ST("loop")
        b(f"s_cmp_eq_u32 {S(sPass)}, 1"); b(f"s_cbranch_scc1 {name}_pw{par}"); pw = b.flush()
        b(iteration(par, False, "full", True, None, side_vec)); b(f"s_branch {name}_fin0"); fin0 += b.flush()
        b.label(f"{name}_pw{par}", pw); b(iteration(par, False, "full", True, None, side_o0)); b(f"s_branch {name}_fin1"); fin1 += b.flush()
    b.label(name + "_pvd0", spv0); b(iteration(0, False, 0, False, None, side_o0)); b(f"s_branch {name}_fin1"); fin1 += b.flush()
    b.label(name + "_pvd1", spv1); b(iteration(0, False, 1, False, None, side_o0)); b(f"s_branch {name}_fin1"); fin1 += b.flush()
    def merge_reads(hop, more=[]):
        b("s_waitcnt lgkmcnt(0)"); b("s_barrier")
        for i in range(4):
            for a in range(2): b(f"ds_read_b128 {V(TMP + 8*i + 4*a, 4)}, {V(vXp)} offset:{(a*4+i)*1024}")
        b(more)
        if HOP: b(hop)
    def merge_add():
        return Sched([MF(V(O(2*i + h, 2 + a), 4), A(180 + 2*h, 4), V(TMP + 8*i + 4*a, 4), V(O(2*i + h, 2 + a), 4)) for i in range(4) for a in range(2) for h in range(2)])
    cxl = []
    def normalise(off, skip=0):
        for i in range(4):
            for a in range(2):
                r0, r1 = O(2*i, 2 + a), O(2*i + 1, 2 + a)
                if 2*i + a >= skip:
                    for t in (r0, r0 + 2, r1, r1 + 2): b(f"v_pk_mul_f32 {V(t,2)}, {V(t,2)}, {V(28+2*a,2)} op_sel_hi:[1,0]")
                d = CF + 8*i + 4*a if off else r0
                for k, t in enumerate((r0, r0 + 2, r1, r1 + 2)): b(f"v_cvt_pk_bf16_f32 {V(d+k)}, {V(t)}, {V(t+1)}")
                if off and 2*i + a >= CX0:
                    cxl.append(toI([f"s_add_u32 {S(sKs)}, {S(sCx)}, {off + (i >> 1)*4096}"])
                               + [I(f"buffer_store_dwordx4 {V(d,4)}, {V(vL)}, {sWS}, {S(sKs)} offen offset:{(i & 1)*2048 + a*1024}{CXS}", "cx")])
                    continue
                if (i, a) in ((0, 0), (2, 0)): b(f"s_add_u32 {S(sT3)}, {S(sCx)}, {off + i*2048}")
                b(f"buffer_store_dwordx4 {V(d,4)}, {V(vL)}, {sWS}, {S(sT3)} offen offset:{(i & 1)*2048 + a*1024}{CXS}", "cx")
                if not off:
                    for k in range(4): b(f"v_accvgpr_write_b32 {A(rno(Xf(0, i, a)) + k)}, {V(d+k)}")
    b.label(name + "_fin0", fin0)
    ST("pv")
    b(f"""
    s_mov_b32 {S(sPass)}, 1
    s_mov_b32 {S(sBLK)}, {S(sBLK2)}
    s_mov_b32 {S(sR0)}, 0
    s_mov_b32 {S(sA0)}, {hex(OOB)}
    s_mov_b32 {S(sA1)}, {hex(OOB)}
    s_mov_b32 {S(sAl)}, 163840
    @waitvm k
    """)
    merge_reads("@hop d", [f"ds_read_b64 {V(56+2*w,2)}, {V(vLx)} offset:{4096 + w*1024}" for w in range(4)])
    ST("xr")
    b([rdK0(0, ds) for ds in range(4)])
    b(f"""
    v_pk_add_f32 v[56:57], v[56:57], v[58:59]
    v_pk_add_f32 v[60:61], v[60:61], v[62:63]
    v_pk_add_f32 v[56:57], v[56:57], v[60:61]
    buffer_store_dword v56, v22, {sWS}, s9 offen sc1
    buffer_store_dword v57, v22, {sWS}, s10 offen sc1
    """)
    movs = [f"v_accvgpr_mov_b32 {A(r)}, {A(192+r)}" for r in range(64)]
    vd = vgroups(toI(unit_diag(sVs, sVb)) + dmaKV(1, 0, sVs, "v"))
    sc = merge_add()
    paced(sc, vd[:4], 0, 16)
    nm_ = sum(sc.free)
    for x in movs[:nm_]: sc.put(x, 0)
    b(sc.emit())
    rest = movs[nm_:]
    for k, gr in enumerate(vd[4:]): b(gr); b(rest[k*len(rest)//4 : (k+1)*len(rest)//4])
    normalise(0)
    if WOP in (0, 9): b(f"buffer_load_dword a186, v21, {sWO}, s11 offen{nt('o')}", "cx")
    b(f"s_cmp_eq_u32 {S(sSafe)}, 0"); b(f"s_cbranch_scc1 {name}_nz"); nz = b.flush()
    for r in range(16): b(f"v_mov_b32 {V(NM(0)+r)}, 0")
    b.label(name + "_nz", nz + b.flush())
    if fine is not True: T.stamp(b, "blk1end")
    b("s_waitcnt lgkmcnt(0)"); b(f"s_branch {name}_blk")
    for x in b.flush():
        assert [e[1] for e in x.vm][-NCX-1:] == ["v"] + ["cx"] * NCX and not x.lg and all(e[0] <= {("a", 186)} for e in x.vm)
    b.label(name + "_fin1", fin1)
    ST("pv")
    poll_l = [f"v_mov_b32 {V(vPk)}, 0", f"buffer_atomic_add {V(vPk)}, {V(vFlagW)}, {sWS}, {S(sFx)} offen offset:128 sc0"]
    b(poll_l)
    b(f"s_load_dwordx2 s[8:9], s[0:1], {ARG['bsp']}"); b(f"s_load_dwordx2 s[12:13], s[0:1], {ARG['out']}")
    d1 = vgroups(dmaO(1))
    merge_reads(["@hop e", f"{name}_op0:"], [x for gr in d1[:OE1] for x in gr])
    ST("xr")
    sc = merge_add()
    if OE2: paced(sc, d1[OE1:OE1 + OE2], 0, 7)
    for k in range(2):
        r0, r1 = O(0, 2 + k), O(1, 2 + k)
        sc.seq([f"v_mul_f32 {V(t)}, {V(t)}, {V(28+2*k)}" for r in (r0, r1) for t in range(r, r + 4)], 7 + 4*k)
    b(sc.emit())
    normalise(8192, 2)
    T.stamp(b, "attend")
    vOa = 8
    b(f"""
    v_lshrrev_b32 v28, 2, v0
    v_mul_u32_u24 v28, 320, v28
    v_and_b32 v29, 3, v0
    v_lshl_add_u32 v28, v29, 3, v28
    v_bfe_u32 v29, v0, 4, 1
    v_lshlrev_b32 v29, 5, v29
    v_add_u32 {V(vOa)}, v28, v29
    v_sub_u32 v28, v28, v29
    v_add_u32 {V(vOa+1)}, 32, v28
    @waitvm o0
    s_barrier
    """)
    def oacc(n, m): return 96 + 16*n + 4*m
    def OWf(k, off, n): return V(64 + 16*(k & 3) + off, n) if (k & 3) < 2 else A(192 + 16*(k & 3) + off, n)
    ALL = (0, 1, 2, 3)
    outers = [(0, n, ALL) for n in range(10)]
    outers += ([(1, n, (0, 1)) for n in range(10)] + [(1, n, (2, 3)) for n in range(10)]) if OSP else [(1, n, ALL) for n in range(10)]
    outers += [(2, n, ALL) for n in range(OH)] + [(3, n, ALL) for n in range(OH)] + [(c, n, ALL) for n in range(OH, 10) for c in (2, 3)]
    if OB1:
        outers = [(0, n, ALL) for n in range(10)] + [(c, n, (0, 1)) for c in (1, 2, 3) for n in range(10)]
        outers += [(1, n, (2, 3)) for n in range(10)] + [(c, n, (2, 3)) for n in range(10) for c in (2, 3)]
    def rdO(k):
        c, n, _ = outers[k]
        return [f"ds_read_b64_tr_b16 {OWf(k, 4*ks + 2*hf, 2)}, {V(vOa + 2*c + (n & 1))} offset:{(32*ks + 16*hf)*320 + (n & ~1)*32}"
                for ks in range(4) for hf in range(2)]
    b(rdO(0))
    spin_at(name + "_pl", vPk, poll_l, 4)
    b("v_cmp_gt_u32 vcc, 32, v0"); b("v_cndmask_b32 v21, 27, 32, vcc".replace("v_cndmask_b32", "v_cndmask_b32_e64"))
    spin(name + "_pr", 22, poll_r, "v21")
    vPa, vPk = 17, 18
    poll_kv = f"buffer_load_dword {V(vPk)}, {V(vPa)}, {sWS}, 0 offen sc1"
    mf = []; og = []
    for k, (c, n, ms) in enumerate(outers):
        og.append(len(mf))
        for m in ms:
            for ks in range(4):
                d = V(oacc(n, m), 4)
                mf.append(MF(d, OWf(k, 4*ks, 4), Xf(c, ks, m), "0" if (c == 0 and ks == 0) else d))
    og.append(len(mf))
    sc = Sched(mf)
    rstart = {}
    for k in range(1, len(outers)):
        rstart[k] = og[k] - 16
        for r, x in enumerate(rdO(k)): sc.put(x, rstart[k] + r, force=True)
        sc.raw(f"@need {OWf(k, 0, 16)}", og[k] - 1, "pre")
    seq(sc, [f"v_add_u32 {V(vOa + 2*c + e)}, {CB[c]}, {V(vOa + e)}" for c in (1, 2, 3) for e in (0, 1)], 8)
    firstc = {c: min(k for k, o in enumerate(outers) if o[0] == c) for c in (1, 2, 3)}
    for c in (1, 2, 3): sc.raw([f"@waitvm o{c}", "s_barrier"], rstart[firstc[c]] - 1, "post2")
    def pace2(groups, g0, step):
        g = g0
        for gr in groups:
            for x in gr[:-1]: sc.raw(x, g - 1, "post")
            g = sc.putw(gr[-1], g, g + 1) + step
        return g
    if OPF:
        pf = toI([f"""
        s_lshr_b32 s6, s2, 3
        s_lshl_b32 s6, s6, 2
        s_add_u32 s6, s6, {S(sWV)}
        s_lshl_b32 s6, s6, 6
        v_add_u32 v28, s6, v0
        v_mul_u32_u24 v29, 1171, v28
        v_lshrrev_b32 v29, 18, v29
        v_mul_u32_u24 v30, 224, v29
        v_sub_u32 v28, v28, v30
        v_mul_u32_u24 v30, {108*8}, v29
        v_add_u32 v28, v28, v30
        v_subrev_u32 v30, {20*108*8 + 54*8}, v28
        v_cmp_gt_u32 vcc, 20, v29
        v_cndmask_b32 v28, v30, v28, vcc
        v_add_u32 v28, {54*8}, v28
        v_lshlrev_b32 v28, 7, v28
        s_and_b32 s6, s2, 1
        s_mul_i32 s6, s6, {28*1024}
        s_add_u32 s6, s6, {WS_WIN}
        s_bfe_u32 s7, s2, 0x20001
        s_lshl_b32 s7, s7, 3
        s_lshr_b32 s4, s2, 5
        s_add_u32 s7, s7, s4
        s_lshl_b32 s7, s7, 2
        s_add_u32 s7, s7, {S(sWV)}
        s_mul_i32 s7, s7, {16*1280}
        s_and_b32 s4, s2, 1
        s_lshl_b32 s4, s4, 2
        s_bfe_u32 s5, s2, 0x20003
        s_add_u32 s4, s4, s5
        s_mul_i32 s4, s4, 160
        s_add_u32 s7, s7, s4
        v_bfe_u32 v29, v0, 1, 4
        v_mul_u32_u24 v29, 1280, v29
        v_and_b32 v30, 1, v0
        v_lshl_add_u32 v29, v30, 7, v29
        """])
        seq(sc, pf, 20)
        opf = [toI([f"buffer_load_dword v31, v28, {sWS}, s6 offen sc1"]), toI([f"buffer_load_dword v31, v29, {S(R['dbg'],4)}, s7 offen"])]
    def mix(lds, sts, g, step, sstep):
        k = 0
        for n_, gr in enumerate(lds):
            g = pace2([gr], g, step)
            while k < len(sts) and (k + 1) * len(lds) <= (n_ + 1) * len(sts): g = pace2([sts[k]], g, sstep); k += 1
        return g
    n1 = min(len(cxl), CX1)
    g = mix(d1[OE1 + OE2:] + vgroups(ldX(1, (0,))), cxl[:n1], OA, OL, OU); assert g <= 160 + OU, g
    arr = [toI(["@waitvm cx", f"buffer_atomic_add {V(vOne)}, {V(vFlagW)}, {sWS}, {S(sFx)} offen"])]
    g = mix(vgroups(dmaO(2)), cxl[n1:], g, OL2, 4); assert g < 216, g
    early = n1 == len(cxl)
    g = pace2((arr if early else []) + vgroups(ldX(2, (0,))), g, OL2 if g < 190 else 4 if g < 200 else 2); assert g <= 242, g
    g = pace2(([] if early else arr) + vgroups(dmaO(3)), max(g, 146), OL2 if g < 230 else 4); assert g < 296, g
    poll_c = [f"v_mov_b32 {V(vPk)}, 0", f"buffer_atomic_add {V(vPk)}, {V(vFlagW)}, {sWS}, {S(sFx)} offen sc0"]
    pace2([toI(poll_c)], g, 1)
    g = pace2(vgroups(ldX(3, (0,))), g + 3, 4 if g < 280 else 3); assert g <= 322, g
    OC = g
    sc.raw("@mark pc", OC)
    g = pace2(vgroups(ldX(1, (1,))), OC + 2, 5); assert g <= 400
    g = pace2(vgroups(ldX(2, (1,))) + vgroups(ldX(3, (1,))), g, OS + 2); assert g <= 480, g
    gl = g
    if OPF: pace2(opf, OG, 4)
    sP0, sP1 = 40, 41
    seq(sc, [f"s_lshr_b32 {S(sT3)}, {S(sHD)}, 2", f"s_mul_i32 {S(sP0)}, {S(sT3)}, {32*20*4096}", f"s_add_u32 {S(sP0)}, {S(sP0)}, {WS_PART + 20*4096}",
             f"s_lshr_b32 {S(sT3)}, {S(sWV)}, 1", f"s_mul_i32 {S(sT3)}, {S(sT3)}, {20*4096}", f"s_sub_u32 {S(sP0)}, {S(sP0)}, {S(sT3)}",
             f"s_and_b32 {S(sT3)}, {S(sWV)}, 1", f"s_lshl_b32 {S(sT3)}, {S(sT3)}, 10", f"s_add_u32 {S(sP0)}, {S(sP0)}, {S(sT3)}",
             f"s_and_b32 {S(sT3)}, {S(sHD)}, 3", f"s_mul_i32 {S(sT3)}, {S(sT3)}, {5*4096}", f"s_add_u32 {S(sP0)}, {S(sP0)}, {S(sT3)}",
             f"s_mul_i32 {S(sT3)}, {S(sJ)}, {40*4096}", f"s_add_u32 {S(sP1)}, {S(sP0)}, {S(sT3)}",
             f"s_sub_u32 {S(sP0)}, {S(sP0)}, {S(sT3)}", f"s_add_u32 {S(sP0)}, {S(sP0)}, {15*40*4096}"], 10)
    def done(n, m):
        k = max(k for k, o in enumerate(outers) if o[1] == n and m in o[2]); return og[k] + 4*outers[k][2].index(m)
    g = gl - OT if LF else 0
    order = sorted([(p, m) for p in range(5) for m in range(4)], key=lambda x: done(2*x[0] + 1, x[1]))
    for p, m in order:
        if True:
            r0, r1 = oacc(2*p, m), oacc(2*p + 1, m)
            cv = lambda d, x: f"v_cvt_pk_bf16_f32 {V(d)}, {V(x)}, {V(x+1)}"
            seq(sc, [cv(r0, r0), cv(r0+1, r0+2)], done(2*p, m) + 9)
            g = wseq(sc, [cv(r0+2, r1), cv(r0+3, r1+2), f"s_add_u32 {S(sT3)}, {S(sP1 if m >> 1 else sP0)}, {p*4096}",
                         I(f"buffer_store_dwordx4 {V(r0,4)}, {V(vL)}, {sWS}, {S(sT3)} offen offset:{(m & 1)*2048}{PST}", f"pt{m >> 1}")],
                    max(g + (OT if done(2*p + 1, m) < 600 else 0), done(2*p + 1, m) + 9))
            if m < 2: g_long = g
    hk = {"pc": lambda: spin_at(name + "_pc", vPk, poll_c, 4)}
    seq(sc, [f"s_lshl_b32 s75, {S(sJ)}, 2", f"s_and_b32 s74, {S(sHD)}, 3", "s_add_u32 s75, s75, s74", "s_lshl_b32 s75, s75, 2", f"s_add_u32 s75, s75, {S(sWV)}",
             "s_lshl_b32 s75, s75, 8", f"s_add_u32 s75, s75, {WS_FLG + FL_P*128}", f"s_lshr_b32 s74, {S(sHD)}, 2", "s_lshl_b32 s74, 1, s74", "v_mov_b32 v31, s74"], 40)
    pace2([toI(["@waitvm pt0", f"buffer_atomic_add v31, {V(vFlagW)}, {sWS}, s75 offen offset:128"])], g_long + OQ, 1)
    assert seq(sc, tail.pre(WS_FLG + FL_P*128, R), OY) < OZ - 2
    sc.raw([f"v_mov_b32 {V(vPk)}, 0"], OZ - 1)
    sc.put(f"buffer_atomic_add {V(vPk)}, {V(vFlagW)}, {sWS}, s83 offen sc0", OZ, force=True)
    if fine == "op":
        for gg in (79, 159, 239, 319, 399, 479, 559):
            sc.raw(f"@mark g{gg}", gg, "post2"); hk[f"g{gg}"] = lambda gg=gg: T.stamp(b, f"g{gg}")
    if "nopt" in drop2:
        for gl_ in sc.g: gl_[:] = [x for x in gl_ if not (x[1].tag or "").startswith("pt")]
        sc.seqs = []
    emit_split(sc, hk)
    T.stamp(b, "end")
    tail(b, T, name, R, vPk, HOP)
    if probe:
        T.n = 7; T.names[:] = [f"p{k}" for k in range(7)]
        for k in range(7): b(f"s_mov_b32 {S(84 + k)}, {S(86 + 2*k)}")
    T.dump(b, R["ws"], 2, sWV, 12)
    b.label(name + "_end")
    b("s_endpgm")
    b.emit_cold()
    b.label(name + "_slow", [State()])
    b(f"""
    s_waitcnt vmcnt(0) lgkmcnt(0)
    s_mov_b32 {S(sSafe)}, 1
    s_mov_b32 {S(sN)}, 0
    """)
    for q in range(4): b(f"v_mov_b32 {V(64+q)}, {FH(NEGBIG)}")
    b(f"""
    v_lshrrev_b32 v69, 4, v0
    v_lshlrev_b32 v69, 2, v69
    v_and_b32 v68, 15, v0
    v_sub_u32 v68, v68, v69
    s_and_b32 {S(sT2)}, {S(sWV)}, 1
    s_lshl_b32 {S(sT2)}, {S(sT2)}, 4
    v_add_u32 v68, {S(sT2)}, v68
    s_lshr_b32 {S(sT2)}, {S(sWV)}, 1
    s_lshl_b32 s36, {S(sT2)}, 5
    s_add_u32 s37, s36, 16
    s_sub_u32 s38, 96, s36
    s_add_u32 s39, s38, 16
    s_lshl_b32 s4, {S(sT2)}, 6
    s_xor_b32 s5, s4, 32
    s_xor_b32 s6, s4, 64
    s_xor_b32 s7, s4, 96
    v_mov_b32 v70, {FH(NEGBIG)}
    """)
    body = toI(["s_barrier", f"s_lshl_b32 {S(sKs)}, {S(sN)}, 15", f"s_add_u32 {S(sKs)}, {S(sKs)}, {S(sKb)}"]) + dmaKV(0, 0, sKs, "k")
    body += toI(["s_waitcnt vmcnt(0)", "s_barrier",
                 f"s_cmp_eq_u32 {S(sN)}, {S(sBLK)}", f"s_cselect_b32 {S(sT3)}, 0, 4096"])
    for kt in range(4):
        body += toI([rdK(0, kt, ds) for ds in range(4)])
        body += toI([f"v_subrev_u32 v69, {S(36+kt)}, v68", f"v_add_u32 v69, {S(sT3)}, v69"])
        for q in range(4):
            for ds in range(4): body += toI([MF(V(Sw(q), 4), Kf(kt, ds), Qf(ds, q), V(Sw(q), 4) if ds else "0")])
        for q in range(4):
            body += toI([f"v_add_u32 v72, {S(4+q)}, v69"])
            for r in range(4):
                body += toI([f"v_cmp_gt_i32 vcc, {r}, v72", f"v_cndmask_b32 v71, {V(Sw(q)+r)}, v70, vcc", f"v_max_f32 {V(64+q)}, {V(64+q)}, v71"])
    body += toI(["s_waitcnt lgkmcnt(0)", f"s_add_u32 {S(sN)}, {S(sN)}, 1", f"s_cmp_le_u32 {S(sN)}, {S(sBLK)}", f"s_cbranch_scc1 {name}_mx"])
    b.chain_loop([(name + "_mx", body)], align=0)
    for q in range(4):
        b(f"""
        v_mov_b32 v68, {V(64+q)}
        v_permlane16_swap_b32 {V(64+q)}, v68
        v_max_f32 {V(64+q)}, {V(64+q)}, v68
        v_mov_b32 v68, {V(64+q)}
        v_permlane32_swap_b32 {V(64+q)}, v68
        v_max_f32 {V(64+q)}, {V(64+q)}, v68
        """)
    b(f"""
    s_lshl_b32 {S(sT3)}, {S(sWV)}, 10
    v_add_u32 v19, {S(sT3)}, {V(vLx)}
    ds_write_b128 v19, v[64:67]
    v_xor_b32 v19, 0x800, v19
    s_waitcnt lgkmcnt(0)
    s_barrier
    ds_read_b128 v[68:71], v19
    """)
    for q in range(4):
        b(f"v_max_f32 {V(64+q)}, {V(64+q)}, {V(68+(q ^ 2))}")
        for r in range(4): b(f"v_sub_f32 {V(NM(q)+r)}, 0, {V(64+q)}")
    b("s_barrier")
    b(unit_r0(sKs, sKb)); b(dmaKV(0, 1, sKs, "k")); b(unit_diag(sVs, sVb)); b(dmaKV(1, 0, sVs, "v"))
    b([rdK0(0, ds) for ds in range(4)])
    b("s_waitcnt vmcnt(0) lgkmcnt(0)"); b(f"s_branch {name}_retry")
    b.flush()
    if probe:
        la, lb, step, skip_ = (list(probe) + [0])[:4]
        ia = next(k for k, i in enumerate(b.out) if i.t == f"{name}_{la}:"); ib = next(k for k, i in enumerate(b.out) if i.t == f"{name}_{lb}:")
        new = []; cnt = 0; n0 = 0
        for k, i in enumerate(b.out):
            if ia < k < ib and i.kind not in ("label", "pseudo"):
                if cnt >= skip_ + n0 * step and n0 < 7 and not i.op.startswith(("s_cselect", "s_cbranch", "s_addc")):
                    new.append(I(f"s_memtime s[{86 + 2*n0}:{87 + 2*n0}]")); n0 += 1
                cnt += 1
            new.append(i)
        b.out = new
    lastw = {}
    for i in b.out:
        if i.kind == "label" and i.t.endswith("_blk:"): break
        if i.tag in ("kv0", "kv1") or i.op == "ds_write_b128":
            data = regs_of(i.t.split(None, 1)[1].split(",")[0 if i.kind == "vmem" else 1].split()[0])
            assert all(lastw[r].op in ("v_cvt_pk_bf16_f32", "v_accvgpr_write_b32") for r in data), i.t
        if i.op == "v_accvgpr_write_b32" and not i.t.endswith("v30"): assert all(lastw[r].op == "v_cvt_pk_bf16_f32" for r in i.r), i.t
        for r in i.w: lastw[r] = i
    text = b.text()
    if HOP:
        import hops
        L = lambda x: f"{name}_{x}"
        text, cnt = hops.apply(text, S(sWV), L("main"), [(e, L(x), L("end")) for e, x in (("a", "main"), ("b", "even"), ("d", "g0"), ("b", "pv0"), ("d", "pw0"), ("b", "pv1"),
                                                                   ("d", "pw1"), ("b", "fin0"), ("d", "fin1"), ("e", "op0"), ("c", "t_ne"))],
                               {L(x) for x in ("d2", "it1", "g0", "g1", "pv0", "pw0", "pv1", "pw1", "fin0", "fin1") + HX})
        if stamps: print(cnt)
    return dict(name=name, text=text, kd=kd(name, 512, 256), launch=f"; @launch {'' if name.startswith('adaLN') and not aslist else f'kernel={name} '}grid=(256,1,1) block=(256,1,1) lds=163840", stamps=T.names)
```

```python
import sys, mk6, traceback
V = eval(sys.argv[1])
for nm, x in zip("abcdef", V):
    kw, kf = x if isinstance(x, tuple) else (x, {})
    try: mk6.mk(f'f_{nm}.s', True, kw, kf, view='min')
    except AssertionError: traceback.print_exc()
```
